```python
import torch

def _softmax(x, axis=-1):
    return torch.softmax(x, dim=axis)
def _gelu(x):
    return torch.nn.functional.gelu(x, approximate="tanh")
def _silu(x):
    return torch.nn.functional.silu(x)
def _sigmoid(x):
    return torch.sigmoid(x)
def _layernorm(x, axis=-1, eps=1e-5):
    m = x.mean(dim=axis, keepdim=True)
    v = x.var(dim=axis, keepdim=True, unbiased=False)
    return (x - m) / torch.sqrt(v + eps)
def _scatter_add(tgt, idx, src, axis=0):
    return tgt.clone().index_add_(axis, idx, src)
def _segment_sum(src, seg, n):
    out = torch.zeros((n,) + src.shape[1:], dtype=src.dtype)
    return out.index_add_(0, seg, src)
def _pad(x, pw):
    flat = tuple(v for pair in reversed(pw) for v in pair)
    return torch.nn.functional.pad(x, flat)

kernel_name = 'parallel_sum__linear_kernel_hedgehog__dense_activation_gelu__prompt'

def setup_inputs():

    _w = (lambda a: (lambda t: t.to(torch.bfloat16) if t.is_floating_point() else t)(torch.as_tensor(a)))
    def _A_setup():
        B, S, D, H = 1, 2048, 512, 32
        Dh = D // H
        return {
            "x": _w((lambda *s: torch.randn(*s, dtype=torch.bfloat16) * 0.05)(B, S, D)),
            "wqkv": _w((lambda *s: torch.randn(*s, dtype=torch.bfloat16) * 0.2)(D, 3 * D)),
            "w_phi": _w((lambda *s: torch.randn(*s, dtype=torch.bfloat16) * 0.2)(H, Dh, Dh) * (Dh ** -0.5)),
            "wo": _w((lambda *s: torch.randn(*s, dtype=torch.bfloat16) * 0.05)(D, D)),
        }
    _A_in = _A_setup()

    def _B_setup():
        B, S, D, F = 1, 2048, 512, 1792
        return {
            "x": _w((lambda *s: torch.randn(*s, dtype=torch.bfloat16) * 0.05)(B, S, D)),
            "w1": _w((lambda *s: torch.randn(*s, dtype=torch.bfloat16) * 0.8)(D, F) * (D ** -0.5)),
            "b1": _w((lambda *s: torch.randn(*s, dtype=torch.bfloat16) * 12.8)(F) * 0.01),
            "w2": _w((lambda *s: torch.randn(*s, dtype=torch.bfloat16) * 0.4)(F, D) * (F ** -0.5)),
            "b2": _w((lambda *s: torch.randn(*s, dtype=torch.bfloat16) * 6.4)(D) * 0.01),
        }
    _B_in = _B_setup()

    return {
        "A_x": _A_in["x"],
        "A_wqkv": _A_in["wqkv"],
        "A_w_phi": _A_in["w_phi"],
        "A_wo": _A_in["wo"],
        "B_x": _B_in["x"],
        "B_w1": _B_in["w1"],
        "B_b1": _B_in["b1"],
        "B_w2": _B_in["w2"],
        "B_b2": _B_in["b2"],
    }

def reference(A_x, A_wqkv, A_w_phi, A_wo, B_x, B_w1, B_b1, B_w2, B_b2):
    def _A_ref(x, wqkv, w_phi, wo):
        B, S, D = x.shape
        H = 32; Dh = D // H
        qkv = (lambda x, *d: x.permute(*d))((x @ wqkv).reshape(B, S, 3, H, Dh), 2, 0, 3, 1, 4)
        q, k, v = qkv[0], qkv[1], qkv[2]
        pq = torch.einsum("bhsd,hdf->bhsf", q, w_phi)
        pk = torch.einsum("bhsd,hdf->bhsf", k, w_phi)
        phi_q = torch.concatenate([_softmax(pq, axis=-1), _softmax(-pq, axis=-1)], axis=-1)
        phi_k = torch.concatenate([_softmax(pk, axis=-1), _softmax(-pk, axis=-1)], axis=-1)
        kv = torch.einsum("bhsf,bhsd->bhfd", phi_k, v)
        z  = torch.einsum("bhsf->bhf", phi_k)
        num = torch.einsum("bhqf,bhfd->bhqd", phi_q, kv)
        den = torch.einsum("bhqf,bhf->bhq", phi_q, z)[..., None] + 1e-6
        o = num / den
        return (lambda x, *d: x.permute(*d))(o, 0, 2, 1, 3).reshape(B, S, D) @ wo

    def _B_ref(x, w1, b1, w2, b2):
        h = torch.einsum("bsd,df->bsf", x, w1) + b1
        h = _gelu(h)
        return torch.einsum("bsf,fd->bsd", h, w2) + b2

    x = A_x
    xn = _layernorm(x, axis=-1)
    return x + _A_ref(xn, A_wqkv, A_w_phi, A_wo) + _B_ref(xn, B_w1, B_b1, B_w2, B_b2)
```

```python
import sys, math, struct

OPT = dict(stamps=0, st1="", k1only=0)
for a in sys.argv[2:]:
    k, v = a.split("=")
    OPT[k] = int(v) if v.lstrip("-").isdigit() else v

H_OFF, PQ_OFF, KVP_OFF, KVZ_OFF, FLG_OFF = 0, 0x800000, 0xC00000, 0xE00000, 0xE10000
STAMP_OFF = 200 << 20
NSTAMP = 8

def f2u(x): return struct.unpack("<I", struct.pack("<f", x))[0]

class Asm:
    def __init__(self): self.L = []
    def __call__(self, s): self.L.append("    " + s)
    def label(self, s): self.L.append(s + ":")
    def c(self, s): self.L.append("    ; " + s)
    def text(self): return "\n".join(self.L) + "\n"

def vr(b, n=1): return f"v{b}" if n == 1 else f"v[{b}:{b+n-1}]"
def ar(b, n=1): return f"a{b}" if n == 1 else f"a[{b}:{b+n-1}]"
def sr(b, n=1): return f"s{b}" if n == 1 else f"s[{b}:{b+n-1}]"
MFMA = "v_mfma_f32_32x32x16_bf16"

def srd(e, d, lo, hi, size):
    e(f"s_mov_b32 s{d}, s{lo}"); e(f"s_mov_b32 s{d+1}, s{hi}")
    e(f"s_mov_b32 s{d+2}, {size:#x}"); e(f"s_mov_b32 s{d+3}, 0x00020000")

def stamp(e, idx, base=80):
    if OPT["stamps"]:
        e(f"s_memtime s[{base+2*idx}:{base+2*idx+1}]")

def stamp_begin(e, base=80):
    if OPT["stamps"]:
        e(f"s_memrealtime s[{base}:{base+1}]")
        e(f"s_memtime s[{base-2}:{base-1}]")
        for i in range(2, NSTAMP):
            e(f"s_mov_b64 s[{base+2*i}:{base+2*i+1}], 0")

def stamp_end(e, kidx, wssrd, lbl, wave_sgpr, wave_sel, base=80):
    if not OPT["stamps"]: return
    e(f"s_cmp_lg_u32 s{wave_sgpr}, {wave_sel}")
    e(f"s_cbranch_scc1 {lbl}")
    e("s_waitcnt vmcnt(0)")
    e(f"s_memrealtime s[{base+2}:{base+3}]")
    e(f"s_memtime s[{base+2*(NSTAMP-1)}:{base+2*(NSTAMP-1)+1}]")
    e("s_waitcnt lgkmcnt(0)")
    for i in range(2, NSTAMP):
        e(f"s_sub_u32 s{base+2*i}, s{base+2*i}, s{base-2}")
        e(f"s_mov_b32 s{base+2*i+1}, 0")
    e(f"s_mul_i32 s{base-2}, s2, {8*NSTAMP}")
    e(f"s_add_u32 s{base-2}, s{base-2}, {STAMP_OFF + kidx*256*8*NSTAMP}")
    e("s_mov_b64 exec, 1")
    e("v_mov_b32 v1, 0")
    for i in range(NSTAMP // 2):
        for j in range(4):
            e(f"v_mov_b32 v{4+j}, s{base+4*i+j}")
        e(f"buffer_store_dwordx4 v[4:7], v1, {sr(wssrd,4)}, s{base-2} offen offset:{16*i}")
        e("s_nop 1")
    e("s_waitcnt vmcnt(0)")

def gen_k1():
    e = Asm()
    ST1 = OPT["st1"].replace("_", " ")
    SX, SW, SWS, SAUX = 8, 12, 16, 20
    sW, sRG, sP, sC, sRB, sTYPE = 24, 25, 26, 27, 28, 29
    sPITCH, sPB, sSB, sXO = 30, 31, 32, 33
    sONES, sLO, sHI, sMASK = 34, 35, 36, 37
    sT0, sT1, sT2, sT3, sT4 = 38, 39, 40, 41, 42
    sCOL = 44
    sSLOT, sIT, sOUT, sK1, sP16 = 48, 49, 50, 51, 52
    sDA, sDB, sMA, sMB = 53, 54, 55, 56
    sLT16, sCL2E = 58, 60
    vL, vL16, vDMA, vTRB, vTR, vWA = 1, 2, 3, 4, 5, 6
    vS = 8
    vFR = 16
    vAUX, vSEL = 24, 28
    TMP, RAW, ACC, WB, XF = 32, 64, 64, 80, 128
    NWB = 6
    e("s_cmp_ge_u32 s2, 256")
    e("s_cbranch_scc1 K1_END")
    stamp_begin(e)
    e("s_load_dwordx4 s[64:67], s[0:1], 0")
    e("s_load_dwordx2 s[68:69], s[0:1], 16")
    e("s_load_dwordx4 s[72:75], s[0:1], 40")
    e("s_load_dwordx2 s[70:71], s[0:1], 88")
    e(f"v_lshrrev_b32 v{vS}, 6, v0")
    e(f"v_and_b32 v{vL}, 63, v0")
    e(f"v_readfirstlane_b32 s{sW}, v{vS}")
    e(f"s_and_b32 s{sT0}, s2, 7")
    e(f"s_lshr_b32 s{sT1}, s2, 3")
    e(f"s_lshr_b32 s{sRB}, s{sT0}, 1"); e(f"s_lshl_b32 s{sRB}, s{sRB}, 2")
    e(f"s_and_b32 s{sT2}, s{sT1}, 3"); e(f"s_add_u32 s{sRB}, s{sRB}, s{sT2}")
    e(f"s_lshr_b32 s{sT1}, s{sT1}, 2")
    e(f"s_and_b32 s{sTYPE}, s{sT1}, 1")
    e(f"s_lshr_b32 s{sT1}, s{sT1}, 1")
    e(f"s_and_b32 s{sC}, s{sT0}, 1"); e(f"s_lshl_b32 s{sC}, s{sC}, 2"); e(f"s_add_u32 s{sC}, s{sC}, s{sT1}")
    e(f"s_and_b32 s{sRG}, s{sW}, 3"); e(f"s_lshr_b32 s{sP}, s{sW}, 2")
    e(f"v_lshrrev_b32 v{vS}, 4, v{vL}"); e(f"v_and_b32 v{vS+1}, 15, v{vL}")
    e(f"v_lshlrev_b32 v{vS+2}, 10, v{vS}"); e(f"v_lshl_add_u32 v{vS+2}, v{vS+1}, 4, v{vS+2}")
    e(f"s_lshl_b32 s{sXO}, s{sRB}, 2"); e(f"s_add_u32 s{sXO}, s{sXO}, s{sRG}")
    e(f"s_lshl_b32 s{sT0}, s{sXO}, 15"); e(f"s_lshl_b32 s{sT1}, s{sP}, 13"); e(f"s_add_u32 s{sT0}, s{sT0}, s{sT1}")
    e(f"s_lshl_b32 s{sT1}, s{sP}, 14")
    e(f"s_xor_b32 s{sT2}, s{sT1}, 0x4000")
    e(f"s_add_u32 s{sT3}, s{sT0}, s{sT1}")
    e(f"s_add_u32 s{sT4}, s{sT0}, s{sT2}")
    e("s_waitcnt lgkmcnt(0)")
    srd(e, SX, 64, 65, 2048 * 1024)
    def xload(g, sreg, extra):
        for i in range(4):
            e(f"buffer_load_dwordx4 {vr(RAW+16*g+4*i,4)}, v{vS+2}, {sr(SX,4)}, s{sreg} offen offset:{256*i}")
    xload(0, sT3, 0)
    e(f"s_add_u32 s{sT1}, s{sT4}, 0x1000")
    xload(1, sT1, 0)
    xload(2, sT4, 0)
    e(f"s_add_u32 s{sT1}, s{sT3}, 0x1000")
    xload(3, sT1, 0)
    srd(e, SWS, 70, 71, 0x10000000)
    e(f"v_and_b32 v{vS+3}, 31, v{vL}")
    e(f"v_lshrrev_b32 v{vS+4}, 5, v{vL}")
    e(f"s_cmp_eq_u32 s{sTYPE}, 0")
    e("s_cbranch_scc1 K1_SETQ")
    srd(e, SW, 72, 73, 512 * 3584)
    srd(e, SAUX, 74, 75, 3584)
    e(f"s_movk_i32 s{sPITCH}, 3584")
    e(f"s_mul_i32 s{sT0}, s{sC}, 448")
    e(f"s_and_b32 s{sT1}, s{sC}, 1")
    e(f"s_lshl_b32 s{sT2}, s{sT1}, 6"); e(f"s_add_u32 s{sPB}, s{sT0}, s{sT2}")
    e(f"s_xor_b32 s{sT1}, s{sT1}, 1"); e(f"s_mul_i32 s{sT1}, s{sT1}, 384"); e(f"s_add_u32 s{sSB}, s{sT0}, s{sT1}")
    e(f"s_cmp_eq_u32 s{sP}, 0")
    e(f"s_cselect_b32 s{sT0}, 0, 64"); e(f"s_add_u32 s{sCOL}, s{sPB}, s{sT0}")
    e(f"s_add_u32 s{sT0}, s{sPB}, 128"); e(f"s_cmp_eq_u32 s{sP}, 0"); e(f"s_cselect_b32 s{sCOL+1}, s{sSB}, s{sT0}")
    e(f"s_add_u32 s{sCOL+2}, s{sCOL}, 192")
    e(f"s_add_u32 s{sCOL+3}, s{sPB}, 320")
    e(f"s_lshl_b32 s{sT0}, s{sP}, 7"); e(f"s_add_u32 s{sDA}, s{sPB}, s{sT0}"); e(f"s_add_u32 s{sDA}, s{sDA}, 128")
    e(f"s_lshl_b32 s{sMA}, s{sP}, 16"); e(f"s_add_u32 s{sMB}, s{sMA}, 0x8000")
    e(f"v_lshlrev_b32 v{vS+5}, 1, v{vS+3}")
    for rep in range(2):
        for i in range(4):
            e(f"buffer_load_ushort v{vAUX+i}, v{vS+5}, {sr(SAUX,4)}, s{sCOL+i} offen")
    e("s_branch K1_SETD")
    e.label("K1_SETQ")
    srd(e, SW, 66, 67, 512 * 3072)
    srd(e, SAUX, 68, 69, 32 * 512)
    e(f"s_movk_i32 s{sPITCH}, 3072")
    e(f"s_lshl_b32 s{sSB}, s{sC}, 7"); e(f"s_add_u32 s{sPB}, s{sSB}, 1024")
    e(f"s_cmp_eq_u32 s{sP}, 0")
    e(f"s_cselect_b32 s{sT0}, 64, 2048"); e(f"s_add_u32 s{sDA}, s{sSB}, s{sT0}")
    e(f"s_lshl_b32 s{sMA}, s{sP}, 15"); e(f"s_mov_b32 s{sMB}, 0x10000")
    e(f"v_lshrrev_b32 v{vS+5}, 4, v{vS+3}"); e(f"v_lshlrev_b32 v{vS+5}, 9, v{vS+5}")
    e(f"v_lshl_add_u32 v{vS+5}, v{vS+4}, 7, v{vS+5}"); e(f"v_lshl_add_u32 v{vS+5}, v{vS+1}, 1, v{vS+5}")
    e(f"s_lshl_b32 s{sT0}, s{sC}, 11"); e(f"s_lshl_b32 s{sT1}, s{sP}, 10"); e(f"s_add_u32 s{sT0}, s{sT0}, s{sT1}")
    for j in range(8):
        d = (j & 3) + 8 * (j >> 2)
        e(f"buffer_load_ushort v{vAUX+j}, v{vS+5}, {sr(SAUX,4)}, s{sT0} offen offset:{32*d}")
    e.label("K1_SETD")
    e(f"v_lshrrev_b32 v{vDMA}, 2, v{vL}"); e(f"v_mul_lo_u32 v{vDMA}, v{vDMA}, s{sPITCH}")
    e(f"v_and_b32 v{vS+5}, 3, v{vL}"); e(f"v_lshl_add_u32 v{vDMA}, v{vS+5}, 4, v{vDMA}")
    e(f"s_lshl_b32 s{sP16}, s{sPITCH}, 4")
    e(f"s_lshl_b32 s{sT0}, s{sP16}, 2"); e(f"s_mul_i32 s{sT0}, s{sT0}, s{sW}")
    e(f"s_add_u32 s{sT1}, s{sT0}, s{sPB}")
    e(f"s_lshl_b32 s{sT2}, s{sW}, 12")
    for i in range(4):
        e(f"s_add_u32 m0, s{sT2}, {0x10000 + 1024*i}")
        e(f"s_add_u32 s{sT3}, s{sT1}, 64")
        e(f"buffer_load_dwordx4 v{vDMA}, {sr(SW,4)}, s{sT1} offen lds")
        e(f"s_add_u32 m0, s{sT2}, {0x18000 + 1024*i}")
        e(f"s_add_u32 s{sT1}, s{sT1}, s{sP16}")
        e(f"buffer_load_dwordx4 v{vDMA}, {sr(SW,4)}, s{sT3} offen lds")
    e(f"s_add_u32 s{sT1}, s{sT0}, s{sSB}")
    for i in range(4):
        e(f"s_add_u32 m0, s{sT2}, {0x20000 + 1024*i}")
        e("s_nop 0")
        e(f"buffer_load_dwordx4 v{vDMA}, {sr(SW,4)}, s{sT1} offen lds")
        e(f"s_add_u32 s{sT1}, s{sT1}, s{sP16}")
    e(f"s_mov_b32 s{sONES}, 0x3f803f80"); e(f"s_mov_b32 s{sLO}, 0x00003f80"); e(f"s_mov_b32 s{sHI}, 0x3f800000")
    e(f"s_mov_b32 s{sMASK}, 0xffff0000")
    e(f"v_lshlrev_b32 v{vL16}, 4, v{vL}")
    e(f"v_lshlrev_b32 v{vTRB}, 9, v{vS+4}")
    e(f"v_bfe_u32 v{vS+6}, v{vL}, 2, 2"); e(f"v_lshl_add_u32 v{vTRB}, v{vS+6}, 6, v{vTRB}")
    e(f"v_bfe_u32 v{vS+6}, v{vL}, 4, 1"); e(f"v_lshl_add_u32 v{vTRB}, v{vS+6}, 5, v{vTRB}")
    e(f"v_lshl_add_u32 v{vTRB}, v{vS+5}, 3, v{vTRB}")
    e(f"s_lshl_b32 s{sT0}, s{sP}, 3"); e(f"s_lshl_b32 s{sT1}, s{sRG}, 14")
    for g in range(2):
        e(f"v_add_u32 v{vS+6}, s{sT0}, v{vS}")
        if g: e(f"v_add_u32 v{vS+6}, 4, v{vS+6}")
        e(f"v_xor_b32 v{vS+7}, v{vS+6}, v{vS+1}")
        e(f"v_lshlrev_b32 v{vS+7}, 4, v{vS+7}")
        e(f"v_lshl_add_u32 v{vS+7}, v{vS+6}, 10, v{vS+7}")
        e(f"v_add_u32 v{vWA+g}, s{sT1}, v{vS+7}")
    e(f"v_xor_b32 v{vS+6}, v{vS+4}, v{vS+1}"); e(f"v_lshlrev_b32 v{vS+6}, 4, v{vS+6}")
    e(f"v_lshl_add_u32 v{vS+6}, v{vS+1}, 10, v{vS+6}"); e(f"v_add_u32 v{vFR}, s{sT1}, v{vS+6}")
    for s in range(1, 8):
        e(f"v_xor_b32 v{vFR+s}, {32*s}, v{vFR}")
    e(f"v_cmp_gt_u32 {sr(sLT16,2)}, 16, v{vS+3}")
    e("s_cmp_lg_u32 s2, 0"); e("s_cbranch_scc1 K1_NOFLG")
    e(f"s_cmp_ge_u32 s{sW}, 4"); e("s_cbranch_scc1 K1_NOFLG")
    for j in range(4): e(f"v_mov_b32 v{TMP+j}, 0")
    e(f"s_lshl_b32 s{sT0}, s{sW}, 10"); e(f"s_add_u32 s{sT0}, s{sT0}, {FLG_OFF}")
    e(f"buffer_store_dwordx4 {vr(TMP,4)}, v{vL16}, {sr(SWS,4)}, s{sT0} offen")
    e("s_nop 1")
    e.label("K1_NOFLG")
    stamp(e, 2)

    def dpp_reduce(v):
        for sh in (8, 4, 2, 1):
            e("s_nop 1")
            e(f"v_add_f32_dpp v{v}, v{v}, v{v} row_ror:{sh} row_mask:0xf bank_mask:0xf")
    def rnd_bf16(dst, src):
        e(f"v_cvt_pk_bf16_f32 v{dst}, v{src}, v{src}")
        e(f"v_and_b32 v{dst}, s{sMASK}, v{dst}")
    def ln_group(g):
        R = RAW + 16 * g
        a0, a1, nm, dl, q0, q1 = vS, vS + 1, vS + 2, vS + 3, vS + 4, vS + 6
        e(f"s_waitcnt vmcnt({32 - 4*g})")
        e(f"v_mov_b32 v{a0}, 0"); e(f"v_mov_b32 v{a1}, 0")
        for i in range(16):
            e(f"v_dot2c_f32_bf16 v{a0 + (i & 1)}, s{sONES}, v{R+i}")
        for j in range(4): e(f"v_mov_b32 v{q0+j}, 0")
        e(f"v_add_f32 v{a0}, v{a0}, v{a1}")
        dpp_reduce(a0)
        e(f"v_mul_f32 v{a0}, {f2u(-1.0/512):#x}, v{a0}")
        rnd_bf16(nm, a0)
        e(f"v_sub_f32 v{dl}, v{a0}, v{nm}")
        for i in range(16):
            e(f"v_dot2_f32_bf16 v{TMP+2*i}, v{R+i}, s{sLO}, v{nm}")
            e(f"v_dot2_f32_bf16 v{TMP+2*i+1}, v{R+i}, s{sHI}, v{nm}")
        for i in range(16):
            q = q0 if i % 2 == 0 else q1
            e(f"v_pk_fma_f32 {vr(q,2)}, {vr(TMP+2*i,2)}, {vr(TMP+2*i,2)}, {vr(q,2)}")
        e(f"v_pk_add_f32 {vr(q0,2)}, {vr(q0,2)}, {vr(q1,2)}")
        e(f"v_mul_f32 v{dl}, v{dl}, v{dl}")
        e(f"v_add_f32 v{a0}, v{q0}, v{q0+1}")
        dpp_reduce(a0)
        e(f"v_mul_f32 v{a0}, {f2u(1.0/512):#x}, v{a0}")
        e(f"v_sub_f32 v{a0}, v{a0}, v{dl}")
        e(f"v_max_f32 v{a0}, 0, v{a0}")
        rnd_bf16(a0, a0)
        e(f"v_add_f32 v{a0}, {f2u(1e-5):#x}, v{a0}")
        rnd_bf16(a0, a0)
        e(f"v_sqrt_f32 v{a0}, v{a0}")
        e("s_nop 0")
        rnd_bf16(a0, a0)
        e(f"v_rcp_f32 v{a0}, v{a0}")
        e("s_nop 0")
        for i in range(16):
            e(f"v_pk_mul_f32 {vr(TMP+2*i,2)}, {vr(TMP+2*i,2)}, {vr(a0,2)} op_sel_hi:[1,0]")
        for i in range(16):
            e(f"v_cvt_pk_bf16_f32 v{R+i}, v{TMP+2*i}, v{TMP+2*i+1}")
    def ln_write(g):
        R = RAW + 16 * g
        for i in range(4):
            e(f"ds_write_b128 v{vWA + (g & 1)}, {vr(R+4*i,4)} offset:{256*i}")
    def frag_reads(mask):
        e(f"s_mov_b32 exec_lo, {mask:#x}"); e(f"s_mov_b32 exec_hi, {mask:#x}")
        for s in range(32):
            e(f"ds_read_b128 {vr(XF+4*s,4)}, v{vFR + (s & 7)} offset:{256*(s>>3)}")
        e("s_mov_b64 exec, -1")
    G1 = 0x0FF0F00F
    ln_group(0); ln_write(0)
    ln_group(1); ln_write(1)
    e("s_waitcnt lgkmcnt(0)"); e("s_barrier")
    frag_reads(G1)
    ln_group(2)
    e("s_waitcnt lgkmcnt(0)"); e("s_barrier")
    ln_write(2)
    ln_group(3); ln_write(3)
    e("s_waitcnt vmcnt(4) lgkmcnt(0)"); e("s_barrier")
    stamp(e, 3)
    frag_reads(G1 ^ 0xFFFFFFFF)

    def mblock(swap=False, bias=None):
        e(f"v_add_u32 v{vTR}, s{sSLOT}, v{vTRB}")
        PF = NWB - 1
        def rd(s):
            b = WB + 4 * (s % NWB)
            e(f"ds_read_b64_tr_b16 {vr(b,2)}, v{vTR} offset:{1024*s}")
            e(f"ds_read_b64_tr_b16 {vr(b+2,2)}, v{vTR} offset:{1024*s+256}")
        for s in range(PF): rd(s)
        if bias: e(f"{MFMA} {vr(ACC,16)}, {vr(bias[0],4)}, {vr(bias[1],4)}, 0")
        for s in range(32):
            if s + PF < 32: rd(s + PF)
            if s == 29:
                e("s_waitcnt vmcnt(0) lgkmcnt(0)"); e("s_barrier")
            elif s < 29:
                e(f"s_waitcnt lgkmcnt({2 * min(PF, 31 - s)})")
            w, x = vr(WB + 4 * (s % NWB), 4), vr(XF + 4 * s, 4)
            a, b = (x, w) if swap else (w, x)
            c = "0" if (s == 0 and not bias) else vr(ACC, 16)
            e(f"{MFMA} {vr(ACC,16)}, {a}, {b}, {c}")
        e(f"s_add_u32 s{sSLOT}, s{sSLOT}, 0x10000")
        e(f"s_cmp_ge_u32 s{sSLOT}, 0x28000")
        e(f"s_cselect_b32 s{sT0}, 0x28000, 0")
        e(f"s_sub_u32 s{sSLOT}, s{sSLOT}, s{sT0}")
    def later_dma(lbl, pair):
        e(f"s_lshl_b32 s{sT0}, s{sP16}, 3"); e(f"s_mul_i32 s{sT0}, s{sT0}, s{sRG}")
        e(f"s_add_u32 s{sDA}, s{sDA}, s{sT0}")
        e(f"s_lshl_b32 s{sT0}, s{sRG}, 13")
        e(f"s_add_u32 s{sMA}, s{sMA}, s{sT0}"); e(f"s_add_u32 s{sMB}, s{sMB}, s{sT0}")
        e(f"s_mov_b32 s{sT1}, 8")
        e.label(lbl)
        e(f"s_mov_b32 m0, s{sMA}")
        e(f"s_add_u32 s{sDB}, s{sDA}, 64")
        e(f"buffer_load_dwordx4 v{vDMA}, {sr(SW,4)}, s{sDA} offen lds")
        if pair:
            e(f"s_mov_b32 m0, s{sMB}")
            e(f"s_add_u32 s{sMB}, s{sMB}, 1024")
            e(f"buffer_load_dwordx4 v{vDMA}, {sr(SW,4)}, s{sDB} offen lds")
        e(f"s_add_u32 s{sMA}, s{sMA}, 1024")
        e(f"s_add_u32 s{sDA}, s{sDA}, s{sP16}")
        e(f"s_sub_u32 s{sT1}, s{sT1}, 1"); e(f"s_cmp_lg_u32 s{sT1}, 0")
        e(f"s_cbranch_scc1 {lbl}")

    e(f"s_lshl_b32 s{sSLOT}, s{sP}, 15"); e(f"s_add_u32 s{sSLOT}, s{sSLOT}, 0x10000")
    e(f"s_mov_b32 s{sIT}, 0")
    e(f"s_cmp_eq_u32 s{sTYPE}, 0")
    e("s_cbranch_scc1 K1_QKV")
    BI, OH, vK0 = 104, 108, 112
    k0 = -2.0 * math.sqrt(2.0 / math.pi) * math.log2(math.e)
    e(f"v_mov_b32 v{BI}, v{vAUX}")
    for j in (1, 2, 3): e(f"v_mov_b32 v{BI+j}, 0"); e(f"v_mov_b32 v{OH+j}, 0")
    e(f"v_mov_b32 v{OH}, s{sLO}")
    e(f"v_cmp_gt_u32 vcc, 32, v{vL}")
    e(f"v_mov_b32 v{vK0}, {f2u(k0):#x}")
    e(f"s_mov_b32 s{sK1}, {f2u(k0*0.044715):#x}")
    e(f"v_cndmask_b32 v{OH}, 0, v{OH}, vcc")
    e(f"s_mul_i32 s{sOUT}, s{sXO}, 114688")
    e(f"s_cmp_eq_u32 s{sP}, 0"); e("s_cbranch_scc1 K1_FLOOP")
    e("s_waitcnt vmcnt(0) lgkmcnt(0)"); e("s_barrier")
    e.label("K1_FLOOP")
    mblock(bias=(BI, OH))
    e(f"s_cmp_lg_u32 s{sIT}, 0"); e("s_cbranch_scc1 K1_FND")
    later_dma("K1_FDMA", True)
    e.label("K1_FND")
    e(f"s_lshl_b32 s{sT0}, s{sCOL}, 5"); e(f"s_add_u32 s{sT0}, s{sT0}, s{sOUT}")
    e(f"s_mov_b32 s{sCOL}, s{sCOL+1}"); e(f"s_mov_b32 s{sCOL+1}, s{sCOL+2}"); e(f"s_mov_b32 s{sCOL+2}, s{sCOL+3}")
    e(f"v_mov_b32 v{BI}, v{vAUX+1}"); e(f"v_mov_b32 v{vAUX+1}, v{vAUX+2}"); e(f"v_mov_b32 v{vAUX+2}, v{vAUX+3}")
    e("s_nop 3")
    for half in range(2):
        rng = range(8 * half, 8 * half + 8)
        for i in rng: e(f"v_mul_f32 v{TMP+i}, v{ACC+i}, v{ACC+i}")
        for i in rng: e(f"v_fma_f32 v{TMP+i}, v{TMP+i}, s{sK1}, v{vK0}")
        for i in rng: e(f"v_mul_f32 v{TMP+i}, v{ACC+i}, v{TMP+i}")
        for i in rng: e(f"v_exp_f32 v{TMP+i}, v{TMP+i}")
        for i in rng: e(f"v_add_f32 v{TMP+i}, 1.0, v{TMP+i}")
        for i in rng: e(f"v_rcp_f32 v{TMP+i}, v{TMP+i}")
        for i in rng: e(f"v_mul_f32 v{TMP+i}, v{ACC+i}, v{TMP+i}")
        for i in range(4): e(f"v_cvt_pk_bf16_f32 v{TMP+16+4*half+i}, v{TMP+8*half+2*i}, v{TMP+8*half+2*i+1}")
        e(f"buffer_store_dwordx4 {vr(TMP+16+4*half,4)}, v{vL16}, {sr(SWS,4)}, s{sT0} offen offset:{1024*half} {ST1}")
    e(f"s_add_u32 s{sIT}, s{sIT}, 1")
    e(f"s_add_u32 s{sT0}, s{sIT}, s{sP}")
    e(f"s_cmp_ge_u32 s{sT0}, 4"); e("s_cbranch_scc1 K1_FIN")
    e("s_barrier")
    e("s_branch K1_FLOOP")

    e.label("K1_QKV")
    A1, A2, SP, SM, PHT = 104, 108, 112, 116, (120, 112)
    for j in range(4): e(f"v_lshl_or_b32 v{vAUX+j}, v{vAUX+2*j+1}, 16, v{vAUX+2*j}")
    e(f"v_and_b32 v{vS+1}, 15, v{vL}"); e(f"v_lshrrev_b32 v{vS+4}, 5, v{vL}")
    e(f"v_lshlrev_b32 v{vS+6}, 2, v{vS+4}"); e(f"v_sub_u32 v{vS+6}, v{vS+1}, v{vS+6}")
    e(f"v_mov_b32 v{vS+7}, s{sLO}"); e(f"v_mov_b32 v{vS+5}, s{sHI}")
    for t, f0 in enumerate((0, 2, 8, 10)):
        e(f"v_cmp_eq_u32 vcc, {f0}, v{vS+6}")
        e(f"v_cmp_eq_u32 s[62:63], {f0+1}, v{vS+6}")
        e("s_nop 0")
        e(f"v_cndmask_b32 v{vSEL+t}, 0, v{vS+7}, vcc")
        e(f"v_cndmask_b32 v{vSEL+t}, v{vSEL+t}, v{vS+5}, s[62:63]")
    for j in range(4):
        e(f"v_cndmask_b32 v{A1+j}, 0, v{vAUX+j}, {sr(sLT16,2)}")
        e(f"v_cndmask_b32 v{A2+j}, v{vAUX+j}, 0, {sr(sLT16,2)}")
        e(f"v_cndmask_b32 v{SP+j}, 0, v{vSEL+j}, {sr(sLT16,2)}")
        e(f"v_cndmask_b32 v{SM+j}, v{vSEL+j}, 0, {sr(sLT16,2)}")
    e(f"s_mov_b32 s{sCL2E}, {f2u(math.log2(math.e)):#x}")
    e(f"s_lshl_b32 s{sOUT}, s{sXO}, 16"); e(f"s_lshl_b32 s{sT0}, s{sC}, 13"); e(f"s_add_u32 s{sOUT}, s{sOUT}, s{sT0}")
    e(f"s_lshl_b32 s{sT0}, s{sP}, 12"); e(f"s_add_u32 s{sOUT}, s{sOUT}, s{sT0}"); e(f"s_add_u32 s{sOUT}, s{sOUT}, {PQ_OFF}")
    e(f"s_cmp_eq_u32 s{sP}, 0"); e("s_cbranch_scc1 K1_QLOOP")
    e("s_waitcnt vmcnt(0) lgkmcnt(0)"); e("s_barrier")
    e.label("K1_QLOOP")
    mblock()
    e(f"s_cmp_lg_u32 s{sIT}, 0"); e("s_cbranch_scc1 K1_QND")
    e(f"s_cmp_eq_u32 s{sP}, 0"); e("s_cbranch_scc1 K1_QDA")
    later_dma("K1_QDMB", True)
    e("s_branch K1_QND")
    e.label("K1_QDA")
    later_dma("K1_QDMA", False)
    e.label("K1_QND")
    e("s_nop 7")
    PK = TMP + 16
    for i in range(8): e(f"v_cvt_pk_bf16_f32 v{PK+i}, v{ACC+2*i}, v{ACC+2*i+1}")
    e("s_nop 1")
    e(f"{MFMA} {vr(ACC,16)}, {vr(A1,4)}, {vr(PK,4)}, 0")
    e(f"{MFMA} {vr(ACC,16)}, {vr(A2,4)}, {vr(PK+4,4)}, {vr(ACC,16)}")
    e("s_nop 11")
    for a in range(2):
        P = ACC + 8 * a
        mx, mn = vS, vS + 1
        e(f"v_max3_f32 v{mx}, v{P}, v{P+1}, v{P+2}"); e(f"v_max3_f32 v{mn}, -v{P}, -v{P+1}, -v{P+2}")
        e(f"v_max3_f32 v{mx}, v{mx}, v{P+3}, v{P+4}"); e(f"v_max3_f32 v{mn}, v{mn}, -v{P+3}, -v{P+4}")
        e(f"v_max3_f32 v{mx}, v{mx}, v{P+5}, v{P+6}"); e(f"v_max3_f32 v{mn}, v{mn}, -v{P+5}, -v{P+6}")
        e(f"v_max_f32 v{mx}, v{mx}, v{P+7}"); e(f"v_max_f32_e64 v{mn}, v{mn}, -v{P+7}")
        e("s_nop 1")
        e(f"v_permlane32_swap_b32 v{mx}, v{mn}")
        e(f"v_max_f32 v{mx}, v{mx}, v{mn}")
        e(f"v_mul_f32_e64 v{mx}, -v{mx}, s{sCL2E}")
        e(f"v_mov_b32 v{mn}, v{mx}")
        e("s_nop 1")
        e(f"v_permlane32_swap_b32 v{mx}, v{mn}")
        for j in range(8): e(f"v_fma_f32 v{TMP+j}, v{P+j}, s{sCL2E}, v{mx}")
        for j in range(8): e(f"v_fma_f32 v{TMP+8+j}, -v{P+j}, s{sCL2E}, v{mn}")
        for j in range(16): e(f"v_exp_f32 v{TMP+j}, v{TMP+j}")
        s0, s1, s2, s3 = vS + 2, vS + 3, vS + 4, vS + 5
        e(f"v_add_f32 v{s0}, v{TMP}, v{TMP+1}"); e(f"v_add_f32 v{s1}, v{TMP+8}, v{TMP+9}")
        e(f"v_add_f32 v{s2}, v{TMP+2}, v{TMP+3}"); e(f"v_add_f32 v{s3}, v{TMP+10}, v{TMP+11}")
        for j in (4, 6):
            e(f"v_add_f32 v{s0}, v{s0}, v{TMP+j}"); e(f"v_add_f32 v{s1}, v{s1}, v{TMP+8+j}")
            e(f"v_add_f32 v{s2}, v{s2}, v{TMP+j+1}"); e(f"v_add_f32 v{s3}, v{s3}, v{TMP+8+j+1}")
        e(f"v_add_f32 v{s0}, v{s0}, v{s2}"); e(f"v_add_f32 v{s1}, v{s1}, v{s3}")
        e("s_nop 1")
        e(f"v_permlane32_swap_b32 v{s0}, v{s1}")
        e(f"v_add_f32 v{s0}, v{s0}, v{s1}")
        e(f"v_rcp_f32 v{s0}, v{s0}")
        e("s_nop 0")
        e(f"v_mov_b32 v{s1}, v{s0}")
        e("s_nop 1")
        e(f"v_permlane32_swap_b32 v{s0}, v{s1}")
        for j in range(8): e(f"v_mul_f32 v{TMP+j}, v{TMP+j}, v{s0}")
        for j in range(8): e(f"v_mul_f32 v{TMP+8+j}, v{TMP+8+j}, v{s1}")
        for j in range(8): e(f"v_cvt_pk_bf16_f32 v{PK+8*a+j}, v{TMP+2*j}, v{TMP+2*j+1}")
    e(f"s_cmp_lg_u32 s{sIT}, 0"); e("s_cbranch_scc1 K1_QST")
    TD = (TMP, WB)
    for a in range(2):
        e(f"{MFMA} {vr(TD[a],16)}, {vr(PK+8*a,4)}, {vr(SP,4)}, 0")
        e(f"{MFMA} {vr(TD[a],16)}, {vr(PK+8*a+4,4)}, {vr(SM,4)}, {vr(TD[a],16)}")
    e("s_nop 9")
    for a in range(2):
        for j in range(8): e(f"v_cvt_pk_bf16_f32 v{PHT[a]+j}, v{TD[a]+2*j}, v{TD[a]+2*j+1}")
    e(f"s_mov_b32 s{sIT}, 1")
    e("s_barrier")
    e("s_branch K1_QLOOP")
    e.label("K1_QST")
    for i in range(4):
        e(f"buffer_store_dwordx4 {vr(PK+4*i,4)}, v{vL16}, {sr(SWS,4)}, s{sOUT} offen offset:{1024*i} {ST1}")
    e("s_barrier")
    mblock(swap=True)
    e(f"v_mov_b32 v{vS}, s{sONES}")
    e(f"s_lshl_b32 s{sT0}, s{sP}, 15"); e(f"s_add_u32 s{sT0}, s{sT0}, 0x18000")
    e(f"s_lshl_b32 s{sT1}, s{sRG}, 13"); e(f"s_add_u32 s{sT1}, s{sT1}, s{sT0}")
    e(f"v_add_u32 v{vS+1}, s{sT1}, v{vL16}")
    e(f"s_lshl_b32 s{sT1}, s{sRG}, 10"); e(f"s_add_u32 s{sT1}, s{sT1}, s{sT0}")
    e(f"v_add_u32 v{vS+2}, s{sT1}, v{vL16}")
    e("s_nop 3")
    for i in range(8): e(f"v_cvt_pk_bf16_f32 v{PK+i}, v{ACC+2*i}, v{ACC+2*i+1}")
    for i in range(8):
        e(f"v_cndmask_b32 v{PK+8+i}, v{PK+i}, v{vS}, {sr(sLT16,2)}")
        e(f"v_cndmask_b32 v{PK+i}, v{vS}, v{PK+i}, {sr(sLT16,2)}")
    e("s_nop 1")
    for a in range(2):
        e(f"{MFMA} {vr(TD[a],16)}, {vr(PHT[a],4)}, {vr(PK+8*a,4)}, 0")
        e(f"{MFMA} {vr(TD[a],16)}, {vr(PHT[a]+4,4)}, {vr(PK+8*a+4,4)}, {vr(TD[a],16)}")
    e(f"s_lshl_b32 s{sOUT}, s{sRB}, 17"); e(f"s_lshl_b32 s{sT0}, s{sC}, 14"); e(f"s_add_u32 s{sOUT}, s{sOUT}, s{sT0}")
    e(f"s_lshl_b32 s{sT0}, s{sP}, 13"); e(f"s_add_u32 s{sOUT}, s{sOUT}, s{sT0}")
    e(f"s_lshl_b32 s{sT0}, s{sRG}, 10"); e(f"s_add_u32 s{sOUT}, s{sOUT}, s{sT0}"); e(f"s_add_u32 s{sOUT}, s{sOUT}, {KVP_OFF}")
    e(f"s_add_u32 s{sT1}, s{sOUT}, 4096")
    e(f"v_xor_b32 v{vS+3}, 256, v{vL16}")
    e("s_nop 1")
    for a in range(2):
        if a: e("s_nop 1")
        for q in range(4):
            e(f"ds_write_b128 v{vS+1}, {vr(TD[a]+4*q,4)} offset:{4096*a + 1024*q}")
    e("s_waitcnt lgkmcnt(0)"); e("s_barrier")
    for a in range(2):
        for w in range(4):
            e(f"ds_read_b128 {vr(TMP+16*a+4*w,4)}, v{vS+2} offset:{8192*w + 4096*a}")
    for a in range(2):
        e(f"s_waitcnt lgkmcnt({4*(1-a)})")
        B = TMP + 16 * a
        for j in range(4): e(f"v_add_f32 v{B+j}, v{B+j}, v{B+4+j}")
        for j in range(4): e(f"v_add_f32 v{B+8+j}, v{B+8+j}, v{B+12+j}")
        for j in range(4): e(f"v_add_f32 v{B+j}, v{B+j}, v{B+8+j}")
        if a == 0: e(f"buffer_store_dwordx4 {vr(B,4)}, v{vL16}, {sr(SWS,4)}, s{sOUT} offen {ST1}")
        else:      e(f"buffer_store_dwordx4 {vr(B,4)}, v{vS+3}, {sr(SWS,4)}, s{sT1} offen {ST1}")
    e.label("K1_FIN")
    stamp_end(e, 0, SWS, "K1_END", sW, OPT.get("sw1", 0))
    e.label("K1_END")
    e("s_endpgm")
    return e.text()

def gen_k2():
    e = Asm()
    SWS, SW2, SWO, SX, SO, SB2 = 8, 12, 16, 20, 24, 28
    sW, sCB, sRB, sT0, sT1, sT2, sT3 = 32, 33, 34, 35, 36, 37, 38
    sA0, sA1, sWK, sLB, sIT, sU, sFL = 39, 40, 41, 42, 43, 44, 45
    sP0, sP1, sKV, sWO_, sXO, sMASK, sCNT, sUE = 46, 47, 48, 49, 50, 51, 52, 53
    vL, vL16, vDMA, vTR0, vTR1, vRS, vRD, vXO = 1, 2, 3, 4, 5, 6, 7, 8
    vS = 10
    vFLG = 20
    vX, vB = 24, 32
    vRED = 40
    OP = 48
    ACC, ACT, WB, ND = 64, 128, 160, 176
    PHI, KVZ = 0, 128
    WLDS = 24576
    e("s_cmp_ge_u32 s2, 256")
    e("s_cbranch_scc1 K2_END")
    stamp_begin(e)
    e("s_load_dwordx2 s[64:65], s[0:1], 88")
    e("s_load_dwordx4 s[68:71], s[0:1], 56")
    e("s_load_dwordx2 s[66:67], s[0:1], 24")
    e("s_load_dwordx2 s[72:73], s[0:1], 0")
    e("s_load_dwordx2 s[74:75], s[0:1], 72")
    e(f"v_lshrrev_b32 v{vS}, 6, v0")
    e(f"v_and_b32 v{vL}, 63, v0")
    e(f"v_readfirstlane_b32 s{sW}, v{vS}")
    e(f"s_and_b32 s{sT0}, s2, 7"); e(f"s_lshr_b32 s{sT1}, s2, 3")
    e(f"s_and_b32 s{sCB}, s{sT0}, 1"); e(f"s_lshl_b32 s{sCB}, s{sCB}, 2"); e(f"s_and_b32 s{sT2}, s{sT1}, 3"); e(f"s_add_u32 s{sCB}, s{sCB}, s{sT2}")
    e(f"s_lshr_b32 s{sRB}, s{sT0}, 1"); e(f"s_lshl_b32 s{sRB}, s{sRB}, 3"); e(f"s_lshr_b32 s{sT2}, s{sT1}, 2"); e(f"s_add_u32 s{sRB}, s{sRB}, s{sT2}")
    e(f"v_lshlrev_b32 v{vL16}, 4, v{vL}")
    e(f"v_lshrrev_b32 v{vS}, 4, v{vL}"); e(f"v_and_b32 v{vS+1}, 15, v{vL}")
    e(f"v_lshlrev_b32 v{vRS}, 17, v{vS}"); e(f"v_lshl_add_u32 v{vRS}, v{vS+1}, 3, v{vRS}")
    e(f"v_lshrrev_b32 v{vRD}, 1, v{vS+1}"); e(f"v_lshlrev_b32 v{vRD}, 4, v{vRD}")
    e(f"v_and_b32 v{vS+2}, 1, v{vL}"); e(f"v_lshl_add_u32 v{vRD}, v{vS+2}, 2, v{vRD}")
    e(f"s_lshl_b32 s{sU}, s2, 2"); e(f"s_add_u32 s{sU}, s{sU}, s{sW}")
    e(f"s_and_b32 s{sT0}, s{sW}, 1"); e(f"s_lshl_b32 s{sT1}, s{sRB}, 1")
    e(f"s_add_u32 s{sT2}, s{sT1}, s{sT0}")
    e(f"s_xor_b32 s{sT3}, s{sT2}, 1")
    e(f"s_mul_i32 s{sA0}, s{sT2}, 114688"); e(f"s_mul_i32 s{sA1}, s{sT3}, 114688")
    e(f"s_mul_i32 s{sT0}, s{sW}, {28*1024}")
    e(f"s_add_u32 s{sA0}, s{sA0}, s{sT0}"); e(f"s_add_u32 s{sA1}, s{sA1}, s{sT0}")
    e(f"s_lshl_b32 s{sP0}, s{sT2}, 16"); e(f"s_lshl_b32 s{sP1}, s{sT3}, 16")
    e(f"s_lshl_b32 s{sT0}, s{sW}, 14"); e(f"s_add_u32 s{sT0}, s{sT0}, {PQ_OFF}")
    e(f"s_add_u32 s{sP0}, s{sP0}, s{sT0}"); e(f"s_add_u32 s{sP1}, s{sP1}, s{sT0}")
    e(f"s_lshl_b32 s{sKV}, s{sW}, 14"); e(f"s_add_u32 s{sKV}, s{sKV}, {KVZ_OFF}")
    e(f"s_lshl_b32 s{sFL}, s{sW}, 10"); e(f"s_add_u32 s{sFL}, s{sFL}, {FLG_OFF}")
    e(f"s_lshl_b32 s{sXO}, s{sT2}, 15"); e(f"s_lshl_b32 s{sT0}, s{sCB}, 7"); e(f"s_add_u32 s{sXO}, s{sXO}, s{sT0}")
    e(f"s_lshr_b32 s{sT1}, s{sW}, 1"); e(f"s_lshl_b32 s{sT1}, s{sT1}, 6"); e(f"s_add_u32 s{sXO}, s{sXO}, s{sT1}")
    e(f"s_add_u32 s{sT3}, s{sT0}, s{sT1}")
    e(f"s_mul_i32 s{sWK}, s{sW}, {448*1024}"); e(f"s_add_u32 s{sWK}, s{sWK}, s{sT0}")
    e(f"s_lshl_b32 s{sWO_}, s{sW}, 17"); e(f"s_add_u32 s{sWO_}, s{sWO_}, s{sT0}")
    e(f"s_mul_i32 s{sLB}, s{sW}, {WLDS}")
    e(f"v_lshrrev_b32 v{vDMA}, 3, v{vL}"); e(f"v_lshlrev_b32 v{vDMA}, 10, v{vDMA}")
    e(f"v_and_b32 v{vS+2}, 7, v{vL}"); e(f"v_bfe_u32 v{vS+3}, v{vL}, 4, 1"); e(f"v_lshlrev_b32 v{vS+4}, 2, v{vS+3}")
    e(f"v_xor_b32 v{vS+2}, v{vS+2}, v{vS+4}"); e(f"v_lshl_add_u32 v{vDMA}, v{vS+2}, 4, v{vDMA}")
    e("s_waitcnt lgkmcnt(0)")
    srd(e, SWS, 64, 65, 0x10000000)
    srd(e, SW2, 68, 69, 1792 * 1024)
    def red_loads():
        e(f"s_lshl_b32 s{sT0}, s{sU}, 7"); e(f"s_add_u32 s{sT0}, s{sT0}, {KVP_OFF}")
        for t in range(4):
            e(f"buffer_load_dwordx2 {vr(vRED+2*t,2)}, v{vRS}, {sr(SWS,4)}, s{sT0} offen")
            if t < 3: e(f"s_add_u32 s{sT0}, s{sT0}, {4*131072}")
    def red_finish():
        x, y = vRED, vRED + 1
        e(f"v_add_f32 v{x}, v{x}, v{vRED+2}"); e(f"v_add_f32 v{y}, v{y}, v{vRED+3}")
        e(f"v_add_f32 v{vRED+4}, v{vRED+4}, v{vRED+6}"); e(f"v_add_f32 v{vRED+5}, v{vRED+5}, v{vRED+7}")
        e(f"v_add_f32 v{x}, v{x}, v{vRED+4}"); e(f"v_add_f32 v{y}, v{y}, v{vRED+5}")
        e(f"s_lshr_b32 s{sT0}, s{sU}, 4"); e(f"s_lshl_b32 s{sT0}, s{sT0}, 10")
        e(f"v_permlane32_swap_b32 v{x}, v{y}")
        e(f"v_add_f32 v{x}, v{x}, v{y}")
        e(f"v_mov_b32 v{y}, v{x}")
        e(f"s_and_b32 s{sT1}, s{sU}, 7"); e(f"s_lshl_b32 s{sT1}, s{sT1}, 7"); e(f"s_add_u32 s{sT0}, s{sT0}, s{sT1}")
        e(f"v_permlane16_swap_b32 v{x}, v{y}")
        e(f"v_add_f32 v{x}, v{x}, v{y}")
        e(f"v_mov_b32 v{y}, v{x}")
        e(f"s_and_b32 s{sT1}, s{sU}, 8"); e(f"s_add_u32 s{sT0}, s{sT0}, s{sT1}"); e(f"s_add_u32 s{sT0}, s{sT0}, {KVZ_OFF}")
        e(f"v_permlane32_swap_b32 v{x}, v{y}")
        e(f"v_cvt_pk_bf16_f32 v{x}, v{x}, v{y}")
        e("s_mov_b64 exec, 0xffff")
        e(f"buffer_store_dword v{x}, v{vRD}, {sr(SWS,4)}, s{sT0} offen sc1")
        e("s_mov_b64 exec, -1")
    red_loads()
    def issue_ffn(slot):
        e(f"s_add_u32 m0, s{sLB}, {2048*slot}")
        e(f"buffer_load_dwordx4 {vr(ACT+8*slot,4)}, v{vL16}, {sr(SWS,4)}, s{sA0} offen")
        e(f"buffer_load_dwordx4 {vr(ACT+8*slot+4,4)}, v{vL16}, {sr(SWS,4)}, s{sA1} offen")
        e(f"buffer_load_dwordx4 v{vDMA}, {sr(SW2,4)}, s{sWK} offen lds")
        e(f"s_add_u32 m0, s{sLB}, {2048*slot+1024}")
        e(f"s_add_u32 s{sWK}, s{sWK}, 8192")
        e(f"s_add_u32 s{sA0}, s{sA0}, 1024")
        e(f"buffer_load_dwordx4 v{vDMA}, {sr(SW2,4)}, s{sWK} offen lds")
        e(f"s_add_u32 s{sWK}, s{sWK}, 8192")
        e(f"s_add_u32 s{sA1}, s{sA1}, 1024")
    for s in range(4): issue_ffn(s)
    srd(e, SWO, 66, 67, 512 * 1024)
    srd(e, SX, 72, 73, 2048 * 1024)
    srd(e, SO, 74, 75, 2048 * 1024)
    srd(e, SB2, 70, 71, 1024)
    e(f"v_and_b32 v{vS+2}, 31, v{vL}"); e(f"v_lshrrev_b32 v{vS+4}, 5, v{vL}")
    e(f"v_lshlrev_b32 v{vS+5}, 3, v{vS+4}"); e(f"v_lshl_add_u32 v{vXO}, v{vS+2}, 10, v{vS+5}")
    for q in range(4): e(f"buffer_load_dwordx2 {vr(vX+2*q,2)}, v{vXO}, {sr(SX,4)}, s{sXO} offen offset:{16*q}")
    for q in range(4): e(f"buffer_load_dwordx2 {vr(vB+2*q,2)}, v{vS+5}, {sr(SB2,4)}, s{sT3} offen offset:{16*q}")
    e(f"v_bfe_u32 v{vS+6}, v{vL}, 2, 2")
    e(f"v_lshl_add_u32 v{vS+7}, v{vS+4}, 2, v{vS+6}"); e(f"v_lshlrev_b32 v{vTR0}, 7, v{vS+7}")
    e(f"v_lshl_add_u32 v{vTR0}, v{vS+3}, 5, v{vTR0}")
    e(f"v_and_b32 v{vS+7}, 3, v{vL}"); e(f"v_lshl_add_u32 v{vTR0}, v{vS+7}, 3, v{vTR0}")
    e(f"v_lshrrev_b32 v{vS+6}, 1, v{vS+6}"); e(f"s_lshr_b32 s{sT1}, s{sW}, 1")
    e(f"v_xor_b32 v{vS+6}, s{sT1}, v{vS+6}"); e(f"v_lshl_add_u32 v{vTR0}, v{vS+6}, 6, v{vTR0}")
    e(f"v_add_u32 v{vTR0}, s{sLB}, v{vTR0}")
    e(f"v_xor_b32 v{vTR1}, 64, v{vTR0}")
    for i in range(64): e(f"v_mov_b32 v{ACC+i}, 0")
    e(f"s_mov_b32 s{sMASK}, 0xffff0000")
    e("s_waitcnt vmcnt(24)")
    red_finish()
    e("s_waitcnt vmcnt(0)")
    e(f"s_lshl_b32 s{sT0}, s{sU}, 2"); e(f"s_add_u32 s{sT0}, s{sT0}, {FLG_OFF}")
    e(f"v_mov_b32 v{vS}, 1"); e(f"v_mov_b32 v{vS+1}, 0")
    e("s_mov_b64 exec, 1")
    e(f"buffer_store_dword v{vS}, v{vS+1}, {sr(SWS,4)}, s{sT0} offen sc1")
    e("s_mov_b64 exec, -1")
    stamp(e, 2)
    def wreads(off, buf):
        b = WB + 8 * buf
        e(f"ds_read_b64_tr_b16 {vr(b,2)}, v{vTR0} offset:{off}")
        e(f"ds_read_b64_tr_b16 {vr(b+2,2)}, v{vTR0} offset:{off+1024}")
        e(f"ds_read_b64_tr_b16 {vr(b+4,2)}, v{vTR1} offset:{off}")
        e(f"ds_read_b64_tr_b16 {vr(b+6,2)}, v{vTR1} offset:{off+1024}")
    def mm4(buf, act):
        for nt in range(2):
            for mt in range(2):
                c = vr(ACC + 16 * (2 * nt + mt), 16)
                e(f"{MFMA} {c}, {vr(WB+8*buf+4*nt,4)}, {act[mt]}, {c}")
    wreads(0, 0)
    e(f"s_mov_b32 s{sIT}, 6")
    e.label("K2_LOOP")
    e(f"buffer_load_dwordx4 {vr(vFLG,4)}, v{vL16}, {sr(SWS,4)}, s{sFL} offen sc1")
    for s in range(4):
        e("s_waitcnt vmcnt(8)")
        wreads(2048 * ((s + 1) % 4), (s + 1) & 1)
        e("s_waitcnt lgkmcnt(4)")
        mm4(s & 1, [vr(ACT + 8 * s, 4), vr(ACT + 8 * s + 4, 4)])
        issue_ffn(s)
    e(f"s_sub_u32 s{sIT}, s{sIT}, 1"); e(f"s_cmp_lg_u32 s{sIT}, 0"); e("s_cbranch_scc1 K2_LOOP")
    stamp(e, 3)
    e(f"s_mov_b32 s{sCNT}, 0")
    e.label("K2_CHK")
    e(f"v_and_b32 v{vFLG}, v{vFLG}, v{vFLG+1}"); e(f"v_and_b32 v{vFLG+2}, v{vFLG+2}, v{vFLG+3}")
    e(f"v_and_b32 v{vFLG}, v{vFLG}, v{vFLG+2}")
    e(f"v_cmp_ne_u32 vcc, 1, v{vFLG}")
    e("s_nop 4")
    e("s_cbranch_vccz K2_GO")
    e(f"s_add_u32 s{sCNT}, s{sCNT}, 1"); e(f"s_cmp_gt_u32 s{sCNT}, {OPT.get('spin', 2000)}"); e("s_cbranch_scc1 K2_FALL")
    e("s_sleep 2")
    e(f"buffer_load_dwordx4 {vr(vFLG,4)}, v{vL16}, {sr(SWS,4)}, s{sFL} offen sc1")
    e("s_waitcnt vmcnt(0)")
    e("s_branch K2_CHK")
    e.label("K2_FALL")
    e(f"s_lshl_b32 s{sU}, s{sW}, 8"); e(f"s_add_u32 s{sUE}, s{sU}, 256")
    e.label("K2_FLP")
    red_loads()
    e("s_waitcnt vmcnt(0)")
    red_finish()
    e(f"s_add_u32 s{sU}, s{sU}, 1"); e(f"s_cmp_lt_u32 s{sU}, s{sUE}"); e("s_cbranch_scc1 K2_FLP")
    e("s_waitcnt vmcnt(0)")
    e.label("K2_GO")
    def issue_att(a):
        e(f"s_add_u32 m0, s{sLB}, {8192 + 2048*a}")
        o = 2048 * (a & 1)
        e(f"buffer_load_dwordx4 {ar(KVZ+8*a,4)}, v{vL16}, {sr(SWS,4)}, s{sKV} offen offset:{o} sc1")
        e(f"buffer_load_dwordx4 {ar(KVZ+8*a+4,4)}, v{vL16}, {sr(SWS,4)}, s{sKV} offen offset:{o+1024} sc1")
        e(f"buffer_load_dwordx4 {ar(PHI+16*a,4)}, v{vL16}, {sr(SWS,4)}, s{sP0} offen offset:{o}")
        e(f"buffer_load_dwordx4 {ar(PHI+16*a+4,4)}, v{vL16}, {sr(SWS,4)}, s{sP0} offen offset:{o+1024}")
        e(f"buffer_load_dwordx4 {ar(PHI+16*a+8,4)}, v{vL16}, {sr(SWS,4)}, s{sP1} offen offset:{o}")
        e(f"buffer_load_dwordx4 {ar(PHI+16*a+12,4)}, v{vL16}, {sr(SWS,4)}, s{sP1} offen offset:{o+1024}")
        e(f"buffer_load_dwordx4 v{vDMA}, {sr(SWO,4)}, s{sWO_} offen lds")
        e(f"s_add_u32 m0, s{sLB}, {8192 + 2048*a + 1024}")
        e(f"s_add_u32 s{sWO_}, s{sWO_}, 8192")
        e(f"buffer_load_dwordx4 v{vDMA}, {sr(SWO,4)}, s{sWO_} offen lds")
        e(f"s_add_u32 s{sWO_}, s{sWO_}, 8192")
        if a & 1:
            e(f"s_add_u32 s{sKV}, s{sKV}, 4096"); e(f"s_add_u32 s{sP0}, s{sP0}, 4096"); e(f"s_add_u32 s{sP1}, s{sP1}, 4096")
    for s in range(4):
        if s < 3:
            e(f"s_waitcnt vmcnt({4*(2-s) + 16*s})")
            wreads(2048 * (s + 1), (s + 1) & 1)
            e("s_waitcnt lgkmcnt(4)")
        else:
            e("s_waitcnt lgkmcnt(0)")
        mm4(s & 1, [vr(ACT + 8 * s, 4), vr(ACT + 8 * s + 4, 4)])
        issue_att(2 * s); issue_att(2 * s + 1)
    for q in range(4):
        for t in range(2):
            xr, br, ac = vX + 2 * q + t, vB + 2 * q + t, ACC + 4 * q + 2 * t
            e(f"v_lshlrev_b32 v{vS}, 16, v{xr}"); e(f"v_and_b32 v{vS+1}, s{sMASK}, v{xr}")
            e(f"v_lshlrev_b32 v{vS+2}, 16, v{br}"); e(f"v_and_b32 v{vS+3}, s{sMASK}, v{br}")
            e(f"v_add_f32 v{vS}, v{vS}, v{vS+2}"); e(f"v_add_f32 v{vS+1}, v{vS+1}, v{vS+3}")
            e(f"v_add_f32 v{ac}, v{ac}, v{vS}"); e(f"v_add_f32 v{ac+1}, v{ac+1}, v{vS+1}")
    stamp(e, 4)
    def nd(a):
        e(f"s_waitcnt vmcnt({56 - 8*a})")
        for mt in range(2):
            d = vr(ND + 32 * (a & 1) + 16 * mt, 16)
            e(f"{MFMA} {d}, {ar(KVZ+8*a,4)}, {ar(PHI+16*a+8*mt,4)}, 0")
            e(f"{MFMA} {d}, {ar(KVZ+8*a+4,4)}, {ar(PHI+16*a+8*mt+4,4)}, {d}")
        wreads(8192 + 2048 * a, a & 1)
    nd(0)
    for a in range(8):
        if a < 7: nd(a + 1)
        else: e("s_nop 11")
        if a == 0: e("s_nop 3")
        for mt in range(2):
            d = ND + 32 * (a & 1) + 16 * mt
            e(f"v_add_f32 v{vS+mt}, {f2u(1e-6):#x}, v{d+8}")
        for mt in range(2): e(f"v_rcp_f32 v{vS+mt}, v{vS+mt}")
        e("s_nop 0")
        for mt in range(2):
            d = ND + 32 * (a & 1) + 16 * mt
            for j in range(8): e(f"v_mul_f32 v{d+j}, v{d+j}, v{vS+mt}")
            for j in range(4): e(f"v_cvt_pk_bf16_f32 v{OP+8*(a&1)+4*mt+j}, v{d+2*j}, v{d+2*j+1}")
        e(f"s_waitcnt lgkmcnt({4 if a < 7 else 0})")
        e("s_nop 0")
        mm4(a & 1, [vr(OP + 8 * (a & 1), 4), vr(OP + 8 * (a & 1) + 4, 4)])
    stamp(e, 5)
    XB = 4 * WLDS
    for tau in (1, 2, 3):
        e(f"s_xor_b32 s{sT0}, s{sW}, {tau}"); e(f"s_mul_i32 s{sT0}, s{sT0}, 12288"); e(f"s_add_u32 s{sT0}, s{sT0}, {XB + 4096*(tau-1)}")
        e(f"v_add_u32 v{vS+tau}, s{sT0}, v{vL16}")
    e(f"s_mul_i32 s{sT0}, s{sW}, 12288"); e(f"s_add_u32 s{sT0}, s{sT0}, {XB}")
    e(f"v_add_u32 v{vS}, s{sT0}, v{vL16}")
    for tau in (1, 2, 3):
        for q in range(4):
            e(f"ds_write_b128 v{vS+tau}, {vr(ACC+16*tau+4*q,4)} offset:{1024*q}")
    e("s_waitcnt lgkmcnt(0)"); e("s_barrier")
    for t in range(3):
        for q in range(4):
            e(f"ds_read_b128 {vr(ACC+16+16*t+4*q,4)}, v{vS} offset:{4096*t + 1024*q}")
    e(f"v_lshrrev_b32 v{vS+4}, 5, v{vL}"); e(f"v_lshl_add_u32 v{vXO}, v{vS+4}, 3, v{vXO}")
    for t in range(3):
        e(f"s_waitcnt lgkmcnt({4*(2-t)})")
        for i in range(16): e(f"v_add_f32 v{ACC+i}, v{ACC+i}, v{ACC+16+16*t+i}")
    for i in range(8): e(f"v_cvt_pk_bf16_f32 v{OP+i}, v{ACC+2*i}, v{ACC+2*i+1}")
    e("s_nop 1")
    for pr in range(2):
        b = OP + 4 * pr
        e(f"v_permlane32_swap_b32 v{b}, v{b+2}"); e(f"v_permlane32_swap_b32 v{b+1}, v{b+3}")
        e(f"buffer_store_dwordx4 {vr(b,4)}, v{vXO}, {sr(SO,4)}, s{sXO} offen offset:{32*pr}")
    stamp_end(e, 1, SWS, "K2_END", sW, OPT.get("sw2", 0))
    e.label("K2_END")
    e("s_endpgm")
    return e.text()

def kd(name, nv, acc, ns=102):
    return f""".amdhsa_kernel {name}
  .amdhsa_next_free_vgpr {nv}
  .amdhsa_next_free_sgpr {ns}
  .amdhsa_accum_offset {acc}
  .amdhsa_group_segment_fixed_size 0
  .amdhsa_kernarg_size 96
  .amdhsa_user_sgpr_count 2
  .amdhsa_user_sgpr_kernarg_segment_ptr 1
  .amdhsa_system_sgpr_workgroup_id_x 1
.end_amdhsa_kernel
"""

def main():
    out = "; LayerNorm + hedgehog linear attention + GELU FFN, two launches (generated by tools/gen.py)\n"
    out += "; @launch kernel=hh_k1_kernel grid=(256,1,1) block=(512,1,1) lds=163840\n"
    if not OPT["k1only"]:
        out += "; @launch kernel=hh_k2_kernel grid=(256,1,1) block=(256,1,1) lds=147456\n"
    out += '.amdgcn_target "amdgcn-amd-amdhsa--gfx950"\n.text\n'
    for name, body in (("hh_k1_kernel", gen_k1()), ("hh_k2_kernel", gen_k2())):
        out += f".globl {name}\n.p2align 8\n.type {name},@function\n{name}:\n" + body
    out += '.section .rodata,"a"\n.p2align 6\n' + kd("hh_k1_kernel", 256, 256) + ".p2align 6\n" + kd("hh_k2_kernel", 448, 256)
    open(sys.argv[1], "w").write(out)
main()
```

```python
import sys, math, struct

OPT = dict(stamps=0, st1="sc1", k1only=0, k2only=0, pfcode=1, pfw2=0)
for a in sys.argv[2:]:
    k, v = a.split("=")
    OPT[k] = int(v) if v.lstrip("-").isdigit() else v

H_OFF, PQ_OFF, KVP_OFF, KVZ_OFF, FLG_OFF = 0, 0x800000, 0xC00000, 0xE00000, 0xE10000
STAMP_OFF = 200 << 20
NSTAMP = 8
LOOPST = OPT.get('loopst', -1)

def f2u(x): return struct.unpack("<I", struct.pack("<f", x))[0]

class Asm:
    def __init__(self): self.L = []
    def __call__(self, s):
        for t in s.split(";;"): self.L.append("    " + t.strip())
    def label(self, s): self.L.append(s + ":")
    def ext(self, lst):
        for s in lst: self(s)
    def text(self): return "\n".join(self.L) + "\n"

class Lst(list):
    def __call__(self, s): self.append(s)

def vr(b, n=1): return f"v{b}" if n == 1 else f"v[{b}:{b+n-1}]"
def ar(b, n=1): return f"a{b}" if n == 1 else f"a[{b}:{b+n-1}]"
def sr(b, n=1): return f"s{b}" if n == 1 else f"s[{b}:{b+n-1}]"
MFMA = "v_mfma_f32_32x32x16_bf16"

def cost(ins):
    c = 0
    for t in ins.split(";;"):
        op = t.split()[0]
        if op.startswith(("v_exp", "v_rcp", "v_sqrt", "v_log", "v_mfma")): c += 8
        elif op == "s_nop": c += 2 * (int(t.split()[1]) + 1)
        elif op.startswith("s_"): c += 2
        elif op.startswith("buffer_"): c += 8
        else: c += 4.5
    return c

def interleave(groups, fill, first=0, last=None):
    last = len(groups) - 1 if last is None else last
    tot = sum(cost(i) for i in fill); n = last - first + 1
    out = []; k = 0; acc = 0.0
    for gi, g in enumerate(groups):
        out += g
        if first <= gi <= last:
            tgt = tot * (gi - first + 1) / n
            while k < len(fill) and (acc + cost(fill[k]) / 2 <= tgt or gi == last):
                out.append(fill[k]); acc += cost(fill[k]); k += 1
    assert k == len(fill)
    return out

def merge(a, b, frac=1.0):
    out = []; n = max(1, int(len(a) * frac)); k = 0
    for i, x in enumerate(a):
        while k < len(b) and k * n <= i * len(b) and i < n:
            out.append(b[k]); k += 1
        out.append(x)
    out += b[k:]
    return out

def srd(e, d, lo, hi, size):
    e(f"s_mov_b32 s{d}, s{lo}"); e(f"s_mov_b32 s{d+1}, s{hi}")
    e(f"s_mov_b32 s{d+2}, {size:#x}"); e(f"s_mov_b32 s{d+3}, 0x00020000")

def stamp(e, idx, base=80):
    if OPT["stamps"]:
        e(f"s_memtime s[{base+2*idx}:{base+2*idx+1}]")

def stamp_begin(e, base=80):
    if OPT["stamps"]:
        e(f"s_memrealtime s[{base}:{base+1}]")
        e(f"s_memtime s[{base-2}:{base-1}]")
        for i in range(2, NSTAMP):
            e(f"s_mov_b64 s[{base+2*i}:{base+2*i+1}], 0")

def stamp_end(e, kidx, wssrd, lbl, wave_sgpr, wave_sel, base=80):
    if not OPT["stamps"]: return
    e(f"s_memtime s[{base+2*(NSTAMP-2)}:{base+2*(NSTAMP-2)+1}]")
    e("s_waitcnt vmcnt(0)")
    e(f"s_memrealtime s[{base+2}:{base+3}]")
    e(f"s_memtime s[{base+2*(NSTAMP-1)}:{base+2*(NSTAMP-1)+1}]")
    e("s_waitcnt lgkmcnt(0)")
    for i in range(2, NSTAMP):
        e(f"s_sub_u32 s{base+2*i}, s{base+2*i}, s{base-2}")
        e(f"s_mov_b32 s{base+2*i+1}, 0")
    e(f"s_lshl_b32 s{base-2}, s2, 3"); e(f"s_add_u32 s{base-2}, s{base-2}, s{wave_sgpr}")
    e(f"s_mul_i32 s{base-2}, s{base-2}, {8*NSTAMP}")
    e(f"s_add_u32 s{base-2}, s{base-2}, {STAMP_OFF + kidx*256*8*8*NSTAMP}")
    e("s_mov_b64 exec, 1")
    e("v_mov_b32 v1, 0")
    for i in range(NSTAMP // 2):
        for j in range(4):
            e(f"v_mov_b32 v{4+j}, s{base+4*i+j}")
        e(f"buffer_store_dwordx4 v[4:7], v1, {sr(wssrd,4)}, s{base-2} offen offset:{16*i}")
        e("s_nop 1")
    e("s_waitcnt vmcnt(0)")

def gen_k1():
    e = Asm()
    ST1 = OPT["st1"].replace("_", " ") if OPT["st1"] != "none" else ""
    SX, SW, SWS, SAUX = 8, 12, 16, 20
    sW, sRG, sP, sC, sRB, sTYPE = 24, 25, 26, 27, 28, 29
    sPITCH, sRT, sIDX = 30, 31, 32
    sONES, sLO, sHI, sMASK = 34, 35, 36, 37
    sT0, sT1, sT2, sT3, sT4 = 38, 39, 40, 41, 42
    sCOL = 44
    sSLOT, sIT, sOUT, sK1, sP16 = 48, 49, 50, 51, 52
    sDA, sDB, sMA, sROWO, sW4K, sST = 53, 54, 55, 56, 57, 61
    sLT16, sCL2E = 58, 60
    vL, vL16, vDMA, vTRB, vTR, vWA = 1, 2, 3, 4, 5, 6
    vS, vFR, vAUX, vSEL = 8, 16, 24, 28
    TMP, RAW, ACC, EACC, WB, XF = 32, 64, 64, 80, 96, 128
    NWB = 6
    IMG = 0x10000
    e("s_cmp_ge_u32 s2, 256")
    e("s_cbranch_scc1 K1_END")
    stamp_begin(e)
    e("s_load_dwordx4 s[64:67], s[0:1], 0")
    e("s_load_dwordx2 s[68:69], s[0:1], 16")
    e("s_load_dwordx4 s[72:75], s[0:1], 40")
    e("s_load_dwordx2 s[70:71], s[0:1], 88")
    if OPT["pfw2"]:
        e("s_load_dwordx2 s[96:97], s[0:1], 56")
        e("s_load_dwordx2 s[98:99], s[0:1], 24")
    e(f"v_lshrrev_b32 v{vS}, 6, v0")
    e(f"v_and_b32 v{vL}, 63, v0")
    e(f"v_readfirstlane_b32 s{sW}, v{vS}")
    e(f"s_and_b32 s{sT0}, s2, 7")
    e(f"s_lshr_b32 s{sIDX}, s2, 3")
    e(f"s_lshr_b32 s{sRB}, s{sT0}, 1"); e(f"s_lshl_b32 s{sRB}, s{sRB}, 2")
    e(f"s_and_b32 s{sT2}, s{sIDX}, 3"); e(f"s_add_u32 s{sRB}, s{sRB}, s{sT2}")
    e(f"s_lshr_b32 s{sT1}, s{sIDX}, 2")
    e(f"s_and_b32 s{sTYPE}, s{sT1}, 1")
    e(f"s_lshr_b32 s{sT1}, s{sT1}, 1")
    e(f"s_and_b32 s{sC}, s{sT0}, 1"); e(f"s_lshl_b32 s{sC}, s{sC}, 2"); e(f"s_add_u32 s{sC}, s{sC}, s{sT1}")
    e(f"s_and_b32 s{sRG}, s{sW}, 3"); e(f"s_lshr_b32 s{sP}, s{sW}, 2")
    e(f"v_lshrrev_b32 v{vS}, 4, v{vL}"); e(f"v_and_b32 v{vS+1}, 15, v{vL}")
    e(f"v_lshlrev_b32 v{vS+2}, 10, v{vS}"); e(f"v_lshl_add_u32 v{vS+2}, v{vS+1}, 4, v{vS+2}")
    e(f"s_lshl_b32 s{sRT}, s{sRB}, 2"); e(f"s_add_u32 s{sRT}, s{sRT}, s{sRG}")
    e(f"s_lshl_b32 s{sT0}, s{sRT}, 15"); e(f"s_lshl_b32 s{sT1}, s{sP}, 13"); e(f"s_add_u32 s{sT0}, s{sT0}, s{sT1}")
    e(f"s_lshl_b32 s{sT1}, s{sP}, 14")
    e(f"s_xor_b32 s{sT2}, s{sT1}, 0x4000")
    e(f"s_add_u32 s{sT3}, s{sT0}, s{sT1}")
    e(f"s_add_u32 s{sT4}, s{sT0}, s{sT2}")
    if OPT["pfcode"]:
        e(f"s_cmp_lg_u32 s{sW}, 7"); e("s_cbranch_scc1 K1_NOPF")
        e("s_getpc_b64 s[62:63]")
        e("s_and_b32 s62, s62, 0xffffff00")
        e(f"s_mul_i32 s{sT1}, s{sIDX}, 768")
        e(f"v_lshl_add_u32 v{vS+3}, v{vL}, 7, s{sT1}")
        e("s_mov_b64 exec, 0x3f")
        e(f"global_load_dword v{XF}, v{vS+3}, s[62:63]")
        e("s_mov_b64 exec, -1")
        e.label("K1_NOPF")
    e("s_waitcnt lgkmcnt(0)")
    srd(e, SX, 64, 65, 2048 * 1024)
    def xload(g, sreg):
        for i in range(4):
            e(f"buffer_load_dwordx4 {vr(RAW+16*g+4*i,4)}, v{vS+2}, {sr(SX,4)}, s{sreg} offen offset:{256*i}")
    xload(0, sT3)
    e(f"s_add_u32 s{sT1}, s{sT4}, 0x1000")
    xload(1, sT1)
    xload(2, sT4)
    e(f"s_add_u32 s{sT1}, s{sT3}, 0x1000")
    xload(3, sT1)
    if OPT["pfw2"] >= 2:
        e(f"v_lshlrev_b32 v{vS+7}, 7, v{vL}")
        lst = [(96, 1792 * 1024, 7168, 0), (98, 512 * 1024, 2048, 1)]
        if OPT["pfw2"] >= 3: lst += [(72, 512 * 3584, 7168, 2), (66, 512 * 3072, 6144, 3)]
        for (pr, size, sl, wv) in lst:
            e(f"s_cmp_lg_u32 s{sW}, {wv}"); e(f"s_cbranch_scc1 K1_PF{wv}")
            srd(e, SAUX, pr, pr + 1, size)
            e(f"s_mul_i32 s{sT0}, s2, {sl}")
            e(f"s_bfm_b64 exec, {sl // 128}, 0")
            e(f"buffer_load_dword v{XF}, v{vS+7}, {sr(SAUX,4)}, s{sT0} offen")
            e("s_mov_b64 exec, -1")
            e.label(f"K1_PF{wv}")
    srd(e, SWS, 70, 71, 0x10000000)
    e(f"v_and_b32 v{vS+3}, 31, v{vL}")
    e(f"v_lshrrev_b32 v{vS+4}, 5, v{vL}")
    e(f"s_cmp_eq_u32 s{sTYPE}, 0")
    e("s_cbranch_scc1 K1_SETQ")
    srd(e, SW, 72, 73, 512 * 3584)
    srd(e, SAUX, 74, 75, 3584)
    e(f"s_movk_i32 s{sPITCH}, 3584")
    e(f"s_mul_i32 s{sT0}, s{sC}, 448")
    e(f"s_and_b32 s{sT1}, s{sC}, 1")
    e(f"s_lshl_b32 s{sT2}, s{sT1}, 6"); e(f"s_add_u32 s{sCOL}, s{sT0}, s{sT2}")
    e(f"s_add_u32 s{sCOL+1}, s{sCOL}, 128"); e(f"s_add_u32 s{sCOL+2}, s{sCOL}, 256")
    e(f"s_lshl_b32 s{sT2}, s{sT1}, 9"); e(f"s_add_u32 s{sCOL+3}, s{sCOL}, 384"); e(f"s_sub_u32 s{sCOL+3}, s{sCOL+3}, s{sT2}")
    e(f"s_lshl_b32 s{sT2}, s{sP}, 6")
    e(f"v_lshl_add_u32 v{vAUX+7}, v{vS+3}, 1, s{sT2}")
    e("s_branch K1_SETD")
    e.label("K1_SETQ")
    srd(e, SW, 66, 67, 512 * 3072)
    srd(e, SAUX, 68, 69, 32 * 512)
    e(f"s_movk_i32 s{sPITCH}, 3072")
    e(f"s_lshl_b32 s{sCOL+1}, s{sC}, 7"); e(f"s_add_u32 s{sCOL}, s{sCOL+1}, 1024"); e(f"s_add_u32 s{sCOL+2}, s{sCOL+1}, 2048")
    e(f"v_lshrrev_b32 v{vS+5}, 4, v{vS+3}"); e(f"v_lshlrev_b32 v{vS+5}, 9, v{vS+5}")
    e(f"v_lshl_add_u32 v{vS+5}, v{vS+4}, 7, v{vS+5}"); e(f"v_lshl_add_u32 v{vAUX+7}, v{vS+1}, 1, v{vS+5}")
    e(f"s_lshl_b32 s{sT0}, s{sC}, 11"); e(f"s_lshl_b32 s{sT1}, s{sP}, 10"); e(f"s_add_u32 s{sCOL+3}, s{sT0}, s{sT1}")
    e.label("K1_SETD")
    e(f"v_lshrrev_b32 v{vDMA}, 2, v{vL}"); e(f"v_mul_lo_u32 v{vDMA}, v{vDMA}, s{sPITCH}")
    e(f"v_and_b32 v{vS+5}, 3, v{vL}"); e(f"v_lshl_add_u32 v{vDMA}, v{vS+5}, 4, v{vDMA}")
    e(f"s_lshl_b32 s{sP16}, s{sPITCH}, 4")
    e(f"s_lshl_b32 s{sROWO}, s{sP16}, 2"); e(f"s_mul_i32 s{sROWO}, s{sROWO}, s{sW}")
    e(f"s_lshl_b32 s{sW4K}, s{sW}, 12")
    e(f"s_add_u32 s{sDA}, s{sROWO}, s{sCOL}"); e(f"s_mov_b32 s{sMA}, s{sW4K}")
    def dma_pair():
        return [f"s_mov_b32 m0, s{sMA};;s_add_u32 s{sDB}, s{sDA}, 64;;buffer_load_dwordx4 v{vDMA}, {sr(SW,4)}, s{sDA} offen lds",
                f"s_add_u32 m0, s{sMA}, 0x8000;;s_add_u32 s{sDA}, s{sDA}, s{sP16};;buffer_load_dwordx4 v{vDMA}, {sr(SW,4)}, s{sDB} offen lds;;s_add_u32 s{sMA}, s{sMA}, 1024"]
    e(f"s_mov_b32 s{sONES}, 0x3f803f80"); e(f"s_mov_b32 s{sLO}, 0x00003f80"); e(f"s_mov_b32 s{sHI}, 0x3f800000")
    e(f"s_mov_b32 s{sMASK}, 0xffff0000")
    e(f"v_lshlrev_b32 v{vL16}, 4, v{vL}")
    e(f"v_lshlrev_b32 v{vTRB}, 9, v{vS+4}")
    e(f"v_bfe_u32 v{vS+6}, v{vL}, 2, 2"); e(f"v_lshl_add_u32 v{vTRB}, v{vS+6}, 6, v{vTRB}")
    e(f"v_bfe_u32 v{vS+6}, v{vL}, 4, 1"); e(f"v_lshl_add_u32 v{vTRB}, v{vS+6}, 5, v{vTRB}")
    e(f"v_lshl_add_u32 v{vTRB}, v{vS+5}, 3, v{vTRB}")
    e(f"s_lshl_b32 s{sT0}, s{sP}, 15"); e(f"v_add_u32 v{vTR}, s{sT0}, v{vTRB}")
    e(f"s_lshl_b32 s{sT0}, s{sP}, 3"); e(f"s_lshl_b32 s{sT1}, s{sRG}, 14"); e(f"s_add_u32 s{sT1}, s{sT1}, {IMG}")
    for g in range(2):
        e(f"v_add_u32 v{vS+6}, s{sT0}, v{vS}")
        if g: e(f"v_add_u32 v{vS+6}, 4, v{vS+6}")
        e(f"v_xor_b32 v{vS+7}, v{vS+6}, v{vS+1}")
        e(f"v_lshlrev_b32 v{vS+7}, 4, v{vS+7}")
        e(f"v_lshl_add_u32 v{vS+7}, v{vS+6}, 10, v{vS+7}")
        e(f"v_add_u32 v{vWA+g}, s{sT1}, v{vS+7}")
    e(f"v_xor_b32 v{vS+6}, v{vS+4}, v{vS+1}"); e(f"v_lshlrev_b32 v{vS+6}, 4, v{vS+6}")
    e(f"v_lshl_add_u32 v{vS+6}, v{vS+1}, 10, v{vS+6}"); e(f"v_add_u32 v{vFR}, s{sT1}, v{vS+6}")
    for s in range(1, 8):
        e(f"v_xor_b32 v{vFR+s}, {32*s}, v{vFR}")
    e(f"v_cmp_gt_u32 {sr(sLT16,2)}, 16, v{vS+3}")
    if LOOPST < 0: stamp(e, 2)

    def ln_group(g, vm):
        R = RAW + 16 * g
        a, b, a1, b1, t, rr, nm = vS, vS + 1, vS + 2, vS + 3, vS + 5, vS + 4, vS + 6
        for j in range(4): e(f"v_mov_b32 v{vS+j}, 0")
        e(f"s_waitcnt vmcnt({vm})")
        for i in range(16):
            e(f"v_dot2c_f32_bf16 v{a + 2*(i & 1)}, s{sONES}, v{R+i}")
            e(f"v_dot2c_f32_bf16 v{b + 2*(i & 1)}, v{R+i}, v{R+i}")
        unp = []
        for i in range(16):
            unp += [f"v_lshlrev_b32 v{TMP+2*i}, 16, v{R+i}", f"v_and_b32 v{TMP+2*i+1}, s{sMASK}, v{R+i}"]
        ch = [f"v_add_f32 v{a}, v{a}, v{a1};;v_add_f32 v{b}, v{b}, v{b1}"]
        for sh in (8, 4, 2, 1):
            ch.append(f"v_add_f32_dpp v{a}, v{a}, v{a} row_ror:{sh} row_mask:0xf bank_mask:0xf;;v_add_f32_dpp v{b}, v{b}, v{b} row_ror:{sh} row_mask:0xf bank_mask:0xf")
        ch += [f"v_mul_f32 v{a}, {f2u(-1.0/512):#x}, v{a};;v_mul_f32 v{b}, {f2u(1.0/512):#x}, v{b}",
               f"v_fma_f32 v{b}, -v{a}, v{a}, v{b};;v_cvt_pk_bf16_f32 v{nm}, v{a}, v{a}",
               f"v_max_f32 v{b}, 0, v{b};;v_and_b32 v{nm}, s{sMASK}, v{nm}",
               f"v_cvt_pk_bf16_f32 v{b}, v{b}, v{b};;v_and_b32 v{b}, s{sMASK}, v{b}",
               f"v_add_f32 v{b}, {f2u(1e-5):#x}, v{b};;v_cvt_pk_bf16_f32 v{b}, v{b}, v{b}",
               f"v_and_b32 v{b}, s{sMASK}, v{b};;v_sqrt_f32 v{b}, v{b}",
               f"v_cvt_pk_bf16_f32 v{b}, v{b}, v{b};;v_and_b32 v{b}, s{sMASK}, v{b}",
               f"v_rcp_f32 v{rr}, v{b}",
               f"v_mul_f32 v{nm}, v{nm}, v{rr}"]
        k = 0
        e(unp[0]); e(unp[1]); k = 2
        for c in ch:
            e(unp[k]); e(unp[k+1]); k += 2
            e(c)
        for u in unp[k:]: e(u)
        for i in range(16):
            e(f"v_pk_fma_f32 {vr(TMP+2*i,2)}, {vr(TMP+2*i,2)}, {vr(rr,2)}, {vr(nm,2)} op_sel_hi:[1,0,0]")
        for i in range(16):
            e(f"v_cvt_pk_bf16_f32 v{R+i}, v{TMP+2*i}, v{TMP+2*i+1}")
    def ln_write(g):
        R = RAW + 16 * g
        for i in range(4):
            e(f"ds_write_b128 v{vWA + (g & 1)}, {vr(R+4*i,4)} offset:{256*i}")
    def frag_reads(mask):
        e(f"s_mov_b32 exec_lo, {mask:#x}"); e(f"s_mov_b32 exec_hi, {mask:#x}")
        for s in range(32):
            e(f"ds_read_b128 {vr(XF+4*s,4)}, v{vFR + (s & 7)} offset:{256*(s>>3)}")
        e("s_mov_b64 exec, -1")
    G1 = 0x0FF0F00F
    DA = [int(ch) for ch in str(OPT.get("dmaat", "1210")).zfill(4)]
    n = 0
    ln_group(0, 12); ln_write(0)
    for i in range(DA[0]): e.ext(dma_pair()); n += 2
    if LOOPST < 0: stamp(e, 4)
    ln_group(1, 8 + n); ln_write(1)
    for i in range(DA[1]): e.ext(dma_pair()); n += 2
    e("s_waitcnt lgkmcnt(0)"); e("s_barrier")
    if LOOPST < 0: stamp(e, 5)
    frag_reads(G1)
    for i in range(DA[2]): e.ext(dma_pair()); n += 2
    ln_group(2, 4 + n)
    for i in range(DA[3]): e.ext(dma_pair()); n += 2
    assert n == 8
    e(f"s_cmp_eq_u32 s{sTYPE}, 0"); e("s_cbranch_scc1 K1_AUXQ")
    for i in range(4):
        e(f"buffer_load_ushort v{vAUX+i}, v{vAUX+7}, {sr(SAUX,4)}, s{sCOL+i} offen")
    e("s_branch K1_AUXD")
    e.label("K1_AUXQ")
    for j in range(8):
        d = (j & 3) + 8 * (j >> 2)
        e(f"buffer_load_ushort v{vAUX+j}, v{vAUX+7}, {sr(SAUX,4)}, s{sCOL+3} offen offset:{32*d}")
    e(f"s_or_b32 s{sT0}, s2, s{sW}"); e(f"s_cmp_lg_u32 s{sT0}, 0"); e("s_cbranch_scc1 K1_AUXD")
    for j in range(4): e(f"v_mov_b32 v{vS+j}, 0")
    e(f"s_mov_b32 s{sT0}, {FLG_OFF}")
    e(f"buffer_store_dwordx4 {vr(vS,4)}, v{vL16}, {sr(SWS,4)}, s{sT0} offen")
    e(f"buffer_store_dwordx4 {vr(vS,4)}, v{vL16}, {sr(SWS,4)}, s{sT0} offen offset:1024")
    e("s_nop 1")
    e.label("K1_AUXD")
    e("s_waitcnt lgkmcnt(0)"); e("s_barrier")
    ln_write(2)
    ln_group(3, n + 4)
    ln_write(3)
    e("s_waitcnt vmcnt(0) lgkmcnt(0)"); e("s_barrier")
    if LOOPST < 0: stamp(e, 3)
    frag_reads(G1 ^ 0xFFFFFFFF)
    if OPT["pfw2"] == 1:
        srd(e, SX, 96, 97, 1792 * 1024)
        e(f"s_lshl_b32 s{sT1}, s{sIDX}, 3"); e(f"s_add_u32 s{sT1}, s{sT1}, s{sW}")
        e(f"s_mul_i32 s{sT0}, s{sT1}, 7168")
        e(f"v_lshlrev_b32 v{vWA}, 7, v{vL}")
        e(f"buffer_load_dword v{vWA+1}, v{vWA}, {sr(SX,4)}, s{sT0} offen")
        srd(e, SAUX, 98, 99, 512 * 1024)
        e(f"s_lshl_b32 s{sT0}, s{sT1}, 11")
        e("s_mov_b64 exec, 0xffff")
        e(f"buffer_load_dword v{vWA+1}, v{vWA}, {sr(SAUX,4)}, s{sT0} offen")
        e("s_mov_b64 exec, -1")

    lcnt = [0]
    def lstamp(idx, it=None):
        if LOOPST < 0 or not OPT["stamps"]: return
        if it is not None:
            if it == LOOPST: stamp(e, idx); e("s_waitcnt lgkmcnt(0)")
            return
        lcnt[0] += 1
        e(f"s_cmp_lg_u32 s{sIT}, {LOOPST}"); e(f"s_cbranch_scc1 K1_LS{lcnt[0]}")
        stamp(e, idx)
        e("s_waitcnt lgkmcnt(0)")
        e.label(f"K1_LS{lcnt[0]}")

    def mgroups(swap=False, bias=None):
        PF = NWB - 1
        def rd(s):
            b = WB + 4 * (s % NWB)
            return [f"ds_read_b64_tr_b16 {vr(b,2)}, v{vTR} offset:{1024*s}",
                    f"ds_read_b64_tr_b16 {vr(b+2,2)}, v{vTR} offset:{1024*s+256}"]
        G = []
        g0 = []
        for s in range(PF): g0 += rd(s)
        if bias: g0.append(f"{MFMA} {vr(ACC,16)}, {vr(bias[0],4)}, {vr(bias[1],4)}, 0")
        G.append(g0)
        for s in range(32):
            g = []
            if s + PF < 32: g += rd(s + PF)
            g.append(f"s_waitcnt lgkmcnt({2 * min(PF, 31 - s)})")
            w, x = vr(WB + 4 * (s % NWB), 4), vr(XF + 4 * s, 4)
            a, b = (x, w) if swap else (w, x)
            c = "0" if (s == 0 and not bias) else vr(ACC, 16)
            d = EACC if s == 31 else ACC
            g.append(f"{MFMA} {vr(d,16)}, {a}, {b}, {c}")
            G.append(g)
        return G
    def dma8():
        l = []
        for i in range(4): l += dma_pair()
        return l
    def dma_setup(colreg, ldsbase):
        e(f"s_add_u32 s{sDA}, s{sROWO}, s{colreg}"); e(f"s_add_u32 s{sMA}, s{sW4K}, {ldsbase}")

    e(f"s_mov_b32 s{sIT}, 0")
    e(f"s_cmp_eq_u32 s{sTYPE}, 0")
    e("s_cbranch_scc1 K1_QKV")
    BI, OH, vK0, vSTO = 16, 20, 28, 29
    k0 = -2.0 * math.sqrt(2.0 / math.pi) * math.log2(math.e)
    e(f"v_mov_b32 v{BI}, v{vAUX}")
    for j in (1, 2, 3): e(f"v_mov_b32 v{BI+j}, 0"); e(f"v_mov_b32 v{OH+j}, 0")
    e(f"v_mov_b32 v{OH}, s{sLO}")
    e(f"v_cmp_gt_u32 vcc, 32, v{vL}")
    e(f"v_mov_b32 v{vK0}, {f2u(k0):#x}")
    e(f"s_mov_b32 s{sK1}, {f2u(k0*0.044715):#x}")
    e(f"v_cndmask_b32 v{OH}, 0, v{OH}, vcc")
    e(f"s_mul_i32 s{sOUT}, s{sRT}, 114688"); e(f"s_lshl_b32 s{sT0}, s{sP}, 11"); e(f"s_add_u32 s{sOUT}, s{sOUT}, s{sT0}")
    e(f"s_mov_b32 s{sST}, 0"); e(f"v_mov_b32 v{vSTO}, 0x7fff0000")
    e(f"s_mov_b32 s{sSLOT}, 0x10000")
    e(f"s_and_b32 s{sT4}, s{sC}, 1"); e(f"s_xor_b32 s{sT4}, s{sT4}, s{sP}"); e(f"s_sub_u32 s{sT4}, 4, s{sT4}")
    e("s_waitcnt lgkmcnt(0)"); e("s_barrier")
    def gelu():
        l = Lst()
        for half in range(2):
            rng = range(8 * half, 8 * half + 8)
            for i in rng: l(f"v_mul_f32 v{TMP+i}, v{EACC+i}, v{EACC+i}")
            for i in rng: l(f"v_fma_f32 v{TMP+i}, v{TMP+i}, s{sK1}, v{vK0}")
            for i in rng: l(f"v_mul_f32 v{TMP+i}, v{EACC+i}, v{TMP+i}")
            for i in rng: l(f"v_exp_f32 v{TMP+i}, v{TMP+i}")
            for i in rng: l(f"v_add_f32 v{TMP+i}, 1.0, v{TMP+i}")
            for i in rng: l(f"v_rcp_f32 v{TMP+i}, v{TMP+i}")
            for i in rng: l(f"v_mul_f32 v{TMP+i}, v{EACC+i}, v{TMP+i}")
            for i in range(4): l(f"v_cvt_pk_bf16_f32 v{TMP+16+4*half+i}, v{TMP+8*half+2*i}, v{TMP+8*half+2*i+1}")
            l(f"buffer_store_dwordx4 {vr(TMP+16+4*half,4)}, v{vSTO}, {sr(SWS,4)}, s{sST} offen offset:{1024*half} {ST1}")
        return l
    e.label("K1_FLOOP")
    lstamp(2)
    e(f"s_add_u32 s{sDA}, s{sROWO}, s{sCOL+1}"); e(f"s_add_u32 s{sMA}, s{sW4K}, s{sSLOT}")
    body = interleave(mgroups(bias=(BI, OH)), merge(gelu(), dma8(), 0.45), 0, 31)
    if OPT.get("x_nodma"): body = [i for i in body if " lds" not in i]
    if OPT.get("x_nost"): body = [i for i in body if "buffer_store" not in i]
    if OPT.get("x_nord"): body = [i for i in body if "ds_read" not in i]
    if OPT.get("x_nowait"): body = [i for i in body if "s_waitcnt" not in i]
    if OPT.get("x_notrans"): body = [i.replace("v_exp_f32", "v_mov_b32").replace("v_rcp_f32", "v_mov_b32") for i in body]
    if OPT.get("x_novalu"): body = [i for i in body if not (i.startswith("v_") and "mfma" not in i)]
    if OPT.get("x_nomfma"): body = [i for i in body if "mfma" not in i]
    if OPT.get("x_prio"):
        e(f"s_cmp_eq_u32 s{sP}, 0"); e("s_cbranch_scc1 K1_NP"); e("s_setprio 1"); e.label("K1_NP")
    e.ext(body)
    lstamp(4)
    e(f"s_lshl_b32 s{sST}, s{sCOL}, 5"); e(f"s_add_u32 s{sST}, s{sST}, s{sOUT}")
    e(f"s_mov_b32 s{sCOL}, s{sCOL+1}"); e(f"s_mov_b32 s{sCOL+1}, s{sCOL+2}"); e(f"s_mov_b32 s{sCOL+2}, s{sCOL+3}")
    e(f"s_cmp_ge_u32 s{sIT}, 2"); e(f"s_cselect_b32 s{sT0}, 0x7fff0000, 0")
    e(f"v_or_b32 v{vDMA}, s{sT0}, v{vDMA}"); e(f"v_mov_b32 v{vSTO}, v{vL16}")
    e(f"v_mov_b32 v{BI}, v{vAUX+1}"); e(f"v_mov_b32 v{vAUX+1}, v{vAUX+2}"); e(f"v_mov_b32 v{vAUX+2}, v{vAUX+3}")
    e(f"v_xor_b32 v{vTR}, 0x10000, v{vTR}")
    e(f"s_xor_b32 s{sSLOT}, s{sSLOT}, 0x10000")
    e(f"s_add_u32 s{sIT}, s{sIT}, 1")
    e(f"s_cmp_ge_u32 s{sIT}, 4"); e("s_cbranch_scc1 K1_FEND")
    e("s_waitcnt vmcnt(2)"); e("s_barrier")
    e(f"s_cmp_lt_u32 s{sIT}, s{sT4}"); e("s_cbranch_scc1 K1_FLOOP")
    e.label("K1_FEND")
    lstamp(5, LOOPST)
    e.ext(gelu())
    e("s_branch K1_FIN")

    e.label("K1_QKV")
    A1, A2, SP, SM, PHT = 16, 20, 24, 28, (120, 24)
    for j in range(4): e(f"v_lshl_or_b32 v{vAUX+j}, v{vAUX+2*j+1}, 16, v{vAUX+2*j}")
    e(f"v_and_b32 v{vS+1}, 15, v{vL}"); e(f"v_lshrrev_b32 v{vS+4}, 5, v{vL}")
    e(f"v_lshlrev_b32 v{vS+6}, 2, v{vS+4}"); e(f"v_sub_u32 v{vS+6}, v{vS+1}, v{vS+6}")
    e(f"v_mov_b32 v{vS+7}, s{sLO}"); e(f"v_mov_b32 v{vS+5}, s{sHI}")
    for t, f0 in enumerate((0, 2, 8, 10)):
        e(f"v_cmp_eq_u32 vcc, {f0}, v{vS+6}")
        e(f"v_cmp_eq_u32 s[62:63], {f0+1}, v{vS+6}")
        e("s_nop 0")
        e(f"v_cndmask_b32 v{vSEL+t}, 0, v{vS+7}, vcc")
        e(f"v_cndmask_b32 v{vSEL+t}, v{vSEL+t}, v{vS+5}, s[62:63]")
    for j in range(4):
        e(f"v_cndmask_b32 v{A1+j}, 0, v{vAUX+j}, {sr(sLT16,2)}")
        e(f"v_cndmask_b32 v{A2+j}, v{vAUX+j}, 0, {sr(sLT16,2)}")
    for j in range(4):
        e(f"v_cndmask_b32 v{SP+j}, 0, v{vSEL+j}, {sr(sLT16,2)}")
        e(f"v_cndmask_b32 v{SM+j}, v{vSEL+j}, 0, {sr(sLT16,2)}")
    e(f"s_mov_b32 s{sCL2E}, {f2u(math.log2(math.e)):#x}")
    e(f"s_lshl_b32 s{sOUT}, s{sRT}, 16"); e(f"s_lshl_b32 s{sT0}, s{sC}, 13"); e(f"s_add_u32 s{sOUT}, s{sOUT}, s{sT0}")
    e(f"s_lshl_b32 s{sT0}, s{sP}, 12"); e(f"s_add_u32 s{sOUT}, s{sOUT}, s{sT0}"); e(f"s_add_u32 s{sOUT}, s{sOUT}, {PQ_OFF}")
    e("s_waitcnt lgkmcnt(0)"); e("s_barrier")
    PK = TMP + 16
    def softmax(isk):
        l = Lst()
        for i in range(8): l(f"v_cvt_pk_bf16_f32 v{PK+i}, v{EACC+2*i}, v{EACC+2*i+1}")
        l(f"s_nop 1;;{MFMA} {vr(EACC,16)}, {vr(A1,4)}, {vr(PK,4)}, 0;;{MFMA} {vr(EACC,16)}, {vr(A2,4)}, {vr(PK+4,4)}, {vr(EACC,16)}")
        for i in range(6): l("s_nop 1")
        for a in range(2):
            P = EACC + 8 * a
            mx, mn = vS, vS + 1
            l(f"v_max3_f32 v{mx}, v{P}, v{P+1}, v{P+2}"); l(f"v_max3_f32 v{mn}, -v{P}, -v{P+1}, -v{P+2}")
            l(f"v_max3_f32 v{mx}, v{mx}, v{P+3}, v{P+4}"); l(f"v_max3_f32 v{mn}, v{mn}, -v{P+3}, -v{P+4}")
            l(f"v_max3_f32 v{mx}, v{mx}, v{P+5}, v{P+6}"); l(f"v_max3_f32 v{mn}, v{mn}, -v{P+5}, -v{P+6}")
            l(f"v_max_f32 v{mx}, v{mx}, v{P+7}"); l(f"v_max_f32_e64 v{mn}, v{mn}, -v{P+7}")
            l("s_nop 1"); l(f"v_permlane32_swap_b32 v{mx}, v{mn}")
            l(f"v_max_f32 v{mx}, v{mx}, v{mn}")
            l(f"v_mul_f32_e64 v{mx}, -v{mx}, s{sCL2E}")
            l(f"v_mov_b32 v{mn}, v{mx}")
            l("s_nop 1"); l(f"v_permlane32_swap_b32 v{mx}, v{mn}")
            for j in range(8): l(f"v_fma_f32 v{TMP+j}, v{P+j}, s{sCL2E}, v{mx}")
            for j in range(8): l(f"v_fma_f32 v{TMP+8+j}, -v{P+j}, s{sCL2E}, v{mn}")
            for j in range(16): l(f"v_exp_f32 v{TMP+j}, v{TMP+j}")
            s0, s1, s2, s3 = vS + 2, vS + 3, vS + 4, vS + 5
            l(f"v_add_f32 v{s0}, v{TMP}, v{TMP+1}"); l(f"v_add_f32 v{s1}, v{TMP+8}, v{TMP+9}")
            l(f"v_add_f32 v{s2}, v{TMP+2}, v{TMP+3}"); l(f"v_add_f32 v{s3}, v{TMP+10}, v{TMP+11}")
            for j in (4, 6):
                l(f"v_add_f32 v{s0}, v{s0}, v{TMP+j}"); l(f"v_add_f32 v{s1}, v{s1}, v{TMP+8+j}")
                l(f"v_add_f32 v{s2}, v{s2}, v{TMP+j+1}"); l(f"v_add_f32 v{s3}, v{s3}, v{TMP+8+j+1}")
            l(f"v_add_f32 v{s0}, v{s0}, v{s2}"); l(f"v_add_f32 v{s1}, v{s1}, v{s3}")
            l("s_nop 1"); l(f"v_permlane32_swap_b32 v{s0}, v{s1}")
            l(f"v_add_f32 v{s0}, v{s0}, v{s1}")
            l(f"v_rcp_f32 v{s0}, v{s0}")
            l("s_nop 0"); l(f"v_mov_b32 v{s1}, v{s0}")
            l("s_nop 1"); l(f"v_permlane32_swap_b32 v{s0}, v{s1}")
            for j in range(8): l(f"v_mul_f32 v{TMP+j}, v{TMP+j}, v{s0}")
            for j in range(8): l(f"v_mul_f32 v{TMP+8+j}, v{TMP+8+j}, v{s1}")
            for j in range(8): l(f"v_cvt_pk_bf16_f32 v{PK+8*a+j}, v{TMP+2*j}, v{TMP+2*j+1}")
            if not isk:
                for i in range(2):
                    l(f"buffer_store_dwordx4 {vr(PK+8*a+4*i,4)}, v{vL16}, {sr(SWS,4)}, s{sOUT} offen offset:{2048*a+1024*i} {ST1}")
        if isk:
            TD = (TMP, EACC)
            l("s_nop 1")
            for a in range(2):
                l(f"{MFMA} {vr(TD[a],16)}, {vr(PK+8*a,4)}, {vr(SP,4)}, 0;;{MFMA} {vr(TD[a],16)}, {vr(PK+8*a+4,4)}, {vr(SM,4)}, {vr(TD[a],16)}")
            for i in range(5): l("s_nop 1")
            for a in range(2):
                for j in range(8): l(f"v_cvt_pk_bf16_f32 v{PHT[a]+j}, v{TD[a]+2*j}, v{TD[a]+2*j+1}")
        return l
    lstamp(2, 0)
    dma_setup(sCOL + 1, 0x10000)
    e.ext(interleave(mgroups(), dma8(), 0, 16))
    lstamp(4, 0)
    e(f"v_xor_b32 v{vTR}, 0x10000, v{vTR}")
    dma_setup(sCOL + 2, 0)
    e("s_waitcnt vmcnt(0)"); e("s_barrier")
    lstamp(2, 1)
    e.ext(interleave(mgroups(), merge(softmax(True), dma8(), 0.45), 0, 31))
    lstamp(4, 1)
    e(f"v_xor_b32 v{vTR}, 0x10000, v{vTR}")
    e("s_waitcnt vmcnt(0)"); e("s_barrier")
    lstamp(2, 2)
    e.ext(interleave(mgroups(swap=True), softmax(False), 0, 31))
    lstamp(4, 2)
    lstamp(5, LOOPST)
    e(f"v_mov_b32 v{vS}, s{sONES}")
    e(f"s_lshl_b32 s{sT0}, s{sP}, 15"); e(f"s_add_u32 s{sT0}, s{sT0}, 0x10000")
    e(f"s_lshl_b32 s{sT1}, s{sRG}, 13"); e(f"s_add_u32 s{sT1}, s{sT1}, s{sT0}")
    e(f"v_add_u32 v{vS+1}, s{sT1}, v{vL16}")
    e(f"s_lshl_b32 s{sT1}, s{sRG}, 10"); e(f"s_add_u32 s{sT1}, s{sT1}, s{sT0}")
    e(f"v_add_u32 v{vS+2}, s{sT1}, v{vL16}")
    e("s_nop 3")
    VB = WB
    for i in range(8): e(f"v_cvt_pk_bf16_f32 v{VB+i}, v{EACC+2*i}, v{EACC+2*i+1}")
    for i in range(8):
        e(f"v_cndmask_b32 v{VB+8+i}, v{VB+i}, v{vS}, {sr(sLT16,2)}")
        e(f"v_cndmask_b32 v{VB+i}, v{vS}, v{VB+i}, {sr(sLT16,2)}")
    e("s_nop 1")
    TD = (ACC, EACC)
    for a in range(2):
        e(f"{MFMA} {vr(TD[a],16)}, {vr(PHT[a],4)}, {vr(VB+8*a,4)}, 0")
        e(f"{MFMA} {vr(TD[a],16)}, {vr(PHT[a]+4,4)}, {vr(VB+8*a+4,4)}, {vr(TD[a],16)}")
    e(f"s_lshl_b32 s{sOUT}, s{sRB}, 17"); e(f"s_lshl_b32 s{sT0}, s{sC}, 14"); e(f"s_add_u32 s{sOUT}, s{sOUT}, s{sT0}")
    e(f"s_lshl_b32 s{sT0}, s{sP}, 13"); e(f"s_add_u32 s{sOUT}, s{sOUT}, s{sT0}")
    e(f"s_lshl_b32 s{sT0}, s{sRG}, 10"); e(f"s_add_u32 s{sOUT}, s{sOUT}, s{sT0}"); e(f"s_add_u32 s{sOUT}, s{sOUT}, {KVP_OFF}")
    e(f"s_add_u32 s{sT1}, s{sOUT}, 4096")
    e(f"v_xor_b32 v{vS+3}, 256, v{vL16}")
    e("s_nop 1")
    for a in range(2):
        for q in range(4):
            e(f"ds_write_b128 v{vS+1}, {vr(TD[a]+4*q,4)} offset:{4096*a + 1024*q}")
    e("s_waitcnt lgkmcnt(0)"); e("s_barrier")
    RD = XF
    for a in range(2):
        for w in range(4):
            e(f"ds_read_b128 {vr(RD+16*a+4*w,4)}, v{vS+2} offset:{8192*w + 4096*a}")
    for a in range(2):
        e(f"s_waitcnt lgkmcnt({4*(1-a)})")
        B = RD + 16 * a
        for j in range(4): e(f"v_add_f32 v{B+j}, v{B+j}, v{B+4+j}")
        for j in range(4): e(f"v_add_f32 v{B+8+j}, v{B+8+j}, v{B+12+j}")
        for j in range(4): e(f"v_add_f32 v{B+j}, v{B+j}, v{B+8+j}")
        if a == 0: e(f"buffer_store_dwordx4 {vr(B,4)}, v{vL16}, {sr(SWS,4)}, s{sOUT} offen {ST1}")
        else:      e(f"buffer_store_dwordx4 {vr(B,4)}, v{vS+3}, {sr(SWS,4)}, s{sT1} offen {ST1}")
    e.label("K1_FIN")
    stamp_end(e, 0, SWS, "K1_END", sW, OPT.get("sw1", 0))
    e.label("K1_END")
    e("s_endpgm")
    return e.text()

K2_WLDS = 8192 + 3 * 2048
K2_XB = 4 * K2_WLDS
K2_LDS = K2_XB + 4 * 64 * 272
def gen_k2():
    e = Asm()
    SWS, SW2, SWO, SX, SO, SB2 = 8, 12, 16, 20, 24, 28
    sW, sCB, sRB, sT0, sT1, sT2, sT3 = 32, 33, 34, 35, 36, 37, 38
    sA0, sA1, sWK, sLB, sIT, sU = 39, 40, 41, 42, 43, 44
    sP0, sP1, sKV, sWO_, sXO, sMASK, sCNT = 46, 47, 48, 49, 50, 51, 52
    vL, vL16, vDMA, vTR0, vTR1, vXO = 1, 2, 3, 4, 5, 6
    vS = 8
    vXB = 16
    vX, vB = 32, 40
    OP = 32
    ACC, WB, ND, RING = 48, 112, 128, 160
    ATT = (RING + 32, RING + 56, RING)
    e("s_cmp_ge_u32 s2, 256")
    e("s_cbranch_scc1 K2_END")
    stamp_begin(e)
    e("s_load_dwordx2 s[64:65], s[0:1], 88")
    e("s_load_dwordx4 s[68:71], s[0:1], 56")
    e("s_load_dwordx2 s[66:67], s[0:1], 24")
    e("s_load_dwordx2 s[72:73], s[0:1], 0")
    e("s_load_dwordx2 s[74:75], s[0:1], 72")
    e(f"v_lshrrev_b32 v{vS}, 6, v0")
    e(f"v_and_b32 v{vL}, 63, v0")
    e(f"v_readfirstlane_b32 s{sW}, v{vS}")
    e(f"v_lshlrev_b32 v{vL16}, 4, v{vL}")
    e("s_nop 2")
    e(f"s_cmp_eq_u32 s{sW}, 4"); e("s_cbranch_scc1 K2_HELP")
    e(f"s_and_b32 s{sT0}, s2, 7"); e(f"s_lshr_b32 s{sT1}, s2, 3")
    if OPT.get("map2", "R") == "P":
        e(f"s_and_b32 s{sCB}, s{sT0}, 1"); e(f"s_lshl_b32 s{sCB}, s{sCB}, 2"); e(f"s_and_b32 s{sT2}, s{sT1}, 3"); e(f"s_add_u32 s{sCB}, s{sCB}, s{sT2}")
        e(f"s_lshr_b32 s{sRB}, s{sT0}, 1"); e(f"s_lshl_b32 s{sRB}, s{sRB}, 3"); e(f"s_lshr_b32 s{sT2}, s{sT1}, 2"); e(f"s_add_u32 s{sRB}, s{sRB}, s{sT2}")
    else:
        e(f"s_and_b32 s{sCB}, s{sT1}, 7")
        e(f"s_lshl_b32 s{sRB}, s{sT0}, 2"); e(f"s_lshr_b32 s{sT2}, s{sT1}, 3"); e(f"s_add_u32 s{sRB}, s{sRB}, s{sT2}")
    e(f"s_mul_i32 s{sA0}, s{sRB}, {2*114688}"); e(f"s_mul_i32 s{sT0}, s{sW}, {28*1024}")
    e(f"s_add_u32 s{sA0}, s{sA0}, s{sT0}"); e(f"s_add_u32 s{sA1}, s{sA0}, 114688")
    e(f"s_lshl_b32 s{sT0}, s{sCB}, 7")
    e(f"s_mul_i32 s{sWK}, s{sW}, {448*1024}"); e(f"s_add_u32 s{sWK}, s{sWK}, s{sT0}")
    e(f"s_mul_i32 s{sLB}, s{sW}, {K2_WLDS}")
    e(f"v_lshrrev_b32 v{vXO}, 3, v{vL}"); e(f"v_lshlrev_b32 v{vXO}, 10, v{vXO}")
    e(f"v_and_b32 v{vS+2}, 7, v{vL}"); e(f"v_bfe_u32 v{vS+3}, v{vL}, 4, 1"); e(f"v_lshlrev_b32 v{vS+4}, 2, v{vS+3}")
    e(f"v_xor_b32 v{vS+4}, v{vS+2}, v{vS+4}"); e(f"v_lshl_add_u32 v{vDMA}, v{vS+4}, 4, v{vXO}")
    e("s_waitcnt lgkmcnt(0)")
    srd(e, SWS, 64, 65, 0x10000000)
    srd(e, SW2, 68, 69, 1792 * 1024)
    def issue_ffn(slot):
        e(f"s_add_u32 m0, s{sLB}, {2048*slot}")
        e(f"buffer_load_dwordx4 {vr(RING+8*slot,4)}, v{vL16}, {sr(SWS,4)}, s{sA0} offen")
        e(f"buffer_load_dwordx4 {vr(RING+8*slot+4,4)}, v{vL16}, {sr(SWS,4)}, s{sA1} offen")
        e(f"buffer_load_dwordx4 v{vDMA}, {sr(SW2,4)}, s{sWK} offen lds")
        e(f"s_add_u32 m0, s{sLB}, {2048*slot+1024}")
        e(f"s_add_u32 s{sWK}, s{sWK}, 8192")
        e(f"s_add_u32 s{sA0}, s{sA0}, 1024")
        e(f"buffer_load_dwordx4 v{vDMA}, {sr(SW2,4)}, s{sWK} offen lds")
        e(f"s_add_u32 s{sWK}, s{sWK}, 8192")
        e(f"s_add_u32 s{sA1}, s{sA1}, 1024")
    for s in range(4): issue_ffn(s)
    srd(e, SWO, 66, 67, 512 * 1024)
    srd(e, SX, 72, 73, 2048 * 1024)
    srd(e, SO, 74, 75, 2048 * 1024)
    srd(e, SB2, 70, 71, 1024)
    e(f"v_lshlrev_b32 v{vS+5}, 4, v{vS+2}"); e(f"v_add_u32 v{vXO}, v{vXO}, v{vS+5}")
    e(f"s_lshl_b32 s{sXO}, s{sRB}, 16"); e(f"s_add_u32 s{sXO}, s{sXO}, s{sT0}"); e(f"s_lshl_b32 s{sT1}, s{sW}, 14"); e(f"s_add_u32 s{sXO}, s{sXO}, s{sT1}")
    e(f"s_add_u32 s{sT2}, s{sXO}, 8192")
    e(f"buffer_load_dwordx4 {vr(vX,4)}, v{vXO}, {sr(SX,4)}, s{sXO} offen")
    e(f"buffer_load_dwordx4 {vr(vX+4,4)}, v{vXO}, {sr(SX,4)}, s{sT2} offen")
    e(f"buffer_load_dwordx4 {vr(vB,4)}, v{vS+5}, {sr(SB2,4)}, s{sT0} offen")
    e(f"s_lshl_b32 s{sP0}, s{sRB}, 17"); e(f"s_add_u32 s{sP0}, s{sP0}, s{sT1}"); e(f"s_add_u32 s{sP0}, s{sP0}, {PQ_OFF}")
    e(f"s_add_u32 s{sP1}, s{sP0}, 65536")
    e(f"s_add_u32 s{sKV}, s{sT1}, {KVZ_OFF}")
    e(f"s_lshl_b32 s{sWO_}, s{sW}, 17"); e(f"s_add_u32 s{sWO_}, s{sWO_}, s{sT0}")
    e(f"v_bfe_u32 v{vS+6}, v{vL}, 2, 2"); e(f"v_lshrrev_b32 v{vS+4}, 5, v{vL}")
    e(f"v_lshl_add_u32 v{vS+7}, v{vS+4}, 2, v{vS+6}"); e(f"v_lshlrev_b32 v{vTR0}, 7, v{vS+7}")
    e(f"v_lshl_add_u32 v{vTR0}, v{vS+3}, 5, v{vTR0}")
    e(f"v_and_b32 v{vS+7}, 3, v{vL}"); e(f"v_lshl_add_u32 v{vTR0}, v{vS+7}, 3, v{vTR0}")
    e(f"v_lshrrev_b32 v{vS+6}, 1, v{vS+6}"); e(f"v_lshl_add_u32 v{vTR0}, v{vS+6}, 6, v{vTR0}")
    e(f"v_add_u32 v{vTR0}, s{sLB}, v{vTR0}")
    e(f"v_xor_b32 v{vTR1}, 64, v{vTR0}")
    for i in range(64): e(f"v_mov_b32 v{ACC+i}, 0")
    e(f"s_mov_b32 s{sMASK}, 0xffff0000")
    def wreads(off, buf):
        b = WB + 8 * buf
        e(f"ds_read_b64_tr_b16 {vr(b,2)}, v{vTR0} offset:{off}")
        e(f"ds_read_b64_tr_b16 {vr(b+2,2)}, v{vTR0} offset:{off+1024}")
        e(f"ds_read_b64_tr_b16 {vr(b+4,2)}, v{vTR1} offset:{off}")
        e(f"ds_read_b64_tr_b16 {vr(b+6,2)}, v{vTR1} offset:{off+1024}")
    def mm4(buf, act):
        for nt in range(2):
            for mt in range(2):
                c = vr(ACC + 16 * (2 * nt + mt), 16)
                e(f"{MFMA} {c}, {vr(WB+8*buf+4*nt,4)}, {act[mt]}, {c}")
    e("s_waitcnt vmcnt(15)")
    stamp(e, 2)
    wreads(0, 0)
    e(f"s_mov_b32 s{sIT}, 6")
    e.label("K2_LOOP")
    for s in range(4):
        e("s_waitcnt vmcnt(8)")
        wreads(2048 * ((s + 1) % 4), (s + 1) & 1)
        e("s_waitcnt lgkmcnt(4)")
        mm4(s & 1, [vr(RING + 8 * s, 4), vr(RING + 8 * s + 4, 4)])
        issue_ffn(s)
    e(f"s_cmp_lg_u32 s{sIT}, {OPT.get('pollat', 3)}"); e("s_cbranch_scc1 K2_NB"); e("s_barrier"); e.label("K2_NB")
    e(f"s_sub_u32 s{sIT}, s{sIT}, 1"); e(f"s_cmp_lg_u32 s{sIT}, 0"); e("s_cbranch_scc1 K2_LOOP")
    stamp(e, 3)
    e("s_barrier")
    def issue_att(a):
        R = ATT[a % 3]
        e(f"s_add_u32 m0, s{sLB}, {8192 + 2048*(a%3)}")
        o = 2048 * (a & 1)
        e(f"buffer_load_dwordx4 {vr(R,4)}, v{vL16}, {sr(SWS,4)}, s{sKV} offen offset:{o} sc1")
        e(f"buffer_load_dwordx4 {vr(R+4,4)}, v{vL16}, {sr(SWS,4)}, s{sKV} offen offset:{o+1024} sc1")
        e(f"buffer_load_dwordx4 {vr(R+8,4)}, v{vL16}, {sr(SWS,4)}, s{sP0} offen offset:{o}")
        e(f"buffer_load_dwordx4 {vr(R+12,4)}, v{vL16}, {sr(SWS,4)}, s{sP0} offen offset:{o+1024}")
        e(f"buffer_load_dwordx4 {vr(R+16,4)}, v{vL16}, {sr(SWS,4)}, s{sP1} offen offset:{o}")
        e(f"buffer_load_dwordx4 {vr(R+20,4)}, v{vL16}, {sr(SWS,4)}, s{sP1} offen offset:{o+1024}")
        e(f"buffer_load_dwordx4 v{vDMA}, {sr(SWO,4)}, s{sWO_} offen lds")
        e(f"s_add_u32 m0, s{sLB}, {8192 + 2048*(a%3) + 1024}")
        e(f"s_add_u32 s{sWO_}, s{sWO_}, 8192")
        e(f"buffer_load_dwordx4 v{vDMA}, {sr(SWO,4)}, s{sWO_} offen lds")
        e(f"s_add_u32 s{sWO_}, s{sWO_}, 8192")
        if a & 1:
            e(f"s_add_u32 s{sKV}, s{sKV}, 4096"); e(f"s_add_u32 s{sP0}, s{sP0}, 4096"); e(f"s_add_u32 s{sP1}, s{sP1}, 4096")
    yv = [8, 4 + 8, 16]
    for s in range(4):
        if s < 3:
            e(f"s_waitcnt vmcnt({yv[s]})")
            wreads(2048 * (s + 1), (s + 1) & 1)
            e("s_waitcnt lgkmcnt(4)")
        else:
            e("s_waitcnt lgkmcnt(0)")
        mm4(s & 1, [vr(RING + 8 * s, 4), vr(RING + 8 * s + 4, 4)])
        if s == 0: issue_att(0)
        if s == 1: issue_att(1)
        if s == 2: issue_att(2)
    for i in range(4):
        e(f"v_lshlrev_b32 v{vS}, 16, v{vB+i}"); e(f"v_and_b32 v{vS+1}, s{sMASK}, v{vB+i}")
        for t in range(2):
            d = vXB + 8 * t + 2 * i
            e(f"v_lshlrev_b32 v{d}, 16, v{vX+4*t+i}"); e(f"v_and_b32 v{d+1}, s{sMASK}, v{vX+4*t+i}")
            e(f"v_add_f32 v{d}, v{d}, v{vS}"); e(f"v_add_f32 v{d+1}, v{d+1}, v{vS+1}")
    stamp(e, 4)
    for a in range(8):
        R = ATT[a % 3]
        e(f"s_waitcnt vmcnt({8 * min(2, 7 - a)})")
        wreads(8192 + 2048 * (a % 3), a & 1)
        for mt in range(2):
            d = vr(ND + 16 * mt, 16)
            e(f"{MFMA} {d}, {vr(R,4)}, {vr(R+8+8*mt,4)}, 0")
            e(f"{MFMA} {d}, {vr(R+4,4)}, {vr(R+12+8*mt,4)}, {d}")
        if a > 0: mm4((a - 1) & 1, [vr(OP, 4), vr(OP + 4, 4)])
        e("s_waitcnt lgkmcnt(0)")
        if a + 3 < 8: issue_att(a + 3)
        else: e("s_nop 7")
        for mt in range(2): e(f"v_add_f32 v{vS+mt}, {f2u(1e-6):#x}, v{ND+16*mt+8}")
        for mt in range(2): e(f"v_rcp_f32 v{vS+mt}, v{vS+mt}")
        e("s_nop 0")
        for mt in range(2):
            d = ND + 16 * mt
            for j in range(8): e(f"v_mul_f32 v{d+j}, v{d+j}, v{vS+mt}")
            for j in range(4): e(f"v_cvt_pk_bf16_f32 v{OP+4*mt+j}, v{d+2*j}, v{d+2*j+1}")
    e(f"v_and_b32 v{vS+2}, 31, v{vL}"); e(f"v_mul_u32_u24 v{vS+2}, 272, v{vS+2}")
    mm4(1, [vr(OP, 4), vr(OP + 4, 4)])
    stamp(e, 5)
    e(f"v_lshrrev_b32 v{vS+3}, 5, v{vL}"); e(f"v_lshl_add_u32 v{vS+2}, v{vS+3}, 4, v{vS+2}")
    e(f"s_mul_i32 s{sT0}, s{sW}, 17408"); e(f"s_add_u32 s{sT0}, s{sT0}, {K2_XB}")
    e(f"v_add_u32 v{vS+2}, s{sT0}, v{vS+2}")
    e(f"v_lshrrev_b32 v{vS+3}, 3, v{vL}"); e(f"v_mul_u32_u24 v{vS+3}, 272, v{vS+3}")
    e(f"v_and_b32 v{vS+4}, 7, v{vL}"); e(f"v_lshl_add_u32 v{vS+3}, v{vS+4}, 5, v{vS+3}")
    e(f"s_mul_i32 s{sT0}, s{sW}, {16*272}"); e(f"s_add_u32 s{sT0}, s{sT0}, {K2_XB}")
    e(f"v_add_u32 v{vS+3}, s{sT0}, v{vS+3}")
    for nt in range(2):
        for mt in range(2):
            for q in range(4):
                e(f"ds_write_b128 v{vS+2}, {vr(ACC+16*(2*nt+mt)+4*q,4)} offset:{32*272*mt + 128*nt + 32*q}")
    e("s_waitcnt lgkmcnt(0)"); e("s_barrier")
    for t in range(2):
        for p in range(4):
            for hh in range(2):
                e(f"ds_read_b128 {vr(ACC+32*t+8*p+4*hh,4)}, v{vS+3} offset:{17408*p + 8*272*t + 16*hh}")
    for t in range(2):
        for p in range(4):
            e(f"s_waitcnt lgkmcnt({14 - 8*t - 2*p})")
            for j in range(8): e(f"v_add_f32 v{vXB+8*t+j}, v{vXB+8*t+j}, v{ACC+32*t+8*p+j}")
        for j in range(4): e(f"v_cvt_pk_bf16_f32 v{OP+4*t+j}, v{vXB+8*t+2*j}, v{vXB+8*t+2*j+1}")
        e(f"buffer_store_dwordx4 {vr(OP+4*t,4)}, v{vXO}, {sr(SO,4)}, s{sXO if t == 0 else sT2} offen")
    stamp_end(e, 1, SWS, "K2_END", sW, OPT.get("sw2", 0))
    e("s_endpgm")

    e.label("K2_HELP")
    RED = 16
    e(f"v_lshrrev_b32 v{vS+2}, 4, v{vL}"); e(f"v_and_b32 v{vS+3}, 15, v{vL}"); e(f"v_lshlrev_b32 v{vS+3}, 4, v{vS+3}")
    e(f"v_lshl_add_u32 v{vS}, v{vS+2}, 17, v{vS+3}")
    e(f"v_lshl_add_u32 v{vS+1}, v{vS+2}, 2, v{vS+3}")
    e(f"v_lshlrev_b32 v{vS+4}, 7, v{vL}")
    e(f"s_mov_b32 s{sU}, s2"); e(f"s_add_u32 s{sT3}, s2, 1"); e(f"s_mov_b32 s{sCNT}, 0")
    e("s_waitcnt lgkmcnt(0)")
    srd(e, SWS, 64, 65, 0x10000000)
    e.label("K2_RED")
    e(f"s_lshr_b32 s{sT0}, s{sU}, 2"); e(f"s_lshl_b32 s{sT0}, s{sT0}, 11")
    e(f"s_and_b32 s{sT1}, s{sU}, 3"); e(f"s_lshl_b32 s{sT1}, s{sT1}, 8"); e(f"s_add_u32 s{sT0}, s{sT0}, s{sT1}")
    e(f"s_add_u32 s{sT0}, s{sT0}, {KVP_OFF}")
    for u in range(4):
        e(f"buffer_load_dwordx4 {vr(RED+8*u,4)}, v{vS}, {sr(SWS,4)}, s{sT0} offen")
        e(f"buffer_load_dwordx4 {vr(RED+8*u+4,4)}, v{vS}, {sr(SWS,4)}, s{sT0} offen offset:1024")
        if u < 3: e(f"s_add_u32 s{sT0}, s{sT0}, {4*131072}")
    e(f"s_lshl_b32 s{sT0}, s{sU}, 8"); e(f"s_add_u32 s{sT0}, s{sT0}, {KVZ_OFF}")
    e("s_waitcnt vmcnt(0)")
    for st in (16, 8):
        for j in range(st): e(f"v_add_f32 v{RED+j}, v{RED+j}, v{RED+st+j}")
    e("s_nop 1")
    for k in range(4): e(f"v_permlane32_swap_b32 v{RED+k}, v{RED+k+4}")
    for k in range(4): e(f"v_add_f32 v{RED+k}, v{RED+k}, v{RED+k+4}")
    e("s_nop 1")
    for k in range(2): e(f"v_permlane16_swap_b32 v{RED+k}, v{RED+k+2}")
    for k in range(2): e(f"v_add_f32 v{RED+k}, v{RED+k}, v{RED+k+2}")
    e(f"v_cvt_pk_bf16_f32 v{RED}, v{RED}, v{RED+1}")
    e(f"buffer_store_dword v{RED}, v{vS+1}, {sr(SWS,4)}, s{sT0} offen sc1")
    e(f"s_add_u32 s{sU}, s{sU}, 1"); e(f"s_cmp_lt_u32 s{sU}, s{sT3}"); e("s_cbranch_scc1 K2_RED")
    e("s_waitcnt vmcnt(0)")
    e(f"s_cmp_lg_u32 s{sCNT}, 0"); e("s_cbranch_scc1 K2_HDONE")
    stamp(e, 3)
    e(f"s_and_b32 s{sT0}, s2, 15"); e(f"s_lshl_b32 s{sT0}, s{sT0}, 7"); e(f"s_add_u32 s{sT0}, s{sT0}, {FLG_OFF}")
    e(f"v_mov_b32 v{vS+2}, 1"); e(f"v_mov_b32 v{vS+3}, 0")
    e("s_mov_b64 exec, 1")
    e(f"buffer_atomic_add v{vS+2}, v{vS+3}, {sr(SWS,4)}, s{sT0} offen sc1")
    e("s_mov_b64 exec, 0xffff")
    e(f"s_mov_b32 s{sT2}, {FLG_OFF}")
    e("s_barrier")
    stamp(e, 4)
    e.label("K2_POLL")
    e(f"buffer_load_dword v{RED}, v{vS+4}, {sr(SWS,4)}, s{sT2} offen sc1")
    e(f"s_add_u32 s{sCNT}, s{sCNT}, 1")
    e("s_waitcnt vmcnt(0)")
    e(f"v_cmp_ne_u32 vcc, 16, v{RED}")
    e("s_nop 4")
    e("s_cbranch_vccz K2_HDONE")
    e("s_sleep 16")
    e(f"s_cmp_lt_u32 s{sCNT}, {OPT.get('spin', 1000)}"); e("s_cbranch_scc1 K2_POLL")
    e("s_mov_b64 exec, -1")
    e(f"s_mov_b32 s{sU}, 0"); e(f"s_movk_i32 s{sT3}, 256")
    e("s_branch K2_RED")
    e.label("K2_HDONE")
    stamp(e, 2)
    e("s_barrier")
    stamp_end(e, 1, SWS, "K2_END", sW, OPT.get("sw2", 0))
    e.label("K2_END")
    e("s_endpgm")
    return e.text()

def kd(name, nv, acc, ns=102):
    return f""".amdhsa_kernel {name}
  .amdhsa_next_free_vgpr {nv}
  .amdhsa_next_free_sgpr {ns}
  .amdhsa_accum_offset {acc}
  .amdhsa_group_segment_fixed_size 0
  .amdhsa_kernarg_size 96
  .amdhsa_user_sgpr_count 2
  .amdhsa_user_sgpr_kernarg_segment_ptr 1
  .amdhsa_system_sgpr_workgroup_id_x 1
.end_amdhsa_kernel
"""

def main():
    out = "; LayerNorm + hedgehog linear attention + GELU FFN, two launches (generated by tools/gen.py)\n"
    if not OPT["k2only"]:
        out += "; @launch kernel=hh_k1_kernel grid=(256,1,1) block=(512,1,1) lds=131072\n"
    if not OPT["k1only"]:
        out += f"; @launch kernel=hh_k2_kernel grid=(256,1,1) block=(320,1,1) lds={K2_LDS}\n"
    out += '.amdgcn_target "amdgcn-amd-amdhsa--gfx950"\n.text\n'
    for name, body in (("hh_k1_kernel", gen_k1()), ("hh_k2_kernel", gen_k2())):
        out += f".globl {name}\n.p2align 8\n.type {name},@function\n{name}:\n" + body
    out += ".p2align 8\n.fill 1024, 4, 0xbf800000\n"
    out += '.section .rodata,"a"\n.p2align 6\n' + kd("hh_k1_kernel", 256, 256) + ".p2align 6\n" + kd("hh_k2_kernel", 240, 240)
    open(sys.argv[1], "w").write(out)
main()
```

```python
import sys, math, struct

OPT = dict(stamps=0, st1="sc1", k1only=0, k2only=0, pfcode=1, pfw2=3)
for a in sys.argv[2:]:
    k, v = a.split("=")
    OPT[k] = int(v) if v.lstrip("-").isdigit() else v

H_OFF, PQ_OFF, KVP_OFF, KVZ_OFF, FLG_OFF = 0, 0x800000, 0xC00000, 0xE00000, 0xE10000
STAMP_OFF = 200 << 20
NSTAMP = 8
LOOPST = OPT.get('loopst', -1)

def f2u(x): return struct.unpack("<I", struct.pack("<f", x))[0]

class Asm:
    def __init__(self): self.L = []
    def __call__(self, s):
        for t in s.split(";;"):
            t = t.strip()
            self.L.append(t if t.endswith(":") else "    " + t)
    def label(self, s): self.L.append(s + ":")
    def ext(self, lst):
        for s in lst: self(s)
    def text(self): return "\n".join(self.L) + "\n"

class Lst(list):
    def __call__(self, s): self.append(s)

def vr(b, n=1): return f"v{b}" if n == 1 else f"v[{b}:{b+n-1}]"
def ar(b, n=1): return f"a{b}" if n == 1 else f"a[{b}:{b+n-1}]"
def sr(b, n=1): return f"s{b}" if n == 1 else f"s[{b}:{b+n-1}]"
MFMA = "v_mfma_f32_32x32x16_bf16"

def cost(ins):
    c = 0
    for t in ins.split(";;"):
        op = t.split()[0]
        if op.startswith(("v_exp", "v_rcp", "v_sqrt", "v_log", "v_mfma")): c += 8
        elif op == "s_nop": c += 2 * (int(t.split()[1]) + 1)
        elif op.startswith("s_"): c += 2
        elif op.startswith("buffer_"): c += 8
        else: c += 4.5
    return c

def interleave(groups, fill, first=0, last=None):
    last = len(groups) - 1 if last is None else last
    tot = sum(cost(i) for i in fill); n = last - first + 1
    out = []; k = 0; acc = 0.0
    for gi, g in enumerate(groups):
        out += g
        if first <= gi <= last:
            tgt = tot * (gi - first + 1) / n
            while k < len(fill) and (acc + cost(fill[k]) / 2 <= tgt or gi == last):
                out.append(fill[k]); acc += cost(fill[k]); k += 1
    assert k == len(fill)
    return out

def merge(a, b, frac=1.0):
    out = []; n = max(1, int(len(a) * frac)); k = 0
    for i, x in enumerate(a):
        while k < len(b) and k * n <= i * len(b) and i < n:
            out.append(b[k]); k += 1
        out.append(x)
    out += b[k:]
    return out

def srd(e, d, lo, hi, size):
    e(f"s_mov_b32 s{d}, s{lo}"); e(f"s_mov_b32 s{d+1}, s{hi}")
    e(f"s_mov_b32 s{d+2}, {size:#x}"); e(f"s_mov_b32 s{d+3}, 0x00020000")

def stamp(e, idx, base=80):
    if OPT["stamps"]:
        e(f"s_memtime s[{base+2*idx}:{base+2*idx+1}]")

def stamp_begin(e, base=80):
    if OPT["stamps"]:
        e(f"s_memrealtime s[{base}:{base+1}]")
        e(f"s_memtime s[{base-2}:{base-1}]")
        for i in range(2, NSTAMP):
            e(f"s_mov_b64 s[{base+2*i}:{base+2*i+1}], 0")

def stamp_end(e, kidx, wssrd, lbl, wave_sgpr, wave_sel, base=80):
    if not OPT["stamps"]: return
    e(f"s_memtime s[{base+2*(NSTAMP-2)}:{base+2*(NSTAMP-2)+1}]")
    e("s_waitcnt vmcnt(0)")
    e(f"s_memrealtime s[{base+2}:{base+3}]")
    e(f"s_memtime s[{base+2*(NSTAMP-1)}:{base+2*(NSTAMP-1)+1}]")
    e("s_waitcnt lgkmcnt(0)")
    for i in range(2, NSTAMP):
        e(f"s_sub_u32 s{base+2*i}, s{base+2*i}, s{base-2}")
        e(f"s_mov_b32 s{base+2*i+1}, 0")
    e(f"s_lshl_b32 s{base-2}, s2, 3"); e(f"s_add_u32 s{base-2}, s{base-2}, s{wave_sgpr}")
    e(f"s_mul_i32 s{base-2}, s{base-2}, {8*NSTAMP}")
    e(f"s_add_u32 s{base-2}, s{base-2}, {STAMP_OFF + kidx*256*8*8*NSTAMP}")
    e("s_mov_b64 exec, 1")
    e("v_mov_b32 v1, 0")
    for i in range(NSTAMP // 2):
        for j in range(4):
            e(f"v_mov_b32 v{4+j}, s{base+4*i+j}")
        e(f"buffer_store_dwordx4 v[4:7], v1, {sr(wssrd,4)}, s{base-2} offen offset:{16*i}")
        e("s_nop 1")
    e("s_waitcnt vmcnt(0)")

def gen_k1():
    e = Asm()
    ST1 = OPT["st1"].replace("_", " ") if OPT["st1"] != "none" else ""
    M16 = "v_mfma_f32_16x16x32_bf16"
    SX, SW, SWS, SAUX = 8, 12, 16, 20
    sW, sRG, sP, sC, sRB, sTYPE = 24, 25, 26, 27, 28, 29
    sPITCH, sRT, sIDX, sROT = 30, 31, 32, 33
    sONES, sLO, sHI, sMASK = 34, 35, 36, 37
    sT0, sT1, sT2, sT3, sT4 = 38, 39, 40, 41, 42
    sXB = 43
    sCOL = 44
    sSLOT, sIT, sOUT, sAUXO, sP16 = 48, 49, 50, 51, 52
    sDA, sDB, sMA, sROWO, sW4K, sST = 53, 54, 55, 56, 57, 61
    sLT16, sCL2E = 58, 60
    sJG, sJL, sWB = 76, 77, 100
    vDUM, vL, vL16, vDMA, vTR = 0, 1, 2, 3, 4
    vS, vCSW, vCSR, SELC, CS, AUG, vC0, vC1 = 8, 14, 15, 16, 20, 24, 30, 31
    TMP, PK, ACC, EACC, WB, vAUX, XF = 32, 48, 64, 80, 96, 116, 128
    NWB = 5
    YB, ZB = 0x10000, 0x20000
    STAT, CSX, RVO, PHS = ZB, ZB + 2048, ZB + 4096, ZB + 8192
    vFR, vXD, RS, vQ, vAL = TMP, TMP + 8, TMP + 12, TMP + 16, TMP + 18
    e("s_cmp_ge_u32 s2, 256")
    e("s_cbranch_scc1 K1_END")
    stamp_begin(e)
    e("s_load_dwordx4 s[64:67], s[0:1], 0")
    e("s_load_dwordx2 s[68:69], s[0:1], 16")
    e("s_load_dwordx4 s[72:75], s[0:1], 40")
    e("s_load_dwordx2 s[70:71], s[0:1], 88")
    e("s_load_dwordx2 s[96:97], s[0:1], 56")
    e("s_load_dwordx2 s[98:99], s[0:1], 24")
    e(f"v_lshrrev_b32 v{vS}, 6, v0")
    e(f"v_and_b32 v{vL}, 63, v0")
    e(f"v_readfirstlane_b32 s{sW}, v{vS}")
    e(f"s_lshr_b32 s{sIDX}, s2, 3")
    if OPT["pfcode"]:
        e(f"s_cmp_lg_u32 s{sW}, 7"); e("s_cbranch_scc1 K1_NOPF")
        e("s_getpc_b64 s[62:63]")
        e("s_and_b32 s62, s62, 0xffffff00")
        e(f"s_mul_i32 s{sT1}, s{sIDX}, 640")
        e(f"v_lshl_add_u32 v{vS+3}, v{vL}, 7, s{sT1}")
        e("s_mov_b64 exec, 0x1f")
        e(f"global_load_dword v{vDUM}, v{vS+3}, s[62:63]")
        e("s_mov_b64 exec, -1")
        e.label("K1_NOPF")
    e(f"s_and_b32 s{sT0}, s2, 7")
    e(f"s_lshr_b32 s{sRB}, s{sT0}, 1"); e(f"s_lshl_b32 s{sRB}, s{sRB}, 2")
    e(f"s_and_b32 s{sT2}, s{sIDX}, 3"); e(f"s_add_u32 s{sRB}, s{sRB}, s{sT2}")
    e(f"s_lshr_b32 s{sT1}, s{sIDX}, 2")
    e(f"s_add_u32 s{sROT}, s{sT1}, s{sT2}"); e(f"s_and_b32 s{sROT}, s{sROT}, {OPT.get('rotm', 3)}")
    e(f"s_and_b32 s{sTYPE}, s{sT1}, 1")
    e(f"s_lshr_b32 s{sT1}, s{sT1}, 1")
    e(f"s_and_b32 s{sC}, s{sT0}, 1"); e(f"s_lshl_b32 s{sC}, s{sC}, 2"); e(f"s_add_u32 s{sC}, s{sC}, s{sT1}")
    e(f"s_and_b32 s{sRG}, s{sW}, 3"); e(f"s_lshr_b32 s{sP}, s{sW}, 2")
    e(f"s_lshl_b32 s{sRT}, s{sRB}, 2"); e(f"s_add_u32 s{sRT}, s{sRT}, s{sRG}")
    e(f"v_lshrrev_b32 v{vS}, 4, v{vL}"); e(f"v_and_b32 v{vS+1}, 15, v{vL}")
    e(f"v_xor_b32 v{vS+2}, v{vS}, v{vS+1}"); e(f"v_lshlrev_b32 v{vS+2}, 4, v{vS+2}")
    e(f"v_lshl_add_u32 v{vXD}, v{vS}, 10, v{vS+2}")
    for i in range(1, 4): e(f"v_xor_b32 v{vXD+i}, {4096*i + 64*i}, v{vXD}")
    e(f"s_lshl_b32 s{sXB}, s{sRB}, 17"); e(f"s_lshl_b32 s{sT0}, s{sW}, 14"); e(f"s_add_u32 s{sXB}, s{sXB}, s{sT0}")
    e(f"s_lshl_b32 s{sW4K}, s{sW}, 12")
    e(f"v_and_b32 v{vS+3}, 31, v{vL}")
    e(f"v_lshrrev_b32 v{vS+4}, 5, v{vL}")
    e(f"s_cmp_eq_u32 s{sTYPE}, 0")
    e("s_cbranch_scc1 K1_SETQ")
    e(f"s_movk_i32 s{sPITCH}, 3584")
    e(f"s_mul_i32 s{sAUXO}, s{sC}, 448")
    e(f"s_and_b32 s{sT1}, s{sC}, 1")
    e(f"s_lshl_b32 s{sT2}, s{sT1}, 6"); e(f"s_add_u32 s{sCOL}, s{sAUXO}, s{sT2}")
    e(f"s_add_u32 s{sCOL+1}, s{sCOL}, 128"); e(f"s_add_u32 s{sCOL+2}, s{sCOL}, 256")
    e(f"s_lshl_b32 s{sT2}, s{sT1}, 9"); e(f"s_add_u32 s{sCOL+3}, s{sCOL}, 384"); e(f"s_sub_u32 s{sCOL+3}, s{sCOL+3}, s{sT2}")
    e(f"s_lshl_b32 s{sT2}, s{sP}, 6")
    e(f"v_lshl_add_u32 v{vAL}, v{vS+3}, 1, s{sT2}")
    e(f"s_mov_b32 s{SW+2}, {512*3584}"); e(f"s_movk_i32 s{SAUX+2}, 3584")
    e("s_branch K1_SETD")
    e.label("K1_SETQ")
    e(f"s_movk_i32 s{sPITCH}, 3072")
    e(f"s_lshl_b32 s{sCOL+1}, s{sC}, 7"); e(f"s_add_u32 s{sCOL}, s{sCOL+1}, 1024"); e(f"s_add_u32 s{sCOL+2}, s{sCOL+1}, 2048")
    e(f"s_mov_b32 s{sCOL+3}, s{sCOL+2}")
    e(f"v_lshrrev_b32 v{vS+5}, 4, v{vS+3}"); e(f"v_lshlrev_b32 v{vS+5}, 9, v{vS+5}")
    e(f"v_lshl_add_u32 v{vS+5}, v{vS+4}, 7, v{vS+5}"); e(f"v_lshl_add_u32 v{vS+5}, v{vS+1}, 1, v{vS+5}")
    e(f"s_lshl_b32 s{sT1}, s{sP}, 10"); e(f"v_add_u32 v{vAL}, s{sT1}, v{vS+5}")
    e(f"s_lshl_b32 s{sAUXO}, s{sC}, 11")
    e(f"s_mov_b32 s{SW+2}, {512*3072}"); e(f"s_movk_i32 s{SAUX+2}, {32*512}")
    e.label("K1_SETD")
    e(f"s_mov_b32 s{SW+3}, 0x00020000"); e(f"s_mov_b32 s{SAUX+3}, 0x00020000")
    e(f"v_lshrrev_b32 v{vDMA}, 2, v{vL}"); e(f"v_mul_lo_u32 v{vDMA}, v{vDMA}, s{sPITCH}")
    e(f"v_and_b32 v{vS+5}, 3, v{vL}"); e(f"v_lshl_add_u32 v{vDMA}, v{vS+5}, 4, v{vDMA}")
    e(f"s_lshl_b32 s{sP16}, s{sPITCH}, 4")
    e(f"s_mul_i32 s{sWB}, s{sP16}, s{sW}"); e(f"s_add_u32 s{sWB}, s{sWB}, s{sCOL}")
    e(f"s_cmp_eq_u32 s{sTYPE}, 0")
    e("s_waitcnt lgkmcnt(0)")
    e(f"s_cselect_b64 {sr(SW,2)}, s[66:67], s[72:73]"); e(f"s_cselect_b64 {sr(SAUX,2)}, s[68:69], s[74:75]")
    srd(e, SX, 64, 65, 2048 * 1024)
    XBUF = (ZB, YB, YB + 0x8000, ZB)
    def sset(j):
        l = Lst()
        l(f"s_add_u32 s{sT0}, s{sROT}, {j};;s_and_b32 s{sT0}, s{sT0}, 3;;s_lshl_b32 s{sT1}, s{sT0}, 8;;s_add_u32 s{sT1}, s{sT1}, s{sXB};;"
          f"s_lshl_b32 s{sT0}, s{sT0}, 3;;s_mul_i32 s{sT0}, s{sT0}, s{sP16};;s_add_u32 s{sT0}, s{sT0}, s{sWB};;s_add_u32 s{sT2}, s{sT0}, 64;;s_lshr_b32 s{sT3}, s{sW4K}, 2")
        for i in range(4):
            l(f"s_add_u32 m0, s{sW4K}, {XBUF[j] + 1024*i};;s_nop 0;;buffer_load_dwordx4 v{vXD+i}, {sr(SX,4)}, s{sT1} offen lds")
        wo = 0x8000 * (j >> 1) + 8192 * (j & 1)
        l(f"s_add_u32 m0, s{sT3}, {wo};;s_nop 0;;buffer_load_dwordx4 v{vDMA}, {sr(SW,4)}, s{sT0} offen lds")
        l(f"s_add_u32 m0, s{sT3}, {wo + 0x4000};;s_nop 0;;buffer_load_dwordx4 v{vDMA}, {sr(SW,4)}, s{sT2} offen lds")
        return l
    if OPT.get("x_probe"):
        srd(e, SWS, 70, 71, 0x10000000)
        stamp(e, 2)
        ss = sset(0)
        if OPT["x_probe"] == 2: ss = ss[:5]
        if OPT["x_probe"] == 3: ss = ss[:2]
        e.ext(ss)
        stamp(e, 3)
        e(f"s_waitcnt vmcnt({len(ss)-2})"); stamp(e, 4)
        e("s_waitcnt vmcnt(0)"); stamp(e, 5)
        e.ext(sset(1))
        e("s_branch K1_FIN")
    e.ext(sset(0))
    e(f"s_lshl_b32 s{sT0}, s{sROT}, 2"); e(f"s_add_u32 s{sT0}, s{sT0}, s{sW}"); e(f"s_and_b32 s{sT1}, s{sT0}, 15"); e(f"s_lshl_b32 s{sT1}, s{sT1}, 1")
    e(f"s_mul_i32 s{sROWO}, s{sT1}, s{sP16}")
    e(f"s_add_u32 s{sT0}, s{sT0}, 8"); e(f"s_and_b32 s{sT1}, s{sT0}, 15"); e(f"s_lshl_b32 s{sT1}, s{sT1}, 1")
    e(f"s_mul_i32 s{sJG}, s{sT1}, s{sP16}"); e(f"s_sub_u32 s{sJG}, s{sJG}, s{sROWO}"); e(f"s_sub_u32 s{sJG}, s{sJG}, s{sP16}")
    e(f"s_lshl_b32 s{sT4}, s{sW}, 11")
    sLB0 = sT4
    def dma8():
        l = []
        for i in range(4):
            jg, jl = (f"s{sJG}", "0x7c00") if i == 1 else (f"s{sP16}", "1024")
            l += [f"s_mov_b32 m0, s{sMA};;s_add_u32 s{sDB}, s{sDA}, 64;;buffer_load_dwordx4 v{vDMA}, {sr(SW,4)}, s{sDA} offen lds",
                  f"s_add_u32 m0, s{sMA}, 0x4000;;s_add_u32 s{sDA}, s{sDA}, {jg};;buffer_load_dwordx4 v{vDMA}, {sr(SW,4)}, s{sDB} offen lds;;s_add_u32 s{sMA}, s{sMA}, {jl}"]
        return l
    e(f"s_mov_b32 s{sONES}, 0x3f803f80"); e(f"s_mov_b32 s{sLO}, 0x00003f80"); e(f"s_mov_b32 s{sHI}, 0x3f800000")
    e(f"s_mov_b32 s{sMASK}, 0xffff0000")
    e(f"v_lshlrev_b32 v{vL16}, 4, v{vL}")
    e(f"v_lshlrev_b32 v{vS+2}, 9, v{vS+4}")
    e(f"v_bfe_u32 v{vS}, v{vL}, 2, 2"); e(f"v_lshl_add_u32 v{vS+2}, v{vS}, 6, v{vS+2}")
    e(f"v_bfe_u32 v{vDUM+0 if False else vCSW}, v{vL}, 4, 1"); e(f"v_lshl_add_u32 v{vS+2}, v{vCSW}, 5, v{vS+2}")
    e(f"v_lshl_add_u32 v{vS+2}, v{vS+5}, 3, v{vS+2}")
    e(f"s_xor_b32 s{sT3}, s{sRG}, s{sP}"); e(f"s_lshl_b32 s{sT1}, s{sP}, 14")
    for k in range(4):
        e(f"s_xor_b32 s{sT0}, s{sT3}, {k}"); e(f"s_lshl_b32 s{sT0}, s{sT0}, 10"); e(f"s_add_u32 s{sT0}, s{sT0}, s{sT1}")
        e(f"v_add_u32 v{vTR+k}, s{sT0}, v{vS+2}")
    e(f"v_and_b32 v{vS}, 1, v{vS}"); e(f"v_cmp_eq_u32 vcc, v{vS}, v{vCSW}"); e(f"v_mov_b32 v{vS}, s{sONES}")
    e(f"v_cmp_gt_u32 {sr(sLT16,2)}, 16, v{vS+3}")
    for j in range(4): e(f"v_cndmask_b32 v{SELC+j}, 0, v{vS}, vcc")
    e(f"v_xor_b32 v{vS}, v{vS+4}, v{vS+1}"); e(f"v_lshlrev_b32 v{vS}, 4, v{vS}")
    e(f"v_lshl_add_u32 v{vS}, v{vS+3}, 8, v{vS}")
    e(f"s_lshl_b32 s{sT0}, s{sT3}, 5"); e(f"v_xor_b32 v{vS}, s{sT0}, v{vS}")
    e(f"s_lshl_b32 s{sT0}, s{sRG}, 13"); e(f"s_add_u32 s{sT0}, s{sT0}, {YB + 0x8000}"); e(f"v_add_u32 v{vFR}, s{sT0}, v{vS}")
    for s in range(1, 8): e(f"v_xor_b32 v{vFR+s}, {32*s}, v{vFR}")
    e(f"s_lshl_b32 s{sT0}, s{sP}, 9"); e(f"s_add_u32 s{sT0}, s{sT0}, {CSX}")
    e(f"v_lshl_add_u32 v{vCSR}, v{vS+3}, 4, s{sT0}")
    e(f"s_lshl_b32 s{sT0}, s{sRG}, 2"); e(f"v_add_u32 v{vCSW}, s{sT0}, v{vCSR}")
    e(f"v_mov_b32 v{vQ}, 0"); e(f"v_mov_b32 v{vQ+1}, 0")
    e(f"v_mov_b32 v{AUG+4}, 0"); e(f"v_mov_b32 v{AUG+5}, 0")
    def auxl(lbl):
        t = f"s_cmp_eq_u32 s{sTYPE}, 0;;s_cbranch_scc1 {lbl}Q"
        for i in range(4): t += f";;buffer_load_ushort v{vAUX+i}, v{vAL}, {sr(SAUX,4)}, s{sCOL+i} offen"
        t += f";;s_branch {lbl}D;;{lbl}Q:"
        for j in range(8):
            d = (j & 3) + 8 * (j >> 2)
            t += f";;buffer_load_ushort v{vAUX+j}, v{vAL}, {sr(SAUX,4)}, s{sAUXO} offen offset:{32*d}"
        t += f";;{lbl}D:"
        return t
    touches = []
    if OPT.get('touchat', 2) != 2:
        vT1, vT2 = TMP + 20, TMP + 21
        e(f"s_and_b32 s{sT0}, s{sRB}, 3"); e(f"s_lshl_b32 s{sT0}, s{sT0}, 3"); e(f"s_add_u32 s{sT0}, s{sT0}, s{sW}"); e(f"s_lshl_b32 s{sT0}, s{sT0}, 4")
        e(f"v_add_u32 v{vS}, s{sT0}, v{vL}")
        e(f"s_lshl_b32 s{sT0}, s{sRB}, 3"); e(f"s_add_u32 s{sT0}, s{sT0}, s{sW}"); e(f"s_lshl_b32 s{sT0}, s{sT0}, 2")
        e(f"v_add_u32 v{vS+2}, s{sT0}, v{vS+5}")
        e(f"v_cmp_gt_u32 vcc, 16, v{vL}"); e(f"v_cmp_gt_u32 s[62:63], 20, v{vL}")
        e(f"v_mov_b32 v{vS+1}, s{sCOL+3}"); e(f"v_mov_b32 v{vS+4}, s{sCOL+2}")
        e(f"v_cndmask_b32 v{vS}, v{vS+2}, v{vS}, vcc"); e(f"v_mul_lo_u32 v{vS}, v{vS}, s{sPITCH}")
        e(f"v_cndmask_b32 v{vS+1}, v{vS+1}, v{vS+4}, s[62:63]"); e(f"v_mov_b32 v{vS+4}, s{sCOL+1}")
        e(f"v_cndmask_b32 v{vS+1}, v{vS+1}, v{vS+4}, vcc"); e(f"v_add_u32 v{vT1}, v{vS}, v{vS+1}")
        e(f"s_lshl_b32 s{sT1}, s{sW}, 8"); e(f"s_add_u32 s{sT1}, s{sT1}, s{sAUXO}")
        e(f"v_lshl_add_u32 v{vT2}, v{vL}, 7, s{sT1}")
        touches = [f"s_mov_b64 exec, 0xffffff;;buffer_load_dword v{vDUM}, v{vT1}, {sr(SW,4)}, 0 offen;;s_mov_b64 exec, 3;;"
                   f"buffer_load_dword v{vDUM}, v{vT2}, {sr(SAUX,4)}, 0 offen;;s_mov_b64 exec, -1"]
    e.ext(sset(1))
    srd(e, SWS, 70, 71, 0x10000000)
    if LOOPST < 0: stamp(e, 2)

    def wrd(s):
        b = WB + 4 * (s % NWB)
        return [f"ds_read_b64_tr_b16 {vr(b,2)}, v{vTR+(s&3)} offset:{1024*(s&12) + 0x8000*(s>>4)}",
                f"ds_read_b64_tr_b16 {vr(b+2,2)}, v{vTR+(s&3)} offset:{1024*(s&12) + 0x8000*(s>>4) + 256}"]
    def csm(s):
        return f"{M16} {vr(CS,4)}, {vr(SELC,4)}, {vr(WB+4*(s%NWB),4)}, {'0' if s == 0 else vr(CS,4)}"
    XO = (0x8000, 0, 0x8000, 0x8000)
    def rd(s):
        return [f"ds_read_b128 {vr(XF+4*s,4)}, v{vFR+(s&7)} offset:{XO[s>>3]}"] + wrd(s)
    TA = OPT.get('touchat', 2)
    VM = {0: {0: 6, 1: 8, 2: 12, 3: 8, 4: 63}, 1: {0: 6, 1: 6, 2: 12, 3: 10, 4: 63}, 2: {0: 6, 1: 6, 2: 10, 3: 8, 4: 63}}[TA]
    def sync(k):
        l = [f"s_waitcnt vmcnt({VM[k]}) lgkmcnt(0)", "s_barrier"]
        R0S = OPT.get("r0st", -1)
        if R0S >= 0 and k in (R0S, R0S + 1):
            b = 84 + 4 * (k - R0S)
            l = [f"s_memtime s[{b}:{b+1}]"] + l + [f"s_memtime s[{b+2}:{b+3}]", "s_waitcnt lgkmcnt(0)"]
        if k == 1: l += [f"v_subrev_u32 v{vFR+t}, 0x8000, v{vFR+t}" for t in range(8)]
        if k == 3: l += [f"v_add_u32 v{vFR+t}, 0x8000, v{vFR+t}" for t in range(8)]
        return l
    G = []
    g0 = sync(0)
    if OPT["stamps"] and LOOPST < 0: g0.append("s_memtime s[88:89]")
    for s_ in range(4): g0 += rd(s_)
    G.append(g0)
    for s_ in range(32):
        g = []
        if s_ % 8 == 4:
            g += sync(s_ // 8 + 1)
            if OPT["stamps"] and LOOPST < 0 and s_ == 20: g.append("s_memtime s[90:91]")
        if s_ + 4 < 32: g += rd(s_ + 4)
        if s_ % 8 < 4: g.append(f"s_waitcnt lgkmcnt(12)")
        d = EACC if s_ == 31 else ACC
        g.append(f"{MFMA} {vr(d,16)}, {vr(WB+4*(s_%NWB),4)}, {vr(XF+4*s_,4)}, {'0' if s_ == 0 else vr(ACC,16)}")
        if s_ % 4 == 0: g.append(csm(s_))
        if s_ % 2 == 0:
            g.append(f"{M16} {vr(RS,4)}, {vr(SELC,4)}, {vr(XF+4*s_,4)}, {'0' if s_ == 0 else vr(RS,4)}")
            for r in range(4): g.append(f"v_dot2c_f32_bf16 v{vQ+(r&1)}, v{XF+4*s_+r}, v{XF+4*s_+r}")
        G.append(g)
    d8 = dma8()
    e.ext(interleave(G[0:5], sset(2) + (touches if TA == 0 else []), 0, 4))
    e.ext(interleave(G[5:13], sset(3) + (touches if TA == 1 else []) + [auxl("K1_AUX")], 0, 6))
    e(f"s_add_u32 s{sDA}, s{sROWO}, s{sCOL+1}"); e(f"s_add_u32 s{sMA}, s{sLB0}, {YB}")
    e.ext(interleave(G[13:21], d8[:4], 0, 4))
    e.ext(interleave(G[21:], d8[4:], 0, 4))
    e("s_nop 2")
    e(f"v_add_f32 v{vQ}, v{vQ}, v{vQ+1}")
    e(f"v_and_b32 v{vS+3}, 31, v{vL}")
    e(f"v_mov_b32 v{vQ+1}, v{vQ}")
    e(f"s_lshl_b32 s{sT0}, s{sW}, 8"); e(f"s_add_u32 s{sT0}, s{sT0}, {STAT}")
    e(f"v_lshl_add_u32 v{vS+2}, v{vS+3}, 3, s{sT0}")
    e(f"v_permlane32_swap_b32 v{vQ}, v{vQ+1}")
    e(f"v_add_f32 v{RS+1}, v{vQ}, v{vQ+1}")
    e(f"ds_write_b32 v{vCSW}, v{CS}")
    e(f"ds_write_b64 v{vS+2}, {vr(RS,2)}")
    e(f"v_xor_b32 v{vS+2}, 1024, v{vS+2}")
    for k in range(4): e(f"v_xor_b32 v{vTR+k}, 0x10000, v{vTR+k}")
    e(f"v_xor_b32 v{vCSW}, 1024, v{vCSW}")
    e(f"s_cmp_lg_u32 s2, 0"); e("s_cbranch_scc1 K1_NZ"); e(f"s_cmp_lg_u32 s{sW}, 7"); e("s_cbranch_scc1 K1_NZ")
    for j in range(4): e(f"v_mov_b32 v{PK+4+j}, 0")
    e(f"s_mov_b32 s{sT0}, {FLG_OFF}")
    e(f"buffer_store_dwordx4 {vr(PK+4,4)}, v{vL16}, {sr(SWS,4)}, s{sT0} offen")
    e(f"buffer_store_dwordx4 {vr(PK+4,4)}, v{vL16}, {sr(SWS,4)}, s{sT0} offen offset:1024")
    e.label("K1_NZ")
    e("s_waitcnt vmcnt(0) lgkmcnt(0)")
    e("s_barrier")
    if LOOPST < 0: stamp(e, 3)
    e(f"ds_read_b64 {vr(vS,2)}, v{vS+2}")
    e(f"v_cmp_gt_u32 vcc, 32, v{vL}")
    e(f"s_mov_b32 s{sIT}, 1")
    e("s_waitcnt lgkmcnt(0)")
    a, b = vS, vS + 1
    e(f"v_add_f32 v{a}, v{a}, v{RS}"); e(f"v_add_f32 v{b}, v{b}, v{RS+1}")
    e(f"v_mul_f32 v{a}, {f2u(-1.0/512):#x}, v{a}"); e(f"v_mul_f32 v{b}, {f2u(1.0/512):#x}, v{b}")
    e(f"v_fma_f32 v{b}, -v{a}, v{a}, v{b}"); e(f"v_cvt_pk_bf16_f32 v{AUG+2}, v{a}, v{a}")
    e(f"v_max_f32 v{b}, 0, v{b}")
    e(f"v_cvt_pk_bf16_f32 v{b}, v{b}, v{b}"); e(f"v_and_b32 v{b}, s{sMASK}, v{b}")
    e(f"v_add_f32 v{b}, {f2u(1e-5):#x}, v{b}"); e(f"v_cvt_pk_bf16_f32 v{b}, v{b}, v{b}")
    e(f"v_and_b32 v{b}, s{sMASK}, v{b}"); e(f"v_sqrt_f32 v{b}, v{b}")
    e(f"v_cndmask_b32 v{AUG+2}, 0, v{AUG+2}, vcc")
    e(f"v_cvt_pk_bf16_f32 v{AUG+3}, v{a}, v{b}")
    e(f"v_and_b32 v{b}, s{sMASK}, v{AUG+3}")
    e(f"v_rcp_f32 v{a}, v{b}")
    e(f"v_cndmask_b32 v{AUG+3}, 0, v{AUG+3}, vcc")

    lcnt = [0]
    def lstamp(idx, it=None):
        if LOOPST < 0 or not OPT["stamps"]: return
        if it is not None:
            if it == LOOPST: stamp(e, idx); e("s_waitcnt lgkmcnt(0)")
            return
        lcnt[0] += 1
        e(f"s_cmp_lg_u32 s{sIT}, {LOOPST}"); e(f"s_cbranch_scc1 K1_LS{lcnt[0]}")
        stamp(e, idx)
        e("s_waitcnt lgkmcnt(0)")
        e.label(f"K1_LS{lcnt[0]}")

    def touch2(wreg, lbl):
        e(f"s_cmp_ge_u32 s{wreg}, 2"); e(f"s_cbranch_scc1 {lbl}")
        e(f"s_cmp_eq_u32 s{wreg}, 0")
        e(f"s_cselect_b64 {sr(SX,2)}, s[96:97], s[98:99]")
        e(f"s_mov_b32 s{sT0}, {1792*1024}"); e(f"s_cselect_b32 s{SX+2}, s{sT0}, {512*1024}")
        e(f"s_movk_i32 s{sT0}, 7168"); e(f"s_cselect_b32 s{sT0}, s{sT0}, 2048"); e(f"s_cselect_b32 s{sT1}, 56, 16")
        e(f"s_mul_i32 s{sT0}, s{sT0}, s2")
        e(f"v_lshlrev_b32 v{vDUM}, 7, v{vL}")
        e(f"s_bfm_b64 exec, s{sT1}, 0")
        e(f"buffer_load_dword v{vDUM}, v{vDUM}, {sr(SX,4)}, s{sT0} offen")
        e("s_mov_b64 exec, -1")
        e.label(lbl)
    def mgroups(swap=False):
        PF = NWB - 1
        G = []
        g0 = [f"ds_read_b128 {vr(PK,4)}, v{vCSR}"]
        for s in range(PF): g0 += wrd(s)
        G.append(g0)
        for s in range(32):
            g = []
            if s + PF < 32: g += wrd(s + PF)
            g.append(f"s_waitcnt lgkmcnt({2 * min(PF, 31 - s)})")
            w, x = vr(WB + 4 * (s % NWB), 4), vr(XF + 4 * s, 4)
            a, b = (x, w) if swap else (w, x)
            d = EACC if s == 31 else ACC
            g.append(f"{MFMA} {vr(d,16)}, {a}, {b}, {'0' if s == 0 else vr(ACC,16)}")
            if s % 4 == 0: g.append(csm(s))
            G.append(g)
        return G
    def aug(bias=None, swap=False):
        l = Lst()
        c, t = PK, PK + 1
        l(f"v_add_f32 v{PK}, v{PK}, v{PK+1}"); l(f"v_add_f32 v{PK+2}, v{PK+2}, v{PK+3}"); l(f"v_add_f32 v{c}, v{PK}, v{PK+2}")
        l(f"v_cvt_pk_bf16_f32 v{t}, v{c}, v{c}"); l(f"v_and_b32 v{t}, s{sMASK}, v{t}"); l(f"v_sub_f32 v{t}, v{c}, v{t}")
        l(f"v_cvt_pk_bf16_f32 v{AUG}, v{c}, v{t}"); l(f"v_and_b32 v{c}, s{sMASK}, v{AUG}"); l(f"v_sub_f32 v{t}, v{t}, v{c}")
        l(f"v_cvt_pk_bf16_f32 v{AUG+1}, v{t}, {'v%d' % bias if bias is not None else '0'}")
        a, b = (vr(AUG+2,4), vr(AUG,4)) if swap else (vr(AUG,4), vr(AUG+2,4))
        l(f"s_nop 1;;{MFMA} {vr(EACC,16)}, {a}, {b}, {vr(EACC,16)}")
        for i in range(6): l("s_nop 1")
        return l
    def round_end(vm):
        e(f"ds_write_b32 v{vCSW}, v{CS}")
        for k in range(4): e(f"v_xor_b32 v{vTR+k}, 0x10000, v{vTR+k}")
        e(f"v_xor_b32 v{vCSW}, 1024, v{vCSW}"); e(f"v_xor_b32 v{vCSR}, 1024, v{vCSR}")
        e(f"s_waitcnt vmcnt({vm}) lgkmcnt(0)"); e("s_barrier")

    e(f"s_cmp_eq_u32 s{sTYPE}, 0")
    e("s_cbranch_scc1 K1_QKV")
    vSS = vAUX + 8
    k0 = -2.0 * math.sqrt(2.0 / math.pi) * math.log2(math.e)
    e(f"v_mov_b32 v{vSS}, v{vS+1}")
    e(f"v_mul_f32 v{vC1}, {f2u(k0):#x}, v{vS}")
    e(f"v_mul_f32 v{vC0}, v{vS}, v{vS}"); e(f"v_mul_f32 v{vC0}, v{vC0}, v{vC1}"); e(f"v_mul_f32 v{vC0}, {f2u(0.044715):#x}, v{vC0}")
    for i in range(4): e(f"v_lshlrev_b32 v{vAUX+i}, 16, v{vAUX+i}")
    e(f"s_mul_i32 s{sOUT}, s{sRT}, 114688"); e(f"s_lshl_b32 s{sT0}, s{sP}, 11"); e(f"s_add_u32 s{sOUT}, s{sOUT}, s{sT0}")
    e(f"s_mov_b32 s{sSLOT}, 0")
    e(f"s_and_b32 s{sT3}, s{sC}, 1"); e(f"s_xor_b32 s{sT3}, s{sT3}, s{sP}"); e(f"s_sub_u32 s{sT3}, 4, s{sT3}")
    def gelu():
        l = aug(bias=vAUX)
        for half in range(2):
            rng = range(8 * half, 8 * half + 8)
            for i in rng: l(f"v_mul_f32 v{TMP+i}, v{EACC+i}, v{EACC+i}")
            for i in rng: l(f"v_fma_f32 v{TMP+i}, v{TMP+i}, v{vC0}, v{vC1}")
            for i in rng: l(f"v_mul_f32 v{TMP+i}, v{EACC+i}, v{TMP+i}")
            for i in rng: l(f"v_exp_f32 v{TMP+i}, v{TMP+i}")
            for i in rng: l(f"v_fma_f32 v{TMP+i}, v{TMP+i}, v{vSS}, v{vSS}")
            for i in rng: l(f"v_rcp_f32 v{TMP+i}, v{TMP+i}")
            for i in rng: l(f"v_mul_f32 v{TMP+i}, v{EACC+i}, v{TMP+i}")
            for i in range(4): l(f"v_cvt_pk_bf16_f32 v{PK+8+4*half+i}, v{TMP+8*half+2*i}, v{TMP+8*half+2*i+1}")
            l(f"buffer_store_dwordx4 {vr(PK+8+4*half,4)}, v{vL16}, {sr(SWS,4)}, s{sST} offen offset:{1024*half} {ST1}")
        return l
    e.label("K1_FLOOP")
    lstamp(2)
    e(f"s_lshl_b32 s{sST}, s{sCOL}, 5"); e(f"s_add_u32 s{sST}, s{sST}, s{sOUT}")
    e(f"s_add_u32 s{sDA}, s{sROWO}, s{sCOL+2}"); e(f"s_add_u32 s{sMA}, s{sLB0}, s{sSLOT}")
    e.ext(interleave(mgroups(), merge(gelu(), dma8(), 0.45), 1, 31))
    lstamp(4)
    e(f"s_mov_b32 s{sCOL}, s{sCOL+1}"); e(f"s_mov_b32 s{sCOL+1}, s{sCOL+2}"); e(f"s_mov_b32 s{sCOL+2}, s{sCOL+3}")
    e(f"s_cmp_ge_u32 s{sIT}, 2"); e(f"s_cselect_b32 s{sT0}, 0x7fff0000, 0")
    e(f"v_or_b32 v{vDMA}, s{sT0}, v{vDMA}")
    e(f"v_mov_b32 v{vAUX}, v{vAUX+1}"); e(f"v_mov_b32 v{vAUX+1}, v{vAUX+2}"); e(f"v_mov_b32 v{vAUX+2}, v{vAUX+3}")
    e(f"s_xor_b32 s{sSLOT}, s{sSLOT}, 0x10000")
    e(f"s_add_u32 s{sIT}, s{sIT}, 1")
    round_end(2)
    e(f"s_cmp_lt_u32 s{sIT}, s{sT3}"); e("s_cbranch_scc1 K1_FLOOP")
    e(f"s_and_b32 s{sT2}, s{sIT}, 4"); e(f"s_add_u32 s{sT2}, s{sT2}, s{sRG}")
    touch2(sT2, "K1_T2F")
    if LOOPST != 9: lstamp(5, LOOPST)
    e(f"ds_read_b128 {vr(PK,4)}, v{vCSR}")
    e(f"s_lshl_b32 s{sST}, s{sCOL}, 5"); e(f"s_add_u32 s{sST}, s{sST}, s{sOUT}")
    e("s_waitcnt lgkmcnt(0)")
    e.ext(gelu())
    e(f"s_cmp_ge_u32 s{sIT}, 4"); e("s_cbranch_scc1 K1_FIN")
    e("s_barrier")
    e("s_branch K1_FIN")

    e.label("K1_QKV")
    WT, SEL, PHT0 = vAUX, vAUX + 4, vAUX + 4
    e(f"v_mul_f32 v{vC0}, {f2u(math.log2(math.e)):#x}, v{vS}")
    e(f"v_mov_b32 v{vC1}, v{vS}")
    e(f"s_lshl_b32 s{sOUT}, s{sRT}, 16"); e(f"s_lshl_b32 s{sT0}, s{sC}, 13"); e(f"s_add_u32 s{sOUT}, s{sOUT}, s{sT0}")
    e(f"s_lshl_b32 s{sT0}, s{sP}, 12"); e(f"s_add_u32 s{sOUT}, s{sOUT}, s{sT0}"); e(f"s_add_u32 s{sOUT}, s{sOUT}, {PQ_OFF}")
    def qconst():
        l = Lst()
        for j in range(4): l(f"v_lshl_or_b32 v{WT+j}, v{vAUX+2*j+1}, 16, v{vAUX+2*j}")
        l(f"v_and_b32 v{vS+1}, 15, v{vL}"); l(f"v_lshrrev_b32 v{vS+4}, 5, v{vL}")
        l(f"v_lshlrev_b32 v{vS+4}, 2, v{vS+4}"); l(f"v_sub_u32 v{vS+4}, v{vS+1}, v{vS+4}")
        l(f"v_mov_b32 v{vS+2}, s{sLO}"); l(f"v_mov_b32 v{vS+3}, s{sHI}")
        for t, f0 in enumerate((0, 2, 8, 10)):
            l(f"v_cmp_eq_u32 vcc, {f0}, v{vS+4};;v_cmp_eq_u32 s[62:63], {f0+1}, v{vS+4};;s_nop 0;;"
              f"v_cndmask_b32 v{SEL+t}, 0, v{vS+2}, vcc;;v_cndmask_b32 v{SEL+t}, v{SEL+t}, v{vS+3}, s[62:63]")
        return l
    def softmax(isk):
        l = aug()
        A1, A2 = TMP, TMP + 4
        for j in range(4):
            l(f"v_cndmask_b32 v{A1+j}, 0, v{WT+j}, {sr(sLT16,2)}"); l(f"v_cndmask_b32 v{A2+j}, v{WT+j}, 0, {sr(sLT16,2)}")
        for i in range(8): l(f"v_cvt_pk_bf16_f32 v{PK+i}, v{EACC+2*i}, v{EACC+2*i+1}")
        l(f"s_nop 1;;{MFMA} {vr(EACC,16)}, {vr(A1,4)}, {vr(PK,4)}, 0;;{MFMA} {vr(EACC,16)}, {vr(A2,4)}, {vr(PK+4,4)}, {vr(EACC,16)}")
        for i in range(6): l("s_nop 1")
        for a in range(2):
            P = EACC + 8 * a
            mx, mn = vS, vS + 1
            l(f"v_max3_f32 v{mx}, v{P}, v{P+1}, v{P+2}"); l(f"v_max3_f32 v{mn}, -v{P}, -v{P+1}, -v{P+2}")
            l(f"v_max3_f32 v{mx}, v{mx}, v{P+3}, v{P+4}"); l(f"v_max3_f32 v{mn}, v{mn}, -v{P+3}, -v{P+4}")
            l(f"v_max3_f32 v{mx}, v{mx}, v{P+5}, v{P+6}"); l(f"v_max3_f32 v{mn}, v{mn}, -v{P+5}, -v{P+6}")
            l(f"v_max_f32 v{mx}, v{mx}, v{P+7}"); l(f"v_max_f32_e64 v{mn}, v{mn}, -v{P+7}")
            l("s_nop 1"); l(f"v_permlane32_swap_b32 v{mx}, v{mn}")
            l(f"v_max_f32 v{mx}, v{mx}, v{mn}")
            l(f"v_mul_f32_e64 v{mx}, -v{mx}, v{vC0}")
            l(f"v_mov_b32 v{mn}, v{mx}")
            l("s_nop 1"); l(f"v_permlane32_swap_b32 v{mx}, v{mn}")
            for j in range(8): l(f"v_fma_f32 v{TMP+j}, v{P+j}, v{vC0}, v{mx}")
            for j in range(8): l(f"v_fma_f32 v{TMP+8+j}, -v{P+j}, v{vC0}, v{mn}")
            for j in range(16): l(f"v_exp_f32 v{TMP+j}, v{TMP+j}")
            s0, s1, s2, s3 = vS + 2, vS + 3, vS + 4, vS + 5
            l(f"v_add_f32 v{s0}, v{TMP}, v{TMP+1}"); l(f"v_add_f32 v{s1}, v{TMP+8}, v{TMP+9}")
            l(f"v_add_f32 v{s2}, v{TMP+2}, v{TMP+3}"); l(f"v_add_f32 v{s3}, v{TMP+10}, v{TMP+11}")
            for j in (4, 6):
                l(f"v_add_f32 v{s0}, v{s0}, v{TMP+j}"); l(f"v_add_f32 v{s1}, v{s1}, v{TMP+8+j}")
                l(f"v_add_f32 v{s2}, v{s2}, v{TMP+j+1}"); l(f"v_add_f32 v{s3}, v{s3}, v{TMP+8+j+1}")
            l(f"v_add_f32 v{s0}, v{s0}, v{s2}"); l(f"v_add_f32 v{s1}, v{s1}, v{s3}")
            l("s_nop 1"); l(f"v_permlane32_swap_b32 v{s0}, v{s1}")
            l(f"v_add_f32 v{s0}, v{s0}, v{s1}")
            l(f"v_rcp_f32 v{s0}, v{s0}")
            l("s_nop 0"); l(f"v_mov_b32 v{s1}, v{s0}")
            l("s_nop 1"); l(f"v_permlane32_swap_b32 v{s0}, v{s1}")
            for j in range(8): l(f"v_mul_f32 v{TMP+j}, v{TMP+j}, v{s0}")
            for j in range(8): l(f"v_mul_f32 v{TMP+8+j}, v{TMP+8+j}, v{s1}")
            for j in range(8): l(f"v_cvt_pk_bf16_f32 v{PK+8*a+j}, v{TMP+2*j}, v{TMP+2*j+1}")
            if not isk:
                for i in range(2):
                    l(f"buffer_store_dwordx4 {vr(PK+8*a+4*i,4)}, v{vL16}, {sr(SWS,4)}, s{sOUT} offen offset:{2048*a+1024*i} {ST1}")
        if isk:
            SP, SM = EACC, EACC + 4
            for j in range(4):
                l(f"v_cndmask_b32 v{SP+j}, 0, v{SEL+j}, {sr(sLT16,2)}"); l(f"v_cndmask_b32 v{SM+j}, v{SEL+j}, 0, {sr(sLT16,2)}")
            for a in range(2):
                l(f"s_nop 1;;{MFMA} {vr(TMP,16)}, {vr(PK+8*a,4)}, {vr(SP,4)}, 0;;{MFMA} {vr(TMP,16)}, {vr(PK+8*a+4,4)}, {vr(SM,4)}, {vr(TMP,16)}")
                for i in range(6): l("s_nop 1")
                dst = PHT0 if a == 0 else PK
                for j in range(8): l(f"v_cvt_pk_bf16_f32 v{dst+j}, v{TMP+2*j}, v{TMP+2*j+1}")
        return l
    lstamp(2, 1)
    e(f"s_add_u32 s{sDA}, s{sROWO}, s{sCOL+2}"); e(f"s_mov_b32 s{sMA}, s{sLB0}")
    e.ext(interleave(mgroups(), merge(qconst() + softmax(True), dma8(), 0.45), 1, 31))
    lstamp(4, 1)
    e(f"s_lshl_b32 s{sT0}, s{sW}, 11"); e(f"s_add_u32 s{sT0}, s{sT0}, {PHS}")
    e(f"v_add_u32 v{vDMA}, s{sT0}, v{vL16}")
    e(f"ds_write_b128 v{vDMA}, {vr(PK,4)}"); e(f"ds_write_b128 v{vDMA}, {vr(PK+4,4)} offset:1024")
    e(f"s_lshl_b32 s{sT0}, s{sW}, 7"); e(f"s_add_u32 s{sT4}, s{sT0}, {RVO}")
    e(f"v_and_b32 v{vS}, 31, v{vL}"); e(f"v_lshl_add_u32 v{vS}, v{vS}, 2, s{sT4}")
    e(f"ds_write_b32 v{vS}, v{vC1}")
    round_end(0)
    lstamp(2, 2)
    touch2(sW, "K1_T2Q")
    e.ext(interleave(mgroups(swap=True), softmax(False), 1, 31))
    lstamp(4, 2)
    round_end(63)
    if LOOPST != 9: lstamp(5, LOOPST)
    VB, PH1, RR = WB, XF, XF + 8
    e(f"ds_read_b128 {vr(PK,4)}, v{vCSR}")
    e(f"v_lshrrev_b32 v{vS+4}, 5, v{vL}"); e(f"v_lshl_add_u32 v{vS+4}, v{vS+4}, 4, s{sT4}")
    for q in range(4): e(f"ds_read_b128 {vr(RR+4*q,4)}, v{vS+4} offset:{32*q}")
    e(f"ds_read_b128 {vr(PH1,4)}, v{vDMA}"); e(f"ds_read_b128 {vr(PH1+4,4)}, v{vDMA} offset:1024")
    e(f"v_mov_b32 v{vS}, s{sONES}")
    e(f"s_lshl_b32 s{sT0}, s{sP}, 15"); e(f"s_add_u32 s{sT0}, s{sT0}, {YB}")
    e(f"s_lshl_b32 s{sT1}, s{sRG}, 13"); e(f"s_add_u32 s{sT1}, s{sT1}, s{sT0}")
    e(f"v_add_u32 v{vS+1}, s{sT1}, v{vL16}")
    e(f"s_lshl_b32 s{sT1}, s{sRG}, 10"); e(f"s_add_u32 s{sT1}, s{sT1}, s{sT0}")
    e(f"v_add_u32 v{vS+2}, s{sT1}, v{vL16}")
    e("s_waitcnt lgkmcnt(6)")
    e.ext(aug(swap=True))
    e("s_waitcnt lgkmcnt(0)")
    for i in range(16): e(f"v_mul_f32 v{EACC+i}, v{EACC+i}, v{RR+i}")
    for i in range(8): e(f"v_cvt_pk_bf16_f32 v{VB+i}, v{EACC+2*i}, v{EACC+2*i+1}")
    for i in range(8):
        e(f"v_cndmask_b32 v{VB+8+i}, v{VB+i}, v{vS}, {sr(sLT16,2)}")
        e(f"v_cndmask_b32 v{VB+i}, v{vS}, v{VB+i}, {sr(sLT16,2)}")
    e("s_nop 1")
    TD = (ACC, EACC); PHT = (PHT0, PH1)
    for a in range(2):
        e(f"{MFMA} {vr(TD[a],16)}, {vr(PHT[a],4)}, {vr(VB+8*a,4)}, 0")
        e(f"{MFMA} {vr(TD[a],16)}, {vr(PHT[a]+4,4)}, {vr(VB+8*a+4,4)}, {vr(TD[a],16)}")
    e(f"s_lshl_b32 s{sOUT}, s{sRB}, 17"); e(f"s_lshl_b32 s{sT0}, s{sC}, 14"); e(f"s_add_u32 s{sOUT}, s{sOUT}, s{sT0}")
    e(f"s_lshl_b32 s{sT0}, s{sP}, 13"); e(f"s_add_u32 s{sOUT}, s{sOUT}, s{sT0}")
    e(f"s_lshl_b32 s{sT0}, s{sRG}, 10"); e(f"s_add_u32 s{sOUT}, s{sOUT}, s{sT0}"); e(f"s_add_u32 s{sOUT}, s{sOUT}, {KVP_OFF}")
    e(f"s_add_u32 s{sT1}, s{sOUT}, 4096")
    e(f"v_xor_b32 v{vS+3}, 256, v{vL16}")
    e("s_nop 1")
    for a in range(2):
        for q in range(4):
            e(f"ds_write_b128 v{vS+1}, {vr(TD[a]+4*q,4)} offset:{4096*a + 1024*q}")
    e("s_waitcnt lgkmcnt(0)"); e("s_barrier")
    RD = XF + 32
    for a in range(2):
        for w in range(4):
            e(f"ds_read_b128 {vr(RD+16*a+4*w,4)}, v{vS+2} offset:{8192*w + 4096*a}")
    for a in range(2):
        e(f"s_waitcnt lgkmcnt({4*(1-a)})")
        B = RD + 16 * a
        for j in range(4): e(f"v_add_f32 v{B+j}, v{B+j}, v{B+4+j}")
        for j in range(4): e(f"v_add_f32 v{B+8+j}, v{B+8+j}, v{B+12+j}")
        for j in range(4): e(f"v_add_f32 v{B+j}, v{B+j}, v{B+8+j}")
        if a == 0: e(f"buffer_store_dwordx4 {vr(B,4)}, v{vL16}, {sr(SWS,4)}, s{sOUT} offen {ST1}")
        else:      e(f"buffer_store_dwordx4 {vr(B,4)}, v{vS+3}, {sr(SWS,4)}, s{sT1} offen {ST1}")
    e.label("K1_FIN")
    stamp_end(e, 0, SWS, "K1_END", sW, 0)
    e.label("K1_END")
    e("s_endpgm")
    return e.text()

K2_WLDS = 8192 + 3 * 2048
K2_XB = 4 * K2_WLDS
K2_LDS = K2_XB + 4 * 64 * 272
def gen_k2():
    e = Asm()
    SWS, SW2, SWO, SX, SO, SB2 = 8, 12, 16, 20, 24, 28
    sW, sCB, sRB, sT0, sT1, sT2, sT3 = 32, 33, 34, 35, 36, 37, 38
    sA0, sA1, sWK, sLB, sIT, sU = 39, 40, 41, 42, 43, 44
    sP0, sP1, sKV, sWO_, sXO, sMASK, sCNT = 46, 47, 48, 49, 50, 51, 52
    vL, vL16, vDMA, vTR0, vTR1, vXO = 1, 2, 3, 4, 5, 6
    vS = 8
    vXB = 16
    vX, vB = 32, 40
    OP = 32
    ACC, WB, ND, RING = 48, 112, 128, 160
    ATT = (RING + 32, RING + 56, RING)
    e("s_cmp_ge_u32 s2, 256")
    e("s_cbranch_scc1 K2_END")
    stamp_begin(e)
    e("s_load_dwordx2 s[64:65], s[0:1], 88")
    e("s_load_dwordx4 s[68:71], s[0:1], 56")
    e("s_load_dwordx2 s[66:67], s[0:1], 24")
    e("s_load_dwordx2 s[72:73], s[0:1], 0")
    e("s_load_dwordx2 s[74:75], s[0:1], 72")
    e(f"v_lshrrev_b32 v{vS}, 6, v0")
    e(f"v_and_b32 v{vL}, 63, v0")
    e(f"v_readfirstlane_b32 s{sW}, v{vS}")
    e(f"v_lshlrev_b32 v{vL16}, 4, v{vL}")
    e("s_nop 2")
    e(f"s_cmp_eq_u32 s{sW}, 4"); e("s_cbranch_scc1 K2_HELP")
    e(f"s_and_b32 s{sT0}, s2, 7"); e(f"s_lshr_b32 s{sT1}, s2, 3")
    if OPT.get("map2", "R") == "P":
        e(f"s_and_b32 s{sCB}, s{sT0}, 1"); e(f"s_lshl_b32 s{sCB}, s{sCB}, 2"); e(f"s_and_b32 s{sT2}, s{sT1}, 3"); e(f"s_add_u32 s{sCB}, s{sCB}, s{sT2}")
        e(f"s_lshr_b32 s{sRB}, s{sT0}, 1"); e(f"s_lshl_b32 s{sRB}, s{sRB}, 3"); e(f"s_lshr_b32 s{sT2}, s{sT1}, 2"); e(f"s_add_u32 s{sRB}, s{sRB}, s{sT2}")
    else:
        e(f"s_and_b32 s{sCB}, s{sT1}, 7")
        e(f"s_lshl_b32 s{sRB}, s{sT0}, 2"); e(f"s_lshr_b32 s{sT2}, s{sT1}, 3"); e(f"s_add_u32 s{sRB}, s{sRB}, s{sT2}")
    e(f"s_mul_i32 s{sA0}, s{sRB}, {2*114688}"); e(f"s_mul_i32 s{sT0}, s{sW}, {28*1024}")
    e(f"s_add_u32 s{sA0}, s{sA0}, s{sT0}"); e(f"s_add_u32 s{sA1}, s{sA0}, 114688")
    e(f"s_lshl_b32 s{sT0}, s{sCB}, 7")
    e(f"s_mul_i32 s{sWK}, s{sW}, {448*1024}"); e(f"s_add_u32 s{sWK}, s{sWK}, s{sT0}")
    e(f"s_mul_i32 s{sLB}, s{sW}, {K2_WLDS}")
    e(f"v_lshrrev_b32 v{vXO}, 3, v{vL}"); e(f"v_lshlrev_b32 v{vXO}, 10, v{vXO}")
    e(f"v_and_b32 v{vS+2}, 7, v{vL}"); e(f"v_bfe_u32 v{vS+3}, v{vL}, 4, 1"); e(f"v_lshlrev_b32 v{vS+4}, 2, v{vS+3}")
    e(f"v_xor_b32 v{vS+4}, v{vS+2}, v{vS+4}"); e(f"v_lshl_add_u32 v{vDMA}, v{vS+4}, 4, v{vXO}")
    e("s_waitcnt lgkmcnt(0)")
    srd(e, SWS, 64, 65, 0x10000000)
    srd(e, SW2, 68, 69, 1792 * 1024)
    def issue_ffn(slot):
        e(f"s_add_u32 m0, s{sLB}, {2048*slot}")
        e(f"buffer_load_dwordx4 {vr(RING+8*slot,4)}, v{vL16}, {sr(SWS,4)}, s{sA0} offen")
        e(f"buffer_load_dwordx4 {vr(RING+8*slot+4,4)}, v{vL16}, {sr(SWS,4)}, s{sA1} offen")
        e(f"buffer_load_dwordx4 v{vDMA}, {sr(SW2,4)}, s{sWK} offen lds")
        e(f"s_add_u32 m0, s{sLB}, {2048*slot+1024}")
        e(f"s_add_u32 s{sWK}, s{sWK}, 8192")
        e(f"s_add_u32 s{sA0}, s{sA0}, 1024")
        e(f"buffer_load_dwordx4 v{vDMA}, {sr(SW2,4)}, s{sWK} offen lds")
        e(f"s_add_u32 s{sWK}, s{sWK}, 8192")
        e(f"s_add_u32 s{sA1}, s{sA1}, 1024")
    for s in range(4): issue_ffn(s)
    srd(e, SWO, 66, 67, 512 * 1024)
    srd(e, SX, 72, 73, 2048 * 1024)
    srd(e, SO, 74, 75, 2048 * 1024)
    srd(e, SB2, 70, 71, 1024)
    e(f"v_lshlrev_b32 v{vS+5}, 4, v{vS+2}"); e(f"v_add_u32 v{vXO}, v{vXO}, v{vS+5}")
    e(f"s_lshl_b32 s{sXO}, s{sRB}, 16"); e(f"s_add_u32 s{sXO}, s{sXO}, s{sT0}"); e(f"s_lshl_b32 s{sT1}, s{sW}, 14"); e(f"s_add_u32 s{sXO}, s{sXO}, s{sT1}")
    e(f"s_add_u32 s{sT2}, s{sXO}, 8192")
    e(f"buffer_load_dwordx4 {vr(vX,4)}, v{vXO}, {sr(SX,4)}, s{sXO} offen")
    e(f"buffer_load_dwordx4 {vr(vX+4,4)}, v{vXO}, {sr(SX,4)}, s{sT2} offen")
    e(f"buffer_load_dwordx4 {vr(vB,4)}, v{vS+5}, {sr(SB2,4)}, s{sT0} offen")
    e(f"s_lshl_b32 s{sP0}, s{sRB}, 17"); e(f"s_add_u32 s{sP0}, s{sP0}, s{sT1}"); e(f"s_add_u32 s{sP0}, s{sP0}, {PQ_OFF}")
    e(f"s_add_u32 s{sP1}, s{sP0}, 65536")
    e(f"s_add_u32 s{sKV}, s{sT1}, {KVZ_OFF}")
    e(f"s_lshl_b32 s{sWO_}, s{sW}, 17"); e(f"s_add_u32 s{sWO_}, s{sWO_}, s{sT0}")
    e(f"v_bfe_u32 v{vS+6}, v{vL}, 2, 2"); e(f"v_lshrrev_b32 v{vS+4}, 5, v{vL}")
    e(f"v_lshl_add_u32 v{vS+7}, v{vS+4}, 2, v{vS+6}"); e(f"v_lshlrev_b32 v{vTR0}, 7, v{vS+7}")
    e(f"v_lshl_add_u32 v{vTR0}, v{vS+3}, 5, v{vTR0}")
    e(f"v_and_b32 v{vS+7}, 3, v{vL}"); e(f"v_lshl_add_u32 v{vTR0}, v{vS+7}, 3, v{vTR0}")
    e(f"v_lshrrev_b32 v{vS+6}, 1, v{vS+6}"); e(f"v_lshl_add_u32 v{vTR0}, v{vS+6}, 6, v{vTR0}")
    e(f"v_add_u32 v{vTR0}, s{sLB}, v{vTR0}")
    e(f"v_xor_b32 v{vTR1}, 64, v{vTR0}")
    for i in range(64): e(f"v_mov_b32 v{ACC+i}, 0")
    e(f"s_mov_b32 s{sMASK}, 0xffff0000")
    def wreads(off, buf):
        b = WB + 8 * buf
        e(f"ds_read_b64_tr_b16 {vr(b,2)}, v{vTR0} offset:{off}")
        e(f"ds_read_b64_tr_b16 {vr(b+2,2)}, v{vTR0} offset:{off+1024}")
        e(f"ds_read_b64_tr_b16 {vr(b+4,2)}, v{vTR1} offset:{off}")
        e(f"ds_read_b64_tr_b16 {vr(b+6,2)}, v{vTR1} offset:{off+1024}")
    def mm4(buf, act):
        for nt in range(2):
            for mt in range(2):
                c = vr(ACC + 16 * (2 * nt + mt), 16)
                e(f"{MFMA} {c}, {vr(WB+8*buf+4*nt,4)}, {act[mt]}, {c}")
    e("s_waitcnt vmcnt(15)")
    stamp(e, 2)
    wreads(0, 0)
    e(f"s_mov_b32 s{sIT}, 6")
    e.label("K2_LOOP")
    for s in range(4):
        e("s_waitcnt vmcnt(8)")
        wreads(2048 * ((s + 1) % 4), (s + 1) & 1)
        e("s_waitcnt lgkmcnt(4)")
        mm4(s & 1, [vr(RING + 8 * s, 4), vr(RING + 8 * s + 4, 4)])
        issue_ffn(s)
    e(f"s_cmp_lg_u32 s{sIT}, {OPT.get('pollat', 3)}"); e("s_cbranch_scc1 K2_NB"); e("s_barrier"); e.label("K2_NB")
    e(f"s_sub_u32 s{sIT}, s{sIT}, 1"); e(f"s_cmp_lg_u32 s{sIT}, 0"); e("s_cbranch_scc1 K2_LOOP")
    stamp(e, 3)
    e("s_barrier")
    def issue_att(a):
        R = ATT[a % 3]
        e(f"s_add_u32 m0, s{sLB}, {8192 + 2048*(a%3)}")
        o = 2048 * (a & 1)
        e(f"buffer_load_dwordx4 {vr(R,4)}, v{vL16}, {sr(SWS,4)}, s{sKV} offen offset:{o} sc1")
        e(f"buffer_load_dwordx4 {vr(R+4,4)}, v{vL16}, {sr(SWS,4)}, s{sKV} offen offset:{o+1024} sc1")
        e(f"buffer_load_dwordx4 {vr(R+8,4)}, v{vL16}, {sr(SWS,4)}, s{sP0} offen offset:{o}")
        e(f"buffer_load_dwordx4 {vr(R+12,4)}, v{vL16}, {sr(SWS,4)}, s{sP0} offen offset:{o+1024}")
        e(f"buffer_load_dwordx4 {vr(R+16,4)}, v{vL16}, {sr(SWS,4)}, s{sP1} offen offset:{o}")
        e(f"buffer_load_dwordx4 {vr(R+20,4)}, v{vL16}, {sr(SWS,4)}, s{sP1} offen offset:{o+1024}")
        e(f"buffer_load_dwordx4 v{vDMA}, {sr(SWO,4)}, s{sWO_} offen lds")
        e(f"s_add_u32 m0, s{sLB}, {8192 + 2048*(a%3) + 1024}")
        e(f"s_add_u32 s{sWO_}, s{sWO_}, 8192")
        e(f"buffer_load_dwordx4 v{vDMA}, {sr(SWO,4)}, s{sWO_} offen lds")
        e(f"s_add_u32 s{sWO_}, s{sWO_}, 8192")
        if a & 1:
            e(f"s_add_u32 s{sKV}, s{sKV}, 4096"); e(f"s_add_u32 s{sP0}, s{sP0}, 4096"); e(f"s_add_u32 s{sP1}, s{sP1}, 4096")
    yv = [8, 4 + 8, 16]
    for s in range(4):
        if s < 3:
            e(f"s_waitcnt vmcnt({yv[s]})")
            wreads(2048 * (s + 1), (s + 1) & 1)
            e("s_waitcnt lgkmcnt(4)")
        else:
            e("s_waitcnt lgkmcnt(0)")
        mm4(s & 1, [vr(RING + 8 * s, 4), vr(RING + 8 * s + 4, 4)])
        if s == 0: issue_att(0)
        if s == 1: issue_att(1)
        if s == 2: issue_att(2)
    for i in range(4):
        e(f"v_lshlrev_b32 v{vS}, 16, v{vB+i}"); e(f"v_and_b32 v{vS+1}, s{sMASK}, v{vB+i}")
        for t in range(2):
            d = vXB + 8 * t + 2 * i
            e(f"v_lshlrev_b32 v{d}, 16, v{vX+4*t+i}"); e(f"v_and_b32 v{d+1}, s{sMASK}, v{vX+4*t+i}")
            e(f"v_add_f32 v{d}, v{d}, v{vS}"); e(f"v_add_f32 v{d+1}, v{d+1}, v{vS+1}")
    stamp(e, 4)
    for a in range(8):
        R = ATT[a % 3]
        e(f"s_waitcnt vmcnt({8 * min(2, 7 - a)})")
        wreads(8192 + 2048 * (a % 3), a & 1)
        for mt in range(2):
            d = vr(ND + 16 * mt, 16)
            e(f"{MFMA} {d}, {vr(R,4)}, {vr(R+8+8*mt,4)}, 0")
            e(f"{MFMA} {d}, {vr(R+4,4)}, {vr(R+12+8*mt,4)}, {d}")
        if a > 0: mm4((a - 1) & 1, [vr(OP, 4), vr(OP + 4, 4)])
        e("s_waitcnt lgkmcnt(0)")
        if a + 3 < 8: issue_att(a + 3)
        else: e("s_nop 7")
        for mt in range(2): e(f"v_add_f32 v{vS+mt}, {f2u(1e-6):#x}, v{ND+16*mt+8}")
        for mt in range(2): e(f"v_rcp_f32 v{vS+mt}, v{vS+mt}")
        e("s_nop 0")
        for mt in range(2):
            d = ND + 16 * mt
            for j in range(8): e(f"v_mul_f32 v{d+j}, v{d+j}, v{vS+mt}")
            for j in range(4): e(f"v_cvt_pk_bf16_f32 v{OP+4*mt+j}, v{d+2*j}, v{d+2*j+1}")
    e(f"v_and_b32 v{vS+2}, 31, v{vL}"); e(f"v_mul_u32_u24 v{vS+2}, 272, v{vS+2}")
    mm4(1, [vr(OP, 4), vr(OP + 4, 4)])
    stamp(e, 5)
    e(f"v_lshrrev_b32 v{vS+3}, 5, v{vL}"); e(f"v_lshl_add_u32 v{vS+2}, v{vS+3}, 4, v{vS+2}")
    e(f"s_mul_i32 s{sT0}, s{sW}, 17408"); e(f"s_add_u32 s{sT0}, s{sT0}, {K2_XB}")
    e(f"v_add_u32 v{vS+2}, s{sT0}, v{vS+2}")
    e(f"v_lshrrev_b32 v{vS+3}, 3, v{vL}"); e(f"v_mul_u32_u24 v{vS+3}, 272, v{vS+3}")
    e(f"v_and_b32 v{vS+4}, 7, v{vL}"); e(f"v_lshl_add_u32 v{vS+3}, v{vS+4}, 5, v{vS+3}")
    e(f"s_mul_i32 s{sT0}, s{sW}, {16*272}"); e(f"s_add_u32 s{sT0}, s{sT0}, {K2_XB}")
    e(f"v_add_u32 v{vS+3}, s{sT0}, v{vS+3}")
    for nt in range(2):
        for mt in range(2):
            for q in range(4):
                e(f"ds_write_b128 v{vS+2}, {vr(ACC+16*(2*nt+mt)+4*q,4)} offset:{32*272*mt + 128*nt + 32*q}")
    e("s_waitcnt lgkmcnt(0)"); e("s_barrier")
    for t in range(2):
        for p in range(4):
            for hh in range(2):
                e(f"ds_read_b128 {vr(ACC+32*t+8*p+4*hh,4)}, v{vS+3} offset:{17408*p + 8*272*t + 16*hh}")
    for t in range(2):
        for p in range(4):
            e(f"s_waitcnt lgkmcnt({14 - 8*t - 2*p})")
            for j in range(8): e(f"v_add_f32 v{vXB+8*t+j}, v{vXB+8*t+j}, v{ACC+32*t+8*p+j}")
        for j in range(4): e(f"v_cvt_pk_bf16_f32 v{OP+4*t+j}, v{vXB+8*t+2*j}, v{vXB+8*t+2*j+1}")
        e(f"buffer_store_dwordx4 {vr(OP+4*t,4)}, v{vXO}, {sr(SO,4)}, s{sXO if t == 0 else sT2} offen {OPT.get('st2', '').replace('_', ' ')}")
    stamp_end(e, 1, SWS, "K2_END", sW, OPT.get("sw2", 0))
    e("s_endpgm")

    e.label("K2_HELP")
    RED = 16
    e(f"v_lshrrev_b32 v{vS+2}, 4, v{vL}"); e(f"v_and_b32 v{vS+3}, 15, v{vL}"); e(f"v_lshlrev_b32 v{vS+3}, 4, v{vS+3}")
    e(f"v_lshl_add_u32 v{vS}, v{vS+2}, 17, v{vS+3}")
    e(f"v_lshl_add_u32 v{vS+1}, v{vS+2}, 2, v{vS+3}")
    e(f"v_lshlrev_b32 v{vS+4}, 7, v{vL}")
    e(f"s_mov_b32 s{sU}, s2"); e(f"s_add_u32 s{sT3}, s2, 1"); e(f"s_mov_b32 s{sCNT}, 0")
    e("s_waitcnt lgkmcnt(0)")
    srd(e, SWS, 64, 65, 0x10000000)
    e.label("K2_RED")
    e(f"s_lshr_b32 s{sT0}, s{sU}, 2"); e(f"s_lshl_b32 s{sT0}, s{sT0}, 11")
    e(f"s_and_b32 s{sT1}, s{sU}, 3"); e(f"s_lshl_b32 s{sT1}, s{sT1}, 8"); e(f"s_add_u32 s{sT0}, s{sT0}, s{sT1}")
    e(f"s_add_u32 s{sT0}, s{sT0}, {KVP_OFF}")
    for u in range(4):
        e(f"buffer_load_dwordx4 {vr(RED+8*u,4)}, v{vS}, {sr(SWS,4)}, s{sT0} offen")
        e(f"buffer_load_dwordx4 {vr(RED+8*u+4,4)}, v{vS}, {sr(SWS,4)}, s{sT0} offen offset:1024")
        if u < 3: e(f"s_add_u32 s{sT0}, s{sT0}, {4*131072}")
    e(f"s_lshl_b32 s{sT0}, s{sU}, 8"); e(f"s_add_u32 s{sT0}, s{sT0}, {KVZ_OFF}")
    e("s_waitcnt vmcnt(0)")
    for st in (16, 8):
        for j in range(st): e(f"v_add_f32 v{RED+j}, v{RED+j}, v{RED+st+j}")
    e("s_nop 1")
    for k in range(4): e(f"v_permlane32_swap_b32 v{RED+k}, v{RED+k+4}")
    for k in range(4): e(f"v_add_f32 v{RED+k}, v{RED+k}, v{RED+k+4}")
    e("s_nop 1")
    for k in range(2): e(f"v_permlane16_swap_b32 v{RED+k}, v{RED+k+2}")
    for k in range(2): e(f"v_add_f32 v{RED+k}, v{RED+k}, v{RED+k+2}")
    e(f"v_cvt_pk_bf16_f32 v{RED}, v{RED}, v{RED+1}")
    e(f"buffer_store_dword v{RED}, v{vS+1}, {sr(SWS,4)}, s{sT0} offen sc1")
    e(f"s_add_u32 s{sU}, s{sU}, 1"); e(f"s_cmp_lt_u32 s{sU}, s{sT3}"); e("s_cbranch_scc1 K2_RED")
    e("s_waitcnt vmcnt(0)")
    e(f"s_cmp_lg_u32 s{sCNT}, 0"); e("s_cbranch_scc1 K2_HDONE")
    stamp(e, 3)
    e(f"s_and_b32 s{sT0}, s2, 15"); e(f"s_lshl_b32 s{sT0}, s{sT0}, 7"); e(f"s_add_u32 s{sT0}, s{sT0}, {FLG_OFF}")
    e(f"v_mov_b32 v{vS+2}, 1"); e(f"v_mov_b32 v{vS+3}, 0")
    e("s_mov_b64 exec, 1")
    e(f"buffer_atomic_add v{vS+2}, v{vS+3}, {sr(SWS,4)}, s{sT0} offen sc1")
    e("s_mov_b64 exec, 0xffff")
    e(f"s_mov_b32 s{sT2}, {FLG_OFF}")
    e("s_barrier")
    stamp(e, 4)
    e.label("K2_POLL")
    e(f"buffer_load_dword v{RED}, v{vS+4}, {sr(SWS,4)}, s{sT2} offen sc1")
    e(f"s_add_u32 s{sCNT}, s{sCNT}, 1")
    e("s_waitcnt vmcnt(0)")
    e(f"v_cmp_ne_u32 vcc, 16, v{RED}")
    e("s_nop 4")
    e("s_cbranch_vccz K2_HDONE")
    e("s_sleep 16")
    e(f"s_cmp_lt_u32 s{sCNT}, {OPT.get('spin', 1000)}"); e("s_cbranch_scc1 K2_POLL")
    e("s_mov_b64 exec, -1")
    e(f"s_mov_b32 s{sU}, 0"); e(f"s_movk_i32 s{sT3}, 256")
    e("s_branch K2_RED")
    e.label("K2_HDONE")
    stamp(e, 2)
    e("s_barrier")
    stamp_end(e, 1, SWS, "K2_END", sW, OPT.get("sw2", 0))
    e.label("K2_END")
    e("s_endpgm")
    return e.text()

def kd(name, nv, acc, ns=102):
    return f""".amdhsa_kernel {name}
  .amdhsa_next_free_vgpr {nv}
  .amdhsa_next_free_sgpr {ns}
  .amdhsa_accum_offset {acc}
  .amdhsa_group_segment_fixed_size 0
  .amdhsa_kernarg_size 96
  .amdhsa_user_sgpr_count 2
  .amdhsa_user_sgpr_kernarg_segment_ptr 1
  .amdhsa_system_sgpr_workgroup_id_x 1
.end_amdhsa_kernel
"""

def main():
    out = "; LayerNorm + hedgehog linear attention + GELU FFN, two launches (generated by tools/gen.py)\n"
    if not OPT["k2only"]:
        out += "; @launch kernel=hh_k1_kernel grid=(256,1,1) block=(512,1,1) lds=163840\n"
    if not OPT["k1only"]:
        out += f"; @launch kernel=hh_k2_kernel grid=(256,1,1) block=(320,1,1) lds={K2_LDS}\n"
    out += '.amdgcn_target "amdgcn-amd-amdhsa--gfx950"\n.text\n'
    for name, body in (("hh_k1_kernel", gen_k1()), ("hh_k2_kernel", gen_k2())):
        out += f".globl {name}\n.p2align 8\n.type {name},@function\n{name}:\n" + body
    out += ".p2align 8\n.fill 1024, 4, 0xbf800000\n"
    out += '.section .rodata,"a"\n.p2align 6\n' + kd("hh_k1_kernel", 256, 256) + ".p2align 6\n" + kd("hh_k2_kernel", 240, 240)
    open(sys.argv[1], "w").write(out)
main()
```

```python
import sys, math, struct

OPT = dict(stamps=0, st1="sc1", k1only=0, k2only=0, pfcode=1, pfw2=3)
for a in sys.argv[2:]:
    k, v = a.split("=")
    OPT[k] = int(v) if v.lstrip("-").isdigit() else v

H_OFF, PQ_OFF, KVP_OFF, KVZ_OFF, FLG_OFF = 0, 0x800000, 0xC00000, 0xE00000, 0xE10000
STAMP_OFF = 200 << 20
NSTAMP = 8
LOOPST = OPT.get('loopst', -1)

def f2u(x): return struct.unpack("<I", struct.pack("<f", x))[0]

class Asm:
    def __init__(self): self.L = []
    def __call__(self, s):
        for t in s.split(";;"):
            t = t.strip()
            self.L.append(t if t.endswith(":") else "    " + t)
    def label(self, s): self.L.append(s + ":")
    def ext(self, lst):
        for s in lst: self(s)
    def text(self): return "\n".join(self.L) + "\n"

class Lst(list):
    def __call__(self, s): self.append(s)

def vr(b, n=1): return f"v{b}" if n == 1 else f"v[{b}:{b+n-1}]"
def ar(b, n=1): return f"a{b}" if n == 1 else f"a[{b}:{b+n-1}]"
def sr(b, n=1): return f"s{b}" if n == 1 else f"s[{b}:{b+n-1}]"
MFMA = "v_mfma_f32_32x32x16_bf16"

def cost(ins):
    c = 0
    for t in ins.split(";;"):
        op = t.split()[0]
        if op.startswith(("v_exp", "v_rcp", "v_sqrt", "v_log", "v_mfma")): c += 8
        elif op == "s_nop": c += 2 * (int(t.split()[1]) + 1)
        elif op.startswith("s_"): c += 2
        elif op.startswith("buffer_"): c += 8
        else: c += 4.5
    return c

def interleave(groups, fill, first=0, last=None):
    last = len(groups) - 1 if last is None else last
    tot = sum(cost(i) for i in fill); n = last - first + 1
    out = []; k = 0; acc = 0.0
    for gi, g in enumerate(groups):
        out += g
        if first <= gi <= last:
            tgt = tot * (gi - first + 1) / n
            while k < len(fill) and (acc + cost(fill[k]) / 2 <= tgt or gi == last):
                out.append(fill[k]); acc += cost(fill[k]); k += 1
    assert k == len(fill)
    return out

def merge(a, b, frac=1.0):
    out = []; n = max(1, int(len(a) * frac)); k = 0
    for i, x in enumerate(a):
        while k < len(b) and k * n <= i * len(b) and i < n:
            out.append(b[k]); k += 1
        out.append(x)
    out += b[k:]
    return out

def srd(e, d, lo, hi, size):
    e(f"s_mov_b32 s{d}, s{lo}"); e(f"s_mov_b32 s{d+1}, s{hi}")
    e(f"s_mov_b32 s{d+2}, {size:#x}"); e(f"s_mov_b32 s{d+3}, 0x00020000")

def stamp(e, idx, base=80):
    if OPT["stamps"]:
        e(f"s_memtime s[{base+2*idx}:{base+2*idx+1}]")

def stamp_begin(e, base=80):
    if OPT["stamps"]:
        e(f"s_memrealtime s[{base}:{base+1}]")
        e(f"s_memtime s[{base-2}:{base-1}]")
        for i in range(2, NSTAMP):
            e(f"s_mov_b64 s[{base+2*i}:{base+2*i+1}], 0")

def stamp_end(e, kidx, wssrd, lbl, wave_sgpr, wave_sel, base=80):
    if not OPT["stamps"]: return
    e(f"s_memtime s[{base+2*(NSTAMP-2)}:{base+2*(NSTAMP-2)+1}]")
    e("s_waitcnt vmcnt(0)")
    e(f"s_memrealtime s[{base+2}:{base+3}]")
    e(f"s_memtime s[{base+2*(NSTAMP-1)}:{base+2*(NSTAMP-1)+1}]")
    e("s_waitcnt lgkmcnt(0)")
    for i in range(2, NSTAMP):
        e(f"s_sub_u32 s{base+2*i}, s{base+2*i}, s{base-2}")
        e(f"s_mov_b32 s{base+2*i+1}, 0")
    e(f"s_lshl_b32 s{base-2}, s2, 3"); e(f"s_add_u32 s{base-2}, s{base-2}, s{wave_sgpr}")
    e(f"s_mul_i32 s{base-2}, s{base-2}, {8*NSTAMP}")
    e(f"s_add_u32 s{base-2}, s{base-2}, {STAMP_OFF + kidx*256*8*8*NSTAMP}")
    e("s_mov_b64 exec, 1")
    e("v_mov_b32 v1, 0")
    for i in range(NSTAMP // 2):
        for j in range(4):
            e(f"v_mov_b32 v{4+j}, s{base+4*i+j}")
        e(f"buffer_store_dwordx4 v[4:7], v1, {sr(wssrd,4)}, s{base-2} offen offset:{16*i}")
        e("s_nop 1")
    e("s_waitcnt vmcnt(0)")

KN = "parallel_sum__linear_kernel_hedgehog__dense_activation_gelu__prompt_kernel"
SPIN = OPT.get("spin", 20000)
CNT_OFF = FLG_OFF + 2048 * 128

def gen():
    e = Asm()
    M16 = "v_mfma_f32_16x16x32_bf16"
    SDBG, SX, SW, SWS, SAUX = 4, 8, 12, 16, 20
    sW, sRG, sP, sC, sRB, sTYPE = 24, 25, 26, 27, 28, 29
    sPITCH, sRT, sIDX, sROT = 30, 31, 32, 33
    sONES, sLO, sHI, sMASK = 34, 35, 36, 37
    sT0, sT1, sT2, sT3, sT4 = 38, 39, 40, 41, 42
    sXB = 43
    sCOL = 44
    sSLOT, sIT, sOUT, sAUXO, sP16 = 48, 49, 50, 51, 52
    sDA, sDB, sMA, sROWO, sW4K, sST = 53, 54, 55, 56, 57, 61
    sLT16, sFLG = 58, 60
    sJG, sISC, sWB, sLEV = 76, 77, 100, 101
    vDUM, vL, vL16, vDMA, vTR = 0, 1, 2, 3, 4
    vS, vCSW, vCSR, SELC, CS, AUG, vC0, vC1 = 8, 14, 15, 16, 20, 24, 30, 31
    TMP, PK, ACC, EACC, WB, vAUX, XF = 32, 48, 64, 80, 96, 116, 128
    NWB = 5
    YB, ZB = 0x10000, 0x20000
    STAT, CSX, RVO, GSY = 0x21000, 0x21800, 0x22000, 0x22400
    vFR, vXD, RS, vQ, vAL = TMP, TMP + 8, TMP + 12, TMP + 16, TMP + 18
    lab = [0]
    def L(p):
        lab[0] += 1
        return f"{p}{lab[0]}"
    SP = str(OPT.get("sp", "")).split(",")
    def st(name, lst=None):
        if OPT["stamps"] and name in SP:
            i = 2 + SP.index(name)
            t = f"s_memtime s[{80+2*i}:{81+2*i}];;s_waitcnt lgkmcnt(0)"
            (e if lst is None else lst.append)(t)
    e("s_cmp_ge_u32 s2, 256")
    e("s_cbranch_scc1 K_END")
    stamp_begin(e)
    e("s_load_dwordx4 s[64:67], s[0:1], 0")
    e("s_load_dwordx2 s[68:69], s[0:1], 16")
    e("s_load_dwordx4 s[72:75], s[0:1], 40")
    e("s_load_dwordx2 s[70:71], s[0:1], 88")
    e("s_load_dwordx2 s[96:97], s[0:1], 56")
    e("s_load_dwordx2 s[98:99], s[0:1], 24")
    e(f"s_load_dwordx2 {sr(SDBG,2)}, s[0:1], 80")
    e(f"v_lshrrev_b32 v{vS}, 6, v0")
    e(f"v_and_b32 v{vL}, 63, v0")
    e(f"v_readfirstlane_b32 s{sW}, v{vS}")
    e(f"s_lshr_b32 s{sIDX}, s2, 3")
    if OPT["pfcode"]:
        e(f"s_cmp_lg_u32 s{sW}, 7"); e("s_cbranch_scc1 K_NOPF")
        e("s_getpc_b64 s[62:63]")
        e("s_and_b32 s62, s62, 0xffffff00")
        e(f"s_mul_i32 s{sT1}, s{sIDX}, 896")
        e(f"v_lshl_add_u32 v{vS+3}, v{vL}, 7, s{sT1}")
        e("s_mov_b64 exec, 0x7f")
        e(f"global_load_dword v{vDUM}, v{vS+3}, s[62:63]")
        e("s_mov_b64 exec, -1")
        e.label("K_NOPF")
    e(f"s_and_b32 s{sT0}, s2, 7")
    e(f"s_lshr_b32 s{sRB}, s{sT0}, 1"); e(f"s_lshl_b32 s{sRB}, s{sRB}, 2")
    e(f"s_and_b32 s{sT2}, s{sIDX}, 3"); e(f"s_add_u32 s{sRB}, s{sRB}, s{sT2}")
    e(f"s_lshr_b32 s{sT1}, s{sIDX}, 2")
    e(f"s_add_u32 s{sROT}, s{sT1}, s{sT2}"); e(f"s_and_b32 s{sROT}, s{sROT}, 3")
    e(f"s_and_b32 s{sTYPE}, s{sT1}, 1")
    e(f"s_lshr_b32 s{sT1}, s{sT1}, 1")
    e(f"s_and_b32 s{sC}, s{sT0}, 1"); e(f"s_lshl_b32 s{sC}, s{sC}, 2"); e(f"s_add_u32 s{sC}, s{sC}, s{sT1}")
    e(f"s_and_b32 s{sRG}, s{sW}, 3"); e(f"s_lshr_b32 s{sP}, s{sW}, 2")
    e(f"v_lshrrev_b32 v{vS}, 4, v{vL}"); e(f"v_and_b32 v{vS+1}, 15, v{vL}")
    e(f"v_xor_b32 v{vS+2}, v{vS}, v{vS+1}"); e(f"v_lshlrev_b32 v{vS+2}, 4, v{vS+2}")
    e(f"v_lshl_add_u32 v{vXD}, v{vS}, 10, v{vS+2}")
    for i in range(1, 4): e(f"v_xor_b32 v{vXD+i}, {4096*i + 64*i}, v{vXD}")
    e(f"s_lshl_b32 s{sXB}, s{sRB}, 17"); e(f"s_lshl_b32 s{sT0}, s{sW}, 14"); e(f"s_add_u32 s{sXB}, s{sXB}, s{sT0}")
    e(f"s_lshl_b32 s{sW4K}, s{sW}, 12")
    e(f"v_and_b32 v{vS+3}, 31, v{vL}")
    e(f"v_lshrrev_b32 v{vS+4}, 5, v{vL}")
    e(f"s_cmp_eq_u32 s{sTYPE}, 0")
    e("s_cbranch_scc1 K_SETQ")
    e(f"s_movk_i32 s{sPITCH}, 3584")
    e(f"s_mul_i32 s{sAUXO}, s{sC}, 448")
    e(f"s_and_b32 s{sT1}, s{sC}, 1")
    e(f"s_lshl_b32 s{sT2}, s{sT1}, 6"); e(f"s_add_u32 s{sCOL}, s{sAUXO}, s{sT2}")
    e(f"s_add_u32 s{sCOL+1}, s{sCOL}, 128"); e(f"s_add_u32 s{sCOL+2}, s{sCOL}, 256")
    e(f"s_lshl_b32 s{sT2}, s{sT1}, 9"); e(f"s_add_u32 s{sCOL+3}, s{sCOL}, 384"); e(f"s_sub_u32 s{sCOL+3}, s{sCOL+3}, s{sT2}")
    e(f"s_lshl_b32 s{sT2}, s{sP}, 6")
    e(f"v_lshl_add_u32 v{vAL}, v{vS+3}, 1, s{sT2}")
    e(f"s_mov_b32 s{SW+2}, {512*3584}"); e(f"s_movk_i32 s{SAUX+2}, 3584")
    e("s_branch K_SETD")
    e.label("K_SETQ")
    e(f"s_movk_i32 s{sPITCH}, 3072")
    e(f"s_lshl_b32 s{sCOL+2}, s{sC}, 7"); e(f"s_add_u32 s{sCOL}, s{sCOL+2}, 1024"); e(f"s_add_u32 s{sCOL+1}, s{sCOL+2}, 2048")
    e(f"v_lshrrev_b32 v{vS+5}, 4, v{vS+3}"); e(f"v_lshlrev_b32 v{vS+5}, 9, v{vS+5}")
    e(f"v_lshl_add_u32 v{vS+5}, v{vS+4}, 7, v{vS+5}"); e(f"v_lshl_add_u32 v{vS+5}, v{vS+1}, 1, v{vS+5}")
    e(f"s_lshl_b32 s{sT1}, s{sP}, 10"); e(f"v_add_u32 v{vAL}, s{sT1}, v{vS+5}")
    e(f"s_lshl_b32 s{sAUXO}, s{sC}, 11")
    e(f"s_mov_b32 s{SW+2}, {512*3072}"); e(f"s_movk_i32 s{SAUX+2}, {32*512}")
    e.label("K_SETD")
    e(f"s_mov_b32 s{SW+3}, 0x00020000"); e(f"s_mov_b32 s{SAUX+3}, 0x00020000")
    e(f"v_lshrrev_b32 v{vDMA}, 2, v{vL}"); e(f"v_mul_lo_u32 v{vDMA}, v{vDMA}, s{sPITCH}")
    e(f"v_and_b32 v{vS+5}, 3, v{vL}"); e(f"v_lshl_add_u32 v{vDMA}, v{vS+5}, 4, v{vDMA}")
    e(f"s_lshl_b32 s{sP16}, s{sPITCH}, 4")
    e(f"s_mul_i32 s{sWB}, s{sP16}, s{sW}"); e(f"s_add_u32 s{sWB}, s{sWB}, s{sCOL}")
    e(f"s_cmp_eq_u32 s{sTYPE}, 0")
    e("s_waitcnt lgkmcnt(0)")
    e(f"s_cselect_b64 {sr(SW,2)}, s[66:67], s[72:73]"); e(f"s_cselect_b64 {sr(SAUX,2)}, s[68:69], s[74:75]")
    srd(e, SX, 64, 65, 2048 * 1024)
    XBUF = (ZB, YB, YB + 0x8000, ZB)
    def sset(j):
        l = Lst()
        l(f"s_add_u32 s{sT0}, s{sROT}, {j};;s_and_b32 s{sT0}, s{sT0}, 3;;s_lshl_b32 s{sT1}, s{sT0}, 8;;s_add_u32 s{sT1}, s{sT1}, s{sXB};;"
          f"s_lshl_b32 s{sT0}, s{sT0}, 3;;s_mul_i32 s{sT0}, s{sT0}, s{sP16};;s_add_u32 s{sT0}, s{sT0}, s{sWB};;s_add_u32 s{sT2}, s{sT0}, 64;;s_lshr_b32 s{sT3}, s{sW4K}, 2")
        for i in range(4):
            l(f"s_add_u32 m0, s{sW4K}, {XBUF[j] + 1024*i};;s_nop 0;;buffer_load_dwordx4 v{vXD+i}, {sr(SX,4)}, s{sT1} offen lds")
        wo = 0x8000 * (j >> 1) + 8192 * (j & 1)
        l(f"s_add_u32 m0, s{sT3}, {wo};;s_nop 0;;buffer_load_dwordx4 v{vDMA}, {sr(SW,4)}, s{sT0} offen lds")
        l(f"s_add_u32 m0, s{sT3}, {wo + 0x4000};;s_nop 0;;buffer_load_dwordx4 v{vDMA}, {sr(SW,4)}, s{sT2} offen lds")
        return l
    e.ext(sset(0))
    srd(e, SWS, 70, 71, 0x10000000)
    e(f"s_movk_i32 s{SDBG+2}, 256"); e(f"s_mov_b32 s{SDBG+3}, 0x00020000")
    e(f"s_lshl_b32 s{sRT}, s{sRB}, 2"); e(f"s_add_u32 s{sRT}, s{sRT}, s{sRG}")
    e(f"s_lshl_b32 s{sFLG}, s{sTYPE}, 4"); e(f"s_add_u32 s{sFLG}, s{sFLG}, s{sRB}"); e(f"s_lshl_b32 s{sFLG}, s{sFLG}, 3"); e(f"s_add_u32 s{sFLG}, s{sFLG}, s{sC}")
    e(f"s_lshl_b32 s{sFLG}, s{sFLG}, 10"); e(f"s_add_u32 s{sFLG}, s{sFLG}, {FLG_OFF}")
    e(f"s_and_b32 s{sISC}, s{sC}, 1"); e(f"s_xor_b32 s{sISC}, s{sISC}, s{sP}")
    e(f"v_lshlrev_b32 v{vL16}, 4, v{vL}")
    e(f"v_mov_b32 v{AUG+4}, 0"); e(f"v_mov_b32 v{AUG+5}, 0")
    e(f"s_cmp_lg_u32 s{sW}, 7"); e("s_cbranch_scc1 K_NZ")
    e(f"v_lshlrev_b32 v{vS+2}, 3, v{vL}")
    e(f"buffer_store_dwordx2 {vr(AUG+4,2)}, v{vS+2}, {sr(SWS,4)}, s{sFLG} offen sc1")
    e(f"buffer_store_dwordx2 {vr(AUG+4,2)}, v{vS+2}, {sr(SWS,4)}, s{sFLG} offen offset:512 sc1")
    e(f"s_cmp_lg_u32 s{sTYPE}, 0"); e("s_cbranch_scc1 K_NZ")
    e(f"v_mov_b32 v{AUG}, -1"); e(f"v_mov_b32 v{AUG+1}, -1")
    e(f"s_lshl_b32 s{sT0}, s{sC}, 4"); e(f"s_add_u32 s{sT0}, s{sT0}, s{sRB}"); e(f"s_lshl_b32 s{sT0}, s{sT0}, 9"); e(f"s_add_u32 s{sT0}, s{sT0}, {KVZ_OFF}")
    e(f"buffer_store_dwordx2 {vr(AUG,2)}, v{vS+2}, {sr(SWS,4)}, s{sT0} offen sc1")
    e.label("K_NZ")
    e(f"s_lshl_b32 s{sT0}, s{sW}, 7"); e(f"s_add_u32 s{sFLG}, s{sFLG}, s{sT0}")
    e(f"s_lshl_b32 s{sT0}, s{sROT}, 2"); e(f"s_add_u32 s{sT0}, s{sT0}, s{sW}"); e(f"s_and_b32 s{sT1}, s{sT0}, 15"); e(f"s_lshl_b32 s{sT1}, s{sT1}, 1")
    e(f"s_mul_i32 s{sROWO}, s{sT1}, s{sP16}")
    e(f"s_add_u32 s{sT0}, s{sT0}, 8"); e(f"s_and_b32 s{sT1}, s{sT0}, 15"); e(f"s_lshl_b32 s{sT1}, s{sT1}, 1")
    e(f"s_mul_i32 s{sJG}, s{sT1}, s{sP16}"); e(f"s_sub_u32 s{sJG}, s{sJG}, s{sROWO}"); e(f"s_sub_u32 s{sJG}, s{sJG}, s{sP16}")
    e(f"s_lshl_b32 s{sT4}, s{sW}, 11")
    sLB0 = sT4
    def guard(t):
        g = L("G"); return f"s_cbranch_vccz {g};;{t};;{g}:"
    def dma8(gd=False):
        l = []
        for i in range(4):
            jg, jl = (f"s{sJG}", "0x7c00") if i == 1 else (f"s{sP16}", "1024")
            l += [f"s_mov_b32 m0, s{sMA};;s_add_u32 s{sDB}, s{sDA}, 64;;buffer_load_dwordx4 v{vDMA}, {sr(SW,4)}, s{sDA} offen lds",
                  f"s_add_u32 m0, s{sMA}, 0x4000;;s_add_u32 s{sDA}, s{sDA}, {jg};;buffer_load_dwordx4 v{vDMA}, {sr(SW,4)}, s{sDB} offen lds;;s_add_u32 s{sMA}, s{sMA}, {jl}"]
        return [guard(t) for t in l] if gd else l
    e(f"s_mov_b32 s{sONES}, 0x3f803f80"); e(f"s_mov_b32 s{sLO}, 0x00003f80"); e(f"s_mov_b32 s{sHI}, 0x3f800000")
    e(f"s_mov_b32 s{sMASK}, 0xffff0000")
    e(f"v_lshlrev_b32 v{vS+2}, 9, v{vS+4}")
    e(f"v_bfe_u32 v{vS}, v{vL}, 2, 2"); e(f"v_lshl_add_u32 v{vS+2}, v{vS}, 6, v{vS+2}")
    e(f"v_bfe_u32 v{vCSW}, v{vL}, 4, 1"); e(f"v_lshl_add_u32 v{vS+2}, v{vCSW}, 5, v{vS+2}")
    e(f"v_lshl_add_u32 v{vS+2}, v{vS+5}, 3, v{vS+2}")
    e(f"s_xor_b32 s{sT3}, s{sRG}, s{sP}"); e(f"s_lshl_b32 s{sT1}, s{sP}, 14")
    for k in range(4):
        e(f"s_xor_b32 s{sT0}, s{sT3}, {k}"); e(f"s_lshl_b32 s{sT0}, s{sT0}, 10"); e(f"s_add_u32 s{sT0}, s{sT0}, s{sT1}")
        e(f"v_add_u32 v{vTR+k}, s{sT0}, v{vS+2}")
    e(f"v_and_b32 v{vS}, 1, v{vS}"); e(f"v_cmp_eq_u32 vcc, v{vS}, v{vCSW}"); e(f"v_mov_b32 v{vS}, s{sONES}")
    e(f"v_cmp_gt_u32 {sr(sLT16,2)}, 16, v{vS+3}")
    for j in range(4): e(f"v_cndmask_b32 v{SELC+j}, 0, v{vS}, vcc")
    e(f"v_xor_b32 v{vS}, v{vS+4}, v{vS+1}"); e(f"v_lshlrev_b32 v{vS}, 4, v{vS}")
    e(f"v_lshl_add_u32 v{vS}, v{vS+3}, 8, v{vS}")
    e(f"s_lshl_b32 s{sT0}, s{sT3}, 5"); e(f"v_xor_b32 v{vS}, s{sT0}, v{vS}")
    e(f"s_lshl_b32 s{sT0}, s{sRG}, 13"); e(f"s_add_u32 s{sT0}, s{sT0}, {YB + 0x8000}"); e(f"v_add_u32 v{vFR}, s{sT0}, v{vS}")
    for s in range(1, 8): e(f"v_xor_b32 v{vFR+s}, {32*s}, v{vFR}")
    e(f"s_lshl_b32 s{sT0}, s{sP}, 9"); e(f"s_add_u32 s{sT0}, s{sT0}, {CSX}")
    e(f"v_lshl_add_u32 v{vCSR}, v{vS+3}, 4, s{sT0}")
    e(f"s_lshl_b32 s{sT0}, s{sRG}, 2"); e(f"v_add_u32 v{vCSW}, s{sT0}, v{vCSR}")
    e(f"v_mov_b32 v{vQ}, 0"); e(f"v_mov_b32 v{vQ+1}, 0")
    def auxl(lbl):
        t = f"s_cmp_eq_u32 s{sTYPE}, 0;;s_cbranch_scc1 {lbl}Q"
        for i in range(4): t += f";;buffer_load_ushort v{vAUX+i}, v{vAL}, {sr(SAUX,4)}, s{sCOL+i} offen"
        t += f";;s_branch {lbl}D;;{lbl}Q:"
        for j in range(8):
            d = (j & 3) + 8 * (j >> 2)
            t += f";;buffer_load_ushort v{vAUX+j}, v{vAL}, {sr(SAUX,4)}, s{sAUXO} offen offset:{32*d}"
        t += f";;{lbl}D:"
        return t
    e.ext(sset(1))

    def wrd(s):
        b = WB + 4 * (s % NWB); o = 1024 * (s & 12) + 0x8000 * (s >> 4)
        return [f"ds_read_b64_tr_b16 {vr(b,2)}, v{vTR+(s&3)} offset:{o}", f"ds_read_b64_tr_b16 {vr(b+2,2)}, v{vTR+(s&3)} offset:{o+256}"]
    def csm(s):
        return f"{M16} {vr(CS,4)}, {vr(SELC,4)}, {vr(WB+4*(s%NWB),4)}, {'0' if s == 0 else vr(CS,4)}"
    XO = (0x8000, 0, 0x8000, 0x8000)
    def rd(s):
        return [f"ds_read_b128 {vr(XF+4*s,4)}, v{vFR+(s&7)} offset:{XO[s>>3]}"] + wrd(s)
    VM = {0: 6, 1: 6, 2: 10, 3: 8, 4: 63}
    def sync(k):
        l = [f"s_waitcnt vmcnt({VM[k]}) lgkmcnt(0)", "s_barrier"]
        st(f"sync{k}", l)
        if k == 1: l += [f"v_subrev_u32 v{vFR+t}, 0x8000, v{vFR+t}" for t in range(8)]
        if k == 3: l += [f"v_add_u32 v{vFR+t}, 0x8000, v{vFR+t}" for t in range(8)]
        return l
    G = []
    g0 = sync(0)
    for s_ in range(4): g0 += rd(s_)
    G.append(g0)
    for s_ in range(32):
        g = []
        if s_ % 8 == 4: g += sync(s_ // 8 + 1)
        if s_ + 4 < 32: g += rd(s_ + 4)
        if s_ % 8 < 4: g.append(f"s_waitcnt lgkmcnt(12)")
        d = EACC if s_ == 31 else ACC
        g.append(f"{MFMA} {vr(d,16)}, {vr(WB+4*(s_%NWB),4)}, {vr(XF+4*s_,4)}, {'0' if s_ == 0 else vr(ACC,16)}")
        if s_ % 4 == 0: g.append(csm(s_))
        if s_ % 2 == 0:
            g.append(f"{M16} {vr(RS,4)}, {vr(SELC,4)}, {vr(XF+4*s_,4)}, {'0' if s_ == 0 else vr(RS,4)}")
            for r in range(4): g.append(f"v_dot2c_f32_bf16 v{vQ+(r&1)}, v{XF+4*s_+r}, v{XF+4*s_+r}")
        G.append(g)
    d8 = dma8()
    e.ext(interleave(G[0:5], sset(2), 0, 4))
    e.ext(interleave(G[5:13], sset(3) + [auxl("K_AUX")], 0, 6))
    e(f"s_add_u32 s{sDA}, s{sROWO}, s{sCOL+1}"); e(f"s_add_u32 s{sMA}, s{sLB0}, {YB}")
    e.ext(interleave(G[13:21], d8[:4], 0, 4))
    e.ext(interleave(G[21:], d8[4:], 0, 4))
    e("s_nop 2")
    e(f"v_add_f32 v{vQ}, v{vQ}, v{vQ+1}")
    e(f"v_and_b32 v{vS+3}, 31, v{vL}")
    e(f"v_mov_b32 v{vQ+1}, v{vQ}")
    e(f"s_lshl_b32 s{sT0}, s{sW}, 8"); e(f"s_add_u32 s{sT0}, s{sT0}, {STAT}")
    e(f"v_lshl_add_u32 v{vS+2}, v{vS+3}, 3, s{sT0}")
    e(f"v_permlane32_swap_b32 v{vQ}, v{vQ+1}")
    e(f"v_add_f32 v{RS+1}, v{vQ}, v{vQ+1}")
    e(f"ds_write_b32 v{vCSW}, v{CS}")
    e(f"ds_write_b64 v{vS+2}, {vr(RS,2)}")
    e(f"v_mov_b32 v{vS+4}, {GSY:#x}"); e(f"ds_write_b32 v{vS+4}, v{AUG+4}")
    e(f"v_xor_b32 v{vS+2}, 1024, v{vS+2}")
    for k in range(4): e(f"v_xor_b32 v{vTR+k}, 0x10000, v{vTR+k}")
    e(f"v_xor_b32 v{vCSW}, 1024, v{vCSW}")
    e("s_waitcnt vmcnt(0) lgkmcnt(0)")
    e(f"s_cmp_lg_u32 s{sW}, 7"); e("s_cbranch_scc1 K_NA")
    e(f"s_and_b32 s{sT0}, s2, 1"); e(f"s_lshl_b32 s{sT0}, s{sT0}, 7")
    e(f"v_mov_b32 v{vDUM}, 1")
    e("s_mov_b64 exec, 1")
    e(f"buffer_atomic_add v{vDUM}, v{AUG+4}, {sr(SDBG,4)}, s{sT0} offen sc1")
    e("s_mov_b64 exec, -1")
    e.label("K_NA")
    e("s_barrier")
    st("r0end")
    e(f"ds_read_b64 {vr(vS,2)}, v{vS+2}")
    e(f"v_cmp_gt_u32 vcc, 32, v{vL}")
    e(f"s_cmp_eq_u32 s{sW}, 7"); e(f"s_cselect_b32 s{sIT}, 1, 64")
    e("s_waitcnt lgkmcnt(0)")
    a, b = vS, vS + 1
    e(f"v_add_f32 v{a}, v{a}, v{RS}"); e(f"v_add_f32 v{b}, v{b}, v{RS+1}")
    e(f"v_mul_f32 v{a}, {f2u(-1.0/512):#x}, v{a}"); e(f"v_mul_f32 v{b}, {f2u(1.0/512):#x}, v{b}")
    e(f"v_fma_f32 v{b}, -v{a}, v{a}, v{b}"); e(f"v_cvt_pk_bf16_f32 v{AUG+2}, v{a}, v{a}")
    e(f"v_max_f32 v{b}, 0, v{b}")
    e(f"v_cvt_pk_bf16_f32 v{b}, v{b}, v{b}"); e(f"v_and_b32 v{b}, s{sMASK}, v{b}")
    e(f"v_add_f32 v{b}, {f2u(1e-5):#x}, v{b}"); e(f"v_cvt_pk_bf16_f32 v{b}, v{b}, v{b}")
    e(f"v_and_b32 v{b}, s{sMASK}, v{b}"); e(f"v_sqrt_f32 v{b}, v{b}")
    e(f"v_cndmask_b32 v{AUG+2}, 0, v{AUG+2}, vcc")
    e(f"v_cvt_pk_bf16_f32 v{AUG+3}, v{a}, v{b}")
    e(f"v_and_b32 v{b}, s{sMASK}, v{AUG+3}")
    e(f"v_rcp_f32 v{a}, v{b}")
    e(f"v_cndmask_b32 v{AUG+3}, 0, v{AUG+3}, vcc")

    APOLL = f"v_lshlrev_b32 v{vS+4}, 7, v{vL};;s_mov_b64 exec, 3;;buffer_load_dword v{vS+5}, v{vS+4}, {sr(SDBG,4)}, 0 offen sc1;;s_mov_b64 exec, -1"
    def apoll7():
        l2 = L("X")
        e(f"s_cmp_lg_u32 s{sW}, 7"); e(f"s_cbranch_scc1 {l2}")
        e(APOLL)
        e.label(l2)
    def r2_check():
        l2 = L("X")
        e(f"s_cmp_lg_u32 s{sW}, 7"); e(f"s_cbranch_scc1 {l2}")
        check([(APOLL, vS + 5, 3, 128)])
        e.label(l2)
    def publish(lev, vt):
        return (f"v_mov_b32 v{vt}, {lev};;v_lshlrev_b32 v{vDUM}, 2, v{vL};;s_mov_b32 exec_hi, 0;;"
                f"buffer_store_dword v{vt}, v{vDUM}, {sr(SWS,4)}, s{sFLG} offen sc1;;s_mov_b32 exec_hi, -1")
    def midpub(n, lev, vt):
        a_, b_ = L("P"), L("P")
        return f"s_cbranch_vccz {a_};;s_waitcnt vmcnt({n});;s_branch {b_};;{a_}:;;s_waitcnt vmcnt(0);;{b_}:;;" + publish(lev, vt)
    def mgroups(swap=False, pre=()):
        PF = NWB - 1
        G = []
        g0 = [f"ds_read_b128 {vr(PK,4)}, v{vCSR}"] + list(pre)
        for s in range(PF): g0 += wrd(s)
        G.append(g0)
        for s in range(32):
            g = []
            if s + PF < 32: g += wrd(s + PF)
            g.append(f"s_waitcnt lgkmcnt({2 * min(PF, 31 - s)})")
            w, x = vr(WB + 4 * (s % NWB), 4), vr(XF + 4 * s, 4)
            a, b = (x, w) if swap else (w, x)
            d = EACC if s == 31 else ACC
            g.append(f"{MFMA} {vr(d,16)}, {a}, {b}, {'0' if s == 0 else vr(ACC,16)}")
            if s % 4 == 0: g.append(csm(s))
            G.append(g)
        return G
    def aug(bias=None, swap=False):
        l = Lst()
        c, t = PK, PK + 1
        l(f"v_add_f32 v{PK}, v{PK}, v{PK+1}"); l(f"v_add_f32 v{PK+2}, v{PK+2}, v{PK+3}"); l(f"v_add_f32 v{c}, v{PK}, v{PK+2}")
        l(f"v_cvt_pk_bf16_f32 v{t}, v{c}, v{c}"); l(f"v_and_b32 v{t}, s{sMASK}, v{t}"); l(f"v_sub_f32 v{t}, v{c}, v{t}")
        l(f"v_cvt_pk_bf16_f32 v{AUG}, v{c}, v{t}"); l(f"v_and_b32 v{c}, s{sMASK}, v{AUG}"); l(f"v_sub_f32 v{t}, v{t}, v{c}")
        l(f"v_cvt_pk_bf16_f32 v{AUG+1}, v{t}, {'v%d' % bias if bias is not None else '0'}")
        a, b = (vr(AUG+2,4), vr(AUG,4)) if swap else (vr(AUG,4), vr(AUG+2,4))
        l(f"s_nop 1;;{MFMA} {vr(EACC,16)}, {a}, {b}, {vr(EACC,16)}")
        for i in range(6): l("s_nop 1")
        return l
    def round_toggle():
        e(f"ds_write_b32 v{vCSW}, v{CS}")
        for k in range(4): e(f"v_xor_b32 v{vTR+k}, 0x10000, v{vTR+k}")
        e(f"v_xor_b32 v{vCSW}, 1024, v{vCSW}"); e(f"v_xor_b32 v{vCSR}, 1024, v{vCSR}")

    NL = 8
    sA0, sA1, sWK, sLB, sP0, sP1, sKV, sWO_, sXO, sXO2, sPF, sCNT = 30, 33, 43, 48, 51, 52, 53, 54, 55, 56, 57, 76
    SW2, SWO = SW, SAUX
    vTR0, vTR1, vXO, vPA = 4, 5, 6, 7
    ND = 128
    order = [0, 1, 2, 3, 16, 17, 18, 19, 4, 5, 6, 7, 20, 21, 22, 23, 8, 9, 10, 11, 24, 25, 26, 27, 12, 13, 14, 15]
    def wdma(i):
        lo = 2048 * (i % NL)
        S, base, off = (SW2, sWK, order[i] * 16384) if i < 28 else (SWO, sWO_, (i - 28) * 16384)
        return [f"s_add_u32 m0, s{sLB}, {lo + 1024*k};;s_add_u32 s{sT0}, s{base}, {off + 8192*k};;buffer_load_dwordx4 v{vDMA}, {sr(S,4)}, s{sT0} offen lds" for k in range(2)]
    def p2_setup():
        e(f"s_cmp_lg_u32 s{sISC}, 0"); e("s_cselect_b64 vcc, -1, 0")
        srd(e, SW2, 96, 97, 1792 * 1024)
        srd(e, SWO, 98, 99, 512 * 1024)
        e(f"s_lshr_b32 s{sT1}, s{sIDX}, 2"); e(f"s_lshl_b32 s{sT1}, s{sT1}, 7")
        e(f"s_mul_i32 s{sWK}, s{sRG}, {448*1024}"); e(f"s_add_u32 s{sWK}, s{sWK}, s{sT1}")
        e(f"s_lshl_b32 s{sWO_}, s{sRG}, 17"); e(f"s_add_u32 s{sWO_}, s{sWO_}, s{sT1}")
        e(f"s_lshl_b32 s{sLB}, s{sRG}, 14")
        e(f"s_lshr_b32 s{sT1}, s{sC}, 2"); e(f"s_lshl_b32 s{sP1}, s{sRB}, 1"); e(f"s_add_u32 s{sP1}, s{sP1}, s{sT1}")
        e(f"s_mul_i32 s{sA0}, s{sP1}, {2*114688}"); e(f"s_mul_i32 s{sT0}, s{sRG}, {28*1024}")
        e(f"s_add_u32 s{sA0}, s{sA0}, s{sT0}"); e(f"s_add_u32 s{sA1}, s{sA0}, 114688")
        e(f"v_lshrrev_b32 v{vXO}, 3, v{vL}"); e(f"v_lshlrev_b32 v{vXO}, 10, v{vXO}")
        e(f"v_and_b32 v{vTR0}, 7, v{vL}"); e(f"v_bfe_u32 v{vTR1}, v{vL}, 4, 1"); e(f"v_lshlrev_b32 v{vTR1}, 2, v{vTR1}")
        e(f"v_xor_b32 v{vTR1}, v{vTR0}, v{vTR1}"); e(f"v_lshl_add_u32 v{vDMA}, v{vTR1}, 4, v{vXO}")
        e(f"v_lshl_add_u32 v{vXO}, v{vTR0}, 4, v{vXO}")
        e(f"v_lshrrev_b32 v{vPA}, 1, v{vL}"); e(f"v_lshlrev_b32 v{vPA}, 9, v{vPA}")
        e(f"v_and_b32 v{vTR0}, 1, v{vL}"); e(f"v_lshl_add_u32 v{vPA}, v{vTR0}, 7, v{vPA}")
        e(f"s_lshl_b32 s{sPF}, s{sRT}, 11"); e(f"s_lshr_b32 s{sT0}, s{sC}, 2"); e(f"s_lshl_b32 s{sT0}, s{sT0}, 8")
        e(f"s_add_u32 s{sPF}, s{sPF}, s{sT0}"); e(f"s_add_u32 s{sPF}, s{sPF}, {FLG_OFF + 128*1024}")
    FPOLL = f"s_mov_b64 exec, 0xff;;buffer_load_dword v{ND}, v{vPA}, {sr(SWS,4)}, s{sPF} offen sc1;;s_mov_b64 exec, -1"
    def checkt(items, spin=SPIN):
        top, ok = L("C"), L("C")
        t = [f"s_mov_b32 s{sCNT}, 0", f"{top}:"]
        for k, (pt, reg, msk, thr) in enumerate(items):
            t += [f"s_movk_i32 s{sT1}, {thr}", f"v_cmp_gt_u32 s[62:63], s{sT1}, v{reg}", "s_nop 0"]
            if k == 0: t.append(f"s_and_b32 s{sT0}, s62, {msk:#x}")
            else: t += [f"s_and_b32 s{sT1}, s62, {msk:#x}", f"s_or_b32 s{sT0}, s{sT0}, s{sT1}"]
        t += [f"s_cbranch_scc0 {ok}", "s_sleep 8"]
        t += [pt for (pt, reg, msk, thr) in items]
        t += [f"s_add_u32 s{sCNT}, s{sCNT}, 1", f"s_cmp_lt_u32 s{sCNT}, {spin}", "s_waitcnt vmcnt(0)", f"s_cbranch_scc1 {top}", f"{ok}:"]
        return ";;".join(t)
    def check(items): e(checkt(items))
    RING, NU, NA = 160, 12, OPT.get("na", 8)
    unit = [i % NU if i < 28 else (30 + 3 * (i - 28)) % NU for i in range(36)]
    ASC = "" if OPT.get("x_plain") else "sc1"
    def aload(i):
        R = RING + 8 * unit[i]; ks = order[i]; t = ""
        if i % 4 == 0: t = f"s_add_u32 s{sT3}, s{sA0}, {1024*ks};;s_add_u32 s{sT4}, s{sA1}, {1024*ks};;"
        return [t + f"buffer_load_dwordx4 {vr(R,4)}, v{vL16}, {sr(SWS,4)}, s{sT3} offen offset:{1024*(ks&3)} {ASC}",
                f"buffer_load_dwordx4 {vr(R+4,4)}, v{vL16}, {sr(SWS,4)}, s{sT4} offen offset:{1024*(ks&3)} {ASC}"]
    def tail(E, lev, vt, extra=()):
        l1 = [guard(FPOLL)]
        for i in range(NL): l1 += [guard(t) for t in wdma(i)]
        if lev is not None: l1.append(midpub(2 * NL, lev, vt))
        l1.append(guard(f"s_waitcnt vmcnt({2*NL + (lev is not None)});;" + checkt([(FPOLL, ND, 0xff, 1)])))
        l2 = []
        for i in range(NA): l2 += [guard(t) for t in aload(i)]
        E = list(E)
        for fr, it in sorted(extra, reverse=True): E.insert(int(len(E) * fr), it)
        h = int(len(E) * 0.45)
        return merge(E[:h], l1) + merge(E[h:], l2, 0.9)

    e(f"s_cmp_eq_u32 s{sTYPE}, 0")
    e("s_cbranch_scc1 K_QKV")
    vSS, vPB = vAUX + 8, vAUX + 9
    k0 = -2.0 * math.sqrt(2.0 / math.pi) * math.log2(math.e)
    e(f"v_mov_b32 v{vSS}, v{vS+1}")
    e(f"v_mul_f32 v{vC1}, {f2u(k0):#x}, v{vS}")
    e(f"v_mul_f32 v{vC0}, v{vS}, v{vS}"); e(f"v_mul_f32 v{vC0}, v{vC0}, v{vC1}"); e(f"v_mul_f32 v{vC0}, {f2u(0.044715):#x}, v{vC0}")
    for i in range(4): e(f"v_lshlrev_b32 v{vAUX+i}, 16, v{vAUX+i}")
    e(f"s_mul_i32 s{sOUT}, s{sRT}, 114688"); e(f"s_lshl_b32 s{sT0}, s{sP}, 11"); e(f"s_add_u32 s{sOUT}, s{sOUT}, s{sT0}")
    e(f"s_mov_b32 s{sSLOT}, 0"); e(f"s_mov_b32 s{sLEV}, 0")
    e("s_mov_b64 vcc, -1")
    def gelu():
        l = aug(bias=vAUX)
        for half in range(2):
            rng = range(8 * half, 8 * half + 8)
            for i in rng: l(f"v_mul_f32 v{TMP+i}, v{EACC+i}, v{EACC+i}")
            for i in rng: l(f"v_fma_f32 v{TMP+i}, v{TMP+i}, v{vC0}, v{vC1}")
            for i in rng: l(f"v_mul_f32 v{TMP+i}, v{EACC+i}, v{TMP+i}")
            for i in rng: l(f"v_exp_f32 v{TMP+i}, v{TMP+i}")
            for i in rng: l(f"v_fma_f32 v{TMP+i}, v{TMP+i}, v{vSS}, v{vSS}")
            for i in rng: l(f"v_rcp_f32 v{TMP+i}, v{TMP+i}")
            for i in rng: l(f"v_mul_f32 v{TMP+i}, v{EACC+i}, v{TMP+i}")
            for i in range(4): l(f"v_cvt_pk_bf16_f32 v{PK+8+4*half+i}, v{TMP+8*half+2*i}, v{TMP+8*half+2*i+1}")
            l(f"buffer_store_dwordx4 {vr(PK+8+4*half,4)}, v{vL16}, {sr(SWS,4)}, s{sST} offen offset:{1024*half} sc1")
        return l
    e.label("K_FLOOP")
    e(f"s_lshl_b32 s{sST}, s{sCOL}, 5"); e(f"s_add_u32 s{sST}, s{sST}, s{sOUT}")
    e(f"s_add_u32 s{sDA}, s{sROWO}, s{sCOL+2}"); e(f"s_add_u32 s{sMA}, s{sLB0}, s{sSLOT}")
    mp = f"s_cmp_eq_u32 s{sLEV}, 0;;s_cbranch_scc1 K_FNP;;" + midpub(8, f"s{sLEV}", vPB) + f";;s_cmp_lg_u32 s{sLEV}, s{sIT};;s_cbranch_scc1 K_FNP;;" + APOLL + ";;K_FNP:"
    e.ext(interleave(mgroups(), merge(gelu(), dma8(True) + [mp], 0.5), 1, 31))
    e(f"s_mov_b32 s{sCOL}, s{sCOL+1}"); e(f"s_mov_b32 s{sCOL+1}, s{sCOL+2}"); e(f"s_mov_b32 s{sCOL+2}, s{sCOL+3}")
    e(f"v_mov_b32 v{vAUX}, v{vAUX+1}"); e(f"v_mov_b32 v{vAUX+1}, v{vAUX+2}"); e(f"v_mov_b32 v{vAUX+2}, v{vAUX+3}")
    e(f"s_xor_b32 s{sSLOT}, s{sSLOT}, 0x10000")
    e(f"s_add_u32 s{sLEV}, s{sLEV}, 1")
    round_toggle()
    e(f"s_cmp_eq_u32 s{sLEV}, 3"); e("s_cbranch_scc1 K_FR3")
    e(f"s_waitcnt vmcnt(2) lgkmcnt(0)")
    e(f"s_cmp_eq_u32 s{sLEV}, 1"); e("s_cbranch_scc1 K_FNX")
    r2_check()
    e.label("K_FNX")
    e("s_barrier")
    if OPT["stamps"] and "r1end" in SP:
        e(f"s_cmp_lg_u32 s{sLEV}, 1"); e("s_cbranch_scc1 K_FS1"); st("r1end"); e.label("K_FS1")
    e(f"s_cmp_eq_u32 s{sLEV}, 1"); e("s_cbranch_scc1 K_FLOOP")
    st("r2end")
    e("s_mov_b64 vcc, 0")
    e(f"s_cmp_eq_u32 s{sISC}, 0"); e("s_cbranch_scc1 K_FLOOP")
    e("s_branch K_FTAIL")
    e.label("K_FR3")
    e(f"v_mov_b32 v{vS}, {GSY:#x}"); e(f"v_mov_b32 v{vS+1}, 1")
    e("s_waitcnt lgkmcnt(0)")
    e("s_mov_b64 exec, 1"); e(f"ds_add_u32 v{vS}, v{vS+1}"); e("s_mov_b64 exec, -1")
    e.label("K_FSP")
    e(f"ds_read_b32 v{vS+1}, v{vS}")
    e("s_waitcnt lgkmcnt(0)")
    e(f"v_readfirstlane_b32 s{sT0}, v{vS+1}")
    e("s_nop 3")
    e(f"s_cmp_lt_u32 s{sT0}, 4"); e("s_cbranch_scc1 K_FSP")
    e.label("K_FTAIL")
    e(f"ds_read_b128 {vr(PK,4)}, v{vCSR}")
    e(f"s_lshl_b32 s{sST}, s{sCOL}, 5"); e(f"s_add_u32 s{sST}, s{sST}, s{sOUT}")
    p2_setup()
    e("s_waitcnt lgkmcnt(0)")
    e.ext(tail(gelu(), f"s{sLEV}", vPB))
    e("s_cbranch_vccnz K_P2")
    e("s_waitcnt vmcnt(0)")
    e(publish(4, vPB))
    e("s_branch K_FIN")

    e.label("K_QKV")
    WT, SEL, PHT0 = vAUX, vAUX + 4, vAUX + 4
    e(f"v_mul_f32 v{vC0}, {f2u(math.log2(math.e)):#x}, v{vS}")
    e(f"s_lshl_b32 s{sT0}, s{sW}, 7"); e(f"s_add_u32 s{sST}, s{sT0}, {RVO}")
    e(f"v_lshl_add_u32 v{vS+1}, v{vS+3}, 2, s{sST}")
    e(f"ds_write_b32 v{vS+1}, v{vS}")
    e(f"v_lshrrev_b32 v{vC1}, 5, v{vL}"); e(f"v_lshl_add_u32 v{vC1}, v{vC1}, 4, s{sST}")
    def qconst():
        l = Lst()
        for j in range(4): l(f"v_lshl_or_b32 v{WT+j}, v{vAUX+2*j+1}, 16, v{vAUX+2*j}")
        l(f"v_and_b32 v{vS+1}, 15, v{vL}"); l(f"v_lshrrev_b32 v{vS+4}, 5, v{vL}")
        l(f"v_lshlrev_b32 v{vS+4}, 2, v{vS+4}"); l(f"v_sub_u32 v{vS+4}, v{vS+1}, v{vS+4}")
        l(f"v_mov_b32 v{vS+2}, s{sLO}"); l(f"v_mov_b32 v{vS+3}, s{sHI}")
        for t, f0 in enumerate((0, 2, 8, 10)):
            l(f"v_cmp_eq_u32 vcc, {f0}, v{vS+4};;v_cmp_eq_u32 s[62:63], {f0+1}, v{vS+4};;s_nop 0;;"
              f"v_cndmask_b32 v{SEL+t}, 0, v{vS+2}, vcc;;v_cndmask_b32 v{SEL+t}, v{SEL+t}, v{vS+3}, s[62:63]")
        return l
    def softmax(isk):
        l = aug()
        A1, A2 = TMP, TMP + 4
        for j in range(4):
            l(f"v_cndmask_b32 v{A1+j}, 0, v{WT+j}, {sr(sLT16,2)}"); l(f"v_cndmask_b32 v{A2+j}, v{WT+j}, 0, {sr(sLT16,2)}")
        for i in range(8): l(f"v_cvt_pk_bf16_f32 v{PK+i}, v{EACC+2*i}, v{EACC+2*i+1}")
        l(f"s_nop 1;;{MFMA} {vr(EACC,16)}, {vr(A1,4)}, {vr(PK,4)}, 0;;{MFMA} {vr(EACC,16)}, {vr(A2,4)}, {vr(PK+4,4)}, {vr(EACC,16)}")
        for i in range(6): l("s_nop 1")
        for a in range(2):
            P = EACC + 8 * a
            mx, mn = vS, vS + 1
            l(f"v_max3_f32 v{mx}, v{P}, v{P+1}, v{P+2}"); l(f"v_max3_f32 v{mn}, -v{P}, -v{P+1}, -v{P+2}")
            l(f"v_max3_f32 v{mx}, v{mx}, v{P+3}, v{P+4}"); l(f"v_max3_f32 v{mn}, v{mn}, -v{P+3}, -v{P+4}")
            l(f"v_max3_f32 v{mx}, v{mx}, v{P+5}, v{P+6}"); l(f"v_max3_f32 v{mn}, v{mn}, -v{P+5}, -v{P+6}")
            l(f"v_max_f32 v{mx}, v{mx}, v{P+7}"); l(f"v_max_f32_e64 v{mn}, v{mn}, -v{P+7}")
            l("s_nop 1"); l(f"v_permlane32_swap_b32 v{mx}, v{mn}")
            l(f"v_max_f32 v{mx}, v{mx}, v{mn}")
            l(f"v_mul_f32_e64 v{mx}, -v{mx}, v{vC0}")
            l(f"v_mov_b32 v{mn}, v{mx}")
            l("s_nop 1"); l(f"v_permlane32_swap_b32 v{mx}, v{mn}")
            for j in range(8): l(f"v_fma_f32 v{TMP+j}, v{P+j}, v{vC0}, v{mx}")
            for j in range(8): l(f"v_fma_f32 v{TMP+8+j}, -v{P+j}, v{vC0}, v{mn}")
            for j in range(16): l(f"v_exp_f32 v{TMP+j}, v{TMP+j}")
            s0, s1, s2, s3 = vS + 2, vS + 3, vS + 4, vS + 5
            l(f"v_add_f32 v{s0}, v{TMP}, v{TMP+1}"); l(f"v_add_f32 v{s1}, v{TMP+8}, v{TMP+9}")
            l(f"v_add_f32 v{s2}, v{TMP+2}, v{TMP+3}"); l(f"v_add_f32 v{s3}, v{TMP+10}, v{TMP+11}")
            for j in (4, 6):
                l(f"v_add_f32 v{s0}, v{s0}, v{TMP+j}"); l(f"v_add_f32 v{s1}, v{s1}, v{TMP+8+j}")
                l(f"v_add_f32 v{s2}, v{s2}, v{TMP+j+1}"); l(f"v_add_f32 v{s3}, v{s3}, v{TMP+8+j+1}")
            l(f"v_add_f32 v{s0}, v{s0}, v{s2}"); l(f"v_add_f32 v{s1}, v{s1}, v{s3}")
            l("s_nop 1"); l(f"v_permlane32_swap_b32 v{s0}, v{s1}")
            l(f"v_add_f32 v{s0}, v{s0}, v{s1}")
            l(f"v_rcp_f32 v{s0}, v{s0}")
            l("s_nop 0"); l(f"v_mov_b32 v{s1}, v{s0}")
            l("s_nop 1"); l(f"v_permlane32_swap_b32 v{s0}, v{s1}")
            for j in range(8): l(f"v_mul_f32 v{TMP+j}, v{TMP+j}, v{s0}")
            for j in range(8): l(f"v_mul_f32 v{TMP+8+j}, v{TMP+8+j}, v{s1}")
            for j in range(8): l(f"v_cvt_pk_bf16_f32 v{PK+8*a+j}, v{TMP+2*j}, v{TMP+2*j+1}")
            if not isk:
                for i in range(2):
                    l(f"buffer_store_dwordx4 {vr(PK+8*a+4*i,4)}, v{vL16}, {sr(SWS,4)}, s{sOUT} offen offset:{2048*a+1024*i} sc1")
        if isk:
            SP_, SM = EACC, EACC + 4
            for j in range(4):
                l(f"v_cndmask_b32 v{SP_+j}, 0, v{SEL+j}, {sr(sLT16,2)}"); l(f"v_cndmask_b32 v{SM+j}, v{SEL+j}, 0, {sr(sLT16,2)}")
            for a in range(2):
                l(f"s_nop 1;;{MFMA} {vr(TMP,16)}, {vr(PK+8*a,4)}, {vr(SP_,4)}, 0;;{MFMA} {vr(TMP,16)}, {vr(PK+8*a+4,4)}, {vr(SM,4)}, {vr(TMP,16)}")
                for i in range(6): l("s_nop 1")
                dst = PHT0 if a == 0 else PK + 8
                for j in range(8): l(f"v_cvt_pk_bf16_f32 v{dst+j}, v{TMP+2*j}, v{TMP+2*j+1}")
        return l
    def vepi():
        l = aug(swap=True)
        l(f"v_mov_b32 v{vS}, s{sONES}")
        for i in range(16): l(f"v_mul_f32 v{EACC+i}, v{EACC+i}, v{TMP+i}")
        for i in range(8): l(f"v_cvt_pk_bf16_f32 v{PK+i}, v{EACC+2*i}, v{EACC+2*i+1}")
        for i in range(8):
            l(f"v_cndmask_b32 v{TMP+i}, v{vS}, v{PK+i}, {sr(sLT16,2)}")
            l(f"v_cndmask_b32 v{TMP+8+i}, v{PK+i}, v{vS}, {sr(sLT16,2)}")
        PHT = (PHT0, PK + 8)
        for a in range(2):
            l(f"s_nop 1;;{MFMA} {vr(EACC,16)}, {vr(PHT[a],4)}, {vr(TMP+8*a,4)}, 0;;{MFMA} {vr(EACC,16)}, {vr(PHT[a]+4,4)}, {vr(TMP+8*a+4,4)}, {vr(EACC,16)}")
            for i in range(6): l("s_nop 1")
            for q in range(4): l(f"ds_write_b128 v{vS+1}, {vr(EACC+4*q,4)} offset:{4096*a + 1024*q}")
            l("s_nop 3")
        return l
    e(f"s_add_u32 s{sDA}, s{sROWO}, s{sCOL+2}"); e(f"s_mov_b32 s{sMA}, s{sLB0}")
    tch = (f"s_cmp_ge_u32 s{sW}, 4;;s_cbranch_scc1 K_NT;;s_lshl_b32 s{sT2}, s{sRB}, 3;;s_add_u32 s{sT2}, s{sT2}, s{sC};;s_lshl_b32 s{sT2}, s{sT2}, 1;;"
           f"s_and_b32 s{sT0}, s{sW}, 1;;s_add_u32 s{sT2}, s{sT2}, s{sT0};;s_cmp_lt_u32 s{sW}, 2;;s_cselect_b64 {sr(SAUX,2)}, s[96:97], s[98:99];;"
           f"s_mov_b32 s{sT0}, {1792*1024};;s_cselect_b32 s{SAUX+2}, s{sT0}, {512*1024};;s_movk_i32 s{sT0}, 7168;;s_cselect_b32 s{sT0}, s{sT0}, 2048;;"
           f"s_cselect_b32 s{sT1}, 56, 16;;s_mul_i32 s{sT0}, s{sT0}, s{sT2};;v_lshlrev_b32 v{vDUM}, 7, v{vL};;s_bfm_b64 exec, s{sT1}, 0;;"
           f"buffer_load_dword v{vDUM}, v{vDUM}, {sr(SAUX,4)}, s{sT0} offen;;s_mov_b64 exec, -1;;K_NT:")
    e.ext(interleave(mgroups(swap=True), merge(qconst() + softmax(True), dma8() + [tch], 0.35), 1, 31))
    round_toggle()
    e("s_waitcnt vmcnt(0)")
    apoll7()
    e(f"s_lshl_b32 s{sT0}, s{sP}, 15"); e(f"s_add_u32 s{sT0}, s{sT0}, {YB}")
    e(f"s_lshl_b32 s{sT1}, s{sRG}, 13"); e(f"s_add_u32 s{sT1}, s{sT1}, s{sT0}")
    e(f"v_add_u32 v{vS+1}, s{sT1}, v{vL16}")
    e(f"s_lshl_b32 s{sT1}, s{sRG}, 10"); e(f"s_add_u32 s{sT1}, s{sT1}, s{sT0}")
    e(f"v_add_u32 v{vS+2}, s{sT1}, v{vL16}")
    e(f"s_lshl_b32 s{sOUT}, s{sRB}, 17"); e(f"s_lshl_b32 s{sT0}, s{sC}, 14"); e(f"s_add_u32 s{sOUT}, s{sOUT}, s{sT0}")
    e(f"s_lshl_b32 s{sT0}, s{sP}, 13"); e(f"s_add_u32 s{sOUT}, s{sOUT}, s{sT0}")
    e(f"s_lshl_b32 s{sT0}, s{sRG}, 10"); e(f"s_add_u32 s{sOUT}, s{sOUT}, s{sT0}"); e(f"s_add_u32 s{sOUT}, s{sOUT}, {KVP_OFF}")
    e(f"s_add_u32 s{sT2}, s{sOUT}, 4096")
    e(f"v_xor_b32 v{vS+3}, 256, v{vL16}")
    e("s_waitcnt lgkmcnt(0)"); e("s_barrier")
    st("r1end")
    MG = mgroups(pre=[f"ds_read_b128 {vr(TMP+4*q,4)}, v{vC1} offset:{32*q}" for q in range(4)])
    e.ext(interleave(MG[:15], vepi(), 1, 14))
    e("s_waitcnt lgkmcnt(0)"); e("s_barrier")
    for a in range(2):
        for w in range(4):
            e(f"ds_read_b128 {vr(TMP+16*a+4*w,4)}, v{vS+2} offset:{8192*w + 4096*a}")
    kr = Lst()
    for a in range(2):
        B = TMP + 16 * a
        for j in range(4): kr(f"v_add_f32 v{B+j}, v{B+j}, v{B+4+j}")
        for j in range(4): kr(f"v_add_f32 v{B+8+j}, v{B+8+j}, v{B+12+j}")
        for j in range(4): kr(f"v_add_f32 v{B+j}, v{B+j}, v{B+8+j}")
        if a == 0: kr(f"buffer_store_dwordx4 {vr(B,4)}, v{vL16}, {sr(SWS,4)}, s{sOUT} offen sc1")
        else:      kr(f"buffer_store_dwordx4 {vr(B,4)}, v{vS+3}, {sr(SWS,4)}, s{sT2} offen sc1")
    e.ext(interleave(MG[15:], kr, 4, 8))
    round_toggle()
    e("s_waitcnt vmcnt(2) lgkmcnt(0)")
    r2_check()
    e("s_barrier")
    st("r2end")
    e(f"ds_read_b128 {vr(PK,4)}, v{vCSR}")
    p2_setup()
    e(f"s_lshl_b32 s{sOUT}, s{sRT}, 16"); e(f"s_lshl_b32 s{sT0}, s{sC}, 13"); e(f"s_add_u32 s{sOUT}, s{sOUT}, s{sT0}")
    e(f"s_lshl_b32 s{sT0}, s{sP}, 12"); e(f"s_add_u32 s{sOUT}, s{sOUT}, s{sT0}"); e(f"s_add_u32 s{sOUT}, s{sOUT}, {PQ_OFF}")
    RED, sU, sRED = 160, sA0, sST
    vRS, vRD = vTR0, vTR1
    e(f"s_lshl_b32 s{sRED}, s{sISC}, 2"); e(f"s_add_u32 s{sRED}, s{sRED}, s{sRG}")
    e(f"s_cmp_ge_u32 s{sRED}, 2"); e("s_cbranch_scc1 K_QNR")
    e(f"s_lshl_b32 s{sU}, s{sC}, 4"); e(f"s_add_u32 s{sU}, s{sU}, s{sRB}"); e(f"s_lshl_b32 s{sU}, s{sU}, 1"); e(f"s_add_u32 s{sU}, s{sU}, s{sRG}")
    e(f"v_lshrrev_b32 v{vPA}, 1, v{vL}"); e(f"v_lshlrev_b32 v{vPA}, 13, v{vPA}")
    e(f"v_and_b32 v{vS}, 1, v{vL}"); e(f"v_lshl_add_u32 v{vPA}, v{vS}, 7, v{vPA}")
    e(f"s_lshl_b32 s{sPF}, s{sC}, 10"); e(f"s_and_b32 s{sT0}, s{sRB}, 8"); e(f"s_lshl_b32 s{sT0}, s{sT0}, 6"); e(f"s_add_u32 s{sPF}, s{sPF}, s{sT0}")
    e(f"s_and_b32 s{sT0}, s{sU}, 4"); e(f"s_lshl_b32 s{sT0}, s{sT0}, 6"); e(f"s_add_u32 s{sPF}, s{sPF}, s{sT0}"); e(f"s_add_u32 s{sPF}, s{sPF}, {FLG_OFF}")
    e(f"v_lshrrev_b32 v{vS+2}, 4, v{vL}"); e(f"v_and_b32 v{vS+3}, 15, v{vL}"); e(f"v_lshlrev_b32 v{vS+3}, 4, v{vS+3}")
    e(f"v_lshl_add_u32 v{vRS}, v{vS+2}, 17, v{vS+3}")
    e(f"v_lshl_add_u32 v{vRD}, v{vS+2}, 2, v{vS+3}")
    e.label("K_QNR")
    KPOLL = f"s_mov_b32 exec_hi, 0;;buffer_load_dword v{ND}, v{vPA}, {sr(SWS,4)}, s{sPF} offen sc1;;s_mov_b32 exec_hi, -1"
    def rguard(t):
        g = L("R"); return f"s_cmp_ge_u32 s{sRED}, 2;;s_cbranch_scc1 {g};;{t};;{g}:"
    k2 = "s_waitcnt vmcnt(0);;" + checkt([(KPOLL, ND, 0xffffffff, 1)])
    k2 += f";;s_lshr_b32 s{sT0}, s{sU}, 2;;s_lshl_b32 s{sT0}, s{sT0}, 11;;s_and_b32 s{sT1}, s{sU}, 3;;s_lshl_b32 s{sT1}, s{sT1}, 8;;s_add_u32 s{sT0}, s{sT0}, s{sT1};;s_add_u32 s{sT0}, s{sT0}, {KVP_OFF}"
    for u in range(4):
        k2 += f";;buffer_load_dwordx4 {vr(RED+8*u,4)}, v{vRS}, {sr(SWS,4)}, s{sT0} offen sc1;;buffer_load_dwordx4 {vr(RED+8*u+4,4)}, v{vRS}, {sr(SWS,4)}, s{sT0} offen offset:1024 sc1"
        if u < 3: k2 += f";;s_add_u32 s{sT0}, s{sT0}, {4*131072}"
    e("s_waitcnt vmcnt(0) lgkmcnt(0)")
    e(publish(1, vC1))
    e.ext(tail(softmax(False), None, vC1, [(OPT.get("kp1", 30) / 100, rguard(KPOLL)), (0.55, rguard(k2))]))
    e("s_cbranch_vccnz K_P2")
    e(f"s_cmp_ge_u32 s{sRED}, 2"); e("s_cbranch_scc1 K_QG")
    e(f"s_lshl_b32 s{sT0}, s{sU}, 8"); e(f"s_add_u32 s{sT0}, s{sT0}, {KVZ_OFF}")
    e("s_waitcnt vmcnt(4)")
    for stp in (16, 8):
        for j in range(stp): e(f"v_add_f32 v{RED+j}, v{RED+j}, v{RED+stp+j}")
    e("s_nop 1")
    for k in range(4): e(f"v_permlane32_swap_b32 v{RED+k}, v{RED+k+4}")
    for k in range(4): e(f"v_add_f32 v{RED+k}, v{RED+k}, v{RED+k+4}")
    e("s_nop 1")
    for k in range(2): e(f"v_permlane16_swap_b32 v{RED+k}, v{RED+k+2}")
    for k in range(2): e(f"v_add_f32 v{RED+k}, v{RED+k}, v{RED+k+2}")
    e(f"v_cvt_pk_bf16_f32 v{RED}, v{RED}, v{RED+1}")
    e(f"buffer_store_dword v{RED}, v{vRD}, {sr(SWS,4)}, s{sT0} offen sc1")
    e.label("K_QG")
    e("s_waitcnt vmcnt(0)")
    e(publish(4, vC1))
    e("s_branch K_FIN")

    e.label("K_P2")
    st("p2start")
    vS2, vXB, vX, vB, OP, vCP = 8, 16, 32, 40, 32, 44
    ACC2, WB2 = 48, 112
    SO, SB2 = 64, 68
    e("s_load_dwordx4 s[72:75], s[0:1], 64")
    e(f"s_mov_b32 s{sT2}, s{sP1}")
    LA = OPT.get("la", 4)
    nun = [1] * 28 + [3] * 8
    ops = [i for i in range(NA) for _ in range(2)]
    state = dict(na=NA, nw=NL, done=-1)
    FIRST = {8: 2, 16: 3, 24: 4}
    QPOLL = f"s_sub_u32 s{sT0}, s{sPF}, {128*1024};;s_mov_b64 exec, 0xff;;buffer_load_dword v{ND}, v{vPA}, {sr(SWS,4)}, s{sT0} offen sc1;;s_mov_b64 exec, -1"
    def tagwait(tag):
        last = max(i for i, o in enumerate(ops) if o == tag)
        e(f"s_waitcnt vmcnt({min(63, len(ops) - 1 - last)})")
    def kvload(a):
        R = RING + 8 * unit[28 + a]
        return (f"s_add_u32 s{sT0}, s{sKV}, {2048*a};;buffer_load_dwordx4 {vr(R,4)}, v{vL16}, {sr(SWS,4)}, s{sT0} offen sc1;;"
                f"buffer_load_dwordx4 {vr(R+4,4)}, v{vL16}, {sr(SWS,4)}, s{sT0} offen offset:1024 sc1")
    def issue_a(i):
        R = RING + 8 * unit[i]
        if i in FIRST and not OPT.get("x_nopoll"):
            st(f"cb{i}"); tagwait(f"p{i}"); check([(FPOLL, ND, 0xff, FIRST[i])]); st(f"ca{i}")
        if i == 28:
            st("cb28"); tagwait("p28"); check([(QPOLL, ND, 0xff, 4)]); st("ca28")
        if i < 28:
            e.ext(aload(i))
            ops.extend([i] * 2)
        else:
            a = i - 28; o = 2048 * (a & 1)
            e(kvload(a))
            for k, (sb, oo) in enumerate(((sP0, 0), (sP0, 1024), (sP1, 0), (sP1, 1024))):
                e(f"buffer_load_dwordx4 {vr(R+8+4*k,4)}, v{vL16}, {sr(SWS,4)}, s{sb} offen offset:{o+oo} {ASC}")
            if a & 1:
                e(f"s_add_u32 s{sP0}, s{sP0}, 4096"); e(f"s_add_u32 s{sP1}, s{sP1}, 4096")
            ops.extend([i] * 6)
        PL = OPT.get("pl", 3)
        if i + PL in FIRST and not OPT.get("x_nopoll"): e(FPOLL); ops.append(f"p{i+PL}")
        if i + PL == 28: e(QPOLL); ops.append("p28")
    def pump():
        n = 0
        while state["na"] < 36:
            i = state["na"]
            us = set(range(unit[i], unit[i] + nun[i]))
            if any(us & set(range(unit[q], unit[q] + nun[q])) for q in range(state["done"] + 1, i)): break
            if i - state["done"] > (LA if i < 28 else 3): break
            issue_a(i); state["na"] += 1; n += 1
        while state["nw"] < 36 and state["nw"] - state["done"] <= OPT.get("lw", NL):
            e.ext(wdma(state["nw"])); ops.extend([state["nw"]] * 2); state["nw"] += 1; n += 1
        return n
    for fi in FIRST:
        if NA <= fi < NA + OPT.get("pl", 3) and not OPT.get("x_nopoll"): e(FPOLL); ops.append(f"p{fi}")
    pump()
    e(f"s_lshr_b32 s{sT1}, s{sIDX}, 2"); e(f"s_lshl_b32 s{sT1}, s{sT1}, 7")
    e(f"s_lshl_b32 s{sXO}, s{sT2}, 16"); e(f"s_add_u32 s{sXO}, s{sXO}, s{sT1}"); e(f"s_add_u32 s{sXO}, s{sXO}, s{sLB}")
    e(f"s_add_u32 s{sXO2}, s{sXO}, 8192")
    e(f"buffer_load_dwordx4 {vr(vX,4)}, v{vXO}, {sr(SX,4)}, s{sXO} offen")
    e(f"buffer_load_dwordx4 {vr(vX+4,4)}, v{vXO}, {sr(SX,4)}, s{sXO2} offen")
    e(f"v_and_b32 v{vS2+5}, 0x70, v{vL16}")
    e("s_waitcnt lgkmcnt(0)")
    srd(e, SB2, 72, 73, 1024)
    srd(e, SO, 74, 75, 2048 * 1024)
    e(f"buffer_load_dwordx4 {vr(vB,4)}, v{vS2+5}, {sr(SB2,4)}, s{sT1} offen")
    ops.extend(["x"] * 3)
    e(f"s_lshl_b32 s{sP0}, s{sT2}, 17"); e(f"s_add_u32 s{sP0}, s{sP0}, s{sLB}"); e(f"s_add_u32 s{sP0}, s{sP0}, {PQ_OFF}")
    e(f"s_add_u32 s{sP1}, s{sP0}, 65536")
    e(f"s_add_u32 s{sKV}, s{sLB}, {KVZ_OFF}")
    e(f"v_bfe_u32 v{vS2+6}, v{vL}, 2, 2"); e(f"v_lshrrev_b32 v{vS2+4}, 5, v{vL}"); e(f"v_bfe_u32 v{vS2+3}, v{vL}, 4, 1")
    e(f"v_lshl_add_u32 v{vS2+7}, v{vS2+4}, 2, v{vS2+6}"); e(f"v_lshlrev_b32 v{vTR0}, 7, v{vS2+7}")
    e(f"v_lshl_add_u32 v{vTR0}, v{vS2+3}, 5, v{vTR0}")
    e(f"v_and_b32 v{vS2+7}, 3, v{vL}"); e(f"v_lshl_add_u32 v{vTR0}, v{vS2+7}, 3, v{vTR0}")
    e(f"v_lshrrev_b32 v{vS2+6}, 1, v{vS2+6}"); e(f"v_lshl_add_u32 v{vTR0}, v{vS2+6}, 6, v{vTR0}")
    e(f"v_add_u32 v{vTR0}, s{sLB}, v{vTR0}")
    e(f"v_xor_b32 v{vTR1}, 64, v{vTR0}")
    def wreads(i):
        off = 2048 * (i % NL); b = WB2 + 8 * (i & 1)
        e(f"ds_read_b64_tr_b16 {vr(b,2)}, v{vTR0} offset:{off}")
        e(f"ds_read_b64_tr_b16 {vr(b+2,2)}, v{vTR0} offset:{off+1024}")
        e(f"ds_read_b64_tr_b16 {vr(b+4,2)}, v{vTR1} offset:{off}")
        e(f"ds_read_b64_tr_b16 {vr(b+6,2)}, v{vTR1} offset:{off+1024}")
    def mm4(buf, act, first=False):
        for nt in range(2):
            for mt in range(2):
                c = vr(ACC2 + 16 * (2 * nt + mt), 16)
                e(f"{MFMA} {c}, {vr(WB2+8*buf+4*nt,4)}, {act[mt]}, {'0' if first else c}")
    tagwait(0)
    st("p2data")
    wreads(0)
    for i in range(28):
        if i < 27:
            tagwait(i + 1)
            if i + 1 == NA: e(publish(4, vS2)); ops.append("f")
            wreads(i + 1)
            e("s_waitcnt lgkmcnt(4)")
        else:
            e("s_waitcnt lgkmcnt(0)")
        R = RING + 8 * unit[i]
        mm4(i & 1, [vr(R, 4), vr(R + 4, 4)], i == 0)
        state["done"] = i
        pump()
        st(f"s{i}")
    st("p2ffn")
    for i in range(4):
        e(f"v_lshlrev_b32 v{vS2}, 16, v{vB+i}"); e(f"v_and_b32 v{vS2+1}, s{sMASK}, v{vB+i}")
        for t in range(2):
            d = vXB + 8 * t + 2 * i
            e(f"v_lshlrev_b32 v{d}, 16, v{vX+4*t+i}"); e(f"v_and_b32 v{d+1}, s{sMASK}, v{vX+4*t+i}")
            e(f"v_add_f32 v{d}, v{d}, v{vS2}"); e(f"v_add_f32 v{d+1}, v{d+1}, v{vS2+1}")
    e("s_barrier")
    for a in range(8):
        R = RING + 8 * unit[28 + a]
        tagwait(28 + a)
        wreads(28 + a)
        top, ok = L("V"), L("V")
        e(f"s_mov_b32 s{sCNT}, 0"); e.label(top)
        e(f"v_max3_u32 v{vS2+2}, v{R}, v{R+1}, v{R+2}"); e(f"v_max3_u32 v{vS2+3}, v{R+3}, v{R+4}, v{R+5}")
        e(f"v_max3_u32 v{vS2+2}, v{vS2+2}, v{R+6}, v{R+7}"); e(f"v_max_u32 v{vS2+2}, v{vS2+2}, v{vS2+3}")
        e(f"v_cmp_eq_u32 vcc, -1, v{vS2+2}")
        e("s_nop 0"); e("s_cmp_eq_u64 vcc, 0"); e(f"s_cbranch_scc1 {ok}")
        e("s_sleep 8"); e(kvload(a))
        e(f"s_add_u32 s{sCNT}, s{sCNT}, 1"); e(f"s_cmp_lt_u32 s{sCNT}, {SPIN // 8}"); e("s_waitcnt vmcnt(0)"); e(f"s_cbranch_scc1 {top}")
        e.label(ok)
        for mt in range(2):
            d = vr(ND + 16 * mt, 16)
            e(f"{MFMA} {d}, {vr(R,4)}, {vr(R+8+8*mt,4)}, 0")
            e(f"{MFMA} {d}, {vr(R+4,4)}, {vr(R+12+8*mt,4)}, {d}")
        if a > 0: mm4((a - 1) & 1, [vr(OP, 4), vr(OP + 4, 4)])
        e("s_waitcnt lgkmcnt(0)")
        state["done"] = 28 + a
        n = pump()
        e("s_nop 11" if (a == 0 and n == 0) else ("s_nop 7" if (n == 0 or a == 0) else "s_nop 1"))
        for mt in range(2): e(f"v_add_f32 v{vS2+mt}, {f2u(1e-6):#x}, v{ND+16*mt+8}")
        for mt in range(2): e(f"v_rcp_f32 v{vS2+mt}, v{vS2+mt}")
        e("s_nop 0")
        for mt in range(2):
            d = ND + 16 * mt
            for j in range(8): e(f"v_mul_f32 v{d+j}, v{d+j}, v{vS2+mt}")
            for j in range(4): e(f"v_cvt_pk_bf16_f32 v{OP+4*mt+j}, v{d+2*j}, v{d+2*j+1}")
    XBASE = YB
    e(f"v_and_b32 v{vS2+2}, 31, v{vL}"); e(f"v_mul_u32_u24 v{vS2+2}, 272, v{vS2+2}")
    mm4(1, [vr(OP, 4), vr(OP + 4, 4)])
    st("p2att")
    e(f"v_lshrrev_b32 v{vS2+3}, 5, v{vL}"); e(f"v_lshl_add_u32 v{vS2+2}, v{vS2+3}, 4, v{vS2+2}")
    e(f"s_mul_i32 s{sT0}, s{sRG}, 17408"); e(f"s_add_u32 s{sT0}, s{sT0}, {XBASE}")
    e(f"v_add_u32 v{vS2+2}, s{sT0}, v{vS2+2}")
    e(f"v_lshrrev_b32 v{vS2+3}, 3, v{vL}"); e(f"v_mul_u32_u24 v{vS2+3}, 272, v{vS2+3}")
    e(f"v_and_b32 v{vS2+4}, 7, v{vL}"); e(f"v_lshl_add_u32 v{vS2+3}, v{vS2+4}, 5, v{vS2+3}")
    e(f"s_mul_i32 s{sT0}, s{sRG}, {16*272}"); e(f"s_add_u32 s{sT0}, s{sT0}, {XBASE}")
    e(f"v_add_u32 v{vS2+3}, s{sT0}, v{vS2+3}")
    for nt in range(2):
        for mt in range(2):
            for q in range(4):
                e(f"ds_write_b128 v{vS2+2}, {vr(ACC2+16*(2*nt+mt)+4*q,4)} offset:{32*272*mt + 128*nt + 32*q}")
    e("s_waitcnt lgkmcnt(0)"); e("s_barrier")
    for t in range(2):
        for p in range(4):
            for hh in range(2):
                e(f"ds_read_b128 {vr(ACC2+32*t+8*p+4*hh,4)}, v{vS2+3} offset:{17408*p + 8*272*t + 16*hh}")
    for t in range(2):
        for p in range(4):
            e(f"s_waitcnt lgkmcnt({14 - 8*t - 2*p})")
            for j in range(8): e(f"v_add_f32 v{vXB+8*t+j}, v{vXB+8*t+j}, v{ACC2+32*t+8*p+j}")
        for j in range(4): e(f"v_cvt_pk_bf16_f32 v{OP+4*t+j}, v{vXB+8*t+2*j}, v{vXB+8*t+2*j+1}")
        e(f"buffer_store_dwordx4 {vr(OP+4*t,4)}, v{vXO}, {sr(SO,4)}, s{sXO if t == 0 else sXO2} offen")
    e.label("K_FIN")
    if OPT["stamps"]:
        e(f"s_xor_b32 s{sW}, s{sISC}, 1"); e(f"s_lshl_b32 s{sW}, s{sW}, 2"); e(f"s_add_u32 s{sW}, s{sW}, s{sRG}")
    stamp_end(e, 0, SWS, "K_END", sW, 0)
    e.label("K_END")
    e("s_endpgm")
    return e.text()

def main():
    out = "; LayerNorm + hedgehog linear attention + GELU FFN, one persistent launch (generated by tools/gen2.py)\n"
    out += "; @launch grid=(256,1,1) block=(512,1,1) lds=163840\n"
    out += '.amdgcn_target "amdgcn-amd-amdhsa--gfx950"\n.text\n'
    out += f".globl {KN}\n.p2align 8\n.type {KN},@function\n{KN}:\n" + gen()
    out += ".p2align 8\n.fill 1536, 4, 0xbf800000\n"
    out += f""".section .rodata,"a"
.p2align 6
.amdhsa_kernel {KN}
  .amdhsa_next_free_vgpr 256
  .amdhsa_next_free_sgpr 102
  .amdhsa_accum_offset 256
  .amdhsa_group_segment_fixed_size 0
  .amdhsa_kernarg_size 96
  .amdhsa_user_sgpr_count 2
  .amdhsa_user_sgpr_kernarg_segment_ptr 1
  .amdhsa_system_sgpr_workgroup_id_x 1
.end_amdhsa_kernel
"""
    open(sys.argv[1], "w").write(out)
main()
```

```python
import sys, math, struct

OPT = dict(stamps=0, st1="sc1", k1only=0, k2only=0, pfcode=1, pfw2=3)
for a in sys.argv[2:]:
    k, v = a.split("=")
    OPT[k] = int(v) if v.lstrip("-").isdigit() else v

H_OFF, PQ_OFF, KVP_OFF, KVZ_OFF, FLG_OFF = 0, 0x800000, 0xC00000, 0xE00000, 0xE10000
STAMP_OFF = 200 << 20
NSTAMP = 8
LOOPST = OPT.get('loopst', -1)

def f2u(x): return struct.unpack("<I", struct.pack("<f", x))[0]

class Asm:
    def __init__(self): self.L = []
    def __call__(self, s):
        for t in s.split(";;"):
            t = t.strip()
            self.L.append(t if t.endswith(":") else "    " + t)
    def label(self, s): self.L.append(s + ":")
    def ext(self, lst):
        for s in lst: self(s)
    def text(self): return "\n".join(self.L) + "\n"

class Lst(list):
    def __call__(self, s): self.append(s)

def vr(b, n=1): return f"v{b}" if n == 1 else f"v[{b}:{b+n-1}]"
def ar(b, n=1): return f"a{b}" if n == 1 else f"a[{b}:{b+n-1}]"
def sr(b, n=1): return f"s{b}" if n == 1 else f"s[{b}:{b+n-1}]"
MFMA = "v_mfma_f32_32x32x16_bf16"

def cost(ins):
    c = 0
    for t in ins.split(";;"):
        op = t.split()[0]
        if op.endswith(":"): continue
        if "s_cbranch" in ins and op.startswith(("s_", "v_")): c += 0.5; continue
        if op.startswith(("v_exp", "v_rcp", "v_sqrt", "v_log", "v_mfma")): c += 8
        elif op == "s_nop": c += 2 * (int(t.split()[1]) + 1)
        elif op.startswith("s_"): c += 1
        elif op.startswith("buffer_"): c += 8
        else: c += 4.5
    return c

def interleave(groups, fill, first=0, last=None):
    last = len(groups) - 1 if last is None else last
    tot = sum(cost(i) for i in fill); n = last - first + 1
    out = []; k = 0; acc = 0.0
    for gi, g in enumerate(groups):
        out += g
        if first <= gi <= last:
            tgt = tot * (gi - first + 1) / n
            while k < len(fill) and (acc + cost(fill[k]) / 2 <= tgt or gi == last):
                out.append(fill[k]); acc += cost(fill[k]); k += 1
    assert k == len(fill)
    return out

def merge(a, b, frac=1.0):
    out = []; n = max(1, int(len(a) * frac)); k = 0
    for i, x in enumerate(a):
        while k < len(b) and k * n <= i * len(b) and i < n:
            out.append(b[k]); k += 1
        out.append(x)
    out += b[k:]
    return out

def srd(e, d, lo, hi, size):
    e(f"s_mov_b32 s{d}, s{lo}"); e(f"s_mov_b32 s{d+1}, s{hi}")
    e(f"s_mov_b32 s{d+2}, {size:#x}"); e(f"s_mov_b32 s{d+3}, 0x00020000")

def stamp(e, idx, base=80):
    if OPT["stamps"]:
        e(f"s_memtime s[{base+2*idx}:{base+2*idx+1}]")

def stamp_begin(e, base=80):
    if OPT["stamps"]:
        e(f"s_memrealtime s[{base}:{base+1}]")
        e(f"s_memtime s[{base-2}:{base-1}]")
        for i in range(2, NSTAMP):
            e(f"s_mov_b64 s[{base+2*i}:{base+2*i+1}], 0")

def stamp_end(e, kidx, wssrd, lbl, wave_sgpr, wave_sel, base=80):
    if not OPT["stamps"]: return
    e(f"s_memtime s[{base+2*(NSTAMP-2)}:{base+2*(NSTAMP-2)+1}]")
    e("s_waitcnt vmcnt(0)")
    e(f"s_memrealtime s[{base+2}:{base+3}]")
    e(f"s_memtime s[{base+2*(NSTAMP-1)}:{base+2*(NSTAMP-1)+1}]")
    e("s_waitcnt lgkmcnt(0)")
    for i in range(2, NSTAMP):
        e(f"s_sub_u32 s{base+2*i}, s{base+2*i}, s{base-2}")
        e(f"s_mov_b32 s{base+2*i+1}, 0")
    e(f"s_lshl_b32 s{base-2}, s2, 3"); e(f"s_add_u32 s{base-2}, s{base-2}, s{wave_sgpr}")
    e(f"s_mul_i32 s{base-2}, s{base-2}, {8*NSTAMP}")
    e(f"s_add_u32 s{base-2}, s{base-2}, {STAMP_OFF + kidx*256*8*8*NSTAMP}")
    e("s_mov_b64 exec, 1")
    e("v_mov_b32 v1, 0")
    for i in range(NSTAMP // 2):
        for j in range(4):
            e(f"v_mov_b32 v{4+j}, s{base+4*i+j}")
        e(f"buffer_store_dwordx4 v[4:7], v1, {sr(wssrd,4)}, s{base-2} offen offset:{16*i}")
        e("s_nop 1")
    e("s_waitcnt vmcnt(0)")

KN = "parallel_sum__linear_kernel_hedgehog__dense_activation_gelu__prompt_kernel"
SPIN = OPT.get("spin", 20000)
CNT_OFF = FLG_OFF + 2048 * 128

def gen():
    e = Asm()
    M16 = "v_mfma_f32_16x16x32_bf16"
    SDBG, SX, SW, SWS, SAUX = 4, 8, 12, 16, 20
    sW, sRG, sP, sC, sRB, sTYPE = 24, 25, 26, 27, 28, 29
    sPITCH, sRT, sIDX, sROT = 30, 31, 32, 33
    sONES, sLO, sHI, sMASK = 34, 35, 36, 37
    sT0, sT1, sT2, sT3, sT4 = 38, 39, 40, 41, 42
    sXB = 43
    sCOL = 44
    sSLOT, sIT, sOUT, sAUXO, sP16 = 48, 49, 50, 51, 52
    sDA, sDB, sMA, sROWO, sW4K, sST = 53, 54, 55, 56, 57, 61
    sLT16, sFLG = 58, 60
    sJG, sISC, sWB, sLEV = 76, 77, 100, 101
    vDUM, vL, vL16, vDMA, vTR = 0, 1, 2, 3, 4
    vS, vCSW, vCSR, SELC, CS, AUG, vC0, vC1 = 8, 14, 15, 16, 20, 24, 30, 31
    TMP, PK, ACC, EACC, WB, vAUX, XF = 32, 48, 64, 80, 96, 116, 128
    NWB = 5
    YB, ZB = 0x10000, 0x20000
    STAT, CSX, RVO, GSY = 0x21000, 0x21800, 0x22000, 0x22400
    vFR, vXD, RS, vQ, vAL = TMP, TMP + 8, TMP + 12, TMP + 16, TMP + 18
    STF = "" if OPT.get("x_pst") else "sc1"
    lab = [0]
    def L(p):
        lab[0] += 1
        return f"{p}{lab[0]}"
    SP = str(OPT.get("sp", "")).split(",")
    def st(name, lst=None):
        if OPT["stamps"] and name in SP:
            i = 2 + SP.index(name)
            t = f"s_memtime s[{80+2*i}:{81+2*i}];;s_waitcnt lgkmcnt(0)"
            (e if lst is None else lst.append)(t)
    e("s_cmp_ge_u32 s2, 256")
    e("s_cbranch_scc1 K_END")
    stamp_begin(e)
    if OPT.get("cnt"): e("s_mov_b32 s3, 1")
    e("s_load_dwordx4 s[64:67], s[0:1], 0")
    e("s_load_dwordx2 s[68:69], s[0:1], 16")
    e("s_load_dwordx4 s[72:75], s[0:1], 40")
    e("s_load_dwordx2 s[70:71], s[0:1], 88")
    e("s_load_dwordx2 s[96:97], s[0:1], 56")
    e("s_load_dwordx2 s[98:99], s[0:1], 24")
    e(f"s_load_dwordx2 {sr(SDBG,2)}, s[0:1], 80")
    e(f"v_lshrrev_b32 v{vS}, 6, v0")
    e(f"v_and_b32 v{vL}, 63, v0")
    e(f"v_readfirstlane_b32 s{sW}, v{vS}")
    e(f"s_lshr_b32 s{sIDX}, s2, 3")
    if OPT["pfcode"]:
        e(f"s_cmp_lg_u32 s{sW}, 7"); e("s_cbranch_scc1 K_NOPF")
        e("s_getpc_b64 s[62:63]")
        e("s_and_b32 s62, s62, 0xffffff00")
        e(f"s_mul_i32 s{sT1}, s{sIDX}, 896")
        e(f"v_lshl_add_u32 v{vS+3}, v{vL}, 7, s{sT1}")
        e("s_mov_b64 exec, 0x7f")
        e(f"global_load_dword v{vDUM}, v{vS+3}, s[62:63]")
        e("s_mov_b64 exec, -1")
        e.label("K_NOPF")
    e(f"s_and_b32 s{sT0}, s2, 7")
    e(f"s_lshr_b32 s{sRB}, s{sT0}, 1"); e(f"s_lshl_b32 s{sRB}, s{sRB}, 2")
    e(f"s_and_b32 s{sT2}, s{sIDX}, 3"); e(f"s_add_u32 s{sRB}, s{sRB}, s{sT2}")
    e(f"s_lshr_b32 s{sT1}, s{sIDX}, 2")
    e(f"s_add_u32 s{sROT}, s{sT1}, s{sT2}"); e(f"s_and_b32 s{sROT}, s{sROT}, 3")
    e(f"s_and_b32 s{sTYPE}, s{sT1}, 1")
    e(f"s_lshr_b32 s{sT1}, s{sT1}, 1")
    e(f"s_and_b32 s{sC}, s{sT0}, 1"); e(f"s_lshl_b32 s{sC}, s{sC}, 2"); e(f"s_add_u32 s{sC}, s{sC}, s{sT1}")
    e(f"s_and_b32 s{sRG}, s{sW}, 3"); e(f"s_lshr_b32 s{sP}, s{sW}, 2")
    e(f"v_lshrrev_b32 v{vS}, 4, v{vL}"); e(f"v_and_b32 v{vS+1}, 15, v{vL}")
    e(f"v_xor_b32 v{vS+2}, v{vS}, v{vS+1}"); e(f"v_lshlrev_b32 v{vS+2}, 4, v{vS+2}")
    e(f"v_lshl_add_u32 v{vXD}, v{vS}, 10, v{vS+2}")
    for i in range(1, 4): e(f"v_xor_b32 v{vXD+i}, {4096*i + 64*i}, v{vXD}")
    e(f"s_lshl_b32 s{sXB}, s{sRB}, 17"); e(f"s_lshl_b32 s{sT0}, s{sW}, 14"); e(f"s_add_u32 s{sXB}, s{sXB}, s{sT0}")
    e(f"s_lshl_b32 s{sW4K}, s{sW}, 12")
    e(f"v_and_b32 v{vS+3}, 31, v{vL}")
    e(f"v_lshrrev_b32 v{vS+4}, 5, v{vL}")
    e(f"s_cmp_eq_u32 s{sTYPE}, 0")
    e("s_cbranch_scc1 K_SETQ")
    e(f"s_movk_i32 s{sPITCH}, 3584")
    e(f"s_mul_i32 s{sAUXO}, s{sC}, 448")
    e(f"s_and_b32 s{sT1}, s{sC}, 1")
    e(f"s_lshl_b32 s{sT2}, s{sT1}, 6"); e(f"s_add_u32 s{sCOL}, s{sAUXO}, s{sT2}")
    e(f"s_add_u32 s{sCOL+1}, s{sCOL}, 128"); e(f"s_add_u32 s{sCOL+2}, s{sCOL}, 256")
    e(f"s_lshl_b32 s{sT2}, s{sT1}, 9"); e(f"s_add_u32 s{sCOL+3}, s{sCOL}, 384"); e(f"s_sub_u32 s{sCOL+3}, s{sCOL+3}, s{sT2}")
    e(f"s_lshl_b32 s{sT2}, s{sP}, 6")
    e(f"v_lshl_add_u32 v{vAL}, v{vS+3}, 1, s{sT2}")
    e(f"s_mov_b32 s{SW+2}, {512*3584}"); e(f"s_movk_i32 s{SAUX+2}, 3584")
    e("s_branch K_SETD")
    e.label("K_SETQ")
    e(f"s_movk_i32 s{sPITCH}, 3072")
    e(f"s_lshl_b32 s{sCOL+2}, s{sC}, 7"); e(f"s_add_u32 s{sCOL}, s{sCOL+2}, 1024"); e(f"s_add_u32 s{sCOL+1}, s{sCOL+2}, 2048")
    e(f"v_lshrrev_b32 v{vS+5}, 4, v{vS+3}"); e(f"v_lshlrev_b32 v{vS+5}, 9, v{vS+5}")
    e(f"v_lshl_add_u32 v{vS+5}, v{vS+4}, 7, v{vS+5}"); e(f"v_lshl_add_u32 v{vS+5}, v{vS+1}, 1, v{vS+5}")
    e(f"s_lshl_b32 s{sT1}, s{sP}, 10"); e(f"v_add_u32 v{vAL}, s{sT1}, v{vS+5}")
    e(f"s_lshl_b32 s{sAUXO}, s{sC}, 11")
    e(f"s_mov_b32 s{SW+2}, {512*3072}"); e(f"s_movk_i32 s{SAUX+2}, {32*512}")
    e.label("K_SETD")
    e(f"s_mov_b32 s{SW+3}, 0x00020000"); e(f"s_mov_b32 s{SAUX+3}, 0x00020000")
    e(f"v_lshrrev_b32 v{vDMA}, 2, v{vL}"); e(f"v_mul_lo_u32 v{vDMA}, v{vDMA}, s{sPITCH}")
    e(f"v_and_b32 v{vS+5}, 3, v{vL}"); e(f"v_lshl_add_u32 v{vDMA}, v{vS+5}, 4, v{vDMA}")
    e(f"s_lshl_b32 s{sP16}, s{sPITCH}, 4")
    e(f"s_mul_i32 s{sWB}, s{sP16}, s{sW}"); e(f"s_add_u32 s{sWB}, s{sWB}, s{sCOL}")
    e(f"s_cmp_eq_u32 s{sTYPE}, 0")
    e("s_waitcnt lgkmcnt(0)")
    e(f"s_cselect_b64 {sr(SW,2)}, s[66:67], s[72:73]"); e(f"s_cselect_b64 {sr(SAUX,2)}, s[68:69], s[74:75]")
    srd(e, SX, 64, 65, 2048 * 1024)
    XBUF = (ZB, YB, YB + 0x8000, ZB)
    def sset(j):
        l = Lst()
        l(f"s_add_u32 s{sT0}, s{sROT}, {j};;s_and_b32 s{sT0}, s{sT0}, 3;;s_lshl_b32 s{sT1}, s{sT0}, 8;;s_add_u32 s{sT1}, s{sT1}, s{sXB};;"
          f"s_lshl_b32 s{sT0}, s{sT0}, 3;;s_mul_i32 s{sT0}, s{sT0}, s{sP16};;s_add_u32 s{sT0}, s{sT0}, s{sWB};;s_add_u32 s{sT2}, s{sT0}, 64;;s_lshr_b32 s{sT3}, s{sW4K}, 2")
        for i in range(4):
            l(f"s_add_u32 m0, s{sW4K}, {XBUF[j] + 1024*i};;s_nop 0;;buffer_load_dwordx4 v{vXD+i}, {sr(SX,4)}, s{sT1} offen lds")
        wo = 0x8000 * (j >> 1) + 8192 * (j & 1)
        l(f"s_add_u32 m0, s{sT3}, {wo};;s_nop 0;;buffer_load_dwordx4 v{vDMA}, {sr(SW,4)}, s{sT0} offen lds")
        l(f"s_add_u32 m0, s{sT3}, {wo + 0x4000};;s_nop 0;;buffer_load_dwordx4 v{vDMA}, {sr(SW,4)}, s{sT2} offen lds")
        return l
    e.ext(sset(0))
    srd(e, SWS, 70, 71, 0x10000000)
    e(f"s_movk_i32 s{SDBG+2}, 256"); e(f"s_mov_b32 s{SDBG+3}, 0x00020000")
    e(f"s_lshl_b32 s{sRT}, s{sRB}, 2"); e(f"s_add_u32 s{sRT}, s{sRT}, s{sRG}")
    e(f"s_lshl_b32 s{sFLG}, s{sTYPE}, 4"); e(f"s_add_u32 s{sFLG}, s{sFLG}, s{sRB}"); e(f"s_lshl_b32 s{sFLG}, s{sFLG}, 3"); e(f"s_add_u32 s{sFLG}, s{sFLG}, s{sC}")
    e(f"s_lshl_b32 s{sFLG}, s{sFLG}, 10"); e(f"s_add_u32 s{sFLG}, s{sFLG}, {FLG_OFF}")
    e(f"s_and_b32 s{sISC}, s{sC}, 1"); e(f"s_xor_b32 s{sISC}, s{sISC}, s{sP}")
    e(f"v_lshlrev_b32 v{vL16}, 4, v{vL}")
    e(f"v_mov_b32 v{AUG+4}, 0"); e(f"v_mov_b32 v{AUG+5}, 0")
    e(f"s_cmp_lg_u32 s{sW}, 7"); e("s_cbranch_scc1 K_NZ")
    e(f"v_lshlrev_b32 v{vS+2}, 3, v{vL}")
    e(f"buffer_store_dwordx2 {vr(AUG+4,2)}, v{vS+2}, {sr(SWS,4)}, s{sFLG} offen sc1")
    e(f"buffer_store_dwordx2 {vr(AUG+4,2)}, v{vS+2}, {sr(SWS,4)}, s{sFLG} offen offset:512 sc1")
    e.label("K_NZ")
    e(f"s_lshl_b32 s{sT0}, s{sW}, 7"); e(f"s_add_u32 s{sFLG}, s{sFLG}, s{sT0}")
    e(f"s_lshl_b32 s{sT0}, s{sROT}, 2"); e(f"s_add_u32 s{sT0}, s{sT0}, s{sW}"); e(f"s_and_b32 s{sT1}, s{sT0}, 15"); e(f"s_lshl_b32 s{sT1}, s{sT1}, 1")
    e(f"s_mul_i32 s{sROWO}, s{sT1}, s{sP16}")
    e(f"s_add_u32 s{sT0}, s{sT0}, 8"); e(f"s_and_b32 s{sT1}, s{sT0}, 15"); e(f"s_lshl_b32 s{sT1}, s{sT1}, 1")
    e(f"s_mul_i32 s{sJG}, s{sT1}, s{sP16}"); e(f"s_sub_u32 s{sJG}, s{sJG}, s{sROWO}"); e(f"s_sub_u32 s{sJG}, s{sJG}, s{sP16}")
    e(f"s_lshl_b32 s{sT4}, s{sW}, 11")
    sLB0 = sT4
    def guard(t):
        g = L("G"); return f"s_cbranch_vccz {g};;{t};;{g}:"
    def dma8(gd=False):
        l = []
        for i in range(4):
            jg, jl = (f"s{sJG}", "0x7c00") if i == 1 else (f"s{sP16}", "1024")
            l += [f"s_mov_b32 m0, s{sMA};;s_add_u32 s{sDB}, s{sDA}, 64;;buffer_load_dwordx4 v{vDMA}, {sr(SW,4)}, s{sDA} offen lds",
                  f"s_add_u32 m0, s{sMA}, 0x4000;;s_add_u32 s{sDA}, s{sDA}, {jg};;buffer_load_dwordx4 v{vDMA}, {sr(SW,4)}, s{sDB} offen lds;;s_add_u32 s{sMA}, s{sMA}, {jl}"]
        return [guard(t) for t in l] if gd else l
    e(f"s_mov_b32 s{sONES}, 0x3f803f80"); e(f"s_mov_b32 s{sLO}, 0x00003f80"); e(f"s_mov_b32 s{sHI}, 0x3f800000")
    e(f"s_mov_b32 s{sMASK}, 0xffff0000")
    e(f"v_lshlrev_b32 v{vS+2}, 9, v{vS+4}")
    e(f"v_bfe_u32 v{vS}, v{vL}, 2, 2"); e(f"v_lshl_add_u32 v{vS+2}, v{vS}, 6, v{vS+2}")
    e(f"v_bfe_u32 v{vCSW}, v{vL}, 4, 1"); e(f"v_lshl_add_u32 v{vS+2}, v{vCSW}, 5, v{vS+2}")
    e(f"v_lshl_add_u32 v{vS+2}, v{vS+5}, 3, v{vS+2}")
    e(f"s_xor_b32 s{sT3}, s{sRG}, s{sP}"); e(f"s_lshl_b32 s{sT1}, s{sP}, 14")
    for k in range(4):
        e(f"s_xor_b32 s{sT0}, s{sT3}, {k}"); e(f"s_lshl_b32 s{sT0}, s{sT0}, 10"); e(f"s_add_u32 s{sT0}, s{sT0}, s{sT1}")
        e(f"v_add_u32 v{vTR+k}, s{sT0}, v{vS+2}")
    e(f"v_and_b32 v{vS}, 1, v{vS}"); e(f"v_cmp_eq_u32 vcc, v{vS}, v{vCSW}"); e(f"v_mov_b32 v{vS}, s{sONES}")
    e(f"v_cmp_gt_u32 {sr(sLT16,2)}, 16, v{vS+3}")
    for j in range(4): e(f"v_cndmask_b32 v{SELC+j}, 0, v{vS}, vcc")
    e(f"v_xor_b32 v{vS}, v{vS+4}, v{vS+1}"); e(f"v_lshlrev_b32 v{vS}, 4, v{vS}")
    e(f"v_lshl_add_u32 v{vS}, v{vS+3}, 8, v{vS}")
    e(f"s_lshl_b32 s{sT0}, s{sT3}, 5"); e(f"v_xor_b32 v{vS}, s{sT0}, v{vS}")
    e(f"s_lshl_b32 s{sT0}, s{sRG}, 13"); e(f"s_add_u32 s{sT0}, s{sT0}, {YB + 0x8000}"); e(f"v_add_u32 v{vFR}, s{sT0}, v{vS}")
    for s in range(1, 8): e(f"v_xor_b32 v{vFR+s}, {32*s}, v{vFR}")
    e(f"s_lshl_b32 s{sT0}, s{sP}, 9"); e(f"s_add_u32 s{sT0}, s{sT0}, {CSX}")
    e(f"v_lshl_add_u32 v{vCSR}, v{vS+3}, 4, s{sT0}")
    e(f"s_lshl_b32 s{sT0}, s{sRG}, 2"); e(f"v_add_u32 v{vCSW}, s{sT0}, v{vCSR}")
    e(f"v_mov_b32 v{vQ}, 0"); e(f"v_mov_b32 v{vQ+1}, 0")
    def auxl(lbl):
        t = f"s_cmp_eq_u32 s{sTYPE}, 0;;s_cbranch_scc1 {lbl}Q"
        for i in range(4): t += f";;buffer_load_ushort v{vAUX+i}, v{vAL}, {sr(SAUX,4)}, s{sCOL+i} offen"
        t += f";;s_branch {lbl}D;;{lbl}Q:"
        for j in range(8):
            d = (j & 3) + 8 * (j >> 2)
            t += f";;buffer_load_ushort v{vAUX+j}, v{vAL}, {sr(SAUX,4)}, s{sAUXO} offen offset:{32*d}"
        t += f";;{lbl}D:"
        return t
    if OPT.get("x_p2only"):
        e("s_waitcnt vmcnt(0)"); e("s_barrier")
        e(f"s_cmp_eq_u32 s{sISC}, 0"); e("s_cbranch_scc1 K_FIN")
        e("s_branch K_FTAIL")
    e.ext(sset(1))

    def wrd(s):
        b = WB + 4 * (s % NWB); o = 1024 * (s & 12) + 0x8000 * (s >> 4)
        return [f"ds_read_b64_tr_b16 {vr(b,2)}, v{vTR+(s&3)} offset:{o}", f"ds_read_b64_tr_b16 {vr(b+2,2)}, v{vTR+(s&3)} offset:{o+256}"]
    def csm(s):
        return f"{M16} {vr(CS,4)}, {vr(SELC,4)}, {vr(WB+4*(s%NWB),4)}, {'0' if s == 0 else vr(CS,4)}"
    XO = (0x8000, 0, 0x8000, 0x8000)
    def rd(s):
        return [f"ds_read_b128 {vr(XF+4*s,4)}, v{vFR+(s&7)} offset:{XO[s>>3]}"] + wrd(s)
    VM = {0: 6, 1: 6, 2: 10, 3: 8, 4: 63}
    def sync(k):
        l = [f"s_waitcnt vmcnt({VM[k]}) lgkmcnt(0)", "s_barrier"]
        st(f"sync{k}", l)
        if k == 1: l += [f"v_subrev_u32 v{vFR+t}, 0x8000, v{vFR+t}" for t in range(8)]
        if k == 3: l += [f"v_add_u32 v{vFR+t}, 0x8000, v{vFR+t}" for t in range(8)]
        return l
    G = []
    g0 = sync(0)
    for s_ in range(4): g0 += rd(s_)
    G.append(g0)
    for s_ in range(32):
        g = []
        if s_ % 8 == 4: g += sync(s_ // 8 + 1)
        if s_ + 4 < 32: g += rd(s_ + 4)
        if s_ % 8 < 4: g.append(f"s_waitcnt lgkmcnt(12)")
        d = EACC if s_ == 31 else ACC
        g.append(f"{MFMA} {vr(d,16)}, {vr(WB+4*(s_%NWB),4)}, {vr(XF+4*s_,4)}, {'0' if s_ == 0 else vr(ACC,16)}")
        if s_ % 4 == 0: g.append(csm(s_))
        if s_ % 2 == 0:
            g.append(f"{M16} {vr(RS,4)}, {vr(SELC,4)}, {vr(XF+4*s_,4)}, {'0' if s_ == 0 else vr(RS,4)}")
            for r in range(4): g.append(f"v_dot2c_f32_bf16 v{vQ+(r&1)}, v{XF+4*s_+r}, v{XF+4*s_+r}")
        G.append(g)
    d8 = dma8()
    wt = (f"s_lshr_b32 s{sT0}, s{sW}, 1;;s_cmp_lg_u32 s{sT0}, 1;;s_cbranch_scc1 K_NW;;s_cmp_eq_u32 s{sW}, 2;;"
          f"s_cselect_b64 s[92:93], s[72:73], s[66:67];;s_mov_b32 s{sT0}, {512*3584};;s_cselect_b32 s94, s{sT0}, {512*3072};;s_mov_b32 s95, 0x00020000;;"
          f"s_movk_i32 s{sT0}, 7168;;s_cselect_b32 s{sT0}, s{sT0}, 6144;;s_cselect_b32 s{sT1}, 56, 48;;s_mul_i32 s{sT0}, s{sT0}, s2;;"
          f"v_lshlrev_b32 v{vDUM}, 7, v{vL};;s_bfm_b64 exec, s{sT1}, 0;;buffer_load_dword v{vDUM}, v{vDUM}, s[92:95], s{sT0} offen;;s_mov_b64 exec, -1;;K_NW:")
    WTA = OPT.get("wta", 2)
    if WTA == 0: e(wt)
    e.ext(interleave(G[0:5], sset(2) + ([wt] if WTA == 1 else []), 0, 4))
    e.ext(interleave(G[5:13], sset(3) + [auxl("K_AUX")] + ([wt] if WTA == 2 else []), 0, 6))
    e(f"s_add_u32 s{sDA}, s{sROWO}, s{sCOL+1}"); e(f"s_add_u32 s{sMA}, s{sLB0}, {YB}")
    e.ext(interleave(G[13:21], d8[:4], 0, 4))
    pf = f"s_cmp_eq_u32 s{sTYPE}, 0;;s_cbranch_scc1 K_NPF;;" + ";;".join(f"v_mov_b32 v{EACC+j}, -1" for j in range(4))
    pf += (f";;s_lshl_b32 s{sT0}, s{sRB}, 3;;s_add_u32 s{sT0}, s{sT0}, s{sC};;s_lshl_b32 s{sT0}, s{sT0}, 14;;s_lshl_b32 s{sT1}, s{sW}, 11;;s_add_u32 s{sT0}, s{sT0}, s{sT1};;"
           f"s_add_u32 s{sT0}, s{sT0}, {KVP_OFF};;buffer_store_dwordx4 {vr(EACC,4)}, v{vL16}, {sr(SWS,4)}, s{sT0} offen sc1;;"
           f"buffer_store_dwordx4 {vr(EACC,4)}, v{vL16}, {sr(SWS,4)}, s{sT0} offen offset:1024 sc1;;"
           f"s_lshl_b32 s{sT0}, s{sRT}, 15;;s_lshl_b32 s{sT1}, s{sC}, 12;;s_add_u32 s{sT0}, s{sT0}, s{sT1};;s_lshl_b32 s{sT1}, s{sP}, 11;;s_add_u32 s{sT0}, s{sT0}, s{sT1};;"
           f"s_add_u32 s{sT0}, s{sT0}, {PQ_OFF};;buffer_store_dwordx4 {vr(EACC,4)}, v{vL16}, {sr(SWS,4)}, s{sT0} offen sc1;;"
           f"buffer_store_dwordx4 {vr(EACC,4)}, v{vL16}, {sr(SWS,4)}, s{sT0} offen offset:1024 sc1;;"
           f"s_cmp_lg_u32 s{sW}, 7;;s_cbranch_scc1 K_NPF;;s_lshl_b32 s{sT0}, s{sC}, 4;;s_add_u32 s{sT0}, s{sT0}, s{sRB};;s_lshl_b32 s{sT0}, s{sT0}, 9;;"
           f"s_add_u32 s{sT0}, s{sT0}, {KVZ_OFF};;s_mov_b32 exec_hi, 0;;buffer_store_dwordx4 {vr(EACC,4)}, v{vL16}, {sr(SWS,4)}, s{sT0} offen sc1;;s_mov_b32 exec_hi, -1;;K_NPF:")
    e.ext(interleave(G[21:], d8[4:] + [pf], 0, 5))
    e("s_nop 2")
    e(f"v_add_f32 v{vQ}, v{vQ}, v{vQ+1}")
    e(f"v_and_b32 v{vS+3}, 31, v{vL}")
    e(f"v_mov_b32 v{vQ+1}, v{vQ}")
    e(f"s_lshl_b32 s{sT0}, s{sW}, 8"); e(f"s_add_u32 s{sT0}, s{sT0}, {STAT}")
    e(f"v_lshl_add_u32 v{vS+2}, v{vS+3}, 3, s{sT0}")
    e(f"v_permlane32_swap_b32 v{vQ}, v{vQ+1}")
    e(f"v_add_f32 v{RS+1}, v{vQ}, v{vQ+1}")
    e(f"ds_write_b32 v{vCSW}, v{CS}")
    e(f"ds_write_b64 v{vS+2}, {vr(RS,2)}")
    e(f"v_lshlrev_b32 v{vS+4}, 2, v{vS+3}"); e(f"v_add_u32 v{vS+4}, {GSY:#x}, v{vS+4}"); e(f"ds_write_b32 v{vS+4}, v{AUG+4}")
    e(f"v_xor_b32 v{vS+2}, 1024, v{vS+2}")
    for k in range(4): e(f"v_xor_b32 v{vTR+k}, 0x10000, v{vTR+k}")
    e(f"v_xor_b32 v{vCSW}, 1024, v{vCSW}")
    e("s_waitcnt vmcnt(0) lgkmcnt(0)")
    e("s_barrier")
    st("r0end")
    e(f"s_cmp_lg_u32 s{sW}, 7"); e("s_cbranch_scc1 K_NA")
    e(f"s_and_b32 s{sT0}, s2, 1"); e(f"s_lshl_b32 s{sT0}, s{sT0}, 7")
    e(f"v_mov_b32 v{vDUM}, 1")
    e("s_mov_b64 exec, 1")
    e(f"buffer_atomic_add v{vDUM}, v{AUG+4}, {sr(SDBG,4)}, s{sT0} offen sc1")
    e("s_mov_b64 exec, -1")
    e.label("K_NA")
    e(f"ds_read_b64 {vr(vS,2)}, v{vS+2}")
    e(f"v_cmp_gt_u32 vcc, 32, v{vL}")
    e(f"s_cmp_eq_u32 s{sW}, 7"); e(f"s_cselect_b32 s{sIT}, 1, 64")
    e("s_waitcnt lgkmcnt(0)")
    a, b = vS, vS + 1
    e(f"v_add_f32 v{a}, v{a}, v{RS}"); e(f"v_add_f32 v{b}, v{b}, v{RS+1}")
    e(f"v_mul_f32 v{a}, {f2u(-1.0/512):#x}, v{a}"); e(f"v_mul_f32 v{b}, {f2u(1.0/512):#x}, v{b}")
    e(f"v_fma_f32 v{b}, -v{a}, v{a}, v{b}"); e(f"v_cvt_pk_bf16_f32 v{AUG+2}, v{a}, v{a}")
    e(f"v_max_f32 v{b}, 0, v{b}")
    e(f"v_cvt_pk_bf16_f32 v{b}, v{b}, v{b}"); e(f"v_and_b32 v{b}, s{sMASK}, v{b}")
    e(f"v_add_f32 v{b}, {f2u(1e-5):#x}, v{b}"); e(f"v_cvt_pk_bf16_f32 v{b}, v{b}, v{b}")
    e(f"v_and_b32 v{b}, s{sMASK}, v{b}"); e(f"v_sqrt_f32 v{b}, v{b}")
    e(f"v_cndmask_b32 v{AUG+2}, 0, v{AUG+2}, vcc")
    e(f"v_cvt_pk_bf16_f32 v{AUG+3}, v{a}, v{b}")
    e(f"v_and_b32 v{b}, s{sMASK}, v{AUG+3}")
    e(f"v_rcp_f32 v{a}, v{b}")
    e(f"v_cndmask_b32 v{AUG+3}, 0, v{AUG+3}, vcc")

    APOLL = f"v_lshlrev_b32 v{vS+4}, 7, v{vL};;s_mov_b64 exec, 3;;buffer_load_dword v{vS+5}, v{vS+4}, {sr(SDBG,4)}, 0 offen sc1;;s_mov_b64 exec, -1"
    def apoll7():
        l2 = L("X")
        e(f"s_cmp_lg_u32 s{sW}, 7"); e(f"s_cbranch_scc1 {l2}")
        e(APOLL)
        e.label(l2)
    def r2_check():
        l2 = L("X")
        e(f"s_cmp_lg_u32 s{sW}, 7"); e(f"s_cbranch_scc1 {l2}")
        check([(APOLL, vS + 5, 3, 128)])
        e.label(l2)
    def publish(lev, vt):
        if OPT.get("x_nopub"): return "s_nop 0"
        return (f"v_mov_b32 v{vt}, {lev};;v_lshlrev_b32 v{vDUM}, 2, v{vL};;s_mov_b32 exec_hi, 0;;"
                f"buffer_store_dword v{vt}, v{vDUM}, {sr(SWS,4)}, s{sFLG} offen sc1;;s_mov_b32 exec_hi, -1")
    def midpub(n, lev, vt):
        a_, b_ = L("P"), L("P")
        return f"s_cbranch_vccz {a_};;s_waitcnt vmcnt({n});;s_branch {b_};;{a_}:;;s_waitcnt vmcnt(0);;{b_}:;;" + publish(lev, vt)
    def mgroups(swap=False, pre=()):
        PF = NWB - 1
        G = []
        g0 = [f"ds_read_b128 {vr(PK,4)}, v{vCSR}"] + list(pre)
        for s in range(PF): g0 += wrd(s)
        G.append(g0)
        for s in range(32):
            g = []
            if s + PF < 32: g += wrd(s + PF)
            g.append(f"s_waitcnt lgkmcnt({2 * min(PF, 31 - s)})")
            w, x = vr(WB + 4 * (s % NWB), 4), vr(XF + 4 * s, 4)
            a, b = (x, w) if swap else (w, x)
            d = EACC if s == 31 else ACC
            g.append(f"{MFMA} {vr(d,16)}, {a}, {b}, {'0' if s == 0 else vr(ACC,16)}")
            if s % 4 == 0: g.append(csm(s))
            G.append(g)
        return G
    def aug(bias=None, swap=False):
        l = Lst()
        c, t = PK, PK + 1
        l(f"v_add_f32 v{PK}, v{PK}, v{PK+1}"); l(f"v_add_f32 v{PK+2}, v{PK+2}, v{PK+3}"); l(f"v_add_f32 v{c}, v{PK}, v{PK+2}")
        l(f"v_cvt_pk_bf16_f32 v{t}, v{c}, v{c}"); l(f"v_and_b32 v{t}, s{sMASK}, v{t}"); l(f"v_sub_f32 v{t}, v{c}, v{t}")
        l(f"v_cvt_pk_bf16_f32 v{AUG}, v{c}, v{t}"); l(f"v_and_b32 v{c}, s{sMASK}, v{AUG}"); l(f"v_sub_f32 v{t}, v{t}, v{c}")
        l(f"v_cvt_pk_bf16_f32 v{AUG+1}, v{t}, {'v%d' % bias if bias is not None else '0'}")
        a, b = (vr(AUG+2,4), vr(AUG,4)) if swap else (vr(AUG,4), vr(AUG+2,4))
        l(f"s_nop 1;;{MFMA} {vr(EACC,16)}, {a}, {b}, {vr(EACC,16)}")
        for i in range(6): l("s_nop 1")
        return l
    def round_toggle():
        e(f"ds_write_b32 v{vCSW}, v{CS}")
        for k in range(4): e(f"v_xor_b32 v{vTR+k}, 0x10000, v{vTR+k}")
        e(f"v_xor_b32 v{vCSW}, 1024, v{vCSW}"); e(f"v_xor_b32 v{vCSR}, 1024, v{vCSR}")

    NL = 8
    sA0, sA1, sWK, sLB, sP0, sP1, sKV, sWO_, sXO, sXO2, sPF, sCNT = 30, 33, 43, 48, 51, 52, 53, 54, 55, 56, 57, 76
    SW2, SWO = SW, SAUX
    vTR0, vTR1, vXO, vPA = 4, 5, 6, 7
    ND = 128
    order = [0, 1, 2, 3, 16, 17, 18, 19, 4, 5, 6, 7, 20, 21, 22, 23, 8, 9, 10, 11, 24, 25, 26, 27, 12, 13, 14, 15]
    def wdma(i):
        lo = 2048 * (i % NL)
        S, base, off = (SW2, sWK, order[i] * 16384) if i < 28 else (SWO, sWO_, (i - 28) * 16384)
        return [f"s_add_u32 m0, s{sLB}, {lo + 1024*k};;s_add_u32 s{sT0}, s{base}, {off + 8192*k};;buffer_load_dwordx4 v{vDMA}, {sr(S,4)}, s{sT0} offen lds" for k in range(2)]
    def p2_setup():
        e(f"s_cmp_lg_u32 s{sISC}, 0"); e("s_cselect_b64 vcc, -1, 0")
        srd(e, SW2, 96, 97, 1792 * 1024)
        srd(e, SWO, 98, 99, 512 * 1024)
        e(f"s_lshr_b32 s{sT1}, s{sIDX}, 2"); e(f"s_lshl_b32 s{sT1}, s{sT1}, 7")
        e(f"s_mul_i32 s{sWK}, s{sRG}, {448*1024}"); e(f"s_add_u32 s{sWK}, s{sWK}, s{sT1}")
        e(f"s_lshl_b32 s{sWO_}, s{sRG}, 17"); e(f"s_add_u32 s{sWO_}, s{sWO_}, s{sT1}")
        e(f"s_lshl_b32 s{sLB}, s{sRG}, 14")
        e(f"s_lshr_b32 s{sT1}, s{sC}, 2"); e(f"s_lshl_b32 s{sP1}, s{sRB}, 1"); e(f"s_add_u32 s{sP1}, s{sP1}, s{sT1}")
        e(f"s_mul_i32 s{sA0}, s{sP1}, {2*114688}"); e(f"s_mul_i32 s{sT0}, s{sRG}, {28*1024}")
        if OPT.get("x_actoff"): e(f"s_add_u32 s{sA0}, s{sA0}, {32<<20}")
        e(f"s_add_u32 s{sA0}, s{sA0}, s{sT0}"); e(f"s_add_u32 s{sA1}, s{sA0}, 114688")
        e(f"v_lshrrev_b32 v{vXO}, 3, v{vL}"); e(f"v_lshlrev_b32 v{vXO}, 10, v{vXO}")
        e(f"v_and_b32 v{vTR0}, 7, v{vL}"); e(f"v_bfe_u32 v{vTR1}, v{vL}, 4, 1"); e(f"v_lshlrev_b32 v{vTR1}, 2, v{vTR1}")
        e(f"v_xor_b32 v{vTR1}, v{vTR0}, v{vTR1}"); e(f"v_lshl_add_u32 v{vDMA}, v{vTR1}, 4, v{vXO}")
        e(f"v_lshl_add_u32 v{vXO}, v{vTR0}, 4, v{vXO}")
        e(f"v_lshrrev_b32 v{vPA}, 1, v{vL}"); e(f"v_lshlrev_b32 v{vPA}, 9, v{vPA}")
        e(f"v_and_b32 v{vTR0}, 1, v{vL}"); e(f"v_lshl_add_u32 v{vPA}, v{vTR0}, 7, v{vPA}")
        e(f"s_lshl_b32 s{sPF}, s{sRT}, 11"); e(f"s_lshr_b32 s{sT0}, s{sC}, 2"); e(f"s_lshl_b32 s{sT0}, s{sT0}, 8")
        e(f"s_add_u32 s{sPF}, s{sPF}, s{sT0}"); e(f"s_add_u32 s{sPF}, s{sPF}, {FLG_OFF + 128*1024}")
    FPOLL = f"s_mov_b64 exec, 0xff;;buffer_load_dword v{ND}, v{vPA}, {sr(SWS,4)}, s{sPF} offen sc1;;s_mov_b64 exec, -1"
    def checkt(items, spin=SPIN):
        if OPT.get("x_nochk"): return "s_nop 0"
        top, ok = L("C"), L("C")
        t = [f"s_mov_b32 s{sCNT}, 0", f"{top}:"]
        for k, (pt, reg, msk, thr) in enumerate(items):
            t += [f"s_movk_i32 s{sT1}, {thr}", f"v_cmp_gt_u32 s[62:63], s{sT1}, v{reg}", "s_nop 0"]
            if k == 0: t.append(f"s_and_b32 s{sT0}, s62, {msk:#x}")
            else: t += [f"s_and_b32 s{sT1}, s62, {msk:#x}", f"s_or_b32 s{sT0}, s{sT0}, s{sT1}"]
        t += [f"s_cbranch_scc0 {ok}", "s_sleep 8"]
        t += [pt for (pt, reg, msk, thr) in items]
        t += [f"s_add_u32 s{sCNT}, s{sCNT}, 1", f"s_cmp_lt_u32 s{sCNT}, {spin}", "s_waitcnt vmcnt(0)", f"s_cbranch_scc1 {top}", f"{ok}:"]
        if OPT.get("cnt"): t += [f"s_mul_i32 s3, s3, 10", f"s_min_u32 s{sT0}, s{sCNT}, 9", f"s_add_u32 s3, s3, s{sT0}"]
        return ";;".join(t)
    def check(items): e(checkt(items))
    def sentinel(R, n, vt, reload):
        top, ok = L("V"), L("V")
        t = [f"s_mov_b32 s{sCNT}, 0", f"{top}:", f"v_max_u32 v{vt}, v{R}, v{R+1}"]
        t += [f"v_max3_u32 v{vt}, v{vt}, v{R+k}, v{R+k+1}" for k in range(2, n, 2)]
        t += [f"v_cmp_eq_u32 vcc, -1, v{vt}", "s_nop 0", "s_cmp_eq_u64 vcc, 0", f"s_cbranch_scc1 {ok}", "s_sleep 8", reload,
              f"s_add_u32 s{sCNT}, s{sCNT}, 1", f"s_cmp_lt_u32 s{sCNT}, {SPIN // 8}", "s_waitcnt vmcnt(0)", f"s_cbranch_scc1 {top}", f"{ok}:"]
        if OPT.get("cnt"): t += [f"s_mul_i32 s3, s3, 10", f"s_min_u32 s{sT0}, s{sCNT}, 9", f"s_add_u32 s3, s3, s{sT0}"]
        return ";;".join(t)
    RING, NU, NA = 160, 12, OPT.get("na", 8)
    unit = [i % NU for i in range(36)]
    ASC = "" if OPT.get("x_plain") else "sc1"
    def aload(i):
        R = RING + 8 * unit[i]; t = ""
        ks, b0, b1 = (order[i], sA0, sA1) if i < 28 else (i - 28, sP0, sKV)
        if i % 4 == 0: t = f"s_add_u32 s{sT3}, s{b0}, {1024*ks};;s_add_u32 s{sT4}, s{b1}, {1024*ks};;"
        return [t + f"buffer_load_dwordx4 {vr(R,4)}, v{vL16}, {sr(SWS,4)}, s{sT3} offen offset:{1024*(ks&3)} {ASC}",
                f"buffer_load_dwordx4 {vr(R+4,4)}, v{vL16}, {sr(SWS,4)}, s{sT4} offen offset:{1024*(ks&3)} {ASC}"]
    def tail(E, lev, vt, extra=(), polled=False):
        l1 = [] if polled else [guard(FPOLL)]
        for i in range(NL): l1 += [guard(t) for t in wdma(i)]
        if lev is not None: l1.append(midpub(2 * NL, lev, vt))
        l1.append(guard(f"s_waitcnt vmcnt({2*NL + (lev is not None)});;" + checkt([(FPOLL, ND, 0xff, 1)])))
        st("t1", l1)
        l2 = []
        for i in range(NA): l2 += [guard(t) for t in aload(i)]
        E = list(E)
        if OPT.get("x_skipe"): E = ["s_nop 0"] * 40
        for fr, it in sorted(extra, reverse=True): E.insert(int(len(E) * fr), it)
        h = int(len(E) * 0.45)
        return merge(E[:h], l1) + merge(E[h:], l2, 0.9)

    e(f"s_cmp_eq_u32 s{sTYPE}, 0")
    e("s_cbranch_scc1 K_QKV")
    vSS, vPB = vAUX + 8, vAUX + 9
    k0 = -2.0 * math.sqrt(2.0 / math.pi) * math.log2(math.e)
    e(f"v_mov_b32 v{vSS}, v{vS+1}")
    e(f"v_mul_f32 v{vC1}, {f2u(k0):#x}, v{vS}")
    e(f"v_mul_f32 v{vC0}, v{vS}, v{vS}"); e(f"v_mul_f32 v{vC0}, v{vC0}, v{vC1}"); e(f"v_mul_f32 v{vC0}, {f2u(0.044715):#x}, v{vC0}")
    for i in range(4): e(f"v_lshlrev_b32 v{vAUX+i}, 16, v{vAUX+i}")
    e(f"s_mul_i32 s{sOUT}, s{sRT}, 114688"); e(f"s_lshl_b32 s{sT0}, s{sP}, 11"); e(f"s_add_u32 s{sOUT}, s{sOUT}, s{sT0}")
    e(f"s_mov_b32 s{sSLOT}, 0"); e(f"s_mov_b32 s{sLEV}, 0")
    e("s_mov_b64 vcc, -1")
    def gelu():
        l = aug(bias=vAUX)
        for half in range(2):
            rng = range(8 * half, 8 * half + 8)
            for i in rng: l(f"v_mul_f32 v{TMP+i}, v{EACC+i}, v{EACC+i}")
            for i in rng: l(f"v_fma_f32 v{TMP+i}, v{TMP+i}, v{vC0}, v{vC1}")
            for i in rng: l(f"v_mul_f32 v{TMP+i}, v{EACC+i}, v{TMP+i}")
            for i in rng: l(f"v_exp_f32 v{TMP+i}, v{TMP+i}")
            for i in rng: l(f"v_fma_f32 v{TMP+i}, v{TMP+i}, v{vSS}, v{vSS}")
            for i in rng: l(f"v_rcp_f32 v{TMP+i}, v{TMP+i}")
            for i in rng: l(f"v_mul_f32 v{TMP+i}, v{EACC+i}, v{TMP+i}")
            for i in range(4): l(f"v_cvt_pk_bf16_f32 v{PK+8+4*half+i}, v{TMP+8*half+2*i}, v{TMP+8*half+2*i+1}")
            l(f"buffer_store_dwordx4 {vr(PK+8+4*half,4)}, v{vL16}, {sr(SWS,4)}, s{sST} offen offset:{1024*half} {STF}")
        return l
    e.label("K_FLOOP")
    e(f"s_lshl_b32 s{sST}, s{sCOL}, 5"); e(f"s_add_u32 s{sST}, s{sST}, s{sOUT}")
    e(f"s_add_u32 s{sDA}, s{sROWO}, s{sCOL+2}"); e(f"s_add_u32 s{sMA}, s{sLB0}, s{sSLOT}")
    mp = f"s_cmp_eq_u32 s{sLEV}, 0;;s_cbranch_scc1 K_FNP;;" + midpub(8, f"s{sLEV}", vPB) + f";;s_cmp_lg_u32 s{sLEV}, s{sIT};;s_cbranch_scc1 K_FNP;;" + APOLL + ";;K_FNP:"
    e.ext(interleave(mgroups(), merge(gelu(), dma8(True) + [mp], 0.5), 1, 31))
    for lv in (0, 1, 2):
        if OPT["stamps"] and f"b{lv+1}" in SP:
            e(f"s_cmp_lg_u32 s{sLEV}, {lv}"); e(f"s_cbranch_scc1 K_FB{lv}"); st(f"b{lv+1}"); e.label(f"K_FB{lv}")
    e(f"s_mov_b32 s{sCOL}, s{sCOL+1}"); e(f"s_mov_b32 s{sCOL+1}, s{sCOL+2}"); e(f"s_mov_b32 s{sCOL+2}, s{sCOL+3}")
    e(f"v_mov_b32 v{vAUX}, v{vAUX+1}"); e(f"v_mov_b32 v{vAUX+1}, v{vAUX+2}"); e(f"v_mov_b32 v{vAUX+2}, v{vAUX+3}")
    e(f"s_xor_b32 s{sSLOT}, s{sSLOT}, 0x10000")
    e(f"s_add_u32 s{sLEV}, s{sLEV}, 1")
    round_toggle()
    e(f"s_cmp_eq_u32 s{sLEV}, 3"); e("s_cbranch_scc1 K_FR3")
    e(f"s_waitcnt vmcnt(2) lgkmcnt(0)")
    e(f"s_cmp_eq_u32 s{sLEV}, 1"); e("s_cbranch_scc1 K_FNX")
    r2_check()
    e.label("K_FNX")
    e("s_barrier")
    if OPT["stamps"] and "r1end" in SP:
        e(f"s_cmp_lg_u32 s{sLEV}, 1"); e("s_cbranch_scc1 K_FS1"); st("r1end"); e.label("K_FS1")
    e(f"s_cmp_eq_u32 s{sLEV}, 1"); e("s_cbranch_scc1 K_FLOOP")
    st("r2end")
    e("s_mov_b64 vcc, 0")
    if not OPT.get("x_skipe"):
        e(f"s_cmp_lg_u32 s{sISC}, 0"); e("s_cbranch_scc1 K_FTAIL")
        e(f"s_setprio {OPT.get('gprio', 2)}"); e("s_branch K_FLOOP")
    e("s_branch K_FTAIL")
    e.label("K_FR3")
    e(f"v_mov_b32 v{vS}, {GSY:#x}"); e(f"v_mov_b32 v{vS+1}, 1")
    e("s_waitcnt lgkmcnt(0)")
    e("s_mov_b64 exec, 1"); e(f"ds_add_u32 v{vS}, v{vS+1}"); e("s_mov_b64 exec, -1")
    e.label("K_FSP")
    e(f"ds_read_b32 v{vS+1}, v{vS}")
    e("s_waitcnt lgkmcnt(0)")
    e(f"v_readfirstlane_b32 s{sT0}, v{vS+1}")
    e("s_nop 3")
    e(f"s_cmp_lt_u32 s{sT0}, 4"); e("s_cbranch_scc1 K_FSP")
    e.label("K_FTAIL")
    e(f"ds_read_b128 {vr(PK,4)}, v{vCSR}")
    e(f"s_lshl_b32 s{sST}, s{sCOL}, 5"); e(f"s_add_u32 s{sST}, s{sST}, s{sOUT}")
    p2_setup()
    e("s_waitcnt lgkmcnt(0)")
    st("t0")
    e.ext(tail(gelu(), f"s{sLEV}", vPB))
    e("s_cbranch_vccnz K_P2")
    e("s_waitcnt vmcnt(0)")
    e(publish(4, vPB))
    e("s_branch K_FIN")

    e.label("K_QKV")
    WT, SEL, PHT0 = vAUX, vAUX + 4, vAUX + 4
    e(f"v_mul_f32 v{vC0}, {f2u(math.log2(math.e)):#x}, v{vS}")
    e(f"s_lshl_b32 s{sT0}, s{sW}, 7"); e(f"s_add_u32 s{sST}, s{sT0}, {RVO}")
    e(f"v_lshl_add_u32 v{vS+1}, v{vS+3}, 2, s{sST}")
    e(f"ds_write_b32 v{vS+1}, v{vS}")
    e(f"v_lshrrev_b32 v{vC1}, 5, v{vL}"); e(f"v_lshl_add_u32 v{vC1}, v{vC1}, 4, s{sST}")
    def qconst():
        l = Lst()
        for j in range(4): l(f"v_lshl_or_b32 v{WT+j}, v{vAUX+2*j+1}, 16, v{vAUX+2*j}")
        l(f"v_and_b32 v{vS+1}, 15, v{vL}"); l(f"v_lshrrev_b32 v{vS+4}, 5, v{vL}")
        l(f"v_lshlrev_b32 v{vS+4}, 2, v{vS+4}"); l(f"v_sub_u32 v{vS+4}, v{vS+1}, v{vS+4}")
        l(f"v_mov_b32 v{vS+2}, s{sLO}"); l(f"v_mov_b32 v{vS+3}, s{sHI}")
        for t, f0 in enumerate((0, 2, 8, 10)):
            l(f"v_cmp_eq_u32 vcc, {f0}, v{vS+4};;v_cmp_eq_u32 s[62:63], {f0+1}, v{vS+4};;s_nop 0;;"
              f"v_cndmask_b32 v{SEL+t}, 0, v{vS+2}, vcc;;v_cndmask_b32 v{SEL+t}, v{SEL+t}, v{vS+3}, s[62:63]")
        return l
    def softmax(isk):
        l = aug()
        A1, A2 = TMP, TMP + 4
        for j in range(4):
            l(f"v_cndmask_b32 v{A1+j}, 0, v{WT+j}, {sr(sLT16,2)}"); l(f"v_cndmask_b32 v{A2+j}, v{WT+j}, 0, {sr(sLT16,2)}")
        for i in range(8): l(f"v_cvt_pk_bf16_f32 v{PK+i}, v{EACC+2*i}, v{EACC+2*i+1}")
        l(f"s_nop 1;;{MFMA} {vr(EACC,16)}, {vr(A1,4)}, {vr(PK,4)}, 0;;{MFMA} {vr(EACC,16)}, {vr(A2,4)}, {vr(PK+4,4)}, {vr(EACC,16)}")
        for i in range(6): l("s_nop 1")
        for a in range(2):
            P = EACC + 8 * a
            mx, mn = vS, vS + 1
            l(f"v_max3_f32 v{mx}, v{P}, v{P+1}, v{P+2}"); l(f"v_max3_f32 v{mn}, -v{P}, -v{P+1}, -v{P+2}")
            l(f"v_max3_f32 v{mx}, v{mx}, v{P+3}, v{P+4}"); l(f"v_max3_f32 v{mn}, v{mn}, -v{P+3}, -v{P+4}")
            l(f"v_max3_f32 v{mx}, v{mx}, v{P+5}, v{P+6}"); l(f"v_max3_f32 v{mn}, v{mn}, -v{P+5}, -v{P+6}")
            l(f"v_max_f32 v{mx}, v{mx}, v{P+7}"); l(f"v_max_f32_e64 v{mn}, v{mn}, -v{P+7}")
            l("s_nop 1"); l(f"v_permlane32_swap_b32 v{mx}, v{mn}")
            l(f"v_max_f32 v{mx}, v{mx}, v{mn}")
            l(f"v_mul_f32_e64 v{mx}, -v{mx}, v{vC0}")
            l(f"v_mov_b32 v{mn}, v{mx}")
            l("s_nop 1"); l(f"v_permlane32_swap_b32 v{mx}, v{mn}")
            for j in range(8): l(f"v_fma_f32 v{TMP+j}, v{P+j}, v{vC0}, v{mx}")
            for j in range(8): l(f"v_fma_f32 v{TMP+8+j}, -v{P+j}, v{vC0}, v{mn}")
            for j in range(16): l(f"v_exp_f32 v{TMP+j}, v{TMP+j}")
            s0, s1, s2, s3 = vS + 2, vS + 3, vS + 4, vS + 5
            l(f"v_add_f32 v{s0}, v{TMP}, v{TMP+1}"); l(f"v_add_f32 v{s1}, v{TMP+8}, v{TMP+9}")
            l(f"v_add_f32 v{s2}, v{TMP+2}, v{TMP+3}"); l(f"v_add_f32 v{s3}, v{TMP+10}, v{TMP+11}")
            for j in (4, 6):
                l(f"v_add_f32 v{s0}, v{s0}, v{TMP+j}"); l(f"v_add_f32 v{s1}, v{s1}, v{TMP+8+j}")
                l(f"v_add_f32 v{s2}, v{s2}, v{TMP+j+1}"); l(f"v_add_f32 v{s3}, v{s3}, v{TMP+8+j+1}")
            l(f"v_add_f32 v{s0}, v{s0}, v{s2}"); l(f"v_add_f32 v{s1}, v{s1}, v{s3}")
            l("s_nop 1"); l(f"v_permlane32_swap_b32 v{s0}, v{s1}")
            l(f"v_add_f32 v{s0}, v{s0}, v{s1}")
            l(f"v_rcp_f32 v{s0}, v{s0}")
            l("s_nop 0"); l(f"v_mov_b32 v{s1}, v{s0}")
            l("s_nop 1"); l(f"v_permlane32_swap_b32 v{s0}, v{s1}")
            for j in range(8): l(f"v_mul_f32 v{TMP+j}, v{TMP+j}, v{s0}")
            for j in range(8): l(f"v_mul_f32 v{TMP+8+j}, v{TMP+8+j}, v{s1}")
            for j in range(8): l(f"v_cvt_pk_bf16_f32 v{PK+8*a+j}, v{TMP+2*j}, v{TMP+2*j+1}")
            if not isk:
                for i in range(2):
                    l(f"buffer_store_dwordx4 {vr(PK+8*a+4*i,4)}, v{vL16}, {sr(SWS,4)}, s{sOUT} offen offset:{2048*a+1024*i} {STF}")
        if isk:
            SP_, SM = EACC, EACC + 4
            for j in range(4):
                l(f"v_cndmask_b32 v{SP_+j}, 0, v{SEL+j}, {sr(sLT16,2)}"); l(f"v_cndmask_b32 v{SM+j}, v{SEL+j}, 0, {sr(sLT16,2)}")
            for a in range(2):
                l(f"s_nop 1;;{MFMA} {vr(TMP,16)}, {vr(PK+8*a,4)}, {vr(SP_,4)}, 0;;{MFMA} {vr(TMP,16)}, {vr(PK+8*a+4,4)}, {vr(SM,4)}, {vr(TMP,16)}")
                for i in range(6): l("s_nop 1")
                dst = PHT0 if a == 0 else PK + 8
                for j in range(8): l(f"v_cvt_pk_bf16_f32 v{dst+j}, v{TMP+2*j}, v{TMP+2*j+1}")
        return l
    def vepi():
        l = aug(swap=True)
        l(f"v_mov_b32 v{vS}, s{sONES}")
        for i in range(16): l(f"v_mul_f32 v{EACC+i}, v{EACC+i}, v{TMP+i}")
        for i in range(8): l(f"v_cvt_pk_bf16_f32 v{PK+i}, v{EACC+2*i}, v{EACC+2*i+1}")
        for i in range(8):
            l(f"v_cndmask_b32 v{TMP+i}, v{vS}, v{PK+i}, {sr(sLT16,2)}")
            l(f"v_cndmask_b32 v{TMP+8+i}, v{PK+i}, v{vS}, {sr(sLT16,2)}")
        PHT = (PHT0, PK + 8)
        for a in range(2):
            l(f"s_nop 1;;{MFMA} {vr(EACC,16)}, {vr(PHT[a],4)}, {vr(TMP+8*a,4)}, 0;;{MFMA} {vr(EACC,16)}, {vr(PHT[a]+4,4)}, {vr(TMP+8*a+4,4)}, {vr(EACC,16)}")
            for i in range(6): l("s_nop 1")
            for q in range(4): l(f"ds_write_b128 v{vS+1}, {vr(EACC+4*q,4)} offset:{4096*a + 1024*q}")
            l("s_nop 3")
        return l
    e(f"s_add_u32 s{sDA}, s{sROWO}, s{sCOL+2}"); e(f"s_mov_b32 s{sMA}, s{sLB0}")
    tch = (f"s_cmp_ge_u32 s{sW}, 4;;s_cbranch_scc1 K_NT;;s_lshl_b32 s{sT2}, s{sRB}, 3;;s_add_u32 s{sT2}, s{sT2}, s{sC};;s_lshl_b32 s{sT2}, s{sT2}, 1;;"
           f"s_and_b32 s{sT0}, s{sW}, 1;;s_add_u32 s{sT2}, s{sT2}, s{sT0};;s_cmp_lt_u32 s{sW}, 2;;s_cselect_b64 {sr(SAUX,2)}, s[96:97], s[98:99];;"
           f"s_mov_b32 s{sT0}, {1792*1024};;s_cselect_b32 s{SAUX+2}, s{sT0}, {512*1024};;s_movk_i32 s{sT0}, 7168;;s_cselect_b32 s{sT0}, s{sT0}, 2048;;"
           f"s_cselect_b32 s{sT1}, 56, 16;;s_mul_i32 s{sT0}, s{sT0}, s{sT2};;v_lshlrev_b32 v{vDUM}, 7, v{vL};;s_bfm_b64 exec, s{sT1}, 0;;"
           f"buffer_load_dword v{vDUM}, v{vDUM}, {sr(SAUX,4)}, s{sT0} offen;;s_mov_b64 exec, -1;;K_NT:")
    e.ext(interleave(mgroups(swap=True), merge(qconst() + softmax(True), dma8() + [tch], 0.35), 1, 31))
    st("b1")
    round_toggle()
    e("s_waitcnt vmcnt(0)")
    apoll7()
    e(f"s_lshl_b32 s{sT0}, s{sP}, 15"); e(f"s_add_u32 s{sT0}, s{sT0}, {YB}")
    e(f"s_lshl_b32 s{sT1}, s{sRG}, 13"); e(f"s_add_u32 s{sT1}, s{sT1}, s{sT0}")
    e(f"v_add_u32 v{vS+1}, s{sT1}, v{vL16}")
    e(f"s_lshl_b32 s{sT1}, s{sRG}, 10"); e(f"s_add_u32 s{sT1}, s{sT1}, s{sT0}")
    e(f"v_add_u32 v{vS+2}, s{sT1}, v{vL16}")
    e(f"s_lshl_b32 s{sOUT}, s{sRB}, 17"); e(f"s_lshl_b32 s{sT0}, s{sC}, 14"); e(f"s_add_u32 s{sOUT}, s{sOUT}, s{sT0}")
    e(f"s_lshl_b32 s{sT0}, s{sP}, 13"); e(f"s_add_u32 s{sOUT}, s{sOUT}, s{sT0}")
    e(f"s_lshl_b32 s{sT0}, s{sRG}, 10"); e(f"s_add_u32 s{sOUT}, s{sOUT}, s{sT0}"); e(f"s_add_u32 s{sOUT}, s{sOUT}, {KVP_OFF}")
    e(f"s_add_u32 s{sT2}, s{sOUT}, 4096")
    e(f"v_xor_b32 v{vS+3}, 256, v{vL16}")
    e("s_waitcnt lgkmcnt(0)"); e("s_barrier")
    st("r1end")
    VS = OPT.get('vs', 20)
    MG = mgroups(pre=[f"ds_read_b128 {vr(TMP+4*q,4)}, v{vC1} offset:{32*q}" for q in range(4)])
    e.ext(interleave(MG[:VS+1], vepi(), 1, VS))
    st("m2a")
    e("s_waitcnt vmcnt(0) lgkmcnt(0)")
    r2_check()
    e("s_barrier")
    st("m2b")
    for a in range(2):
        for w in range(4):
            e(f"ds_read_b128 {vr(TMP+16*a+4*w,4)}, v{vS+2} offset:{8192*w + 4096*a}")
    kr = Lst()
    for a in range(2):
        B = TMP + 16 * a
        for j in range(4): kr(f"v_add_f32 v{B+j}, v{B+j}, v{B+4+j}")
        for j in range(4): kr(f"v_add_f32 v{B+8+j}, v{B+8+j}, v{B+12+j}")
        for j in range(4): kr(f"v_add_f32 v{B+j}, v{B+j}, v{B+8+j}")
        if a == 0: kr(f"buffer_store_dwordx4 {vr(B,4)}, v{vL16}, {sr(SWS,4)}, s{sOUT} offen sc1")
        else:      kr(f"buffer_store_dwordx4 {vr(B,4)}, v{vS+3}, {sr(SWS,4)}, s{sT2} offen sc1")
    e.ext(interleave(MG[VS+1:], kr, 4, 8))
    st("b2")
    round_toggle()
    e("s_waitcnt lgkmcnt(0)")
    e("s_barrier")
    st("r2end")
    e(f"ds_read_b128 {vr(PK,4)}, v{vCSR}")
    p2_setup()
    e(f"s_lshl_b32 s{sT0}, s{sW}, 13"); e(f"s_add_u32 s{sT0}, s{sT0}, {YB}")
    e(f"v_add_u32 v{vS+1}, s{sT0}, v{vL16}")
    e("s_waitcnt lgkmcnt(0)")
    lq = aug()
    lq += [f"v_cvt_pk_bf16_f32 v{PK+8+i}, v{EACC+2*i}, v{EACC+2*i+1}" for i in range(8)]
    lq += [f"ds_write_b128 v{vS+1}, {vr(PK+8,4)} offset:4096", f"ds_write_b128 v{vS+1}, {vr(PK+12,4)} offset:5120", f"ds_write_b128 v{vS+1}, {vr(WT,4)} offset:6144"]
    lq += [f"s_lshl_b32 s{sT0}, s{sW}, 2;;s_add_u32 s{sT0}, s{sT0}, {GSY+32};;v_mov_b32 v{vS+2}, s{sT0};;v_mov_b32 v{vS+3}, 1;;s_waitcnt lgkmcnt(0);;ds_write_b32 v{vS+2}, v{vS+3}"]
    e(guard(FPOLL))
    e.ext(lq)
    e("s_cbranch_vccz K_QG")
    e(f"s_setprio {OPT.get('cprio', 0)}")
    e.ext(tail([], None, vC1, polled=True))
    e("s_branch K_P2")

    e.label("K_QG")
    VBr, QBc, QB0, WT0, SPm, SMm, PHT0, RED, PHS, KVR = 128, 136, 144, 152, 96, 100, 104, 160, 192, 208
    vSL, vONE, vRS, vRD = 112, 113, vTR0, vTR1
    sU, sGI = sA0, sA1
    e(f"v_mov_b32 v{vSL}, v{vS+1}"); e(f"v_mov_b32 v{vONE}, s{sONES}")
    e(f"v_xor_b32 v{vSL+2}, 16, v{vS+2}")
    e(f"s_setprio {OPT.get('gprio', 2)}")
    for j in range(8): e(f"v_mov_b32 v{QBc+j}, v{PK+8+j}")
    def softcore(src):
        l = Lst()
        A1, A2 = TMP, TMP + 4
        for j in range(4):
            l(f"v_cndmask_b32 v{A1+j}, 0, v{WT+j}, {sr(sLT16,2)}"); l(f"v_cndmask_b32 v{A2+j}, v{WT+j}, 0, {sr(sLT16,2)}")
        l(f"s_nop 1;;{MFMA} {vr(EACC,16)}, {vr(A1,4)}, {vr(src,4)}, 0;;{MFMA} {vr(EACC,16)}, {vr(A2,4)}, {vr(src+4,4)}, {vr(EACC,16)}")
        l("s_nop 11")
        for a in range(2):
            P = EACC + 8 * a
            mx, mn = vS, vS + 1
            l(f"v_max3_f32 v{mx}, v{P}, v{P+1}, v{P+2}"); l(f"v_max3_f32 v{mn}, -v{P}, -v{P+1}, -v{P+2}")
            l(f"v_max3_f32 v{mx}, v{mx}, v{P+3}, v{P+4}"); l(f"v_max3_f32 v{mn}, v{mn}, -v{P+3}, -v{P+4}")
            l(f"v_max3_f32 v{mx}, v{mx}, v{P+5}, v{P+6}"); l(f"v_max3_f32 v{mn}, v{mn}, -v{P+5}, -v{P+6}")
            l(f"v_max_f32 v{mx}, v{mx}, v{P+7}"); l(f"v_max_f32_e64 v{mn}, v{mn}, -v{P+7}")
            l("s_nop 1"); l(f"v_permlane32_swap_b32 v{mx}, v{mn}")
            l(f"v_max_f32 v{mx}, v{mx}, v{mn}")
            l(f"v_mul_f32_e64 v{mx}, -v{mx}, v{vC0}")
            l(f"v_mov_b32 v{mn}, v{mx}")
            l("s_nop 1"); l(f"v_permlane32_swap_b32 v{mx}, v{mn}")
            for j in range(8): l(f"v_fma_f32 v{TMP+j}, v{P+j}, v{vC0}, v{mx}")
            for j in range(8): l(f"v_fma_f32 v{TMP+8+j}, -v{P+j}, v{vC0}, v{mn}")
            for j in range(16): l(f"v_exp_f32 v{TMP+j}, v{TMP+j}")
            s0, s1, s2, s3 = vS + 2, vS + 3, vS + 4, vS + 5
            l(f"v_add_f32 v{s0}, v{TMP}, v{TMP+1}"); l(f"v_add_f32 v{s1}, v{TMP+8}, v{TMP+9}")
            l(f"v_add_f32 v{s2}, v{TMP+2}, v{TMP+3}"); l(f"v_add_f32 v{s3}, v{TMP+10}, v{TMP+11}")
            for j in (4, 6):
                l(f"v_add_f32 v{s0}, v{s0}, v{TMP+j}"); l(f"v_add_f32 v{s1}, v{s1}, v{TMP+8+j}")
                l(f"v_add_f32 v{s2}, v{s2}, v{TMP+j+1}"); l(f"v_add_f32 v{s3}, v{s3}, v{TMP+8+j+1}")
            l(f"v_add_f32 v{s0}, v{s0}, v{s2}"); l(f"v_add_f32 v{s1}, v{s1}, v{s3}")
            l("s_nop 1"); l(f"v_permlane32_swap_b32 v{s0}, v{s1}")
            l(f"v_add_f32 v{s0}, v{s0}, v{s1}")
            l(f"v_rcp_f32 v{s0}, v{s0}")
            l("s_nop 0"); l(f"v_mov_b32 v{s1}, v{s0}")
            l("s_nop 1"); l(f"v_permlane32_swap_b32 v{s0}, v{s1}")
            for j in range(8): l(f"v_mul_f32 v{TMP+j}, v{TMP+j}, v{s0}")
            for j in range(8): l(f"v_mul_f32 v{TMP+8+j}, v{TMP+8+j}, v{s1}")
            for j in range(8): l(f"v_cvt_pk_bf16_f32 v{PK+8*a+j}, v{TMP+2*j}, v{TMP+2*j+1}")
        return l
    def ldspin(lbl, areg, n):
        e.label(lbl)
        e(f"ds_read_b32 v{vS+5}, v{areg}"); e("s_waitcnt lgkmcnt(0)")
        e(f"v_readfirstlane_b32 s{sT0}, v{vS+5}"); e("s_nop 3")
        e(f"s_cmp_lt_u32 s{sT0}, {n}"); e(f"s_cbranch_scc1 {lbl}")
    e(f"s_lshl_b32 s{sU}, s{sC}, 4"); e(f"s_add_u32 s{sU}, s{sU}, s{sRB}"); e(f"s_lshl_b32 s{sU}, s{sU}, 1"); e(f"s_add_u32 s{sU}, s{sU}, s{sRG}")
    e(f"v_lshrrev_b32 v{vS+2}, 4, v{vL}"); e(f"v_and_b32 v{vS+3}, 15, v{vL}"); e(f"v_lshlrev_b32 v{vS+3}, 4, v{vS+3}")
    e(f"v_lshl_add_u32 v{vRS}, v{vS+2}, 17, v{vS+3}")
    e(f"v_lshl_add_u32 v{vRD}, v{vS+2}, 2, v{vS+3}")
    e(f"s_lshr_b32 s{sPF}, s{sU}, 2"); e(f"s_lshl_b32 s{sPF}, s{sPF}, 11"); e(f"s_and_b32 s{sT1}, s{sU}, 3"); e(f"s_lshl_b32 s{sT1}, s{sT1}, 8")
    e(f"s_add_u32 s{sPF}, s{sPF}, s{sT1}"); e(f"s_add_u32 s{sPF}, s{sPF}, {KVP_OFF}")
    RLOAD = f"s_mov_b32 s{sT0}, s{sPF}"
    for u in range(4):
        RLOAD += f";;buffer_load_dwordx4 {vr(RED+8*u,4)}, v{vRS}, {sr(SWS,4)}, s{sT0} offen sc1;;buffer_load_dwordx4 {vr(RED+8*u+4,4)}, v{vRS}, {sr(SWS,4)}, s{sT0} offen offset:1024 sc1"
        if u < 3: RLOAD += f";;s_add_u32 s{sT0}, s{sT0}, {4*131072}"
    g1 = L("R")
    mid = f"s_add_u32 s{sT0}, s{sRG}, s{sGI};;s_cmp_ge_u32 s{sT0}, 2;;s_cbranch_scc1 {g1};;" + RLOAD + f";;{g1}:"
    e(f"s_mov_b32 s{sGI}, 0")
    e.label("K_GQ")
    sq = softcore(QBc)
    sq.insert(int(len(sq) * OPT.get("gmid", 40) / 100), mid)
    e.ext(sq)
    e(f"s_cmp_lg_u32 s{sGI}, 0"); e("s_cbranch_scc1 K_GQD")
    st("gk")
    e(f"s_cmp_ge_u32 s{sRG}, 2"); e("s_cbranch_scc1 K_GNR")
    e("s_waitcnt vmcnt(0)")
    e(sentinel(RED, 32, vS, RLOAD))
    e(f"s_lshl_b32 s{sT0}, s{sU}, 8"); e(f"s_add_u32 s{sT0}, s{sT0}, {KVZ_OFF}")
    for stp in (16, 8):
        for j in range(stp): e(f"v_add_f32 v{RED+j}, v{RED+j}, v{RED+stp+j}")
    e("s_nop 1")
    for k in range(4): e(f"v_permlane32_swap_b32 v{RED+k}, v{RED+k+4}")
    for k in range(4): e(f"v_add_f32 v{RED+k}, v{RED+k}, v{RED+k+4}")
    e("s_nop 1")
    for k in range(2): e(f"v_permlane16_swap_b32 v{RED+k}, v{RED+k+2}")
    for k in range(2): e(f"v_add_f32 v{RED+k}, v{RED+k}, v{RED+k+2}")
    e(f"v_cvt_pk_bf16_f32 v{RED}, v{RED}, v{RED+1}")
    e(f"buffer_store_dword v{RED}, v{vRD}, {sr(SWS,4)}, s{sT0} offen sc1")
    e(f"v_mov_b32 v{vS}, {GSY:#x}"); e(f"v_mov_b32 v{vS+1}, 1")
    e("s_mov_b64 exec, 1"); e(f"ds_add_u32 v{vS}, v{vS+1}"); e("s_mov_b64 exec, -1")
    e.label("K_GNR")
    ldspin("K_GQS", vSL + 2, 1)
    e(f"v_xor_b32 v{vSL}, 0x8000, v{vSL}")
    e(f"ds_read_b128 {vr(WT,4)}, v{vSL} offset:6144")
    e(f"ds_read_b128 {vr(QBc,4)}, v{vSL} offset:4096"); e(f"ds_read_b128 {vr(QBc+4,4)}, v{vSL} offset:5120")
    for j in range(16): e(f"v_mov_b32 v{PHS+j}, v{PK+j}")
    e(f"s_mov_b32 s{sGI}, 2")
    e("s_waitcnt lgkmcnt(0)")
    e("s_branch K_GQ")
    e.label("K_GQD")
    st("gq")
    e(f"v_mov_b32 v{vS}, {GSY:#x}"); e(f"v_mov_b32 v{vS+1}, 1")
    e("s_mov_b64 exec, 1"); e(f"ds_add_u32 v{vS}, v{vS+1}"); e("s_mov_b64 exec, -1")
    ldspin("K_GOS", vS, 6)
    st("gr")
    e(f"s_lshl_b32 s{sT0}, s{sP}, 1"); e(f"s_xor_b32 s{sT0}, s{sT0}, s{sRG}"); e(f"s_lshl_b32 s{sT0}, s{sT0}, 11")
    e(f"s_lshl_b32 s{sT2}, s{sC}, 13"); e(f"s_add_u32 s{sT2}, s{sT2}, s{sT0}"); e(f"s_add_u32 s{sT2}, s{sT2}, {KVZ_OFF}")
    ZLOAD = f"buffer_load_dwordx4 {vr(KVR,4)}, v{vL16}, {sr(SWS,4)}, s{sT2} offen sc1;;buffer_load_dwordx4 {vr(KVR+4,4)}, v{vL16}, {sr(SWS,4)}, s{sT2} offen offset:1024 sc1"
    e(ZLOAD)
    e(f"s_lshl_b32 s{sT0}, s{sRG}, 13"); e(f"s_add_u32 s{sT0}, s{sT0}, {YB}"); e(f"v_add_u32 v{vS+2}, s{sT0}, v{vL16}")
    e(f"v_add_u32 v{vS+3}, {YB:#x}, v{vL16}")
    e("s_waitcnt vmcnt(0)")
    e(sentinel(KVR, 8, vS + 4, ZLOAD))
    e(f"ds_write_b128 v{vS+2}, {vr(KVR,4)}"); e(f"ds_write_b128 v{vS+2}, {vr(KVR+4,4)} offset:1024")
    e("s_waitcnt lgkmcnt(0)")
    e("s_mov_b64 exec, 1"); e(f"ds_add_u32 v{vS}, v{vS+1}"); e("s_mov_b64 exec, -1")
    ldspin("K_GZS", vS, 10)
    for k in range(8): e(f"ds_read_b128 {vr(KVR+4*k,4)}, v{vS+3} offset:{8192*(k>>1) + 1024*(k&1)}")
    st("gv")
    e(f"s_lshl_b32 s{sT2}, s{sRT}, 15"); e(f"s_lshl_b32 s{sT0}, s{sC}, 12"); e(f"s_add_u32 s{sT2}, s{sT2}, s{sT0}")
    e(f"s_lshl_b32 s{sT0}, s{sP}, 11"); e(f"s_add_u32 s{sT2}, s{sT2}, s{sT0}"); e(f"s_add_u32 s{sT2}, s{sT2}, {PQ_OFF}")
    e(f"s_xor_b32 s{sT3}, s{sT2}, 2048")
    e("s_waitcnt lgkmcnt(0)")
    NDG = (64, 80, 128, 144)
    for hd in range(4):
        ph = (PHS if hd < 2 else PK) + 8 * (hd & 1); d = vr(NDG[hd], 16)
        e(f"{MFMA} {d}, {vr(KVR+8*hd,4)}, {vr(ph,4)}, 0"); e(f"{MFMA} {d}, {vr(KVR+8*hd+4,4)}, {vr(ph+4,4)}, {d}")
    e("s_nop 5")
    for hd in range(4):
        d = NDG[hd]
        e(f"v_add_f32 v{vS}, {f2u(1e-6):#x}, v{d+8}"); e(f"v_rcp_f32 v{vS}, v{vS}"); e("s_nop 0")
        for j in range(8): e(f"v_mul_f32 v{d+j}, v{d+j}, v{vS}")
        for j in range(4): e(f"v_cvt_pk_bf16_f32 v{TMP+4*hd+j}, v{d+2*j}, v{d+2*j+1}")
        e(f"buffer_store_dwordx4 {vr(TMP+4*hd,4)}, v{vL16}, {sr(SWS,4)}, s{sT2 if hd < 2 else sT3} offen offset:{1024*(hd&1)} sc1")
    e("s_branch K_FIN")

    e.label("K_P2")
    e(f"s_setprio {OPT.get('cprio', 0)}")
    st("p2start")
    vS2, vXB, vX, vB, OP, vCP = 8, 16, 32, 40, 32, 44
    ACC2, WB2 = 48, 112
    SO, SB2 = 64, 68
    e("s_load_dwordx4 s[72:75], s[0:1], 64")
    e(f"s_mov_b32 s{sT2}, s{sP1}")
    LA = OPT.get("la", 4)
    nun = [1] * 36
    ops = [i for i in range(NA) for _ in range(2)]
    state = dict(na=NA, nw=NL, done=-1)
    FIRST = {8: 2, 16: 3, 24: 4}
    QPOLL = f"s_sub_u32 s{sT0}, s{sPF}, {128*1024};;s_mov_b64 exec, 0xff;;buffer_load_dword v{ND}, v{vPA}, {sr(SWS,4)}, s{sT0} offen sc1;;s_mov_b64 exec, -1"
    def tagwait(tag):
        last = max(i for i, o in enumerate(ops) if o == tag)
        e(f"s_waitcnt vmcnt({min(63, len(ops) - 1 - last)})")
    def issue_a(i):
        R = RING + 8 * unit[i]
        if i in FIRST and not OPT.get("x_nopoll"):
            st(f"cb{i}"); tagwait(f"p{i}"); check([(FPOLL, ND, 0xff, FIRST[i])]); st(f"ca{i}")
        e.ext(aload(i)); ops.extend([i] * 2)
        PL = OPT.get("pl", 3)
        if i + PL in FIRST and not OPT.get("x_nopoll"): e(FPOLL); ops.append(f"p{i+PL}")
    def pump():
        n = 0
        while state["na"] < 36:
            i = state["na"]
            us = set(range(unit[i], unit[i] + nun[i]))
            if any(us & set(range(unit[q], unit[q] + nun[q])) for q in range(state["done"] + 1, i)): break
            if i - state["done"] > LA: break
            issue_a(i); state["na"] += 1; n += 1
        while state["nw"] < 36 and state["nw"] - state["done"] <= OPT.get("lw", NL):
            e.ext(wdma(state["nw"])); ops.extend([state["nw"]] * 2); state["nw"] += 1; n += 1
        return n
    for fi in FIRST:
        if NA <= fi < NA + OPT.get("pl", 3) and not OPT.get("x_nopoll"): e(FPOLL); ops.append(f"p{fi}")
    pump()
    e(f"s_lshr_b32 s{sT1}, s{sIDX}, 2"); e(f"s_lshl_b32 s{sT1}, s{sT1}, 7")
    e(f"s_lshl_b32 s{sXO}, s{sT2}, 16"); e(f"s_add_u32 s{sXO}, s{sXO}, s{sT1}"); e(f"s_add_u32 s{sXO}, s{sXO}, s{sLB}")
    e(f"s_add_u32 s{sXO2}, s{sXO}, 8192")
    e(f"buffer_load_dwordx4 {vr(vX,4)}, v{vXO}, {sr(SX,4)}, s{sXO} offen")
    e(f"buffer_load_dwordx4 {vr(vX+4,4)}, v{vXO}, {sr(SX,4)}, s{sXO2} offen")
    e(f"v_and_b32 v{vS2+5}, 0x70, v{vL16}")
    e("s_waitcnt lgkmcnt(0)")
    srd(e, SB2, 72, 73, 1024)
    srd(e, SO, 74, 75, 2048 * 1024)
    e(f"buffer_load_dwordx4 {vr(vB,4)}, v{vS2+5}, {sr(SB2,4)}, s{sT1} offen")
    ops.extend(["x"] * 3)
    e(f"s_lshl_b32 s{sP0}, s{sT2}, 16"); e(f"s_lshr_b32 s{sT0}, s{sLB}, 1"); e(f"s_add_u32 s{sP0}, s{sP0}, s{sT0}"); e(f"s_add_u32 s{sP0}, s{sP0}, {PQ_OFF}")
    e(f"s_add_u32 s{sKV}, s{sP0}, 32768")
    e(f"v_bfe_u32 v{vS2+6}, v{vL}, 2, 2"); e(f"v_lshrrev_b32 v{vS2+4}, 5, v{vL}"); e(f"v_bfe_u32 v{vS2+3}, v{vL}, 4, 1")
    e(f"v_lshl_add_u32 v{vS2+7}, v{vS2+4}, 2, v{vS2+6}"); e(f"v_lshlrev_b32 v{vTR0}, 7, v{vS2+7}")
    e(f"v_lshl_add_u32 v{vTR0}, v{vS2+3}, 5, v{vTR0}")
    e(f"v_and_b32 v{vS2+7}, 3, v{vL}"); e(f"v_lshl_add_u32 v{vTR0}, v{vS2+7}, 3, v{vTR0}")
    e(f"v_lshrrev_b32 v{vS2+6}, 1, v{vS2+6}"); e(f"v_lshl_add_u32 v{vTR0}, v{vS2+6}, 6, v{vTR0}")
    e(f"v_add_u32 v{vTR0}, s{sLB}, v{vTR0}")
    e(f"v_xor_b32 v{vTR1}, 64, v{vTR0}")
    def wreads(i):
        off = 2048 * (i % NL); b = WB2 + 8 * (i & 1)
        e(f"ds_read_b64_tr_b16 {vr(b,2)}, v{vTR0} offset:{off}")
        e(f"ds_read_b64_tr_b16 {vr(b+2,2)}, v{vTR0} offset:{off+1024}")
        e(f"ds_read_b64_tr_b16 {vr(b+4,2)}, v{vTR1} offset:{off}")
        e(f"ds_read_b64_tr_b16 {vr(b+6,2)}, v{vTR1} offset:{off+1024}")
    def mm4(buf, act, first=False):
        for nt in range(2):
            for mt in range(2):
                c = vr(ACC2 + 16 * (2 * nt + mt), 16)
                e(f"{MFMA} {c}, {vr(WB2+8*buf+4*nt,4)}, {act[mt]}, {'0' if first else c}")
    tagwait(0)
    st("p2data")
    wreads(0)
    XBASE = YB
    for i in range(36):
        if i < 35:
            tagwait(i + 1)
            if i == OPT.get("pubat", 2):
                e(f"s_cmp_eq_u32 s{sTYPE}, 0"); e("s_cbranch_scc1 K_NPB")
                e(f"s_waitcnt vmcnt({len(ops) - 2*NA})"); e(publish(4, vS2)); e.label("K_NPB")
            wreads(i + 1)
            e("s_waitcnt lgkmcnt(4)")
        else:
            e("s_waitcnt lgkmcnt(0)")
        R = RING + 8 * unit[i]
        if i >= 28:
            o_ = 1024 * (i - 28)
            e(sentinel(R, 8, vS2, f"s_add_u32 s{sT0}, s{sP0}, {o_};;s_add_u32 s{sT1}, s{sKV}, {o_};;"
                       f"buffer_load_dwordx4 {vr(R,4)}, v{vL16}, {sr(SWS,4)}, s{sT0} offen sc1;;buffer_load_dwordx4 {vr(R+4,4)}, v{vL16}, {sr(SWS,4)}, s{sT1} offen sc1"))
        mm4(i & 1, [vr(R, 4), vr(R + 4, 4)], i == 0)
        state["done"] = i
        pump()
        st(f"s{i}")
        if i == 12:
            for k in range(4):
                e(f"v_lshlrev_b32 v{vS2}, 16, v{vB+k}"); e(f"v_and_b32 v{vS2+1}, s{sMASK}, v{vB+k}")
                for t in range(2):
                    d = vXB + 8 * t + 2 * k
                    e(f"v_lshlrev_b32 v{d}, 16, v{vX+4*t+k}"); e(f"v_and_b32 v{d+1}, s{sMASK}, v{vX+4*t+k}")
                    e(f"v_add_f32 v{d}, v{d}, v{vS2}"); e(f"v_add_f32 v{d+1}, v{d+1}, v{vS2+1}")
        if i == 33: e("s_barrier")
    e(f"v_and_b32 v{vS2+2}, 31, v{vL}"); e(f"v_mul_u32_u24 v{vS2+2}, 272, v{vS2+2}")
    e(f"v_lshrrev_b32 v{vS2+3}, 5, v{vL}"); e(f"v_lshl_add_u32 v{vS2+2}, v{vS2+3}, 4, v{vS2+2}")
    e(f"s_mul_i32 s{sT0}, s{sRG}, 17408"); e(f"s_add_u32 s{sT0}, s{sT0}, {XBASE}")
    e(f"v_add_u32 v{vS2+2}, s{sT0}, v{vS2+2}")
    e(f"v_lshrrev_b32 v{vS2+3}, 3, v{vL}"); e(f"v_mul_u32_u24 v{vS2+3}, 272, v{vS2+3}")
    e(f"v_and_b32 v{vS2+4}, 7, v{vL}"); e(f"v_lshl_add_u32 v{vS2+3}, v{vS2+4}, 5, v{vS2+3}")
    e(f"s_mul_i32 s{sT0}, s{sRG}, {16*272}"); e(f"s_add_u32 s{sT0}, s{sT0}, {XBASE}")
    e(f"v_add_u32 v{vS2+3}, s{sT0}, v{vS2+3}")
    for nt in range(2):
        for mt in range(2):
            for q in range(4):
                e(f"ds_write_b128 v{vS2+2}, {vr(ACC2+16*(2*nt+mt)+4*q,4)} offset:{32*272*mt + 128*nt + 32*q}")
    e("s_waitcnt lgkmcnt(0)"); e("s_barrier")
    for t in range(2):
        for p in range(4):
            for hh in range(2):
                e(f"ds_read_b128 {vr(ACC2+32*t+8*p+4*hh,4)}, v{vS2+3} offset:{17408*p + 8*272*t + 16*hh}")
    for t in range(2):
        for p in range(4):
            e(f"s_waitcnt lgkmcnt({14 - 8*t - 2*p})")
            for j in range(8): e(f"v_add_f32 v{vXB+8*t+j}, v{vXB+8*t+j}, v{ACC2+32*t+8*p+j}")
        for j in range(4): e(f"v_cvt_pk_bf16_f32 v{OP+4*t+j}, v{vXB+8*t+2*j}, v{vXB+8*t+2*j+1}")
        e(f"buffer_store_dwordx4 {vr(OP+4*t,4)}, v{vXO}, {sr(SO,4)}, s{sXO if t == 0 else sXO2} offen")
    e.label("K_FIN")
    if OPT.get("cnt"): e("s_add_u32 s90, s3, s78")
    if OPT["stamps"] and not OPT.get("phys"):
        e(f"s_xor_b32 s{sW}, s{sISC}, 1"); e(f"s_lshl_b32 s{sW}, s{sW}, 2"); e(f"s_add_u32 s{sW}, s{sW}, s{sRG}")
    stamp_end(e, 0, SWS, "K_END", sW, 0)
    e.label("K_END")
    e("s_endpgm")
    return e.text()

def main():
    out = "; LayerNorm + hedgehog linear attention + GELU FFN, one persistent launch (generated by tools/gen2.py)\n"
    out += "; @launch grid=(256,1,1) block=(512,1,1) lds=163840\n"
    out += '.amdgcn_target "amdgcn-amd-amdhsa--gfx950"\n.text\n'
    out += f".globl {KN}\n.p2align 8\n.type {KN},@function\n{KN}:\n" + gen()
    out += ".p2align 8\n.fill 1536, 4, 0xbf800000\n"
    out += f""".section .rodata,"a"
.p2align 6
.amdhsa_kernel {KN}
  .amdhsa_next_free_vgpr 256
  .amdhsa_next_free_sgpr 102
  .amdhsa_accum_offset 256
  .amdhsa_group_segment_fixed_size 0
  .amdhsa_kernarg_size 96
  .amdhsa_user_sgpr_count 2
  .amdhsa_user_sgpr_kernarg_segment_ptr 1
  .amdhsa_system_sgpr_workgroup_id_x 1
.end_amdhsa_kernel
"""
    open(sys.argv[1], "w").write(out)
main()
```

```python
import sys, math, struct

OPT = dict(stamps=0, st1="sc1", k1only=0, k2only=0, pfcode=1, pfw2=3)
for a in sys.argv[2:]:
    k, v = a.split("=")
    OPT[k] = int(v) if v.lstrip("-").isdigit() else v

H_OFF, PQ_OFF, KVP_OFF, KVZ_OFF, FLG_OFF = 0, 0x800000, 0xC00000, 0xE00000, 0xE10000
STAMP_OFF = 200 << 20
NSTAMP = 8
LOOPST = OPT.get('loopst', -1)

def f2u(x): return struct.unpack("<I", struct.pack("<f", x))[0]

class Asm:
    def __init__(self): self.L = []
    def __call__(self, s):
        for t in s.split(";;"):
            t = t.strip()
            self.L.append(t if t.endswith(":") else "    " + t)
    def label(self, s): self.L.append(s + ":")
    def ext(self, lst):
        for s in lst: self(s)
    def text(self): return "\n".join(self.L) + "\n"

class Lst(list):
    def __call__(self, s): self.append(s)

def vr(b, n=1): return f"v{b}" if n == 1 else f"v[{b}:{b+n-1}]"
def ar(b, n=1): return f"a{b}" if n == 1 else f"a[{b}:{b+n-1}]"
def sr(b, n=1): return f"s{b}" if n == 1 else f"s[{b}:{b+n-1}]"
MFMA = "v_mfma_f32_32x32x16_bf16"

def cost(ins):
    c = 0
    for t in ins.split(";;"):
        op = t.split()[0]
        if op.endswith(":"): continue
        if "s_cbranch" in ins and op.startswith(("s_", "v_")): c += 0.5; continue
        if op.startswith(("v_exp", "v_rcp", "v_sqrt", "v_log", "v_mfma")): c += 8
        elif op == "s_nop": c += 2 * (int(t.split()[1]) + 1)
        elif op.startswith("s_"): c += 1
        elif op.startswith("buffer_"): c += 8
        else: c += 4.5
    return c

def interleave(groups, fill, first=0, last=None):
    last = len(groups) - 1 if last is None else last
    tot = sum(cost(i) for i in fill); n = last - first + 1
    out = []; k = 0; acc = 0.0
    for gi, g in enumerate(groups):
        out += g
        if first <= gi <= last:
            tgt = tot * (gi - first + 1) / n
            while k < len(fill) and (acc + cost(fill[k]) / 2 <= tgt or gi == last):
                out.append(fill[k]); acc += cost(fill[k]); k += 1
    assert k == len(fill)
    return out

def merge(a, b, frac=1.0):
    out = []; n = max(1, int(len(a) * frac)); k = 0
    for i, x in enumerate(a):
        while k < len(b) and k * n <= i * len(b) and i < n:
            out.append(b[k]); k += 1
        out.append(x)
    out += b[k:]
    return out

def srd(e, d, lo, hi, size):
    e(f"s_mov_b32 s{d}, s{lo}"); e(f"s_mov_b32 s{d+1}, s{hi}")
    e(f"s_mov_b32 s{d+2}, {size:#x}"); e(f"s_mov_b32 s{d+3}, 0x00020000")

def stamp(e, idx, base=80):
    if OPT["stamps"]:
        e(f"s_memtime s[{base+2*idx}:{base+2*idx+1}]")

def stamp_begin(e, base=80):
    if OPT["stamps"]:
        e(f"s_memrealtime s[{base}:{base+1}]")
        e(f"s_memtime s[{base-2}:{base-1}]")
        for i in range(2, NSTAMP):
            e(f"s_mov_b64 s[{base+2*i}:{base+2*i+1}], 0")

def stamp_end(e, kidx, wssrd, lbl, wave_sgpr, wave_sel, base=80):
    if not OPT["stamps"]: return
    e(f"s_memtime s[{base+2*(NSTAMP-2)}:{base+2*(NSTAMP-2)+1}]")
    e("s_waitcnt vmcnt(0)")
    e(f"s_memrealtime s[{base+2}:{base+3}]")
    e(f"s_memtime s[{base+2*(NSTAMP-1)}:{base+2*(NSTAMP-1)+1}]")
    e("s_waitcnt lgkmcnt(0)")
    for i in range(2, NSTAMP):
        e(f"s_sub_u32 s{base+2*i}, s{base+2*i}, s{base-2}")
        e(f"s_mov_b32 s{base+2*i+1}, 0")
    e(f"s_lshl_b32 s{base-2}, s2, 3"); e(f"s_add_u32 s{base-2}, s{base-2}, s{wave_sgpr}")
    e(f"s_mul_i32 s{base-2}, s{base-2}, {8*NSTAMP}")
    e(f"s_add_u32 s{base-2}, s{base-2}, {STAMP_OFF + kidx*256*8*8*NSTAMP}")
    e("s_mov_b64 exec, 1")
    e("v_mov_b32 v1, 0")
    for i in range(NSTAMP // 2):
        for j in range(4):
            e(f"v_mov_b32 v{4+j}, s{base+4*i+j}")
        e(f"buffer_store_dwordx4 v[4:7], v1, {sr(wssrd,4)}, s{base-2} offen offset:{16*i}")
        e("s_nop 1")
    e("s_waitcnt vmcnt(0)")

KN = "parallel_sum__linear_kernel_hedgehog__dense_activation_gelu__prompt_kernel"
SPIN = OPT.get("spin", 20000)
CNT_OFF = FLG_OFF + 2048 * 128

def gen():
    e = Asm()
    M16 = "v_mfma_f32_16x16x32_bf16"
    SDBG, SX, SW, SWS, SAUX = 4, 8, 12, 16, 20
    sW, sRG, sP, sC, sRB, sTYPE = 24, 25, 26, 27, 28, 29
    sPITCH, sRT, sIDX, sROT = 30, 31, 32, 33
    sONES, sLO, sHI, sMASK = 34, 35, 36, 37
    sT0, sT1, sT2, sT3, sT4 = 38, 39, 40, 41, 42
    sXB = 43
    sCOL = 44
    sSLOT, sIT, sOUT, sAUXO, sP16 = 48, 49, 50, 51, 52
    sDA, sDB, sMA, sROWO, sW4K, sST = 53, 54, 55, 56, 57, 61
    sLT16, sFLG = 58, 60
    sJG, sISC, sWB, sLEV = 76, 77, 100, 101
    vDUM, vL, vL16, vDMA, vTR = 0, 1, 2, 3, 4
    vS, vCSW, vCSR, SELC, CS, AUG, vC0, vC1 = 8, 14, 15, 16, 20, 24, 30, 31
    TMP, PK, ACC, EACC, WB, vAUX, XF = 32, 48, 64, 80, 96, 116, 128
    NWB = 5
    YB, ZB = 0x10000, 0x20000
    STAT, CSX, RVO, GSY = 0x21000, 0x21800, 0x22000, 0x22400
    vFR, vXD, RS, vQ, vAL = TMP, TMP + 8, TMP + 12, TMP + 16, TMP + 18
    STF = "" if OPT.get("x_pst") else "sc1"
    lab = [0]
    def L(p):
        lab[0] += 1
        return f"{p}{lab[0]}"
    SP = str(OPT.get("sp", "")).split(",")
    def st(name, lst=None):
        if OPT["stamps"] and name in SP:
            i = 2 + SP.index(name)
            t = f"s_memtime s[{80+2*i}:{81+2*i}];;s_waitcnt lgkmcnt(0)"
            (e if lst is None else lst.append)(t)
    e("s_cmp_ge_u32 s2, 256")
    e("s_cbranch_scc1 K_END")
    stamp_begin(e)
    if OPT.get("cnt"): e("s_mov_b32 s91, 1")
    e("s_load_dwordx4 s[64:67], s[0:1], 0")
    e("s_load_dwordx2 s[68:69], s[0:1], 16")
    e("s_load_dwordx4 s[72:75], s[0:1], 40")
    e("s_load_dwordx2 s[70:71], s[0:1], 88")
    e("s_load_dwordx2 s[96:97], s[0:1], 56")
    e("s_load_dwordx2 s[98:99], s[0:1], 24")
    e(f"s_load_dwordx2 {sr(SDBG,2)}, s[0:1], 80")
    e(f"v_lshrrev_b32 v{vS}, 6, v0")
    e(f"v_and_b32 v{vL}, 63, v0")
    e(f"v_readfirstlane_b32 s{sW}, v{vS}")
    e(f"s_lshr_b32 s{sIDX}, s2, 3")
    if OPT["pfcode"]:
        e(f"s_cmp_lg_u32 s{sW}, 7"); e("s_cbranch_scc1 K_NOPF")
        e("s_getpc_b64 s[62:63]")
        e("s_and_b32 s62, s62, 0xffffff00")
        e(f"s_mul_i32 s{sT1}, s{sIDX}, 896")
        e(f"v_lshl_add_u32 v{vS+3}, v{vL}, 7, s{sT1}")
        e("s_mov_b64 exec, 0x7f")
        e(f"global_load_dword v{vDUM}, v{vS+3}, s[62:63]")
        e("s_mov_b64 exec, -1")
        e.label("K_NOPF")
    e(f"s_and_b32 s{sT0}, s2, 7")
    e(f"s_lshr_b32 s{sRB}, s{sT0}, 1"); e(f"s_lshl_b32 s{sRB}, s{sRB}, 2")
    e(f"s_and_b32 s{sT2}, s{sIDX}, 3"); e(f"s_add_u32 s{sRB}, s{sRB}, s{sT2}")
    e(f"s_lshr_b32 s{sT1}, s{sIDX}, 2")
    e(f"s_add_u32 s{sROT}, s{sT1}, s{sT2}"); e(f"s_and_b32 s{sROT}, s{sROT}, {OPT.get('rotm', 3)}")
    e(f"s_and_b32 s{sTYPE}, s{sT1}, 1")
    e(f"s_lshr_b32 s{sT1}, s{sT1}, 1")
    e(f"s_and_b32 s{sC}, s{sT0}, 1"); e(f"s_lshl_b32 s{sC}, s{sC}, 2"); e(f"s_add_u32 s{sC}, s{sC}, s{sT1}")
    e(f"s_and_b32 s{sRG}, s{sW}, 3"); e(f"s_lshr_b32 s{sP}, s{sW}, 2")
    e(f"v_lshrrev_b32 v{vS}, 4, v{vL}"); e(f"v_and_b32 v{vS+1}, 15, v{vL}")
    e(f"v_xor_b32 v{vS+2}, v{vS}, v{vS+1}"); e(f"v_lshlrev_b32 v{vS+2}, 4, v{vS+2}")
    e(f"v_lshl_add_u32 v{vXD}, v{vS}, 10, v{vS+2}")
    for i in range(1, 4): e(f"v_xor_b32 v{vXD+i}, {4096*i + 64*i}, v{vXD}")
    e(f"s_lshl_b32 s{sXB}, s{sRB}, 17"); e(f"s_lshl_b32 s{sT0}, s{sW}, 14"); e(f"s_add_u32 s{sXB}, s{sXB}, s{sT0}")
    e(f"s_lshl_b32 s{sW4K}, s{sW}, 12")
    e(f"v_and_b32 v{vS+3}, 31, v{vL}")
    e(f"v_lshrrev_b32 v{vS+4}, 5, v{vL}")
    e(f"s_cmp_eq_u32 s{sTYPE}, 0")
    e("s_cbranch_scc1 K_SETQ")
    e(f"s_movk_i32 s{sPITCH}, 3584")
    e(f"s_mul_i32 s{sAUXO}, s{sC}, 448")
    e(f"s_and_b32 s{sT1}, s{sC}, 1")
    e(f"s_lshl_b32 s{sT2}, s{sT1}, 6"); e(f"s_add_u32 s{sCOL}, s{sAUXO}, s{sT2}")
    e(f"s_add_u32 s{sCOL+1}, s{sCOL}, 128"); e(f"s_add_u32 s{sCOL+2}, s{sCOL}, 256")
    e(f"s_lshl_b32 s{sT2}, s{sT1}, 9"); e(f"s_add_u32 s{sCOL+3}, s{sCOL}, 384"); e(f"s_sub_u32 s{sCOL+3}, s{sCOL+3}, s{sT2}")
    e(f"s_lshl_b32 s{sT2}, s{sP}, 6")
    e(f"v_lshl_add_u32 v{vAL}, v{vS+3}, 1, s{sT2}")
    e(f"s_mov_b32 s{SW+2}, {512*3584}"); e(f"s_movk_i32 s{SAUX+2}, 3584")
    e("s_branch K_SETD")
    e.label("K_SETQ")
    e(f"s_movk_i32 s{sPITCH}, 3072")
    e(f"s_lshl_b32 s{sCOL+2}, s{sC}, 7"); e(f"s_add_u32 s{sCOL}, s{sCOL+2}, 1024"); e(f"s_add_u32 s{sCOL+1}, s{sCOL+2}, 2048")
    e(f"v_lshrrev_b32 v{vS+5}, 4, v{vS+3}"); e(f"v_lshlrev_b32 v{vS+5}, 9, v{vS+5}")
    e(f"v_lshl_add_u32 v{vS+5}, v{vS+4}, 7, v{vS+5}"); e(f"v_lshl_add_u32 v{vS+5}, v{vS+1}, 1, v{vS+5}")
    e(f"s_lshl_b32 s{sT1}, s{sP}, 10"); e(f"v_add_u32 v{vAL}, s{sT1}, v{vS+5}")
    e(f"s_lshl_b32 s{sAUXO}, s{sC}, 11")
    e(f"s_mov_b32 s{SW+2}, {512*3072}"); e(f"s_movk_i32 s{SAUX+2}, {32*512}")
    e.label("K_SETD")
    e(f"s_mov_b32 s{SW+3}, 0x00020000"); e(f"s_mov_b32 s{SAUX+3}, 0x00020000")
    e(f"v_lshrrev_b32 v{vDMA}, 2, v{vL}"); e(f"v_mul_lo_u32 v{vDMA}, v{vDMA}, s{sPITCH}")
    e(f"v_and_b32 v{vS+5}, 3, v{vL}"); e(f"v_lshl_add_u32 v{vDMA}, v{vS+5}, 4, v{vDMA}")
    e(f"s_lshl_b32 s{sP16}, s{sPITCH}, 4")
    e(f"s_mul_i32 s{sWB}, s{sP16}, s{sW}"); e(f"s_add_u32 s{sWB}, s{sWB}, s{sCOL}")
    e(f"s_cmp_eq_u32 s{sTYPE}, 0")
    e("s_waitcnt lgkmcnt(0)")
    e(f"s_cselect_b64 {sr(SW,2)}, s[66:67], s[72:73]"); e(f"s_cselect_b64 {sr(SAUX,2)}, s[68:69], s[74:75]")
    srd(e, SX, 64, 65, 2048 * 1024)
    XBUF = (ZB, YB, YB + 0x8000, ZB)
    def sset(j):
        l = Lst()
        l(f"s_add_u32 s{sT0}, s{sROT}, {j};;s_and_b32 s{sT0}, s{sT0}, 3;;s_lshl_b32 s{sT1}, s{sT0}, 8;;s_add_u32 s{sT1}, s{sT1}, s{sXB};;"
          f"s_lshl_b32 s{sT0}, s{sT0}, 3;;s_mul_i32 s{sT0}, s{sT0}, s{sP16};;s_add_u32 s{sT0}, s{sT0}, s{sWB};;s_add_u32 s{sT2}, s{sT0}, 64;;s_lshr_b32 s{sT3}, s{sW4K}, 2")
        for i in range(4):
            l(f"s_add_u32 m0, s{sW4K}, {XBUF[j] + 1024*i};;s_nop 0;;buffer_load_dwordx4 v{vXD+i}, {sr(SX,4)}, s{sT1} offen lds")
        wo = 0x8000 * (j >> 1) + 8192 * (j & 1)
        l(f"s_add_u32 m0, s{sT3}, {wo};;s_nop 0;;buffer_load_dwordx4 v{vDMA}, {sr(SW,4)}, s{sT0} offen lds")
        l(f"s_add_u32 m0, s{sT3}, {wo + 0x4000};;s_nop 0;;buffer_load_dwordx4 v{vDMA}, {sr(SW,4)}, s{sT2} offen lds")
        return l
    wt = (f"s_lshr_b32 s{sT0}, s{sW}, 1;;s_cmp_lg_u32 s{sT0}, 1;;s_cbranch_scc1 K_NW;;s_cmp_eq_u32 s{sW}, 2;;"
          f"s_cselect_b64 s[92:93], s[72:73], s[66:67];;s_mov_b32 s{sT0}, {512*3584};;s_cselect_b32 s94, s{sT0}, {512*3072};;s_mov_b32 s95, 0x00020000;;"
          f"s_movk_i32 s{sT0}, 7168;;s_cselect_b32 s{sT0}, s{sT0}, 6144;;s_cselect_b32 s{sT1}, 56, 48;;s_mul_i32 s{sT0}, s{sT0}, s2;;"
          f"v_lshlrev_b32 v{vDUM}, 7, v{vL};;s_bfm_b64 exec, s{sT1}, 0;;buffer_load_dword v{vDUM}, v{vDUM}, s[92:95], s{sT0} offen;;s_mov_b64 exec, -1;;K_NW:")
    WTA = OPT.get("wta", 2)
    xt = (f"s_cmp_lg_u32 s{sW}, 1;;s_cbranch_scc1 K_NX;;s_lshl_b32 s{sT0}, s2, 13;;v_lshlrev_b32 v{vDUM}, 7, v{vL};;"
          f"buffer_load_dword v{vDUM}, v{vDUM}, {sr(SX,4)}, s{sT0} offen;;K_NX:")
    st("ka")
    if OPT.get("xta", 0) == 1: e(xt)
    if WTA == -2: e(wt)
    e.ext(sset(0))
    if OPT.get("xta", 0) == 2: e(xt)
    if WTA == -1: e(wt)
    st("i0")
    srd(e, SWS, 70, 71, 0x10000000)
    e(f"s_movk_i32 s{SDBG+2}, 256"); e(f"s_mov_b32 s{SDBG+3}, 0x00020000")
    e(f"s_lshl_b32 s{sRT}, s{sRB}, 2"); e(f"s_add_u32 s{sRT}, s{sRT}, s{sRG}")
    e(f"s_lshl_b32 s{sFLG}, s{sTYPE}, 4"); e(f"s_add_u32 s{sFLG}, s{sFLG}, s{sRB}"); e(f"s_lshl_b32 s{sFLG}, s{sFLG}, 3"); e(f"s_add_u32 s{sFLG}, s{sFLG}, s{sC}")
    e(f"s_lshl_b32 s{sFLG}, s{sFLG}, 10"); e(f"s_add_u32 s{sFLG}, s{sFLG}, {FLG_OFF}")
    e(f"s_and_b32 s{sISC}, s{sC}, 1"); e(f"s_xor_b32 s{sISC}, s{sISC}, s{sP}")
    e(f"v_lshlrev_b32 v{vL16}, 4, v{vL}")
    e(f"v_mov_b32 v{AUG+4}, 0"); e(f"v_mov_b32 v{AUG+5}, 0")
    e(f"s_lshl_b32 s{sIT}, s{sTYPE}, 3"); e(f"s_add_u32 s{sIT}, s{sIT}, s{sW}")
    e(f"s_cmp_lg_u32 s{sIT}, 15"); e("s_cbranch_scc1 K_NZ")
    e(f"v_lshlrev_b32 v{vS+2}, 3, v{vL}")
    e(f"buffer_store_dwordx2 {vr(AUG+4,2)}, v{vS+2}, {sr(SWS,4)}, s{sFLG} offen sc1")
    e(f"buffer_store_dwordx2 {vr(AUG+4,2)}, v{vS+2}, {sr(SWS,4)}, s{sFLG} offen offset:512 sc1")
    e.label("K_NZ")
    e(f"s_lshl_b32 s{sT0}, s{sW}, 7"); e(f"s_add_u32 s{sFLG}, s{sFLG}, s{sT0}")
    e(f"s_lshl_b32 s{sT0}, s{sROT}, 2"); e(f"s_add_u32 s{sT0}, s{sT0}, s{sW}"); e(f"s_and_b32 s{sT1}, s{sT0}, 15"); e(f"s_lshl_b32 s{sT1}, s{sT1}, 1")
    e(f"s_mul_i32 s{sROWO}, s{sT1}, s{sP16}")
    e(f"s_add_u32 s{sT0}, s{sT0}, 8"); e(f"s_and_b32 s{sT1}, s{sT0}, 15"); e(f"s_lshl_b32 s{sT1}, s{sT1}, 1")
    e(f"s_mul_i32 s{sJG}, s{sT1}, s{sP16}"); e(f"s_sub_u32 s{sJG}, s{sJG}, s{sROWO}"); e(f"s_sub_u32 s{sJG}, s{sJG}, s{sP16}")
    e(f"s_lshl_b32 s{sT4}, s{sW}, 11")
    sLB0 = sT4
    def guard(t):
        g = L("G"); return f"s_cbranch_vccz {g};;{t};;{g}:"
    def dma8(gd=False):
        l = []
        for i in range(4):
            jg, jl = (f"s{sJG}", "0x7c00") if i == 1 else (f"s{sP16}", "1024")
            l += [f"s_mov_b32 m0, s{sMA};;s_add_u32 s{sDB}, s{sDA}, 64;;buffer_load_dwordx4 v{vDMA}, {sr(SW,4)}, s{sDA} offen lds",
                  f"s_add_u32 m0, s{sMA}, 0x4000;;s_add_u32 s{sDA}, s{sDA}, {jg};;buffer_load_dwordx4 v{vDMA}, {sr(SW,4)}, s{sDB} offen lds;;s_add_u32 s{sMA}, s{sMA}, {jl}"]
        return [guard(t) for t in l] if gd else l
    e(f"s_mov_b32 s{sONES}, 0x3f803f80"); e(f"s_mov_b32 s{sLO}, 0x00003f80"); e(f"s_mov_b32 s{sHI}, 0x3f800000")
    e(f"s_mov_b32 s{sMASK}, 0xffff0000")
    e(f"v_lshlrev_b32 v{vS+2}, 9, v{vS+4}")
    e(f"v_bfe_u32 v{vS}, v{vL}, 2, 2"); e(f"v_lshl_add_u32 v{vS+2}, v{vS}, 6, v{vS+2}")
    e(f"v_bfe_u32 v{vCSW}, v{vL}, 4, 1"); e(f"v_lshl_add_u32 v{vS+2}, v{vCSW}, 5, v{vS+2}")
    e(f"v_lshl_add_u32 v{vS+2}, v{vS+5}, 3, v{vS+2}")
    e(f"s_xor_b32 s{sT3}, s{sRG}, s{sP}"); e(f"s_lshl_b32 s{sT1}, s{sP}, 14")
    for k in range(4):
        e(f"s_xor_b32 s{sT0}, s{sT3}, {k}"); e(f"s_lshl_b32 s{sT0}, s{sT0}, 10"); e(f"s_add_u32 s{sT0}, s{sT0}, s{sT1}")
        e(f"v_add_u32 v{vTR+k}, s{sT0}, v{vS+2}")
    e(f"v_and_b32 v{vS}, 1, v{vS}"); e(f"v_cmp_eq_u32 vcc, v{vS}, v{vCSW}"); e(f"v_mov_b32 v{vS}, s{sONES}")
    e(f"v_cmp_gt_u32 {sr(sLT16,2)}, 16, v{vS+3}")
    for j in range(4): e(f"v_cndmask_b32 v{SELC+j}, 0, v{vS}, vcc")
    e(f"v_xor_b32 v{vS}, v{vS+4}, v{vS+1}"); e(f"v_lshlrev_b32 v{vS}, 4, v{vS}")
    e(f"v_lshl_add_u32 v{vS}, v{vS+3}, 8, v{vS}")
    e(f"s_lshl_b32 s{sT0}, s{sT3}, 5"); e(f"v_xor_b32 v{vS}, s{sT0}, v{vS}")
    e(f"s_lshl_b32 s{sT0}, s{sRG}, 13"); e(f"s_add_u32 s{sT0}, s{sT0}, {YB + 0x8000}"); e(f"v_add_u32 v{vFR}, s{sT0}, v{vS}")
    for s in range(1, 8): e(f"v_xor_b32 v{vFR+s}, {32*s}, v{vFR}")
    e(f"s_lshl_b32 s{sT0}, s{sP}, 9"); e(f"s_add_u32 s{sT0}, s{sT0}, {CSX}")
    e(f"v_lshl_add_u32 v{vCSR}, v{vS+3}, 4, s{sT0}")
    e(f"s_lshl_b32 s{sT0}, s{sRG}, 2"); e(f"v_add_u32 v{vCSW}, s{sT0}, v{vCSR}")
    e(f"v_mov_b32 v{vQ}, 0"); e(f"v_mov_b32 v{vQ+1}, 0")
    def auxl(lbl):
        t = f"s_cmp_eq_u32 s{sTYPE}, 0;;s_cbranch_scc1 {lbl}Q"
        for i in range(4): t += f";;buffer_load_ushort v{vAUX+i}, v{vAL}, {sr(SAUX,4)}, s{sCOL+i} offen"
        t += f";;s_branch {lbl}D;;{lbl}Q:"
        for j in range(8):
            d = (j & 3) + 8 * (j >> 2)
            t += f";;buffer_load_ushort v{vAUX+j}, v{vAL}, {sr(SAUX,4)}, s{sAUXO} offen offset:{32*d}"
        t += f";;{lbl}D:"
        return t
    if OPT.get("x_p2only"):
        e("s_waitcnt vmcnt(0)"); e("s_barrier")
        e(f"s_cmp_eq_u32 s{sISC}, 0"); e("s_cbranch_scc1 K_FIN")
        e("s_branch K_FTAIL")
    st("su")
    e.ext(sset(1))
    st("i1")

    def wrd(s):
        b = WB + 4 * (s % NWB); o = 1024 * (s & 12) + 0x8000 * (s >> 4)
        return [f"ds_read_b64_tr_b16 {vr(b,2)}, v{vTR+(s&3)} offset:{o}", f"ds_read_b64_tr_b16 {vr(b+2,2)}, v{vTR+(s&3)} offset:{o+256}"]
    def csm(s):
        return f"{M16} {vr(CS,4)}, {vr(SELC,4)}, {vr(WB+4*(s%NWB),4)}, {'0' if s == 0 else vr(CS,4)}"
    XO = (0x8000, 0, 0x8000, 0x8000)
    def rd(s):
        return [f"ds_read_b128 {vr(XF+4*s,4)}, v{vFR+(s&7)} offset:{XO[s>>3]}"] + wrd(s)
    VM = {0: 6, 1: 6, 2: 10, 3: 8, 4: 63}
    def sync(k):
        l = [f"s_waitcnt vmcnt({VM[k]}) lgkmcnt(0)", "s_barrier"]
        st(f"sync{k}", l)
        if k == 1: l += [f"v_subrev_u32 v{vFR+t}, 0x8000, v{vFR+t}" for t in range(8)]
        if k == 3: l += [f"v_add_u32 v{vFR+t}, 0x8000, v{vFR+t}" for t in range(8)]
        return l
    G = []
    g0 = sync(0)
    for s_ in range(4): g0 += rd(s_)
    G.append(g0)
    for s_ in range(32):
        g = []
        if s_ % 8 == 4: g += sync(s_ // 8 + 1)
        if s_ + 4 < 32: g += rd(s_ + 4)
        if s_ % 8 < 4: g.append(f"s_waitcnt lgkmcnt(12)")
        d = EACC if s_ == 31 else ACC
        g.append(f"{MFMA} {vr(d,16)}, {vr(WB+4*(s_%NWB),4)}, {vr(XF+4*s_,4)}, {'0' if s_ == 0 else vr(ACC,16)}")
        if s_ % 4 == 0: g.append(csm(s_))
        if s_ % 2 == 0:
            g.append(f"{M16} {vr(RS,4)}, {vr(SELC,4)}, {vr(XF+4*s_,4)}, {'0' if s_ == 0 else vr(RS,4)}")
            for r in range(4): g.append(f"v_dot2c_f32_bf16 v{vQ+(r&1)}, v{XF+4*s_+r}, v{XF+4*s_+r}")
        G.append(g)
    d8 = dma8()
    if WTA == 0: e(wt)
    e.ext(interleave(G[0:5], sset(2) + ([wt] if WTA == 1 else []), 0, 4))
    e.ext(interleave(G[5:13], sset(3) + [auxl("K_AUX")] + ([wt] if WTA == 2 else []), 0, 6))
    e(f"s_add_u32 s{sDA}, s{sROWO}, s{sCOL+1}"); e(f"s_add_u32 s{sMA}, s{sLB0}, {YB}")
    e.ext(interleave(G[13:21], d8[:4], 0, 4))
    pf = f"s_cmp_eq_u32 s{sTYPE}, 0;;s_cbranch_scc1 K_NPF;;" + ";;".join(f"v_mov_b32 v{EACC+j}, -1" for j in range(4))
    pf += (f";;s_lshl_b32 s{sT0}, s{sRB}, 3;;s_add_u32 s{sT0}, s{sT0}, s{sC};;s_lshl_b32 s{sT0}, s{sT0}, 14;;s_lshl_b32 s{sT1}, s{sW}, 11;;s_add_u32 s{sT0}, s{sT0}, s{sT1};;"
           f"s_add_u32 s{sT0}, s{sT0}, {KVP_OFF};;buffer_store_dwordx4 {vr(EACC,4)}, v{vL16}, {sr(SWS,4)}, s{sT0} offen sc1;;"
           f"buffer_store_dwordx4 {vr(EACC,4)}, v{vL16}, {sr(SWS,4)}, s{sT0} offen offset:1024 sc1;;"
           f"s_lshl_b32 s{sT0}, s{sRT}, 15;;s_lshl_b32 s{sT1}, s{sC}, 12;;s_add_u32 s{sT0}, s{sT0}, s{sT1};;s_lshl_b32 s{sT1}, s{sP}, 11;;s_add_u32 s{sT0}, s{sT0}, s{sT1};;"
           f"s_add_u32 s{sT0}, s{sT0}, {PQ_OFF};;buffer_store_dwordx4 {vr(EACC,4)}, v{vL16}, {sr(SWS,4)}, s{sT0} offen sc1;;"
           f"buffer_store_dwordx4 {vr(EACC,4)}, v{vL16}, {sr(SWS,4)}, s{sT0} offen offset:1024 sc1;;"
           f"s_cmp_lg_u32 s{sW}, 7;;s_cbranch_scc1 K_NPF;;s_lshl_b32 s{sT0}, s{sC}, 4;;s_add_u32 s{sT0}, s{sT0}, s{sRB};;s_lshl_b32 s{sT0}, s{sT0}, 9;;"
           f"s_add_u32 s{sT0}, s{sT0}, {KVZ_OFF};;s_mov_b32 exec_hi, 0;;buffer_store_dwordx4 {vr(EACC,4)}, v{vL16}, {sr(SWS,4)}, s{sT0} offen sc1;;s_mov_b32 exec_hi, -1;;K_NPF:")
    e.ext(interleave(G[21:], d8[4:] + [pf], 0, 5))
    e("s_nop 2")
    e(f"v_add_f32 v{vQ}, v{vQ}, v{vQ+1}")
    e(f"v_and_b32 v{vS+3}, 31, v{vL}")
    e(f"v_mov_b32 v{vQ+1}, v{vQ}")
    e(f"s_lshl_b32 s{sT0}, s{sW}, 8"); e(f"s_add_u32 s{sT0}, s{sT0}, {STAT}")
    e(f"v_lshl_add_u32 v{vS+2}, v{vS+3}, 3, s{sT0}")
    e(f"v_permlane32_swap_b32 v{vQ}, v{vQ+1}")
    e(f"v_add_f32 v{RS+1}, v{vQ}, v{vQ+1}")
    e(f"ds_write_b32 v{vCSW}, v{CS}")
    e(f"ds_write_b64 v{vS+2}, {vr(RS,2)}")
    e(f"v_lshlrev_b32 v{vS+4}, 2, v{vS+3}"); e(f"v_add_u32 v{vS+4}, {GSY:#x}, v{vS+4}"); e(f"ds_write_b32 v{vS+4}, v{AUG+4}")
    e(f"v_xor_b32 v{vS+2}, 1024, v{vS+2}")
    for k in range(4): e(f"v_xor_b32 v{vTR+k}, 0x10000, v{vTR+k}")
    e(f"v_xor_b32 v{vCSW}, 1024, v{vCSW}")
    e("s_waitcnt vmcnt(0) lgkmcnt(0)")
    e("s_barrier")
    st("r0end")
    e(f"s_cmp_lg_u32 s{sIT}, 15"); e("s_cbranch_scc1 K_NA")
    e(f"s_and_b32 s{sT0}, s2, 1"); e(f"s_lshl_b32 s{sT0}, s{sT0}, 7")
    e(f"v_mov_b32 v{vDUM}, 1")
    e("s_mov_b64 exec, 1")
    e(f"buffer_atomic_add v{vDUM}, v{AUG+4}, {sr(SDBG,4)}, s{sT0} offen sc1")
    e("s_mov_b64 exec, -1")
    e.label("K_NA")
    e(f"ds_read_b64 {vr(vS,2)}, v{vS+2}")
    e(f"v_cmp_gt_u32 vcc, 32, v{vL}")
    e(f"s_cmp_eq_u32 s{sW}, 7"); e(f"s_cselect_b32 s{sIT}, 0, 64")
    e("s_waitcnt lgkmcnt(0)")
    a, b = vS, vS + 1
    e(f"v_add_f32 v{a}, v{a}, v{RS}"); e(f"v_add_f32 v{b}, v{b}, v{RS+1}")
    e(f"v_mul_f32 v{a}, {f2u(-1.0/512):#x}, v{a}"); e(f"v_mul_f32 v{b}, {f2u(1.0/512):#x}, v{b}")
    e(f"v_fma_f32 v{b}, -v{a}, v{a}, v{b}"); e(f"v_cvt_pk_bf16_f32 v{AUG+2}, v{a}, v{a}")
    e(f"v_max_f32 v{b}, 0, v{b}")
    e(f"v_cvt_pk_bf16_f32 v{b}, v{b}, v{b}"); e(f"v_and_b32 v{b}, s{sMASK}, v{b}")
    e(f"v_add_f32 v{b}, {f2u(1e-5):#x}, v{b}"); e(f"v_cvt_pk_bf16_f32 v{b}, v{b}, v{b}")
    e(f"v_and_b32 v{b}, s{sMASK}, v{b}"); e(f"v_sqrt_f32 v{b}, v{b}")
    e(f"v_cndmask_b32 v{AUG+2}, 0, v{AUG+2}, vcc")
    e(f"v_cvt_pk_bf16_f32 v{AUG+3}, v{a}, v{b}")
    e(f"v_and_b32 v{b}, s{sMASK}, v{AUG+3}")
    e(f"v_rcp_f32 v{a}, v{b}")
    e(f"v_cndmask_b32 v{AUG+3}, 0, v{AUG+3}, vcc")

    APOLL = f"v_lshlrev_b32 v{vS+4}, 7, v{vL};;s_mov_b64 exec, 3;;buffer_load_dword v{vS+5}, v{vS+4}, {sr(SDBG,4)}, 0 offen sc1;;s_mov_b64 exec, -1"
    def apoll7():
        l2 = L("X")
        e(f"s_cmp_lg_u32 s{sW}, 7"); e(f"s_cbranch_scc1 {l2}")
        e(APOLL)
        e.label(l2)
    def r2_check():
        l2 = L("X")
        e(f"s_cmp_lg_u32 s{sW}, 7"); e(f"s_cbranch_scc1 {l2}")
        e("s_waitcnt vmcnt(1)")
        check([(APOLL, vS + 5, 3, 64)])
        e.label(l2)
    def publish(lev, vt):
        if OPT.get("x_nopub"): return "s_nop 0"
        return (f"v_mov_b32 v{vt}, {lev};;v_lshlrev_b32 v{vDUM}, 2, v{vL};;s_mov_b32 exec_hi, 0;;"
                f"buffer_store_dword v{vt}, v{vDUM}, {sr(SWS,4)}, s{sFLG} offen sc1;;s_mov_b32 exec_hi, -1")
    def midpub(n, lev, vt):
        a_, b_ = L("P"), L("P")
        return f"s_cbranch_vccz {a_};;s_waitcnt vmcnt({n});;s_branch {b_};;{a_}:;;s_waitcnt vmcnt(0);;{b_}:;;" + publish(lev, vt)
    def mgroups(swap=False, pre=()):
        PF = NWB - 1
        G = []
        g0 = [f"ds_read_b128 {vr(PK,4)}, v{vCSR}"] + list(pre)
        for s in range(PF): g0 += wrd(s)
        G.append(g0)
        for s in range(32):
            g = []
            if s + PF < 32: g += wrd(s + PF)
            g.append(f"s_waitcnt lgkmcnt({2 * min(PF, 31 - s)})")
            w, x = vr(WB + 4 * (s % NWB), 4), vr(XF + 4 * s, 4)
            a, b = (x, w) if swap else (w, x)
            d = EACC if s == 31 else ACC
            g.append(f"{MFMA} {vr(d,16)}, {a}, {b}, {'0' if s == 0 else vr(ACC,16)}")
            if s % 4 == 0: g.append(csm(s))
            G.append(g)
        return G
    def aug(bias=None, swap=False):
        l = Lst()
        c, t = PK, PK + 1
        l(f"v_add_f32 v{PK}, v{PK}, v{PK+1}"); l(f"v_add_f32 v{PK+2}, v{PK+2}, v{PK+3}"); l(f"v_add_f32 v{c}, v{PK}, v{PK+2}")
        l(f"v_cvt_pk_bf16_f32 v{t}, v{c}, v{c}"); l(f"v_and_b32 v{t}, s{sMASK}, v{t}"); l(f"v_sub_f32 v{t}, v{c}, v{t}")
        l(f"v_cvt_pk_bf16_f32 v{AUG}, v{c}, v{t}"); l(f"v_and_b32 v{c}, s{sMASK}, v{AUG}"); l(f"v_sub_f32 v{t}, v{t}, v{c}")
        l(f"v_cvt_pk_bf16_f32 v{AUG+1}, v{t}, {'v%d' % bias if bias is not None else '0'}")
        a, b = (vr(AUG+2,4), vr(AUG,4)) if swap else (vr(AUG,4), vr(AUG+2,4))
        l(f"s_nop 1;;{MFMA} {vr(EACC,16)}, {a}, {b}, {vr(EACC,16)}")
        for i in range(6): l("s_nop 1")
        return l
    def round_toggle():
        e(f"ds_write_b32 v{vCSW}, v{CS}")
        for k in range(4): e(f"v_xor_b32 v{vTR+k}, 0x10000, v{vTR+k}")
        e(f"v_xor_b32 v{vCSW}, 1024, v{vCSW}"); e(f"v_xor_b32 v{vCSR}, 1024, v{vCSR}")

    NL = 8
    sA0, sA1, sWK, sLB, sP0, sP1, sKV, sWO_, sXO, sXO2, sPF, sCNT = 30, 33, 43, 48, 51, 52, 53, 54, 55, 56, 57, 3
    SW2, SWO = SW, SAUX
    vTR0, vTR1, vXO, vPA = 4, 5, 6, vS + 2
    ND = vS + 3
    sEA = sWB
    order = [0, 1, 2, 3, 16, 17, 18, 19, 4, 5, 6, 7, 20, 21, 22, 23, 8, 9, 10, 11, 24, 25, 26, 27, 12, 13, 14, 15]
    def wdma(i):
        lo = 2048 * (i % NL)
        S, base, off = (SW2, sWK, order[i] * 16384) if i < 28 else (SWO, sWO_, (i - 28) * 16384)
        return [f"s_add_u32 m0, s{sLB}, {lo + 1024*k};;s_add_u32 s{sT0}, s{base}, {off + 8192*k};;buffer_load_dwordx4 v{vDMA}, {sr(S,4)}, s{sT0} offen lds" for k in range(2)]
    def cbcalc():
        if OPT.get("cbmap", 0) == 0:
            e(f"s_lshr_b32 s{sT1}, s{sIDX}, 2"); e(f"s_lshl_b32 s{sT1}, s{sT1}, 7")
        else:
            e(f"s_lshr_b32 s{sT1}, s{sIDX}, 3"); e(f"s_lshl_b32 s{sT0}, s{sTYPE}, 2"); e(f"s_add_u32 s{sT1}, s{sT1}, s{sT0}"); e(f"s_lshl_b32 s{sT1}, s{sT1}, 7")
    def p2_setup():
        e(f"s_cmp_lg_u32 s{sISC}, 0"); e("s_cselect_b64 vcc, -1, 0")
        srd(e, SW2, 96, 97, 1792 * 1024)
        srd(e, SWO, 98, 99, 512 * 1024)
        cbcalc()
        e(f"s_mul_i32 s{sWK}, s{sRG}, {448*1024}"); e(f"s_add_u32 s{sWK}, s{sWK}, s{sT1}")
        e(f"s_lshl_b32 s{sWO_}, s{sRG}, 17"); e(f"s_add_u32 s{sWO_}, s{sWO_}, s{sT1}")
        e(f"s_lshl_b32 s{sLB}, s{sRG}, 14")
        e(f"v_lshrrev_b32 v{vXO}, 3, v{vL}"); e(f"v_lshlrev_b32 v{vXO}, 10, v{vXO}")
        e(f"v_and_b32 v{vTR0}, 7, v{vL}"); e(f"v_bfe_u32 v{vTR1}, v{vL}, 4, 1"); e(f"v_lshlrev_b32 v{vTR1}, 2, v{vTR1}")
        e(f"v_xor_b32 v{vTR1}, v{vTR0}, v{vTR1}"); e(f"v_lshl_add_u32 v{vDMA}, v{vTR1}, 4, v{vXO}")
        e(f"v_lshl_add_u32 v{vXO}, v{vTR0}, 4, v{vXO}")
    def early_scalars():
        e(f"s_lshr_b32 s{sT1}, s{sC}, 2"); e(f"s_lshl_b32 s{sT2}, s{sRB}, 1"); e(f"s_add_u32 s{sT2}, s{sT2}, s{sT1}")
        e(f"s_mul_i32 s{sA0}, s{sT2}, {2*114688}"); e(f"s_mul_i32 s{sT0}, s{sRG}, {28*1024}")
        e(f"s_add_u32 s{sA0}, s{sA0}, s{sT0}"); e(f"s_add_u32 s{sA1}, s{sA0}, 114688")
        e(f"s_lshl_b32 s{sPF}, s{sRT}, 11"); e(f"s_lshl_b32 s{sT0}, s{sT1}, 8")
        e(f"s_add_u32 s{sPF}, s{sPF}, s{sT0}"); e(f"s_add_u32 s{sPF}, s{sPF}, {FLG_OFF + 128*1024}")
        e(f"s_cmp_lg_u32 s{sISC}, 0"); e(f"s_cselect_b32 s{sEA}, 1, 64")
    def poll_addr():
        e(f"v_lshrrev_b32 v{vPA}, 1, v{vL}"); e(f"v_lshlrev_b32 v{vPA}, 9, v{vPA}")
        e(f"v_and_b32 v{ND}, 1, v{vL}"); e(f"v_lshl_add_u32 v{vPA}, v{ND}, 7, v{vPA}")
    FPOLL = f"s_mov_b64 exec, 0xff;;buffer_load_dword v{ND}, v{vPA}, {sr(SWS,4)}, s{sPF} offen sc1;;s_mov_b64 exec, -1"
    def checkt(items, spin=SPIN):
        if OPT.get("x_nochk"): return "s_nop 0"
        top, ok = L("C"), L("C")
        t = [f"s_mov_b32 s{sCNT}, 0", f"{top}:"]
        for k, (pt, reg, msk, thr) in enumerate(items):
            t += [f"s_movk_i32 s{sT1}, {thr}", f"v_cmp_gt_u32 s[62:63], s{sT1}, v{reg}", "s_nop 0"]
            if k == 0: t.append(f"s_and_b32 s{sT0}, s62, {msk:#x}")
            else: t += [f"s_and_b32 s{sT1}, s62, {msk:#x}", f"s_or_b32 s{sT0}, s{sT0}, s{sT1}"]
        t += [f"s_cbranch_scc0 {ok}", "s_sleep 8"]
        t += [pt for (pt, reg, msk, thr) in items]
        t += [f"s_add_u32 s{sCNT}, s{sCNT}, 1", f"s_cmp_lt_u32 s{sCNT}, {spin}", "s_waitcnt vmcnt(0)", f"s_cbranch_scc1 {top}", f"{ok}:"]
        if OPT.get("cnt"): t += [f"s_mul_i32 s91, s91, 10", f"s_min_u32 s{sT0}, s{sCNT}, 9", f"s_add_u32 s91, s91, s{sT0}"]
        return ";;".join(t)
    def check(items): e(checkt(items))
    def sentinel(R, n, vt, reload):
        top, ok = L("V"), L("V")
        t = [f"s_mov_b32 s{sCNT}, 0", f"{top}:", f"v_max_u32 v{vt}, v{R}, v{R+1}"]
        t += [f"v_max3_u32 v{vt}, v{vt}, v{R+k}, v{R+k+1}" for k in range(2, n, 2)]
        t += [f"v_cmp_eq_u32 vcc, -1, v{vt}", "s_nop 0", "s_cmp_eq_u64 vcc, 0", f"s_cbranch_scc1 {ok}", "s_sleep 8", reload,
              f"s_add_u32 s{sCNT}, s{sCNT}, 1", f"s_cmp_lt_u32 s{sCNT}, {SPIN // 8}", "s_waitcnt vmcnt(0)", f"s_cbranch_scc1 {top}", f"{ok}:"]
        if OPT.get("cnt"): t += [f"s_mul_i32 s91, s91, 10", f"s_min_u32 s{sT0}, s{sCNT}, 9", f"s_add_u32 s91, s91, s{sT0}"]
        return ";;".join(t)
    RING, NU, NA = 128, 12, OPT.get("na", 8)
    unit = [i % NU for i in range(36)]
    ASC = "" if OPT.get("x_plain") else "sc1"
    def aload(i):
        R = RING + 8 * unit[i]; t = ""
        ks, b0, b1 = (order[i], sA0, sA1) if i < 28 else (i - 28, sP0, sKV)
        if i % 4 == 0: t = f"s_add_u32 s{sT3}, s{b0}, {1024*ks};;s_add_u32 s{sT4}, s{b1}, {1024*ks};;"
        return [t + f"buffer_load_dwordx4 {vr(R,4)}, v{vL16}, {sr(SWS,4)}, s{sT3} offen offset:{1024*(ks&3)} {ASC}",
                f"buffer_load_dwordx4 {vr(R+4,4)}, v{vL16}, {sr(SWS,4)}, s{sT4} offen offset:{1024*(ks&3)} {ASC}"]
    def tail(E, lev, vt):
        l1 = []
        for i in range(NL): l1 += [guard(t) for t in wdma(i)]
        l1.append(midpub(2 * NL, lev, vt))
        l1.append(guard(checkt([(FPOLL, ND, 0xff, 1)])))
        l2 = []
        for i in range(NA): l2 += [guard(t) for t in aload(i)]
        E = list(E)
        h = int(len(E) * 0.5)
        return merge(E[:h], l1) + merge(E[h:], l2, 0.9)

    early_scalars()
    e(f"s_cmp_eq_u32 s{sTYPE}, 0")
    e("s_cbranch_scc1 K_QKV")
    vSS, vPB = vAUX + 8, vAUX + 9
    k0 = -2.0 * math.sqrt(2.0 / math.pi) * math.log2(math.e)
    e(f"v_mov_b32 v{vSS}, v{vS+1}")
    e(f"v_mul_f32 v{vC1}, {f2u(k0):#x}, v{vS}")
    e(f"v_mul_f32 v{vC0}, v{vS}, v{vS}"); e(f"v_mul_f32 v{vC0}, v{vC0}, v{vC1}"); e(f"v_mul_f32 v{vC0}, {f2u(0.044715):#x}, v{vC0}")
    for i in range(4): e(f"v_lshlrev_b32 v{vAUX+i}, 16, v{vAUX+i}")
    e(f"s_mul_i32 s{sOUT}, s{sRT}, 114688"); e(f"s_lshl_b32 s{sT0}, s{sP}, 11"); e(f"s_add_u32 s{sOUT}, s{sOUT}, s{sT0}")
    e(f"s_mov_b32 s{sSLOT}, 0"); e(f"s_mov_b32 s{sLEV}, 0")
    e("s_mov_b64 vcc, -1")
    poll_addr()
    def gelu():
        l = aug(bias=vAUX)
        for half in range(2):
            rng = range(8 * half, 8 * half + 8)
            for i in rng: l(f"v_mul_f32 v{TMP+i}, v{EACC+i}, v{EACC+i}")
            for i in rng: l(f"v_fma_f32 v{TMP+i}, v{TMP+i}, v{vC0}, v{vC1}")
            for i in rng: l(f"v_mul_f32 v{TMP+i}, v{EACC+i}, v{TMP+i}")
            for i in rng: l(f"v_exp_f32 v{TMP+i}, v{TMP+i}")
            for i in rng: l(f"v_fma_f32 v{TMP+i}, v{TMP+i}, v{vSS}, v{vSS}")
            for i in rng: l(f"v_rcp_f32 v{TMP+i}, v{TMP+i}")
            for i in rng: l(f"v_mul_f32 v{TMP+i}, v{EACC+i}, v{TMP+i}")
            for i in range(4): l(f"v_cvt_pk_bf16_f32 v{PK+8+4*half+i}, v{TMP+8*half+2*i}, v{TMP+8*half+2*i+1}")
            l(f"buffer_store_dwordx4 {vr(PK+8+4*half,4)}, v{vL16}, {sr(SWS,4)}, s{sST} offen offset:{1024*half} {STF}")
        return l
    e.label("K_FLOOP")
    e(f"s_lshl_b32 s{sST}, s{sCOL}, 5"); e(f"s_add_u32 s{sST}, s{sST}, s{sOUT}")
    e(f"s_add_u32 s{sDA}, s{sROWO}, s{sCOL+2}"); e(f"s_add_u32 s{sMA}, s{sLB0}, s{sSLOT}")
    mp = f"s_cmp_eq_u32 s{sLEV}, 0;;s_cbranch_scc1 K_FNP;;" + midpub(8, f"s{sLEV}", vPB) + ";;K_FNP:"
    ep = (f"s_cmp_lg_u32 s{sLEV}, s{sIT};;s_cbranch_scc1 K_FE1;;" + APOLL + f";;K_FE1:;;s_cmp_lg_u32 s{sLEV}, s{sEA};;s_cbranch_scc1 K_FE2;;" + FPOLL + ";;K_FE2:")
    fl = merge(gelu(), dma8(True) + [mp], OPT.get("mpat", 36) / 100)
    fl.insert(int(len(fl) * OPT.get("epat", 85) / 100), ep)
    e.ext(interleave(mgroups(), fl, 1, 31))
    for lv in (0, 1, 2):
        if OPT["stamps"] and f"b{lv+1}" in SP:
            e(f"s_cmp_lg_u32 s{sLEV}, {lv}"); e(f"s_cbranch_scc1 K_FB{lv}"); st(f"b{lv+1}"); e.label(f"K_FB{lv}")
    e(f"s_mov_b32 s{sCOL}, s{sCOL+1}"); e(f"s_mov_b32 s{sCOL+1}, s{sCOL+2}"); e(f"s_mov_b32 s{sCOL+2}, s{sCOL+3}")
    e(f"v_mov_b32 v{vAUX}, v{vAUX+1}"); e(f"v_mov_b32 v{vAUX+1}, v{vAUX+2}"); e(f"v_mov_b32 v{vAUX+2}, v{vAUX+3}")
    e(f"s_xor_b32 s{sSLOT}, s{sSLOT}, 0x10000")
    e(f"s_add_u32 s{sLEV}, s{sLEV}, 1")
    round_toggle()
    e(f"s_cmp_eq_u32 s{sLEV}, 3"); e("s_cbranch_scc1 K_FR3")
    e(f"s_waitcnt vmcnt(2) lgkmcnt(0)")
    e(f"s_cmp_lg_u32 s{sLEV}, 1"); e("s_cbranch_scc1 K_FNX")
    r2_check()
    e.label("K_FNX")
    e("s_barrier")
    if OPT["stamps"] and "r1end" in SP:
        e(f"s_cmp_lg_u32 s{sLEV}, 1"); e("s_cbranch_scc1 K_FS1"); st("r1end"); e.label("K_FS1")
    e(f"s_cmp_eq_u32 s{sLEV}, 1"); e("s_cbranch_scc1 K_FLOOP")
    st("r2end")
    e("s_mov_b64 vcc, 0")
    if not OPT.get("x_skipe"):
        e(f"s_cmp_lg_u32 s{sISC}, 0"); e("s_cbranch_scc1 K_FTAIL")
        e(f"s_setprio {OPT.get('gprio', 2)}"); e("s_branch K_FLOOP")
    e("s_branch K_FTAIL")
    e.label("K_FR3")
    e(f"v_mov_b32 v{vS}, {GSY:#x}"); e(f"v_mov_b32 v{vS+1}, 1")
    e("s_waitcnt lgkmcnt(0)")
    e("s_mov_b64 exec, 1"); e(f"ds_add_u32 v{vS}, v{vS+1}"); e("s_mov_b64 exec, -1")
    e.label("K_FSP")
    e(f"ds_read_b32 v{vS+1}, v{vS}")
    e("s_waitcnt lgkmcnt(0)")
    e(f"v_readfirstlane_b32 s{sT0}, v{vS+1}")
    e("s_nop 3")
    e(f"s_cmp_lt_u32 s{sT0}, 4"); e("s_cbranch_scc1 K_FSP")
    e.label("K_FTAIL")
    e(f"ds_read_b128 {vr(PK,4)}, v{vCSR}")
    e(f"s_lshl_b32 s{sST}, s{sCOL}, 5"); e(f"s_add_u32 s{sST}, s{sST}, s{sOUT}")
    p2_setup()
    e("s_waitcnt lgkmcnt(0)")
    st("t0")
    e.ext(tail(gelu(), f"s{sLEV}", vPB))
    e("s_cbranch_vccnz K_P2")
    e("s_waitcnt vmcnt(0)")
    e(publish(4, vPB))
    e("s_branch K_FIN")

    e.label("K_QKV")
    WT, SEL, PHT0 = vAUX, vAUX + 4, vAUX + 4
    e(f"v_mul_f32 v{vC0}, {f2u(math.log2(math.e)):#x}, v{vS}")
    e(f"s_lshl_b32 s{sT0}, s{sW}, 7"); e(f"s_add_u32 s{sST}, s{sT0}, {RVO}")
    e(f"v_lshl_add_u32 v{vS+1}, v{vS+3}, 2, s{sST}")
    e(f"ds_write_b32 v{vS+1}, v{vS}")
    e(f"v_lshrrev_b32 v{vC1}, 5, v{vL}"); e(f"v_lshl_add_u32 v{vC1}, v{vC1}, 4, s{sST}")
    def qconst():
        l = Lst()
        for j in range(4): l(f"v_lshl_or_b32 v{WT+j}, v{vAUX+2*j+1}, 16, v{vAUX+2*j}")
        l(f"v_and_b32 v{vS+1}, 15, v{vL}"); l(f"v_lshrrev_b32 v{vS+4}, 5, v{vL}")
        l(f"v_lshlrev_b32 v{vS+4}, 2, v{vS+4}"); l(f"v_sub_u32 v{vS+4}, v{vS+1}, v{vS+4}")
        l(f"v_mov_b32 v{vS+2}, s{sLO}"); l(f"v_mov_b32 v{vS+3}, s{sHI}")
        for t, f0 in enumerate((0, 2, 8, 10)):
            l(f"v_cmp_eq_u32 vcc, {f0}, v{vS+4};;v_cmp_eq_u32 s[62:63], {f0+1}, v{vS+4};;s_nop 0;;"
              f"v_cndmask_b32 v{SEL+t}, 0, v{vS+2}, vcc;;v_cndmask_b32 v{SEL+t}, v{SEL+t}, v{vS+3}, s[62:63]")
        return l
    def softmax(isk):
        l = aug()
        A1, A2 = TMP, TMP + 4
        for j in range(4):
            l(f"v_cndmask_b32 v{A1+j}, 0, v{WT+j}, {sr(sLT16,2)}"); l(f"v_cndmask_b32 v{A2+j}, v{WT+j}, 0, {sr(sLT16,2)}")
        for i in range(8): l(f"v_cvt_pk_bf16_f32 v{PK+i}, v{EACC+2*i}, v{EACC+2*i+1}")
        l(f"s_nop 1;;{MFMA} {vr(EACC,16)}, {vr(A1,4)}, {vr(PK,4)}, 0;;{MFMA} {vr(EACC,16)}, {vr(A2,4)}, {vr(PK+4,4)}, {vr(EACC,16)}")
        for i in range(6): l("s_nop 1")
        for a in range(2):
            P = EACC + 8 * a
            mx, mn = vS, vS + 1
            l(f"v_max3_f32 v{mx}, v{P}, v{P+1}, v{P+2}"); l(f"v_max3_f32 v{mn}, -v{P}, -v{P+1}, -v{P+2}")
            l(f"v_max3_f32 v{mx}, v{mx}, v{P+3}, v{P+4}"); l(f"v_max3_f32 v{mn}, v{mn}, -v{P+3}, -v{P+4}")
            l(f"v_max3_f32 v{mx}, v{mx}, v{P+5}, v{P+6}"); l(f"v_max3_f32 v{mn}, v{mn}, -v{P+5}, -v{P+6}")
            l(f"v_max_f32 v{mx}, v{mx}, v{P+7}"); l(f"v_max_f32_e64 v{mn}, v{mn}, -v{P+7}")
            l("s_nop 1"); l(f"v_permlane32_swap_b32 v{mx}, v{mn}")
            l(f"v_max_f32 v{mx}, v{mx}, v{mn}")
            l(f"v_mul_f32_e64 v{mx}, -v{mx}, v{vC0}")
            l(f"v_mov_b32 v{mn}, v{mx}")
            l("s_nop 1"); l(f"v_permlane32_swap_b32 v{mx}, v{mn}")
            for j in range(8): l(f"v_fma_f32 v{TMP+j}, v{P+j}, v{vC0}, v{mx}")
            for j in range(8): l(f"v_fma_f32 v{TMP+8+j}, -v{P+j}, v{vC0}, v{mn}")
            for j in range(16): l(f"v_exp_f32 v{TMP+j}, v{TMP+j}")
            s0, s1, s2, s3 = vS + 2, vS + 3, vS + 4, vS + 5
            l(f"v_add_f32 v{s0}, v{TMP}, v{TMP+1}"); l(f"v_add_f32 v{s1}, v{TMP+8}, v{TMP+9}")
            l(f"v_add_f32 v{s2}, v{TMP+2}, v{TMP+3}"); l(f"v_add_f32 v{s3}, v{TMP+10}, v{TMP+11}")
            for j in (4, 6):
                l(f"v_add_f32 v{s0}, v{s0}, v{TMP+j}"); l(f"v_add_f32 v{s1}, v{s1}, v{TMP+8+j}")
                l(f"v_add_f32 v{s2}, v{s2}, v{TMP+j+1}"); l(f"v_add_f32 v{s3}, v{s3}, v{TMP+8+j+1}")
            l(f"v_add_f32 v{s0}, v{s0}, v{s2}"); l(f"v_add_f32 v{s1}, v{s1}, v{s3}")
            l("s_nop 1"); l(f"v_permlane32_swap_b32 v{s0}, v{s1}")
            l(f"v_add_f32 v{s0}, v{s0}, v{s1}")
            l(f"v_rcp_f32 v{s0}, v{s0}")
            l("s_nop 0"); l(f"v_mov_b32 v{s1}, v{s0}")
            l("s_nop 1"); l(f"v_permlane32_swap_b32 v{s0}, v{s1}")
            for j in range(8): l(f"v_mul_f32 v{TMP+j}, v{TMP+j}, v{s0}")
            for j in range(8): l(f"v_mul_f32 v{TMP+8+j}, v{TMP+8+j}, v{s1}")
            for j in range(8): l(f"v_cvt_pk_bf16_f32 v{PK+8*a+j}, v{TMP+2*j}, v{TMP+2*j+1}")
            if not isk:
                for i in range(2):
                    l(f"buffer_store_dwordx4 {vr(PK+8*a+4*i,4)}, v{vL16}, {sr(SWS,4)}, s{sOUT} offen offset:{2048*a+1024*i} {STF}")
        if isk:
            SP_, SM = EACC, EACC + 4
            for j in range(4):
                l(f"v_cndmask_b32 v{SP_+j}, 0, v{SEL+j}, {sr(sLT16,2)}"); l(f"v_cndmask_b32 v{SM+j}, v{SEL+j}, 0, {sr(sLT16,2)}")
            for a in range(2):
                l(f"s_nop 1;;{MFMA} {vr(TMP,16)}, {vr(PK+8*a,4)}, {vr(SP_,4)}, 0;;{MFMA} {vr(TMP,16)}, {vr(PK+8*a+4,4)}, {vr(SM,4)}, {vr(TMP,16)}")
                for i in range(6): l("s_nop 1")
                dst = PHT0 if a == 0 else PK + 8
                for j in range(8): l(f"v_cvt_pk_bf16_f32 v{dst+j}, v{TMP+2*j}, v{TMP+2*j+1}")
        return l
    def vepi():
        l = aug(swap=True)
        l(f"v_mov_b32 v{vS}, s{sONES}")
        for i in range(16): l(f"v_mul_f32 v{EACC+i}, v{EACC+i}, v{TMP+i}")
        for i in range(8): l(f"v_cvt_pk_bf16_f32 v{PK+i}, v{EACC+2*i}, v{EACC+2*i+1}")
        for i in range(8):
            l(f"v_cndmask_b32 v{TMP+i}, v{vS}, v{PK+i}, {sr(sLT16,2)}")
            l(f"v_cndmask_b32 v{TMP+8+i}, v{PK+i}, v{vS}, {sr(sLT16,2)}")
        PHT = (PHT0, PK + 8)
        for a in range(2):
            l(f"s_nop 1;;{MFMA} {vr(EACC,16)}, {vr(PHT[a],4)}, {vr(TMP+8*a,4)}, 0;;{MFMA} {vr(EACC,16)}, {vr(PHT[a]+4,4)}, {vr(TMP+8*a+4,4)}, {vr(EACC,16)}")
            for i in range(6): l("s_nop 1")
            for q in range(4): l(f"ds_write_b128 v{vS+1}, {vr(EACC+4*q,4)} offset:{4096*a + 1024*q}")
            l("s_nop 3")
        return l
    e(f"s_add_u32 s{sDA}, s{sROWO}, s{sCOL+2}"); e(f"s_mov_b32 s{sMA}, s{sLB0}")
    tch = (f"s_cmp_ge_u32 s{sW}, 4;;s_cbranch_scc1 K_NT;;s_lshl_b32 s{sT2}, s{sRB}, 3;;s_add_u32 s{sT2}, s{sT2}, s{sC};;s_lshl_b32 s{sT2}, s{sT2}, 1;;"
           f"s_and_b32 s{sT0}, s{sW}, 1;;s_add_u32 s{sT2}, s{sT2}, s{sT0};;s_cmp_lt_u32 s{sW}, 2;;s_cselect_b64 {sr(SAUX,2)}, s[96:97], s[98:99];;"
           f"s_mov_b32 s{sT0}, {1792*1024};;s_cselect_b32 s{SAUX+2}, s{sT0}, {512*1024};;s_movk_i32 s{sT0}, 7168;;s_cselect_b32 s{sT0}, s{sT0}, 2048;;"
           f"s_cselect_b32 s{sT1}, 56, 16;;s_mul_i32 s{sT0}, s{sT0}, s{sT2};;v_lshlrev_b32 v{vDUM}, 7, v{vL};;s_bfm_b64 exec, s{sT1}, 0;;"
           f"buffer_load_dword v{vDUM}, v{vDUM}, {sr(SAUX,4)}, s{sT0} offen;;s_mov_b64 exec, -1;;K_NT:")
    def l2pf(r):
        return (f"s_lshr_b32 s{sT0}, s{sIDX}, 3;;s_lshl_b32 s{sT0}, s{sT0}, 2;;s_and_b32 s{sT1}, s{sIDX}, 3;;s_add_u32 s{sT0}, s{sT0}, s{sT1};;s_lshl_b32 s{sT0}, s{sT0}, 3;;"
                f"s_add_u32 s{sT0}, s{sT0}, s{sW};;s_lshl_b32 s{sT1}, s2, 4;;s_add_u32 s{sT0}, s{sT0}, s{sT1};;s_and_b32 s{sT0}, s{sT0}, 127;;"
                f"s_mul_i32 s{sT0}, s{sT0}, 14336;;s_add_u32 s{sT0}, s{sT0}, {7168*r};;s_mov_b64 s[92:93], s[96:97];;s_mov_b32 s94, {1792*1024};;s_mov_b32 s95, 0x00020000;;"
                f"v_lshlrev_b32 v{vDUM}, 7, v{vL};;s_bfm_b64 exec, 56, 0;;buffer_load_dword v{vDUM}, v{vDUM}, s[92:95], s{sT0} offen;;s_mov_b64 exec, -1")
    L2 = OPT.get("l2pf", 1)
    flq = merge(qconst() + softmax(True), dma8() + [tch], 0.35)
    if L2: flq.insert(int(len(flq) * 0.6), l2pf(0))
    flq.insert(len(flq) - 30, f"s_cmp_lg_u32 s{sW}, 7;;s_cbranch_scc1 K_QAP;;" + APOLL + ";;K_QAP:")
    e.ext(interleave(mgroups(swap=True), flq, 1, 31))
    st("b1")
    round_toggle()
    e(f"s_lshl_b32 s{sT0}, s{sW}, 13"); e(f"s_add_u32 s{sT0}, s{sT0}, {YB}")
    e(f"v_add_u32 v{vS+1}, s{sT0}, v{vL16}")
    poll_addr()
    e("s_waitcnt vmcnt(0) lgkmcnt(0)")
    r2_check()
    e(f"s_cmp_lg_u32 s{sISC}, 0"); e("s_cselect_b64 vcc, -1, 0")
    e("s_barrier")
    st("r1end")
    MG = mgroups(pre=[f"ds_read_b128 {vr(TMP+4*q,4)}, v{vC1} offset:{32*q}" for q in range(4)])
    QP, QC = OPT.get("qp", 30), OPT.get("qc", 24)
    if L2: MG[1].append(l2pf(1))
    MG[QP].append(guard(FPOLL))
    vv = vepi()
    if OPT.get("x_nokw"): vv = [i for i in vv if "ds_write" not in i]
    if OPT.get("x_nov"): vv = ["s_nop 0"]
    if OPT.get("x_noea"): MG = [[i for i in g if "s_cbranch" not in i] for g in MG]
    e.ext(interleave(MG, vv, 1, 28))
    st("b2")
    round_toggle()
    e("s_waitcnt lgkmcnt(0)")
    e("s_barrier")
    st("r2end")
    e(f"ds_read_b128 {vr(PK,4)}, v{vCSR}")
    p2_setup()
    PARK = 0x23000
    e(f"s_mul_i32 s{sT0}, s{sRG}, 3072"); e(f"s_add_u32 s{sT0}, s{sT0}, {PARK}")
    e(f"v_add_u32 v{vS+1}, s{sT0}, v{vL16}")
    e(f"s_lshl_b32 s{sT0}, s{sRG}, 2"); e(f"s_add_u32 s{sT0}, s{sT0}, {GSY+32}"); e(f"v_mov_b32 v{vS+4}, s{sT0}")
    e("s_waitcnt lgkmcnt(0)")
    lq = aug()
    lq += [f"v_cvt_pk_bf16_f32 v{PK+8+i}, v{EACC+2*i}, v{EACC+2*i+1}" for i in range(8)]
    e("s_cbranch_vccz K_QG")
    lq2 = lq + [f"ds_write_b128 v{vS+1}, {vr(PK+8,4)}", f"ds_write_b128 v{vS+1}, {vr(PK+12,4)} offset:1024", f"ds_write_b128 v{vS+1}, {vr(WT,4)} offset:2048"]
    lq2 += [f"v_mov_b32 v{vS+5}, 1;;s_waitcnt lgkmcnt(0);;ds_write_b32 v{vS+4}, v{vS+5}"]
    w16 = []
    for i in range(NL): w16 += wdma(i)
    e.ext(merge(lq2, w16[:6])); e.ext(w16[6:])
    e(f"s_waitcnt vmcnt({2*NL})"); check([(FPOLL, ND, 0xff, 1)])
    for i in range(NA): e.ext(aload(i))
    e("s_branch K_P2")

    e.label("K_QG")
    VBr, QBc, QB0, WT0, SPm, SMm, PHT0, RED, PHS, KVR = 128, 136, 144, 152, 96, 100, 104, 160, 192, 208
    vSL, vONE, vRS, vRD = 112, 113, vTR0, vTR1
    sU, sGI = sA0, sA1
    e(f"s_setprio {OPT.get('gprio', 2)}")
    e(f"v_mov_b32 v{vSL}, v{vS+1}"); e(f"v_mov_b32 v{vSL+2}, v{vS+4}")
    e(f"s_lshl_b32 s{sT1}, s{sRG}, 10"); e(f"s_add_u32 s{sT1}, s{sT1}, {YB}"); e(f"v_add_u32 v{vS+2}, s{sT1}, v{vL16}")
    for hd in range(4):
        for w in range(4):
            e(f"ds_read_b128 {vr(RED+16*hd+4*w,4)}, v{vS+2} offset:{32768*(hd>>1) + 8192*w + 4096*(hd&1)}")
    e(f"s_lshl_b32 s{sOUT}, s{sRB}, 17"); e(f"s_lshl_b32 s{sT0}, s{sC}, 14"); e(f"s_add_u32 s{sOUT}, s{sOUT}, s{sT0}")
    e(f"s_lshl_b32 s{sT0}, s{sRG}, 10"); e(f"s_add_u32 s{sOUT}, s{sOUT}, s{sT0}"); e(f"s_add_u32 s{sOUT}, s{sOUT}, {KVP_OFF}")
    e(f"v_xor_b32 v{vS+3}, 256, v{vL16}")
    for hd in range(4):
        e(f"s_waitcnt lgkmcnt({4*(3-hd)})")
        B = RED + 16 * hd
        for j in range(4): e(f"v_add_f32 v{B+j}, v{B+j}, v{B+4+j}")
        for j in range(4): e(f"v_add_f32 v{B+8+j}, v{B+8+j}, v{B+12+j}")
        for j in range(4): e(f"v_add_f32 v{B+j}, v{B+j}, v{B+8+j}")
        e(f"buffer_store_dwordx4 {vr(B,4)}, v{vS+3 if hd & 1 else vL16}, {sr(SWS,4)}, s{sOUT} offen sc1")
        if hd < 3: e(f"s_add_u32 s{sOUT}, s{sOUT}, 4096")
    e.ext(aug())
    for i in range(8): e(f"v_cvt_pk_bf16_f32 v{QBc+i}, v{EACC+2*i}, v{EACC+2*i+1}")
    def softcore(src):
        l = Lst()
        A1, A2 = TMP, TMP + 4
        for j in range(4):
            l(f"v_cndmask_b32 v{A1+j}, 0, v{WT+j}, {sr(sLT16,2)}"); l(f"v_cndmask_b32 v{A2+j}, v{WT+j}, 0, {sr(sLT16,2)}")
        l(f"s_nop 1;;{MFMA} {vr(EACC,16)}, {vr(A1,4)}, {vr(src,4)}, 0;;{MFMA} {vr(EACC,16)}, {vr(A2,4)}, {vr(src+4,4)}, {vr(EACC,16)}")
        l("s_nop 11")
        for a in range(2):
            P = EACC + 8 * a
            mx, mn = vS, vS + 1
            l(f"v_max3_f32 v{mx}, v{P}, v{P+1}, v{P+2}"); l(f"v_max3_f32 v{mn}, -v{P}, -v{P+1}, -v{P+2}")
            l(f"v_max3_f32 v{mx}, v{mx}, v{P+3}, v{P+4}"); l(f"v_max3_f32 v{mn}, v{mn}, -v{P+3}, -v{P+4}")
            l(f"v_max3_f32 v{mx}, v{mx}, v{P+5}, v{P+6}"); l(f"v_max3_f32 v{mn}, v{mn}, -v{P+5}, -v{P+6}")
            l(f"v_max_f32 v{mx}, v{mx}, v{P+7}"); l(f"v_max_f32_e64 v{mn}, v{mn}, -v{P+7}")
            l("s_nop 1"); l(f"v_permlane32_swap_b32 v{mx}, v{mn}")
            l(f"v_max_f32 v{mx}, v{mx}, v{mn}")
            l(f"v_mul_f32_e64 v{mx}, -v{mx}, v{vC0}")
            l(f"v_mov_b32 v{mn}, v{mx}")
            l("s_nop 1"); l(f"v_permlane32_swap_b32 v{mx}, v{mn}")
            for j in range(8): l(f"v_fma_f32 v{TMP+j}, v{P+j}, v{vC0}, v{mx}")
            for j in range(8): l(f"v_fma_f32 v{TMP+8+j}, -v{P+j}, v{vC0}, v{mn}")
            for j in range(16): l(f"v_exp_f32 v{TMP+j}, v{TMP+j}")
            s0, s1, s2, s3 = vS + 2, vS + 3, vS + 4, vS + 5
            l(f"v_add_f32 v{s0}, v{TMP}, v{TMP+1}"); l(f"v_add_f32 v{s1}, v{TMP+8}, v{TMP+9}")
            l(f"v_add_f32 v{s2}, v{TMP+2}, v{TMP+3}"); l(f"v_add_f32 v{s3}, v{TMP+10}, v{TMP+11}")
            for j in (4, 6):
                l(f"v_add_f32 v{s0}, v{s0}, v{TMP+j}"); l(f"v_add_f32 v{s1}, v{s1}, v{TMP+8+j}")
                l(f"v_add_f32 v{s2}, v{s2}, v{TMP+j+1}"); l(f"v_add_f32 v{s3}, v{s3}, v{TMP+8+j+1}")
            l(f"v_add_f32 v{s0}, v{s0}, v{s2}"); l(f"v_add_f32 v{s1}, v{s1}, v{s3}")
            l("s_nop 1"); l(f"v_permlane32_swap_b32 v{s0}, v{s1}")
            l(f"v_add_f32 v{s0}, v{s0}, v{s1}")
            l(f"v_rcp_f32 v{s0}, v{s0}")
            l("s_nop 0"); l(f"v_mov_b32 v{s1}, v{s0}")
            l("s_nop 1"); l(f"v_permlane32_swap_b32 v{s0}, v{s1}")
            for j in range(8): l(f"v_mul_f32 v{TMP+j}, v{TMP+j}, v{s0}")
            for j in range(8): l(f"v_mul_f32 v{TMP+8+j}, v{TMP+8+j}, v{s1}")
            for j in range(8): l(f"v_cvt_pk_bf16_f32 v{PK+8*a+j}, v{TMP+2*j}, v{TMP+2*j+1}")
        return l
    def ldspin(lbl, areg, n):
        e.label(lbl)
        e(f"ds_read_b32 v{vS+5}, v{areg}"); e("s_waitcnt lgkmcnt(0)")
        e(f"v_readfirstlane_b32 s{sT0}, v{vS+5}"); e("s_nop 3")
        e(f"s_cmp_lt_u32 s{sT0}, {n}"); e(f"s_cbranch_scc1 {lbl}")
    e(f"s_lshl_b32 s{sU}, s{sC}, 4"); e(f"s_add_u32 s{sU}, s{sU}, s{sRB}"); e(f"s_lshl_b32 s{sU}, s{sU}, 1"); e(f"s_add_u32 s{sU}, s{sU}, s{sRG}")
    e(f"v_lshrrev_b32 v{vS+2}, 4, v{vL}"); e(f"v_and_b32 v{vS+3}, 15, v{vL}"); e(f"v_lshlrev_b32 v{vS+3}, 4, v{vS+3}")
    e(f"v_lshl_add_u32 v{vRS}, v{vS+2}, 17, v{vS+3}")
    e(f"v_lshl_add_u32 v{vRD}, v{vS+2}, 2, v{vS+3}")
    e(f"s_lshr_b32 s{sPF}, s{sU}, 2"); e(f"s_lshl_b32 s{sPF}, s{sPF}, 11"); e(f"s_and_b32 s{sT1}, s{sU}, 3"); e(f"s_lshl_b32 s{sT1}, s{sT1}, 8")
    e(f"s_add_u32 s{sPF}, s{sPF}, s{sT1}"); e(f"s_add_u32 s{sPF}, s{sPF}, {KVP_OFF}")
    RLOAD = f"s_mov_b32 s{sT0}, s{sPF}"
    for u in range(4):
        RLOAD += f";;buffer_load_dwordx4 {vr(RED+8*u,4)}, v{vRS}, {sr(SWS,4)}, s{sT0} offen sc1;;buffer_load_dwordx4 {vr(RED+8*u+4,4)}, v{vRS}, {sr(SWS,4)}, s{sT0} offen offset:1024 sc1"
        if u < 3: RLOAD += f";;s_add_u32 s{sT0}, s{sT0}, {4*131072}"
    g1 = L("R")
    mid = f"s_add_u32 s{sT0}, s{sRG}, s{sGI};;s_cmp_ge_u32 s{sT0}, 2;;s_cbranch_scc1 {g1};;" + RLOAD + f";;{g1}:"
    e(f"s_mov_b32 s{sGI}, 0")
    e.label("K_GQ")
    sq = softcore(QBc)
    sq.insert(int(len(sq) * OPT.get("gmid", 85) / 100), mid)
    e.ext(sq)
    e(f"s_cmp_lg_u32 s{sGI}, 0"); e("s_cbranch_scc1 K_GQD")
    st("gk")
    e(f"s_cmp_ge_u32 s{sRG}, 2"); e("s_cbranch_scc1 K_GNR")
    e("s_waitcnt vmcnt(0)")
    e(sentinel(RED, 32, vS, RLOAD))
    e(f"s_lshl_b32 s{sT0}, s{sU}, 8"); e(f"s_add_u32 s{sT0}, s{sT0}, {KVZ_OFF}")
    for stp in (16, 8):
        for j in range(stp): e(f"v_add_f32 v{RED+j}, v{RED+j}, v{RED+stp+j}")
    e("s_nop 1")
    for k in range(4): e(f"v_permlane32_swap_b32 v{RED+k}, v{RED+k+4}")
    for k in range(4): e(f"v_add_f32 v{RED+k}, v{RED+k}, v{RED+k+4}")
    e("s_nop 1")
    for k in range(2): e(f"v_permlane16_swap_b32 v{RED+k}, v{RED+k+2}")
    for k in range(2): e(f"v_add_f32 v{RED+k}, v{RED+k}, v{RED+k+2}")
    e(f"v_cvt_pk_bf16_f32 v{RED}, v{RED}, v{RED+1}")
    e(f"buffer_store_dword v{RED}, v{vRD}, {sr(SWS,4)}, s{sT0} offen sc1")
    e(f"v_mov_b32 v{vS}, {GSY:#x}"); e(f"v_mov_b32 v{vS+1}, 1")
    e("s_mov_b64 exec, 1"); e(f"ds_add_u32 v{vS}, v{vS+1}"); e("s_mov_b64 exec, -1")
    e.label("K_GNR")
    ldspin("K_GQS", vSL + 2, 1)
    e(f"ds_read_b128 {vr(WT,4)}, v{vSL} offset:2048")
    e(f"ds_read_b128 {vr(QBc,4)}, v{vSL}"); e(f"ds_read_b128 {vr(QBc+4,4)}, v{vSL} offset:1024")
    for j in range(16): e(f"v_mov_b32 v{PHS+j}, v{PK+j}")
    e(f"s_mov_b32 s{sGI}, 2")
    e("s_waitcnt lgkmcnt(0)")
    e("s_branch K_GQ")
    e.label("K_GQD")
    st("gq")
    e(f"v_mov_b32 v{vS}, {GSY:#x}"); e(f"v_mov_b32 v{vS+1}, 1")
    e("s_mov_b64 exec, 1"); e(f"ds_add_u32 v{vS}, v{vS+1}"); e("s_mov_b64 exec, -1")
    ldspin("K_GOS", vS, 6)
    st("gr")
    e(f"s_lshl_b32 s{sT0}, s{sP}, 1"); e(f"s_xor_b32 s{sT0}, s{sT0}, s{sRG}"); e(f"s_lshl_b32 s{sT0}, s{sT0}, 11")
    e(f"s_lshl_b32 s{sT2}, s{sC}, 13"); e(f"s_add_u32 s{sT2}, s{sT2}, s{sT0}"); e(f"s_add_u32 s{sT2}, s{sT2}, {KVZ_OFF}")
    ZLOAD = f"buffer_load_dwordx4 {vr(KVR,4)}, v{vL16}, {sr(SWS,4)}, s{sT2} offen sc1;;buffer_load_dwordx4 {vr(KVR+4,4)}, v{vL16}, {sr(SWS,4)}, s{sT2} offen offset:1024 sc1"
    e(ZLOAD)
    e(f"s_lshl_b32 s{sT0}, s{sRG}, 13"); e(f"s_add_u32 s{sT0}, s{sT0}, {YB}"); e(f"v_add_u32 v{vS+2}, s{sT0}, v{vL16}")
    e(f"v_add_u32 v{vS+3}, {YB:#x}, v{vL16}")
    e("s_waitcnt vmcnt(0)")
    e(sentinel(KVR, 8, vS + 4, ZLOAD))
    e(f"ds_write_b128 v{vS+2}, {vr(KVR,4)}"); e(f"ds_write_b128 v{vS+2}, {vr(KVR+4,4)} offset:1024")
    e("s_waitcnt lgkmcnt(0)")
    e("s_mov_b64 exec, 1"); e(f"ds_add_u32 v{vS}, v{vS+1}"); e("s_mov_b64 exec, -1")
    ldspin("K_GZS", vS, 10)
    for k in range(8): e(f"ds_read_b128 {vr(KVR+4*k,4)}, v{vS+3} offset:{8192*(k>>1) + 1024*(k&1)}")
    st("gv")
    e(f"s_lshl_b32 s{sT2}, s{sRT}, 15"); e(f"s_lshl_b32 s{sT0}, s{sC}, 12"); e(f"s_add_u32 s{sT2}, s{sT2}, s{sT0}")
    e(f"s_lshl_b32 s{sT0}, s{sP}, 11"); e(f"s_add_u32 s{sT2}, s{sT2}, s{sT0}"); e(f"s_add_u32 s{sT2}, s{sT2}, {PQ_OFF}")
    e(f"s_xor_b32 s{sT3}, s{sT2}, 2048")
    e("s_waitcnt lgkmcnt(0)")
    NDG = (64, 80, 128, 144)
    for hd in range(4):
        ph = (PHS if hd < 2 else PK) + 8 * (hd & 1); d = vr(NDG[hd], 16)
        e(f"{MFMA} {d}, {vr(KVR+8*hd,4)}, {vr(ph,4)}, 0"); e(f"{MFMA} {d}, {vr(KVR+8*hd+4,4)}, {vr(ph+4,4)}, {d}")
    e("s_nop 5")
    for hd in range(4):
        d = NDG[hd]
        e(f"v_add_f32 v{vS}, {f2u(1e-6):#x}, v{d+8}"); e(f"v_rcp_f32 v{vS}, v{vS}"); e("s_nop 0")
        for j in range(8): e(f"v_mul_f32 v{d+j}, v{d+j}, v{vS}")
        for j in range(4): e(f"v_cvt_pk_bf16_f32 v{TMP+4*hd+j}, v{d+2*j}, v{d+2*j+1}")
        e(f"buffer_store_dwordx4 {vr(TMP+4*hd,4)}, v{vL16}, {sr(SWS,4)}, s{sT2 if hd < 2 else sT3} offen offset:{1024*(hd&1)} sc1")
    e("s_branch K_FIN")

    e.label("K_P2")
    e(f"s_setprio {OPT.get('cprio', 0)}")
    st("p2start")
    vS2, vXB, vX, vB, OP = 224, 16, 32, 40, 32
    ACC2, WB2 = 48, 112
    SO, SB2 = 64, 68
    e("s_load_dwordx4 s[72:75], s[0:1], 64")
    e(f"s_lshr_b32 s{sT1}, s{sC}, 2"); e(f"s_lshl_b32 s{sT2}, s{sRB}, 1"); e(f"s_add_u32 s{sT2}, s{sT2}, s{sT1}")
    LA = OPT.get("la", 4)
    nun = [1] * 36
    ops = [i for i in range(NL) for _ in range(2)] + [i for i in range(NA) for _ in range(2)]
    state = dict(na=NA, nw=NL, done=-1)
    FIRST = {8: 2, 16: 3, 24: 4}
    QPOLL = f"s_sub_u32 s{sT0}, s{sPF}, {128*1024};;s_mov_b64 exec, 0xff;;buffer_load_dword v{ND}, v{vPA}, {sr(SWS,4)}, s{sT0} offen sc1;;s_mov_b64 exec, -1"
    def tagwait(tag):
        last = max(i for i, o in enumerate(ops) if o == tag)
        e(f"s_waitcnt vmcnt({min(63, len(ops) - 1 - last)})")
    def issue_a(i):
        R = RING + 8 * unit[i]
        if i in FIRST and not OPT.get("x_nopoll"):
            st(f"cb{i}"); tagwait(f"p{i}"); check([(FPOLL, ND, 0xff, FIRST[i])]); st(f"ca{i}")
        e.ext(aload(i)); ops.extend([i] * 2)
        PL = OPT.get("pl", 3)
        if i + PL in FIRST and not OPT.get("x_nopoll"): e(FPOLL); ops.append(f"p{i+PL}")
    def pump():
        n = 0
        while state["na"] < 36:
            i = state["na"]
            us = set(range(unit[i], unit[i] + nun[i]))
            if any(us & set(range(unit[q], unit[q] + nun[q])) for q in range(state["done"] + 1, i)): break
            if i - state["done"] > LA: break
            issue_a(i); state["na"] += 1; n += 1
        while state["nw"] < 36 and state["nw"] - state["done"] <= OPT.get("lw", NL):
            e.ext(wdma(state["nw"])); ops.extend([state["nw"]] * 2); state["nw"] += 1; n += 1
        return n
    for fi in FIRST:
        if NA <= fi < NA + OPT.get("pl", 3) and not OPT.get("x_nopoll"): e(FPOLL); ops.append(f"p{fi}")
    pump()
    cbcalc()
    e(f"s_lshl_b32 s{sXO}, s{sT2}, 16"); e(f"s_add_u32 s{sXO}, s{sXO}, s{sT1}"); e(f"s_add_u32 s{sXO}, s{sXO}, s{sLB}")
    e(f"s_add_u32 s{sXO2}, s{sXO}, 8192")
    e(f"buffer_load_dwordx4 {vr(vX,4)}, v{vXO}, {sr(SX,4)}, s{sXO} offen")
    e(f"buffer_load_dwordx4 {vr(vX+4,4)}, v{vXO}, {sr(SX,4)}, s{sXO2} offen")
    e(f"v_and_b32 v{vS2+5}, 0x70, v{vL16}")
    e("s_waitcnt lgkmcnt(0)")
    srd(e, SB2, 72, 73, 1024)
    srd(e, SO, 74, 75, 2048 * 1024)
    e(f"buffer_load_dwordx4 {vr(vB,4)}, v{vS2+5}, {sr(SB2,4)}, s{sT1} offen")
    ops.extend(["x"] * 3)
    e(f"s_lshl_b32 s{sP0}, s{sT2}, 16"); e(f"s_lshr_b32 s{sT0}, s{sLB}, 1"); e(f"s_add_u32 s{sP0}, s{sP0}, s{sT0}"); e(f"s_add_u32 s{sP0}, s{sP0}, {PQ_OFF}")
    e(f"s_add_u32 s{sKV}, s{sP0}, 32768")
    e(f"v_bfe_u32 v{vS2+6}, v{vL}, 2, 2"); e(f"v_lshrrev_b32 v{vS2+4}, 5, v{vL}"); e(f"v_bfe_u32 v{vS2+3}, v{vL}, 4, 1")
    e(f"v_lshl_add_u32 v{vS2+7}, v{vS2+4}, 2, v{vS2+6}"); e(f"v_lshlrev_b32 v{vTR0}, 7, v{vS2+7}")
    e(f"v_lshl_add_u32 v{vTR0}, v{vS2+3}, 5, v{vTR0}")
    e(f"v_and_b32 v{vS2+7}, 3, v{vL}"); e(f"v_lshl_add_u32 v{vTR0}, v{vS2+7}, 3, v{vTR0}")
    e(f"v_lshrrev_b32 v{vS2+6}, 1, v{vS2+6}"); e(f"v_lshl_add_u32 v{vTR0}, v{vS2+6}, 6, v{vTR0}")
    e(f"v_add_u32 v{vTR0}, s{sLB}, v{vTR0}")
    e(f"v_xor_b32 v{vTR1}, 64, v{vTR0}")
    def wreads(i):
        off = 2048 * (i % NL); b = WB2 + 8 * (i & 1)
        e(f"ds_read_b64_tr_b16 {vr(b,2)}, v{vTR0} offset:{off}")
        e(f"ds_read_b64_tr_b16 {vr(b+2,2)}, v{vTR0} offset:{off+1024}")
        e(f"ds_read_b64_tr_b16 {vr(b+4,2)}, v{vTR1} offset:{off}")
        e(f"ds_read_b64_tr_b16 {vr(b+6,2)}, v{vTR1} offset:{off+1024}")
    def mm4(buf, act, first=False):
        for nt in range(2):
            for mt in range(2):
                c = vr(ACC2 + 16 * (2 * nt + mt), 16)
                e(f"{MFMA} {c}, {vr(WB2+8*buf+4*nt,4)}, {act[mt]}, {'0' if first else c}")
    tagwait(0)
    st("p2data")
    wreads(0)
    XBASE = YB
    for i in range(36):
        if i < 35:
            tagwait(i + 1)
            if i == OPT.get("pubat", 2):
                e(f"s_cmp_eq_u32 s{sTYPE}, 0"); e("s_cbranch_scc1 K_NPB")
                e(f"s_waitcnt vmcnt({len(ops) - 2*NA - 2*NL})"); e(publish(4, vS2)); e.label("K_NPB")
            wreads(i + 1)
            e("s_waitcnt lgkmcnt(4)")
        else:
            e("s_waitcnt lgkmcnt(0)")
        R = RING + 8 * unit[i]
        if i >= 28:
            o_ = 1024 * (i - 28)
            e(sentinel(R, 8, vS2, f"s_add_u32 s{sT0}, s{sP0}, {o_};;s_add_u32 s{sT1}, s{sKV}, {o_};;"
                       f"buffer_load_dwordx4 {vr(R,4)}, v{vL16}, {sr(SWS,4)}, s{sT0} offen sc1;;buffer_load_dwordx4 {vr(R+4,4)}, v{vL16}, {sr(SWS,4)}, s{sT1} offen sc1"))
        mm4(i & 1, [vr(R, 4), vr(R + 4, 4)], i == 0)
        state["done"] = i
        pump()
        st(f"s{i}")
        if i == 12:
            for k in range(4):
                e(f"v_lshlrev_b32 v{vS2}, 16, v{vB+k}"); e(f"v_and_b32 v{vS2+1}, s{sMASK}, v{vB+k}")
                for t in range(2):
                    d = vXB + 8 * t + 2 * k
                    e(f"v_lshlrev_b32 v{d}, 16, v{vX+4*t+k}"); e(f"v_and_b32 v{d+1}, s{sMASK}, v{vX+4*t+k}")
                    e(f"v_add_f32 v{d}, v{d}, v{vS2}"); e(f"v_add_f32 v{d+1}, v{d+1}, v{vS2+1}")
        if i == 33: e("s_barrier")
    e(f"v_and_b32 v{vS2+2}, 31, v{vL}"); e(f"v_mul_u32_u24 v{vS2+2}, 272, v{vS2+2}")
    e(f"v_lshrrev_b32 v{vS2+3}, 5, v{vL}"); e(f"v_lshl_add_u32 v{vS2+2}, v{vS2+3}, 4, v{vS2+2}")
    e(f"s_mul_i32 s{sT0}, s{sRG}, 17408"); e(f"s_add_u32 s{sT0}, s{sT0}, {XBASE}")
    e(f"v_add_u32 v{vS2+2}, s{sT0}, v{vS2+2}")
    e(f"v_lshrrev_b32 v{vS2+3}, 3, v{vL}"); e(f"v_mul_u32_u24 v{vS2+3}, 272, v{vS2+3}")
    e(f"v_and_b32 v{vS2+4}, 7, v{vL}"); e(f"v_lshl_add_u32 v{vS2+3}, v{vS2+4}, 5, v{vS2+3}")
    e(f"s_mul_i32 s{sT0}, s{sRG}, {16*272}"); e(f"s_add_u32 s{sT0}, s{sT0}, {XBASE}")
    e(f"v_add_u32 v{vS2+3}, s{sT0}, v{vS2+3}")
    for nt in range(2):
        for mt in range(2):
            for q in range(4):
                e(f"ds_write_b128 v{vS2+2}, {vr(ACC2+16*(2*nt+mt)+4*q,4)} offset:{32*272*mt + 128*nt + 32*q}")
    e("s_waitcnt lgkmcnt(0)"); e("s_barrier")
    for t in range(2):
        for p in range(4):
            for hh in range(2):
                e(f"ds_read_b128 {vr(ACC2+32*t+8*p+4*hh,4)}, v{vS2+3} offset:{17408*p + 8*272*t + 16*hh}")
    for t in range(2):
        for p in range(4):
            e(f"s_waitcnt lgkmcnt({14 - 8*t - 2*p})")
            for j in range(8): e(f"v_add_f32 v{vXB+8*t+j}, v{vXB+8*t+j}, v{ACC2+32*t+8*p+j}")
        for j in range(4): e(f"v_cvt_pk_bf16_f32 v{OP+4*t+j}, v{vXB+8*t+2*j}, v{vXB+8*t+2*j+1}")
        e(f"buffer_store_dwordx4 {vr(OP+4*t,4)}, v{vXO}, {sr(SO,4)}, s{sXO if t == 0 else sXO2} offen")
    e.label("K_FIN")
    if OPT.get("cnt"): e("s_add_u32 s90, s91, s78")
    if OPT["stamps"] and not OPT.get("phys"):
        e(f"s_xor_b32 s{sW}, s{sISC}, 1"); e(f"s_lshl_b32 s{sW}, s{sW}, 2"); e(f"s_add_u32 s{sW}, s{sW}, s{sRG}")
    stamp_end(e, 0, SWS, "K_END", sW, 0)
    e.label("K_END")
    e("s_endpgm")
    return e.text()

def main():
    out = "; LayerNorm + hedgehog linear attention + GELU FFN, one persistent launch (generated by tools/gen2.py)\n"
    out += "; @launch grid=(256,1,1) block=(512,1,1) lds=163840\n"
    out += '.amdgcn_target "amdgcn-amd-amdhsa--gfx950"\n.text\n'
    out += f".globl {KN}\n.p2align 8\n.type {KN},@function\n{KN}:\n" + gen()
    out += ".p2align 8\n.fill 1536, 4, 0xbf800000\n"
    out += f""".section .rodata,"a"
.p2align 6
.amdhsa_kernel {KN}
  .amdhsa_next_free_vgpr 256
  .amdhsa_next_free_sgpr 102
  .amdhsa_accum_offset 256
  .amdhsa_group_segment_fixed_size 0
  .amdhsa_kernarg_size 96
  .amdhsa_user_sgpr_count 2
  .amdhsa_user_sgpr_kernarg_segment_ptr 1
  .amdhsa_system_sgpr_workgroup_id_x 1
.end_amdhsa_kernel
"""
    open(sys.argv[1], "w").write(out)
main()
```

```python
import sys, math, struct

OPT = dict(stamps=0, st1="sc1", k1only=0, k2only=0, pfcode=1, pfw2=3)
for a in sys.argv[2:]:
    k, v = a.split("=")
    OPT[k] = int(v) if v.lstrip("-").isdigit() else v

H_OFF, PQ_OFF, KVP_OFF, KVZ_OFF, FLG_OFF = 0, 0x800000, 0xC00000, 0xE00000, 0xE10000
STAMP_OFF = 200 << 20
NSTAMP = 8
LOOPST = OPT.get('loopst', -1)

def f2u(x): return struct.unpack("<I", struct.pack("<f", x))[0]

class Asm:
    def __init__(self): self.L = []
    def __call__(self, s):
        for t in s.split(";;"):
            t = t.strip()
            self.L.append(t if t.endswith(":") else "    " + t)
    def label(self, s): self.L.append(s + ":")
    def ext(self, lst):
        for s in lst: self(s)
    def text(self): return "\n".join(self.L) + "\n"

class Lst(list):
    def __call__(self, s): self.append(s)

def vr(b, n=1): return f"v{b}" if n == 1 else f"v[{b}:{b+n-1}]"
def ar(b, n=1): return f"a{b}" if n == 1 else f"a[{b}:{b+n-1}]"
def sr(b, n=1): return f"s{b}" if n == 1 else f"s[{b}:{b+n-1}]"
MFMA = "v_mfma_f32_32x32x16_bf16"

def cost(ins):
    c = 0
    for t in ins.split(";;"):
        op = t.split()[0]
        if op.endswith(":"): continue
        if "s_cbranch" in ins and op.startswith(("s_", "v_")): c += 0.5; continue
        if op.startswith(("v_exp", "v_rcp", "v_sqrt", "v_log", "v_mfma")): c += 8
        elif op == "s_nop": c += 2 * (int(t.split()[1]) + 1)
        elif op.startswith("s_"): c += 1
        elif op.startswith("buffer_"): c += 8
        else: c += 4.5
    return c

def interleave(groups, fill, first=0, last=None):
    last = len(groups) - 1 if last is None else last
    tot = sum(cost(i) for i in fill); n = last - first + 1
    out = []; k = 0; acc = 0.0
    for gi, g in enumerate(groups):
        out += g
        if first <= gi <= last:
            tgt = tot * (gi - first + 1) / n
            while k < len(fill) and (acc + cost(fill[k]) / 2 <= tgt or gi == last):
                out.append(fill[k]); acc += cost(fill[k]); k += 1
    assert k == len(fill)
    return out

def merge(a, b, frac=1.0):
    out = []; n = max(1, int(len(a) * frac)); k = 0
    for i, x in enumerate(a):
        while k < len(b) and k * n <= i * len(b) and i < n:
            out.append(b[k]); k += 1
        out.append(x)
    out += b[k:]
    return out

def srd(e, d, lo, hi, size):
    e(f"s_mov_b32 s{d}, s{lo}"); e(f"s_mov_b32 s{d+1}, s{hi}")
    e(f"s_mov_b32 s{d+2}, {size:#x}"); e(f"s_mov_b32 s{d+3}, 0x00020000")

def stamp(e, idx, base=80):
    if OPT["stamps"]:
        e(f"s_memtime s[{base+2*idx}:{base+2*idx+1}]")

def stamp_begin(e, base=80):
    if OPT["stamps"]:
        e(f"s_memrealtime s[{base}:{base+1}]")
        e(f"s_memtime s[{base-2}:{base-1}]")
        for i in range(2, NSTAMP):
            e(f"s_mov_b64 s[{base+2*i}:{base+2*i+1}], 0")

def stamp_end(e, kidx, wssrd, lbl, wave_sgpr, wave_sel, base=80):
    if not OPT["stamps"]: return
    e(f"s_memtime s[{base+2*(NSTAMP-2)}:{base+2*(NSTAMP-2)+1}]")
    e("s_waitcnt vmcnt(0)")
    e(f"s_memrealtime s[{base+2}:{base+3}]")
    e(f"s_memtime s[{base+2*(NSTAMP-1)}:{base+2*(NSTAMP-1)+1}]")
    e("s_waitcnt lgkmcnt(0)")
    for i in range(2, NSTAMP):
        e(f"s_sub_u32 s{base+2*i}, s{base+2*i}, s{base-2}")
        e(f"s_mov_b32 s{base+2*i+1}, 0")
    e(f"s_lshl_b32 s{base-2}, s2, 3"); e(f"s_add_u32 s{base-2}, s{base-2}, s{wave_sgpr}")
    e(f"s_mul_i32 s{base-2}, s{base-2}, {8*NSTAMP}")
    e(f"s_add_u32 s{base-2}, s{base-2}, {STAMP_OFF + kidx*256*8*8*NSTAMP}")
    e("s_mov_b64 exec, 1")
    e("v_mov_b32 v1, 0")
    for i in range(NSTAMP // 2):
        for j in range(4):
            e(f"v_mov_b32 v{4+j}, s{base+4*i+j}")
        e(f"buffer_store_dwordx4 v[4:7], v1, {sr(wssrd,4)}, s{base-2} offen offset:{16*i}")
        e("s_nop 1")
    e("s_waitcnt vmcnt(0)")

KN = "parallel_sum__linear_kernel_hedgehog__dense_activation_gelu__prompt_kernel"
SPIN = OPT.get("spin", 20000)
CNT_OFF = FLG_OFF + 2048 * 128

def gen():
    e = Asm()
    M16 = "v_mfma_f32_16x16x32_bf16"
    SDBG, SX, SW, SWS, SAUX = 4, 8, 12, 16, 20
    sW, sRG, sP, sC, sRB, sTYPE = 24, 25, 26, 27, 28, 29
    sPITCH, sRT, sIDX, sROT = 30, 31, 32, 33
    sONES, sLO, sHI, sMASK = 34, 35, 36, 37
    sT0, sT1, sT2, sT3, sT4 = 38, 39, 40, 41, 42
    sXB = 43
    sCOL = 44
    sSLOT, sIT, sOUT, sAUXO, sP16 = 48, 49, 50, 51, 52
    sDA, sDB, sMA, sROWO, sW4K, sST = 53, 54, 55, 56, 57, 61
    sLT16, sFLG = 58, 60
    sJG, sISC, sWB, sLEV = 76, 77, 100, 101
    vDUM, vL, vL16, vDMA, vTR = 0, 1, 2, 3, 4
    vS, vCSW, vCSR, SELC, CS, AUG, vC0, vC1 = 8, 14, 15, 16, 20, 24, 30, 31
    TMP, PK, ACC, EACC, WB, vAUX, XF = 32, 48, 64, 80, 96, 116, 128
    NWB = 5
    YB, ZB = 0x10000, 0x20000
    STAT, CSX, RVO, GSY = 0x21000, 0x21800, 0x22000, 0x22400
    vFR, vXD, RS, vQ, vAL = TMP, TMP + 8, TMP + 12, TMP + 16, TMP + 18
    STF = "" if OPT.get("x_pst") else "sc1"
    lab = [0]
    def L(p):
        lab[0] += 1
        return f"{p}{lab[0]}"
    SP = str(OPT.get("sp", "")).split(",")
    def st(name, lst=None):
        if OPT["stamps"] and name in SP:
            i = 2 + SP.index(name)
            t = f"s_memtime s[{80+2*i}:{81+2*i}];;s_waitcnt lgkmcnt(0)"
            (e if lst is None else lst.append)(t)
    e("s_cmp_ge_u32 s2, 256")
    e("s_cbranch_scc1 K_END")
    stamp_begin(e)
    if OPT.get("x_hold"): e("s_memrealtime s[80:81]")
    if OPT.get("cnt"): e("s_mov_b32 s91, 1")
    e("s_load_dwordx4 s[64:67], s[0:1], 0")
    e("s_load_dwordx2 s[68:69], s[0:1], 16")
    e("s_load_dwordx4 s[72:75], s[0:1], 40")
    e("s_load_dwordx2 s[70:71], s[0:1], 88")
    e("s_load_dwordx2 s[96:97], s[0:1], 56")
    e("s_load_dwordx2 s[98:99], s[0:1], 24")
    e(f"s_load_dwordx2 {sr(SDBG,2)}, s[0:1], 80")
    e(f"v_lshrrev_b32 v{vS}, 6, v0")
    e(f"v_and_b32 v{vL}, 63, v0")
    e(f"v_readfirstlane_b32 s{sW}, v{vS}")
    e(f"s_lshr_b32 s{sIDX}, s2, 3")
    if OPT["pfcode"]:
        e(f"s_cmp_lg_u32 s{sW}, 7"); e("s_cbranch_scc1 K_NOPF")
        e("s_getpc_b64 s[62:63]")
        e("s_and_b32 s62, s62, 0xffffff00")
        e(f"s_mul_i32 s{sT1}, s{sIDX}, 896")
        e(f"v_lshl_add_u32 v{vS+3}, v{vL}, 7, s{sT1}")
        e("s_mov_b64 exec, 0x7f")
        e(f"global_load_dword v{vDUM}, v{vS+3}, s[62:63]")
        e("s_mov_b64 exec, -1")
        e.label("K_NOPF")
    e(f"s_and_b32 s{sT0}, s2, 7")
    e(f"s_lshr_b32 s{sRB}, s{sT0}, 1"); e(f"s_lshl_b32 s{sRB}, s{sRB}, 2")
    e(f"s_and_b32 s{sT2}, s{sIDX}, 3"); e(f"s_add_u32 s{sRB}, s{sRB}, s{sT2}")
    e(f"s_lshr_b32 s{sT1}, s{sIDX}, 2")
    e(f"s_add_u32 s{sROT}, s{sT1}, s{sT2}"); e(f"s_and_b32 s{sROT}, s{sROT}, {OPT.get('rotm', 3)}")
    e(f"s_and_b32 s{sTYPE}, s{sT1}, 1")
    e(f"s_lshr_b32 s{sT1}, s{sT1}, 1")
    e(f"s_and_b32 s{sC}, s{sT0}, 1"); e(f"s_lshl_b32 s{sC}, s{sC}, 2"); e(f"s_add_u32 s{sC}, s{sC}, s{sT1}")
    e(f"s_and_b32 s{sRG}, s{sW}, 3"); e(f"s_lshr_b32 s{sP}, s{sW}, 2")
    e(f"v_lshrrev_b32 v{vS}, 4, v{vL}"); e(f"v_and_b32 v{vS+1}, 15, v{vL}")
    e(f"v_xor_b32 v{vS+2}, v{vS}, v{vS+1}"); e(f"v_lshlrev_b32 v{vS+2}, 4, v{vS+2}")
    e(f"v_lshl_add_u32 v{vXD}, v{vS}, 10, v{vS+2}")
    for i in range(1, 4): e(f"v_xor_b32 v{vXD+i}, {4096*i + 64*i}, v{vXD}")
    e(f"s_lshl_b32 s{sXB}, s{sRB}, 17"); e(f"s_lshl_b32 s{sT0}, s{sW}, 14"); e(f"s_add_u32 s{sXB}, s{sXB}, s{sT0}")
    e(f"s_lshl_b32 s{sW4K}, s{sW}, 12")
    e(f"v_and_b32 v{vS+3}, 31, v{vL}")
    e(f"v_lshrrev_b32 v{vS+4}, 5, v{vL}")
    e(f"s_cmp_eq_u32 s{sTYPE}, 0")
    e("s_cbranch_scc1 K_SETQ")
    e(f"s_movk_i32 s{sPITCH}, 3584")
    e(f"s_mul_i32 s{sAUXO}, s{sC}, 448")
    e(f"s_and_b32 s{sT1}, s{sC}, 1")
    e(f"s_lshl_b32 s{sT2}, s{sT1}, 6"); e(f"s_add_u32 s{sCOL}, s{sAUXO}, s{sT2}")
    e(f"s_add_u32 s{sCOL+1}, s{sCOL}, 128"); e(f"s_add_u32 s{sCOL+2}, s{sCOL}, 256")
    e(f"s_lshl_b32 s{sT2}, s{sT1}, 9"); e(f"s_add_u32 s{sCOL+3}, s{sCOL}, 384"); e(f"s_sub_u32 s{sCOL+3}, s{sCOL+3}, s{sT2}")
    e(f"s_lshl_b32 s{sT2}, s{sP}, 6")
    e(f"v_lshl_add_u32 v{vAL}, v{vS+3}, 1, s{sT2}")
    e(f"s_mov_b32 s{SW+2}, {512*3584}"); e(f"s_movk_i32 s{SAUX+2}, 3584")
    e("s_branch K_SETD")
    e.label("K_SETQ")
    e(f"s_movk_i32 s{sPITCH}, 3072")
    e(f"s_lshl_b32 s{sCOL+2}, s{sC}, 7"); e(f"s_add_u32 s{sCOL}, s{sCOL+2}, 1024"); e(f"s_add_u32 s{sCOL+1}, s{sCOL+2}, 2048")
    e(f"v_lshrrev_b32 v{vS+5}, 4, v{vS+3}"); e(f"v_lshlrev_b32 v{vS+5}, 9, v{vS+5}")
    e(f"v_lshl_add_u32 v{vS+5}, v{vS+4}, 7, v{vS+5}"); e(f"v_lshl_add_u32 v{vS+5}, v{vS+1}, 1, v{vS+5}")
    e(f"s_lshl_b32 s{sT1}, s{sP}, 10"); e(f"v_add_u32 v{vAL}, s{sT1}, v{vS+5}")
    e(f"s_lshl_b32 s{sAUXO}, s{sC}, 11")
    e(f"s_mov_b32 s{SW+2}, {512*3072}"); e(f"s_movk_i32 s{SAUX+2}, {32*512}")
    e.label("K_SETD")
    e(f"s_mov_b32 s{SW+3}, 0x00020000"); e(f"s_mov_b32 s{SAUX+3}, 0x00020000")
    e(f"v_lshrrev_b32 v{vDMA}, 2, v{vL}"); e(f"v_mul_lo_u32 v{vDMA}, v{vDMA}, s{sPITCH}")
    e(f"v_and_b32 v{vS+5}, 3, v{vL}"); e(f"v_lshl_add_u32 v{vDMA}, v{vS+5}, 4, v{vDMA}")
    e(f"s_lshl_b32 s{sP16}, s{sPITCH}, 4")
    e(f"s_mul_i32 s{sWB}, s{sP16}, s{sW}"); e(f"s_add_u32 s{sWB}, s{sWB}, s{sCOL}")
    e(f"s_cmp_eq_u32 s{sTYPE}, 0")
    e("s_waitcnt lgkmcnt(0)")
    e(f"s_cselect_b64 {sr(SW,2)}, s[66:67], s[72:73]"); e(f"s_cselect_b64 {sr(SAUX,2)}, s[68:69], s[74:75]")
    srd(e, SX, 64, 65, 2048 * 1024)
    XBUF = (ZB, YB, YB + 0x8000, ZB)
    def sset(j):
        l = Lst()
        l(f"s_add_u32 s{sT0}, s{sROT}, {j};;s_and_b32 s{sT0}, s{sT0}, 3;;s_lshl_b32 s{sT1}, s{sT0}, 8;;s_add_u32 s{sT1}, s{sT1}, s{sXB};;"
          f"s_lshl_b32 s{sT0}, s{sT0}, 3;;s_mul_i32 s{sT0}, s{sT0}, s{sP16};;s_add_u32 s{sT0}, s{sT0}, s{sWB};;s_add_u32 s{sT2}, s{sT0}, 64;;s_lshr_b32 s{sT3}, s{sW4K}, 2")
        for i in range(4):
            l(f"s_add_u32 m0, s{sW4K}, {XBUF[j] + 1024*i};;s_nop 0;;buffer_load_dwordx4 v{vXD+i}, {sr(SX,4)}, s{sT1} offen lds")
        wo = 0x8000 * (j >> 1) + 8192 * (j & 1)
        l(f"s_add_u32 m0, s{sT3}, {wo};;s_nop 0;;buffer_load_dwordx4 v{vDMA}, {sr(SW,4)}, s{sT0} offen lds")
        l(f"s_add_u32 m0, s{sT3}, {wo + 0x4000};;s_nop 0;;buffer_load_dwordx4 v{vDMA}, {sr(SW,4)}, s{sT2} offen lds")
        return l
    wt = (f"s_lshr_b32 s{sT0}, s{sW}, 1;;s_cmp_lg_u32 s{sT0}, 1;;s_cbranch_scc1 K_NW;;s_cmp_eq_u32 s{sW}, 2;;"
          f"s_cselect_b64 s[92:93], s[72:73], s[66:67];;s_mov_b32 s{sT0}, {512*3584};;s_cselect_b32 s94, s{sT0}, {512*3072};;s_mov_b32 s95, 0x00020000;;"
          f"s_movk_i32 s{sT0}, 7168;;s_cselect_b32 s{sT0}, s{sT0}, 6144;;s_cselect_b32 s{sT1}, 56, 48;;s_mul_i32 s{sT0}, s{sT0}, s2;;"
          f"v_lshlrev_b32 v{vDUM}, 7, v{vL};;s_bfm_b64 exec, s{sT1}, 0;;buffer_load_dword v{vDUM}, v{vDUM}, s[92:95], s{sT0} offen;;s_mov_b64 exec, -1;;K_NW:")
    WTA = OPT.get("wta", 2)
    xt = (f"s_cmp_lg_u32 s{sW}, 1;;s_cbranch_scc1 K_NX;;s_lshl_b32 s{sT0}, s2, 13;;v_lshlrev_b32 v{vDUM}, 7, v{vL};;"
          f"buffer_load_dword v{vDUM}, v{vDUM}, {sr(SX,4)}, s{sT0} offen;;K_NX:")
    st("ka")
    if OPT.get("xta", 0) == 1: e(xt)
    if WTA == -2: e(wt)
    e.ext(sset(0))
    if OPT.get("xta", 0) == 2: e(xt)
    if WTA == -1: e(wt)
    st("i0")
    srd(e, SWS, 70, 71, 0x10000000)
    e(f"s_movk_i32 s{SDBG+2}, 256"); e(f"s_mov_b32 s{SDBG+3}, 0x00020000")
    e(f"s_lshl_b32 s{sRT}, s{sRB}, 2"); e(f"s_add_u32 s{sRT}, s{sRT}, s{sRG}")
    e(f"s_lshl_b32 s{sFLG}, s{sTYPE}, 4"); e(f"s_add_u32 s{sFLG}, s{sFLG}, s{sRB}"); e(f"s_lshl_b32 s{sFLG}, s{sFLG}, 3"); e(f"s_add_u32 s{sFLG}, s{sFLG}, s{sC}")
    e(f"s_lshl_b32 s{sFLG}, s{sFLG}, 10"); e(f"s_add_u32 s{sFLG}, s{sFLG}, {FLG_OFF}")
    e(f"s_and_b32 s{sISC}, s{sC}, 1"); e(f"s_xor_b32 s{sISC}, s{sISC}, s{sP}")
    e(f"v_lshlrev_b32 v{vL16}, 4, v{vL}")
    e(f"v_mov_b32 v{AUG+4}, 0"); e(f"v_mov_b32 v{AUG+5}, 0")
    e(f"s_lshl_b32 s{sIT}, s{sTYPE}, 3"); e(f"s_add_u32 s{sIT}, s{sIT}, s{sW}")
    e(f"s_cmp_lg_u32 s{sIT}, 15"); e("s_cbranch_scc1 K_NZ")
    e(f"v_lshlrev_b32 v{vS+2}, 3, v{vL}")
    e(f"buffer_store_dwordx2 {vr(AUG+4,2)}, v{vS+2}, {sr(SWS,4)}, s{sFLG} offen sc1")
    e(f"buffer_store_dwordx2 {vr(AUG+4,2)}, v{vS+2}, {sr(SWS,4)}, s{sFLG} offen offset:512 sc1")
    e.label("K_NZ")
    e(f"s_lshl_b32 s{sT0}, s{sW}, 7"); e(f"s_add_u32 s{sFLG}, s{sFLG}, s{sT0}")
    e(f"s_lshl_b32 s{sT0}, s{sROT}, 2"); e(f"s_add_u32 s{sT0}, s{sT0}, s{sW}"); e(f"s_and_b32 s{sT1}, s{sT0}, 15"); e(f"s_lshl_b32 s{sT1}, s{sT1}, 1")
    e(f"s_mul_i32 s{sROWO}, s{sT1}, s{sP16}")
    e(f"s_add_u32 s{sT0}, s{sT0}, 8"); e(f"s_and_b32 s{sT1}, s{sT0}, 15"); e(f"s_lshl_b32 s{sT1}, s{sT1}, 1")
    e(f"s_mul_i32 s{sJG}, s{sT1}, s{sP16}"); e(f"s_sub_u32 s{sJG}, s{sJG}, s{sROWO}"); e(f"s_sub_u32 s{sJG}, s{sJG}, s{sP16}")
    e(f"s_lshl_b32 s{sT4}, s{sW}, 11")
    sLB0 = sT4
    def guard(t):
        g = L("G"); return f"s_cbranch_vccz {g};;{t};;{g}:"
    def dma8(gd=False):
        l = []
        for i in range(4):
            jg, jl = (f"s{sJG}", "0x7c00") if i == 1 else (f"s{sP16}", "1024")
            l += [f"s_mov_b32 m0, s{sMA};;s_add_u32 s{sDB}, s{sDA}, 64;;buffer_load_dwordx4 v{vDMA}, {sr(SW,4)}, s{sDA} offen lds",
                  f"s_add_u32 m0, s{sMA}, 0x4000;;s_add_u32 s{sDA}, s{sDA}, {jg};;buffer_load_dwordx4 v{vDMA}, {sr(SW,4)}, s{sDB} offen lds;;s_add_u32 s{sMA}, s{sMA}, {jl}"]
        return [guard(t) for t in l] if gd else l
    e(f"s_mov_b32 s{sONES}, 0x3f803f80"); e(f"s_mov_b32 s{sLO}, 0x00003f80"); e(f"s_mov_b32 s{sHI}, 0x3f800000")
    e(f"s_mov_b32 s{sMASK}, 0xffff0000")
    e(f"v_lshlrev_b32 v{vS+2}, 9, v{vS+4}")
    e(f"v_bfe_u32 v{vS}, v{vL}, 2, 2"); e(f"v_lshl_add_u32 v{vS+2}, v{vS}, 6, v{vS+2}")
    e(f"v_bfe_u32 v{vCSW}, v{vL}, 4, 1"); e(f"v_lshl_add_u32 v{vS+2}, v{vCSW}, 5, v{vS+2}")
    e(f"v_lshl_add_u32 v{vS+2}, v{vS+5}, 3, v{vS+2}")
    e(f"s_xor_b32 s{sT3}, s{sRG}, s{sP}"); e(f"s_lshl_b32 s{sT1}, s{sP}, 14")
    for k in range(4):
        e(f"s_xor_b32 s{sT0}, s{sT3}, {k}"); e(f"s_lshl_b32 s{sT0}, s{sT0}, 10"); e(f"s_add_u32 s{sT0}, s{sT0}, s{sT1}")
        e(f"v_add_u32 v{vTR+k}, s{sT0}, v{vS+2}")
    e(f"v_and_b32 v{vS}, 1, v{vS}"); e(f"v_cmp_eq_u32 vcc, v{vS}, v{vCSW}"); e(f"v_mov_b32 v{vS}, s{sONES}")
    e(f"v_cmp_gt_u32 {sr(sLT16,2)}, 16, v{vS+3}")
    for j in range(4): e(f"v_cndmask_b32 v{SELC+j}, 0, v{vS}, vcc")
    e(f"v_xor_b32 v{vS}, v{vS+4}, v{vS+1}"); e(f"v_lshlrev_b32 v{vS}, 4, v{vS}")
    e(f"v_lshl_add_u32 v{vS}, v{vS+3}, 8, v{vS}")
    e(f"s_lshl_b32 s{sT0}, s{sT3}, 5"); e(f"v_xor_b32 v{vS}, s{sT0}, v{vS}")
    e(f"s_lshl_b32 s{sT0}, s{sRG}, 13"); e(f"s_add_u32 s{sT0}, s{sT0}, {YB + 0x8000}"); e(f"v_add_u32 v{vFR}, s{sT0}, v{vS}")
    for s in range(1, 8): e(f"v_xor_b32 v{vFR+s}, {32*s}, v{vFR}")
    e(f"s_lshl_b32 s{sT0}, s{sP}, 9"); e(f"s_add_u32 s{sT0}, s{sT0}, {CSX}")
    e(f"v_lshl_add_u32 v{vCSR}, v{vS+3}, 4, s{sT0}")
    e(f"s_lshl_b32 s{sT0}, s{sRG}, 2"); e(f"v_add_u32 v{vCSW}, s{sT0}, v{vCSR}")
    e(f"v_mov_b32 v{vQ}, 0"); e(f"v_mov_b32 v{vQ+1}, 0")
    def auxl(lbl):
        t = f"s_cmp_eq_u32 s{sTYPE}, 0;;s_cbranch_scc1 {lbl}Q"
        for i in range(4): t += f";;buffer_load_ushort v{vAUX+i}, v{vAL}, {sr(SAUX,4)}, s{sCOL+i} offen"
        t += f";;s_branch {lbl}D;;{lbl}Q:"
        for j in range(8):
            d = (j & 3) + 8 * (j >> 2)
            t += f";;buffer_load_ushort v{vAUX+j}, v{vAL}, {sr(SAUX,4)}, s{sAUXO} offen offset:{32*d}"
        t += f";;{lbl}D:"
        return t
    if OPT.get("x_p2only"):
        e("s_waitcnt vmcnt(0)"); e("s_barrier")
        e(f"s_cmp_eq_u32 s{sISC}, 0"); e("s_cbranch_scc1 K_FIN")
        e("s_branch K_FTAIL")
    st("su")
    e.ext(sset(1))
    st("i1")

    def wrd(s):
        b = WB + 4 * (s % NWB); o = 1024 * (s & 12) + 0x8000 * (s >> 4)
        return [f"ds_read_b64_tr_b16 {vr(b,2)}, v{vTR+(s&3)} offset:{o}", f"ds_read_b64_tr_b16 {vr(b+2,2)}, v{vTR+(s&3)} offset:{o+256}"]
    def csm(s):
        return f"{M16} {vr(CS,4)}, {vr(SELC,4)}, {vr(WB+4*(s%NWB),4)}, {'0' if s == 0 else vr(CS,4)}"
    XO = (0x8000, 0, 0x8000, 0x8000)
    def rd(s):
        return [f"ds_read_b128 {vr(XF+4*s,4)}, v{vFR+(s&7)} offset:{XO[s>>3]}"] + wrd(s)
    VM = {0: 6, 1: 6, 2: 10, 3: 8, 4: 63}
    def sync(k):
        l = [f"s_waitcnt vmcnt({VM[k]}) lgkmcnt(0)", "s_barrier"]
        st(f"sync{k}", l)
        if k == 1: l += [f"v_subrev_u32 v{vFR+t}, 0x8000, v{vFR+t}" for t in range(8)]
        if k == 3: l += [f"v_add_u32 v{vFR+t}, 0x8000, v{vFR+t}" for t in range(8)]
        return l
    G = []
    g0 = sync(0)
    for s_ in range(4): g0 += rd(s_)
    G.append(g0)
    for s_ in range(32):
        g = []
        if s_ % 8 == 4: g += sync(s_ // 8 + 1)
        if s_ + 4 < 32: g += rd(s_ + 4)
        if s_ % 8 < 4: g.append(f"s_waitcnt lgkmcnt(12)")
        d = EACC if s_ == 31 else ACC
        g.append(f"{MFMA} {vr(d,16)}, {vr(WB+4*(s_%NWB),4)}, {vr(XF+4*s_,4)}, {'0' if s_ == 0 else vr(ACC,16)}")
        if s_ % 4 == 0: g.append(csm(s_))
        if s_ % 2 == 0:
            g.append(f"{M16} {vr(RS,4)}, {vr(SELC,4)}, {vr(XF+4*s_,4)}, {'0' if s_ == 0 else vr(RS,4)}")
            for r in range(4): g.append(f"v_dot2c_f32_bf16 v{vQ+(r&1)}, v{XF+4*s_+r}, v{XF+4*s_+r}")
        G.append(g)
    d8 = dma8()
    if WTA == 0: e(wt)
    e.ext(interleave(G[0:5], sset(2) + ([wt] if WTA == 1 else []), 0, 4))
    e.ext(interleave(G[5:13], sset(3) + [auxl("K_AUX")] + ([wt] if WTA == 2 else []), 0, 6))
    e(f"s_add_u32 s{sDA}, s{sROWO}, s{sCOL+1}"); e(f"s_add_u32 s{sMA}, s{sLB0}, {YB}")
    e.ext(interleave(G[13:21], d8[:4], 0, 4))
    pf = f"s_cmp_eq_u32 s{sTYPE}, 0;;s_cbranch_scc1 K_NPF;;" + ";;".join(f"v_mov_b32 v{EACC+j}, -1" for j in range(4))
    pf += (f";;s_lshl_b32 s{sT0}, s{sRB}, 3;;s_add_u32 s{sT0}, s{sT0}, s{sC};;s_lshl_b32 s{sT0}, s{sT0}, 14;;s_lshl_b32 s{sT1}, s{sW}, 11;;s_add_u32 s{sT0}, s{sT0}, s{sT1};;"
           f"s_add_u32 s{sT0}, s{sT0}, {KVP_OFF};;buffer_store_dwordx4 {vr(EACC,4)}, v{vL16}, {sr(SWS,4)}, s{sT0} offen sc1;;"
           f"buffer_store_dwordx4 {vr(EACC,4)}, v{vL16}, {sr(SWS,4)}, s{sT0} offen offset:1024 sc1;;"
           f"s_lshl_b32 s{sT0}, s{sRT}, 15;;s_lshl_b32 s{sT1}, s{sC}, 12;;s_add_u32 s{sT0}, s{sT0}, s{sT1};;s_lshl_b32 s{sT1}, s{sP}, 11;;s_add_u32 s{sT0}, s{sT0}, s{sT1};;"
           f"s_add_u32 s{sT0}, s{sT0}, {PQ_OFF};;buffer_store_dwordx4 {vr(EACC,4)}, v{vL16}, {sr(SWS,4)}, s{sT0} offen sc1;;"
           f"buffer_store_dwordx4 {vr(EACC,4)}, v{vL16}, {sr(SWS,4)}, s{sT0} offen offset:1024 sc1;;"
           f"s_cmp_lg_u32 s{sW}, 7;;s_cbranch_scc1 K_NPF;;s_lshl_b32 s{sT0}, s{sC}, 4;;s_add_u32 s{sT0}, s{sT0}, s{sRB};;s_lshl_b32 s{sT0}, s{sT0}, 9;;"
           f"s_add_u32 s{sT0}, s{sT0}, {KVZ_OFF};;s_mov_b32 exec_hi, 0;;buffer_store_dwordx4 {vr(EACC,4)}, v{vL16}, {sr(SWS,4)}, s{sT0} offen sc1;;s_mov_b32 exec_hi, -1;;K_NPF:")
    e.ext(interleave(G[21:], d8[4:] + [pf], 0, 5))
    e("s_nop 2")
    e(f"v_add_f32 v{vQ}, v{vQ}, v{vQ+1}")
    e(f"v_and_b32 v{vS+3}, 31, v{vL}")
    e(f"v_mov_b32 v{vQ+1}, v{vQ}")
    e(f"s_lshl_b32 s{sT0}, s{sW}, 8"); e(f"s_add_u32 s{sT0}, s{sT0}, {STAT}")
    e(f"v_lshl_add_u32 v{vS+2}, v{vS+3}, 3, s{sT0}")
    e(f"v_permlane32_swap_b32 v{vQ}, v{vQ+1}")
    e(f"v_add_f32 v{RS+1}, v{vQ}, v{vQ+1}")
    e(f"ds_write_b32 v{vCSW}, v{CS}")
    e(f"ds_write_b64 v{vS+2}, {vr(RS,2)}")
    e(f"v_lshlrev_b32 v{vS+4}, 2, v{vS+3}"); e(f"v_add_u32 v{vS+4}, {GSY:#x}, v{vS+4}"); e(f"ds_write_b32 v{vS+4}, v{AUG+4}")
    e(f"v_xor_b32 v{vS+2}, 1024, v{vS+2}")
    for k in range(4): e(f"v_xor_b32 v{vTR+k}, 0x10000, v{vTR+k}")
    e(f"v_xor_b32 v{vCSW}, 1024, v{vCSW}")
    e("s_waitcnt vmcnt(0) lgkmcnt(0)")
    e("s_barrier")
    st("r0end")
    e(f"s_cmp_lg_u32 s{sIT}, 15"); e("s_cbranch_scc1 K_NA")
    e(f"s_and_b32 s{sT0}, s2, 1"); e(f"s_lshl_b32 s{sT0}, s{sT0}, 7")
    e(f"v_mov_b32 v{vDUM}, 1")
    e("s_mov_b64 exec, 1")
    e(f"buffer_atomic_add v{vDUM}, v{AUG+4}, {sr(SDBG,4)}, s{sT0} offen sc1")
    e("s_mov_b64 exec, -1")
    e.label("K_NA")
    e(f"ds_read_b64 {vr(vS,2)}, v{vS+2}")
    e(f"v_cmp_gt_u32 vcc, 32, v{vL}")
    e(f"s_cmp_eq_u32 s{sW}, 7"); e(f"s_cselect_b32 s{sIT}, 0, 64")
    e("s_waitcnt lgkmcnt(0)")
    a, b = vS, vS + 1
    e(f"v_add_f32 v{a}, v{a}, v{RS}"); e(f"v_add_f32 v{b}, v{b}, v{RS+1}")
    e(f"v_mul_f32 v{a}, {f2u(-1.0/512):#x}, v{a}"); e(f"v_mul_f32 v{b}, {f2u(1.0/512):#x}, v{b}")
    e(f"v_fma_f32 v{b}, -v{a}, v{a}, v{b}"); e(f"v_cvt_pk_bf16_f32 v{AUG+2}, v{a}, v{a}")
    e(f"v_max_f32 v{b}, 0, v{b}")
    e(f"v_cvt_pk_bf16_f32 v{b}, v{b}, v{b}"); e(f"v_and_b32 v{b}, s{sMASK}, v{b}")
    e(f"v_add_f32 v{b}, {f2u(1e-5):#x}, v{b}"); e(f"v_cvt_pk_bf16_f32 v{b}, v{b}, v{b}")
    e(f"v_and_b32 v{b}, s{sMASK}, v{b}"); e(f"v_sqrt_f32 v{b}, v{b}")
    e(f"v_cndmask_b32 v{AUG+2}, 0, v{AUG+2}, vcc")
    e(f"v_cvt_pk_bf16_f32 v{AUG+3}, v{a}, v{b}")
    e(f"v_and_b32 v{b}, s{sMASK}, v{AUG+3}")
    e(f"v_rcp_f32 v{a}, v{b}")
    e(f"v_cndmask_b32 v{AUG+3}, 0, v{AUG+3}, vcc")

    APOLL = f"v_lshlrev_b32 v{vS+4}, 7, v{vL};;s_mov_b64 exec, 3;;buffer_load_dword v{vS+5}, v{vS+4}, {sr(SDBG,4)}, 0 offen sc1;;s_mov_b64 exec, -1"
    def apoll7():
        l2 = L("X")
        e(f"s_cmp_lg_u32 s{sW}, 7"); e(f"s_cbranch_scc1 {l2}")
        e(APOLL)
        e.label(l2)
    def r2_check():
        l2 = L("X")
        e(f"s_cmp_lg_u32 s{sW}, 7"); e(f"s_cbranch_scc1 {l2}")
        e("s_waitcnt vmcnt(1)")
        check([(APOLL, vS + 5, 3, 64)])
        e.label(l2)
    def publish(lev, vt):
        if OPT.get("x_nopub"): return "s_nop 0"
        return (f"v_mov_b32 v{vt}, {lev};;v_lshlrev_b32 v{vDUM}, 2, v{vL};;s_mov_b32 exec_hi, 0;;"
                f"buffer_store_dword v{vt}, v{vDUM}, {sr(SWS,4)}, s{sFLG} offen sc1;;s_mov_b32 exec_hi, -1")
    def midpub(n, lev, vt):
        a_, b_ = L("P"), L("P")
        return f"s_cbranch_vccz {a_};;s_waitcnt vmcnt({n});;s_branch {b_};;{a_}:;;s_waitcnt vmcnt(0);;{b_}:;;" + publish(lev, vt)
    def mgroups(swap=False, pre=()):
        PF = NWB - 1
        G = []
        g0 = [f"ds_read_b128 {vr(PK,4)}, v{vCSR}"] + list(pre)
        for s in range(PF): g0 += wrd(s)
        G.append(g0)
        for s in range(32):
            g = []
            if s + PF < 32: g += wrd(s + PF)
            g.append(f"s_waitcnt lgkmcnt({2 * min(PF, 31 - s)})")
            w, x = vr(WB + 4 * (s % NWB), 4), vr(XF + 4 * s, 4)
            a, b = (x, w) if swap else (w, x)
            d = EACC if s == 31 else ACC
            g.append(f"{MFMA} {vr(d,16)}, {a}, {b}, {'0' if s == 0 else vr(ACC,16)}")
            if s % 4 == 0: g.append(csm(s))
            G.append(g)
        return G
    def aug(bias=None, swap=False):
        l = Lst()
        c, t = PK, PK + 1
        l(f"v_add_f32 v{PK}, v{PK}, v{PK+1}"); l(f"v_add_f32 v{PK+2}, v{PK+2}, v{PK+3}"); l(f"v_add_f32 v{c}, v{PK}, v{PK+2}")
        l(f"v_cvt_pk_bf16_f32 v{t}, v{c}, v{c}"); l(f"v_and_b32 v{t}, s{sMASK}, v{t}"); l(f"v_sub_f32 v{t}, v{c}, v{t}")
        l(f"v_cvt_pk_bf16_f32 v{AUG}, v{c}, v{t}"); l(f"v_and_b32 v{c}, s{sMASK}, v{AUG}"); l(f"v_sub_f32 v{t}, v{t}, v{c}")
        l(f"v_cvt_pk_bf16_f32 v{AUG+1}, v{t}, {'v%d' % bias if bias is not None else '0'}")
        a, b = (vr(AUG+2,4), vr(AUG,4)) if swap else (vr(AUG,4), vr(AUG+2,4))
        l(f"s_nop 1;;{MFMA} {vr(EACC,16)}, {a}, {b}, {vr(EACC,16)}")
        for i in range(6): l("s_nop 1")
        return l
    def round_toggle():
        e(f"ds_write_b32 v{vCSW}, v{CS}")
        for k in range(4): e(f"v_xor_b32 v{vTR+k}, 0x10000, v{vTR+k}")
        e(f"v_xor_b32 v{vCSW}, 1024, v{vCSW}"); e(f"v_xor_b32 v{vCSR}, 1024, v{vCSR}")

    NL = 8
    sA0, sA1, sWK, sLB, sP0, sP1, sKV, sWO_, sXO, sXO2, sPF, sCNT = 30, 33, 43, 48, 51, 52, 53, 54, 55, 56, 57, 3
    SW2, SWO = SW, SAUX
    vTR0, vTR1, vXO, vPA = 4, 5, 6, vS + 2
    ND = vS + 3
    sEA = sWB
    order = [0, 1, 2, 3, 16, 17, 18, 19, 4, 5, 6, 7, 20, 21, 22, 23, 8, 9, 10, 11, 24, 25, 26, 27, 12, 13, 14, 15]
    def wdma(i):
        lo = 2048 * (i % NL)
        S, base, off = (SW2, sWK, order[i] * 16384) if i < 28 else (SWO, sWO_, (i - 28) * 16384)
        return [f"s_add_u32 m0, s{sLB}, {lo + 1024*k};;s_add_u32 s{sT0}, s{base}, {off + 8192*k};;buffer_load_dwordx4 v{vDMA}, {sr(S,4)}, s{sT0} offen lds" for k in range(2)]
    def cbcalc():
        if OPT.get("cbmap", 0) == 0:
            e(f"s_lshr_b32 s{sT1}, s{sIDX}, 2"); e(f"s_lshl_b32 s{sT1}, s{sT1}, 7")
        else:
            e(f"s_lshr_b32 s{sT1}, s{sIDX}, 3"); e(f"s_lshl_b32 s{sT0}, s{sTYPE}, 2"); e(f"s_add_u32 s{sT1}, s{sT1}, s{sT0}"); e(f"s_lshl_b32 s{sT1}, s{sT1}, 7")
    def p2_setup():
        e(f"s_cmp_lg_u32 s{sISC}, 0"); e("s_cselect_b64 vcc, -1, 0")
        srd(e, SW2, 96, 97, 1792 * 1024)
        srd(e, SWO, 98, 99, 512 * 1024)
        cbcalc()
        e(f"s_mul_i32 s{sWK}, s{sRG}, {448*1024}"); e(f"s_add_u32 s{sWK}, s{sWK}, s{sT1}")
        e(f"s_lshl_b32 s{sWO_}, s{sRG}, 17"); e(f"s_add_u32 s{sWO_}, s{sWO_}, s{sT1}")
        e(f"s_lshl_b32 s{sLB}, s{sRG}, 14")
        e(f"v_lshrrev_b32 v{vXO}, 3, v{vL}"); e(f"v_lshlrev_b32 v{vXO}, 10, v{vXO}")
        e(f"v_and_b32 v{vTR0}, 7, v{vL}"); e(f"v_bfe_u32 v{vTR1}, v{vL}, 4, 1"); e(f"v_lshlrev_b32 v{vTR1}, 2, v{vTR1}")
        e(f"v_xor_b32 v{vTR1}, v{vTR0}, v{vTR1}"); e(f"v_lshl_add_u32 v{vDMA}, v{vTR1}, 4, v{vXO}")
        e(f"v_lshl_add_u32 v{vXO}, v{vTR0}, 4, v{vXO}")
    def early_scalars():
        e(f"s_lshr_b32 s{sT1}, s{sC}, 2"); e(f"s_lshl_b32 s{sT2}, s{sRB}, 1"); e(f"s_add_u32 s{sT2}, s{sT2}, s{sT1}")
        e(f"s_mul_i32 s{sA0}, s{sT2}, {2*114688}"); e(f"s_mul_i32 s{sT0}, s{sRG}, {28*1024}")
        e(f"s_add_u32 s{sA0}, s{sA0}, s{sT0}"); e(f"s_add_u32 s{sA1}, s{sA0}, 114688")
        e(f"s_lshl_b32 s{sPF}, s{sRT}, 11"); e(f"s_lshl_b32 s{sT0}, s{sT1}, 8")
        e(f"s_add_u32 s{sPF}, s{sPF}, s{sT0}"); e(f"s_add_u32 s{sPF}, s{sPF}, {FLG_OFF + 128*1024}")
        e(f"s_cmp_lg_u32 s{sISC}, 0"); e(f"s_cselect_b32 s{sEA}, 1, 64")
    def poll_addr():
        e(f"v_lshrrev_b32 v{vPA}, 1, v{vL}"); e(f"v_lshlrev_b32 v{vPA}, 9, v{vPA}")
        e(f"v_and_b32 v{ND}, 1, v{vL}"); e(f"v_lshl_add_u32 v{vPA}, v{ND}, 7, v{vPA}")
    FPOLL = f"s_mov_b64 exec, 0xff;;buffer_load_dword v{ND}, v{vPA}, {sr(SWS,4)}, s{sPF} offen sc1;;s_mov_b64 exec, -1"
    def checkt(items, spin=SPIN):
        if OPT.get("x_nochk"): return "s_nop 0"
        top, ok = L("C"), L("C")
        t = [f"s_mov_b32 s{sCNT}, 0", f"{top}:"]
        for k, (pt, reg, msk, thr) in enumerate(items):
            t += [f"s_movk_i32 s{sT1}, {thr}", f"v_cmp_gt_u32 s[62:63], s{sT1}, v{reg}", "s_nop 0"]
            if k == 0: t.append(f"s_and_b32 s{sT0}, s62, {msk:#x}")
            else: t += [f"s_and_b32 s{sT1}, s62, {msk:#x}", f"s_or_b32 s{sT0}, s{sT0}, s{sT1}"]
        t += [f"s_cbranch_scc0 {ok}", "s_sleep 8"]
        t += [pt for (pt, reg, msk, thr) in items]
        t += [f"s_add_u32 s{sCNT}, s{sCNT}, 1", f"s_cmp_lt_u32 s{sCNT}, {spin}", "s_waitcnt vmcnt(0)", f"s_cbranch_scc1 {top}", f"{ok}:"]
        if OPT.get("cnt"): t += [f"s_mul_i32 s91, s91, 10", f"s_min_u32 s{sT0}, s{sCNT}, 9", f"s_add_u32 s91, s91, s{sT0}"]
        return ";;".join(t)
    def check(items): e(checkt(items))
    def sentinel(R, n, vt, reload):
        top, ok = L("V"), L("V")
        t = [f"s_mov_b32 s{sCNT}, 0", f"{top}:", f"v_max_u32 v{vt}, v{R}, v{R+1}"]
        t += [f"v_max3_u32 v{vt}, v{vt}, v{R+k}, v{R+k+1}" for k in range(2, n, 2)]
        t += [f"v_cmp_eq_u32 vcc, -1, v{vt}", "s_nop 0", "s_cmp_eq_u64 vcc, 0", f"s_cbranch_scc1 {ok}", "s_sleep 8", reload,
              f"s_add_u32 s{sCNT}, s{sCNT}, 1", f"s_cmp_lt_u32 s{sCNT}, {SPIN // 8}", "s_waitcnt vmcnt(0)", f"s_cbranch_scc1 {top}", f"{ok}:"]
        if OPT.get("cnt"): t += [f"s_mul_i32 s91, s91, 10", f"s_min_u32 s{sT0}, s{sCNT}, 9", f"s_add_u32 s91, s91, s{sT0}"]
        return ";;".join(t)
    RING, NU, NA = 128, 12, OPT.get("na", 8)
    unit = [i % NU for i in range(36)]
    ASC = "" if OPT.get("x_plain") else "sc1"
    def aload(i):
        R = RING + 8 * unit[i]; t = ""
        ks, b0, b1 = (order[i], sA0, sA1) if i < 28 else (i - 28, sP0, sKV)
        if i % 4 == 0: t = f"s_add_u32 s{sT3}, s{b0}, {1024*ks};;s_add_u32 s{sT4}, s{b1}, {1024*ks};;"
        return [t + f"buffer_load_dwordx4 {vr(R,4)}, v{vL16}, {sr(SWS,4)}, s{sT3} offen offset:{1024*(ks&3)} {ASC}",
                f"buffer_load_dwordx4 {vr(R+4,4)}, v{vL16}, {sr(SWS,4)}, s{sT4} offen offset:{1024*(ks&3)} {ASC}"]
    def tail(E, lev, vt):
        l1 = []
        for i in range(NL): l1 += [guard(t) for t in wdma(i)]
        l1.append(midpub(2 * NL, lev, vt))
        l1.append(guard(checkt([(FPOLL, ND, 0xff, 1)])))
        l2 = []
        for i in range(NA): l2 += [guard(t) for t in aload(i)]
        E = list(E)
        h = int(len(E) * 0.5)
        return merge(E[:h], l1) + merge(E[h:], l2, 0.9)

    early_scalars()
    e(f"s_cmp_eq_u32 s{sTYPE}, 0")
    e("s_cbranch_scc1 K_QKV")
    vSS, vPB = vAUX + 8, vAUX + 9
    k0 = -2.0 * math.sqrt(2.0 / math.pi) * math.log2(math.e)
    e(f"v_mov_b32 v{vSS}, v{vS+1}")
    e(f"v_mul_f32 v{vC1}, {f2u(k0):#x}, v{vS}")
    e(f"v_mul_f32 v{vC0}, v{vS}, v{vS}"); e(f"v_mul_f32 v{vC0}, v{vC0}, v{vC1}"); e(f"v_mul_f32 v{vC0}, {f2u(0.044715):#x}, v{vC0}")
    for i in range(4): e(f"v_lshlrev_b32 v{vAUX+i}, 16, v{vAUX+i}")
    e(f"s_mul_i32 s{sOUT}, s{sRT}, 114688"); e(f"s_lshl_b32 s{sT0}, s{sP}, 11"); e(f"s_add_u32 s{sOUT}, s{sOUT}, s{sT0}")
    e(f"s_mov_b32 s{sSLOT}, 0"); e(f"s_mov_b32 s{sLEV}, 0")
    e("s_mov_b64 vcc, -1")
    poll_addr()
    def gelu():
        l = aug(bias=vAUX)
        for half in range(2):
            rng = range(8 * half, 8 * half + 8)
            for i in rng: l(f"v_mul_f32 v{TMP+i}, v{EACC+i}, v{EACC+i}")
            for i in rng: l(f"v_fma_f32 v{TMP+i}, v{TMP+i}, v{vC0}, v{vC1}")
            for i in rng: l(f"v_mul_f32 v{TMP+i}, v{EACC+i}, v{TMP+i}")
            for i in rng: l(f"v_exp_f32 v{TMP+i}, v{TMP+i}")
            for i in rng: l(f"v_fma_f32 v{TMP+i}, v{TMP+i}, v{vSS}, v{vSS}")
            for i in rng: l(f"v_rcp_f32 v{TMP+i}, v{TMP+i}")
            for i in rng: l(f"v_mul_f32 v{TMP+i}, v{EACC+i}, v{TMP+i}")
            for i in range(4): l(f"v_cvt_pk_bf16_f32 v{PK+8+4*half+i}, v{TMP+8*half+2*i}, v{TMP+8*half+2*i+1}")
            l(f"buffer_store_dwordx4 {vr(PK+8+4*half,4)}, v{vL16}, {sr(SWS,4)}, s{sST} offen offset:{1024*half} {STF}")
        return l
    e.label("K_FLOOP")
    e(f"s_lshl_b32 s{sST}, s{sCOL}, 5"); e(f"s_add_u32 s{sST}, s{sST}, s{sOUT}")
    e(f"s_add_u32 s{sDA}, s{sROWO}, s{sCOL+2}"); e(f"s_add_u32 s{sMA}, s{sLB0}, s{sSLOT}")
    mp = f"s_cmp_eq_u32 s{sLEV}, 0;;s_cbranch_scc1 K_FNP;;" + midpub(8, f"s{sLEV}", vPB) + ";;K_FNP:"
    ep = (f"s_cmp_lg_u32 s{sLEV}, s{sIT};;s_cbranch_scc1 K_FE1;;" + APOLL + f";;K_FE1:;;s_cmp_lg_u32 s{sLEV}, s{sEA};;s_cbranch_scc1 K_FE2;;" + FPOLL + ";;K_FE2:")
    fl = merge(gelu(), dma8(True) + [mp], OPT.get("mpat", 36) / 100)
    fl.insert(int(len(fl) * OPT.get("epat", 85) / 100), ep)
    e.ext(interleave(mgroups(), fl, 1, 31))
    for lv in (0, 1, 2):
        if OPT["stamps"] and f"b{lv+1}" in SP:
            e(f"s_cmp_lg_u32 s{sLEV}, {lv}"); e(f"s_cbranch_scc1 K_FB{lv}"); st(f"b{lv+1}"); e.label(f"K_FB{lv}")
    e(f"s_mov_b32 s{sCOL}, s{sCOL+1}"); e(f"s_mov_b32 s{sCOL+1}, s{sCOL+2}"); e(f"s_mov_b32 s{sCOL+2}, s{sCOL+3}")
    e(f"v_mov_b32 v{vAUX}, v{vAUX+1}"); e(f"v_mov_b32 v{vAUX+1}, v{vAUX+2}"); e(f"v_mov_b32 v{vAUX+2}, v{vAUX+3}")
    e(f"s_xor_b32 s{sSLOT}, s{sSLOT}, 0x10000")
    e(f"s_add_u32 s{sLEV}, s{sLEV}, 1")
    round_toggle()
    e(f"s_cmp_eq_u32 s{sLEV}, 3"); e("s_cbranch_scc1 K_FR3")
    e(f"s_waitcnt vmcnt(2) lgkmcnt(0)")
    e(f"s_cmp_lg_u32 s{sLEV}, 1"); e("s_cbranch_scc1 K_FNX")
    r2_check()
    e.label("K_FNX")
    e("s_barrier")
    if OPT["stamps"] and "r1end" in SP:
        e(f"s_cmp_lg_u32 s{sLEV}, 1"); e("s_cbranch_scc1 K_FS1"); st("r1end"); e.label("K_FS1")
    e(f"s_cmp_eq_u32 s{sLEV}, 1"); e("s_cbranch_scc1 K_FLOOP")
    st("r2end")
    e("s_mov_b64 vcc, 0")
    if not OPT.get("x_skipe"):
        e(f"s_cmp_lg_u32 s{sISC}, 0"); e("s_cbranch_scc1 K_FTAIL")
        e(f"s_setprio {OPT.get('gprio', 2)}"); e("s_branch K_FLOOP")
    e("s_branch K_FTAIL")
    e.label("K_FR3")
    e(f"v_mov_b32 v{vS}, {GSY:#x}"); e(f"v_mov_b32 v{vS+1}, 1")
    e("s_waitcnt lgkmcnt(0)")
    e("s_mov_b64 exec, 1"); e(f"ds_add_u32 v{vS}, v{vS+1}"); e("s_mov_b64 exec, -1")
    e.label("K_FSP")
    e(f"ds_read_b32 v{vS+1}, v{vS}")
    e("s_waitcnt lgkmcnt(0)")
    e(f"v_readfirstlane_b32 s{sT0}, v{vS+1}")
    e("s_nop 3")
    e(f"s_cmp_lt_u32 s{sT0}, 4"); e("s_cbranch_scc1 K_FSP")
    e.label("K_FTAIL")
    e(f"ds_read_b128 {vr(PK,4)}, v{vCSR}")
    e(f"s_lshl_b32 s{sST}, s{sCOL}, 5"); e(f"s_add_u32 s{sST}, s{sST}, s{sOUT}")
    p2_setup()
    e("s_waitcnt lgkmcnt(0)")
    st("t0")
    e.ext(tail(gelu(), f"s{sLEV}", vPB))
    e("s_cbranch_vccnz K_P2")
    e("s_waitcnt vmcnt(0)")
    e(publish(4, vPB))
    e("s_branch K_FIN")

    e.label("K_QKV")
    WT, SEL, PHT0 = vAUX, vAUX + 4, vAUX + 4
    e(f"v_mul_f32 v{vC0}, {f2u(math.log2(math.e)):#x}, v{vS}")
    e(f"s_lshl_b32 s{sT0}, s{sW}, 7"); e(f"s_add_u32 s{sST}, s{sT0}, {RVO}")
    e(f"v_lshl_add_u32 v{vS+1}, v{vS+3}, 2, s{sST}")
    e(f"ds_write_b32 v{vS+1}, v{vS}")
    e(f"v_lshrrev_b32 v{vC1}, 5, v{vL}"); e(f"v_lshl_add_u32 v{vC1}, v{vC1}, 4, s{sST}")
    def qconst():
        l = Lst()
        for j in range(4): l(f"v_lshl_or_b32 v{WT+j}, v{vAUX+2*j+1}, 16, v{vAUX+2*j}")
        l(f"v_and_b32 v{vS+1}, 15, v{vL}"); l(f"v_lshrrev_b32 v{vS+4}, 5, v{vL}")
        l(f"v_lshlrev_b32 v{vS+4}, 2, v{vS+4}"); l(f"v_sub_u32 v{vS+4}, v{vS+1}, v{vS+4}")
        l(f"v_mov_b32 v{vS+2}, s{sLO}"); l(f"v_mov_b32 v{vS+3}, s{sHI}")
        for t, f0 in enumerate((0, 2, 8, 10)):
            l(f"v_cmp_eq_u32 vcc, {f0}, v{vS+4};;v_cmp_eq_u32 s[62:63], {f0+1}, v{vS+4};;s_nop 0;;"
              f"v_cndmask_b32 v{SEL+t}, 0, v{vS+2}, vcc;;v_cndmask_b32 v{SEL+t}, v{SEL+t}, v{vS+3}, s[62:63]")
        return l
    def softmax(isk):
        l = aug()
        A1, A2 = TMP, TMP + 4
        for j in range(4):
            l(f"v_cndmask_b32 v{A1+j}, 0, v{WT+j}, {sr(sLT16,2)}"); l(f"v_cndmask_b32 v{A2+j}, v{WT+j}, 0, {sr(sLT16,2)}")
        for i in range(8): l(f"v_cvt_pk_bf16_f32 v{PK+i}, v{EACC+2*i}, v{EACC+2*i+1}")
        l(f"s_nop 1;;{MFMA} {vr(EACC,16)}, {vr(A1,4)}, {vr(PK,4)}, 0;;{MFMA} {vr(EACC,16)}, {vr(A2,4)}, {vr(PK+4,4)}, {vr(EACC,16)}")
        for i in range(6): l("s_nop 1")
        for a in range(2):
            P = EACC + 8 * a
            mx, mn = vS, vS + 1
            l(f"v_max3_f32 v{mx}, v{P}, v{P+1}, v{P+2}"); l(f"v_max3_f32 v{mn}, -v{P}, -v{P+1}, -v{P+2}")
            l(f"v_max3_f32 v{mx}, v{mx}, v{P+3}, v{P+4}"); l(f"v_max3_f32 v{mn}, v{mn}, -v{P+3}, -v{P+4}")
            l(f"v_max3_f32 v{mx}, v{mx}, v{P+5}, v{P+6}"); l(f"v_max3_f32 v{mn}, v{mn}, -v{P+5}, -v{P+6}")
            l(f"v_max_f32 v{mx}, v{mx}, v{P+7}"); l(f"v_max_f32_e64 v{mn}, v{mn}, -v{P+7}")
            l("s_nop 1"); l(f"v_permlane32_swap_b32 v{mx}, v{mn}")
            l(f"v_max_f32 v{mx}, v{mx}, v{mn}")
            l(f"v_mul_f32_e64 v{mx}, -v{mx}, v{vC0}")
            l(f"v_mov_b32 v{mn}, v{mx}")
            l("s_nop 1"); l(f"v_permlane32_swap_b32 v{mx}, v{mn}")
            for j in range(8): l(f"v_fma_f32 v{TMP+j}, v{P+j}, v{vC0}, v{mx}")
            for j in range(8): l(f"v_fma_f32 v{TMP+8+j}, -v{P+j}, v{vC0}, v{mn}")
            for j in range(16): l(f"v_exp_f32 v{TMP+j}, v{TMP+j}")
            s0, s1, s2, s3 = vS + 2, vS + 3, vS + 4, vS + 5
            l(f"v_add_f32 v{s0}, v{TMP}, v{TMP+1}"); l(f"v_add_f32 v{s1}, v{TMP+8}, v{TMP+9}")
            l(f"v_add_f32 v{s2}, v{TMP+2}, v{TMP+3}"); l(f"v_add_f32 v{s3}, v{TMP+10}, v{TMP+11}")
            for j in (4, 6):
                l(f"v_add_f32 v{s0}, v{s0}, v{TMP+j}"); l(f"v_add_f32 v{s1}, v{s1}, v{TMP+8+j}")
                l(f"v_add_f32 v{s2}, v{s2}, v{TMP+j+1}"); l(f"v_add_f32 v{s3}, v{s3}, v{TMP+8+j+1}")
            l(f"v_add_f32 v{s0}, v{s0}, v{s2}"); l(f"v_add_f32 v{s1}, v{s1}, v{s3}")
            l("s_nop 1"); l(f"v_permlane32_swap_b32 v{s0}, v{s1}")
            l(f"v_add_f32 v{s0}, v{s0}, v{s1}")
            l(f"v_rcp_f32 v{s0}, v{s0}")
            l("s_nop 0"); l(f"v_mov_b32 v{s1}, v{s0}")
            l("s_nop 1"); l(f"v_permlane32_swap_b32 v{s0}, v{s1}")
            for j in range(8): l(f"v_mul_f32 v{TMP+j}, v{TMP+j}, v{s0}")
            for j in range(8): l(f"v_mul_f32 v{TMP+8+j}, v{TMP+8+j}, v{s1}")
            for j in range(8): l(f"v_cvt_pk_bf16_f32 v{PK+8*a+j}, v{TMP+2*j}, v{TMP+2*j+1}")
            if not isk:
                for i in range(2):
                    l(f"buffer_store_dwordx4 {vr(PK+8*a+4*i,4)}, v{vL16}, {sr(SWS,4)}, s{sOUT} offen offset:{2048*a+1024*i} {STF}")
        if isk:
            SP_, SM = EACC, EACC + 4
            for j in range(4):
                l(f"v_cndmask_b32 v{SP_+j}, 0, v{SEL+j}, {sr(sLT16,2)}"); l(f"v_cndmask_b32 v{SM+j}, v{SEL+j}, 0, {sr(sLT16,2)}")
            for a in range(2):
                l(f"s_nop 1;;{MFMA} {vr(TMP,16)}, {vr(PK+8*a,4)}, {vr(SP_,4)}, 0;;{MFMA} {vr(TMP,16)}, {vr(PK+8*a+4,4)}, {vr(SM,4)}, {vr(TMP,16)}")
                for i in range(6): l("s_nop 1")
                dst = PHT0 if a == 0 else PK + 8
                for j in range(8): l(f"v_cvt_pk_bf16_f32 v{dst+j}, v{TMP+2*j}, v{TMP+2*j+1}")
        return l
    def vepi():
        l = aug(swap=True)
        l(f"v_mov_b32 v{vS}, s{sONES}")
        for i in range(16): l(f"v_mul_f32 v{EACC+i}, v{EACC+i}, v{TMP+i}")
        for i in range(8): l(f"v_cvt_pk_bf16_f32 v{PK+i}, v{EACC+2*i}, v{EACC+2*i+1}")
        for i in range(8):
            l(f"v_cndmask_b32 v{TMP+i}, v{vS}, v{PK+i}, {sr(sLT16,2)}")
            l(f"v_cndmask_b32 v{TMP+8+i}, v{PK+i}, v{vS}, {sr(sLT16,2)}")
        PHT = (PHT0, PK + 8)
        for a in range(2):
            l(f"s_nop 1;;{MFMA} {vr(EACC,16)}, {vr(PHT[a],4)}, {vr(TMP+8*a,4)}, 0;;{MFMA} {vr(EACC,16)}, {vr(PHT[a]+4,4)}, {vr(TMP+8*a+4,4)}, {vr(EACC,16)}")
            for i in range(6): l("s_nop 1")
            for q in range(4): l(f"ds_write_b128 v{vS+1}, {vr(EACC+4*q,4)} offset:{4096*a + 1024*q}")
            l("s_nop 3")
        return l
    e(f"s_add_u32 s{sDA}, s{sROWO}, s{sCOL+2}"); e(f"s_mov_b32 s{sMA}, s{sLB0}")
    tch = (f"s_cmp_ge_u32 s{sW}, 4;;s_cbranch_scc1 K_NT;;s_lshl_b32 s{sT2}, s{sRB}, 3;;s_add_u32 s{sT2}, s{sT2}, s{sC};;s_lshl_b32 s{sT2}, s{sT2}, 1;;"
           f"s_and_b32 s{sT0}, s{sW}, 1;;s_add_u32 s{sT2}, s{sT2}, s{sT0};;s_cmp_lt_u32 s{sW}, 2;;s_cselect_b64 {sr(SAUX,2)}, s[96:97], s[98:99];;"
           f"s_mov_b32 s{sT0}, {1792*1024};;s_cselect_b32 s{SAUX+2}, s{sT0}, {512*1024};;s_movk_i32 s{sT0}, 7168;;s_cselect_b32 s{sT0}, s{sT0}, 2048;;"
           f"s_cselect_b32 s{sT1}, 56, 16;;s_mul_i32 s{sT0}, s{sT0}, s{sT2};;v_lshlrev_b32 v{vDUM}, 7, v{vL};;s_bfm_b64 exec, s{sT1}, 0;;"
           f"buffer_load_dword v{vDUM}, v{vDUM}, {sr(SAUX,4)}, s{sT0} offen;;s_mov_b64 exec, -1;;K_NT:")
    def l2pf(r):
        return (f"s_lshr_b32 s{sT0}, s{sIDX}, 3;;s_lshl_b32 s{sT0}, s{sT0}, 2;;s_and_b32 s{sT1}, s{sIDX}, 3;;s_add_u32 s{sT0}, s{sT0}, s{sT1};;s_lshl_b32 s{sT0}, s{sT0}, 3;;"
                f"s_add_u32 s{sT0}, s{sT0}, s{sW};;s_lshl_b32 s{sT1}, s2, 4;;s_add_u32 s{sT0}, s{sT0}, s{sT1};;s_and_b32 s{sT0}, s{sT0}, 127;;"
                f"s_mul_i32 s{sT0}, s{sT0}, 14336;;s_add_u32 s{sT0}, s{sT0}, {7168*r};;s_mov_b64 s[92:93], s[96:97];;s_mov_b32 s94, {1792*1024};;s_mov_b32 s95, 0x00020000;;"
                f"v_lshlrev_b32 v{vDUM}, 7, v{vL};;s_bfm_b64 exec, 56, 0;;buffer_load_dword v{vDUM}, v{vDUM}, s[92:95], s{sT0} offen;;s_mov_b64 exec, -1")
    L2 = OPT.get("l2pf", 1)
    flq = merge(qconst() + softmax(True), dma8() + [tch], 0.35)
    if L2: flq.insert(int(len(flq) * 0.6), l2pf(0))
    flq.insert(len(flq) - 30, f"s_cmp_lg_u32 s{sW}, 7;;s_cbranch_scc1 K_QAP;;" + APOLL + ";;K_QAP:")
    e.ext(interleave(mgroups(swap=True), flq, 1, 31))
    st("b1")
    round_toggle()
    e(f"s_lshl_b32 s{sT0}, s{sW}, 13"); e(f"s_add_u32 s{sT0}, s{sT0}, {YB}")
    e(f"v_add_u32 v{vS+1}, s{sT0}, v{vL16}")
    poll_addr()
    e("s_waitcnt vmcnt(0) lgkmcnt(0)")
    r2_check()
    e(f"s_cmp_lg_u32 s{sISC}, 0"); e("s_cselect_b64 vcc, -1, 0")
    e("s_barrier")
    st("r1end")
    MG = mgroups(pre=[f"ds_read_b128 {vr(TMP+4*q,4)}, v{vC1} offset:{32*q}" for q in range(4)])
    QP, QC = OPT.get("qp", 30), OPT.get("qc", 24)
    if L2: MG[1].append(l2pf(1))
    MG[QP].append(guard(FPOLL))
    vv = vepi()
    if OPT.get("x_nokw"): vv = [i for i in vv if "ds_write" not in i]
    if OPT.get("x_nov"): vv = ["s_nop 0"]
    if OPT.get("x_noea"): MG = [[i for i in g if "s_cbranch" not in i] for g in MG]
    e.ext(interleave(MG, vv, 1, 28))
    st("b2")
    round_toggle()
    e("s_waitcnt lgkmcnt(0)")
    e("s_barrier")
    st("r2end")
    e(f"ds_read_b128 {vr(PK,4)}, v{vCSR}")
    p2_setup()
    PARK = 0x23000
    e(f"s_mul_i32 s{sT0}, s{sRG}, 3072"); e(f"s_add_u32 s{sT0}, s{sT0}, {PARK}")
    e(f"v_add_u32 v{vS+1}, s{sT0}, v{vL16}")
    e(f"s_lshl_b32 s{sT0}, s{sRG}, 2"); e(f"s_add_u32 s{sT0}, s{sT0}, {GSY+32}"); e(f"v_mov_b32 v{vS+4}, s{sT0}")
    e("s_waitcnt lgkmcnt(0)")
    lq = aug()
    lq += [f"v_cvt_pk_bf16_f32 v{PK+8+i}, v{EACC+2*i}, v{EACC+2*i+1}" for i in range(8)]
    e("s_cbranch_vccz K_QG")
    lq2 = lq + [f"ds_write_b128 v{vS+1}, {vr(PK+8,4)}", f"ds_write_b128 v{vS+1}, {vr(PK+12,4)} offset:1024", f"ds_write_b128 v{vS+1}, {vr(WT,4)} offset:2048"]
    lq2 += [f"v_mov_b32 v{vS+5}, 1;;s_waitcnt lgkmcnt(0);;ds_write_b32 v{vS+4}, v{vS+5}"]
    w16 = []
    for i in range(NL): w16 += wdma(i)
    e.ext(merge(lq2, w16[:6])); e.ext(w16[6:])
    e(f"s_waitcnt vmcnt({2*NL})"); check([(FPOLL, ND, 0xff, 1)])
    for i in range(NA): e.ext(aload(i))
    e("s_branch K_P2")

    e.label("K_QG")
    VBr, QBc, QB0, WT0, SPm, SMm, PHT0, RED, PHS, KVR = 128, 136, 144, 152, 96, 100, 104, 160, 192, 208
    vSL, vONE, vRS, vRD = 112, 113, vTR0, vTR1
    sU, sGI = sA0, sA1
    e(f"s_setprio {OPT.get('gprio', 2)}")
    e(f"v_mov_b32 v{vSL}, v{vS+1}"); e(f"v_mov_b32 v{vSL+2}, v{vS+4}")
    e(f"s_lshl_b32 s{sT1}, s{sRG}, 10"); e(f"s_add_u32 s{sT1}, s{sT1}, {YB}"); e(f"v_add_u32 v{vS+2}, s{sT1}, v{vL16}")
    for hd in range(4):
        for w in range(4):
            e(f"ds_read_b128 {vr(RED+16*hd+4*w,4)}, v{vS+2} offset:{32768*(hd>>1) + 8192*w + 4096*(hd&1)}")
    e(f"s_lshl_b32 s{sOUT}, s{sRB}, 17"); e(f"s_lshl_b32 s{sT0}, s{sC}, 14"); e(f"s_add_u32 s{sOUT}, s{sOUT}, s{sT0}")
    e(f"s_lshl_b32 s{sT0}, s{sRG}, 10"); e(f"s_add_u32 s{sOUT}, s{sOUT}, s{sT0}"); e(f"s_add_u32 s{sOUT}, s{sOUT}, {KVP_OFF}")
    e(f"v_xor_b32 v{vS+3}, 256, v{vL16}")
    for hd in range(4):
        e(f"s_waitcnt lgkmcnt({4*(3-hd)})")
        B = RED + 16 * hd
        for j in range(4): e(f"v_add_f32 v{B+j}, v{B+j}, v{B+4+j}")
        for j in range(4): e(f"v_add_f32 v{B+8+j}, v{B+8+j}, v{B+12+j}")
        for j in range(4): e(f"v_add_f32 v{B+j}, v{B+j}, v{B+8+j}")
        e(f"buffer_store_dwordx4 {vr(B,4)}, v{vS+3 if hd & 1 else vL16}, {sr(SWS,4)}, s{sOUT} offen sc1")
        if hd < 3: e(f"s_add_u32 s{sOUT}, s{sOUT}, 4096")
    e.ext(aug())
    for i in range(8): e(f"v_cvt_pk_bf16_f32 v{QBc+i}, v{EACC+2*i}, v{EACC+2*i+1}")
    def softcore(src):
        l = Lst()
        A1, A2 = TMP, TMP + 4
        for j in range(4):
            l(f"v_cndmask_b32 v{A1+j}, 0, v{WT+j}, {sr(sLT16,2)}"); l(f"v_cndmask_b32 v{A2+j}, v{WT+j}, 0, {sr(sLT16,2)}")
        l(f"s_nop 1;;{MFMA} {vr(EACC,16)}, {vr(A1,4)}, {vr(src,4)}, 0;;{MFMA} {vr(EACC,16)}, {vr(A2,4)}, {vr(src+4,4)}, {vr(EACC,16)}")
        l("s_nop 11")
        for a in range(2):
            P = EACC + 8 * a
            mx, mn = vS, vS + 1
            l(f"v_max3_f32 v{mx}, v{P}, v{P+1}, v{P+2}"); l(f"v_max3_f32 v{mn}, -v{P}, -v{P+1}, -v{P+2}")
            l(f"v_max3_f32 v{mx}, v{mx}, v{P+3}, v{P+4}"); l(f"v_max3_f32 v{mn}, v{mn}, -v{P+3}, -v{P+4}")
            l(f"v_max3_f32 v{mx}, v{mx}, v{P+5}, v{P+6}"); l(f"v_max3_f32 v{mn}, v{mn}, -v{P+5}, -v{P+6}")
            l(f"v_max_f32 v{mx}, v{mx}, v{P+7}"); l(f"v_max_f32_e64 v{mn}, v{mn}, -v{P+7}")
            l("s_nop 1"); l(f"v_permlane32_swap_b32 v{mx}, v{mn}")
            l(f"v_max_f32 v{mx}, v{mx}, v{mn}")
            l(f"v_mul_f32_e64 v{mx}, -v{mx}, v{vC0}")
            l(f"v_mov_b32 v{mn}, v{mx}")
            l("s_nop 1"); l(f"v_permlane32_swap_b32 v{mx}, v{mn}")
            for j in range(8): l(f"v_fma_f32 v{TMP+j}, v{P+j}, v{vC0}, v{mx}")
            for j in range(8): l(f"v_fma_f32 v{TMP+8+j}, -v{P+j}, v{vC0}, v{mn}")
            for j in range(16): l(f"v_exp_f32 v{TMP+j}, v{TMP+j}")
            s0, s1, s2, s3 = vS + 2, vS + 3, vS + 4, vS + 5
            l(f"v_add_f32 v{s0}, v{TMP}, v{TMP+1}"); l(f"v_add_f32 v{s1}, v{TMP+8}, v{TMP+9}")
            l(f"v_add_f32 v{s2}, v{TMP+2}, v{TMP+3}"); l(f"v_add_f32 v{s3}, v{TMP+10}, v{TMP+11}")
            for j in (4, 6):
                l(f"v_add_f32 v{s0}, v{s0}, v{TMP+j}"); l(f"v_add_f32 v{s1}, v{s1}, v{TMP+8+j}")
                l(f"v_add_f32 v{s2}, v{s2}, v{TMP+j+1}"); l(f"v_add_f32 v{s3}, v{s3}, v{TMP+8+j+1}")
            l(f"v_add_f32 v{s0}, v{s0}, v{s2}"); l(f"v_add_f32 v{s1}, v{s1}, v{s3}")
            l("s_nop 1"); l(f"v_permlane32_swap_b32 v{s0}, v{s1}")
            l(f"v_add_f32 v{s0}, v{s0}, v{s1}")
            l(f"v_rcp_f32 v{s0}, v{s0}")
            l("s_nop 0"); l(f"v_mov_b32 v{s1}, v{s0}")
            l("s_nop 1"); l(f"v_permlane32_swap_b32 v{s0}, v{s1}")
            for j in range(8): l(f"v_mul_f32 v{TMP+j}, v{TMP+j}, v{s0}")
            for j in range(8): l(f"v_mul_f32 v{TMP+8+j}, v{TMP+8+j}, v{s1}")
            for j in range(8): l(f"v_cvt_pk_bf16_f32 v{PK+8*a+j}, v{TMP+2*j}, v{TMP+2*j+1}")
        return l
    def ldspin(lbl, areg, n):
        e.label(lbl)
        e(f"ds_read_b32 v{vS+5}, v{areg}"); e("s_waitcnt lgkmcnt(0)")
        e(f"v_readfirstlane_b32 s{sT0}, v{vS+5}"); e("s_nop 3")
        e(f"s_cmp_lt_u32 s{sT0}, {n}"); e(f"s_cbranch_scc1 {lbl}")
    e(f"s_lshl_b32 s{sU}, s{sC}, 4"); e(f"s_add_u32 s{sU}, s{sU}, s{sRB}"); e(f"s_lshl_b32 s{sU}, s{sU}, 1"); e(f"s_add_u32 s{sU}, s{sU}, s{sRG}")
    e(f"v_lshrrev_b32 v{vS+2}, 4, v{vL}"); e(f"v_and_b32 v{vS+3}, 15, v{vL}"); e(f"v_lshlrev_b32 v{vS+3}, 4, v{vS+3}")
    e(f"v_lshl_add_u32 v{vRS}, v{vS+2}, 17, v{vS+3}")
    e(f"v_lshl_add_u32 v{vRD}, v{vS+2}, 2, v{vS+3}")
    e(f"s_lshr_b32 s{sPF}, s{sU}, 2"); e(f"s_lshl_b32 s{sPF}, s{sPF}, 11"); e(f"s_and_b32 s{sT1}, s{sU}, 3"); e(f"s_lshl_b32 s{sT1}, s{sT1}, 8")
    e(f"s_add_u32 s{sPF}, s{sPF}, s{sT1}"); e(f"s_add_u32 s{sPF}, s{sPF}, {KVP_OFF}")
    RLOAD = f"s_mov_b32 s{sT0}, s{sPF}"
    for u in range(4):
        RLOAD += f";;buffer_load_dwordx4 {vr(RED+8*u,4)}, v{vRS}, {sr(SWS,4)}, s{sT0} offen sc1;;buffer_load_dwordx4 {vr(RED+8*u+4,4)}, v{vRS}, {sr(SWS,4)}, s{sT0} offen offset:1024 sc1"
        if u < 3: RLOAD += f";;s_add_u32 s{sT0}, s{sT0}, {4*131072}"
    g1 = L("R")
    mid = f"s_add_u32 s{sT0}, s{sRG}, s{sGI};;s_cmp_ge_u32 s{sT0}, 2;;s_cbranch_scc1 {g1};;" + RLOAD + f";;{g1}:"
    e(f"s_mov_b32 s{sGI}, 0")
    e.label("K_GQ")
    sq = softcore(QBc)
    sq.insert(int(len(sq) * OPT.get("gmid", 85) / 100), mid)
    e.ext(sq)
    e(f"s_cmp_lg_u32 s{sGI}, 0"); e("s_cbranch_scc1 K_GQD")
    st("gk")
    e(f"s_cmp_ge_u32 s{sRG}, 2"); e("s_cbranch_scc1 K_GNR")
    e("s_waitcnt vmcnt(0)")
    e(sentinel(RED, 32, vS, RLOAD))
    e(f"s_lshl_b32 s{sT0}, s{sU}, 8"); e(f"s_add_u32 s{sT0}, s{sT0}, {KVZ_OFF}")
    for stp in (16, 8):
        for j in range(stp): e(f"v_add_f32 v{RED+j}, v{RED+j}, v{RED+stp+j}")
    e("s_nop 1")
    for k in range(4): e(f"v_permlane32_swap_b32 v{RED+k}, v{RED+k+4}")
    for k in range(4): e(f"v_add_f32 v{RED+k}, v{RED+k}, v{RED+k+4}")
    e("s_nop 1")
    for k in range(2): e(f"v_permlane16_swap_b32 v{RED+k}, v{RED+k+2}")
    for k in range(2): e(f"v_add_f32 v{RED+k}, v{RED+k}, v{RED+k+2}")
    e(f"v_cvt_pk_bf16_f32 v{RED}, v{RED}, v{RED+1}")
    e(f"buffer_store_dword v{RED}, v{vRD}, {sr(SWS,4)}, s{sT0} offen sc1")
    e(f"v_mov_b32 v{vS}, {GSY:#x}"); e(f"v_mov_b32 v{vS+1}, 1")
    e("s_mov_b64 exec, 1"); e(f"ds_add_u32 v{vS}, v{vS+1}"); e("s_mov_b64 exec, -1")
    e.label("K_GNR")
    ldspin("K_GQS", vSL + 2, 1)
    e(f"ds_read_b128 {vr(WT,4)}, v{vSL} offset:2048")
    e(f"ds_read_b128 {vr(QBc,4)}, v{vSL}"); e(f"ds_read_b128 {vr(QBc+4,4)}, v{vSL} offset:1024")
    for j in range(16): e(f"v_mov_b32 v{PHS+j}, v{PK+j}")
    e(f"s_mov_b32 s{sGI}, 2")
    e("s_waitcnt lgkmcnt(0)")
    e("s_branch K_GQ")
    e.label("K_GQD")
    st("gq")
    e(f"v_mov_b32 v{vS}, {GSY:#x}"); e(f"v_mov_b32 v{vS+1}, 1")
    e("s_mov_b64 exec, 1"); e(f"ds_add_u32 v{vS}, v{vS+1}"); e("s_mov_b64 exec, -1")
    ldspin("K_GOS", vS, 6)
    st("gr")
    e(f"s_lshl_b32 s{sT0}, s{sP}, 1"); e(f"s_xor_b32 s{sT0}, s{sT0}, s{sRG}"); e(f"s_lshl_b32 s{sT0}, s{sT0}, 11")
    e(f"s_lshl_b32 s{sT2}, s{sC}, 13"); e(f"s_add_u32 s{sT2}, s{sT2}, s{sT0}"); e(f"s_add_u32 s{sT2}, s{sT2}, {KVZ_OFF}")
    ZLOAD = f"buffer_load_dwordx4 {vr(KVR,4)}, v{vL16}, {sr(SWS,4)}, s{sT2} offen sc1;;buffer_load_dwordx4 {vr(KVR+4,4)}, v{vL16}, {sr(SWS,4)}, s{sT2} offen offset:1024 sc1"
    e(ZLOAD)
    e(f"s_lshl_b32 s{sT0}, s{sRG}, 13"); e(f"s_add_u32 s{sT0}, s{sT0}, {YB}"); e(f"v_add_u32 v{vS+2}, s{sT0}, v{vL16}")
    e(f"v_add_u32 v{vS+3}, {YB:#x}, v{vL16}")
    e("s_waitcnt vmcnt(0)")
    e(sentinel(KVR, 8, vS + 4, ZLOAD))
    e(f"ds_write_b128 v{vS+2}, {vr(KVR,4)}"); e(f"ds_write_b128 v{vS+2}, {vr(KVR+4,4)} offset:1024")
    e("s_waitcnt lgkmcnt(0)")
    e("s_mov_b64 exec, 1"); e(f"ds_add_u32 v{vS}, v{vS+1}"); e("s_mov_b64 exec, -1")
    ldspin("K_GZS", vS, 10)
    for k in range(8): e(f"ds_read_b128 {vr(KVR+4*k,4)}, v{vS+3} offset:{8192*(k>>1) + 1024*(k&1)}")
    st("gv")
    e(f"s_lshl_b32 s{sT2}, s{sRT}, 15"); e(f"s_lshl_b32 s{sT0}, s{sC}, 12"); e(f"s_add_u32 s{sT2}, s{sT2}, s{sT0}")
    e(f"s_lshl_b32 s{sT0}, s{sP}, 11"); e(f"s_add_u32 s{sT2}, s{sT2}, s{sT0}"); e(f"s_add_u32 s{sT2}, s{sT2}, {PQ_OFF}")
    e(f"s_xor_b32 s{sT3}, s{sT2}, 2048")
    e("s_waitcnt lgkmcnt(0)")
    NDG = (64, 80, 128, 144)
    for hd in range(4):
        ph = (PHS if hd < 2 else PK) + 8 * (hd & 1); d = vr(NDG[hd], 16)
        e(f"{MFMA} {d}, {vr(KVR+8*hd,4)}, {vr(ph,4)}, 0"); e(f"{MFMA} {d}, {vr(KVR+8*hd+4,4)}, {vr(ph+4,4)}, {d}")
    e("s_nop 5")
    for hd in range(4):
        d = NDG[hd]
        e(f"v_add_f32 v{vS}, {f2u(1e-6):#x}, v{d+8}"); e(f"v_rcp_f32 v{vS}, v{vS}"); e("s_nop 0")
        for j in range(8): e(f"v_mul_f32 v{d+j}, v{d+j}, v{vS}")
        for j in range(4): e(f"v_cvt_pk_bf16_f32 v{TMP+4*hd+j}, v{d+2*j}, v{d+2*j+1}")
        e(f"buffer_store_dwordx4 {vr(TMP+4*hd,4)}, v{vL16}, {sr(SWS,4)}, s{sT2 if hd < 2 else sT3} offen offset:{1024*(hd&1)} sc1")
    e("s_branch K_FIN")

    e.label("K_P2")
    e(f"s_setprio {OPT.get('cprio', 0)}")
    st("p2start")
    vS2, vXB, vX, vB, OP = 224, 16, 32, 40, 32
    ACC2, WB2 = 48, 112
    SO, SB2 = 64, 68
    e("s_load_dwordx4 s[72:75], s[0:1], 64")
    e(f"s_lshr_b32 s{sT1}, s{sC}, 2"); e(f"s_lshl_b32 s{sT2}, s{sRB}, 1"); e(f"s_add_u32 s{sT2}, s{sT2}, s{sT1}")
    LA = OPT.get("la", 4)
    nun = [1] * 36
    ops = [i for i in range(NL) for _ in range(2)] + [i for i in range(NA) for _ in range(2)]
    state = dict(na=NA, nw=NL, done=-1)
    FIRST = {8: 2, 16: 3, 24: 4}
    QPOLL = f"s_sub_u32 s{sT0}, s{sPF}, {128*1024};;s_mov_b64 exec, 0xff;;buffer_load_dword v{ND}, v{vPA}, {sr(SWS,4)}, s{sT0} offen sc1;;s_mov_b64 exec, -1"
    def tagwait(tag):
        last = max(i for i, o in enumerate(ops) if o == tag)
        e(f"s_waitcnt vmcnt({min(63, len(ops) - 1 - last)})")
    def issue_a(i):
        R = RING + 8 * unit[i]
        if i in FIRST and not OPT.get("x_nopoll"):
            st(f"cb{i}"); tagwait(f"p{i}"); check([(FPOLL, ND, 0xff, FIRST[i])]); st(f"ca{i}")
        e.ext(aload(i)); ops.extend([i] * 2)
        PL = OPT.get("pl", 3)
        if i + PL in FIRST and not OPT.get("x_nopoll"): e(FPOLL); ops.append(f"p{i+PL}")
    def pump():
        n = 0
        while state["na"] < 36:
            i = state["na"]
            us = set(range(unit[i], unit[i] + nun[i]))
            if any(us & set(range(unit[q], unit[q] + nun[q])) for q in range(state["done"] + 1, i)): break
            if i - state["done"] > LA: break
            issue_a(i); state["na"] += 1; n += 1
        while state["nw"] < 36 and state["nw"] - state["done"] <= OPT.get("lw", NL):
            e.ext(wdma(state["nw"])); ops.extend([state["nw"]] * 2); state["nw"] += 1; n += 1
        return n
    for fi in FIRST:
        if NA <= fi < NA + OPT.get("pl", 3) and not OPT.get("x_nopoll"): e(FPOLL); ops.append(f"p{fi}")
    pump()
    cbcalc()
    e(f"s_lshl_b32 s{sXO}, s{sT2}, 16"); e(f"s_add_u32 s{sXO}, s{sXO}, s{sT1}"); e(f"s_add_u32 s{sXO}, s{sXO}, s{sLB}")
    e(f"s_add_u32 s{sXO2}, s{sXO}, 8192")
    e(f"buffer_load_dwordx4 {vr(vX,4)}, v{vXO}, {sr(SX,4)}, s{sXO} offen")
    e(f"buffer_load_dwordx4 {vr(vX+4,4)}, v{vXO}, {sr(SX,4)}, s{sXO2} offen")
    e(f"v_and_b32 v{vS2+5}, 0x70, v{vL16}")
    e("s_waitcnt lgkmcnt(0)")
    srd(e, SB2, 72, 73, 1024)
    srd(e, SO, 74, 75, 2048 * 1024)
    e(f"buffer_load_dwordx4 {vr(vB,4)}, v{vS2+5}, {sr(SB2,4)}, s{sT1} offen")
    ops.extend(["x"] * 3)
    e(f"s_lshl_b32 s{sP0}, s{sT2}, 16"); e(f"s_lshr_b32 s{sT0}, s{sLB}, 1"); e(f"s_add_u32 s{sP0}, s{sP0}, s{sT0}"); e(f"s_add_u32 s{sP0}, s{sP0}, {PQ_OFF}")
    e(f"s_add_u32 s{sKV}, s{sP0}, 32768")
    e(f"v_bfe_u32 v{vS2+6}, v{vL}, 2, 2"); e(f"v_lshrrev_b32 v{vS2+4}, 5, v{vL}"); e(f"v_bfe_u32 v{vS2+3}, v{vL}, 4, 1")
    e(f"v_lshl_add_u32 v{vS2+7}, v{vS2+4}, 2, v{vS2+6}"); e(f"v_lshlrev_b32 v{vTR0}, 7, v{vS2+7}")
    e(f"v_lshl_add_u32 v{vTR0}, v{vS2+3}, 5, v{vTR0}")
    e(f"v_and_b32 v{vS2+7}, 3, v{vL}"); e(f"v_lshl_add_u32 v{vTR0}, v{vS2+7}, 3, v{vTR0}")
    e(f"v_lshrrev_b32 v{vS2+6}, 1, v{vS2+6}"); e(f"v_lshl_add_u32 v{vTR0}, v{vS2+6}, 6, v{vTR0}")
    e(f"v_add_u32 v{vTR0}, s{sLB}, v{vTR0}")
    e(f"v_xor_b32 v{vTR1}, 64, v{vTR0}")
    def wreads(i):
        off = 2048 * (i % NL); b = WB2 + 8 * (i & 1)
        e(f"ds_read_b64_tr_b16 {vr(b,2)}, v{vTR0} offset:{off}")
        e(f"ds_read_b64_tr_b16 {vr(b+2,2)}, v{vTR0} offset:{off+1024}")
        e(f"ds_read_b64_tr_b16 {vr(b+4,2)}, v{vTR1} offset:{off}")
        e(f"ds_read_b64_tr_b16 {vr(b+6,2)}, v{vTR1} offset:{off+1024}")
    def mm4(buf, act, first=False):
        for nt in range(2):
            for mt in range(2):
                c = vr(ACC2 + 16 * (2 * nt + mt), 16)
                e(f"{MFMA} {c}, {vr(WB2+8*buf+4*nt,4)}, {act[mt]}, {'0' if first else c}")
    tagwait(0)
    st("p2data")
    wreads(0)
    XBASE = YB
    for i in range(36):
        if i < 35:
            tagwait(i + 1)
            if i == OPT.get("pubat", 2):
                e(f"s_cmp_eq_u32 s{sTYPE}, 0"); e("s_cbranch_scc1 K_NPB")
                e(f"s_waitcnt vmcnt({len(ops) - 2*NA - 2*NL})"); e(publish(4, vS2)); e.label("K_NPB")
            wreads(i + 1)
            e("s_waitcnt lgkmcnt(4)")
        else:
            e("s_waitcnt lgkmcnt(0)")
        R = RING + 8 * unit[i]
        if i >= 28:
            o_ = 1024 * (i - 28)
            e(sentinel(R, 8, vS2, f"s_add_u32 s{sT0}, s{sP0}, {o_};;s_add_u32 s{sT1}, s{sKV}, {o_};;"
                       f"buffer_load_dwordx4 {vr(R,4)}, v{vL16}, {sr(SWS,4)}, s{sT0} offen sc1;;buffer_load_dwordx4 {vr(R+4,4)}, v{vL16}, {sr(SWS,4)}, s{sT1} offen sc1"))
        mm4(i & 1, [vr(R, 4), vr(R + 4, 4)], i == 0)
        state["done"] = i
        pump()
        st(f"s{i}")
        if i == 12:
            for k in range(4):
                e(f"v_lshlrev_b32 v{vS2}, 16, v{vB+k}"); e(f"v_and_b32 v{vS2+1}, s{sMASK}, v{vB+k}")
                for t in range(2):
                    d = vXB + 8 * t + 2 * k
                    e(f"v_lshlrev_b32 v{d}, 16, v{vX+4*t+k}"); e(f"v_and_b32 v{d+1}, s{sMASK}, v{vX+4*t+k}")
                    e(f"v_add_f32 v{d}, v{d}, v{vS2}"); e(f"v_add_f32 v{d+1}, v{d+1}, v{vS2+1}")
        if i == 33: e("s_barrier")
    e(f"v_and_b32 v{vS2+2}, 31, v{vL}"); e(f"v_mul_u32_u24 v{vS2+2}, 272, v{vS2+2}")
    e(f"v_lshrrev_b32 v{vS2+3}, 5, v{vL}"); e(f"v_lshl_add_u32 v{vS2+2}, v{vS2+3}, 4, v{vS2+2}")
    e(f"s_mul_i32 s{sT0}, s{sRG}, 17408"); e(f"s_add_u32 s{sT0}, s{sT0}, {XBASE}")
    e(f"v_add_u32 v{vS2+2}, s{sT0}, v{vS2+2}")
    e(f"v_lshrrev_b32 v{vS2+3}, 3, v{vL}"); e(f"v_mul_u32_u24 v{vS2+3}, 272, v{vS2+3}")
    e(f"v_and_b32 v{vS2+4}, 7, v{vL}"); e(f"v_lshl_add_u32 v{vS2+3}, v{vS2+4}, 5, v{vS2+3}")
    e(f"s_mul_i32 s{sT0}, s{sRG}, {16*272}"); e(f"s_add_u32 s{sT0}, s{sT0}, {XBASE}")
    e(f"v_add_u32 v{vS2+3}, s{sT0}, v{vS2+3}")
    for nt in range(2):
        for mt in range(2):
            for q in range(4):
                e(f"ds_write_b128 v{vS2+2}, {vr(ACC2+16*(2*nt+mt)+4*q,4)} offset:{32*272*mt + 128*nt + 32*q}")
    e("s_waitcnt lgkmcnt(0)"); e("s_barrier")
    for t in range(2):
        for p in range(4):
            for hh in range(2):
                e(f"ds_read_b128 {vr(ACC2+32*t+8*p+4*hh,4)}, v{vS2+3} offset:{17408*p + 8*272*t + 16*hh}")
    for t in range(2):
        for p in range(4):
            e(f"s_waitcnt lgkmcnt({14 - 8*t - 2*p})")
            for j in range(8): e(f"v_add_f32 v{vXB+8*t+j}, v{vXB+8*t+j}, v{ACC2+32*t+8*p+j}")
        for j in range(4): e(f"v_cvt_pk_bf16_f32 v{OP+4*t+j}, v{vXB+8*t+2*j}, v{vXB+8*t+2*j+1}")
        e(f"buffer_store_dwordx4 {vr(OP+4*t,4)}, v{vXO}, {sr(SO,4)}, s{sXO if t == 0 else sXO2} offen")
    e.label("K_FIN")
    if OPT.get("x_hold"):
        e.label("K_HOLD")
        e("s_sleep 4"); e("s_memrealtime s[82:83]"); e("s_waitcnt lgkmcnt(0)")
        e("s_sub_u32 s82, s82, s80"); e(f"s_cmp_lt_u32 s82, {OPT['x_hold']}")
        e(f"s_cselect_b32 s82, s{sISC}, 0"); e("s_cmp_lg_u32 s82, 0"); e("s_cbranch_scc1 K_HOLD")
    if OPT.get("cnt"): e("s_add_u32 s90, s91, s78")
    if OPT["stamps"] and not OPT.get("phys"):
        e(f"s_xor_b32 s{sW}, s{sISC}, 1"); e(f"s_lshl_b32 s{sW}, s{sW}, 2"); e(f"s_add_u32 s{sW}, s{sW}, s{sRG}")
    stamp_end(e, 0, SWS, "K_END", sW, 0)
    e.label("K_END")
    e("s_endpgm")
    return e.text()

def main():
    out = "; LayerNorm + hedgehog linear attention + GELU FFN, one persistent launch (generated by tools/gen2.py)\n"
    out += "; @launch grid=(256,1,1) block=(512,1,1) lds=163840\n"
    out += '.amdgcn_target "amdgcn-amd-amdhsa--gfx950"\n.text\n'
    out += f".globl {KN}\n.p2align 8\n.type {KN},@function\n{KN}:\n" + gen()
    out += ".p2align 8\n.fill 1536, 4, 0xbf800000\n"
    out += f""".section .rodata,"a"
.p2align 6
.amdhsa_kernel {KN}
  .amdhsa_next_free_vgpr 256
  .amdhsa_next_free_sgpr 102
  .amdhsa_accum_offset 256
  .amdhsa_group_segment_fixed_size 0
  .amdhsa_kernarg_size 96
  .amdhsa_user_sgpr_count 2
  .amdhsa_user_sgpr_kernarg_segment_ptr 1
  .amdhsa_system_sgpr_workgroup_id_x 1
.end_amdhsa_kernel
"""
    open(sys.argv[1], "w").write(out)
main()
```

```python
import sys, math, struct

OPT = dict(stamps=0, st1="sc1", k1only=0, k2only=0, pfcode=1, pfw2=3)
for a in sys.argv[2:]:
    k, v = a.split("=")
    OPT[k] = int(v) if v.lstrip("-").isdigit() else v

H_OFF, PQ_OFF, KVP_OFF, KVZ_OFF, FLG_OFF = 0, 0x800000, 0xC00000, 0xE00000, 0xE10000
STAMP_OFF = 200 << 20
NSTAMP = 8
LOOPST = OPT.get('loopst', -1)

def f2u(x): return struct.unpack("<I", struct.pack("<f", x))[0]

class Asm:
    def __init__(self): self.L = []
    def __call__(self, s):
        for t in s.split(";;"):
            t = t.strip()
            self.L.append(t if t.endswith(":") else "    " + t)
    def label(self, s): self.L.append(s + ":")
    def ext(self, lst):
        for s in lst: self(s)
    def text(self): return "\n".join(self.L) + "\n"

class Lst(list):
    def __call__(self, s): self.append(s)

def vr(b, n=1): return f"v{b}" if n == 1 else f"v[{b}:{b+n-1}]"
def ar(b, n=1): return f"a{b}" if n == 1 else f"a[{b}:{b+n-1}]"
def sr(b, n=1): return f"s{b}" if n == 1 else f"s[{b}:{b+n-1}]"
MFMA = "v_mfma_f32_32x32x16_bf16"

def cost(ins):
    c = 0
    for t in ins.split(";;"):
        op = t.split()[0]
        if op.endswith(":"): continue
        if "s_cbranch" in ins and op.startswith(("s_", "v_")): c += 0.5; continue
        if op.startswith(("v_exp", "v_rcp", "v_sqrt", "v_log", "v_mfma")): c += 8
        elif op == "s_nop": c += 2 * (int(t.split()[1]) + 1)
        elif op.startswith("s_"): c += 1
        elif op.startswith("buffer_"): c += 8
        else: c += 4.5
    return c

def interleave(groups, fill, first=0, last=None):
    last = len(groups) - 1 if last is None else last
    tot = sum(cost(i) for i in fill); n = last - first + 1
    out = []; k = 0; acc = 0.0
    for gi, g in enumerate(groups):
        out += g
        if first <= gi <= last:
            tgt = tot * (gi - first + 1) / n
            while k < len(fill) and (acc + cost(fill[k]) / 2 <= tgt or gi == last):
                out.append(fill[k]); acc += cost(fill[k]); k += 1
    assert k == len(fill)
    return out

def merge(a, b, frac=1.0):
    out = []; n = max(1, int(len(a) * frac)); k = 0
    for i, x in enumerate(a):
        while k < len(b) and k * n <= i * len(b) and i < n:
            out.append(b[k]); k += 1
        out.append(x)
    out += b[k:]
    return out

def srd(e, d, lo, hi, size):
    e(f"s_mov_b32 s{d}, s{lo}"); e(f"s_mov_b32 s{d+1}, s{hi}")
    e(f"s_mov_b32 s{d+2}, {size:#x}"); e(f"s_mov_b32 s{d+3}, 0x00020000")

def stamp(e, idx, base=80):
    if OPT["stamps"]:
        e(f"s_memtime s[{base+2*idx}:{base+2*idx+1}]")

def stamp_begin(e, base=80):
    if OPT["stamps"]:
        e(f"s_memrealtime s[{base}:{base+1}]")
        e(f"s_memtime s[{base-2}:{base-1}]")
        for i in range(2, NSTAMP):
            e(f"s_mov_b64 s[{base+2*i}:{base+2*i+1}], 0")

def stamp_end(e, kidx, wssrd, lbl, wave_sgpr, wave_sel, base=80):
    if not OPT["stamps"]: return
    e(f"s_memtime s[{base+2*(NSTAMP-2)}:{base+2*(NSTAMP-2)+1}]")
    e("s_waitcnt vmcnt(0)")
    e(f"s_memrealtime s[{base+2}:{base+3}]")
    e(f"s_memtime s[{base+2*(NSTAMP-1)}:{base+2*(NSTAMP-1)+1}]")
    e("s_waitcnt lgkmcnt(0)")
    for i in range(2, NSTAMP):
        e(f"s_sub_u32 s{base+2*i}, s{base+2*i}, s{base-2}")
        e(f"s_mov_b32 s{base+2*i+1}, 0")
    e(f"s_lshl_b32 s{base-2}, s2, 3"); e(f"s_add_u32 s{base-2}, s{base-2}, s{wave_sgpr}")
    e(f"s_mul_i32 s{base-2}, s{base-2}, {8*NSTAMP}")
    e(f"s_add_u32 s{base-2}, s{base-2}, {STAMP_OFF + kidx*256*8*8*NSTAMP}")
    e("s_mov_b64 exec, 1")
    e("v_mov_b32 v1, 0")
    for i in range(NSTAMP // 2):
        for j in range(4):
            e(f"v_mov_b32 v{4+j}, s{base+4*i+j}")
        e(f"buffer_store_dwordx4 v[4:7], v1, {sr(wssrd,4)}, s{base-2} offen offset:{16*i}")
        e("s_nop 1")
    e("s_waitcnt vmcnt(0)")

KN = "parallel_sum__linear_kernel_hedgehog__dense_activation_gelu__prompt_kernel"
SPIN = OPT.get("spin", 20000)
CNT_OFF = FLG_OFF + 2048 * 128

def gen():
    e = Asm()
    M16 = "v_mfma_f32_16x16x32_bf16"
    SDBG, SX, SW, SWS, SAUX = 4, 8, 12, 16, 20
    sW, sRG, sP, sC, sRB, sTYPE = 24, 25, 26, 27, 28, 29
    sPITCH, sRT, sIDX, sROT = 30, 31, 32, 33
    sONES, sLO, sHI, sMASK = 34, 35, 36, 37
    sT0, sT1, sT2, sT3, sT4 = 38, 39, 40, 41, 42
    sXB = 43
    sCOL = 44
    sSLOT, sIT, sOUT, sAUXO, sP16 = 48, 49, 50, 51, 52
    sDA, sDB, sMA, sROWO, sW4K, sST = 53, 54, 55, 56, 57, 61
    sLT16, sFLG = 58, 60
    sJG, sISC, sWB, sLEV = 76, 77, 100, 101
    vDUM, vL, vL16, vDMA, vTR = 0, 1, 2, 3, 4
    vS, vCSW, vCSR, SELC, CS, AUG, vC0, vC1 = 8, 14, 15, 16, 20, 24, 30, 31
    TMP, PK, ACC, EACC, WB, vAUX, XF = 32, 48, 64, 80, 96, 116, 128
    NWB = 5
    YB, ZB = 0x10000, 0x20000
    STAT, CSX, RVO, GSY, ZSC = 0x20000, 0x20800, 0x21000, 0x21400, 0x21800
    vFR, vXD, RS, vQ, vAL = TMP, TMP + 8, TMP + 12, TMP + 16, TMP + 18
    STF = "" if OPT.get("x_pst") else "sc1"
    lab = [0]
    def L(p):
        lab[0] += 1
        return f"{p}{lab[0]}"
    SP = str(OPT.get("sp", "")).split(",")
    def st(name, lst=None):
        if OPT["stamps"] and name in SP:
            i = 2 + SP.index(name)
            t = f"s_memtime s[{80+2*i}:{81+2*i}];;s_waitcnt lgkmcnt(0)"
            (e if lst is None else lst.append)(t)
    e("s_cmp_ge_u32 s2, 256")
    e("s_cbranch_scc1 K_END")
    stamp_begin(e)
    if OPT.get("x_hold"): e("s_memrealtime s[80:81]")
    if OPT.get("cnt"): e("s_mov_b32 s91, 1")
    e("s_load_dwordx4 s[64:67], s[0:1], 0")
    e("s_load_dwordx2 s[68:69], s[0:1], 16")
    e("s_load_dwordx4 s[72:75], s[0:1], 40")
    e("s_load_dwordx2 s[70:71], s[0:1], 88")
    e("s_load_dwordx2 s[96:97], s[0:1], 56")
    e("s_load_dwordx2 s[98:99], s[0:1], 24")
    e(f"s_load_dwordx2 {sr(SDBG,2)}, s[0:1], 80")
    e(f"v_lshrrev_b32 v{vS}, 6, v0")
    e(f"v_and_b32 v{vL}, 63, v0")
    e(f"v_readfirstlane_b32 s{sW}, v{vS}")
    e(f"s_lshr_b32 s{sIDX}, s2, 3")
    if OPT["pfcode"]:
        e(f"s_cmp_lg_u32 s{sW}, 7"); e("s_cbranch_scc1 K_NOPF")
        e("s_getpc_b64 s[62:63]")
        e("s_and_b32 s62, s62, 0xffffff00")
        e(f"s_mul_i32 s{sT1}, s{sIDX}, 896")
        e(f"v_lshl_add_u32 v{vS+3}, v{vL}, 7, s{sT1}")
        e("s_mov_b64 exec, 0x7f")
        e(f"global_load_dword v{vDUM}, v{vS+3}, s[62:63]")
        e("s_mov_b64 exec, -1")
        e.label("K_NOPF")
    e(f"s_and_b32 s{sT0}, s2, 7")
    e(f"s_lshr_b32 s{sRB}, s{sT0}, 1"); e(f"s_lshl_b32 s{sRB}, s{sRB}, 2")
    e(f"s_and_b32 s{sT2}, s{sIDX}, 3"); e(f"s_add_u32 s{sRB}, s{sRB}, s{sT2}")
    e(f"s_lshr_b32 s{sT1}, s{sIDX}, 2")
    e(f"s_add_u32 s{sROT}, s{sT1}, s{sT2}"); e(f"s_and_b32 s{sROT}, s{sROT}, {OPT.get('rotm', 3)}")
    e(f"s_and_b32 s{sTYPE}, s{sT1}, 1")
    e(f"s_lshr_b32 s{sT1}, s{sT1}, 1")
    e(f"s_and_b32 s{sC}, s{sT0}, 1"); e(f"s_lshl_b32 s{sC}, s{sC}, 2"); e(f"s_add_u32 s{sC}, s{sC}, s{sT1}")
    e(f"s_and_b32 s{sRG}, s{sW}, 3"); e(f"s_lshr_b32 s{sP}, s{sW}, 2")
    e(f"v_lshrrev_b32 v{vS}, 4, v{vL}"); e(f"v_and_b32 v{vS+1}, 15, v{vL}")
    e(f"v_xor_b32 v{vS+2}, v{vS}, v{vS+1}"); e(f"v_lshlrev_b32 v{vS+2}, 4, v{vS+2}")
    e(f"v_lshl_add_u32 v{vXD}, v{vS}, 10, v{vS+2}")
    for i in range(1, 4): e(f"v_xor_b32 v{vXD+i}, {4096*i + 64*i}, v{vXD}")
    e(f"s_lshl_b32 s{sXB}, s{sRB}, 17"); e(f"s_lshl_b32 s{sT0}, s{sW}, 14"); e(f"s_add_u32 s{sXB}, s{sXB}, s{sT0}")
    e(f"s_lshl_b32 s{sW4K}, s{sW}, 12")
    e(f"v_and_b32 v{vS+3}, 31, v{vL}")
    e(f"v_lshrrev_b32 v{vS+4}, 5, v{vL}")
    e(f"s_cmp_eq_u32 s{sTYPE}, 0")
    e("s_cbranch_scc1 K_SETQ")
    e(f"s_movk_i32 s{sPITCH}, 3584")
    e(f"s_mul_i32 s{sAUXO}, s{sC}, 448")
    e(f"s_and_b32 s{sT1}, s{sC}, 1")
    e(f"s_lshl_b32 s{sT2}, s{sT1}, 6"); e(f"s_add_u32 s{sCOL}, s{sAUXO}, s{sT2}")
    e(f"s_add_u32 s{sCOL+1}, s{sCOL}, 128"); e(f"s_add_u32 s{sCOL+2}, s{sCOL}, 256")
    e(f"s_lshl_b32 s{sT2}, s{sT1}, 9"); e(f"s_add_u32 s{sCOL+3}, s{sCOL}, 384"); e(f"s_sub_u32 s{sCOL+3}, s{sCOL+3}, s{sT2}")
    e(f"s_lshl_b32 s{sT2}, s{sP}, 6")
    e(f"v_lshl_add_u32 v{vAL}, v{vS+3}, 1, s{sT2}")
    e(f"s_mov_b32 s{SW+2}, {512*3584}"); e(f"s_movk_i32 s{SAUX+2}, 3584")
    e("s_branch K_SETD")
    e.label("K_SETQ")
    e(f"s_movk_i32 s{sPITCH}, 3072")
    e(f"s_lshl_b32 s{sCOL+2}, s{sC}, 7"); e(f"s_add_u32 s{sCOL}, s{sCOL+2}, 1024"); e(f"s_add_u32 s{sCOL+1}, s{sCOL+2}, 2048")
    e(f"v_lshrrev_b32 v{vS+5}, 4, v{vS+3}"); e(f"v_lshlrev_b32 v{vS+5}, 9, v{vS+5}")
    e(f"v_lshl_add_u32 v{vS+5}, v{vS+4}, 7, v{vS+5}"); e(f"v_lshl_add_u32 v{vS+5}, v{vS+1}, 1, v{vS+5}")
    e(f"s_lshl_b32 s{sT1}, s{sP}, 10"); e(f"v_add_u32 v{vAL}, s{sT1}, v{vS+5}")
    e(f"s_lshl_b32 s{sAUXO}, s{sC}, 11")
    e(f"s_mov_b32 s{SW+2}, {512*3072}"); e(f"s_movk_i32 s{SAUX+2}, {32*512}")
    e.label("K_SETD")
    e(f"s_mov_b32 s{SW+3}, 0x00020000"); e(f"s_mov_b32 s{SAUX+3}, 0x00020000")
    e(f"v_lshrrev_b32 v{vDMA}, 2, v{vL}"); e(f"v_mul_lo_u32 v{vDMA}, v{vDMA}, s{sPITCH}")
    e(f"v_and_b32 v{vS+5}, 3, v{vL}"); e(f"v_lshl_add_u32 v{vDMA}, v{vS+5}, 4, v{vDMA}")
    e(f"s_lshl_b32 s{sP16}, s{sPITCH}, 4")
    e(f"s_mul_i32 s{sWB}, s{sP16}, s{sW}"); e(f"s_add_u32 s{sWB}, s{sWB}, s{sCOL}")
    e(f"s_cmp_eq_u32 s{sTYPE}, 0")
    e("s_waitcnt lgkmcnt(0)")
    e(f"s_cselect_b64 {sr(SW,2)}, s[66:67], s[72:73]"); e(f"s_cselect_b64 {sr(SAUX,2)}, s[68:69], s[74:75]")
    srd(e, SX, 64, 65, 2048 * 1024)
    XBUF = (ZB, YB, YB + 0x8000, ZB)
    def sset(j):
        l = Lst()
        l(f"s_add_u32 s{sT0}, s{sROT}, {j};;s_and_b32 s{sT0}, s{sT0}, 3;;s_lshl_b32 s{sT1}, s{sT0}, 8;;s_add_u32 s{sT1}, s{sT1}, s{sXB};;"
          f"s_lshl_b32 s{sT0}, s{sT0}, 3;;s_mul_i32 s{sT0}, s{sT0}, s{sP16};;s_add_u32 s{sT0}, s{sT0}, s{sWB};;s_add_u32 s{sT2}, s{sT0}, 64;;s_lshr_b32 s{sT3}, s{sW4K}, 2")
        for i in range(4):
            l(f"s_add_u32 m0, s{sW4K}, {XBUF[j] + 1024*i};;s_nop 0;;buffer_load_dwordx4 v{vXD+i}, {sr(SX,4)}, s{sT1} offen lds")
        wo = 0x8000 * (j >> 1) + 8192 * (j & 1)
        l(f"s_add_u32 m0, s{sT3}, {wo};;s_nop 0;;buffer_load_dwordx4 v{vDMA}, {sr(SW,4)}, s{sT0} offen lds")
        l(f"s_add_u32 m0, s{sT3}, {wo + 0x4000};;s_nop 0;;buffer_load_dwordx4 v{vDMA}, {sr(SW,4)}, s{sT2} offen lds")
        return l
    wt = (f"s_lshr_b32 s{sT0}, s{sW}, 1;;s_cmp_lg_u32 s{sT0}, 1;;s_cbranch_scc1 K_NW;;s_cmp_eq_u32 s{sW}, 2;;"
          f"s_cselect_b64 s[92:93], s[72:73], s[66:67];;s_mov_b32 s{sT0}, {512*3584};;s_cselect_b32 s94, s{sT0}, {512*3072};;s_mov_b32 s95, 0x00020000;;"
          f"s_movk_i32 s{sT0}, 7168;;s_cselect_b32 s{sT0}, s{sT0}, 6144;;s_cselect_b32 s{sT1}, 56, 48;;s_mul_i32 s{sT0}, s{sT0}, s2;;"
          f"v_lshlrev_b32 v{vDUM}, 7, v{vL};;s_bfm_b64 exec, s{sT1}, 0;;buffer_load_dword v{vDUM}, v{vDUM}, s[92:95], s{sT0} offen;;s_mov_b64 exec, -1;;K_NW:")
    WTA = OPT.get("wta", 2)
    xt = (f"s_cmp_lg_u32 s{sW}, 1;;s_cbranch_scc1 K_NX;;s_lshl_b32 s{sT0}, s2, 13;;v_lshlrev_b32 v{vDUM}, 7, v{vL};;"
          f"buffer_load_dword v{vDUM}, v{vDUM}, {sr(SX,4)}, s{sT0} offen;;K_NX:")
    st("ka")
    if OPT.get("xta", 0) == 1: e(xt)
    if WTA == -2: e(wt)
    e.ext(sset(0))
    if OPT.get("xta", 0) == 2: e(xt)
    if WTA == -1: e(wt)
    st("i0")
    srd(e, SWS, 70, 71, 0x10000000)
    e(f"s_movk_i32 s{SDBG+2}, 256"); e(f"s_mov_b32 s{SDBG+3}, 0x00020000")
    e(f"s_lshl_b32 s{sRT}, s{sRB}, 2"); e(f"s_add_u32 s{sRT}, s{sRT}, s{sRG}")
    e(f"s_lshl_b32 s{sFLG}, s{sTYPE}, 4"); e(f"s_add_u32 s{sFLG}, s{sFLG}, s{sRB}"); e(f"s_lshl_b32 s{sFLG}, s{sFLG}, 3"); e(f"s_add_u32 s{sFLG}, s{sFLG}, s{sC}")
    e(f"s_lshl_b32 s{sFLG}, s{sFLG}, 10"); e(f"s_add_u32 s{sFLG}, s{sFLG}, {FLG_OFF}")
    e(f"s_and_b32 s{sISC}, s{sC}, 1"); e(f"s_xor_b32 s{sISC}, s{sISC}, s{sP}")
    e(f"v_lshlrev_b32 v{vL16}, 4, v{vL}")
    e(f"v_mov_b32 v{AUG+4}, 0"); e(f"v_mov_b32 v{AUG+5}, 0")
    e(f"s_lshl_b32 s{sIT}, s{sTYPE}, 3"); e(f"s_add_u32 s{sIT}, s{sIT}, s{sW}")
    e(f"s_cmp_lg_u32 s{sIT}, 15"); e("s_cbranch_scc1 K_NZ")
    e(f"v_lshlrev_b32 v{vS+2}, 3, v{vL}")
    e(f"buffer_store_dwordx2 {vr(AUG+4,2)}, v{vS+2}, {sr(SWS,4)}, s{sFLG} offen sc1")
    e(f"buffer_store_dwordx2 {vr(AUG+4,2)}, v{vS+2}, {sr(SWS,4)}, s{sFLG} offen offset:512 sc1")
    e.label("K_NZ")
    e(f"s_lshl_b32 s{sT0}, s{sW}, 7"); e(f"s_add_u32 s{sFLG}, s{sFLG}, s{sT0}")
    e(f"s_lshl_b32 s{sT0}, s{sROT}, 2"); e(f"s_add_u32 s{sT0}, s{sT0}, s{sW}"); e(f"s_and_b32 s{sT1}, s{sT0}, 15"); e(f"s_lshl_b32 s{sT1}, s{sT1}, 1")
    e(f"s_mul_i32 s{sROWO}, s{sT1}, s{sP16}")
    e(f"s_add_u32 s{sT0}, s{sT0}, 8"); e(f"s_and_b32 s{sT1}, s{sT0}, 15"); e(f"s_lshl_b32 s{sT1}, s{sT1}, 1")
    e(f"s_mul_i32 s{sJG}, s{sT1}, s{sP16}"); e(f"s_sub_u32 s{sJG}, s{sJG}, s{sROWO}"); e(f"s_sub_u32 s{sJG}, s{sJG}, s{sP16}")
    e(f"s_lshl_b32 s{sT4}, s{sW}, 11")
    sLB0 = sT4
    def guard(t):
        g = L("G"); return f"s_cbranch_vccz {g};;{t};;{g}:"
    def dma8(gd=False):
        l = []
        for i in range(4):
            jg, jl = (f"s{sJG}", "0x7c00") if i == 1 else (f"s{sP16}", "1024")
            l += [f"s_mov_b32 m0, s{sMA};;s_add_u32 s{sDB}, s{sDA}, 64;;buffer_load_dwordx4 v{vDMA}, {sr(SW,4)}, s{sDA} offen lds",
                  f"s_add_u32 m0, s{sMA}, 0x4000;;s_add_u32 s{sDA}, s{sDA}, {jg};;buffer_load_dwordx4 v{vDMA}, {sr(SW,4)}, s{sDB} offen lds;;s_add_u32 s{sMA}, s{sMA}, {jl}"]
        if not gd: return l
        l = []
        for i in range(4):
            jg, jl = (f"s{sJG}", "0x7c00") if i == 1 else (f"s{sP16}", "1024")
            g = L("G")
            l += [guard(f"s_mov_b32 m0, s{sMA};;s_add_u32 s{sDB}, s{sDA}, 64;;buffer_load_dwordx4 v{vDMA}, {sr(SW,4)}, s{sDA} offen lds"),
                  f"s_add_u32 m0, s{sMA}, 0x4000;;s_add_u32 s{sDA}, s{sDA}, {jg};;s_add_u32 s{sMA}, s{sMA}, {jl};;s_cmp_lg_u32 s{sLEV}, 0;;s_cbranch_scc1 {g};;"
                  f"buffer_load_dwordx4 v{vDMA}, {sr(SW,4)}, s{sDB} offen lds;;{g}:"]
        return l
    e(f"s_mov_b32 s{sONES}, 0x3f803f80"); e(f"s_mov_b32 s{sLO}, 0x00003f80"); e(f"s_mov_b32 s{sHI}, 0x3f800000")
    e(f"s_mov_b32 s{sMASK}, 0xffff0000")
    e(f"v_lshlrev_b32 v{vS+2}, 9, v{vS+4}")
    e(f"v_bfe_u32 v{vS}, v{vL}, 2, 2"); e(f"v_lshl_add_u32 v{vS+2}, v{vS}, 6, v{vS+2}")
    e(f"v_bfe_u32 v{vCSW}, v{vL}, 4, 1"); e(f"v_lshl_add_u32 v{vS+2}, v{vCSW}, 5, v{vS+2}")
    e(f"v_lshl_add_u32 v{vS+2}, v{vS+5}, 3, v{vS+2}")
    e(f"s_xor_b32 s{sT3}, s{sRG}, s{sP}"); e(f"s_lshl_b32 s{sT1}, s{sP}, 14")
    for k in range(4):
        e(f"s_xor_b32 s{sT0}, s{sT3}, {k}"); e(f"s_lshl_b32 s{sT0}, s{sT0}, 10"); e(f"s_add_u32 s{sT0}, s{sT0}, s{sT1}")
        e(f"v_add_u32 v{vTR+k}, s{sT0}, v{vS+2}")
    e(f"v_and_b32 v{vS}, 1, v{vS}"); e(f"v_cmp_eq_u32 vcc, v{vS}, v{vCSW}"); e(f"v_mov_b32 v{vS}, s{sONES}")
    e(f"v_cmp_gt_u32 {sr(sLT16,2)}, 16, v{vS+3}")
    for j in range(4): e(f"v_cndmask_b32 v{SELC+j}, 0, v{vS}, vcc")
    e(f"v_xor_b32 v{vS}, v{vS+4}, v{vS+1}"); e(f"v_lshlrev_b32 v{vS}, 4, v{vS}")
    e(f"v_lshl_add_u32 v{vS}, v{vS+3}, 8, v{vS}")
    e(f"s_lshl_b32 s{sT0}, s{sT3}, 5"); e(f"v_xor_b32 v{vS}, s{sT0}, v{vS}")
    e(f"s_lshl_b32 s{sT0}, s{sRG}, 13"); e(f"s_add_u32 s{sT0}, s{sT0}, {YB + 0x8000}"); e(f"v_add_u32 v{vFR}, s{sT0}, v{vS}")
    for s in range(1, 8): e(f"v_xor_b32 v{vFR+s}, {32*s}, v{vFR}")
    e(f"s_lshl_b32 s{sT0}, s{sP}, 9"); e(f"s_add_u32 s{sT0}, s{sT0}, {CSX}")
    e(f"v_lshl_add_u32 v{vCSR}, v{vS+3}, 4, s{sT0}")
    e(f"s_lshl_b32 s{sT0}, s{sRG}, 2"); e(f"v_add_u32 v{vCSW}, s{sT0}, v{vCSR}")
    e(f"v_mov_b32 v{vQ}, 0"); e(f"v_mov_b32 v{vQ+1}, 0")
    def auxl(lbl):
        t = f"s_cmp_eq_u32 s{sTYPE}, 0;;s_cbranch_scc1 {lbl}Q"
        for i in range(4): t += f";;buffer_load_ushort v{vAUX+i}, v{vAL}, {sr(SAUX,4)}, s{sCOL+i} offen"
        t += f";;s_branch {lbl}D;;{lbl}Q:"
        for j in range(8):
            d = (j & 3) + 8 * (j >> 2)
            t += f";;buffer_load_ushort v{vAUX+j}, v{vAL}, {sr(SAUX,4)}, s{sAUXO} offen offset:{32*d}"
        t += f";;{lbl}D:"
        return t
    if OPT.get("x_p2only"):
        e("s_waitcnt vmcnt(0)"); e("s_barrier")
        e(f"s_cmp_eq_u32 s{sISC}, 0"); e("s_cbranch_scc1 K_FIN")
        e("s_branch K_FTAIL")
    st("su")
    e.ext(sset(1))
    st("i1")

    def wrd(s):
        b = WB + 4 * (s % NWB); o = 1024 * (s & 12) + 0x8000 * (s >> 4)
        return [f"ds_read_b64_tr_b16 {vr(b,2)}, v{vTR+(s&3)} offset:{o}", f"ds_read_b64_tr_b16 {vr(b+2,2)}, v{vTR+(s&3)} offset:{o+256}"]
    def csm(s):
        return f"{M16} {vr(CS,4)}, {vr(SELC,4)}, {vr(WB+4*(s%NWB),4)}, {'0' if s == 0 else vr(CS,4)}"
    XO = (0x8000, 0, 0x8000, 0x8000)
    def rd(s):
        return [f"ds_read_b128 {vr(XF+4*s,4)}, v{vFR+(s&7)} offset:{XO[s>>3]}"] + wrd(s)
    VM = {0: 6, 1: 6, 2: 10, 3: 8, 4: 63}
    def sync(k):
        l = [f"s_waitcnt vmcnt({VM[k]}) lgkmcnt(0)", "s_barrier"]
        st(f"sync{k}", l)
        if k == 1: l += [f"v_subrev_u32 v{vFR+t}, 0x8000, v{vFR+t}" for t in range(8)]
        if k == 3: l += [f"v_add_u32 v{vFR+t}, 0x8000, v{vFR+t}" for t in range(8)]
        return l
    G = []
    g0 = sync(0)
    for s_ in range(4): g0 += rd(s_)
    G.append(g0)
    for s_ in range(32):
        g = []
        if s_ % 8 == 4: g += sync(s_ // 8 + 1)
        if s_ + 4 < 32: g += rd(s_ + 4)
        if s_ % 8 < 4: g.append(f"s_waitcnt lgkmcnt(12)")
        d = EACC if s_ == 31 else ACC
        g.append(f"{MFMA} {vr(d,16)}, {vr(WB+4*(s_%NWB),4)}, {vr(XF+4*s_,4)}, {'0' if s_ == 0 else vr(ACC,16)}")
        if s_ % 4 == 0: g.append(csm(s_))
        if s_ % 2 == 0:
            g.append(f"{M16} {vr(RS,4)}, {vr(SELC,4)}, {vr(XF+4*s_,4)}, {'0' if s_ == 0 else vr(RS,4)}")
            for r in range(4): g.append(f"v_dot2c_f32_bf16 v{vQ+(r&1)}, v{XF+4*s_+r}, v{XF+4*s_+r}")
        G.append(g)
    d8 = dma8()
    if WTA == 0: e(wt)
    e.ext(interleave(G[0:5], sset(2) + ([wt] if WTA == 1 else []), 0, 4))
    e.ext(interleave(G[5:13], sset(3) + [auxl("K_AUX")] + ([wt] if WTA == 2 else []), 0, 6))
    e(f"s_add_u32 s{sDA}, s{sROWO}, s{sCOL+1}"); e(f"s_add_u32 s{sMA}, s{sLB0}, {YB}")
    e.ext(interleave(G[13:21], d8[:4], 0, 4))
    pf = f"s_cmp_eq_u32 s{sTYPE}, 0;;s_cbranch_scc1 K_NPF;;" + ";;".join(f"v_mov_b32 v{EACC+j}, -1" for j in range(4))
    pf += (f";;s_lshl_b32 s{sT0}, s{sRB}, 3;;s_add_u32 s{sT0}, s{sT0}, s{sC};;s_lshl_b32 s{sT0}, s{sT0}, 14;;s_lshl_b32 s{sT1}, s{sW}, 10;;s_add_u32 s{sT2}, s{sT0}, s{sT1};;"
           f"s_add_u32 s{sT2}, s{sT2}, {KVP_OFF};;buffer_store_dwordx4 {vr(EACC,4)}, v{vL16}, {sr(SWS,4)}, s{sT2} offen sc1;;"
           f"s_lshl_b32 s{sT0}, s{sRT}, 15;;s_lshl_b32 s{sT1}, s{sC}, 12;;s_add_u32 s{sT0}, s{sT0}, s{sT1};;s_lshl_b32 s{sT1}, s{sP}, 11;;s_add_u32 s{sT0}, s{sT0}, s{sT1};;"
           f"s_add_u32 s{sT0}, s{sT0}, {PQ_OFF};;buffer_store_dwordx4 {vr(EACC,4)}, v{vL16}, {sr(SWS,4)}, s{sT0} offen sc1;;"
           f"buffer_store_dwordx4 {vr(EACC,4)}, v{vL16}, {sr(SWS,4)}, s{sT0} offen offset:1024 sc1;;"
           f"s_cmp_lg_u32 s{sW}, 7;;s_cbranch_scc1 K_NPF;;s_lshl_b32 s{sT0}, s{sC}, 4;;s_add_u32 s{sT0}, s{sT0}, s{sRB};;s_lshl_b32 s{sT0}, s{sT0}, 9;;"
           f"s_add_u32 s{sT0}, s{sT0}, {KVZ_OFF};;s_mov_b32 exec_hi, 0;;buffer_store_dwordx4 {vr(EACC,4)}, v{vL16}, {sr(SWS,4)}, s{sT0} offen sc1;;"
           f"buffer_store_dwordx4 {vr(EACC,4)}, v{vL16}, {sr(SWS,4)}, s{sT2} offen offset:1024 sc1;;s_mov_b32 exec_hi, -1;;K_NPF:")
    e.ext(interleave(G[21:], d8[4:] + [pf], 0, 5))
    e("s_nop 2")
    e(f"v_add_f32 v{vQ}, v{vQ}, v{vQ+1}")
    e(f"v_and_b32 v{vS+3}, 31, v{vL}")
    e(f"v_mov_b32 v{vQ+1}, v{vQ}")
    e(f"s_lshl_b32 s{sT0}, s{sW}, 8"); e(f"s_add_u32 s{sT0}, s{sT0}, {STAT}")
    e(f"v_lshl_add_u32 v{vS+2}, v{vS+3}, 3, s{sT0}")
    e(f"v_permlane32_swap_b32 v{vQ}, v{vQ+1}")
    e(f"v_add_f32 v{RS+1}, v{vQ}, v{vQ+1}")
    e(f"ds_write_b32 v{vCSW}, v{CS}")
    e(f"ds_write_b64 v{vS+2}, {vr(RS,2)}")
    e(f"v_lshlrev_b32 v{vS+4}, 2, v{vS+3}"); e(f"v_add_u32 v{vS+4}, {GSY:#x}, v{vS+4}"); e(f"ds_write_b32 v{vS+4}, v{AUG+4}")
    e(f"v_xor_b32 v{vS+2}, 1024, v{vS+2}")
    for k in range(4): e(f"v_xor_b32 v{vTR+k}, 0x10000, v{vTR+k}")
    e(f"v_xor_b32 v{vCSW}, 1024, v{vCSW}")
    e("s_waitcnt vmcnt(0) lgkmcnt(0)")
    e("s_barrier")
    st("r0end")
    e(f"s_cmp_lg_u32 s{sIT}, 15"); e("s_cbranch_scc1 K_NA")
    e(f"s_and_b32 s{sT0}, s2, 1"); e(f"s_lshl_b32 s{sT0}, s{sT0}, 7")
    e(f"v_mov_b32 v{vDUM}, 1")
    e("s_mov_b64 exec, 1")
    e(f"buffer_atomic_add v{vDUM}, v{AUG+4}, {sr(SDBG,4)}, s{sT0} offen sc1")
    e("s_mov_b64 exec, -1")
    e.label("K_NA")
    e(f"ds_read_b64 {vr(vS,2)}, v{vS+2}")
    e(f"v_cmp_gt_u32 vcc, 32, v{vL}")
    e(f"s_cmp_eq_u32 s{sW}, 7"); e(f"s_cselect_b32 s{sIT}, 0, 64")
    e("s_waitcnt lgkmcnt(0)")
    a, b = vS, vS + 1
    e(f"v_add_f32 v{a}, v{a}, v{RS}"); e(f"v_add_f32 v{b}, v{b}, v{RS+1}")
    e(f"v_mul_f32 v{a}, {f2u(-1.0/512):#x}, v{a}"); e(f"v_mul_f32 v{b}, {f2u(1.0/512):#x}, v{b}")
    e(f"v_fma_f32 v{b}, -v{a}, v{a}, v{b}"); e(f"v_cvt_pk_bf16_f32 v{AUG+2}, v{a}, v{a}")
    e(f"v_max_f32 v{b}, 0, v{b}")
    e(f"v_cvt_pk_bf16_f32 v{b}, v{b}, v{b}"); e(f"v_and_b32 v{b}, s{sMASK}, v{b}")
    e(f"v_add_f32 v{b}, {f2u(1e-5):#x}, v{b}"); e(f"v_cvt_pk_bf16_f32 v{b}, v{b}, v{b}")
    e(f"v_and_b32 v{b}, s{sMASK}, v{b}"); e(f"v_sqrt_f32 v{b}, v{b}")
    e(f"v_cndmask_b32 v{AUG+2}, 0, v{AUG+2}, vcc")
    e(f"v_cvt_pk_bf16_f32 v{AUG+3}, v{a}, v{b}")
    e(f"v_and_b32 v{b}, s{sMASK}, v{AUG+3}")
    e(f"v_rcp_f32 v{a}, v{b}")
    e(f"v_cndmask_b32 v{AUG+3}, 0, v{AUG+3}, vcc")

    APOLL = f"v_lshlrev_b32 v{vS+4}, 7, v{vL};;s_mov_b64 exec, 3;;buffer_load_dword v{vS+5}, v{vS+4}, {sr(SDBG,4)}, 0 offen sc1;;s_mov_b64 exec, -1"
    def apoll7():
        l2 = L("X")
        e(f"s_cmp_lg_u32 s{sW}, 7"); e(f"s_cbranch_scc1 {l2}")
        e(APOLL)
        e.label(l2)
    def r2_check(n=1):
        l2 = L("X")
        e(f"s_cmp_lg_u32 s{sW}, 7"); e(f"s_cbranch_scc1 {l2}")
        e(f"s_waitcnt vmcnt({n})")
        check([(APOLL, vS + 5, 3, 64)])
        e.label(l2)
    def publish(lev, vt):
        if OPT.get("x_nopub"): return "s_nop 0"
        return (f"v_mov_b32 v{vt}, {lev};;v_lshlrev_b32 v{vDUM}, 2, v{vL};;s_mov_b32 exec_hi, 0;;"
                f"buffer_store_dword v{vt}, v{vDUM}, {sr(SWS,4)}, s{sFLG} offen sc1;;s_mov_b32 exec_hi, -1")
    def midpub(n, lev, vt):
        a_, b_ = L("P"), L("P")
        return f"s_cbranch_vccz {a_};;s_waitcnt vmcnt({n});;s_branch {b_};;{a_}:;;s_waitcnt vmcnt(0);;{b_}:;;" + publish(lev, vt)
    def mgroups(swap=False, pre=()):
        PF = NWB - 1
        G = []
        g0 = [f"ds_read_b128 {vr(PK,4)}, v{vCSR}"] + list(pre)
        for s in range(PF): g0 += wrd(s)
        G.append(g0)
        for s in range(32):
            g = []
            if s + PF < 32: g += wrd(s + PF)
            g.append(f"s_waitcnt lgkmcnt({2 * min(PF, 31 - s)})")
            w, x = vr(WB + 4 * (s % NWB), 4), vr(XF + 4 * s, 4)
            a, b = (x, w) if swap else (w, x)
            d = EACC if s == 31 else ACC
            g.append(f"{MFMA} {vr(d,16)}, {a}, {b}, {'0' if s == 0 else vr(ACC,16)}")
            if s % 4 == 0: g.append(csm(s))
            G.append(g)
        return G
    def aug(bias=None, swap=False):
        l = Lst()
        c, t = PK, PK + 1
        l(f"v_add_f32 v{PK}, v{PK}, v{PK+1}"); l(f"v_add_f32 v{PK+2}, v{PK+2}, v{PK+3}"); l(f"v_add_f32 v{c}, v{PK}, v{PK+2}")
        l(f"v_cvt_pk_bf16_f32 v{t}, v{c}, v{c}"); l(f"v_and_b32 v{t}, s{sMASK}, v{t}"); l(f"v_sub_f32 v{t}, v{c}, v{t}")
        l(f"v_cvt_pk_bf16_f32 v{AUG}, v{c}, v{t}"); l(f"v_and_b32 v{c}, s{sMASK}, v{AUG}"); l(f"v_sub_f32 v{t}, v{t}, v{c}")
        l(f"v_cvt_pk_bf16_f32 v{AUG+1}, v{t}, {'v%d' % bias if bias is not None else '0'}")
        a, b = (vr(AUG+2,4), vr(AUG,4)) if swap else (vr(AUG,4), vr(AUG+2,4))
        l(f"s_nop 1;;{MFMA} {vr(EACC,16)}, {a}, {b}, {vr(EACC,16)}")
        for i in range(6): l("s_nop 1")
        return l
    def round_toggle():
        e(f"ds_write_b32 v{vCSW}, v{CS}")
        for k in range(4): e(f"v_xor_b32 v{vTR+k}, 0x10000, v{vTR+k}")
        e(f"v_xor_b32 v{vCSW}, 1024, v{vCSW}"); e(f"v_xor_b32 v{vCSR}, 1024, v{vCSR}")

    ROW = [YB + 0x4000, YB + 0x6000, YB + 0xC000, YB + 0xE000, 0x22000, 0x24000, 0x26000] + [0x2000 * k for k in range(6)]
    NL, NE, NW1 = len(ROW), 7, OPT.get("nw1", 4)
    sE1, sE2, SWE = 68, 69, 64
    sA0, sA1, sWK, sLB, sP0, sP1, sKV, sWO_, sXO, sXO2, sPF, sCNT = 30, 33, 43, 34, 51, 52, 53, 54, 55, 56, 57, 3
    SW2, SWO = SW, SAUX
    vTR0, vTR1, vXO, vPA = 4, 5, 6, vS + 2
    ND = vS + 3
    sEA = sWB
    order = [0, 1, 2, 3, 16, 17, 18, 19, 4, 5, 6, 7, 20, 21, 22, 23, 8, 9, 10, 11, 24, 25, 26, 27, 12, 13, 14, 15]
    def wdma(i):
        lo = ROW[i % NL]
        S, base, off = (SW2, sWK, order[i] * 16384) if i < 28 else (SWO, sWO_, (i - 28) * 16384)
        return [f"s_add_u32 m0, s{sLB}, {lo + 1024*k};;s_add_u32 s{sT0}, s{base}, {off + 8192*k};;buffer_load_dwordx4 v{vDMA}, {sr(S,4)}, s{sT0} offen lds" for k in range(2)]
    def erow(i, vd):
        return f"s_add_u32 m0, s{sE1}, {ROW[i]};;s_add_u32 s{sT0}, s{sE2}, {order[i]*16384};;buffer_load_dwordx4 v{vd}, {sr(SWE,4)}, s{sT0} offen lds"
    def dmalane(vd, t0, t1):
        e(f"v_lshrrev_b32 v{vd}, 3, v{vL}"); e(f"v_lshlrev_b32 v{vd}, 10, v{vd}")
        e(f"v_and_b32 v{t0}, 7, v{vL}"); e(f"v_bfe_u32 v{t1}, v{vL}, 4, 1"); e(f"v_lshlrev_b32 v{t1}, 2, v{t1}")
        e(f"v_xor_b32 v{t1}, v{t0}, v{t1}"); e(f"v_lshl_add_u32 v{vd}, v{t1}, 4, v{vd}")
    def cbcalc():
        if OPT.get("cbmap", 0) == 0:
            e(f"s_lshr_b32 s{sT1}, s{sIDX}, 2"); e(f"s_lshl_b32 s{sT1}, s{sT1}, 7")
        else:
            e(f"s_lshr_b32 s{sT1}, s{sIDX}, 3"); e(f"s_lshl_b32 s{sT0}, s{sTYPE}, 2"); e(f"s_add_u32 s{sT1}, s{sT1}, s{sT0}"); e(f"s_lshl_b32 s{sT1}, s{sT1}, 7")
    def p2_setup():
        e(f"s_cmp_lg_u32 s{sISC}, 0"); e("s_cselect_b64 vcc, -1, 0")
        srd(e, SW2, 96, 97, 1792 * 1024)
        srd(e, SWO, 98, 99, 512 * 1024)
        cbcalc()
        e(f"s_lshl_b32 s{sWO_}, s{sRG}, 17"); e(f"s_add_u32 s{sWO_}, s{sWO_}, s{sT1}")
        e(f"v_lshrrev_b32 v{vXO}, 3, v{vL}"); e(f"v_lshlrev_b32 v{vXO}, 10, v{vXO}")
        e(f"v_and_b32 v{vTR0}, 7, v{vL}"); e(f"v_bfe_u32 v{vTR1}, v{vL}, 4, 1"); e(f"v_lshlrev_b32 v{vTR1}, 2, v{vTR1}")
        e(f"v_xor_b32 v{vTR1}, v{vTR0}, v{vTR1}"); e(f"v_lshl_add_u32 v{vDMA}, v{vTR1}, 4, v{vXO}")
        e(f"v_lshl_add_u32 v{vXO}, v{vTR0}, 4, v{vXO}")
    def early_scalars():
        e(f"s_lshr_b32 s{sT1}, s{sC}, 2"); e(f"s_lshl_b32 s{sT2}, s{sRB}, 1"); e(f"s_add_u32 s{sT2}, s{sT2}, s{sT1}")
        e(f"s_mul_i32 s{sA0}, s{sT2}, {2*114688}"); e(f"s_mul_i32 s{sT0}, s{sRG}, {28*1024}")
        e(f"s_add_u32 s{sA0}, s{sA0}, s{sT0}"); e(f"s_add_u32 s{sA1}, s{sA0}, 114688")
        e(f"s_lshl_b32 s{sPF}, s{sRT}, 11"); e(f"s_lshl_b32 s{sT0}, s{sT1}, 8")
        e(f"s_add_u32 s{sPF}, s{sPF}, s{sT0}"); e(f"s_add_u32 s{sPF}, s{sPF}, {FLG_OFF + 128*1024}")
        e(f"s_cmp_lg_u32 s{sISC}, 0"); e(f"s_cselect_b32 s{sEA}, 1, 64")
        cbcalc()
        e(f"s_mul_i32 s{sWK}, s{sRG}, {448*1024}"); e(f"s_add_u32 s{sWK}, s{sWK}, s{sT1}")
        e(f"s_lshl_b32 s{sLB}, s{sRG}, 11")
        e(f"s_lshl_b32 s{sT0}, s{sP}, 10"); e(f"s_add_u32 s{sE1}, s{sLB}, s{sT0}")
        e(f"s_lshl_b32 s{sT0}, s{sP}, 13"); e(f"s_add_u32 s{sE2}, s{sWK}, s{sT0}")
        srd(e, SWE, 96, 97, 1792 * 1024)
    def poll_addr():
        e(f"v_lshrrev_b32 v{vPA}, 1, v{vL}"); e(f"v_lshlrev_b32 v{vPA}, 9, v{vPA}")
        e(f"v_and_b32 v{ND}, 1, v{vL}"); e(f"v_lshl_add_u32 v{vPA}, v{ND}, 7, v{vPA}")
    FPOLL = f"s_mov_b64 exec, 0xff;;buffer_load_dword v{ND}, v{vPA}, {sr(SWS,4)}, s{sPF} offen sc1;;s_mov_b64 exec, -1"
    def checkt(items, spin=SPIN):
        if OPT.get("x_nochk"): return "s_nop 0"
        top, ok = L("C"), L("C")
        t = [f"s_mov_b32 s{sCNT}, 0", f"{top}:"]
        for k, (pt, reg, msk, thr) in enumerate(items):
            t += [f"s_movk_i32 s{sT1}, {thr}", f"v_cmp_gt_u32 s[62:63], s{sT1}, v{reg}", "s_nop 0"]
            if k == 0: t.append(f"s_and_b32 s{sT0}, s62, {msk:#x}")
            else: t += [f"s_and_b32 s{sT1}, s62, {msk:#x}", f"s_or_b32 s{sT0}, s{sT0}, s{sT1}"]
        t += [f"s_cbranch_scc0 {ok}", "s_sleep 8"]
        t += [pt for (pt, reg, msk, thr) in items]
        t += [f"s_add_u32 s{sCNT}, s{sCNT}, 1", f"s_cmp_lt_u32 s{sCNT}, {spin}", "s_waitcnt vmcnt(0)", f"s_cbranch_scc1 {top}", f"{ok}:"]
        if OPT.get("cnt"): t += [f"s_mul_i32 s91, s91, 10", f"s_min_u32 s{sT0}, s{sCNT}, 9", f"s_add_u32 s91, s91, s{sT0}"]
        return ";;".join(t)
    def check(items): e(checkt(items))
    def sentinel(R, n, vt, reload):
        top, ok = L("V"), L("V")
        t = [f"s_mov_b32 s{sCNT}, 0", f"{top}:", f"v_max_u32 v{vt}, v{R}, v{R+1}"]
        t += [f"v_max3_u32 v{vt}, v{vt}, v{R+k}, v{R+k+1}" for k in range(2, n, 2)]
        t += [f"v_cmp_eq_u32 vcc, -1, v{vt}", "s_nop 0", "s_cmp_eq_u64 vcc, 0", f"s_cbranch_scc1 {ok}", "s_sleep 8", reload,
              f"s_add_u32 s{sCNT}, s{sCNT}, 1", f"s_cmp_lt_u32 s{sCNT}, {SPIN // 8}", "s_waitcnt vmcnt(0)", f"s_cbranch_scc1 {top}", f"{ok}:"]
        if OPT.get("cnt"): t += [f"s_mul_i32 s91, s91, 10", f"s_min_u32 s{sT0}, s{sCNT}, 9", f"s_add_u32 s91, s91, s{sT0}"]
        return ";;".join(t)
    RING, NU, NA = 128, 12, OPT.get("na", 8)
    unit = [i % NU for i in range(36)]
    ASC = "" if OPT.get("x_plain") else "sc1"
    def aload(i):
        R = RING + 8 * unit[i]; t = ""
        ks, b0, b1 = (order[i], sA0, sA1) if i < 28 else (i - 28, sP0, sKV)
        if i % 4 == 0: t = f"s_add_u32 s{sT3}, s{b0}, {1024*ks};;s_add_u32 s{sT4}, s{b1}, {1024*ks};;"
        return [t + f"buffer_load_dwordx4 {vr(R,4)}, v{vL16}, {sr(SWS,4)}, s{sT3} offen offset:{1024*(ks&3)} {ASC}",
                f"buffer_load_dwordx4 {vr(R+4,4)}, v{vL16}, {sr(SWS,4)}, s{sT4} offen offset:{1024*(ks&3)} {ASC}"]
    def tail(E, lev, vt):
        l1 = [guard("s_waitcnt vmcnt(1);;" + checkt([(FPOLL, ND, 0xff, 1)]))]
        for i in range(NA): l1 += [guard(t) for t in aload(i)]
        l2 = []
        for i in range(NE, NE + NW1): l2 += [guard(t) for t in wdma(i)]
        E = list(E)
        h = int(len(E) * 0.5)
        return merge(E[:h], l1) + merge(E[h:], l2, 0.9)

    def l2pf(r, x=0):
        return (f"s_lshr_b32 s{sT0}, s{sIDX}, 3;;s_lshl_b32 s{sT0}, s{sT0}, 2;;s_and_b32 s{sT1}, s{sIDX}, 3;;s_add_u32 s{sT0}, s{sT0}, s{sT1};;s_lshl_b32 s{sT0}, s{sT0}, 3;;"
                f"s_xor_b32 s{sT1}, s{sW}, {x};;s_add_u32 s{sT0}, s{sT0}, s{sT1};;s_lshl_b32 s{sT1}, s2, 4;;s_add_u32 s{sT0}, s{sT0}, s{sT1};;s_and_b32 s{sT0}, s{sT0}, 127;;"
                f"s_mul_i32 s{sT0}, s{sT0}, 14336;;s_add_u32 s{sT0}, s{sT0}, {7168*r};;s_mov_b64 s[92:93], s[96:97];;s_mov_b32 s94, {1792*1024};;s_mov_b32 s95, 0x00020000;;"
                f"v_lshlrev_b32 v{vDUM}, 7, v{vL};;s_bfm_b64 exec, 56, 0;;buffer_load_dword v{vDUM}, v{vDUM}, s[92:95], s{sT0} offen;;s_mov_b64 exec, -1")
    L2 = OPT.get("l2pf", 0)
    early_scalars()
    e(f"s_cmp_eq_u32 s{sTYPE}, 0")
    e("s_cbranch_scc1 K_QKV")
    vSS, vPB = vAUX + 8, vAUX + 9
    k0 = -2.0 * math.sqrt(2.0 / math.pi) * math.log2(math.e)
    e(f"v_mov_b32 v{vSS}, v{vS+1}")
    e(f"v_mul_f32 v{vC1}, {f2u(k0):#x}, v{vS}")
    e(f"v_mul_f32 v{vC0}, v{vS}, v{vS}"); e(f"v_mul_f32 v{vC0}, v{vC0}, v{vC1}"); e(f"v_mul_f32 v{vC0}, {f2u(0.044715):#x}, v{vC0}")
    for i in range(4): e(f"v_lshlrev_b32 v{vAUX+i}, 16, v{vAUX+i}")
    e(f"s_mul_i32 s{sOUT}, s{sRT}, 114688"); e(f"s_lshl_b32 s{sT0}, s{sP}, 11"); e(f"s_add_u32 s{sOUT}, s{sOUT}, s{sT0}")
    e(f"s_mov_b32 s{sSLOT}, 0"); e(f"s_mov_b32 s{sLEV}, 0")
    e("s_mov_b64 vcc, -1")
    for j in range(4): e(f"v_mov_b32 v{PK+4+j}, -1")
    vD2 = vAUX + 10
    dmalane(vD2, vS + 2, vS + 3)
    poll_addr()
    e(f"s_and_b32 s{sAUXO}, s{sC}, 1"); e(f"s_lshl_b32 s{sAUXO}, s{sAUXO}, 6")
    def gelu():
        l = aug(bias=vAUX)
        for half in range(2):
            rng = range(8 * half, 8 * half + 8)
            for i in rng: l(f"v_mul_f32 v{TMP+i}, v{EACC+i}, v{EACC+i}")
            for i in rng: l(f"v_fma_f32 v{TMP+i}, v{TMP+i}, v{vC0}, v{vC1}")
            for i in rng: l(f"v_mul_f32 v{TMP+i}, v{EACC+i}, v{TMP+i}")
            for i in rng: l(f"v_exp_f32 v{TMP+i}, v{TMP+i}")
            for i in rng: l(f"v_fma_f32 v{TMP+i}, v{TMP+i}, v{vSS}, v{vSS}")
            for i in rng: l(f"v_rcp_f32 v{TMP+i}, v{TMP+i}")
            for i in rng: l(f"v_mul_f32 v{TMP+i}, v{EACC+i}, v{TMP+i}")
            for i in range(4): l(f"v_cvt_pk_bf16_f32 v{PK+8+4*half+i}, v{TMP+8*half+2*i}, v{TMP+8*half+2*i+1}")
            l(f"buffer_store_dwordx4 {vr(PK+8+4*half,4)}, v{vL16}, {sr(SWS,4)}, s{sST} offen offset:{1024*half} {STF}")
        return l
    e.label("K_FLOOP")
    e(f"s_lshl_b32 s{sST}, s{sCOL}, 5"); e(f"s_add_u32 s{sST}, s{sST}, s{sOUT}")
    e(f"s_add_u32 s{sDA}, s{sROWO}, s{sCOL+2}"); e(f"s_add_u32 s{sMA}, s{sLB0}, s{sSLOT}")
    e(f"s_mul_i32 s{sT0}, s{sAUXO}, s{sLEV}"); e(f"s_add_u32 s{sDA}, s{sDA}, s{sT0}")
    def eg(t):
        g = L("E"); return f"s_cmp_lg_u32 s{sLEV}, 1;;s_cbranch_scc1 {g};;{t};;{g}:"
    KR = OPT.get("kr", 3)
    mp = eg(f"s_waitcnt vmcnt({4 + KR});;" + publish(1, vPB))
    ep = (f"s_cmp_lg_u32 s{sLEV}, s{sIT};;s_cbranch_scc1 K_FE1;;" + APOLL + f";;K_FE1:;;s_cmp_lg_u32 s{sLEV}, s{sEA};;s_cbranch_scc1 K_FE2;;" + FPOLL + ";;K_FE2:")
    er = [eg(erow(i, vD2)) for i in range(NE)]
    for k in range(6):
        g = L("E"); r = 1 + k // 2
        cond = f"s_cmp_lg_u32 s{sLEV}, 0" if r < 3 else f"s_or_b32 s{sT0}, s{sLEV}, s{sISC}"
        er[k] += (f";;{cond};;s_cbranch_scc1 {g};;s_lshl_b32 s{sT0}, s{sCOL+r}, 5;;s_add_u32 s{sT0}, s{sT0}, s{sOUT};;"
                  f"buffer_store_dwordx4 {vr(PK+4,4)}, v{vL16}, {sr(SWS,4)}, s{sT0} offen offset:{1024*(k&1)} sc1;;{g}:")
    fl = merge(gelu(), dma8(True) + er[:KR] + [mp] + er[KR:], OPT.get("mpat", 52) / 100)
    fl.insert(int(len(fl) * OPT.get("epat", 85) / 100), ep)
    if L2 == 4: fl.insert(int(len(fl) * OPT.get("fl2at", 66) / 100), f"s_cmp_lg_u32 s{sLEV}, 0;;s_cbranch_scc1 K_FL2;;" + l2pf(1) + ";;K_FL2:")
    body = interleave(mgroups(), fl, 1, OPT.get("flast", 31))
    if OPT.get("y_nodma"): body = [i for i in body if " lds" not in i]
    if OPT.get("y_nocs"): body = [i for i in body if "16x16x32" not in i]
    if OPT.get("y_nonop"): body = [i for i in body if not i.startswith("s_nop")]
    if OPT.get("y_nost"): body = [i for i in body if not i.startswith("buffer_store")]
    if OPT.get("y_w2"):
        k = 0; nb = []
        for i in body:
            if i.startswith("s_waitcnt lgkmcnt"):
                k += 1
                if k % 2 == 0: continue
                n = int(i.split("(")[1][:-1]); i = f"s_waitcnt lgkmcnt({max(0, n-2)})"
            nb.append(i)
        body = nb
    e.ext(body)
    for lv in (0, 1, 2):
        if OPT["stamps"] and f"b{lv+1}" in SP:
            e(f"s_cmp_lg_u32 s{sLEV}, {lv}"); e(f"s_cbranch_scc1 K_FB{lv}"); st(f"b{lv+1}"); e.label(f"K_FB{lv}")
    e(f"s_mov_b32 s{sCOL}, s{sCOL+1}"); e(f"s_mov_b32 s{sCOL+1}, s{sCOL+2}"); e(f"s_mov_b32 s{sCOL+2}, s{sCOL+3}")
    e(f"v_mov_b32 v{vAUX}, v{vAUX+1}"); e(f"v_mov_b32 v{vAUX+1}, v{vAUX+2}"); e(f"v_mov_b32 v{vAUX+2}, v{vAUX+3}")
    e(f"s_xor_b32 s{sSLOT}, s{sSLOT}, 0x10000")
    e(f"s_add_u32 s{sLEV}, s{sLEV}, 1")
    round_toggle()
    e(f"s_cmp_eq_u32 s{sLEV}, 3"); e("s_cbranch_scc1 K_FR3")
    e(f"s_waitcnt vmcnt(2) lgkmcnt(0)")
    e(f"s_cmp_lg_u32 s{sLEV}, 1"); e("s_cbranch_scc1 K_FNX")
    r2_check()
    e.label("K_FNX")
    e("s_barrier")
    if OPT["stamps"] and "r1end" in SP:
        e(f"s_cmp_lg_u32 s{sLEV}, 1"); e("s_cbranch_scc1 K_FS1"); st("r1end"); e.label("K_FS1")
    e(f"s_cmp_eq_u32 s{sLEV}, 1"); e("s_cbranch_scc1 K_FLOOP")
    st("r2end")
    e("s_mov_b64 vcc, 0")
    if not OPT.get("x_skipe"):
        e(f"s_cmp_lg_u32 s{sISC}, 0"); e("s_cbranch_scc1 K_FTAIL")
        e(f"s_lshl_b32 s{sT0}, s{sP}, 14")
        for k in range(4): e(f"v_subrev_u32 v{vTR+k}, s{sT0}, v{vTR+k}")
        e(f"s_setprio {OPT.get('gprio', 2)}"); e("s_branch K_FLOOP")
    e("s_branch K_FTAIL")
    e.label("K_FR3")
    e(f"v_mov_b32 v{vS}, {GSY:#x}"); e(f"v_mov_b32 v{vS+1}, 1")
    e("s_waitcnt lgkmcnt(0)")
    e("s_mov_b64 exec, 1"); e(f"ds_add_u32 v{vS}, v{vS+1}"); e("s_mov_b64 exec, -1")
    e.label("K_FSP")
    e(f"ds_read_b32 v{vS+1}, v{vS}")
    e("s_waitcnt lgkmcnt(0)")
    e(f"v_readfirstlane_b32 s{sT0}, v{vS+1}")
    e("s_nop 3")
    e(f"s_cmp_lt_u32 s{sT0}, 4"); e("s_cbranch_scc1 K_FSP")
    e.label("K_FTAIL")
    e(f"ds_read_b128 {vr(PK,4)}, v{vCSR}")
    e(f"s_lshl_b32 s{sST}, s{sCOL}, 5"); e(f"s_add_u32 s{sST}, s{sST}, s{sOUT}")
    p2_setup()
    e("s_waitcnt lgkmcnt(0)")
    st("t0")
    e.ext(tail(gelu(), f"s{sLEV}", vPB))
    e("s_cbranch_vccnz K_P2")
    e("s_branch K_GFIN")

    e.label("K_QKV")
    WT, SEL, PHT0 = vAUX, vAUX + 4, vAUX + 4
    e(f"v_mul_f32 v{vC0}, {f2u(math.log2(math.e)):#x}, v{vS}")
    e(f"s_lshl_b32 s{sT0}, s{sW}, 7"); e(f"s_add_u32 s{sST}, s{sT0}, {RVO}")
    e(f"v_lshl_add_u32 v{vS+1}, v{vS+3}, 2, s{sST}")
    e(f"ds_write_b32 v{vS+1}, v{vS}")
    e(f"v_lshrrev_b32 v{vC1}, 5, v{vL}"); e(f"v_lshl_add_u32 v{vC1}, v{vC1}, 4, s{sST}")
    def qconst():
        l = Lst()
        for j in range(4): l(f"v_lshl_or_b32 v{WT+j}, v{vAUX+2*j+1}, 16, v{vAUX+2*j}")
        l(f"v_and_b32 v{vS+1}, 15, v{vL}"); l(f"v_lshrrev_b32 v{vS+4}, 5, v{vL}")
        l(f"v_lshlrev_b32 v{vS+4}, 2, v{vS+4}"); l(f"v_sub_u32 v{vS+4}, v{vS+1}, v{vS+4}")
        l(f"v_mov_b32 v{vS+2}, s{sLO}"); l(f"v_mov_b32 v{vS+3}, s{sHI}")
        for t, f0 in enumerate((0, 2, 8, 10)):
            l(f"v_cmp_eq_u32 vcc, {f0}, v{vS+4};;v_cmp_eq_u32 s[62:63], {f0+1}, v{vS+4};;s_nop 0;;"
              f"v_cndmask_b32 v{SEL+t}, 0, v{vS+2}, vcc;;v_cndmask_b32 v{SEL+t}, v{SEL+t}, v{vS+3}, s[62:63]")
        return l
    def softmax(isk):
        l = aug()
        A1, A2 = TMP, TMP + 4
        for j in range(4):
            l(f"v_cndmask_b32 v{A1+j}, 0, v{WT+j}, {sr(sLT16,2)}"); l(f"v_cndmask_b32 v{A2+j}, v{WT+j}, 0, {sr(sLT16,2)}")
        for i in range(8): l(f"v_cvt_pk_bf16_f32 v{PK+i}, v{EACC+2*i}, v{EACC+2*i+1}")
        l(f"s_nop 1;;{MFMA} {vr(EACC,16)}, {vr(A1,4)}, {vr(PK,4)}, 0;;{MFMA} {vr(EACC,16)}, {vr(A2,4)}, {vr(PK+4,4)}, {vr(EACC,16)}")
        for i in range(6): l("s_nop 1")
        for a in range(2):
            P = EACC + 8 * a
            mx, mn = vS, vS + 1
            l(f"v_max3_f32 v{mx}, v{P}, v{P+1}, v{P+2}"); l(f"v_max3_f32 v{mn}, -v{P}, -v{P+1}, -v{P+2}")
            l(f"v_max3_f32 v{mx}, v{mx}, v{P+3}, v{P+4}"); l(f"v_max3_f32 v{mn}, v{mn}, -v{P+3}, -v{P+4}")
            l(f"v_max3_f32 v{mx}, v{mx}, v{P+5}, v{P+6}"); l(f"v_max3_f32 v{mn}, v{mn}, -v{P+5}, -v{P+6}")
            l(f"v_max_f32 v{mx}, v{mx}, v{P+7}"); l(f"v_max_f32_e64 v{mn}, v{mn}, -v{P+7}")
            l("s_nop 1"); l(f"v_permlane32_swap_b32 v{mx}, v{mn}")
            l(f"v_max_f32 v{mx}, v{mx}, v{mn}")
            l(f"v_mul_f32_e64 v{mx}, -v{mx}, v{vC0}")
            l(f"v_mov_b32 v{mn}, v{mx}")
            l("s_nop 1"); l(f"v_permlane32_swap_b32 v{mx}, v{mn}")
            for j in range(8): l(f"v_fma_f32 v{TMP+j}, v{P+j}, v{vC0}, v{mx}")
            for j in range(8): l(f"v_fma_f32 v{TMP+8+j}, -v{P+j}, v{vC0}, v{mn}")
            for j in range(16): l(f"v_exp_f32 v{TMP+j}, v{TMP+j}")
            s0, s1, s2, s3 = vS + 2, vS + 3, vS + 4, vS + 5
            l(f"v_add_f32 v{s0}, v{TMP}, v{TMP+1}"); l(f"v_add_f32 v{s1}, v{TMP+8}, v{TMP+9}")
            l(f"v_add_f32 v{s2}, v{TMP+2}, v{TMP+3}"); l(f"v_add_f32 v{s3}, v{TMP+10}, v{TMP+11}")
            for j in (4, 6):
                l(f"v_add_f32 v{s0}, v{s0}, v{TMP+j}"); l(f"v_add_f32 v{s1}, v{s1}, v{TMP+8+j}")
                l(f"v_add_f32 v{s2}, v{s2}, v{TMP+j+1}"); l(f"v_add_f32 v{s3}, v{s3}, v{TMP+8+j+1}")
            l(f"v_add_f32 v{s0}, v{s0}, v{s2}"); l(f"v_add_f32 v{s1}, v{s1}, v{s3}")
            l("s_nop 1"); l(f"v_permlane32_swap_b32 v{s0}, v{s1}")
            l(f"v_add_f32 v{s0}, v{s0}, v{s1}")
            l(f"v_rcp_f32 v{s0}, v{s0}")
            l("s_nop 0"); l(f"v_mov_b32 v{s1}, v{s0}")
            l("s_nop 1"); l(f"v_permlane32_swap_b32 v{s0}, v{s1}")
            for j in range(8): l(f"v_mul_f32 v{TMP+j}, v{TMP+j}, v{s0}")
            for j in range(8): l(f"v_mul_f32 v{TMP+8+j}, v{TMP+8+j}, v{s1}")
            for j in range(8): l(f"v_cvt_pk_bf16_f32 v{PK+8*a+j}, v{TMP+2*j}, v{TMP+2*j+1}")
            if not isk:
                for i in range(2):
                    l(f"buffer_store_dwordx4 {vr(PK+8*a+4*i,4)}, v{vL16}, {sr(SWS,4)}, s{sOUT} offen offset:{2048*a+1024*i} {STF}")
        if isk:
            SP_, SM = EACC, EACC + 4
            for j in range(4):
                l(f"v_cndmask_b32 v{SP_+j}, 0, v{SEL+j}, {sr(sLT16,2)}"); l(f"v_cndmask_b32 v{SM+j}, v{SEL+j}, 0, {sr(sLT16,2)}")
            for a in range(2):
                l(f"s_nop 1;;{MFMA} {vr(TMP,16)}, {vr(PK+8*a,4)}, {vr(SP_,4)}, 0;;{MFMA} {vr(TMP,16)}, {vr(PK+8*a+4,4)}, {vr(SM,4)}, {vr(TMP,16)}")
                for i in range(6): l("s_nop 1")
                dst = PHT0 if a == 0 else PK + 8
                for j in range(8): l(f"v_cvt_pk_bf16_f32 v{dst+j}, v{TMP+2*j}, v{TMP+2*j+1}")
        return l
    def vepi():
        l = aug(swap=True)
        for i in range(16): l(f"v_mul_f32 v{EACC+i}, v{EACC+i}, v{TMP+i}")
        for i in range(8): l(f"v_cvt_pk_bf16_f32 v{PK+i}, v{EACC+2*i}, v{EACC+2*i+1}")
        for i in range(8):
            l(f"v_cndmask_b32 v{TMP+i}, 0, v{PK+i}, {sr(sLT16,2)}")
            l(f"v_cndmask_b32 v{TMP+8+i}, v{PK+i}, 0, {sr(sLT16,2)}")
        PHT = (PHT0, PK + 8)
        l("s_nop 1")
        for a in range(2):
            l(f"{MFMA} {vr(EACC,16)}, {vr(PHT[a],4)}, {vr(TMP+8*a,4)}, {'0' if a == 0 else vr(EACC,16)}")
            l(f"{MFMA} {vr(EACC,16)}, {vr(PHT[a]+4,4)}, {vr(TMP+8*a+4,4)}, {vr(EACC,16)}")
        for a in range(2):
            l(f"{M16} {vr(PK+4*a,4)}, {vr(SELC,4)}, {vr(PHT[a],4)}, 0;;{M16} {vr(PK+4*a,4)}, {vr(SELC,4)}, {vr(PHT[a]+4,4)}, {vr(PK+4*a,4)}")
        for i in range(4): l("s_nop 1")
        for q in range(4): l(f"ds_write_b128 v{vS+1}, {vr(EACC+4*q,4)} offset:{1024*q}")
        for a in range(2): l(f"ds_write_b32 v{vS}, v{PK+4*a} offset:{512*a}")
        return l
    e(f"s_add_u32 s{sDA}, s{sROWO}, s{sCOL+2}"); e(f"s_mov_b32 s{sMA}, s{sLB0}")
    tch = (f"s_cmp_ge_u32 s{sW}, 4;;s_cbranch_scc1 K_NT;;s_lshl_b32 s{sT2}, s{sRB}, 3;;s_add_u32 s{sT2}, s{sT2}, s{sC};;s_lshl_b32 s{sT2}, s{sT2}, 1;;"
           f"s_and_b32 s{sT0}, s{sW}, 1;;s_add_u32 s{sT2}, s{sT2}, s{sT0};;s_cmp_lt_u32 s{sW}, 2;;s_cselect_b64 {sr(SAUX,2)}, s[96:97], s[98:99];;"
           f"s_mov_b32 s{sT0}, {1792*1024};;s_cselect_b32 s{SAUX+2}, s{sT0}, {512*1024};;s_movk_i32 s{sT0}, 7168;;s_cselect_b32 s{sT0}, s{sT0}, 2048;;"
           f"s_cselect_b32 s{sT1}, 56, 16;;s_mul_i32 s{sT0}, s{sT0}, s{sT2};;v_lshlrev_b32 v{vDUM}, 7, v{vL};;s_bfm_b64 exec, s{sT1}, 0;;"
           f"buffer_load_dword v{vDUM}, v{vDUM}, {sr(SAUX,4)}, s{sT0} offen;;s_mov_b64 exec, -1;;K_NT:")
    flq = merge(qconst() + softmax(True), dma8() + [tch], 0.35)
    if L2 in (1, 3, 4, 5): flq.insert(int(len(flq) * OPT.get("l2at", 60) / 100), l2pf(0))
    if L2 == 2:
        flq.insert(int(len(flq) * 0.62), l2pf(1)); flq.insert(int(len(flq) * 0.45), l2pf(0))
    flq.insert(len(flq) - 30, f"s_cmp_lg_u32 s{sW}, 7;;s_cbranch_scc1 K_QAP;;" + APOLL + ";;K_QAP:")
    e.ext(interleave(mgroups(swap=True), flq, 1, 31))
    st("b1")
    round_toggle()
    e(f"s_lshl_b32 s{sT0}, s{sP}, 15"); e(f"s_lshl_b32 s{sT1}, s{sRG}, 12"); e(f"s_add_u32 s{sT0}, s{sT0}, s{sT1}"); e(f"s_add_u32 s{sT0}, s{sT0}, {YB}")
    e(f"v_add_u32 v{vS+1}, s{sT0}, v{vL16}")
    e(f"s_lshl_b32 s{sT0}, s{sP}, 10"); e(f"s_lshl_b32 s{sT1}, s{sRG}, 2"); e(f"s_add_u32 s{sT0}, s{sT0}, s{sT1}"); e(f"s_add_u32 s{sT0}, s{sT0}, {ZSC}")
    e(f"v_and_b32 v{vS}, 0x1f0, v{vL16}"); e(f"v_add_u32 v{vS}, s{sT0}, v{vS}")
    dmalane(vDMA, vS + 2, vS + 3)
    poll_addr()
    e(f"s_waitcnt vmcnt({1 if L2 >= 3 else 0}) lgkmcnt(0)")
    r2_check(0)
    e(f"s_cmp_lg_u32 s{sISC}, 0"); e("s_cselect_b64 vcc, -1, 0")
    e("s_barrier")
    st("r1end")
    MG = mgroups(pre=[f"ds_read_b128 {vr(TMP+4*q,4)}, v{vC1} offset:{32*q}" for q in range(4)])
    QP, QC = OPT.get("qp", 30), OPT.get("qc", 24)
    if L2 == 1: MG[1].append(l2pf(1))
    for i in range(NE): MG[2 + 2 * i].append(erow(i, vDMA))
    MG[QP].append("s_waitcnt vmcnt(1)")
    MG[QP].append(guard(FPOLL))
    if L2 == 3: MG[QP].append("s_cbranch_vccnz K_QL2;;" + l2pf(1) + ";;" + l2pf(1, 4) + ";;K_QL2:")
    VS = OPT.get("vs", 15)
    e.ext(interleave(MG[:VS+1], vepi(), 1, VS))
    e(f"s_lshl_b32 s{sT0}, s{sP}, 15"); e(f"s_lshl_b32 s{sT1}, s{sRG}, 10"); e(f"s_add_u32 s{sT0}, s{sT0}, s{sT1}"); e(f"s_add_u32 s{sT0}, s{sT0}, {YB}")
    e(f"v_add_u32 v{vS+1}, s{sT0}, v{vL16}")
    e(f"s_and_b32 s{sT2}, s{sRG}, 1"); e(f"s_lshl_b32 s{sT0}, s{sP}, 1"); e(f"s_add_u32 s{sT2}, s{sT2}, s{sT0}")
    e(f"s_lshl_b32 s{sT0}, s{sT2}, 9"); e(f"s_add_u32 s{sT0}, s{sT0}, {ZSC}")
    e(f"v_and_b32 v{vS}, 0x1f0, v{vL16}"); e(f"v_add_u32 v{vS}, s{sT0}, v{vS}")
    e(f"s_lshl_b32 s{sOUT}, s{sRB}, 17"); e(f"s_lshl_b32 s{sT0}, s{sC}, 14"); e(f"s_add_u32 s{sOUT}, s{sOUT}, s{sT0}"); e(f"s_add_u32 s{sOUT}, s{sOUT}, {KVP_OFF}")
    e(f"s_lshl_b32 s{sT2}, s{sT2}, 7"); e(f"s_add_u32 s{sT2}, s{sT2}, s{sOUT}"); e(f"s_add_u32 s{sT2}, s{sT2}, 8192")
    e(f"s_lshl_b32 s{sT0}, s{sW}, 10"); e(f"s_add_u32 s{sOUT}, s{sOUT}, s{sT0}")
    e("s_waitcnt lgkmcnt(0)"); e("s_barrier")
    for w in range(4): e(f"ds_read_b128 {vr(TMP+4*w,4)}, v{vS+1} offset:{4096*w}")
    e(f"ds_read_b128 {vr(PK,4)}, v{vS}")
    e(f"v_lshlrev_b32 v{vS+4}, 2, v{vL}")
    kr = Lst()
    for j in range(4): kr(f"v_add_f32 v{TMP+j}, v{TMP+j}, v{TMP+4+j}")
    for j in range(4): kr(f"v_add_f32 v{TMP+8+j}, v{TMP+8+j}, v{TMP+12+j}")
    for j in range(4): kr(f"v_add_f32 v{TMP+j}, v{TMP+j}, v{TMP+8+j}")
    kr(f"buffer_store_dwordx4 {vr(TMP,4)}, v{vL16}, {sr(SWS,4)}, s{sOUT} offen sc1")
    kr(f"v_add_f32 v{PK}, v{PK}, v{PK+1}"); kr(f"v_add_f32 v{PK+2}, v{PK+2}, v{PK+3}"); kr(f"v_add_f32 v{PK}, v{PK}, v{PK+2}")
    kr(f"s_cmp_ge_u32 s{sRG}, 2;;s_cbranch_scc1 K_QNZ;;s_mov_b32 exec_hi, 0;;buffer_store_dword v{PK}, v{vS+4}, {sr(SWS,4)}, s{sT2} offen sc1;;s_mov_b32 exec_hi, -1;;K_QNZ:")
    e.ext(interleave(MG[VS+1:], kr, 4, 6))
    st("b2")
    round_toggle()
    e("s_waitcnt lgkmcnt(0)")
    e("s_barrier")
    st("r2end")
    e(f"ds_read_b128 {vr(PK,4)}, v{vCSR}")
    p2_setup()
    PARK = 0xC000
    e(f"s_mul_i32 s{sT0}, s{sRG}, 3072"); e(f"s_add_u32 s{sT0}, s{sT0}, {PARK}")
    e(f"v_add_u32 v{vS+1}, s{sT0}, v{vL16}")
    e(f"s_lshl_b32 s{sT0}, s{sRG}, 2"); e(f"s_add_u32 s{sT0}, s{sT0}, {GSY+32}"); e(f"v_mov_b32 v{vS+4}, s{sT0}")
    e("s_waitcnt lgkmcnt(0)")
    lq = aug()
    lq += [f"v_cvt_pk_bf16_f32 v{PK+8+i}, v{EACC+2*i}, v{EACC+2*i+1}" for i in range(8)]
    e("s_cbranch_vccz K_QG")
    lq2 = lq + [f"ds_write_b128 v{vS+1}, {vr(PK+8,4)}", f"ds_write_b128 v{vS+1}, {vr(PK+12,4)} offset:1024", f"ds_write_b128 v{vS+1}, {vr(WT,4)} offset:2048"]
    lq2 += [f"v_mov_b32 v{vS+5}, 1;;s_waitcnt lgkmcnt(0);;ds_write_b32 v{vS+4}, v{vS+5}"]
    e("s_waitcnt vmcnt(0)"); check([(FPOLL, ND, 0xff, 1)])
    a16 = []
    for i in range(NA): a16 += aload(i)
    e.ext(merge(lq2, a16[:8])); e.ext(a16[8:])
    for i in range(NE, NE + NW1): e.ext(wdma(i))
    e("s_branch K_P2")

    e.label("K_QG")
    VBr, QBc, QB0, WT0, SPm, SMm, PHT0, RED, PHS, KVR = 128, 136, 144, 152, 96, 100, 104, 160, 192, 208
    vSL, vONE, vRS, vRD = 112, 113, vTR0, vTR1
    sU, sGI = sA0, sA1
    e(f"s_setprio {OPT.get('gprio', 2)}")
    e(f"v_mov_b32 v{vSL}, v{vS+1}"); e(f"v_mov_b32 v{vSL+2}, v{vS+4}")
    def softcore(src):
        l = Lst()
        A1, A2 = TMP, TMP + 4
        for j in range(4):
            l(f"v_cndmask_b32 v{A1+j}, 0, v{WT+j}, {sr(sLT16,2)}"); l(f"v_cndmask_b32 v{A2+j}, v{WT+j}, 0, {sr(sLT16,2)}")
        l(f"s_nop 1;;{MFMA} {vr(EACC,16)}, {vr(A1,4)}, {vr(src,4)}, 0;;{MFMA} {vr(EACC,16)}, {vr(A2,4)}, {vr(src+4,4)}, {vr(EACC,16)}")
        l("s_nop 11")
        for a in range(2):
            P = EACC + 8 * a
            mx, mn = vS, vS + 1
            l(f"v_max3_f32 v{mx}, v{P}, v{P+1}, v{P+2}"); l(f"v_max3_f32 v{mn}, -v{P}, -v{P+1}, -v{P+2}")
            l(f"v_max3_f32 v{mx}, v{mx}, v{P+3}, v{P+4}"); l(f"v_max3_f32 v{mn}, v{mn}, -v{P+3}, -v{P+4}")
            l(f"v_max3_f32 v{mx}, v{mx}, v{P+5}, v{P+6}"); l(f"v_max3_f32 v{mn}, v{mn}, -v{P+5}, -v{P+6}")
            l(f"v_max_f32 v{mx}, v{mx}, v{P+7}"); l(f"v_max_f32_e64 v{mn}, v{mn}, -v{P+7}")
            l("s_nop 1"); l(f"v_permlane32_swap_b32 v{mx}, v{mn}")
            l(f"v_max_f32 v{mx}, v{mx}, v{mn}")
            l(f"v_mul_f32_e64 v{mx}, -v{mx}, v{vC0}")
            l(f"v_mov_b32 v{mn}, v{mx}")
            l("s_nop 1"); l(f"v_permlane32_swap_b32 v{mx}, v{mn}")
            for j in range(8): l(f"v_fma_f32 v{TMP+j}, v{P+j}, v{vC0}, v{mx}")
            for j in range(8): l(f"v_fma_f32 v{TMP+8+j}, -v{P+j}, v{vC0}, v{mn}")
            for j in range(16): l(f"v_exp_f32 v{TMP+j}, v{TMP+j}")
            s0, s1, s2, s3 = vS + 2, vS + 3, vS + 4, vS + 5
            l(f"v_add_f32 v{s0}, v{TMP}, v{TMP+1}"); l(f"v_add_f32 v{s1}, v{TMP+8}, v{TMP+9}")
            l(f"v_add_f32 v{s2}, v{TMP+2}, v{TMP+3}"); l(f"v_add_f32 v{s3}, v{TMP+10}, v{TMP+11}")
            for j in (4, 6):
                l(f"v_add_f32 v{s0}, v{s0}, v{TMP+j}"); l(f"v_add_f32 v{s1}, v{s1}, v{TMP+8+j}")
                l(f"v_add_f32 v{s2}, v{s2}, v{TMP+j+1}"); l(f"v_add_f32 v{s3}, v{s3}, v{TMP+8+j+1}")
            l(f"v_add_f32 v{s0}, v{s0}, v{s2}"); l(f"v_add_f32 v{s1}, v{s1}, v{s3}")
            l("s_nop 1"); l(f"v_permlane32_swap_b32 v{s0}, v{s1}")
            l(f"v_add_f32 v{s0}, v{s0}, v{s1}")
            l(f"v_rcp_f32 v{s0}, v{s0}")
            l("s_nop 0"); l(f"v_mov_b32 v{s1}, v{s0}")
            l("s_nop 1"); l(f"v_permlane32_swap_b32 v{s0}, v{s1}")
            for j in range(8): l(f"v_mul_f32 v{TMP+j}, v{TMP+j}, v{s0}")
            for j in range(8): l(f"v_mul_f32 v{TMP+8+j}, v{TMP+8+j}, v{s1}")
            for j in range(8): l(f"v_cvt_pk_bf16_f32 v{PK+8*a+j}, v{TMP+2*j}, v{TMP+2*j+1}")
        return l
    def ldspin(lbl, areg, n):
        e.label(lbl)
        e(f"ds_read_b32 v{vS+5}, v{areg}"); e("s_waitcnt lgkmcnt(0)")
        e(f"v_readfirstlane_b32 s{sT0}, v{vS+5}"); e("s_nop 3")
        e(f"s_cmp_lt_u32 s{sT0}, {n}"); e(f"s_cbranch_scc1 {lbl}")
    e(f"s_lshl_b32 s{sU}, s{sC}, 4"); e(f"s_add_u32 s{sU}, s{sU}, s{sRB}"); e(f"s_lshl_b32 s{sU}, s{sU}, 1"); e(f"s_add_u32 s{sU}, s{sU}, s{sRG}")
    e(f"v_lshrrev_b32 v{vS+2}, 4, v{vL}"); e(f"v_and_b32 v{vS+3}, 15, v{vL}"); e(f"v_lshlrev_b32 v{vS+3}, 4, v{vS+3}")
    e(f"v_lshl_add_u32 v{vRD}, v{vS+2}, 2, v{vS+3}")
    vRS2 = vXO
    e(f"s_lshl_b32 s{sPF}, s{sC}, 14"); e(f"s_add_u32 s{sPF}, s{sPF}, {KVP_OFF}")
    e(f"s_cmp_eq_u32 s{sRG}, 0"); e("s_cbranch_scc0 K_GZA")
    e(f"s_and_b32 s{sT0}, s{sRB}, 8"); e(f"s_lshl_b32 s{sT0}, s{sT0}, 9"); e(f"s_add_u32 s{sPF}, s{sPF}, s{sT0}")
    e(f"s_and_b32 s{sT0}, s{sRB}, 2"); e(f"s_lshl_b32 s{sT0}, s{sT0}, 10"); e(f"s_add_u32 s{sPF}, s{sPF}, s{sT0}")
    e(f"s_and_b32 s{sT0}, s{sRB}, 1"); e(f"s_lshl_b32 s{sT0}, s{sT0}, 9"); e(f"s_add_u32 s{sPF}, s{sPF}, s{sT0}")
    e(f"s_and_b32 s{sT0}, s{sRB}, 4"); e(f"s_lshl_b32 s{sT0}, s{sT0}, 6"); e(f"s_add_u32 s{sPF}, s{sPF}, s{sT0}")
    e(f"v_lshl_add_u32 v{vRS}, v{vS+2}, 17, v{vS+3}"); e(f"v_add_u32 v{vRS2}, 1024, v{vRS}")
    e("s_branch K_GZB")
    e.label("K_GZA")
    e(f"s_lshr_b32 s{sT0}, s{sRB}, 1"); e(f"s_lshl_b32 s{sT0}, s{sT0}, 6"); e(f"s_add_u32 s{sPF}, s{sPF}, s{sT0}")
    e(f"s_and_b32 s{sT0}, s{sRB}, 1"); e(f"s_lshl_b32 s{sT0}, s{sT0}, 4"); e(f"s_add_u32 s{sPF}, s{sPF}, s{sT0}"); e(f"s_add_u32 s{sPF}, s{sPF}, 8192")
    e(f"v_lshlrev_b32 v{vRS}, 17, v{vS+2}"); e(f"v_add_u32 v{vRS2}, 32, v{vRS}")
    e.label("K_GZB")
    RLOAD = f"s_mov_b32 s{sT0}, s{sPF}"
    for u in range(4):
        RLOAD += f";;buffer_load_dwordx4 {vr(RED+8*u,4)}, v{vRS}, {sr(SWS,4)}, s{sT0} offen sc1;;buffer_load_dwordx4 {vr(RED+8*u+4,4)}, v{vRS2}, {sr(SWS,4)}, s{sT0} offen sc1"
        if u < 3: RLOAD += f";;s_add_u32 s{sT0}, s{sT0}, {4*131072}"
    e(f"s_cmp_ge_u32 s{sRG}, 2"); e("s_cbranch_scc1 K_GN0")
    e(RLOAD)
    e.label("K_GN0")
    e.ext(aug())
    for i in range(8): e(f"v_cvt_pk_bf16_f32 v{QBc+i}, v{EACC+2*i}, v{EACC+2*i+1}")
    vG, vG1, vG2 = 96, 97, 98
    e(f"v_mov_b32 v{vG}, {GSY:#x}"); e(f"v_mov_b32 v{vG1}, 1")
    red = ["s_waitcnt vmcnt(0)", sentinel(RED, 32, vG2, RLOAD), f"s_lshl_b32 s{sT0}, s{sU}, 8", f"s_add_u32 s{sT0}, s{sT0}, {KVZ_OFF}"]
    for stp in (16, 8): red += [f"v_add_f32 v{RED+j}, v{RED+j}, v{RED+stp+j}" for j in range(stp)]
    red += ["s_nop 1"] + [f"v_permlane32_swap_b32 v{RED+k}, v{RED+k+4}" for k in range(4)] + [f"v_add_f32 v{RED+k}, v{RED+k}, v{RED+k+4}" for k in range(4)]
    red += ["s_nop 1"] + [f"v_permlane16_swap_b32 v{RED+k}, v{RED+k+2}" for k in range(2)] + [f"v_add_f32 v{RED+k}, v{RED+k}, v{RED+k+2}" for k in range(2)]
    red += [f"v_cvt_pk_bf16_f32 v{RED}, v{RED}, v{RED+1}", f"buffer_store_dword v{RED}, v{vRD}, {sr(SWS,4)}, s{sT0} offen sc1",
            "s_mov_b64 exec, 1", f"ds_add_u32 v{vG}, v{vG1}", "s_mov_b64 exec, -1"]
    e(f"s_and_b32 s{sT0}, s{sRG}, 1"); e(f"s_lshl_b32 s{sT3}, s{sT0}, 12"); e(f"s_xor_b32 s{sT0}, s{sT0}, s{sP}"); e(f"s_lshl_b32 s{sT0}, s{sT0}, 12")
    e(f"s_lshl_b32 s{sT2}, s{sC}, 13"); e(f"s_add_u32 s{sT2}, s{sT2}, s{sT0}"); e(f"s_add_u32 s{sT2}, s{sT2}, {KVZ_OFF}")
    ZLOAD = ";;".join(f"buffer_load_dwordx4 {vr(KVR+4*k,4)}, v{vL16}, {sr(SWS,4)}, s{sT2} offen offset:{1024*k} sc1" for k in range(4))
    g1, g2 = L("R"), L("R")
    mid = f"s_add_u32 s{sT0}, s{sRG}, s{sGI};;s_cmp_ge_u32 s{sT0}, 2;;s_cbranch_scc1 {g1};;" + ";;".join(red) + f";;{g1}:"
    mid2 = f"s_add_u32 s{sT0}, s{sRG}, s{sGI};;s_cmp_lt_u32 s{sT0}, 4;;s_cbranch_scc1 {g2};;" + ZLOAD + f";;{g2}:"
    e(f"s_mov_b32 s{sGI}, 0")
    e.label("K_GQ")
    sq = softcore(QBc)
    n0 = len(sq)
    for pos, it in sorted(((OPT.get("gmid", 70), mid), (OPT.get("gmid2", 70), mid2)), reverse=True): sq.insert(int(n0 * pos / 100), it)
    e.ext(sq)
    e(f"s_cmp_lg_u32 s{sGI}, 0"); e("s_cbranch_scc1 K_GQD")
    st("gk")
    ldspin("K_GQS", vSL + 2, 1)
    e(f"ds_read_b128 {vr(WT,4)}, v{vSL} offset:2048")
    e(f"ds_read_b128 {vr(QBc,4)}, v{vSL}"); e(f"ds_read_b128 {vr(QBc+4,4)}, v{vSL} offset:1024")
    for j in range(16): e(f"v_mov_b32 v{PHS+j}, v{PK+j}")
    e(f"s_mov_b32 s{sGI}, 2")
    ldspin("K_GOS", vG, 2)
    e("s_branch K_GQ")
    e.label("K_GQD")
    st("gq")
    e(f"v_add_u32 v{vS+3}, {YB:#x}, v{vL16}")
    e(f"s_cmp_lt_u32 s{sRG}, 2"); e("s_cbranch_scc1 K_GZS")
    e(f"v_add_u32 v{vS+2}, s{sT3}, v{vS+3}")
    e("s_waitcnt vmcnt(0)")
    e(sentinel(KVR, 16, vS + 4, ZLOAD))
    st("gr")
    for k in range(4): e(f"ds_write_b128 v{vS+2}, {vr(KVR+4*k,4)} offset:{1024*k}")
    e("s_waitcnt lgkmcnt(0)")
    e("s_mov_b64 exec, 1"); e(f"ds_add_u32 v{vG}, v{vG1}"); e("s_mov_b64 exec, -1")
    ldspin("K_GZS", vG, 4)
    for k in range(8): e(f"ds_read_b128 {vr(KVR+4*k,4)}, v{vS+3} offset:{1024*k}")
    st("gv")
    e(f"s_lshl_b32 s{sT2}, s{sRT}, 15"); e(f"s_lshl_b32 s{sT0}, s{sC}, 12"); e(f"s_add_u32 s{sT2}, s{sT2}, s{sT0}")
    e(f"s_lshl_b32 s{sT0}, s{sP}, 11"); e(f"s_add_u32 s{sT2}, s{sT2}, s{sT0}"); e(f"s_add_u32 s{sT2}, s{sT2}, {PQ_OFF}")
    e(f"s_xor_b32 s{sT3}, s{sT2}, 2048")
    e("s_waitcnt lgkmcnt(0)")
    NDG = (64, 80, 128, 144)
    for hd in range(4):
        ph = (PHS if hd < 2 else PK) + 8 * (hd & 1); d = vr(NDG[hd], 16)
        e(f"{MFMA} {d}, {vr(KVR+8*hd,4)}, {vr(ph,4)}, 0"); e(f"{MFMA} {d}, {vr(KVR+8*hd+4,4)}, {vr(ph+4,4)}, {d}")
    e("s_nop 5")
    for hd in range(4):
        d = NDG[hd]
        e(f"v_add_f32 v{vS}, {f2u(1e-6):#x}, v{d+8}"); e(f"v_rcp_f32 v{vS}, v{vS}"); e("s_nop 0")
        for j in range(8): e(f"v_mul_f32 v{d+j}, v{d+j}, v{vS}")
        for j in range(4): e(f"v_cvt_pk_bf16_f32 v{TMP+4*hd+j}, v{d+2*j}, v{d+2*j+1}")
        e(f"buffer_store_dwordx4 {vr(TMP+4*hd,4)}, v{vL16}, {sr(SWS,4)}, s{sT2 if hd < 2 else sT3} offen offset:{1024*(hd&1)} sc1")
    e("s_branch K_GFIN")

    e.label("K_P2")
    e(f"s_setprio {OPT.get('cprio', 0)}")
    st("p2start")
    if OPT.get("trace"): e(f"v_mov_b32 v240, 0;;s_memtime s[84:85];;s_waitcnt lgkmcnt(0);;s_sub_u32 s84, s84, s78;;v_writelane_b32 v240, s84, 0")
    vS2, vXB, vX, vB, OP = 224, 16, 32, 40, 32
    ACC2, WB2 = 48, 112
    SO, SB2 = 64, 68
    XBASE, vFW, vFR2, vT3 = 0, 24, 25, 232
    def fin_loads():
        e("s_load_dwordx4 s[72:75], s[0:1], 64")
        e(f"s_lshr_b32 s{sT1}, s{sC}, 2"); e(f"s_lshl_b32 s{sT2}, s{sRB}, 1"); e(f"s_add_u32 s{sT2}, s{sT2}, s{sT1}")
        cbcalc()
        e(f"s_lshl_b32 s{sXO2}, s{sRG}, 1"); e(f"s_add_u32 s{sXO2}, s{sXO2}, s{sISC}")
        e(f"s_lshl_b32 s{sXO}, s{sT2}, 16"); e(f"s_add_u32 s{sXO}, s{sXO}, s{sT1}"); e(f"s_lshl_b32 s{sT0}, s{sXO2}, 13"); e(f"s_add_u32 s{sXO}, s{sXO}, s{sT0}")
        e(f"buffer_load_dwordx4 {vr(vX,4)}, v{vXO}, {sr(SX,4)}, s{sXO} offen")
        e(f"v_and_b32 v{vS2+5}, 0x70, v{vL16}")
        e("s_waitcnt lgkmcnt(0)")
        srd(e, SB2, 72, 73, 1024)
        srd(e, SO, 74, 75, 2048 * 1024)
        e(f"buffer_load_dwordx4 {vr(vB,4)}, v{vS2+5}, {sr(SB2,4)}, s{sT1} offen")
    def fin_prep():
        for k in range(4):
            d = vXB + 2 * k
            e(f"v_lshlrev_b32 v{vS2}, 16, v{vB+k}"); e(f"v_and_b32 v{vS2+1}, s{sMASK}, v{vB+k}")
            e(f"v_lshlrev_b32 v{d}, 16, v{vX+k}"); e(f"v_and_b32 v{d+1}, s{sMASK}, v{vX+k}")
            e(f"v_add_f32 v{d}, v{d}, v{vS2}"); e(f"v_add_f32 v{d+1}, v{d+1}, v{vS2+1}")
        e(f"v_lshrrev_b32 v{vFR2}, 3, v{vL}"); e(f"v_mul_u32_u24 v{vFR2}, 272, v{vFR2}")
        e(f"v_and_b32 v{vS2}, 7, v{vL}"); e(f"v_lshl_add_u32 v{vFR2}, v{vS2}, 5, v{vFR2}")
        e(f"s_mul_i32 s{sT0}, s{sXO2}, {8*272}"); e(f"s_add_u32 s{sT0}, s{sT0}, {XBASE}")
        e(f"v_add_u32 v{vFR2}, s{sT0}, v{vFR2}")
    LA = OPT.get("la", 5)
    nun = [1] * 36
    ops = [i for i in range(NA) for _ in range(2)] + [i for i in range(NE, NE + NW1) for _ in range(2)]
    NPRE = len(ops)
    state = dict(na=NA, nw=NE + NW1, done=-1)
    FIRST = {}
    QPOLL = f"s_sub_u32 s{sT0}, s{sPF}, {128*1024};;s_mov_b64 exec, 0xff;;buffer_load_dword v{ND}, v{vPA}, {sr(SWS,4)}, s{sT0} offen sc1;;s_mov_b64 exec, -1"
    def tagwait(tag):
        last = max(i for i, o in enumerate(ops) if o == tag)
        e(f"s_waitcnt vmcnt({min(63, len(ops) - 1 - last)})")
    def issue_a(i):
        R = RING + 8 * unit[i]
        if i in FIRST and not OPT.get("x_nopoll"):
            st(f"cb{i}"); tagwait(f"p{i}"); check([(FPOLL, ND, 0xff, FIRST[i])]); st(f"ca{i}")
        e.ext(aload(i)); ops.extend([i] * 2)
        PL = OPT.get("pl", 3)
        if i + PL in FIRST and not OPT.get("x_nopoll"): e(FPOLL); ops.append(f"p{i+PL}")
    def pump(which=3):
        n = 0
        while state["na"] < 36 and which & 1:
            i = state["na"]
            us = set(range(unit[i], unit[i] + nun[i]))
            if any(us & set(range(unit[q], unit[q] + nun[q])) for q in range(state["done"] + 1, i)): break
            if i - state["done"] > (OPT.get("la1", 7) if i < 16 else LA if i < 28 else OPT.get("la2", 5)): break
            issue_a(i); state["na"] += 1; n += 1
        while state["nw"] < 36 and which & 2 and state["nw"] - state["done"] <= OPT.get("lw", 12):
            e.ext(wdma(state["nw"])); ops.extend([state["nw"]] * 2); state["nw"] += 1; n += 1
        return n
    for fi in FIRST:
        if NA <= fi < NA + OPT.get("pl", 3) and not OPT.get("x_nopoll"): e(FPOLL); ops.append(f"p{fi}")
    pump()
    fin_loads()
    ops.extend(["x"] * 2)
    e(f"s_lshl_b32 s{sP0}, s{sT2}, 16"); e(f"s_lshl_b32 s{sT0}, s{sRG}, 13"); e(f"s_add_u32 s{sP0}, s{sP0}, s{sT0}"); e(f"s_add_u32 s{sP0}, s{sP0}, {PQ_OFF}")
    e(f"s_add_u32 s{sKV}, s{sP0}, 32768")
    e(f"v_bfe_u32 v{vS2+6}, v{vL}, 2, 2"); e(f"v_lshrrev_b32 v{vS2+4}, 5, v{vL}"); e(f"v_bfe_u32 v{vS2+3}, v{vL}, 4, 1")
    e(f"v_lshl_add_u32 v{vS2+7}, v{vS2+4}, 2, v{vS2+6}"); e(f"v_lshlrev_b32 v{vTR0}, 7, v{vS2+7}")
    e(f"v_lshl_add_u32 v{vTR0}, v{vS2+3}, 5, v{vTR0}")
    e(f"v_and_b32 v{vS2+7}, 3, v{vL}"); e(f"v_lshl_add_u32 v{vTR0}, v{vS2+7}, 3, v{vTR0}")
    e(f"v_lshrrev_b32 v{vS2+6}, 1, v{vS2+6}"); e(f"v_lshl_add_u32 v{vTR0}, v{vS2+6}, 6, v{vTR0}")
    e(f"v_add_u32 v{vTR0}, s{sLB}, v{vTR0}")
    e(f"v_xor_b32 v{vTR1}, 64, v{vTR0}")
    for k in range(3):
        e(f"v_add_u32 v{vT3+2*k}, {0x10000*k:#x}, v{vTR0}"); e(f"v_add_u32 v{vT3+2*k+1}, {0x10000*k:#x}, v{vTR1}")
    def wreads(i):
        off = ROW[i % NL] & 0xffff; b = WB2 + 8 * (i & 1)
        vTR0 = vT3 + 2 * (ROW[i % NL] >> 16); vTR1 = vTR0 + 1
        e(f"ds_read_b64_tr_b16 {vr(b,2)}, v{vTR0} offset:{off}")
        e(f"ds_read_b64_tr_b16 {vr(b+2,2)}, v{vTR0} offset:{off+1024}")
        e(f"ds_read_b64_tr_b16 {vr(b+4,2)}, v{vTR1} offset:{off}")
        e(f"ds_read_b64_tr_b16 {vr(b+6,2)}, v{vTR1} offset:{off+1024}")
    def mm4(buf, act, first=False):
        for nt in range(2):
            for mt in range(2):
                c = vr(ACC2 + 16 * (2 * nt + mt), 16)
                e(f"{MFMA} {c}, {vr(WB2+8*buf+4*nt,4)}, {act[mt]}, {'0' if first else c}")
    tagwait(0)
    st("p2data")
    if OPT.get("trace"): e(f"s_memtime s[84:85];;s_waitcnt lgkmcnt(0);;s_sub_u32 s84, s84, s78;;v_writelane_b32 v240, s84, 1")
    wreads(0)
    def sent(i):
        R = RING + 8 * unit[i]
        o_, b0, b1 = (1024 * order[i], sA0, sA1) if i < 28 else (1024 * (i - 28), sP0, sKV)
        e(sentinel(R, 8, vS2, f"s_add_u32 s{sT0}, s{b0}, {o_};;s_add_u32 s{sT1}, s{b1}, {o_};;"
                   f"buffer_load_dwordx4 {vr(R,4)}, v{vL16}, {sr(SWS,4)}, s{sT0} offen sc1;;buffer_load_dwordx4 {vr(R+4,4)}, v{vL16}, {sr(SWS,4)}, s{sT1} offen sc1"))
    def mm1(i, t):
        nt, mt = t >> 1, t & 1; c = vr(ACC2 + 16 * t, 16)
        e(f"{MFMA} {c}, {vr(WB2+8*(i&1)+4*nt,4)}, {vr(RING+8*unit[i]+4*mt,4)}, {'0' if i == 0 else c}")
    for i in range(34):
        e("s_waitcnt lgkmcnt(0)")
        mm1(i, 0)
        state["done"] = i - 1
        pump(1)
        mm1(i, 1)
        tagwait(i + 1)
        wreads(i + 1)
        mm1(i, 2)
        if i + 1 >= 8: sent(i + 1)
        mm1(i, 3)
        pump(2)
        st(f"s{i}")
        if OPT.get("trace"): e(f"s_memtime s[84:85];;s_waitcnt lgkmcnt(0);;s_sub_u32 s84, s84, s78;;v_writelane_b32 v240, s84, {i+2}")
        if i == 12:
            fin_prep()
            e(f"v_and_b32 v{vFW}, 31, v{vL}"); e(f"v_mul_u32_u24 v{vFW}, 272, v{vFW}")
            e(f"v_lshrrev_b32 v{vS2}, 5, v{vL}"); e(f"v_lshl_add_u32 v{vFW}, v{vS2}, 4, v{vFW}")
            e(f"s_mul_i32 s{sT0}, s{sRG}, 17408"); e(f"s_add_u32 s{sT0}, s{sT0}, {XBASE}")
            e(f"v_add_u32 v{vFW}, s{sT0}, v{vFW}")
    tagwait(35)
    wreads(35)
    sent(35)
    e("s_waitcnt lgkmcnt(0)")
    e("s_barrier")
    def twr(t):
        nt, mt = t >> 1, t & 1
        for q in range(4): e(f"ds_write_b128 v{vFW}, {vr(ACC2+16*t+4*q,4)} offset:{32*272*mt + 128*nt + 32*q}")
    for t in range(4):
        nt, mt = t >> 1, t & 1; c = vr(ACC2 + 16 * t, 16)
        for i in (34, 35):
            e(f"{MFMA} {c}, {vr(WB2+8*(i&1)+4*nt,4)}, {vr(RING+8*unit[i]+4*mt,4)}, {c}")
        if t == 1: e("s_nop 9")
        if t == 2: e("s_nop 5")
        if t == 3: e("s_nop 5")
        if t >= 1: twr(t - 1)
    st("s35")
    e("s_nop 2")
    twr(3)
    e("s_waitcnt lgkmcnt(0)")
    if OPT.get("trace"):
        e(f"s_memtime s[84:85];;s_waitcnt lgkmcnt(0);;s_sub_u32 s84, s84, s78;;v_writelane_b32 v240, s84, 36")
        e(f"s_lshl_b32 s84, s2, 2;;s_add_u32 s84, s84, s{sRG};;s_lshl_b32 s84, s84, 8;;s_add_u32 s84, s84, {210<<20};;v_lshlrev_b32 v241, 2, v{vL}")
        e(f"buffer_store_dword v240, v241, {sr(SWS,4)}, s84 offen")
    e("s_branch K_LAST")
    e.label("K_GFIN")
    st("gend")
    e("s_setprio 0")
    e(f"v_lshrrev_b32 v{vXO}, 3, v{vL}"); e(f"v_lshlrev_b32 v{vXO}, 10, v{vXO}")
    e(f"v_and_b32 v{vS2}, 7, v{vL}"); e(f"v_lshl_add_u32 v{vXO}, v{vS2}, 4, v{vXO}")
    fin_loads()
    e("s_waitcnt vmcnt(0)")
    fin_prep()
    e("s_barrier")
    e.label("K_LAST")
    e("s_barrier")
    for p in range(4):
        for hh in range(2):
            e(f"ds_read_b128 {vr(ACC2+8*p+4*hh,4)}, v{vFR2} offset:{17408*p + 16*hh}")
    for p in range(4):
        e(f"s_waitcnt lgkmcnt({6 - 2*p})")
        for j in range(0, 8, 2): e(f"v_pk_add_f32 {vr(vXB+j,2)}, {vr(vXB+j,2)}, {vr(ACC2+8*p+j,2)}")
    for j in range(4): e(f"v_cvt_pk_bf16_f32 v{OP+j}, v{vXB+2*j}, v{vXB+2*j+1}")
    e(f"buffer_store_dwordx4 {vr(OP,4)}, v{vXO}, {sr(SO,4)}, s{sXO} offen")
    e.label("K_FIN")
    if OPT.get("x_hold"):
        e.label("K_HOLD")
        e("s_sleep 4"); e("s_memrealtime s[82:83]"); e("s_waitcnt lgkmcnt(0)")
        e("s_sub_u32 s82, s82, s80"); e(f"s_cmp_lt_u32 s82, {OPT['x_hold']}")
        e(f"s_cselect_b32 s82, s{sISC}, 0"); e("s_cmp_lg_u32 s82, 0"); e("s_cbranch_scc1 K_HOLD")
    if OPT.get("cnt"): e("s_add_u32 s90, s91, s78")
    if OPT["stamps"] and not OPT.get("phys"):
        e(f"s_xor_b32 s{sW}, s{sISC}, 1"); e(f"s_lshl_b32 s{sW}, s{sW}, 2"); e(f"s_add_u32 s{sW}, s{sW}, s{sRG}")
    stamp_end(e, 0, SWS, "K_END", sW, 0)
    e.label("K_END")
    e("s_endpgm")
    return e.text()

def main():
    out = "; LayerNorm + hedgehog linear attention + GELU FFN, one persistent launch (generated by tools/gen2.py)\n"
    out += "; @launch grid=(256,1,1) block=(512,1,1) lds=163840\n"
    out += '.amdgcn_target "amdgcn-amd-amdhsa--gfx950"\n.text\n'
    out += f".globl {KN}\n.p2align 8\n.type {KN},@function\n{KN}:\n" + gen()
    out += ".p2align 8\n.fill 1536, 4, 0xbf800000\n"
    out += f""".section .rodata,"a"
.p2align 6
.amdhsa_kernel {KN}
  .amdhsa_next_free_vgpr 256
  .amdhsa_next_free_sgpr 102
  .amdhsa_accum_offset 256
  .amdhsa_group_segment_fixed_size 0
  .amdhsa_kernarg_size 96
  .amdhsa_user_sgpr_count 2
  .amdhsa_user_sgpr_kernarg_segment_ptr 1
  .amdhsa_system_sgpr_workgroup_id_x 1
.end_amdhsa_kernel
"""
    open(sys.argv[1], "w").write(out)
main()
```

```python
import sys, math, struct

OPT = dict(stamps=0, st1="sc1", k1only=0, k2only=0, pfcode=1, pfw2=3)
for a in sys.argv[2:]:
    k, v = a.split("=")
    OPT[k] = int(v) if v.lstrip("-").isdigit() else v

H_OFF, PQ_OFF, KVP_OFF, KVZ_OFF, FLG_OFF = 0, 0x1000000, 0x1400000, 0x1600000, 0x1610000
STAMP_OFF = 200 << 20
NSTAMP = 8
LOOPST = OPT.get('loopst', -1)

def f2u(x): return struct.unpack("<I", struct.pack("<f", x))[0]

class Asm:
    def __init__(self): self.L = []
    def __call__(self, s):
        for t in s.split(";;"):
            t = t.strip()
            self.L.append(t if t.endswith(":") else "    " + t)
    def label(self, s): self.L.append(s + ":")
    def ext(self, lst):
        cnt = 0
        for s in lst:
            if s == "@MARK": cnt = 0; continue
            if s == "@PAD": continue
            if s.startswith("@NEED"):
                d = int(s.split()[1]) - cnt
                if d > 0: self(f"s_nop {d-1}")
                continue
            self(s)
            if "s_cbranch" in s: cnt += 1
            else: cnt += sum(1 for t in s.split(";;") if not t.strip().endswith(":"))
    def text(self): return "\n".join(self.L) + "\n"

class Lst(list):
    def __call__(self, s): self.append(s)

def vr(b, n=1): return f"v{b}" if n == 1 else f"v[{b}:{b+n-1}]"
def ar(b, n=1): return f"a{b}" if n == 1 else f"a[{b}:{b+n-1}]"
def sr(b, n=1): return f"s{b}" if n == 1 else f"s[{b}:{b+n-1}]"
MFMA = "v_mfma_f32_32x32x16_bf16"

def cost(ins):
    c = 0
    for t in ins.split(";;"):
        op = t.split()[0]
        if op == "@PAD": c += 8; continue
        if op.endswith(":") or op.startswith("@"): continue
        if "s_cbranch" in ins and op.startswith(("s_", "v_")): c += 0.5; continue
        if op.startswith(("v_exp", "v_rcp", "v_sqrt", "v_log", "v_mfma")): c += 8
        elif op == "s_nop": c += 2 * (int(t.split()[1]) + 1)
        elif op.startswith("s_"): c += 1
        elif op.startswith("buffer_"): c += 8
        else: c += 4.5
    return c

def interleave(groups, fill, first=0, last=None):
    last = len(groups) - 1 if last is None else last
    tot = sum(cost(i) for i in fill); n = last - first + 1
    out = []; k = 0; acc = 0.0
    for gi, g in enumerate(groups):
        out += g
        if first <= gi <= last:
            tgt = tot * (gi - first + 1) / n
            while k < len(fill) and (acc + cost(fill[k]) / 2 <= tgt or gi == last):
                out.append(fill[k]); acc += cost(fill[k]); k += 1
    assert k == len(fill)
    return out

def merge(a, b, frac=1.0):
    out = []; n = max(1, int(len(a) * frac)); k = 0
    for i, x in enumerate(a):
        while k < len(b) and k * n <= i * len(b) and i < n:
            out.append(b[k]); k += 1
        out.append(x)
    out += b[k:]
    return out

def srd(e, d, lo, hi, size):
    e(f"s_mov_b32 s{d}, s{lo}"); e(f"s_mov_b32 s{d+1}, s{hi}")
    e(f"s_mov_b32 s{d+2}, {size:#x}"); e(f"s_mov_b32 s{d+3}, 0x00020000")

def stamp(e, idx, base=80):
    if OPT["stamps"]:
        e(f"s_memtime s[{base+2*idx}:{base+2*idx+1}]")

def stamp_begin(e, base=80):
    if OPT["stamps"]:
        e(f"s_memrealtime s[{base}:{base+1}]")
        e(f"s_memtime s[{base-2}:{base-1}]")
        for i in range(2, NSTAMP):
            e(f"s_mov_b64 s[{base+2*i}:{base+2*i+1}], 0")

def stamp_end(e, kidx, wssrd, lbl, wave_sgpr, wave_sel, base=80):
    if not OPT["stamps"]: return
    e(f"s_memtime s[{base+2*(NSTAMP-2)}:{base+2*(NSTAMP-2)+1}]")
    e("s_waitcnt vmcnt(0)")
    e(f"s_memrealtime s[{base+2}:{base+3}]")
    e(f"s_memtime s[{base+2*(NSTAMP-1)}:{base+2*(NSTAMP-1)+1}]")
    e("s_waitcnt lgkmcnt(0)")
    for i in range(2, NSTAMP):
        e(f"s_sub_u32 s{base+2*i}, s{base+2*i}, s{base if (OPT.get('rt') and i < 6) else base-2}")
        e(f"s_mov_b32 s{base+2*i+1}, 0")
    e(f"s_lshl_b32 s{base-2}, s2, 3"); e(f"s_add_u32 s{base-2}, s{base-2}, s{wave_sgpr}")
    e(f"s_mul_i32 s{base-2}, s{base-2}, {8*NSTAMP}")
    e(f"s_add_u32 s{base-2}, s{base-2}, {STAMP_OFF + kidx*256*8*8*NSTAMP}")
    e("s_mov_b64 exec, 1")
    e("v_mov_b32 v1, 0")
    for i in range(NSTAMP // 2):
        for j in range(4):
            e(f"v_mov_b32 v{4+j}, s{base+4*i+j}")
        e(f"buffer_store_dwordx4 v[4:7], v1, {sr(wssrd,4)}, s{base-2} offen offset:{16*i}")
        e("s_nop 1")
    e("s_waitcnt vmcnt(0)")

KN = "parallel_sum__linear_kernel_hedgehog__dense_activation_gelu__prompt_kernel"
SPIN = OPT.get("spin", 20000)
CNT_OFF = FLG_OFF + 2048 * 128

def gen():
    e = Asm()
    M16 = "v_mfma_f32_16x16x32_bf16"
    SDBG, SX, SW, SWS, SAUX = 4, 8, 12, 16, 20
    sW, sRG, sP, sC, sRB, sTYPE = 24, 25, 26, 27, 28, 29
    sPITCH, sRT, sIDX, sROT = 30, 31, 32, 33
    sONES, sLO, sHI, sMASK = 34, 35, 36, 37
    sT0, sT1, sT2, sT3, sT4 = 38, 39, 40, 41, 42
    sXB = 43
    sCOL = 44
    sSLOT, sIT, sOUT, sAUXO, sP16 = 48, 49, 50, 51, 52
    sDA, sDB, sMA, sROWO, sW4K, sST = 53, 54, 55, 56, 57, 61
    sLT16, sFLG = 58, 60
    sJG, sISC, sWB, sLEV = 76, 77, 100, 101
    vDUM, vL, vL16, vDMA, vTR = 0, 1, 2, 3, 4
    vS, vCSW, vCSR, SELC, CS, AUG, vC0, vC1 = 8, 14, 15, 16, 20, 24, 30, 31
    TMP, PK, ACC, EACC, WB, vAUX, XF = 32, 48, 64, 80, 96, 116, 128
    NWB = 5
    YB, ZB = 0x10000, 0x20000
    STAT, CSX, RVO, GSY, ZSC = 0x20000, 0x20800, 0x21000, 0x21400, 0x21800
    vFR, vXD, RS, vQ, vAL = TMP, TMP + 8, TMP + 12, TMP + 16, TMP + 18
    STF = "" if OPT.get("x_pst") else "sc1"
    lab = [0]
    def L(p):
        lab[0] += 1
        return f"{p}{lab[0]}"
    SP = str(OPT.get("sp", "")).split(",")
    def st(name, lst=None):
        if OPT["stamps"] and name in SP:
            i = 2 + SP.index(name)
            t = f"{'s_memrealtime' if OPT.get('rt') else 's_memtime'} s[{80+2*i}:{81+2*i}];;s_waitcnt lgkmcnt(0)"
            (e if lst is None else lst.append)(t)
    e("s_cmp_ge_u32 s2, 256")
    e("s_cbranch_scc1 K_END")
    stamp_begin(e)
    if OPT.get("x_hold"): e("s_memrealtime s[80:81]")
    if OPT.get("cnt"): e("s_mov_b32 s91, 1")
    e("s_load_dwordx4 s[64:67], s[0:1], 0")
    e("s_load_dwordx2 s[68:69], s[0:1], 16")
    e("s_load_dwordx4 s[72:75], s[0:1], 40")
    e("s_load_dwordx2 s[70:71], s[0:1], 88")
    e("s_load_dwordx2 s[96:97], s[0:1], 56")
    e("s_load_dwordx2 s[98:99], s[0:1], 24")
    e(f"s_load_dwordx2 {sr(SDBG,2)}, s[0:1], 80")
    e(f"v_lshrrev_b32 v{vS}, 6, v0")
    e(f"v_and_b32 v{vL}, 63, v0")
    e(f"v_readfirstlane_b32 s{sW}, v{vS}")
    e(f"s_lshr_b32 s{sIDX}, s2, 3")
    if OPT["pfcode"]:
        e(f"s_cmp_lg_u32 s{sW}, 7"); e("s_cbranch_scc1 K_NOPF")
        e("s_getpc_b64 s[62:63]")
        e("s_and_b32 s62, s62, 0xffffff00")
        e(f"s_mul_i32 s{sT1}, s{sIDX}, 1024")
        e(f"v_lshl_add_u32 v{vS+3}, v{vL}, 7, s{sT1}")
        e("s_mov_b64 exec, 0xff")
        e(f"global_load_dword v{vDUM}, v{vS+3}, s[62:63]")
        e("s_mov_b64 exec, -1")
        e.label("K_NOPF")
    e(f"s_and_b32 s{sT0}, s2, 7")
    e(f"s_lshr_b32 s{sRB}, s{sT0}, 1"); e(f"s_lshl_b32 s{sRB}, s{sRB}, 2")
    e(f"s_and_b32 s{sT2}, s{sIDX}, 3"); e(f"s_add_u32 s{sRB}, s{sRB}, s{sT2}")
    e(f"s_lshr_b32 s{sT1}, s{sIDX}, 2")
    e(f"s_add_u32 s{sROT}, s{sT1}, s{sT2}"); e(f"s_and_b32 s{sROT}, s{sROT}, {OPT.get('rotm', 3)}")
    e(f"s_and_b32 s{sTYPE}, s{sT1}, 1")
    e(f"s_lshr_b32 s{sT1}, s{sT1}, 1")
    e(f"s_and_b32 s{sC}, s{sT0}, 1"); e(f"s_lshl_b32 s{sC}, s{sC}, 2"); e(f"s_add_u32 s{sC}, s{sC}, s{sT1}")
    e(f"s_and_b32 s{sRG}, s{sW}, 3"); e(f"s_lshr_b32 s{sP}, s{sW}, 2")
    e(f"v_lshrrev_b32 v{vS}, 4, v{vL}"); e(f"v_and_b32 v{vS+1}, 15, v{vL}")
    e(f"v_xor_b32 v{vS+2}, v{vS}, v{vS+1}"); e(f"v_lshlrev_b32 v{vS+2}, 4, v{vS+2}")
    e(f"v_lshl_add_u32 v{vXD}, v{vS}, 10, v{vS+2}")
    for i in range(1, 4): e(f"v_xor_b32 v{vXD+i}, {4096*i + 64*i}, v{vXD}")
    e(f"s_lshl_b32 s{sXB}, s{sRB}, 17"); e(f"s_lshl_b32 s{sT0}, s{sW}, 14"); e(f"s_add_u32 s{sXB}, s{sXB}, s{sT0}")
    e(f"s_lshl_b32 s{sW4K}, s{sW}, 12")
    e(f"v_and_b32 v{vS+3}, 31, v{vL}")
    e(f"v_lshrrev_b32 v{vS+4}, 5, v{vL}")
    e(f"s_cmp_eq_u32 s{sTYPE}, 0")
    e("s_cbranch_scc1 K_SETQ")
    e(f"s_movk_i32 s{sPITCH}, 3584")
    e(f"s_mul_i32 s{sAUXO}, s{sC}, 448")
    e(f"s_and_b32 s{sT1}, s{sC}, 1")
    e(f"s_lshl_b32 s{sT2}, s{sT1}, 6"); e(f"s_add_u32 s{sCOL}, s{sAUXO}, s{sT2}")
    e(f"s_add_u32 s{sCOL+1}, s{sCOL}, 128"); e(f"s_add_u32 s{sCOL+2}, s{sCOL}, 256")
    e(f"s_lshl_b32 s{sT2}, s{sT1}, 9"); e(f"s_add_u32 s{sCOL+3}, s{sCOL}, 384"); e(f"s_sub_u32 s{sCOL+3}, s{sCOL+3}, s{sT2}")
    e(f"s_lshl_b32 s{sT2}, s{sP}, 6")
    e(f"v_lshl_add_u32 v{vAL}, v{vS+3}, 1, s{sT2}")
    e(f"s_mov_b32 s{SW+2}, {512*3584}"); e(f"s_movk_i32 s{SAUX+2}, 3584")
    e("s_branch K_SETD")
    e.label("K_SETQ")
    e(f"s_movk_i32 s{sPITCH}, 3072")
    e(f"s_lshl_b32 s{sCOL+2}, s{sC}, 7"); e(f"s_add_u32 s{sCOL}, s{sCOL+2}, 1024"); e(f"s_add_u32 s{sCOL+1}, s{sCOL+2}, 2048")
    e(f"s_lshl_b32 s{sT1}, s{sP}, 10"); e(f"s_lshl_b32 s{sAUXO}, s{sC}, 11"); e(f"s_add_u32 s{sT1}, s{sT1}, s{sAUXO}")
    e(f"v_lshl_add_u32 v{vAL}, v{vL}, 4, s{sT1}")
    e(f"s_mov_b32 s{SW+2}, {512*3072}"); e(f"s_movk_i32 s{SAUX+2}, {32*512}")
    e.label("K_SETD")
    e(f"s_mov_b32 s{SW+3}, 0x00020000"); e(f"s_mov_b32 s{SAUX+3}, 0x00020000")
    e(f"v_lshrrev_b32 v{vDMA}, 2, v{vL}"); e(f"v_mul_lo_u32 v{vDMA}, v{vDMA}, s{sPITCH}")
    e(f"v_and_b32 v{vS+5}, 3, v{vL}"); e(f"v_lshl_add_u32 v{vDMA}, v{vS+5}, 4, v{vDMA}")
    e(f"s_lshl_b32 s{sP16}, s{sPITCH}, 4")
    e(f"s_mul_i32 s{sWB}, s{sP16}, s{sW}"); e(f"s_add_u32 s{sWB}, s{sWB}, s{sCOL}")
    e(f"s_cmp_eq_u32 s{sTYPE}, 0")
    e("s_waitcnt lgkmcnt(0)")
    e(f"s_cselect_b64 {sr(SW,2)}, s[66:67], s[72:73]"); e(f"s_cselect_b64 {sr(SAUX,2)}, s[68:69], s[74:75]")
    srd(e, SX, 64, 65, 2048 * 1024)
    ROP = "s_xor_b32" if OPT.get("rxor", 0) else "s_add_u32"
    XBUF = (ZB, YB, YB + 0x8000, ZB)
    def sset(j):
        l = Lst()
        l(f"{ROP} s{sT0}, s{sROT}, {j};;s_and_b32 s{sT0}, s{sT0}, 3;;s_lshl_b32 s{sT1}, s{sT0}, 8;;s_add_u32 s{sT1}, s{sT1}, s{sXB};;"
          f"s_lshl_b32 s{sT0}, s{sT0}, 3;;s_mul_i32 s{sT0}, s{sT0}, s{sP16};;s_add_u32 s{sT0}, s{sT0}, s{sWB};;s_add_u32 s{sT2}, s{sT0}, 64;;s_lshr_b32 s{sT3}, s{sW4K}, 2")
        for i in range(4):
            l(f"s_add_u32 m0, s{sW4K}, {XBUF[j] + 1024*i};;s_nop 0;;buffer_load_dwordx4 v{vXD+i}, {sr(SX,4)}, s{sT1} offen lds")
        wo = 0x8000 * (j >> 1) + 8192 * (j & 1)
        l(f"s_add_u32 m0, s{sT3}, {wo};;s_nop 0;;buffer_load_dwordx4 v{vDMA}, {sr(SW,4)}, s{sT0} offen lds")
        l(f"s_add_u32 m0, s{sT3}, {wo + 0x4000};;s_nop 0;;buffer_load_dwordx4 v{vDMA}, {sr(SW,4)}, s{sT2} offen lds")
        return l
    wt = (f"s_lshr_b32 s{sT0}, s{sW}, 1;;s_cmp_lg_u32 s{sT0}, 1;;s_cbranch_scc1 K_NW;;s_cmp_eq_u32 s{sW}, 2;;"
          f"s_cselect_b64 s[92:93], s[72:73], s[66:67];;s_mov_b32 s{sT0}, {512*3584};;s_cselect_b32 s94, s{sT0}, {512*3072};;s_mov_b32 s95, 0x00020000;;"
          f"s_movk_i32 s{sT0}, 7168;;s_cselect_b32 s{sT0}, s{sT0}, 6144;;s_cselect_b32 s{sT1}, 56, 48;;s_mul_i32 s{sT0}, s{sT0}, s2;;"
          f"v_lshlrev_b32 v{vDUM}, 7, v{vL};;s_bfm_b64 exec, s{sT1}, 0;;buffer_load_dword v{vDUM}, v{vDUM}, s[92:95], s{sT0} offen;;s_mov_b64 exec, -1;;K_NW:")
    WTA = OPT.get("wta", 2)
    xt = (f"s_cmp_lg_u32 s{sW}, 1;;s_cbranch_scc1 K_NX;;s_lshl_b32 s{sT0}, s2, 13;;v_lshlrev_b32 v{vDUM}, 7, v{vL};;"
          f"buffer_load_dword v{vDUM}, v{vDUM}, {sr(SX,4)}, s{sT0} offen;;K_NX:")
    st("ka")
    if OPT.get("xta", 0) == 1: e(xt)
    if WTA == -2: e(wt)
    e.ext(sset(0))
    if OPT.get("xta", 0) == 2: e(xt)
    if WTA == -1: e(wt)
    st("i0")
    srd(e, SWS, 70, 71, 0x10000000)
    e(f"s_movk_i32 s{SDBG+2}, 256"); e(f"s_mov_b32 s{SDBG+3}, 0x00020000")
    e(f"s_lshl_b32 s{sRT}, s{sRB}, 2"); e(f"s_add_u32 s{sRT}, s{sRT}, s{sRG}")
    e(f"s_lshl_b32 s{sFLG}, s{sTYPE}, 4"); e(f"s_add_u32 s{sFLG}, s{sFLG}, s{sRB}"); e(f"s_lshl_b32 s{sFLG}, s{sFLG}, 3"); e(f"s_add_u32 s{sFLG}, s{sFLG}, s{sC}")
    e(f"s_lshl_b32 s{sFLG}, s{sFLG}, 10"); e(f"s_add_u32 s{sFLG}, s{sFLG}, {FLG_OFF}")
    e(f"s_and_b32 s{sISC}, s{sC}, 1"); e(f"s_xor_b32 s{sISC}, s{sISC}, s{sP}")
    e(f"v_lshlrev_b32 v{vL16}, 4, v{vL}")
    e(f"v_mov_b32 v{AUG+4}, 0"); e(f"v_mov_b32 v{AUG+5}, 0")
    e(f"s_lshl_b32 s{sIT}, s{sTYPE}, 3"); e(f"s_add_u32 s{sIT}, s{sIT}, s{sW}")
    e(f"s_cmp_lg_u32 s{sIT}, 15"); e("s_cbranch_scc1 K_NZ")
    e(f"v_lshlrev_b32 v{vS+2}, 3, v{vL}")
    e(f"buffer_store_dwordx2 {vr(AUG+4,2)}, v{vS+2}, {sr(SWS,4)}, s{sFLG} offen sc1")
    e(f"buffer_store_dwordx2 {vr(AUG+4,2)}, v{vS+2}, {sr(SWS,4)}, s{sFLG} offen offset:512 sc1")
    e.label("K_NZ")
    e(f"s_lshl_b32 s{sT0}, s{sW}, 7"); e(f"s_add_u32 s{sFLG}, s{sFLG}, s{sT0}")
    e(f"s_lshl_b32 s{sT0}, s{sROT}, 2"); e(f"{ROP} s{sT0}, s{sT0}, s{sW}"); e(f"s_and_b32 s{sT1}, s{sT0}, 15"); e(f"s_lshl_b32 s{sT1}, s{sT1}, 1")
    e(f"s_mul_i32 s{sROWO}, s{sT1}, s{sP16}")
    e(f"s_add_u32 s{sT0}, s{sT0}, 8"); e(f"s_and_b32 s{sT1}, s{sT0}, 15"); e(f"s_lshl_b32 s{sT1}, s{sT1}, 1")
    e(f"s_mul_i32 s{sJG}, s{sT1}, s{sP16}"); e(f"s_sub_u32 s{sJG}, s{sJG}, s{sROWO}"); e(f"s_sub_u32 s{sJG}, s{sJG}, s{sP16}")
    e(f"s_lshl_b32 s{sT4}, s{sW}, 11")
    sLB0 = sT4
    vFO, vF0, vF1 = vAUX + 11, 238, 239
    def fragoff(vd, srt):
        if OPT.get("x_flat"):
            e(f"s_and_b32 s{sT0}, s{srt}, 1"); e(f"s_lshl_b32 s{sT0}, s{sT0}, 10"); e(f"v_xor_b32 v{vd}, s{sT0}, v{vL16}"); return
        e(f"s_and_b32 s{sT0}, s{srt}, 7"); e(f"s_cmp_eq_u32 s{sT0}, 3"); e(f"s_cselect_b32 s{sT0}, 7, s{sT0}")
        e(f"s_lshl_b32 s{sT0}, s{sT0}, 7"); e(f"s_add_u32 s{sT0}, s{sT0}, 640")
        e("s_mov_b32 s62, 0xff000000"); e("s_mov_b32 s63, 0")
        e(f"v_mov_b32 v{vd}, s{sT0}"); e(f"v_cndmask_b32 v{vd}, 0, v{vd}, s[62:63]"); e(f"v_add_u32 v{vd}, v{vd}, v{vL16}")
        e(f"s_and_b32 s{sT0}, s{srt}, 1"); e(f"s_lshl_b32 s{sT0}, s{sT0}, 10"); e(f"v_xor_b32 v{vd}, s{sT0}, v{vd}")
    fragoff(vFO, sRT)
    def guard(t):
        g = L("G"); return f"s_cbranch_vccz {g};;{t};;{g}:"
    def dma8(gd=False):
        l = []
        for i in range(4):
            jg, jl = (f"s{sJG}", "0x7c00") if i == 1 else (f"s{sP16}", "1024")
            l += [f"s_mov_b32 m0, s{sMA};;s_add_u32 s{sDB}, s{sDA}, 64;;buffer_load_dwordx4 v{vDMA}, {sr(SW,4)}, s{sDA} offen lds",
                  f"s_add_u32 m0, s{sMA}, 0x4000;;s_add_u32 s{sDA}, s{sDA}, {jg};;buffer_load_dwordx4 v{vDMA}, {sr(SW,4)}, s{sDB} offen lds;;s_add_u32 s{sMA}, s{sMA}, {jl}"]
        if not gd: return l
        l = []
        for i in range(4):
            jg, jl = (f"s{sJG}", "0x7c00") if i == 1 else (f"s{sP16}", "1024")
            g = L("G")
            l += [guard(f"s_mov_b32 m0, s{sMA};;s_add_u32 s{sDB}, s{sDA}, 64;;buffer_load_dwordx4 v{vDMA}, {sr(SW,4)}, s{sDA} offen lds"),
                  f"s_add_u32 m0, s{sMA}, 0x4000;;s_add_u32 s{sDA}, s{sDA}, {jg};;s_add_u32 s{sMA}, s{sMA}, {jl};;s_cmp_lg_u32 s{sLEV}, 0;;s_cbranch_scc1 {g};;"
                  f"buffer_load_dwordx4 v{vDMA}, {sr(SW,4)}, s{sDB} offen lds;;{g}:"]
        return l
    e(f"s_mov_b32 s{sONES}, 0x3f803f80"); e(f"s_mov_b32 s{sLO}, 0x00003f80"); e(f"s_mov_b32 s{sHI}, 0x3f800000")
    e(f"s_mov_b32 s{sMASK}, 0xffff0000")
    e(f"v_lshlrev_b32 v{vS+2}, 9, v{vS+4}")
    e(f"v_bfe_u32 v{vS}, v{vL}, 2, 2"); e(f"v_lshl_add_u32 v{vS+2}, v{vS}, 6, v{vS+2}")
    e(f"v_bfe_u32 v{vCSW}, v{vL}, 4, 1"); e(f"v_lshl_add_u32 v{vS+2}, v{vCSW}, 5, v{vS+2}")
    e(f"v_lshl_add_u32 v{vS+2}, v{vS+5}, 3, v{vS+2}")
    e(f"s_xor_b32 s{sT3}, s{sRG}, s{sP}"); e(f"s_lshl_b32 s{sT1}, s{sP}, 14")
    for k in range(4):
        e(f"s_xor_b32 s{sT0}, s{sT3}, {k}"); e(f"s_lshl_b32 s{sT0}, s{sT0}, 10"); e(f"s_add_u32 s{sT0}, s{sT0}, s{sT1}")
        e(f"v_add_u32 v{vTR+k}, s{sT0}, v{vS+2}")
    e(f"v_and_b32 v{vS}, 1, v{vS}"); e(f"v_cmp_eq_u32 vcc, v{vS}, v{vCSW}"); e(f"v_mov_b32 v{vS}, s{sONES}")
    e(f"v_cmp_gt_u32 {sr(sLT16,2)}, 16, v{vS+3}")
    for j in range(4): e(f"v_cndmask_b32 v{SELC+j}, 0, v{vS}, vcc")
    e(f"v_xor_b32 v{vS}, v{vS+4}, v{vS+1}"); e(f"v_lshlrev_b32 v{vS}, 4, v{vS}")
    e(f"v_lshl_add_u32 v{vS}, v{vS+3}, 8, v{vS}")
    e(f"s_lshl_b32 s{sT0}, s{sT3}, 5"); e(f"v_xor_b32 v{vS}, s{sT0}, v{vS}")
    e(f"s_lshl_b32 s{sT0}, s{sRG}, 13"); e(f"s_add_u32 s{sT0}, s{sT0}, {YB + 0x8000}"); e(f"v_add_u32 v{vFR}, s{sT0}, v{vS}")
    for s in range(1, 8): e(f"v_xor_b32 v{vFR+s}, {32*s}, v{vFR}")
    e(f"s_lshl_b32 s{sT0}, s{sP}, 9"); e(f"s_add_u32 s{sT0}, s{sT0}, {CSX}")
    e(f"v_lshl_add_u32 v{vCSR}, v{vS+3}, 4, s{sT0}")
    e(f"s_lshl_b32 s{sT0}, s{sRG}, 2"); e(f"v_add_u32 v{vCSW}, s{sT0}, v{vCSR}")
    e(f"v_mov_b32 v{vQ}, 0"); e(f"v_mov_b32 v{vQ+1}, 0")
    def auxl(lbl):
        t = f"s_cmp_eq_u32 s{sTYPE}, 0;;s_cbranch_scc1 {lbl}Q"
        for i in range(4): t += f";;buffer_load_ushort v{vAUX+i}, v{vAL}, {sr(SAUX,4)}, s{sCOL+i} offen"
        t += f";;s_branch {lbl}D;;{lbl}Q:"
        t += f";;s_lshl_b32 m0, s{sW}, 10;;s_nop 0;;buffer_load_dwordx4 v{vAL}, {sr(SAUX,4)}, 0 offen lds"
        t += f";;{lbl}D:"
        return t
    if OPT.get("x_p2only"):
        e("s_waitcnt vmcnt(0)"); e("s_barrier")
        e(f"s_cmp_eq_u32 s{sISC}, 0"); e("s_cbranch_scc1 K_FIN")
        e("s_branch K_FTAIL")
    ROW = [YB + 0x4000, YB + 0x6000, YB + 0xC000, YB + 0xE000, 0x22000, 0x24000, 0x26000] + [0x2000 * k for k in range(6)]
    NL, NE, NW1 = len(ROW), 7, OPT.get("nw1", 4)
    sE1, sE2, SWE = 68, 69, 64
    sA0, sA1, sWK, sLB, sP0, sP1, sKV, sWO_, sXO, sXO2, sPF, sCNT = 30, 33, 43, 34, 51, 52, 53, 54, 55, 56, 57, 3
    SW2, SWO = SW, SAUX
    vTR0, vTR1, vXO, vPA = 4, 5, 6, vS + 2
    ND = vS + 3
    sEA = sWB
    order = [0, 1, 2, 3, 16, 17, 18, 19, 4, 5, 6, 7, 20, 21, 22, 23, 8, 9, 10, 11, 24, 25, 26, 27, 12, 13, 14, 15]
    def wdma(i):
        lo = ROW[i % NL]
        S, base, off = (SW2, sWK, order[i] * 16384) if i < 28 else (SWO, sWO_, (i - 28) * 16384)
        return [f"s_add_u32 m0, s{sLB}, {lo + 1024*k};;s_add_u32 s{sT0}, s{base}, {off + 8192*k};;buffer_load_dwordx4 v{vDMA}, {sr(S,4)}, s{sT0} offen lds" for k in range(2)]
    def erow(i, vd):
        return f"s_add_u32 m0, s{sE1}, {ROW[i]};;s_add_u32 s{sT0}, s{sE2}, {order[i]*16384};;buffer_load_dwordx4 v{vd}, {sr(SWE,4)}, s{sT0} offen lds"
    def dmalane(vd, t0, t1):
        e(f"v_lshrrev_b32 v{vd}, 3, v{vL}"); e(f"v_lshlrev_b32 v{vd}, 10, v{vd}")
        e(f"v_and_b32 v{t0}, 7, v{vL}"); e(f"v_bfe_u32 v{t1}, v{vL}, 4, 1"); e(f"v_lshlrev_b32 v{t1}, 2, v{t1}")
        e(f"v_xor_b32 v{t1}, v{t0}, v{t1}"); e(f"v_lshl_add_u32 v{vd}, v{t1}, 4, v{vd}")
    def cbcalc():
        if OPT.get("cbmap", 0) == 0:
            e(f"s_lshr_b32 s{sT1}, s{sIDX}, 2"); e(f"s_lshl_b32 s{sT1}, s{sT1}, 7")
        else:
            e(f"s_lshr_b32 s{sT1}, s{sIDX}, 3"); e(f"s_lshl_b32 s{sT0}, s{sTYPE}, 2"); e(f"s_add_u32 s{sT1}, s{sT1}, s{sT0}"); e(f"s_lshl_b32 s{sT1}, s{sT1}, 7")
    def p2_setup():
        e(f"s_cmp_lg_u32 s{sISC}, 0"); e("s_cselect_b64 vcc, -1, 0")
        srd(e, SW2, 96, 97, 1792 * 1024)
        srd(e, SWO, 98, 99, 512 * 1024)
        cbcalc()
        e(f"s_lshl_b32 s{sWO_}, s{sRG}, 17"); e(f"s_add_u32 s{sWO_}, s{sWO_}, s{sT1}")
        e(f"v_lshrrev_b32 v{vXO}, 3, v{vL}"); e(f"v_lshlrev_b32 v{vXO}, 10, v{vXO}")
        e(f"v_and_b32 v{vTR0}, 7, v{vL}"); e(f"v_bfe_u32 v{vTR1}, v{vL}, 4, 1"); e(f"v_lshlrev_b32 v{vTR1}, 2, v{vTR1}")
        e(f"v_xor_b32 v{vTR1}, v{vTR0}, v{vTR1}"); e(f"v_lshl_add_u32 v{vDMA}, v{vTR1}, 4, v{vXO}")
        e(f"v_lshl_add_u32 v{vXO}, v{vTR0}, 4, v{vXO}")
        e(f"s_lshr_b32 s{sT1}, s{sC}, 2"); e(f"s_lshl_b32 s{sT1}, s{sT1}, 1"); e(f"s_lshl_b32 s{sT2}, s{sRB}, 2"); e(f"s_add_u32 s{sT1}, s{sT1}, s{sT2}")
        fragoff(vF0, sT1); e(f"s_add_u32 s{sT1}, s{sT1}, 1"); fragoff(vF1, sT1)
    def early_scalars():
        e(f"s_lshr_b32 s{sT1}, s{sC}, 2"); e(f"s_lshl_b32 s{sT2}, s{sRB}, 1"); e(f"s_add_u32 s{sT2}, s{sT2}, s{sT1}")
        e(f"s_mul_i32 s{sA0}, s{sT2}, {4*114688}"); e(f"s_mul_i32 s{sT0}, s{sRG}, {28*2048}")
        e(f"s_add_u32 s{sA0}, s{sA0}, s{sT0}"); e(f"s_add_u32 s{sA1}, s{sA0}, {2*114688}")
        e(f"s_lshl_b32 s{sPF}, s{sRT}, 11"); e(f"s_lshl_b32 s{sT0}, s{sT1}, 8")
        e(f"s_add_u32 s{sPF}, s{sPF}, s{sT0}"); e(f"s_add_u32 s{sPF}, s{sPF}, {FLG_OFF + 128*1024}")
        e(f"s_cmp_lg_u32 s{sISC}, 0"); e(f"s_cselect_b32 s{sEA}, 1, 64")
        cbcalc()
        e(f"s_mul_i32 s{sWK}, s{sRG}, {448*1024}"); e(f"s_add_u32 s{sWK}, s{sWK}, s{sT1}")
        e(f"s_lshl_b32 s{sLB}, s{sRG}, 11")
        e(f"s_lshl_b32 s{sT0}, s{sP}, 10"); e(f"s_add_u32 s{sE1}, s{sLB}, s{sT0}")
        e(f"s_lshl_b32 s{sT0}, s{sP}, 13"); e(f"s_add_u32 s{sE2}, s{sWK}, s{sT0}")
        srd(e, SWE, 96, 97, 1792 * 1024)
    def poll_addr():
        e(f"v_lshrrev_b32 v{vPA}, 1, v{vL}"); e(f"v_lshlrev_b32 v{vPA}, 9, v{vPA}")
        e(f"v_and_b32 v{ND}, 1, v{vL}"); e(f"v_lshl_add_u32 v{vPA}, v{ND}, 7, v{vPA}")
    vD2 = vAUX + 10
    dmalane(vD2, vS + 2, vS + 3)
    poll_addr()
    for j in range(4): e(f"v_mov_b32 v{PK+4+j}, -1")
    SPm, SMm = vAUX + 4, vAUX + 8
    e(f"s_cmp_lg_u32 s{sTYPE}, 0"); e("s_cbranch_scc1 K_NSEL")
    e(f"v_lshlrev_b32 v{vS+4}, 2, v{vS+4}"); e(f"v_sub_u32 v{vS+4}, v{vS+1}, v{vS+4}")
    e(f"v_mov_b32 v{vS}, s{sLO}"); e(f"v_mov_b32 v{vS+5}, s{sHI}")
    for t, f0 in enumerate((0, 2, 8, 10)):
        e(f"v_cmp_eq_u32 vcc, {f0}, v{vS+4};;v_cmp_eq_u32 s[62:63], {f0+1}, v{vS+4};;s_nop 0;;"
          f"v_cndmask_b32 v{SMm+t}, 0, v{vS}, vcc;;v_cndmask_b32 v{SMm+t}, v{SMm+t}, v{vS+5}, s[62:63]")
    for j in range(4):
        e(f"v_cndmask_b32 v{SPm+j}, 0, v{SMm+j}, {sr(sLT16,2)}"); e(f"v_cndmask_b32 v{SMm+j}, v{SMm+j}, 0, {sr(sLT16,2)}")
    e(f"v_bfe_u32 v{vS}, v{vL}, 4, 1"); e(f"v_lshlrev_b32 v{vAUX}, 9, v{vS}")
    e(f"v_lshrrev_b32 v{vS}, 5, v{vL}"); e(f"v_lshl_add_u32 v{vAUX}, v{vS}, 7, v{vAUX}")
    e(f"v_lshl_add_u32 v{vAUX}, v{vS+1}, 3, v{vAUX}")
    e(f"s_lshl_b32 s{sT0}, s{sW}, 10"); e(f"v_add_u32 v{vAUX}, s{sT0}, v{vAUX}")
    e.label("K_NSEL")
    st("su")
    e.ext(sset(1))
    st("i1")

    def wrd(s):
        b = WB + 4 * (s % NWB); o = 1024 * (s & 12) + 0x8000 * (s >> 4)
        return [f"ds_read_b64_tr_b16 {vr(b,2)}, v{vTR+(s&3)} offset:{o}", f"ds_read_b64_tr_b16 {vr(b+2,2)}, v{vTR+(s&3)} offset:{o+256}"]
    def csm(s):
        return f"{M16} {vr(CS,4)}, {vr(SELC,4)}, {vr(WB+4*(s%NWB),4)}, {'0' if s == 0 else vr(CS,4)}"
    XO = (0x8000, 0, 0x8000, 0x8000)
    def rd(s):
        return [f"ds_read_b128 {vr(XF+4*s,4)}, v{vFR+(s&7)} offset:{XO[s>>3]}"] + wrd(s)
    VM = {0: 6, 1: 6, 2: 6, 3: 4, 4: 63}
    def sync(k):
        l = [f"s_waitcnt vmcnt({VM[k]}) lgkmcnt(0)", "s_barrier"]
        if k == 3: l[0] = f"s_waitcnt vmcnt(5) lgkmcnt(0);;s_lshr_b32 s{sT0}, s{sW}, 1;;s_cmp_eq_u32 s{sT0}, 1;;s_cbranch_scc1 K_S3;;s_waitcnt vmcnt(4);;K_S3:"
        st(f"sync{k}", l)
        if k == 1: l += [f"v_subrev_u32 v{vFR+t}, 0x8000, v{vFR+t}" for t in range(8)]
        if k == 3: l += [f"v_add_u32 v{vFR+t}, 0x8000, v{vFR+t}" for t in range(8)]
        return l
    G = []
    g0 = sync(0)
    for s_ in range(4): g0 += rd(s_)
    G.append(g0)
    for s_ in range(32):
        g = []
        if s_ % 8 == 4: g += sync(s_ // 8 + 1)
        if s_ + 4 < 32: g += rd(s_ + 4)
        if s_ % 8 < 4: g.append(f"s_waitcnt lgkmcnt(12)")
        d = EACC if s_ == 31 else ACC
        g.append(f"{MFMA} {vr(d,16)}, {vr(WB+4*(s_%NWB),4)}, {vr(XF+4*s_,4)}, {'0' if s_ == 0 else vr(ACC,16)}")
        if s_ % 4 == 0: g.append(csm(s_))
        if s_ % 2 == 0:
            g.append(f"{M16} {vr(RS,4)}, {vr(SELC,4)}, {vr(XF+4*s_,4)}, {'0' if s_ == 0 else vr(RS,4)}")
            for r in range(4): g.append(f"v_dot2c_f32_bf16 v{vQ+(r&1)}, v{XF+4*s_+r}, v{XF+4*s_+r}")
        G.append(g)
    if OPT.get("z_nodot"): G = [[i for i in g if "dot2c" not in i] for g in G]
    if OPT.get("z_nom16"): G = [[i for i in g if "16x16x32" not in i] for g in G]
    if OPT.get("z_gram"): G = [[(f"{MFMA} {vr(PK,16)}, {i.split(', ')[1].replace('v','v[') + ':' + str(int(i.split(', ')[1][1:])+3) + ']'}, {i.split(', ')[1].replace('v','v[') + ':' + str(int(i.split(', ')[1][1:])+3) + ']'}, {vr(PK,16)}" if "dot2c" in i else i) for i in g if not ("dot2c" in i and int(i.split(', ')[1][1:]) % 4)] for g in G]
    d8 = dma8()
    if WTA == 0: e(wt)
    e.ext(interleave(G[0:5], sset(2) + ([wt] if WTA == 1 else []), 0, 4))
    e.ext(interleave(G[5:13], sset(3) + ([wt] if WTA == 2 else []), 0, 6))
    e(f"s_add_u32 s{sDA}, s{sROWO}, s{sCOL+1}"); e(f"s_add_u32 s{sMA}, s{sLB0}, {YB}")
    mark = len(e.L)
    early_scalars()
    e(f"s_mul_i32 s{sOUT}, s{sRT}, {2*114688}"); e(f"s_lshl_b32 s{sT0}, s{sP}, 12"); e(f"s_add_u32 s{sOUT}, s{sOUT}, s{sT0}")
    e(f"s_and_b32 s{sAUXO}, s{sC}, 1"); e(f"s_lshl_b32 s{sAUXO}, s{sAUXO}, 6"); e(f"s_add_u32 s{sAUXO}, s{sAUXO}, s{sCOL+3}")
    e(f"s_lshl_b32 s{sSLOT}, s{sAUXO}, 6"); e(f"s_add_u32 s{sSLOT}, s{sSLOT}, s{sOUT}"); e(f"s_lshl_b32 s{sT0}, s{sP}, 11"); e(f"s_sub_u32 s{sSLOT}, s{sSLOT}, s{sT0}")
    e(f"s_lshl_b32 s{sT0}, s{sW}, 7"); e(f"s_add_u32 s{sST}, s{sT0}, {RVO}")
    sc = [t.strip() for t in e.L[mark:]]; del e.L[mark:]
    h_ = [";;".join(sc[:12]), ";;".join(sc[12:])] if False else [";;".join(sc)]
    e.ext(interleave(G[13:21], d8[:4] + h_, 0, 6))
    pf = f"s_cmp_eq_u32 s{sTYPE}, 0;;s_cbranch_scc1 K_NPF;;" + ";;".join(f"v_mov_b32 v{EACC+j}, -1" for j in range(4))
    pf += (f";;s_lshl_b32 s{sT0}, s{sRB}, 3;;s_add_u32 s{sT0}, s{sT0}, s{sC};;s_lshl_b32 s{sT0}, s{sT0}, 14;;s_lshl_b32 s{sT1}, s{sW}, 10;;s_add_u32 s{sT2}, s{sT0}, s{sT1};;"
           f"s_add_u32 s{sT2}, s{sT2}, {KVP_OFF};;buffer_store_dwordx4 {vr(EACC,4)}, v{vL16}, {sr(SWS,4)}, s{sT2} offen sc1;;"
           f"s_lshl_b32 s{sT0}, s{sRT}, 16;;s_lshl_b32 s{sT1}, s{sC}, 13;;s_add_u32 s{sT0}, s{sT0}, s{sT1};;s_lshl_b32 s{sT1}, s{sP}, 12;;s_add_u32 s{sT0}, s{sT0}, s{sT1};;"
           f"s_add_u32 s{sT0}, s{sT0}, {PQ_OFF};;buffer_store_dwordx4 {vr(EACC,4)}, v{vFO}, {sr(SWS,4)}, s{sT0} offen sc1;;"
           f"buffer_store_dwordx4 {vr(EACC,4)}, v{vFO}, {sr(SWS,4)}, s{sT0} offen offset:2048 sc1;;"
           f"s_cmp_lg_u32 s{sW}, 7;;s_cbranch_scc1 K_NPF;;s_lshl_b32 s{sT0}, s{sC}, 4;;s_add_u32 s{sT0}, s{sT0}, s{sRB};;s_lshl_b32 s{sT0}, s{sT0}, 9;;"
           f"s_add_u32 s{sT0}, s{sT0}, {KVZ_OFF};;s_mov_b32 exec_hi, 0;;buffer_store_dwordx4 {vr(EACC,4)}, v{vL16}, {sr(SWS,4)}, s{sT0} offen sc1;;"
           f"buffer_store_dwordx4 {vr(EACC,4)}, v{vL16}, {sr(SWS,4)}, s{sT2} offen offset:1024 sc1;;s_mov_b32 exec_hi, -1;;K_NPF:")
    e.ext(interleave(G[21:], [auxl("K_AUX")] + d8[4:] + [pf], 0, 5))
    tA, tB, tC = vFR, vFR + 1, vFR + 2
    e(f"v_and_b32 v{tB}, 31, v{vL}")
    e(f"s_lshl_b32 s{sT0}, s{sW}, 8"); e(f"s_add_u32 s{sT0}, s{sT0}, {STAT}")
    e(f"v_add_f32 v{vQ}, v{vQ}, v{vQ+1}")
    e(f"v_mov_b32 v{vQ+1}, v{vQ}")
    e(f"v_lshl_add_u32 v{tA}, v{tB}, 3, s{sT0}")
    e(f"v_lshlrev_b32 v{tC}, 2, v{tB}")
    e(f"v_permlane32_swap_b32 v{vQ}, v{vQ+1}")
    e(f"v_add_f32 v{RS+1}, v{vQ}, v{vQ+1}")
    e(f"ds_write_b64 v{tA}, {vr(RS,2)}")
    e(f"ds_write_b32 v{vCSW}, v{CS}")
    e(f"v_add_u32 v{tB}, {GSY:#x}, v{tC}"); e(f"ds_write_b32 v{tB}, v{AUG+4}")
    e(f"v_xor_b32 v{tA}, 1024, v{tA}")
    e("s_waitcnt lgkmcnt(0)")
    e("s_barrier")
    e(f"ds_read_b64 {vr(vS,2)}, v{tA}")
    for k in range(4): e(f"v_xor_b32 v{vTR+k}, 0x10000, v{vTR+k}")
    e(f"v_xor_b32 v{vCSW}, 1024, v{vCSW}")
    e(f"v_cmp_gt_u32 vcc, 32, v{vL}")
    e("s_waitcnt lgkmcnt(0)")
    a, b = vS, vS + 1
    e(f"v_add_f32 v{a}, v{a}, v{RS}"); e(f"v_add_f32 v{b}, v{b}, v{RS+1}")
    e(f"v_mul_f32 v{a}, {f2u(-1.0/512):#x}, v{a}"); e(f"v_mul_f32 v{b}, {f2u(1.0/512):#x}, v{b}")
    e(f"v_fma_f32 v{b}, -v{a}, v{a}, v{b}"); e(f"v_cvt_pk_bf16_f32 v{AUG+2}, v{a}, v{a}")
    e(f"v_max_f32 v{b}, 0, v{b}")
    e(f"v_cvt_pk_bf16_f32 v{b}, v{b}, v{b}"); e(f"v_and_b32 v{b}, s{sMASK}, v{b}")
    e(f"v_add_f32 v{b}, {f2u(1e-5):#x}, v{b}"); e(f"v_cvt_pk_bf16_f32 v{b}, v{b}, v{b}")
    e(f"v_and_b32 v{b}, s{sMASK}, v{b}"); e(f"v_sqrt_f32 v{b}, v{b}")
    e(f"v_cndmask_b32 v{AUG+2}, 0, v{AUG+2}, vcc")
    e(f"v_cvt_pk_bf16_f32 v{AUG+3}, v{a}, v{b}")
    e(f"v_and_b32 v{b}, s{sMASK}, v{AUG+3}")
    e(f"v_rcp_f32 v{a}, v{b}")
    e(f"v_cndmask_b32 v{AUG+3}, 0, v{AUG+3}, vcc")

    APOLL = f"v_lshlrev_b32 v{vS+4}, 7, v{vL};;s_mov_b64 exec, 3;;buffer_load_dword v{vS+5}, v{vS+4}, {sr(SDBG,4)}, 0 offen sc1;;s_mov_b64 exec, -1"
    def apoll7():
        l2 = L("X")
        e(f"s_cmp_lg_u32 s{sW}, 7"); e(f"s_cbranch_scc1 {l2}")
        e(APOLL)
        e.label(l2)
    def r2_check(n=1):
        l2 = L("X")
        e(f"s_cmp_lg_u32 s{sW}, 7"); e(f"s_cbranch_scc1 {l2}")
        e(f"s_waitcnt vmcnt({n})")
        check([(APOLL, vS + 5, 3, 64)])
        e.label(l2)
    def publish(lev, vt):
        if OPT.get("x_nopub"): return "s_nop 0"
        return (f"v_mov_b32 v{vt}, {lev};;v_lshlrev_b32 v{vDUM}, 2, v{vL};;s_mov_b32 exec_hi, 0;;"
                f"buffer_store_dword v{vt}, v{vDUM}, {sr(SWS,4)}, s{sFLG} offen sc1;;s_mov_b32 exec_hi, -1")
    def midpub(n, lev, vt):
        a_, b_ = L("P"), L("P")
        return f"s_cbranch_vccz {a_};;s_waitcnt vmcnt({n});;s_branch {b_};;{a_}:;;s_waitcnt vmcnt(0);;{b_}:;;" + publish(lev, vt)
    def mgroups(swap=False, pre=(), cq=PK):
        PF = NWB - 1
        G = []
        g0 = [f"ds_read_b128 {vr(cq,4)}, v{vCSR}"] + list(pre)
        for s in range(PF): g0 += wrd(s)
        G.append(g0)
        for s in range(32):
            g = []
            if s + PF < 32: g += wrd(s + PF)
            g.append(f"s_waitcnt lgkmcnt({2 * min(PF, 31 - s)})")
            w, x = vr(WB + 4 * (s % NWB), 4), vr(XF + 4 * s, 4)
            a, b = (x, w) if swap else (w, x)
            d = EACC if s == 31 else ACC
            g.append(f"{MFMA} {vr(d,16)}, {a}, {b}, {'0' if s == 0 else vr(ACC,16)}")
            if s % 4 == 0: g.append(csm(s))
            G.append(g)
        return G
    def aug(bias=None, swap=False, cq=PK):
        l = Lst()
        c, t = cq, cq + 1
        l(f"v_add_f32 v{c}, v{c}, v{c+1}"); l(f"v_add_f32 v{c+2}, v{c+2}, v{c+3}"); l(f"v_add_f32 v{c}, v{c}, v{c+2}")
        l(f"v_cvt_pk_bf16_f32 v{t}, v{c}, v{c}"); l(f"v_and_b32 v{t}, s{sMASK}, v{t}"); l(f"v_sub_f32 v{t}, v{c}, v{t}")
        l(f"v_cvt_pk_bf16_f32 v{AUG}, v{c}, v{t}"); l(f"v_and_b32 v{c}, s{sMASK}, v{AUG}"); l(f"v_sub_f32 v{t}, v{t}, v{c}")
        l(f"v_cvt_pk_bf16_f32 v{AUG+1}, v{t}, {'v%d' % bias if bias is not None else '0'}")
        a, b = (vr(AUG+2,4), vr(AUG,4)) if swap else (vr(AUG,4), vr(AUG+2,4))
        l(f"s_nop 1;;{MFMA} {vr(EACC,16)}, {a}, {b}, {vr(EACC,16)}")
        l.extend(["@MARK", "@PAD", "@PAD", "@PAD", "@NEED 12"])
        return l
    def round_toggle():
        e(f"ds_write_b32 v{vCSW}, v{CS}")
        for k in range(4): e(f"v_xor_b32 v{vTR+k}, 0x10000, v{vTR+k}")
        e(f"v_xor_b32 v{vCSW}, 1024, v{vCSW}"); e(f"v_xor_b32 v{vCSR}, 1024, v{vCSR}")

    FPOLL = f"s_mov_b64 exec, 0xff;;buffer_load_dword v{ND}, v{vPA}, {sr(SWS,4)}, s{sPF} offen sc1;;s_mov_b64 exec, -1"
    def checkt(items, spin=SPIN):
        if OPT.get("x_nochk"): return "s_nop 0"
        top, ok = L("C"), L("C")
        t = [f"s_mov_b32 s{sCNT}, 0", f"{top}:"]
        for k, (pt, reg, msk, thr) in enumerate(items):
            t += [f"s_movk_i32 s{sT1}, {thr}", f"v_cmp_gt_u32 s[62:63], s{sT1}, v{reg}", "s_nop 0"]
            if k == 0: t.append(f"s_and_b32 s{sT0}, s62, {msk:#x}")
            else: t += [f"s_and_b32 s{sT1}, s62, {msk:#x}", f"s_or_b32 s{sT0}, s{sT0}, s{sT1}"]
        t += [f"s_cbranch_scc0 {ok}", "s_sleep 8"]
        t += [pt for (pt, reg, msk, thr) in items]
        t += [f"s_add_u32 s{sCNT}, s{sCNT}, 1", f"s_cmp_lt_u32 s{sCNT}, {spin}", "s_waitcnt vmcnt(0)", f"s_cbranch_scc1 {top}", f"{ok}:"]
        if OPT.get("cnt"): t += [f"s_mul_i32 s91, s91, 10", f"s_min_u32 s{sT0}, s{sCNT}, 9", f"s_add_u32 s91, s91, s{sT0}"]
        return ";;".join(t)
    def check(items): e(checkt(items))
    def sentinel(R, n, vt, reload):
        top, ok = L("V"), L("V")
        t = [f"s_mov_b32 s{sCNT}, 0", f"{top}:", f"v_max_u32 v{vt}, v{R}, v{R+1}"]
        t += [f"v_max3_u32 v{vt}, v{vt}, v{R+k}, v{R+k+1}" for k in range(2, n, 2)]
        t += [f"v_cmp_eq_u32 vcc, -1, v{vt}", "s_nop 0", "s_cmp_eq_u64 vcc, 0", f"s_cbranch_scc1 {ok}", "s_sleep 8", reload,
              f"s_add_u32 s{sCNT}, s{sCNT}, 1", f"s_cmp_lt_u32 s{sCNT}, {SPIN // 8}", "s_waitcnt vmcnt(0)", f"s_cbranch_scc1 {top}", f"{ok}:"]
        if OPT.get("cnt"): t += [f"s_mul_i32 s91, s91, 10", f"s_min_u32 s{sT0}, s{sCNT}, 9", f"s_add_u32 s91, s91, s{sT0}"]
        return ";;".join(t)
    RING, NU, NA = 128, 12, OPT.get("na", 8)
    unit = [i % NU for i in range(36)]
    ASC = "" if OPT.get("x_plain") else "sc1"
    def aload(i):
        R = RING + 8 * unit[i]; t = ""
        ks, b0, b1 = (order[i], sA0, sA1) if i < 28 else (i - 28, sP0, sKV)
        if i % 2 == 0: t = f"s_add_u32 s{sT3}, s{b0}, {2048*ks};;s_add_u32 s{sT4}, s{b1}, {2048*ks};;"
        return [t + f"buffer_load_dwordx4 {vr(R,4)}, v{vF0}, {sr(SWS,4)}, s{sT3} offen offset:{2048*(ks&1)} {ASC}",
                f"buffer_load_dwordx4 {vr(R+4,4)}, v{vF1}, {sr(SWS,4)}, s{sT4} offen offset:{2048*(ks&1)} {ASC}"]
    def tail(E, lev, vt):
        l1 = [guard("s_waitcnt vmcnt(1);;" + checkt([(FPOLL, ND, 0xff, 1)]))]
        for i in range(NA): l1 += [guard(t) for t in aload(i)]
        l2 = []
        for i in range(NE, NE + NW1): l2 += [guard(t) for t in wdma(i)]
        E = list(E)
        h = int(len(E) * 0.5)
        return merge(E[:h], l1) + merge(E[h:], l2, 0.9)

    def l2pf(r, x=0):
        return (f"s_lshr_b32 s{sT0}, s{sIDX}, 3;;s_lshl_b32 s{sT0}, s{sT0}, 2;;s_and_b32 s{sT1}, s{sIDX}, 3;;s_add_u32 s{sT0}, s{sT0}, s{sT1};;s_lshl_b32 s{sT0}, s{sT0}, 3;;"
                f"s_xor_b32 s{sT1}, s{sW}, {x};;s_add_u32 s{sT0}, s{sT0}, s{sT1};;s_lshl_b32 s{sT1}, s2, 4;;s_add_u32 s{sT0}, s{sT0}, s{sT1};;s_and_b32 s{sT0}, s{sT0}, 127;;"
                f"s_mul_i32 s{sT0}, s{sT0}, 14336;;s_add_u32 s{sT0}, s{sT0}, {7168*r};;s_mov_b64 s[92:93], s[96:97];;s_mov_b32 s94, {1792*1024};;s_mov_b32 s95, 0x00020000;;"
                f"v_lshlrev_b32 v{vDUM}, 7, v{vL};;s_bfm_b64 exec, 56, 0;;buffer_load_dword v{vDUM}, v{vDUM}, s[92:95], s{sT0} offen;;s_mov_b64 exec, -1")
    L2 = OPT.get("l2pf", 0)
    e(f"s_cmp_eq_u32 s{sTYPE}, 0")
    e("s_cbranch_scc1 K_QKV")
    vSS, vPB = vAUX + 8, vAUX + 9
    k0 = -2.0 * math.sqrt(2.0 / math.pi) * math.log2(math.e)
    e(f"v_mov_b32 v{vSS}, v{vS+1}")
    e(f"v_mul_f32 v{vC1}, {f2u(k0):#x}, v{vS}")
    e(f"v_mul_f32 v{vC0}, v{vS}, v{vS}"); e(f"v_mul_f32 v{vC0}, v{vC0}, v{vC1}"); e(f"v_mul_f32 v{vC0}, {f2u(0.044715):#x}, v{vC0}")
    e("s_waitcnt vmcnt(0)")
    for i in range(4): e(f"v_lshlrev_b32 v{vAUX+i}, 16, v{vAUX+i}")
    e("s_barrier")
    st("r0end")
    e(f"s_cmp_lg_u32 s{sW}, 7"); e("s_cbranch_scc1 K_NA")
    e(f"s_and_b32 s{sT0}, s2, 1"); e(f"s_lshl_b32 s{sT0}, s{sT0}, 7")
    e(f"v_mov_b32 v{vDUM}, 1")
    e("s_mov_b64 exec, 1")
    e(f"buffer_atomic_add v{vDUM}, v{AUG+4}, {sr(SDBG,4)}, s{sT0} offen sc1")
    e("s_mov_b64 exec, -1")
    e.label("K_NA")
    e(f"s_cmp_eq_u32 s{sW}, 7"); e(f"s_cselect_b32 s{sIT}, 0, 64")
    e("s_mov_b64 vcc, -1")
    def gelu(r):
        l = aug(bias=vAUX + r)
        for half in range(2):
            rng = range(8 * half, 8 * half + 8)
            for i in rng: l(f"v_mul_f32 v{TMP+i}, v{EACC+i}, v{EACC+i}")
            for i in rng: l(f"v_fma_f32 v{TMP+i}, v{TMP+i}, v{vC0}, v{vC1}")
            for i in rng: l(f"v_mul_f32 v{TMP+i}, v{EACC+i}, v{TMP+i}")
            for i in rng: l(f"v_exp_f32 v{TMP+i}, v{TMP+i}")
            for i in rng: l(f"v_fma_f32 v{TMP+i}, v{TMP+i}, v{vSS}, v{vSS}")
            for i in rng: l(f"v_rcp_f32 v{TMP+i}, v{TMP+i}")
            for i in rng: l(f"v_mul_f32 v{TMP+i}, v{EACC+i}, v{TMP+i}")
            for i in range(4): l(f"v_cvt_pk_bf16_f32 v{PK+8+4*half+i}, v{TMP+8*half+2*i}, v{TMP+8*half+2*i+1}")
            l(f"buffer_store_dwordx4 {vr(PK+8+4*half,4)}, v{vFO}, {sr(SWS,4)}, s{sST} offen offset:{2048*half} {STF}")
        return l
    st("f0")
    def stbase(r): e(f"s_lshl_b32 s{sST}, s{sCOL+r}, 6"); e(f"s_add_u32 s{sST}, s{sST}, s{sOUT}")
    def place(fl, items):
        n_ = len(fl)
        for pos, it in sorted(items, key=lambda x: -x[0]): fl.insert(int(n_ * pos / 100), it)
        return fl
    def spread(items, p0, p1): return [(p0 + (p1 - p0) * k / max(1, len(items) - 1), it) for k, it in enumerate(items)]
    stbase(0)
    e(f"s_add_u32 s{sDA}, s{sROWO}, s{sCOL+2}"); e(f"s_mov_b32 s{sMA}, s{sLB0}")
    hp = [f"s_lshl_b32 s{sT0}, s{sCOL+1+k//2}, 6;;s_add_u32 s{sT0}, s{sT0}, s{sOUT};;buffer_store_dwordx4 {vr(PK+4,4)}, v{vFO}, {sr(SWS,4)}, s{sT0} offen offset:{2048*(k&1)} sc1" for k in range(4)]
    hp.append(f"buffer_store_dwordx4 {vr(PK+4,4)}, v{vFO}, {sr(SWS,4)}, s{sSLOT} offen sc1")
    ea = f"s_cmp_lg_u32 s{sW}, 7;;s_cbranch_scc1 K_FE1;;" + APOLL + ";;K_FE1:"
    fl = place(gelu(0), spread(dma8(), 0, OPT.get("d1", 36)) + spread(hp, OPT.get("hp0", 44), OPT.get("hp1", 82)) + [(85, ea)])
    e.ext(interleave(mgroups(), fl, 1, 31))
    st("b1")
    round_toggle()
    stbase(1)
    e(f"s_add_u32 s{sDA}, s{sROWO}, s{sAUXO}"); e(f"s_add_u32 s{sMA}, s{sLB0}, {YB}")
    e(f"s_cmp_lg_u32 s{sISC}, 0"); e("s_cselect_b64 vcc, -1, 0")
    e(f"s_waitcnt vmcnt(7) lgkmcnt(0)")
    r2_check()
    e("s_barrier")
    st("r1end")
    d4 = []
    for i in range(4):
        jg, jl = (f"s{sJG}", "0x7c00") if i == 1 else (f"s{sP16}", "1024")
        d4.append(f"s_mov_b32 m0, s{sMA};;s_add_u32 s{sMA}, s{sMA}, {jl};;buffer_load_dwordx4 v{vDMA}, {sr(SW,4)}, s{sDA} offen lds;;s_add_u32 s{sDA}, s{sDA}, {jg}")
    KR = OPT.get("kr", 3)
    er = [erow(i, vD2) for i in range(NE)]
    mp = f"s_waitcnt vmcnt({4 + KR});;" + publish(1, vPB)
    fl = place(gelu(1), spread(d4 + er[:KR] + [mp] + er[KR:], 0, OPT.get("d2", 50)) + [(OPT.get("epat", 85), guard(FPOLL))])
    e.ext(interleave(mgroups(), fl, 1, 31))
    st("b2")
    round_toggle()
    stbase(2)
    e(f"s_waitcnt vmcnt(2) lgkmcnt(0)")
    e("s_barrier")
    st("r2end")
    e("s_cbranch_vccz K_FG")
    e(f"ds_read_b128 {vr(PK,4)}, v{vCSR}")
    p2_setup()
    e("s_waitcnt vmcnt(1) lgkmcnt(0)")
    check([(FPOLL, ND, 0xff, 1)])
    pre = []
    for i in range(NA): pre += aload(i)
    for i in range(NE, NE + NW1): pre += wdma(i)
    e.ext(place(gelu(2), spread(pre, 0, OPT.get("tl", 90))))
    e("s_branch K_P2")
    e.label("K_FG")
    e(f"s_lshl_b32 s{sT0}, s{sP}, 14")
    for k in range(4): e(f"v_subrev_u32 v{vTR+k}, s{sT0}, v{vTR+k}")
    e(f"s_setprio {OPT.get('gprio', 2)}")
    e.ext(interleave(mgroups(), gelu(2), 1, OPT.get("g3", 24)))
    st("b3")
    e(f"ds_write_b32 v{vCSW}, v{CS}")
    e(f"v_xor_b32 v{vCSR}, 1024, v{vCSR}")
    stbase(3)
    e(f"v_mov_b32 v{vS}, {GSY:#x}"); e(f"v_mov_b32 v{vS+1}, 1")
    e("s_waitcnt lgkmcnt(0)")
    e("s_mov_b64 exec, 1"); e(f"ds_add_u32 v{vS}, v{vS+1}"); e("s_mov_b64 exec, -1")
    e.label("K_FSP")
    e(f"ds_read_b32 v{vS+1}, v{vS}")
    e("s_waitcnt lgkmcnt(0)")
    e(f"v_readfirstlane_b32 s{sT0}, v{vS+1}")
    e("s_nop 3")
    e(f"s_cmp_lt_u32 s{sT0}, 4"); e("s_cbranch_scc1 K_FSP")
    e(f"ds_read_b128 {vr(PK,4)}, v{vCSR}")
    e("s_waitcnt lgkmcnt(0)")
    e.ext(gelu(3))
    e("s_branch K_GFIN")

    e.label("K_QKV")
    WT = vAUX
    e(f"v_mul_f32 v{vC0}, {f2u(math.log2(math.e)):#x}, v{vS}")
    e(f"v_add_u32 v{vS+1}, s{sST}, v{tC}")
    e(f"ds_write_b32 v{vS+1}, v{vS}")
    e(f"v_lshrrev_b32 v{vC1}, 5, v{vL}"); e(f"v_lshl_add_u32 v{vC1}, v{vC1}, 4, s{sST}")
    e("s_waitcnt vmcnt(0)")
    e(f"ds_read_b64_tr_b16 {vr(WT+2,2)}, v{vAUX} offset:256"); e(f"ds_read_b64_tr_b16 {vr(WT,2)}, v{vAUX}")
    e("s_waitcnt lgkmcnt(0)")
    e("s_barrier")
    st("r0end")
    def softcore(src):
        l = Lst()
        l(f"s_nop 1;;{MFMA} {vr(TMP,16)}, {vr(WT,4)}, {vr(src+4,4)}, 0;;{MFMA} {vr(EACC,16)}, {vr(WT,4)}, {vr(src,4)}, 0")
        l.extend(["@MARK", "@PAD", "@PAD", "@PAD", "@NEED 11"])
        for (P, EP, out) in ((TMP + 8, TMP, PK + 8), (EACC, EACC + 8, PK)):
            mx, mn = vS, vS + 1
            l(f"v_max3_f32 v{mx}, v{P}, v{P+1}, v{P+2}"); l(f"v_max3_f32 v{mn}, -v{P}, -v{P+1}, -v{P+2}")
            l(f"v_max3_f32 v{mx}, v{mx}, v{P+3}, v{P+4}"); l(f"v_max3_f32 v{mn}, v{mn}, -v{P+3}, -v{P+4}")
            l(f"v_max3_f32 v{mx}, v{mx}, v{P+5}, v{P+6}"); l(f"v_max3_f32 v{mn}, v{mn}, -v{P+5}, -v{P+6}")
            l(f"v_max_f32 v{mx}, v{mx}, v{P+7}"); l(f"v_max_f32_e64 v{mn}, v{mn}, -v{P+7}")
            l.extend(["@MARK", "@NEED 2"]); l(f"v_permlane32_swap_b32 v{mx}, v{mn}")
            l(f"v_max_f32 v{mx}, v{mx}, v{mn}")
            l(f"v_mul_f32_e64 v{mx}, -v{mx}, v{vC0}")
            l(f"v_mov_b32 v{mn}, v{mx}")
            l.extend(["@MARK", "@NEED 2"]); l(f"v_permlane32_swap_b32 v{mx}, v{mn}")
            for j in range(8): l(f"v_fma_f32 v{EP+j}, v{P+j}, v{vC0}, v{mx}")
            for j in range(8): l(f"v_fma_f32 v{P+j}, -v{P+j}, v{vC0}, v{mn}")
            for j in range(8): l(f"v_exp_f32 v{EP+j}, v{EP+j}")
            for j in range(8): l(f"v_exp_f32 v{P+j}, v{P+j}")
            s0, s1, s2, s3 = vS + 2, vS + 3, vS + 4, vS + 5
            l(f"v_add_f32 v{s0}, v{EP}, v{EP+1}"); l(f"v_add_f32 v{s1}, v{P}, v{P+1}")
            l(f"v_add_f32 v{s2}, v{EP+2}, v{EP+3}"); l(f"v_add_f32 v{s3}, v{P+2}, v{P+3}")
            for j in (4, 6):
                l(f"v_add_f32 v{s0}, v{s0}, v{EP+j}"); l(f"v_add_f32 v{s1}, v{s1}, v{P+j}")
                l(f"v_add_f32 v{s2}, v{s2}, v{EP+j+1}"); l(f"v_add_f32 v{s3}, v{s3}, v{P+j+1}")
            l(f"v_add_f32 v{s0}, v{s0}, v{s2}"); l(f"v_add_f32 v{s1}, v{s1}, v{s3}")
            l.extend(["@MARK", "@NEED 2"]); l(f"v_permlane32_swap_b32 v{s0}, v{s1}")
            l(f"v_add_f32 v{s0}, v{s0}, v{s1}")
            l(f"v_rcp_f32 v{s0}, v{s0}")
            l.extend(["@MARK", "@NEED 1"]); l(f"v_mov_b32 v{s1}, v{s0}")
            l.extend(["@MARK", "@NEED 2"]); l(f"v_permlane32_swap_b32 v{s0}, v{s1}")
            for j in range(8): l(f"v_mul_f32 v{EP+j}, v{EP+j}, v{s0}")
            for j in range(8): l(f"v_mul_f32 v{P+j}, v{P+j}, v{s1}")
            for j in range(4): l(f"v_cvt_pk_bf16_f32 v{out+j}, v{EP+2*j}, v{EP+2*j+1}")
            for j in range(4): l(f"v_cvt_pk_bf16_f32 v{out+4+j}, v{P+2*j}, v{P+2*j+1}")
        return l
    def kepi():
        l = aug()
        for i in range(8): l(f"v_cvt_pk_bf16_f32 v{PK+i}, v{EACC+2*i}, v{EACC+2*i+1}")
        l += softcore(PK)
        TD = (EACC, TMP)
        for a in (1, 0):
            l(f"s_nop 1;;{MFMA} {vr(TD[a],16)}, {vr(PK+8*a,4)}, {vr(SPm,4)}, 0;;{MFMA} {vr(TD[a],16)}, {vr(PK+8*a+4,4)}, {vr(SMm,4)}, {vr(TD[a],16)}")
        l(f"s_lshl_b32 s{sT0}, s{sP}, 10;;s_lshl_b32 s{sT1}, s{sRG}, 2;;s_add_u32 s{sT0}, s{sT0}, s{sT1};;s_add_u32 s{sT0}, s{sT0}, {ZSC};;v_and_b32 v{vS}, 0x1f0, v{vL16};;v_add_u32 v{vS}, s{sT0}, v{vS}")
        l.extend(["@MARK", "@PAD", "@NEED 4"])
        for a in (1, 0):
            for j in range(8): l(f"v_cvt_pk_bf16_f32 v{PK+8*a+j}, v{TD[a]+2*j}, v{TD[a]+2*j+1}")
        for a in (1, 0):
            l(f"s_nop 1;;{M16} {vr(TMP+4*a,4)}, {vr(SELC,4)}, {vr(PK+8*a,4)}, 0;;{M16} {vr(TMP+4*a,4)}, {vr(SELC,4)}, {vr(PK+8*a+4,4)}, {vr(TMP+4*a,4)}")
        l.extend(["@MARK", "@PAD", "@PAD", "@NEED 8"])
        for a in range(2): l(f"ds_write_b32 v{vS}, v{TMP+4*a} offset:{512*a}")
        return l
    CQ, VBQ = vAUX + 8, vAUX + 4
    def vepi():
        l = aug(swap=True, cq=CQ)
        for i in range(16): l(f"v_mul_f32 v{EACC+i}, v{EACC+i}, v{TMP+i}")
        for i in range(8): l(f"v_cvt_pk_bf16_f32 v{VBQ+i}, v{EACC+2*i}, v{EACC+2*i+1}")
        for i in range(8): l(f"v_cndmask_b32 v{TMP+i}, 0, v{VBQ+i}, {sr(sLT16,2)}")
        l(f"s_nop 1;;{MFMA} {vr(EACC,16)}, {vr(PK,4)}, {vr(TMP,4)}, 0;;{MFMA} {vr(EACC,16)}, {vr(PK+4,4)}, {vr(TMP+4,4)}, {vr(EACC,16)}")
        for i in range(8): l(f"v_cndmask_b32 v{TMP+8+i}, v{VBQ+i}, 0, {sr(sLT16,2)}")
        l(f"s_nop 1;;{MFMA} {vr(EACC,16)}, {vr(PK+8,4)}, {vr(TMP+8,4)}, {vr(EACC,16)};;{MFMA} {vr(EACC,16)}, {vr(PK+12,4)}, {vr(TMP+12,4)}, {vr(EACC,16)}")
        l.extend(["@MARK", "@PAD", "@PAD", "@PAD", "@NEED 12"])
        for q in range(4): l(f"ds_write_b128 v{vS+1}, {vr(EACC+4*q,4)} offset:{1024*q}")
        return l
    e(f"s_add_u32 s{sDA}, s{sROWO}, s{sCOL+2}"); e(f"s_mov_b32 s{sMA}, s{sLB0}")
    tch = (f"s_cmp_ge_u32 s{sW}, 4;;s_cbranch_scc1 K_NT;;s_lshl_b32 s{sT2}, s{sRB}, 3;;s_add_u32 s{sT2}, s{sT2}, s{sC};;s_lshl_b32 s{sT2}, s{sT2}, 1;;"
           f"s_and_b32 s{sT0}, s{sW}, 1;;s_add_u32 s{sT2}, s{sT2}, s{sT0};;s_cmp_lt_u32 s{sW}, 2;;s_cselect_b64 {sr(SAUX,2)}, s[96:97], s[98:99];;"
           f"s_mov_b32 s{sT0}, {1792*1024};;s_cselect_b32 s{SAUX+2}, s{sT0}, {512*1024};;s_movk_i32 s{sT0}, 7168;;s_cselect_b32 s{sT0}, s{sT0}, 2048;;"
           f"s_cselect_b32 s{sT1}, 56, 16;;s_mul_i32 s{sT0}, s{sT0}, s{sT2};;v_lshlrev_b32 v{vDUM}, 7, v{vL};;s_bfm_b64 exec, s{sT1}, 0;;"
           f"buffer_load_dword v{vDUM}, v{vDUM}, {sr(SAUX,4)}, s{sT0} offen;;s_mov_b64 exec, -1;;K_NT:")
    flq = merge(kepi(), dma8() + [tch], 0.35)
    if L2 in (1, 3, 4, 5): flq.insert(int(len(flq) * OPT.get("l2at", 60) / 100), l2pf(0))
    if L2 == 2:
        flq.insert(int(len(flq) * 0.62), l2pf(1)); flq.insert(int(len(flq) * 0.45), l2pf(0))
    QAP = APOLL.replace(f"v{vS+4}", f"v{vDUM}").replace(f"v{vS+5}", f"v{vDMA}")
    flq.insert(int(len(flq) * OPT.get("qap", 70) / 100), f"s_cmp_lg_u32 s{sW}, 7;;s_cbranch_scc1 K_QAP;;" + QAP + ";;K_QAP:")
    e.ext(interleave(mgroups(swap=True), flq, 1, 31))
    st("b1")
    round_toggle()
    e(f"s_lshl_b32 s{sT0}, s{sP}, 15"); e(f"s_lshl_b32 s{sT1}, s{sRG}, 12"); e(f"s_add_u32 s{sT0}, s{sT0}, s{sT1}"); e(f"s_add_u32 s{sT0}, s{sT0}, {YB}")
    e(f"v_add_u32 v{vS+1}, s{sT0}, v{vL16}")
    e(f"s_waitcnt vmcnt(0) lgkmcnt(0)")
    e(f"v_mov_b32 v{vS+5}, v{vDMA}")
    r2_check(0)
    dmalane(vDMA, vS + 2, vS + 3)
    poll_addr()
    e(f"s_lshl_b32 s{sT0}, s{sP}, 15"); e(f"s_lshl_b32 s{sT1}, s{sRG}, 10"); e(f"s_add_u32 s{sT0}, s{sT0}, s{sT1}"); e(f"s_add_u32 s{sT0}, s{sT0}, {YB}")
    e(f"v_add_u32 v{vS+4}, s{sT0}, v{vL16}")
    e(f"s_and_b32 s{sT2}, s{sRG}, 1"); e(f"s_lshl_b32 s{sT0}, s{sP}, 1"); e(f"s_add_u32 s{sT2}, s{sT2}, s{sT0}")
    e(f"s_lshl_b32 s{sT0}, s{sT2}, 9"); e(f"s_add_u32 s{sT0}, s{sT0}, {ZSC}")
    e(f"v_and_b32 v{vS}, 0x1f0, v{vL16}"); e(f"v_add_u32 v{vS}, s{sT0}, v{vS}")
    e(f"s_lshl_b32 s{sOUT}, s{sRB}, 17"); e(f"s_lshl_b32 s{sT0}, s{sC}, 14"); e(f"s_add_u32 s{sOUT}, s{sOUT}, s{sT0}"); e(f"s_add_u32 s{sOUT}, s{sOUT}, {KVP_OFF}")
    e(f"s_lshl_b32 s{sT2}, s{sT2}, 7"); e(f"s_add_u32 s{sT2}, s{sT2}, s{sOUT}"); e(f"s_add_u32 s{sT2}, s{sT2}, 8192")
    e(f"s_lshl_b32 s{sT0}, s{sW}, 10"); e(f"s_add_u32 s{sOUT}, s{sOUT}, s{sT0}")
    e(f"s_cmp_lg_u32 s{sISC}, 0"); e("s_cselect_b64 vcc, -1, 0")
    e("s_barrier")
    st("r1end")
    MG = mgroups(pre=[f"ds_read_b128 {vr(TMP+4*q,4)}, v{vC1} offset:{32*q}" for q in range(4)], cq=CQ)
    QP, QC = OPT.get("qp", 30), OPT.get("qc", 24)
    if L2 == 1: MG[1].append(l2pf(1))
    VS = OPT.get("vs", 9)
    RW = OPT.get("rw", 1)
    for i in range(NE): MG[(VS + 8 + i) if RW == 0 else (1 + i)].append(erow(i, vDMA))
    MG[QP].append(f"s_waitcnt vmcnt({RW})")
    MG[QP].append(guard(FPOLL))
    if L2 == 3: MG[QP].append("s_cbranch_vccnz K_QL2;;" + l2pf(1) + ";;" + l2pf(1, 4) + ";;K_QL2:")
    e.ext(interleave(MG[:VS+1], vepi(), 1, VS))
    e("s_waitcnt lgkmcnt(0)"); e("s_barrier")
    st("m2b")
    for w in range(4): e(f"ds_read_b128 {vr(TMP+4*w,4)}, v{vS+4} offset:{4096*w}")
    e(f"ds_read_b128 {vr(PK,4)}, v{vS}")
    e(f"v_lshlrev_b32 v{vS+4}, 2, v{vL}")
    kr = Lst()
    for j in range(4): kr(f"v_add_f32 v{TMP+j}, v{TMP+j}, v{TMP+4+j}")
    for j in range(4): kr(f"v_add_f32 v{TMP+8+j}, v{TMP+8+j}, v{TMP+12+j}")
    for j in range(4): kr(f"v_add_f32 v{TMP+j}, v{TMP+j}, v{TMP+8+j}")
    kr(f"buffer_store_dwordx4 {vr(TMP,4)}, v{vL16}, {sr(SWS,4)}, s{sOUT} offen sc1")
    kr(f"v_add_f32 v{PK}, v{PK}, v{PK+1}"); kr(f"v_add_f32 v{PK+2}, v{PK+2}, v{PK+3}"); kr(f"v_add_f32 v{PK}, v{PK}, v{PK+2}")
    kr(f"s_cmp_ge_u32 s{sRG}, 2;;s_cbranch_scc1 K_QNZ;;s_mov_b32 exec_hi, 0;;buffer_store_dword v{PK}, v{vS+4}, {sr(SWS,4)}, s{sT2} offen sc1;;s_mov_b32 exec_hi, -1;;K_QNZ:")
    RED, sU, sRED = 128, sA0, sST
    vRS, vRS2, vRD, vRT = vAUX + 4, vAUX + 5, vAUX + 6, vAUX + 8
    mark = len(e.L)
    e(f"s_lshl_b32 s{sRED}, s{sISC}, 2"); e(f"s_add_u32 s{sRED}, s{sRED}, s{sRG}")
    e(f"s_cmp_ge_u32 s{sRED}, 2"); e("s_cbranch_scc1 K_QRA")
    e(f"s_lshl_b32 s{sU}, s{sC}, 4"); e(f"s_add_u32 s{sU}, s{sU}, s{sRB}"); e(f"s_lshl_b32 s{sU}, s{sU}, 1"); e(f"s_add_u32 s{sU}, s{sU}, s{sRG}")
    e(f"v_lshrrev_b32 v{vRT}, 4, v{vL}"); e(f"v_and_b32 v{vRT+1}, 15, v{vL}"); e(f"v_lshlrev_b32 v{vRT+1}, 4, v{vRT+1}")
    e(f"v_lshl_add_u32 v{vRD}, v{vRT}, 2, v{vRT+1}")
    e(f"s_lshl_b32 s{sPF}, s{sC}, 14"); e(f"s_add_u32 s{sPF}, s{sPF}, {KVP_OFF}")
    e(f"s_cmp_eq_u32 s{sRG}, 0"); e("s_cbranch_scc0 K_GZA")
    e(f"s_and_b32 s{sT0}, s{sRB}, 8"); e(f"s_lshl_b32 s{sT0}, s{sT0}, 9"); e(f"s_add_u32 s{sPF}, s{sPF}, s{sT0}")
    e(f"s_and_b32 s{sT0}, s{sRB}, 2"); e(f"s_lshl_b32 s{sT0}, s{sT0}, 10"); e(f"s_add_u32 s{sPF}, s{sPF}, s{sT0}")
    e(f"s_and_b32 s{sT0}, s{sRB}, 1"); e(f"s_lshl_b32 s{sT0}, s{sT0}, 9"); e(f"s_add_u32 s{sPF}, s{sPF}, s{sT0}")
    e(f"s_and_b32 s{sT0}, s{sRB}, 4"); e(f"s_lshl_b32 s{sT0}, s{sT0}, 6"); e(f"s_add_u32 s{sPF}, s{sPF}, s{sT0}")
    e(f"v_lshl_add_u32 v{vRS}, v{vRT}, 17, v{vRT+1}"); e(f"v_add_u32 v{vRS2}, 1024, v{vRS}")
    e("s_branch K_GZB")
    e.label("K_GZA")
    e(f"s_lshr_b32 s{sT0}, s{sRB}, 1"); e(f"s_lshl_b32 s{sT0}, s{sT0}, 6"); e(f"s_add_u32 s{sPF}, s{sPF}, s{sT0}")
    e(f"s_and_b32 s{sT0}, s{sRB}, 1"); e(f"s_lshl_b32 s{sT0}, s{sT0}, 4"); e(f"s_add_u32 s{sPF}, s{sPF}, s{sT0}"); e(f"s_add_u32 s{sPF}, s{sPF}, 8192")
    e(f"v_lshlrev_b32 v{vRS}, 17, v{vRT}"); e(f"v_add_u32 v{vRS2}, 32, v{vRS}")
    e.label("K_GZB")
    RLOAD = f"s_mov_b32 s{sT0}, s{sPF}"
    for u in range(4):
        RLOAD += f";;buffer_load_dwordx4 {vr(RED+8*u,4)}, v{vRS}, {sr(SWS,4)}, s{sT0} offen sc1;;buffer_load_dwordx4 {vr(RED+8*u+4,4)}, v{vRS2}, {sr(SWS,4)}, s{sT0} offen sc1"
        if u < 3: RLOAD += f";;s_add_u32 s{sT0}, s{sT0}, {4*131072}"
    e.label("K_QRA")
    ra = ";;".join(t.strip() for t in e.L[mark:]); del e.L[mark:]
    MG[VS + 10].append(ra)
    MG[OPT.get("rl", 31)].append(f"s_cmp_ge_u32 s{sRED}, 2;;s_cbranch_scc1 K_QRL;;" + RLOAD + ";;K_QRL:")
    e.ext(interleave(MG[VS+1:], kr, 4, 6))
    st("b2")
    round_toggle()
    e("s_waitcnt lgkmcnt(0)")
    e("s_barrier")
    st("r2end")
    e(f"ds_read_b128 {vr(PK,4)}, v{vCSR}")
    p2_setup()
    PARK = 0xC000
    e(f"s_mul_i32 s{sT0}, s{sRG}, 3072"); e(f"s_add_u32 s{sT0}, s{sT0}, {PARK}")
    e(f"v_add_u32 v{vS+1}, s{sT0}, v{vL16}")
    e(f"s_lshl_b32 s{sT0}, s{sRG}, 2"); e(f"s_add_u32 s{sT0}, s{sT0}, {GSY+32}"); e(f"v_mov_b32 v{vS+4}, s{sT0}")
    e("s_waitcnt lgkmcnt(0)")
    lq = aug()
    lq += [f"v_cvt_pk_bf16_f32 v{PK+8+i}, v{EACC+2*i}, v{EACC+2*i+1}" for i in range(8)]
    e("s_cbranch_vccz K_QG")
    lq2 = lq + [f"ds_write_b128 v{vS+1}, {vr(PK+8,4)}", f"ds_write_b128 v{vS+1}, {vr(PK+12,4)} offset:1024", f"ds_write_b128 v{vS+1}, {vr(WT,4)} offset:2048"]
    lq2 += [f"v_mov_b32 v{vS+5}, 1;;s_waitcnt lgkmcnt(0);;ds_write_b32 v{vS+4}, v{vS+5}"]
    e("s_waitcnt vmcnt(0)"); check([(FPOLL, ND, 0xff, 1)])
    a16 = []
    for i in range(NA): a16 += aload(i)
    e.ext(merge(lq2, a16[:8])); e.ext(a16[8:])
    for i in range(NE, NE + NW1): e.ext(wdma(i))
    e("s_branch K_P2")

    e.label("K_QG")
    QBc, PHS, KVR = 168, 192, 208
    vSL = 112
    sGI = sA1
    e(f"s_setprio {OPT.get('gprio', 2)}")
    e(f"v_mov_b32 v{vSL}, v{vS+1}"); e(f"v_mov_b32 v{vSL+2}, v{vS+4}")
    def ldspin(lbl, areg, n):
        e.label(lbl)
        e(f"ds_read_b32 v{vS+5}, v{areg}"); e("s_waitcnt lgkmcnt(0)")
        e(f"v_readfirstlane_b32 s{sT0}, v{vS+5}"); e("s_nop 3")
        e(f"s_cmp_lt_u32 s{sT0}, {n}"); e(f"s_cbranch_scc1 {lbl}")
    e.ext(aug())
    for i in range(8): e(f"v_cvt_pk_bf16_f32 v{QBc+i}, v{EACC+2*i}, v{EACC+2*i+1}")
    vG, vG1, vG2 = 96, 97, 98
    e(f"v_mov_b32 v{vG}, {GSY:#x}"); e(f"v_mov_b32 v{vG1}, 1")
    red = []; st("ra", red); red += ["s_waitcnt vmcnt(0)", sentinel(RED, 32, vG2, RLOAD)]; st("rb", red)
    red += [ f"s_lshl_b32 s{sT0}, s{sU}, 8", f"s_add_u32 s{sT0}, s{sT0}, {KVZ_OFF}"]
    for stp in (16, 8): red += [f"v_add_f32 v{RED+j}, v{RED+j}, v{RED+stp+j}" for j in range(stp)]
    red += ["s_nop 1"] + [f"v_permlane32_swap_b32 v{RED+k}, v{RED+k+4}" for k in range(4)] + [f"v_add_f32 v{RED+k}, v{RED+k}, v{RED+k+4}" for k in range(4)]
    red += ["s_nop 1"] + [f"v_permlane16_swap_b32 v{RED+k}, v{RED+k+2}" for k in range(2)] + [f"v_add_f32 v{RED+k}, v{RED+k}, v{RED+k+2}" for k in range(2)]
    red += [f"v_cvt_pk_bf16_f32 v{RED}, v{RED}, v{RED+1}", f"buffer_store_dword v{RED}, v{vRD}, {sr(SWS,4)}, s{sT0} offen sc1",
            "s_mov_b64 exec, 1", f"ds_add_u32 v{vG}, v{vG1}", "s_mov_b64 exec, -1"]
    e(f"s_and_b32 s{sT0}, s{sRG}, 1"); e(f"s_lshl_b32 s{sT3}, s{sT0}, 12"); e(f"s_xor_b32 s{sT0}, s{sT0}, s{sP}"); e(f"s_lshl_b32 s{sT0}, s{sT0}, 12")
    e(f"s_lshl_b32 s{sT2}, s{sC}, 13"); e(f"s_add_u32 s{sT2}, s{sT2}, s{sT0}"); e(f"s_add_u32 s{sT2}, s{sT2}, {KVZ_OFF}")
    ZLOAD = ";;".join(f"buffer_load_dwordx4 {vr(KVR+4*k,4)}, v{vL16}, {sr(SWS,4)}, s{sT2} offen offset:{1024*k} sc1" for k in range(4))
    g1, g2 = L("R"), L("R")
    mid = f"s_add_u32 s{sT0}, s{sRG}, s{sGI};;s_cmp_ge_u32 s{sT0}, 2;;s_cbranch_scc1 {g1};;" + ";;".join(red) + f";;{g1}:"
    mid2 = f"s_add_u32 s{sT0}, s{sRG}, s{sGI};;s_cmp_lt_u32 s{sT0}, 4;;s_cbranch_scc1 {g2};;" + ZLOAD + f";;{g2}:"
    e(f"s_mov_b32 s{sGI}, 0")
    e.label("K_GQ")
    sq = softcore(QBc)
    n0 = len(sq)
    for pos, it in sorted(((OPT.get("gmid", 25), mid), (OPT.get("gmid2", 45), mid2)), reverse=True): sq.insert(int(n0 * pos / 100), it)
    e.ext(sq)
    e(f"s_cmp_lg_u32 s{sGI}, 0"); e("s_cbranch_scc1 K_GQD")
    st("gk")
    ldspin("K_GQS", vSL + 2, 1)
    e(f"ds_read_b128 {vr(WT,4)}, v{vSL} offset:2048")
    e(f"ds_read_b128 {vr(QBc,4)}, v{vSL}"); e(f"ds_read_b128 {vr(QBc+4,4)}, v{vSL} offset:1024")
    for j in range(16): e(f"v_mov_b32 v{PHS+j}, v{PK+j}")
    e(f"s_mov_b32 s{sGI}, 2")
    ldspin("K_GOS", vG, 2)
    e("s_branch K_GQ")
    e.label("K_GQD")
    st("gq")
    e(f"v_add_u32 v{vS+3}, {YB:#x}, v{vL16}")
    e(f"s_cmp_lt_u32 s{sRG}, 2"); e("s_cbranch_scc1 K_GZS")
    e(f"v_add_u32 v{vS+2}, s{sT3}, v{vS+3}")
    e("s_waitcnt vmcnt(0)")
    e(sentinel(KVR, 16, vS + 4, ZLOAD))
    st("gr")
    for k in range(4): e(f"ds_write_b128 v{vS+2}, {vr(KVR+4*k,4)} offset:{1024*k}")
    e("s_waitcnt lgkmcnt(0)")
    e("s_mov_b64 exec, 1"); e(f"ds_add_u32 v{vG}, v{vG1}"); e("s_mov_b64 exec, -1")
    ldspin("K_GZS", vG, 4)
    for k in range(8): e(f"ds_read_b128 {vr(KVR+4*k,4)}, v{vS+3} offset:{1024*k}")
    st("gv")
    e(f"s_lshl_b32 s{sT2}, s{sRT}, 16"); e(f"s_lshl_b32 s{sT0}, s{sC}, 13"); e(f"s_add_u32 s{sT2}, s{sT2}, s{sT0}")
    e(f"s_lshl_b32 s{sT0}, s{sP}, 12"); e(f"s_add_u32 s{sT2}, s{sT2}, s{sT0}"); e(f"s_add_u32 s{sT2}, s{sT2}, {PQ_OFF}")
    e(f"s_xor_b32 s{sT3}, s{sT2}, 4096")
    fragoff(vFO, sRT)
    e("s_waitcnt lgkmcnt(0)")
    NDG = (64, 80, 128, 144)
    for hd in range(4):
        ph = (PHS if hd < 2 else PK) + 8 * (hd & 1); d = vr(NDG[hd], 16)
        e(f"{MFMA} {d}, {vr(KVR+8*hd,4)}, {vr(ph,4)}, 0"); e(f"{MFMA} {d}, {vr(KVR+8*hd+4,4)}, {vr(ph+4,4)}, {d}")
    e("s_nop 5")
    for hd in range(4):
        d = NDG[hd]
        e(f"v_add_f32 v{vS}, {f2u(1e-6):#x}, v{d+8}"); e(f"v_rcp_f32 v{vS}, v{vS}"); e("s_nop 0")
        for j in range(8): e(f"v_mul_f32 v{d+j}, v{d+j}, v{vS}")
        for j in range(4): e(f"v_cvt_pk_bf16_f32 v{TMP+4*hd+j}, v{d+2*j}, v{d+2*j+1}")
        e(f"buffer_store_dwordx4 {vr(TMP+4*hd,4)}, v{vFO}, {sr(SWS,4)}, s{sT2 if hd < 2 else sT3} offen offset:{2048*(hd&1)} sc1")
    e("s_branch K_GFIN")

    e.label("K_P2")
    e(f"s_setprio {OPT.get('cprio', 0)}")
    st("p2start")
    if OPT.get("trace"): e(f"v_mov_b32 v240, 0;;s_memtime s[84:85];;s_waitcnt lgkmcnt(0);;s_sub_u32 s84, s84, s78;;v_writelane_b32 v240, s84, 0")
    vS2, vXB, vX, vB, OP = 224, 16, 32, 40, 32
    ACC2, WB2 = 48, 112
    SO, SB2 = 64, 68
    XBASE, vFW, vFR2, vT3 = 0, 24, 25, 232
    def fin_loads():
        e("s_load_dwordx4 s[72:75], s[0:1], 64")
        e(f"s_lshr_b32 s{sT1}, s{sC}, 2"); e(f"s_lshl_b32 s{sT2}, s{sRB}, 1"); e(f"s_add_u32 s{sT2}, s{sT2}, s{sT1}")
        cbcalc()
        e(f"s_lshl_b32 s{sXO2}, s{sRG}, 1"); e(f"s_add_u32 s{sXO2}, s{sXO2}, s{sISC}")
        e(f"s_lshl_b32 s{sXO}, s{sT2}, 16"); e(f"s_add_u32 s{sXO}, s{sXO}, s{sT1}"); e(f"s_lshl_b32 s{sT0}, s{sXO2}, 13"); e(f"s_add_u32 s{sXO}, s{sXO}, s{sT0}")
        e(f"buffer_load_dwordx4 {vr(vX,4)}, v{vXO}, {sr(SX,4)}, s{sXO} offen")
        e(f"v_and_b32 v{vS2+5}, 0x70, v{vL16}")
        e("s_waitcnt lgkmcnt(0)")
        srd(e, SB2, 72, 73, 1024)
        srd(e, SO, 74, 75, 2048 * 1024)
        e(f"buffer_load_dwordx4 {vr(vB,4)}, v{vS2+5}, {sr(SB2,4)}, s{sT1} offen")
    def fin_prep():
        for k in range(4):
            d = vXB + 2 * k
            e(f"v_lshlrev_b32 v{vS2}, 16, v{vB+k}"); e(f"v_and_b32 v{vS2+1}, s{sMASK}, v{vB+k}")
            e(f"v_lshlrev_b32 v{d}, 16, v{vX+k}"); e(f"v_and_b32 v{d+1}, s{sMASK}, v{vX+k}")
            e(f"v_add_f32 v{d}, v{d}, v{vS2}"); e(f"v_add_f32 v{d+1}, v{d+1}, v{vS2+1}")
        e(f"v_lshrrev_b32 v{vFR2}, 3, v{vL}"); e(f"v_mul_u32_u24 v{vFR2}, 272, v{vFR2}")
        e(f"v_and_b32 v{vS2}, 7, v{vL}"); e(f"v_lshl_add_u32 v{vFR2}, v{vS2}, 5, v{vFR2}")
        e(f"s_mul_i32 s{sT0}, s{sXO2}, {8*272}"); e(f"s_add_u32 s{sT0}, s{sT0}, {XBASE}")
        e(f"v_add_u32 v{vFR2}, s{sT0}, v{vFR2}")
    LA = OPT.get("la", 5)
    nun = [1] * 36
    ops = [i for i in range(NA) for _ in range(2)] + [i for i in range(NE, NE + NW1) for _ in range(2)]
    NPRE = len(ops)
    state = dict(na=NA, nw=NE + NW1, done=-1)
    FIRST = {}
    QPOLL = f"s_sub_u32 s{sT0}, s{sPF}, {128*1024};;s_mov_b64 exec, 0xff;;buffer_load_dword v{ND}, v{vPA}, {sr(SWS,4)}, s{sT0} offen sc1;;s_mov_b64 exec, -1"
    def tagwait(tag):
        last = max(i for i, o in enumerate(ops) if o == tag)
        e(f"s_waitcnt vmcnt({min(63, len(ops) - 1 - last)})")
    def issue_a(i):
        R = RING + 8 * unit[i]
        if i in FIRST and not OPT.get("x_nopoll"):
            st(f"cb{i}"); tagwait(f"p{i}"); check([(FPOLL, ND, 0xff, FIRST[i])]); st(f"ca{i}")
        e.ext(aload(i)); ops.extend([i] * 2)
        PL = OPT.get("pl", 3)
        if i + PL in FIRST and not OPT.get("x_nopoll"): e(FPOLL); ops.append(f"p{i+PL}")
    def pump(which=3):
        n = 0
        while state["na"] < 36 and which & 1:
            i = state["na"]
            us = set(range(unit[i], unit[i] + nun[i]))
            if any(us & set(range(unit[q], unit[q] + nun[q])) for q in range(state["done"] + 1, i)): break
            if i - state["done"] > (OPT.get("la1", 7) if i < 16 else LA if i < 28 else OPT.get("la2", 5)): break
            issue_a(i); state["na"] += 1; n += 1
        while state["nw"] < 36 and which & 2 and state["nw"] - state["done"] <= OPT.get("lw", 12):
            e.ext(wdma(state["nw"])); ops.extend([state["nw"]] * 2); state["nw"] += 1; n += 1
        return n
    for fi in FIRST:
        if NA <= fi < NA + OPT.get("pl", 3) and not OPT.get("x_nopoll"): e(FPOLL); ops.append(f"p{fi}")
    pump()
    fin_loads()
    ops.extend(["x"] * 2)
    e(f"s_lshl_b32 s{sP0}, s{sT2}, 17"); e(f"s_lshl_b32 s{sT0}, s{sRG}, 14"); e(f"s_add_u32 s{sP0}, s{sP0}, s{sT0}"); e(f"s_add_u32 s{sP0}, s{sP0}, {PQ_OFF}")
    e(f"s_add_u32 s{sKV}, s{sP0}, 65536")
    e(f"v_bfe_u32 v{vS2+6}, v{vL}, 2, 2"); e(f"v_lshrrev_b32 v{vS2+4}, 5, v{vL}"); e(f"v_bfe_u32 v{vS2+3}, v{vL}, 4, 1")
    e(f"v_lshl_add_u32 v{vS2+7}, v{vS2+4}, 2, v{vS2+6}"); e(f"v_lshlrev_b32 v{vTR0}, 7, v{vS2+7}")
    e(f"v_lshl_add_u32 v{vTR0}, v{vS2+3}, 5, v{vTR0}")
    e(f"v_and_b32 v{vS2+7}, 3, v{vL}"); e(f"v_lshl_add_u32 v{vTR0}, v{vS2+7}, 3, v{vTR0}")
    e(f"v_lshrrev_b32 v{vS2+6}, 1, v{vS2+6}"); e(f"v_lshl_add_u32 v{vTR0}, v{vS2+6}, 6, v{vTR0}")
    e(f"v_add_u32 v{vTR0}, s{sLB}, v{vTR0}")
    e(f"v_xor_b32 v{vTR1}, 64, v{vTR0}")
    for k in range(3):
        e(f"v_add_u32 v{vT3+2*k}, {0x10000*k:#x}, v{vTR0}"); e(f"v_add_u32 v{vT3+2*k+1}, {0x10000*k:#x}, v{vTR1}")
    def wreads(i):
        off = ROW[i % NL] & 0xffff; b = WB2 + 8 * (i & 1)
        vTR0 = vT3 + 2 * (ROW[i % NL] >> 16); vTR1 = vTR0 + 1
        e(f"ds_read_b64_tr_b16 {vr(b,2)}, v{vTR0} offset:{off}")
        e(f"ds_read_b64_tr_b16 {vr(b+2,2)}, v{vTR0} offset:{off+1024}")
        e(f"ds_read_b64_tr_b16 {vr(b+4,2)}, v{vTR1} offset:{off}")
        e(f"ds_read_b64_tr_b16 {vr(b+6,2)}, v{vTR1} offset:{off+1024}")
    def mm4(buf, act, first=False):
        for nt in range(2):
            for mt in range(2):
                c = vr(ACC2 + 16 * (2 * nt + mt), 16)
                e(f"{MFMA} {c}, {vr(WB2+8*buf+4*nt,4)}, {act[mt]}, {'0' if first else c}")
    tagwait(0)
    st("p2data")
    if OPT.get("trace"): e(f"s_memtime s[84:85];;s_waitcnt lgkmcnt(0);;s_sub_u32 s84, s84, s78;;v_writelane_b32 v240, s84, 1")
    wreads(0)
    cold = []
    def sent(i):
        R = RING + 8 * unit[i]
        chk = [f"v_max3_u32 v{vS2}, v{R}, v{R+1}, v{R+2}", f"v_max3_u32 v{vS2+1}, v{R+3}, v{R+4}, v{R+5}",
               f"v_max3_u32 v{vS2}, v{vS2}, v{R+6}, v{R+7}", f"v_max_u32 v{vS2}, v{vS2}, v{vS2+1}", f"v_cmp_eq_u32 vcc, -1, v{vS2}", "s_nop 0", "s_cmp_lg_u64 vcc, 0"]
        e.ext(chk); e(f"s_cbranch_scc1 K_RT{i}"); e.label(f"K_RB{i}")
        t = [f"K_RT{i}:", f"s_mov_b32 s{sCNT}, 0", f"K_RL{i}:", "s_waitcnt vmcnt(0)", f"s_sleep {OPT.get('rsl', 2)}"]
        for q in range(i, state["na"]):
            Rq = RING + 8 * unit[q]
            o_, b0, b1 = (2048 * order[q], sA0, sA1) if q < 28 else (2048 * (q - 28), sP0, sKV)
            t += [f"s_add_u32 s{sT0}, s{b0}, {o_}", f"s_add_u32 s{sT1}, s{b1}, {o_}",
                  f"buffer_load_dwordx4 {vr(Rq,4)}, v{vF0}, {sr(SWS,4)}, s{sT0} offen sc1", f"buffer_load_dwordx4 {vr(Rq+4,4)}, v{vF1}, {sr(SWS,4)}, s{sT1} offen sc1"]
        t += [f"s_add_u32 s{sCNT}, s{sCNT}, 1", "s_waitcnt vmcnt(0)", f"s_cmp_ge_u32 s{sCNT}, {SPIN // 8}", f"s_cbranch_scc1 K_RB{i}"] + chk + [f"s_cbranch_scc1 K_RL{i}", f"s_branch K_RB{i}"]
        cold.extend(t)
    def mm1(i, t):
        nt, mt = t >> 1, t & 1; c = vr(ACC2 + 16 * t, 16)
        e(f"{MFMA} {c}, {vr(WB2+8*(i&1)+4*nt,4)}, {vr(RING+8*unit[i]+4*mt,4)}, {'0' if i == 0 else c}")
    for i in range(34):
        e("s_waitcnt lgkmcnt(0)")
        mm1(i, 0)
        state["done"] = i - 1
        pump(1)
        mm1(i, 1)
        tagwait(i + 1)
        wreads(i + 1)
        mm1(i, 2)
        if i + 1 >= 8: sent(i + 1)
        mm1(i, 3)
        pump(2)
        st(f"s{i}")
        if OPT.get("trace"): e(f"s_memtime s[84:85];;s_waitcnt lgkmcnt(0);;s_sub_u32 s84, s84, s78;;v_writelane_b32 v240, s84, {i+2}")
        if i == 12:
            fin_prep()
            e(f"v_and_b32 v{vFW}, 31, v{vL}"); e(f"v_mul_u32_u24 v{vFW}, 272, v{vFW}")
            e(f"v_lshrrev_b32 v{vS2}, 5, v{vL}"); e(f"v_lshl_add_u32 v{vFW}, v{vS2}, 4, v{vFW}")
            e(f"s_mul_i32 s{sT0}, s{sRG}, 17408"); e(f"s_add_u32 s{sT0}, s{sT0}, {XBASE}")
            e(f"v_add_u32 v{vFW}, s{sT0}, v{vFW}")
    tagwait(35)
    wreads(35)
    sent(35)
    e("s_waitcnt lgkmcnt(0)")
    e("s_barrier")
    def twr(t):
        nt, mt = t >> 1, t & 1
        for q in range(4): e(f"ds_write_b128 v{vFW}, {vr(ACC2+16*t+4*q,4)} offset:{32*272*mt + 128*nt + 32*q}")
    for t in range(4):
        nt, mt = t >> 1, t & 1; c = vr(ACC2 + 16 * t, 16)
        for i in (34, 35):
            e(f"{MFMA} {c}, {vr(WB2+8*(i&1)+4*nt,4)}, {vr(RING+8*unit[i]+4*mt,4)}, {c}")
        if t == 1: e("s_nop 9")
        if t == 2: e("s_nop 5")
        if t == 3: e("s_nop 5")
        if t >= 1: twr(t - 1)
    st("s35")
    e("s_nop 2")
    twr(3)
    e("s_waitcnt lgkmcnt(0)")
    if OPT.get("trace"):
        e(f"s_memtime s[84:85];;s_waitcnt lgkmcnt(0);;s_sub_u32 s84, s84, s78;;v_writelane_b32 v240, s84, 36")
        e(f"s_lshl_b32 s84, s2, 2;;s_add_u32 s84, s84, s{sRG};;s_lshl_b32 s84, s84, 8;;s_add_u32 s84, s84, {210<<20};;v_lshlrev_b32 v241, 2, v{vL}")
        e(f"buffer_store_dword v240, v241, {sr(SWS,4)}, s84 offen")
    e("s_branch K_LAST")
    e.label("K_GFIN")
    st("gend")
    e("s_setprio 0")
    e(f"v_lshrrev_b32 v{vXO}, 3, v{vL}"); e(f"v_lshlrev_b32 v{vXO}, 10, v{vXO}")
    e(f"v_and_b32 v{vS2}, 7, v{vL}"); e(f"v_lshl_add_u32 v{vXO}, v{vS2}, 4, v{vXO}")
    fin_loads()
    e("s_waitcnt vmcnt(0)")
    fin_prep()
    e("s_barrier")
    e.label("K_LAST")
    e("s_barrier")
    for p in range(4):
        for hh in range(2):
            e(f"ds_read_b128 {vr(ACC2+8*p+4*hh,4)}, v{vFR2} offset:{17408*p + 16*hh}")
    for p in range(4):
        e(f"s_waitcnt lgkmcnt({6 - 2*p})")
        for j in range(0, 8, 2): e(f"v_pk_add_f32 {vr(vXB+j,2)}, {vr(vXB+j,2)}, {vr(ACC2+8*p+j,2)}")
    for j in range(4): e(f"v_cvt_pk_bf16_f32 v{OP+j}, v{vXB+2*j}, v{vXB+2*j+1}")
    e(f"buffer_store_dwordx4 {vr(OP,4)}, v{vXO}, {sr(SO,4)}, s{sXO} offen")
    e.label("K_FIN")
    if OPT.get("x_hold"):
        e.label("K_HOLD")
        e("s_sleep 4"); e("s_memrealtime s[82:83]"); e("s_waitcnt lgkmcnt(0)")
        e("s_sub_u32 s82, s82, s80"); e(f"s_cmp_lt_u32 s82, {OPT['x_hold']}")
        e(f"s_cselect_b32 s82, s{sISC}, 0"); e("s_cmp_lg_u32 s82, 0"); e("s_cbranch_scc1 K_HOLD")
    if OPT.get("cnt"): e("s_add_u32 s90, s91, s78")
    if OPT["stamps"] and not OPT.get("phys"):
        e(f"s_xor_b32 s{sW}, s{sISC}, 1"); e(f"s_lshl_b32 s{sW}, s{sW}, 2"); e(f"s_add_u32 s{sW}, s{sW}, s{sRG}")
    stamp_end(e, 0, SWS, "K_END", sW, 0)
    e.label("K_END")
    e("s_endpgm")
    e.ext(cold)
    return e.text()

def main():
    out = "; LayerNorm + hedgehog linear attention + GELU FFN, one persistent launch (generated by tools/gen2.py)\n"
    out += "; @launch grid=(256,1,1) block=(512,1,1) lds=163840\n"
    out += '.amdgcn_target "amdgcn-amd-amdhsa--gfx950"\n.text\n'
    out += f".globl {KN}\n.p2align 8\n.type {KN},@function\n{KN}:\n" + gen()
    out += ".p2align 8\n.fill 1536, 4, 0xbf800000\n"
    out += f""".section .rodata,"a"
.p2align 6
.amdhsa_kernel {KN}
  .amdhsa_next_free_vgpr 256
  .amdhsa_next_free_sgpr 102
  .amdhsa_accum_offset 256
  .amdhsa_group_segment_fixed_size 0
  .amdhsa_kernarg_size 96
  .amdhsa_user_sgpr_count 2
  .amdhsa_user_sgpr_kernarg_segment_ptr 1
  .amdhsa_system_sgpr_workgroup_id_x 1
.end_amdhsa_kernel
"""
    open(sys.argv[1], "w").write(out)
main()
```

```python
import sys, math, struct

OPT = dict(stamps=0, st1="sc1", k1only=0, k2only=0, pfcode=1, pfw2=3)
for a in sys.argv[2:]:
    k, v = a.split("=")
    OPT[k] = int(v) if v.lstrip("-").isdigit() else v

H_OFF, PQ_OFF, KVP_OFF, KVZ_OFF, FLG_OFF = 0, 0x1000000, 0x1400000, 0x1600000, 0x1610000
STAMP_OFF = 200 << 20
NSTAMP = 8
LOOPST = OPT.get('loopst', -1)

def f2u(x): return struct.unpack("<I", struct.pack("<f", x))[0]

class Asm:
    def __init__(self): self.L = []
    def __call__(self, s):
        for t in s.split(";;"):
            t = t.strip()
            self.L.append(t if t.endswith(":") else "    " + t)
    def label(self, s): self.L.append(s + ":")
    def ext(self, lst):
        cnt = 0
        for s in lst:
            if s == "@MARK": cnt = 0; continue
            if s == "@PAD": continue
            if s.startswith("@NEED"):
                d = int(s.split()[1]) - cnt
                if d > 0: self(f"s_nop {d-1}")
                continue
            self(s)
            if "s_cbranch" in s: cnt += 1
            else: cnt += sum(1 for t in s.split(";;") if not t.strip().endswith(":"))
    def text(self): return "\n".join(self.L) + "\n"

class Lst(list):
    def __call__(self, s): self.append(s)

def vr(b, n=1): return f"v{b}" if n == 1 else f"v[{b}:{b+n-1}]"
def ar(b, n=1): return f"a{b}" if n == 1 else f"a[{b}:{b+n-1}]"
def sr(b, n=1): return f"s{b}" if n == 1 else f"s[{b}:{b+n-1}]"
MFMA = "v_mfma_f32_32x32x16_bf16"

def cost(ins):
    c = 0
    for t in ins.split(";;"):
        op = t.split()[0]
        if op == "@PAD": c += 8; continue
        if op.endswith(":") or op.startswith("@"): continue
        if "s_cbranch" in ins and op.startswith(("s_", "v_")): c += 0.5; continue
        if op.startswith(("v_exp", "v_rcp", "v_sqrt", "v_log", "v_mfma")): c += 8
        elif op == "s_nop": c += 2 * (int(t.split()[1]) + 1)
        elif op.startswith("s_"): c += 1
        elif op.startswith("buffer_"): c += 8
        else: c += 4.5
    return c

def interleave(groups, fill, first=0, last=None):
    last = len(groups) - 1 if last is None else last
    tot = sum(cost(i) for i in fill); n = last - first + 1
    out = []; k = 0; acc = 0.0
    for gi, g in enumerate(groups):
        out += g
        if first <= gi <= last:
            tgt = tot * (gi - first + 1) / n
            while k < len(fill) and (acc + cost(fill[k]) / 2 <= tgt or gi == last):
                out.append(fill[k]); acc += cost(fill[k]); k += 1
    assert k == len(fill)
    return out

def merge(a, b, frac=1.0):
    out = []; n = max(1, int(len(a) * frac)); k = 0
    for i, x in enumerate(a):
        while k < len(b) and k * n <= i * len(b) and i < n:
            out.append(b[k]); k += 1
        out.append(x)
    out += b[k:]
    return out

def srd(e, d, lo, hi, size):
    e(f"s_mov_b32 s{d}, s{lo}"); e(f"s_mov_b32 s{d+1}, s{hi}")
    e(f"s_mov_b32 s{d+2}, {size:#x}"); e(f"s_mov_b32 s{d+3}, 0x00020000")

def stamp(e, idx, base=80):
    if OPT["stamps"]:
        e(f"s_memtime s[{base+2*idx}:{base+2*idx+1}]")

def stamp_begin(e, base=80):
    if OPT["stamps"]:
        e(f"s_memrealtime s[{base}:{base+1}]")
        e(f"s_memtime s[{base-2}:{base-1}]")
        for i in range(2, NSTAMP):
            e(f"s_mov_b64 s[{base+2*i}:{base+2*i+1}], 0")

def stamp_end(e, kidx, wssrd, lbl, wave_sgpr, wave_sel, base=80):
    if not OPT["stamps"]: return
    e(f"s_memtime s[{base+2*(NSTAMP-2)}:{base+2*(NSTAMP-2)+1}]")
    e("s_waitcnt vmcnt(0)")
    e(f"s_memrealtime s[{base+2}:{base+3}]")
    e(f"s_memtime s[{base+2*(NSTAMP-1)}:{base+2*(NSTAMP-1)+1}]")
    e("s_waitcnt lgkmcnt(0)")
    for i in range(2, NSTAMP):
        e(f"s_sub_u32 s{base+2*i}, s{base+2*i}, s{base if (OPT.get('rt') and i < 6) else base-2}")
        e(f"s_mov_b32 s{base+2*i+1}, 0")
    e(f"s_lshl_b32 s{base-2}, s2, 3"); e(f"s_add_u32 s{base-2}, s{base-2}, s{wave_sgpr}")
    e(f"s_mul_i32 s{base-2}, s{base-2}, {8*NSTAMP}")
    e(f"s_add_u32 s{base-2}, s{base-2}, {STAMP_OFF + kidx*256*8*8*NSTAMP}")
    e("s_mov_b64 exec, 1")
    e("v_mov_b32 v1, 0")
    for i in range(NSTAMP // 2):
        for j in range(4):
            e(f"v_mov_b32 v{4+j}, s{base+4*i+j}")
        e(f"buffer_store_dwordx4 v[4:7], v1, {sr(wssrd,4)}, s{base-2} offen offset:{16*i}")
        e("s_nop 1")
    e("s_waitcnt vmcnt(0)")

KN = "parallel_sum__linear_kernel_hedgehog__dense_activation_gelu__prompt_kernel"
SPIN = OPT.get("spin", 20000)
CNT_OFF = FLG_OFF + 2048 * 128

def gen():
    e = Asm()
    M16 = "v_mfma_f32_16x16x32_bf16"
    SDBG, SX, SW, SWS, SAUX = 4, 8, 12, 16, 20
    sW, sRG, sP, sC, sRB, sTYPE = 24, 25, 26, 27, 28, 29
    sPITCH, sRT, sIDX, sROT = 30, 31, 32, 33
    sONES, sLO, sHI, sMASK = 34, 35, 36, 37
    sT0, sT1, sT2, sT3, sT4 = 38, 39, 40, 41, 42
    sXB = 43
    sCOL = 44
    sSLOT, sIT, sOUT, sAUXO, sP16 = 48, 49, 50, 51, 52
    sDA, sDB, sMA, sROWO, sW4K, sST = 53, 54, 55, 56, 57, 61
    sLT16, sFLG = 58, 60
    sJG, sISC, sWB, sLEV = 76, 77, 100, 101
    vDUM, vL, vL16, vDMA, vTR = 0, 1, 2, 3, 4
    vS, vCSW, vCSR, SELC, CS, AUG, vC0, vC1 = 8, 14, 15, 16, 20, 24, 30, 31
    TMP, PK, ACC, EACC, WB, vAUX, XF = 32, 48, 64, 80, 96, 116, 128
    NWB = 5
    YB, ZB = 0x10000, 0x20000
    STAT, CSX, RVO, GSY, ZSC = 0x20000, 0x20800, 0x21000, 0x21400, 0x21800
    vFR, vXD, RS, vQ, vAL = TMP, TMP + 8, TMP + 12, TMP + 16, TMP + 18
    STF = "" if OPT.get("x_pst") else "sc1"
    lab = [0]
    def L(p):
        lab[0] += 1
        return f"{p}{lab[0]}"
    SP = str(OPT.get("sp", "")).split(",")
    def st(name, lst=None):
        if OPT["stamps"] and name in SP:
            i = 2 + SP.index(name)
            t = f"{'s_memrealtime' if OPT.get('rt') else 's_memtime'} s[{80+2*i}:{81+2*i}];;s_waitcnt lgkmcnt(0)"
            (e if lst is None else lst.append)(t)
    e("s_cmp_ge_u32 s2, 256")
    e("s_cbranch_scc1 K_END")
    stamp_begin(e)
    if OPT.get("x_hold"): e("s_memrealtime s[80:81]")
    if OPT.get("cnt"): e("s_mov_b32 s91, 1")
    e("s_load_dwordx4 s[64:67], s[0:1], 0")
    e("s_load_dwordx2 s[68:69], s[0:1], 16")
    e("s_load_dwordx4 s[72:75], s[0:1], 40")
    e("s_load_dwordx2 s[70:71], s[0:1], 88")
    e("s_load_dwordx2 s[96:97], s[0:1], 56")
    e("s_load_dwordx2 s[98:99], s[0:1], 24")
    e(f"s_load_dwordx2 {sr(SDBG,2)}, s[0:1], 80")
    e(f"v_lshrrev_b32 v{vS}, 6, v0")
    e(f"v_and_b32 v{vL}, 63, v0")
    e(f"v_readfirstlane_b32 s{sW}, v{vS}")
    e(f"s_lshr_b32 s{sIDX}, s2, 3")
    if OPT["pfcode"]:
        e(f"s_cmp_lg_u32 s{sW}, 7"); e("s_cbranch_scc1 K_NOPF")
        e("s_getpc_b64 s[62:63]")
        e("s_and_b32 s62, s62, 0xffffff00")
        e(f"s_mul_i32 s{sT1}, s{sIDX}, 1024")
        e(f"v_lshl_add_u32 v{vS+3}, v{vL}, 7, s{sT1}")
        e("s_mov_b64 exec, 0xff")
        e(f"global_load_dword v{vDUM}, v{vS+3}, s[62:63]")
        e("s_mov_b64 exec, -1")
        e.label("K_NOPF")
    e(f"s_and_b32 s{sT0}, s2, 7")
    e(f"s_lshr_b32 s{sRB}, s{sT0}, 1"); e(f"s_lshl_b32 s{sRB}, s{sRB}, 2")
    e(f"s_and_b32 s{sT2}, s{sIDX}, 3"); e(f"s_add_u32 s{sRB}, s{sRB}, s{sT2}")
    e(f"s_lshr_b32 s{sT1}, s{sIDX}, 2")
    e(f"s_add_u32 s{sROT}, s{sT1}, s{sT2}"); e(f"s_and_b32 s{sROT}, s{sROT}, {OPT.get('rotm', 3)}")
    e(f"s_and_b32 s{sTYPE}, s{sT1}, 1")
    e(f"s_lshr_b32 s{sT1}, s{sT1}, 1")
    e(f"s_and_b32 s{sC}, s{sT0}, 1"); e(f"s_lshl_b32 s{sC}, s{sC}, 2"); e(f"s_add_u32 s{sC}, s{sC}, s{sT1}")
    e(f"s_and_b32 s{sRG}, s{sW}, 3"); e(f"s_lshr_b32 s{sP}, s{sW}, 2")
    e(f"v_lshrrev_b32 v{vS}, 4, v{vL}"); e(f"v_and_b32 v{vS+1}, 15, v{vL}")
    e(f"v_xor_b32 v{vS+2}, v{vS}, v{vS+1}"); e(f"v_lshlrev_b32 v{vS+2}, 4, v{vS+2}")
    e(f"v_lshl_add_u32 v{vXD}, v{vS}, 10, v{vS+2}")
    for i in range(1, 4): e(f"v_xor_b32 v{vXD+i}, {4096*i + 64*i}, v{vXD}")
    e(f"s_lshl_b32 s{sXB}, s{sRB}, 17"); e(f"s_lshl_b32 s{sT0}, s{sW}, 14"); e(f"s_add_u32 s{sXB}, s{sXB}, s{sT0}")
    e(f"s_lshl_b32 s{sW4K}, s{sW}, 12")
    e(f"v_and_b32 v{vS+3}, 31, v{vL}")
    e(f"v_lshrrev_b32 v{vS+4}, 5, v{vL}")
    e(f"s_cmp_eq_u32 s{sTYPE}, 0")
    e("s_cbranch_scc1 K_SETQ")
    e(f"s_movk_i32 s{sPITCH}, 3584")
    e(f"s_mul_i32 s{sAUXO}, s{sC}, 448")
    e(f"s_and_b32 s{sT1}, s{sC}, 1")
    e(f"s_lshl_b32 s{sT2}, s{sT1}, 6"); e(f"s_add_u32 s{sCOL}, s{sAUXO}, s{sT2}")
    e(f"s_add_u32 s{sCOL+1}, s{sCOL}, 128"); e(f"s_add_u32 s{sCOL+2}, s{sCOL}, 256")
    e(f"s_lshl_b32 s{sT2}, s{sT1}, 9"); e(f"s_add_u32 s{sCOL+3}, s{sCOL}, 384"); e(f"s_sub_u32 s{sCOL+3}, s{sCOL+3}, s{sT2}")
    e(f"s_lshl_b32 s{sT2}, s{sP}, 6")
    e(f"v_lshl_add_u32 v{vAL}, v{vS+3}, 1, s{sT2}")
    e(f"s_mov_b32 s{SW+2}, {512*3584}"); e(f"s_movk_i32 s{SAUX+2}, 3584")
    e("s_branch K_SETD")
    e.label("K_SETQ")
    e(f"s_movk_i32 s{sPITCH}, 3072")
    e(f"s_lshl_b32 s{sCOL+2}, s{sC}, 7"); e(f"s_add_u32 s{sCOL}, s{sCOL+2}, 1024"); e(f"s_add_u32 s{sCOL+1}, s{sCOL+2}, 2048")
    e(f"s_lshl_b32 s{sT1}, s{sP}, 10"); e(f"s_lshl_b32 s{sAUXO}, s{sC}, 11"); e(f"s_add_u32 s{sT1}, s{sT1}, s{sAUXO}")
    e(f"v_lshl_add_u32 v{vAL}, v{vL}, 4, s{sT1}")
    e(f"s_mov_b32 s{SW+2}, {512*3072}"); e(f"s_movk_i32 s{SAUX+2}, {32*512}")
    e.label("K_SETD")
    e(f"s_mov_b32 s{SW+3}, 0x00020000"); e(f"s_mov_b32 s{SAUX+3}, 0x00020000")
    e(f"v_lshrrev_b32 v{vDMA}, 2, v{vL}"); e(f"v_mul_lo_u32 v{vDMA}, v{vDMA}, s{sPITCH}")
    e(f"v_and_b32 v{vS+5}, 3, v{vL}"); e(f"v_lshl_add_u32 v{vDMA}, v{vS+5}, 4, v{vDMA}")
    e(f"s_lshl_b32 s{sP16}, s{sPITCH}, 4")
    e(f"s_mul_i32 s{sWB}, s{sP16}, s{sW}"); e(f"s_add_u32 s{sWB}, s{sWB}, s{sCOL}")
    e(f"s_cmp_eq_u32 s{sTYPE}, 0")
    e("s_waitcnt lgkmcnt(0)")
    e(f"s_cselect_b64 {sr(SW,2)}, s[66:67], s[72:73]"); e(f"s_cselect_b64 {sr(SAUX,2)}, s[68:69], s[74:75]")
    srd(e, SX, 64, 65, 2048 * 1024)
    ROP = "s_xor_b32" if OPT.get("rxor", 0) else "s_add_u32"
    XBUF = (ZB, YB, YB + 0x8000, ZB)
    def sset(j):
        l = Lst()
        l(f"{ROP} s{sT0}, s{sROT}, {j};;s_and_b32 s{sT0}, s{sT0}, 3;;s_lshl_b32 s{sT1}, s{sT0}, 8;;s_add_u32 s{sT1}, s{sT1}, s{sXB};;"
          f"s_lshl_b32 s{sT0}, s{sT0}, 3;;s_mul_i32 s{sT0}, s{sT0}, s{sP16};;s_add_u32 s{sT0}, s{sT0}, s{sWB};;s_add_u32 s{sT2}, s{sT0}, 64;;s_lshr_b32 s{sT3}, s{sW4K}, 2")
        for i in range(4):
            l(f"s_add_u32 m0, s{sW4K}, {XBUF[j] + 1024*i};;s_nop 0;;buffer_load_dwordx4 v{vXD+i}, {sr(SX,4)}, s{sT1} offen lds")
        wo = 0x8000 * (j >> 1) + 8192 * (j & 1)
        l(f"s_add_u32 m0, s{sT3}, {wo};;s_nop 0;;buffer_load_dwordx4 v{vDMA}, {sr(SW,4)}, s{sT0} offen lds")
        l(f"s_add_u32 m0, s{sT3}, {wo + 0x4000};;s_nop 0;;buffer_load_dwordx4 v{vDMA}, {sr(SW,4)}, s{sT2} offen lds")
        return l
    wt = (f"s_lshr_b32 s{sT0}, s{sW}, 1;;s_cmp_lg_u32 s{sT0}, 1;;s_cbranch_scc1 K_NW;;s_cmp_eq_u32 s{sW}, 2;;"
          f"s_cselect_b64 s[92:93], s[72:73], s[66:67];;s_mov_b32 s{sT0}, {512*3584};;s_cselect_b32 s94, s{sT0}, {512*3072};;s_mov_b32 s95, 0x00020000;;"
          f"s_movk_i32 s{sT0}, 7168;;s_cselect_b32 s{sT0}, s{sT0}, 6144;;s_cselect_b32 s{sT1}, 56, 48;;s_mul_i32 s{sT0}, s{sT0}, s2;;"
          f"v_lshlrev_b32 v{vDUM}, 7, v{vL};;s_bfm_b64 exec, s{sT1}, 0;;buffer_load_dword v{vDUM}, v{vDUM}, s[92:95], s{sT0} offen;;s_mov_b64 exec, -1;;K_NW:")
    WTA = OPT.get("wta", 2)
    xt = (f"s_cmp_lg_u32 s{sW}, 1;;s_cbranch_scc1 K_NX;;s_lshl_b32 s{sT0}, s2, 13;;v_lshlrev_b32 v{vDUM}, 7, v{vL};;"
          f"buffer_load_dword v{vDUM}, v{vDUM}, {sr(SX,4)}, s{sT0} offen;;K_NX:")
    st("ka")
    if OPT.get("xta", 0) == 1: e(xt)
    if WTA == -2: e(wt)
    e.ext(sset(0))
    if OPT.get("xta", 0) == 2: e(xt)
    if WTA == -1: e(wt)
    st("i0")
    srd(e, SWS, 70, 71, 0x10000000)
    e(f"s_movk_i32 s{SDBG+2}, 256"); e(f"s_mov_b32 s{SDBG+3}, 0x00020000")
    e(f"s_lshl_b32 s{sRT}, s{sRB}, 2"); e(f"s_add_u32 s{sRT}, s{sRT}, s{sRG}")
    e(f"s_lshl_b32 s{sFLG}, s{sTYPE}, 4"); e(f"s_add_u32 s{sFLG}, s{sFLG}, s{sRB}"); e(f"s_lshl_b32 s{sFLG}, s{sFLG}, 3"); e(f"s_add_u32 s{sFLG}, s{sFLG}, s{sC}")
    e(f"s_lshl_b32 s{sFLG}, s{sFLG}, 10"); e(f"s_add_u32 s{sFLG}, s{sFLG}, {FLG_OFF}")
    e(f"s_and_b32 s{sISC}, s{sC}, 1"); e(f"s_xor_b32 s{sISC}, s{sISC}, s{sP}")
    e(f"v_lshlrev_b32 v{vL16}, 4, v{vL}")
    e(f"v_mov_b32 v{AUG+4}, 0"); e(f"v_mov_b32 v{AUG+5}, 0")
    e(f"s_lshl_b32 s{sIT}, s{sTYPE}, 3"); e(f"s_add_u32 s{sIT}, s{sIT}, s{sW}")
    e(f"s_cmp_lg_u32 s{sIT}, 15"); e("s_cbranch_scc1 K_NZ")
    e(f"v_lshlrev_b32 v{vS+2}, 3, v{vL}")
    e(f"buffer_store_dwordx2 {vr(AUG+4,2)}, v{vS+2}, {sr(SWS,4)}, s{sFLG} offen sc1")
    e(f"buffer_store_dwordx2 {vr(AUG+4,2)}, v{vS+2}, {sr(SWS,4)}, s{sFLG} offen offset:512 sc1")
    e.label("K_NZ")
    e(f"s_lshl_b32 s{sT0}, s{sW}, 7"); e(f"s_add_u32 s{sFLG}, s{sFLG}, s{sT0}")
    e(f"s_lshl_b32 s{sT0}, s{sROT}, 2"); e(f"{ROP} s{sT0}, s{sT0}, s{sW}"); e(f"s_and_b32 s{sT1}, s{sT0}, 15"); e(f"s_lshl_b32 s{sT1}, s{sT1}, 1")
    e(f"s_mul_i32 s{sROWO}, s{sT1}, s{sP16}")
    e(f"s_add_u32 s{sT0}, s{sT0}, 8"); e(f"s_and_b32 s{sT1}, s{sT0}, 15"); e(f"s_lshl_b32 s{sT1}, s{sT1}, 1")
    e(f"s_mul_i32 s{sJG}, s{sT1}, s{sP16}"); e(f"s_sub_u32 s{sJG}, s{sJG}, s{sROWO}"); e(f"s_sub_u32 s{sJG}, s{sJG}, s{sP16}")
    e(f"s_lshl_b32 s{sT4}, s{sW}, 11")
    sLB0 = sT4
    vFO, vF0, vF1 = vAUX + 11, 238, 239
    def fragoff(vd, srt):
        if OPT.get("x_flat"):
            e(f"s_and_b32 s{sT0}, s{srt}, 1"); e(f"s_lshl_b32 s{sT0}, s{sT0}, 10"); e(f"v_xor_b32 v{vd}, s{sT0}, v{vL16}"); return
        e(f"s_and_b32 s{sT0}, s{srt}, 7"); e(f"s_cmp_eq_u32 s{sT0}, 3"); e(f"s_cselect_b32 s{sT0}, 7, s{sT0}")
        e(f"s_lshl_b32 s{sT0}, s{sT0}, 7"); e(f"s_add_u32 s{sT0}, s{sT0}, 640")
        e("s_mov_b32 s62, 0xff000000"); e("s_mov_b32 s63, 0")
        e(f"v_mov_b32 v{vd}, s{sT0}"); e(f"v_cndmask_b32 v{vd}, 0, v{vd}, s[62:63]"); e(f"v_add_u32 v{vd}, v{vd}, v{vL16}")
        e(f"s_and_b32 s{sT0}, s{srt}, 1"); e(f"s_lshl_b32 s{sT0}, s{sT0}, 10"); e(f"v_xor_b32 v{vd}, s{sT0}, v{vd}")
    fragoff(vFO, sRT)
    def guard(t):
        g = L("G"); return f"s_cbranch_vccz {g};;{t};;{g}:"
    def dma8(gd=False):
        l = []
        for i in range(4):
            jg, jl = (f"s{sJG}", "0x7c00") if i == 1 else (f"s{sP16}", "1024")
            l += [f"s_mov_b32 m0, s{sMA};;s_add_u32 s{sDB}, s{sDA}, 64;;buffer_load_dwordx4 v{vDMA}, {sr(SW,4)}, s{sDA} offen lds",
                  f"s_add_u32 m0, s{sMA}, 0x4000;;s_add_u32 s{sDA}, s{sDA}, {jg};;buffer_load_dwordx4 v{vDMA}, {sr(SW,4)}, s{sDB} offen lds;;s_add_u32 s{sMA}, s{sMA}, {jl}"]
        if not gd: return l
        l = []
        for i in range(4):
            jg, jl = (f"s{sJG}", "0x7c00") if i == 1 else (f"s{sP16}", "1024")
            g = L("G")
            l += [guard(f"s_mov_b32 m0, s{sMA};;s_add_u32 s{sDB}, s{sDA}, 64;;buffer_load_dwordx4 v{vDMA}, {sr(SW,4)}, s{sDA} offen lds"),
                  f"s_add_u32 m0, s{sMA}, 0x4000;;s_add_u32 s{sDA}, s{sDA}, {jg};;s_add_u32 s{sMA}, s{sMA}, {jl};;s_cmp_lg_u32 s{sLEV}, 0;;s_cbranch_scc1 {g};;"
                  f"buffer_load_dwordx4 v{vDMA}, {sr(SW,4)}, s{sDB} offen lds;;{g}:"]
        return l
    e(f"s_mov_b32 s{sONES}, 0x3f803f80"); e(f"s_mov_b32 s{sLO}, 0x00003f80"); e(f"s_mov_b32 s{sHI}, 0x3f800000")
    e(f"s_mov_b32 s{sMASK}, 0xffff0000")
    e(f"v_lshlrev_b32 v{vS+2}, 9, v{vS+4}")
    e(f"v_bfe_u32 v{vS}, v{vL}, 2, 2"); e(f"v_lshl_add_u32 v{vS+2}, v{vS}, 6, v{vS+2}")
    e(f"v_bfe_u32 v{vCSW}, v{vL}, 4, 1"); e(f"v_lshl_add_u32 v{vS+2}, v{vCSW}, 5, v{vS+2}")
    e(f"v_lshl_add_u32 v{vS+2}, v{vS+5}, 3, v{vS+2}")
    e(f"s_xor_b32 s{sT3}, s{sRG}, s{sP}"); e(f"s_lshl_b32 s{sT1}, s{sP}, 14")
    for k in range(4):
        e(f"s_xor_b32 s{sT0}, s{sT3}, {k}"); e(f"s_lshl_b32 s{sT0}, s{sT0}, 10"); e(f"s_add_u32 s{sT0}, s{sT0}, s{sT1}")
        e(f"v_add_u32 v{vTR+k}, s{sT0}, v{vS+2}")
    e(f"v_and_b32 v{vS}, 1, v{vS}"); e(f"v_cmp_eq_u32 vcc, v{vS}, v{vCSW}"); e(f"v_mov_b32 v{vS}, s{sONES}")
    e(f"v_cmp_gt_u32 {sr(sLT16,2)}, 16, v{vS+3}")
    for j in range(4): e(f"v_cndmask_b32 v{SELC+j}, 0, v{vS}, vcc")
    e(f"v_xor_b32 v{vS}, v{vS+4}, v{vS+1}"); e(f"v_lshlrev_b32 v{vS}, 4, v{vS}")
    e(f"v_lshl_add_u32 v{vS}, v{vS+3}, 8, v{vS}")
    e(f"s_lshl_b32 s{sT0}, s{sT3}, 5"); e(f"v_xor_b32 v{vS}, s{sT0}, v{vS}")
    e(f"s_lshl_b32 s{sT0}, s{sRG}, 13"); e(f"s_add_u32 s{sT0}, s{sT0}, {YB + 0x8000}"); e(f"v_add_u32 v{vFR}, s{sT0}, v{vS}")
    for s in range(1, 8): e(f"v_xor_b32 v{vFR+s}, {32*s}, v{vFR}")
    e(f"s_lshl_b32 s{sT0}, s{sP}, 9"); e(f"s_add_u32 s{sT0}, s{sT0}, {CSX}")
    e(f"v_lshl_add_u32 v{vCSR}, v{vS+3}, 4, s{sT0}")
    e(f"s_lshl_b32 s{sT0}, s{sRG}, 2"); e(f"v_add_u32 v{vCSW}, s{sT0}, v{vCSR}")
    e(f"v_mov_b32 v{vQ}, 0"); e(f"v_mov_b32 v{vQ+1}, 0")
    def auxl(lbl):
        t = f"s_cmp_eq_u32 s{sTYPE}, 0;;s_cbranch_scc1 {lbl}Q"
        for i in range(4): t += f";;buffer_load_ushort v{vAUX+i}, v{vAL}, {sr(SAUX,4)}, s{sCOL+i} offen"
        t += f";;s_branch {lbl}D;;{lbl}Q:"
        t += f";;s_lshl_b32 m0, s{sW}, 10;;s_nop 0;;buffer_load_dwordx4 v{vAL}, {sr(SAUX,4)}, 0 offen lds"
        t += f";;{lbl}D:"
        return t
    if OPT.get("x_p2only"):
        e("s_waitcnt vmcnt(0)"); e("s_barrier")
        e(f"s_cmp_eq_u32 s{sISC}, 0"); e("s_cbranch_scc1 K_FIN")
        e("s_branch K_FTAIL")
    ROW = [YB + 0x4000, YB + 0x6000, YB + 0xC000, YB + 0xE000, 0x22000, 0x24000, 0x26000] + [0x2000 * k for k in range(6)]
    NL, NE, NW1 = len(ROW), 7, OPT.get("nw1", 4)
    sE1, sE2, SWE = 68, 69, 64
    sA0, sA1, sWK, sLB, sP0, sP1, sKV, sWO_, sXO, sXO2, sPF, sCNT = 30, 33, 43, 34, 51, 52, 53, 54, 55, 56, 57, 3
    SW2, SWO = SW, SAUX
    vTR0, vTR1, vXO, vPA = 4, 5, 6, vS + 2
    ND = vS + 3
    sEA = sWB
    order = [0, 1, 2, 3, 16, 17, 18, 19, 4, 5, 6, 7, 20, 21, 22, 23, 8, 9, 10, 11, 24, 25, 26, 27, 12, 13, 14, 15]
    def wdma(i):
        lo = ROW[i % NL]
        S, base, off = (SW2, sWK, order[i] * 16384) if i < 28 else (SWO, sWO_, (i - 28) * 16384)
        return [f"s_add_u32 m0, s{sLB}, {lo + 1024*k};;s_add_u32 s{sT0}, s{base}, {off + 8192*k};;buffer_load_dwordx4 v{vDMA}, {sr(S,4)}, s{sT0} offen lds" for k in range(2)]
    def erow(i, vd):
        return f"s_add_u32 m0, s{sE1}, {ROW[i]};;s_add_u32 s{sT0}, s{sE2}, {order[i]*16384};;buffer_load_dwordx4 v{vd}, {sr(SWE,4)}, s{sT0} offen lds"
    def dmalane(vd, t0, t1):
        e(f"v_lshrrev_b32 v{vd}, 3, v{vL}"); e(f"v_lshlrev_b32 v{vd}, 10, v{vd}")
        e(f"v_and_b32 v{t0}, 7, v{vL}"); e(f"v_bfe_u32 v{t1}, v{vL}, 4, 1"); e(f"v_lshlrev_b32 v{t1}, 2, v{t1}")
        e(f"v_xor_b32 v{t1}, v{t0}, v{t1}"); e(f"v_lshl_add_u32 v{vd}, v{t1}, 4, v{vd}")
    def cbcalc():
        if OPT.get("cbmap", 0) == 0:
            e(f"s_lshr_b32 s{sT1}, s{sIDX}, 2"); e(f"s_lshl_b32 s{sT1}, s{sT1}, 7")
        else:
            e(f"s_lshr_b32 s{sT1}, s{sIDX}, 3"); e(f"s_lshl_b32 s{sT0}, s{sTYPE}, 2"); e(f"s_add_u32 s{sT1}, s{sT1}, s{sT0}"); e(f"s_lshl_b32 s{sT1}, s{sT1}, 7")
    def p2_setup():
        e(f"s_cmp_lg_u32 s{sISC}, 0"); e("s_cselect_b64 vcc, -1, 0")
        srd(e, SW2, 96, 97, 1792 * 1024)
        srd(e, SWO, 98, 99, 512 * 1024)
        cbcalc()
        e(f"s_lshl_b32 s{sWO_}, s{sRG}, 17"); e(f"s_add_u32 s{sWO_}, s{sWO_}, s{sT1}")
        e(f"v_lshrrev_b32 v{vXO}, 3, v{vL}"); e(f"v_lshlrev_b32 v{vXO}, 10, v{vXO}")
        e(f"v_and_b32 v{vTR0}, 7, v{vL}"); e(f"v_bfe_u32 v{vTR1}, v{vL}, 4, 1"); e(f"v_lshlrev_b32 v{vTR1}, 2, v{vTR1}")
        e(f"v_xor_b32 v{vTR1}, v{vTR0}, v{vTR1}"); e(f"v_lshl_add_u32 v{vDMA}, v{vTR1}, 4, v{vXO}")
        e(f"v_lshl_add_u32 v{vXO}, v{vTR0}, 4, v{vXO}")
        e(f"s_lshr_b32 s{sT1}, s{sC}, 2"); e(f"s_lshl_b32 s{sT1}, s{sT1}, 1"); e(f"s_lshl_b32 s{sT2}, s{sRB}, 2"); e(f"s_add_u32 s{sT1}, s{sT1}, s{sT2}")
        fragoff(vF0, sT1); e(f"s_add_u32 s{sT1}, s{sT1}, 1"); fragoff(vF1, sT1)
    def early_scalars():
        e(f"s_lshr_b32 s{sT1}, s{sC}, 2"); e(f"s_lshl_b32 s{sT2}, s{sRB}, 1"); e(f"s_add_u32 s{sT2}, s{sT2}, s{sT1}")
        e(f"s_mul_i32 s{sA0}, s{sT2}, {4*114688}"); e(f"s_mul_i32 s{sT0}, s{sRG}, {28*2048}")
        e(f"s_add_u32 s{sA0}, s{sA0}, s{sT0}"); e(f"s_add_u32 s{sA1}, s{sA0}, {2*114688}")
        e(f"s_lshl_b32 s{sPF}, s{sRT}, 11"); e(f"s_lshl_b32 s{sT0}, s{sT1}, 8")
        e(f"s_add_u32 s{sPF}, s{sPF}, s{sT0}"); e(f"s_add_u32 s{sPF}, s{sPF}, {FLG_OFF + 128*1024}")
        e(f"s_cmp_lg_u32 s{sISC}, 0"); e(f"s_cselect_b32 s{sEA}, 1, 64")
        cbcalc()
        e(f"s_mul_i32 s{sWK}, s{sRG}, {448*1024}"); e(f"s_add_u32 s{sWK}, s{sWK}, s{sT1}")
        e(f"s_lshl_b32 s{sLB}, s{sRG}, 11")
        e(f"s_lshl_b32 s{sT0}, s{sP}, 10"); e(f"s_add_u32 s{sE1}, s{sLB}, s{sT0}")
        e(f"s_lshl_b32 s{sT0}, s{sP}, 13"); e(f"s_add_u32 s{sE2}, s{sWK}, s{sT0}")
        srd(e, SWE, 96, 97, 1792 * 1024)
    def poll_addr():
        e(f"v_lshrrev_b32 v{vPA}, 1, v{vL}"); e(f"v_lshlrev_b32 v{vPA}, 9, v{vPA}")
        e(f"v_and_b32 v{ND}, 1, v{vL}"); e(f"v_lshl_add_u32 v{vPA}, v{ND}, 7, v{vPA}")
    vD2 = vAUX + 10
    dmalane(vD2, vS + 2, vS + 3)
    poll_addr()
    for j in range(4): e(f"v_mov_b32 v{PK+4+j}, -1")
    SPm, SMm = vAUX + 4, vAUX + 8
    e(f"s_cmp_lg_u32 s{sTYPE}, 0"); e("s_cbranch_scc1 K_NSEL")
    e(f"v_lshlrev_b32 v{vS+4}, 2, v{vS+4}"); e(f"v_sub_u32 v{vS+4}, v{vS+1}, v{vS+4}")
    e(f"v_mov_b32 v{vS}, s{sLO}"); e(f"v_mov_b32 v{vS+5}, s{sHI}")
    for t, f0 in enumerate((0, 2, 8, 10)):
        e(f"v_cmp_eq_u32 vcc, {f0}, v{vS+4};;v_cmp_eq_u32 s[62:63], {f0+1}, v{vS+4};;s_nop 0;;"
          f"v_cndmask_b32 v{SMm+t}, 0, v{vS}, vcc;;v_cndmask_b32 v{SMm+t}, v{SMm+t}, v{vS+5}, s[62:63]")
    for j in range(4):
        e(f"v_cndmask_b32 v{SPm+j}, 0, v{SMm+j}, {sr(sLT16,2)}"); e(f"v_cndmask_b32 v{SMm+j}, v{SMm+j}, 0, {sr(sLT16,2)}")
    e(f"v_bfe_u32 v{vS}, v{vL}, 4, 1"); e(f"v_lshlrev_b32 v{vAUX}, 9, v{vS}")
    e(f"v_lshrrev_b32 v{vS}, 5, v{vL}"); e(f"v_lshl_add_u32 v{vAUX}, v{vS}, 7, v{vAUX}")
    e(f"v_lshl_add_u32 v{vAUX}, v{vS+1}, 3, v{vAUX}")
    e(f"s_lshl_b32 s{sT0}, s{sW}, 10"); e(f"v_add_u32 v{vAUX}, s{sT0}, v{vAUX}")
    e.label("K_NSEL")
    def q3touch():
        e(f"s_cmp_ge_u32 s{sC}, 4"); e("s_cbranch_scc1 K_NQ3")
        e("s_mov_b64 s[92:93], s[66:67]"); e(f"s_mov_b32 s94, {512*3072}"); e("s_mov_b32 s95, 0x00020000")
        e(f"s_lshl_b32 s{sT0}, s{sIDX}, 3"); e(f"s_add_u32 s{sT0}, s{sT0}, s{sW}"); e(f"s_mul_i32 s{sT0}, s{sT0}, 6144")
        for col in ((2048, 0) if OPT.get("q3", 1) < 3 else (0,)):
            for r in (0, 3072):
                for hf in (0, 64): e(f"s_buffer_load_dword s{sCNT}, s[92:95], s{sT0} offset:{col + 384 + r + hf}")
        e.label("K_NQ3")
    st("su")
    if OPT.get("q3", 1) in (1, 3): q3touch()
    e.ext(sset(1))
    if OPT.get("q3", 1) == 2: q3touch()
    st("i1")

    def wrd(s):
        b = WB + 4 * (s % NWB); o = 1024 * (s & 12) + 0x8000 * (s >> 4)
        return [f"ds_read_b64_tr_b16 {vr(b,2)}, v{vTR+(s&3)} offset:{o}", f"ds_read_b64_tr_b16 {vr(b+2,2)}, v{vTR+(s&3)} offset:{o+256}"]
    def csm(s):
        return f"{M16} {vr(CS,4)}, {vr(SELC,4)}, {vr(WB+4*(s%NWB),4)}, {'0' if s == 0 else vr(CS,4)}"
    XO = (0x8000, 0, 0x8000, 0x8000)
    def rd(s):
        return [f"ds_read_b128 {vr(XF+4*s,4)}, v{vFR+(s&7)} offset:{XO[s>>3]}"] + wrd(s)
    VM = {0: 6, 1: 6, 2: 6, 3: 4, 4: 63}
    def sync(k):
        l = [f"s_waitcnt vmcnt({VM[k]}) lgkmcnt(0)", "s_barrier"]
        if k == 3: l[0] = f"s_waitcnt vmcnt(5) lgkmcnt(0);;s_lshr_b32 s{sT0}, s{sW}, 1;;s_cmp_eq_u32 s{sT0}, 1;;s_cbranch_scc1 K_S3;;s_waitcnt vmcnt(4);;K_S3:"
        st(f"sync{k}", l)
        if k == 1: l += [f"v_subrev_u32 v{vFR+t}, 0x8000, v{vFR+t}" for t in range(8)]
        if k == 3: l += [f"v_add_u32 v{vFR+t}, 0x8000, v{vFR+t}" for t in range(8)]
        return l
    G = []
    g0 = sync(0)
    for s_ in range(4): g0 += rd(s_)
    G.append(g0)
    for s_ in range(32):
        g = []
        if s_ % 8 == 4: g += sync(s_ // 8 + 1)
        if s_ + 4 < 32: g += rd(s_ + 4)
        if s_ % 8 < 4: g.append(f"s_waitcnt lgkmcnt(12)")
        d = EACC if s_ == 31 else ACC
        g.append(f"{MFMA} {vr(d,16)}, {vr(WB+4*(s_%NWB),4)}, {vr(XF+4*s_,4)}, {'0' if s_ == 0 else vr(ACC,16)}")
        if s_ % 4 == 0: g.append(csm(s_))
        if s_ % 2 == 0:
            g.append(f"{M16} {vr(RS,4)}, {vr(SELC,4)}, {vr(XF+4*s_,4)}, {'0' if s_ == 0 else vr(RS,4)}")
            for r in range(4): g.append(f"v_dot2c_f32_bf16 v{vQ+(r&1)}, v{XF+4*s_+r}, v{XF+4*s_+r}")
        G.append(g)
    if OPT.get("z_nodot"): G = [[i for i in g if "dot2c" not in i] for g in G]
    if OPT.get("z_nom16"): G = [[i for i in g if "16x16x32" not in i] for g in G]
    if OPT.get("z_gram"): G = [[(f"{MFMA} {vr(PK,16)}, {i.split(', ')[1].replace('v','v[') + ':' + str(int(i.split(', ')[1][1:])+3) + ']'}, {i.split(', ')[1].replace('v','v[') + ':' + str(int(i.split(', ')[1][1:])+3) + ']'}, {vr(PK,16)}" if "dot2c" in i else i) for i in g if not ("dot2c" in i and int(i.split(', ')[1][1:]) % 4)] for g in G]
    d8 = dma8()
    if WTA == 0: e(wt)
    e.ext(interleave(G[0:5], sset(2) + ([wt] if WTA == 1 else []), 0, 4))
    e.ext(interleave(G[5:13], sset(3) + ([wt] if WTA == 2 else []), 0, 6))
    e(f"s_add_u32 s{sDA}, s{sROWO}, s{sCOL+1}"); e(f"s_add_u32 s{sMA}, s{sLB0}, {YB}")
    mark = len(e.L)
    early_scalars()
    e(f"s_mul_i32 s{sOUT}, s{sRT}, {2*114688}"); e(f"s_lshl_b32 s{sT0}, s{sP}, 12"); e(f"s_add_u32 s{sOUT}, s{sOUT}, s{sT0}")
    e(f"s_and_b32 s{sAUXO}, s{sC}, 1"); e(f"s_lshl_b32 s{sAUXO}, s{sAUXO}, 6"); e(f"s_add_u32 s{sAUXO}, s{sAUXO}, s{sCOL+3}")
    e(f"s_lshl_b32 s{sSLOT}, s{sAUXO}, 6"); e(f"s_add_u32 s{sSLOT}, s{sSLOT}, s{sOUT}"); e(f"s_lshl_b32 s{sT0}, s{sP}, 11"); e(f"s_sub_u32 s{sSLOT}, s{sSLOT}, s{sT0}")
    e(f"s_lshl_b32 s{sT0}, s{sW}, 7"); e(f"s_add_u32 s{sST}, s{sT0}, {RVO}")
    sc = [t.strip() for t in e.L[mark:]]; del e.L[mark:]
    h_ = [";;".join(sc[:12]), ";;".join(sc[12:])] if False else [";;".join(sc)]
    e.ext(interleave(G[13:21], d8[:4] + h_, 0, 6))
    pf = f"s_cmp_eq_u32 s{sTYPE}, 0;;s_cbranch_scc1 K_NPF;;" + ";;".join(f"v_mov_b32 v{EACC+j}, -1" for j in range(4))
    pf += (f";;s_lshl_b32 s{sT0}, s{sRB}, 3;;s_add_u32 s{sT0}, s{sT0}, s{sC};;s_lshl_b32 s{sT0}, s{sT0}, 14;;s_lshl_b32 s{sT1}, s{sW}, 10;;s_add_u32 s{sT2}, s{sT0}, s{sT1};;"
           f"s_add_u32 s{sT2}, s{sT2}, {KVP_OFF};;buffer_store_dwordx4 {vr(EACC,4)}, v{vL16}, {sr(SWS,4)}, s{sT2} offen sc1;;"
           f"s_lshl_b32 s{sT0}, s{sRT}, 16;;s_lshl_b32 s{sT1}, s{sC}, 13;;s_add_u32 s{sT0}, s{sT0}, s{sT1};;s_lshl_b32 s{sT1}, s{sP}, 12;;s_add_u32 s{sT0}, s{sT0}, s{sT1};;"
           f"s_add_u32 s{sT0}, s{sT0}, {PQ_OFF};;buffer_store_dwordx4 {vr(EACC,4)}, v{vFO}, {sr(SWS,4)}, s{sT0} offen sc1;;"
           f"buffer_store_dwordx4 {vr(EACC,4)}, v{vFO}, {sr(SWS,4)}, s{sT0} offen offset:2048 sc1;;"
           f"s_cmp_lg_u32 s{sW}, 7;;s_cbranch_scc1 K_NPF;;s_lshl_b32 s{sT0}, s{sC}, 4;;s_add_u32 s{sT0}, s{sT0}, s{sRB};;s_lshl_b32 s{sT0}, s{sT0}, 9;;"
           f"s_add_u32 s{sT0}, s{sT0}, {KVZ_OFF};;s_mov_b32 exec_hi, 0;;buffer_store_dwordx4 {vr(EACC,4)}, v{vL16}, {sr(SWS,4)}, s{sT0} offen sc1;;"
           f"buffer_store_dwordx4 {vr(EACC,4)}, v{vL16}, {sr(SWS,4)}, s{sT2} offen offset:1024 sc1;;s_mov_b32 exec_hi, -1;;K_NPF:")
    e.ext(interleave(G[21:], [auxl("K_AUX")] + d8[4:] + [pf], 0, 5))
    tA, tB, tC = vFR, vFR + 1, vFR + 2
    e(f"v_and_b32 v{tB}, 31, v{vL}")
    e(f"s_lshl_b32 s{sT0}, s{sW}, 8"); e(f"s_add_u32 s{sT0}, s{sT0}, {STAT}")
    e(f"v_add_f32 v{vQ}, v{vQ}, v{vQ+1}")
    e(f"v_mov_b32 v{vQ+1}, v{vQ}")
    e(f"v_lshl_add_u32 v{tA}, v{tB}, 3, s{sT0}")
    e(f"v_lshlrev_b32 v{tC}, 2, v{tB}")
    e(f"v_permlane32_swap_b32 v{vQ}, v{vQ+1}")
    e(f"v_add_f32 v{RS+1}, v{vQ}, v{vQ+1}")
    e(f"ds_write_b64 v{tA}, {vr(RS,2)}")
    e(f"ds_write_b32 v{vCSW}, v{CS}")
    e(f"v_add_u32 v{tB}, {GSY:#x}, v{tC}"); e(f"ds_write_b32 v{tB}, v{AUG+4}")
    e(f"v_xor_b32 v{tA}, 1024, v{tA}")
    e("s_waitcnt lgkmcnt(0)")
    e("s_barrier")
    e(f"ds_read_b64 {vr(vS,2)}, v{tA}")
    for k in range(4): e(f"v_xor_b32 v{vTR+k}, 0x10000, v{vTR+k}")
    e(f"v_xor_b32 v{vCSW}, 1024, v{vCSW}")
    e(f"v_cmp_gt_u32 vcc, 32, v{vL}")
    e("s_waitcnt lgkmcnt(0)")
    a, b = vS, vS + 1
    e(f"v_add_f32 v{a}, v{a}, v{RS}"); e(f"v_add_f32 v{b}, v{b}, v{RS+1}")
    e(f"v_mul_f32 v{a}, {f2u(-1.0/512):#x}, v{a}"); e(f"v_mul_f32 v{b}, {f2u(1.0/512):#x}, v{b}")
    e(f"v_fma_f32 v{b}, -v{a}, v{a}, v{b}"); e(f"v_cvt_pk_bf16_f32 v{AUG+2}, v{a}, v{a}")
    e(f"v_max_f32 v{b}, 0, v{b}")
    e(f"v_cvt_pk_bf16_f32 v{b}, v{b}, v{b}"); e(f"v_and_b32 v{b}, s{sMASK}, v{b}")
    e(f"v_add_f32 v{b}, {f2u(1e-5):#x}, v{b}"); e(f"v_cvt_pk_bf16_f32 v{b}, v{b}, v{b}")
    e(f"v_and_b32 v{b}, s{sMASK}, v{b}"); e(f"v_sqrt_f32 v{b}, v{b}")
    e(f"v_cndmask_b32 v{AUG+2}, 0, v{AUG+2}, vcc")
    e(f"v_cvt_pk_bf16_f32 v{AUG+3}, v{a}, v{b}")
    e(f"v_and_b32 v{b}, s{sMASK}, v{AUG+3}")
    e(f"v_rcp_f32 v{a}, v{b}")
    e(f"v_cndmask_b32 v{AUG+3}, 0, v{AUG+3}, vcc")

    APOLL = f"v_lshlrev_b32 v{vS+4}, 7, v{vL};;s_mov_b64 exec, 3;;buffer_load_dword v{vS+5}, v{vS+4}, {sr(SDBG,4)}, 0 offen sc1;;s_mov_b64 exec, -1"
    def apoll7():
        l2 = L("X")
        e(f"s_cmp_lg_u32 s{sW}, 7"); e(f"s_cbranch_scc1 {l2}")
        e(APOLL)
        e.label(l2)
    def r2_check(n=1):
        l2 = L("X")
        e(f"s_cmp_lg_u32 s{sW}, 7"); e(f"s_cbranch_scc1 {l2}")
        e(f"s_waitcnt vmcnt({n})")
        check([(APOLL, vS + 5, 3, 64)])
        e.label(l2)
    def publish(lev, vt):
        if OPT.get("x_nopub"): return "s_nop 0"
        return (f"v_mov_b32 v{vt}, {lev};;v_lshlrev_b32 v{vDUM}, 2, v{vL};;s_mov_b32 exec_hi, 0;;"
                f"buffer_store_dword v{vt}, v{vDUM}, {sr(SWS,4)}, s{sFLG} offen sc1;;s_mov_b32 exec_hi, -1")
    def midpub(n, lev, vt):
        a_, b_ = L("P"), L("P")
        return f"s_cbranch_vccz {a_};;s_waitcnt vmcnt({n});;s_branch {b_};;{a_}:;;s_waitcnt vmcnt(0);;{b_}:;;" + publish(lev, vt)
    def mgroups(swap=False, pre=(), cq=PK):
        PF = NWB - 1
        G = []
        g0 = [f"ds_read_b128 {vr(cq,4)}, v{vCSR}"] + list(pre)
        for s in range(PF): g0 += wrd(s)
        G.append(g0)
        for s in range(32):
            g = []
            if s + PF < 32: g += wrd(s + PF)
            g.append(f"s_waitcnt lgkmcnt({2 * min(PF, 31 - s)})")
            w, x = vr(WB + 4 * (s % NWB), 4), vr(XF + 4 * s, 4)
            a, b = (x, w) if swap else (w, x)
            d = EACC if s == 31 else ACC
            g.append(f"{MFMA} {vr(d,16)}, {a}, {b}, {'0' if s == 0 else vr(ACC,16)}")
            if s % 4 == 0: g.append(csm(s))
            G.append(g)
        return G
    def aug(bias=None, swap=False, cq=PK):
        l = Lst()
        c, t = cq, cq + 1
        l(f"v_add_f32 v{c}, v{c}, v{c+1}"); l(f"v_add_f32 v{c+2}, v{c+2}, v{c+3}"); l(f"v_add_f32 v{c}, v{c}, v{c+2}")
        l(f"v_cvt_pk_bf16_f32 v{t}, v{c}, v{c}"); l(f"v_and_b32 v{t}, s{sMASK}, v{t}"); l(f"v_sub_f32 v{t}, v{c}, v{t}")
        l(f"v_cvt_pk_bf16_f32 v{AUG}, v{c}, v{t}"); l(f"v_and_b32 v{c}, s{sMASK}, v{AUG}"); l(f"v_sub_f32 v{t}, v{t}, v{c}")
        l(f"v_cvt_pk_bf16_f32 v{AUG+1}, v{t}, {'v%d' % bias if bias is not None else '0'}")
        a, b = (vr(AUG+2,4), vr(AUG,4)) if swap else (vr(AUG,4), vr(AUG+2,4))
        l(f"s_nop 1;;{MFMA} {vr(EACC,16)}, {a}, {b}, {vr(EACC,16)}")
        l.extend(["@MARK", "@PAD", "@PAD", "@PAD", "@NEED 12"])
        return l
    def round_toggle():
        e(f"ds_write_b32 v{vCSW}, v{CS}")
        for k in range(4): e(f"v_xor_b32 v{vTR+k}, 0x10000, v{vTR+k}")
        e(f"v_xor_b32 v{vCSW}, 1024, v{vCSW}"); e(f"v_xor_b32 v{vCSR}, 1024, v{vCSR}")

    FPOLL = f"s_mov_b64 exec, 0xff;;buffer_load_dword v{ND}, v{vPA}, {sr(SWS,4)}, s{sPF} offen sc1;;s_mov_b64 exec, -1"
    def checkt(items, spin=SPIN):
        if OPT.get("x_nochk"): return "s_nop 0"
        top, ok = L("C"), L("C")
        t = [f"s_mov_b32 s{sCNT}, 0", f"{top}:"]
        for k, (pt, reg, msk, thr) in enumerate(items):
            t += [f"s_movk_i32 s{sT1}, {thr}", f"v_cmp_gt_u32 s[62:63], s{sT1}, v{reg}", "s_nop 0"]
            if k == 0: t.append(f"s_and_b32 s{sT0}, s62, {msk:#x}")
            else: t += [f"s_and_b32 s{sT1}, s62, {msk:#x}", f"s_or_b32 s{sT0}, s{sT0}, s{sT1}"]
        t += [f"s_cbranch_scc0 {ok}", "s_sleep 8"]
        t += [pt for (pt, reg, msk, thr) in items]
        t += [f"s_add_u32 s{sCNT}, s{sCNT}, 1", f"s_cmp_lt_u32 s{sCNT}, {spin}", "s_waitcnt vmcnt(0)", f"s_cbranch_scc1 {top}", f"{ok}:"]
        if OPT.get("cnt"): t += [f"s_mul_i32 s91, s91, 10", f"s_min_u32 s{sT0}, s{sCNT}, 9", f"s_add_u32 s91, s91, s{sT0}"]
        return ";;".join(t)
    def check(items): e(checkt(items))
    def sentinel(R, n, vt, reload):
        top, ok = L("V"), L("V")
        t = [f"s_mov_b32 s{sCNT}, 0", f"{top}:", f"v_max_u32 v{vt}, v{R}, v{R+1}"]
        t += [f"v_max3_u32 v{vt}, v{vt}, v{R+k}, v{R+k+1}" for k in range(2, n, 2)]
        t += [f"v_cmp_eq_u32 vcc, -1, v{vt}", "s_nop 0", "s_cmp_eq_u64 vcc, 0", f"s_cbranch_scc1 {ok}", "s_sleep 8", reload,
              f"s_add_u32 s{sCNT}, s{sCNT}, 1", f"s_cmp_lt_u32 s{sCNT}, {SPIN // 8}", "s_waitcnt vmcnt(0)", f"s_cbranch_scc1 {top}", f"{ok}:"]
        if OPT.get("cnt"): t += [f"s_mul_i32 s91, s91, 10", f"s_min_u32 s{sT0}, s{sCNT}, 9", f"s_add_u32 s91, s91, s{sT0}"]
        return ";;".join(t)
    RING, NU, NA = 128, 12, OPT.get("na", 8)
    unit = [i % NU for i in range(36)]
    ASC = "" if OPT.get("x_plain") else "sc1"
    def aload(i):
        R = RING + 8 * unit[i]; t = ""
        ks, b0, b1 = (order[i], sA0, sA1) if i < 28 else (i - 28, sP0, sKV)
        if i % 2 == 0: t = f"s_add_u32 s{sT3}, s{b0}, {2048*ks};;s_add_u32 s{sT4}, s{b1}, {2048*ks};;"
        return [t + f"buffer_load_dwordx4 {vr(R,4)}, v{vF0}, {sr(SWS,4)}, s{sT3} offen offset:{2048*(ks&1)} {ASC}",
                f"buffer_load_dwordx4 {vr(R+4,4)}, v{vF1}, {sr(SWS,4)}, s{sT4} offen offset:{2048*(ks&1)} {ASC}"]
    def tail(E, lev, vt):
        l1 = [guard("s_waitcnt vmcnt(1);;" + checkt([(FPOLL, ND, 0xff, 1)]))]
        for i in range(NA): l1 += [guard(t) for t in aload(i)]
        l2 = []
        for i in range(NE, NE + NW1): l2 += [guard(t) for t in wdma(i)]
        E = list(E)
        h = int(len(E) * 0.5)
        return merge(E[:h], l1) + merge(E[h:], l2, 0.9)

    def l2pf(r, x=0):
        return (f"s_lshr_b32 s{sT0}, s{sIDX}, 3;;s_lshl_b32 s{sT0}, s{sT0}, 2;;s_and_b32 s{sT1}, s{sIDX}, 3;;s_add_u32 s{sT0}, s{sT0}, s{sT1};;s_lshl_b32 s{sT0}, s{sT0}, 3;;"
                f"s_xor_b32 s{sT1}, s{sW}, {x};;s_add_u32 s{sT0}, s{sT0}, s{sT1};;s_lshl_b32 s{sT1}, s2, 4;;s_add_u32 s{sT0}, s{sT0}, s{sT1};;s_and_b32 s{sT0}, s{sT0}, 127;;"
                f"s_mul_i32 s{sT0}, s{sT0}, 14336;;s_add_u32 s{sT0}, s{sT0}, {7168*r};;s_mov_b64 s[92:93], s[96:97];;s_mov_b32 s94, {1792*1024};;s_mov_b32 s95, 0x00020000;;"
                f"v_lshlrev_b32 v{vDUM}, 7, v{vL};;s_bfm_b64 exec, 56, 0;;buffer_load_dword v{vDUM}, v{vDUM}, s[92:95], s{sT0} offen;;s_mov_b64 exec, -1")
    L2 = OPT.get("l2pf", 0)
    e(f"s_cmp_eq_u32 s{sTYPE}, 0")
    e("s_cbranch_scc1 K_QKV")
    vSS, vPB = vAUX + 8, vAUX + 9
    k0 = -2.0 * math.sqrt(2.0 / math.pi) * math.log2(math.e)
    e(f"v_mov_b32 v{vSS}, v{vS+1}")
    e(f"v_mul_f32 v{vC1}, {f2u(k0):#x}, v{vS}")
    e(f"v_mul_f32 v{vC0}, v{vS}, v{vS}"); e(f"v_mul_f32 v{vC0}, v{vC0}, v{vC1}"); e(f"v_mul_f32 v{vC0}, {f2u(0.044715):#x}, v{vC0}")
    e("s_waitcnt vmcnt(0)")
    for i in range(4): e(f"v_lshlrev_b32 v{vAUX+i}, 16, v{vAUX+i}")
    e("s_barrier")
    st("r0end")
    e(f"s_cmp_lg_u32 s{sW}, 7"); e("s_cbranch_scc1 K_NA")
    e(f"s_and_b32 s{sT0}, s2, 1"); e(f"s_lshl_b32 s{sT0}, s{sT0}, 7")
    e(f"v_mov_b32 v{vDUM}, 1")
    e("s_mov_b64 exec, 1")
    e(f"buffer_atomic_add v{vDUM}, v{AUG+4}, {sr(SDBG,4)}, s{sT0} offen sc1")
    e("s_mov_b64 exec, -1")
    e.label("K_NA")
    e(f"s_cmp_eq_u32 s{sW}, 7"); e(f"s_cselect_b32 s{sIT}, 0, 64")
    e("s_mov_b64 vcc, -1")
    def gelu(r):
        l = aug(bias=vAUX + r)
        for half in range(2):
            rng = range(8 * half, 8 * half + 8)
            for i in rng: l(f"v_mul_f32 v{TMP+i}, v{EACC+i}, v{EACC+i}")
            for i in rng: l(f"v_fma_f32 v{TMP+i}, v{TMP+i}, v{vC0}, v{vC1}")
            for i in rng: l(f"v_mul_f32 v{TMP+i}, v{EACC+i}, v{TMP+i}")
            for i in rng: l(f"v_exp_f32 v{TMP+i}, v{TMP+i}")
            for i in rng: l(f"v_fma_f32 v{TMP+i}, v{TMP+i}, v{vSS}, v{vSS}")
            for i in rng: l(f"v_rcp_f32 v{TMP+i}, v{TMP+i}")
            for i in rng: l(f"v_mul_f32 v{TMP+i}, v{EACC+i}, v{TMP+i}")
            for i in range(4): l(f"v_cvt_pk_bf16_f32 v{PK+8+4*half+i}, v{TMP+8*half+2*i}, v{TMP+8*half+2*i+1}")
            l(f"buffer_store_dwordx4 {vr(PK+8+4*half,4)}, v{vFO}, {sr(SWS,4)}, s{sST} offen offset:{2048*half} {STF}")
        return l
    st("f0")
    def stbase(r): e(f"s_lshl_b32 s{sST}, s{sCOL+r}, 6"); e(f"s_add_u32 s{sST}, s{sST}, s{sOUT}")
    def place(fl, items):
        n_ = len(fl)
        for pos, it in sorted(items, key=lambda x: -x[0]): fl.insert(int(n_ * pos / 100), it)
        return fl
    def spread(items, p0, p1): return [(p0 + (p1 - p0) * k / max(1, len(items) - 1), it) for k, it in enumerate(items)]
    stbase(0)
    e(f"s_add_u32 s{sDA}, s{sROWO}, s{sCOL+2}"); e(f"s_mov_b32 s{sMA}, s{sLB0}")
    hp = [f"s_lshl_b32 s{sT0}, s{sCOL+1+k//2}, 6;;s_add_u32 s{sT0}, s{sT0}, s{sOUT};;buffer_store_dwordx4 {vr(PK+4,4)}, v{vFO}, {sr(SWS,4)}, s{sT0} offen offset:{2048*(k&1)} sc1" for k in range(4)]
    hp.append(f"buffer_store_dwordx4 {vr(PK+4,4)}, v{vFO}, {sr(SWS,4)}, s{sSLOT} offen sc1")
    ea = f"s_cmp_lg_u32 s{sW}, 7;;s_cbranch_scc1 K_FE1;;" + APOLL + ";;K_FE1:"
    fl = place(gelu(0), spread(dma8(), 0, OPT.get("d1", 36)) + spread(hp, OPT.get("hp0", 44), OPT.get("hp1", 82)) + [(85, ea)])
    e.ext(interleave(mgroups(), fl, 1, 31))
    st("b1")
    round_toggle()
    stbase(1)
    e(f"s_add_u32 s{sDA}, s{sROWO}, s{sAUXO}"); e(f"s_add_u32 s{sMA}, s{sLB0}, {YB}")
    e(f"s_cmp_lg_u32 s{sISC}, 0"); e("s_cselect_b64 vcc, -1, 0")
    e(f"s_waitcnt vmcnt(7) lgkmcnt(0)")
    r2_check()
    e("s_barrier")
    st("r1end")
    d4 = []
    for i in range(4):
        jg, jl = (f"s{sJG}", "0x7c00") if i == 1 else (f"s{sP16}", "1024")
        d4.append(f"s_mov_b32 m0, s{sMA};;s_add_u32 s{sMA}, s{sMA}, {jl};;buffer_load_dwordx4 v{vDMA}, {sr(SW,4)}, s{sDA} offen lds;;s_add_u32 s{sDA}, s{sDA}, {jg}")
    KR = OPT.get("kr", 3)
    er = [erow(i, vD2) for i in range(NE)]
    mp = f"s_waitcnt vmcnt({4 + KR});;" + publish(1, vPB)
    fl = place(gelu(1), spread(d4 + er[:KR] + [mp] + er[KR:], 0, OPT.get("d2", 50)) + [(OPT.get("epat", 85), guard(FPOLL))])
    e.ext(interleave(mgroups(), fl, 1, 31))
    st("b2")
    round_toggle()
    stbase(2)
    e(f"s_waitcnt vmcnt(2) lgkmcnt(0)")
    e("s_barrier")
    st("r2end")
    e("s_cbranch_vccz K_FG")
    e(f"ds_read_b128 {vr(PK,4)}, v{vCSR}")
    p2_setup()
    e("s_waitcnt vmcnt(1) lgkmcnt(0)")
    check([(FPOLL, ND, 0xff, 1)])
    pre = []
    for i in range(NA): pre += aload(i)
    for i in range(NE, NE + NW1): pre += wdma(i)
    e.ext(place(gelu(2), spread(pre, 0, OPT.get("tl", 90))))
    e("s_branch K_P2")
    e.label("K_FG")
    e(f"s_lshl_b32 s{sT0}, s{sP}, 14")
    for k in range(4): e(f"v_subrev_u32 v{vTR+k}, s{sT0}, v{vTR+k}")
    e(f"s_setprio {OPT.get('gprio', 2)}")
    e.ext(interleave(mgroups(), gelu(2), 1, OPT.get("g3", 24)))
    st("b3")
    e(f"ds_write_b32 v{vCSW}, v{CS}")
    e(f"v_xor_b32 v{vCSR}, 1024, v{vCSR}")
    stbase(3)
    e(f"v_mov_b32 v{vS}, {GSY:#x}"); e(f"v_mov_b32 v{vS+1}, 1")
    e("s_waitcnt lgkmcnt(0)")
    e("s_mov_b64 exec, 1"); e(f"ds_add_u32 v{vS}, v{vS+1}"); e("s_mov_b64 exec, -1")
    e.label("K_FSP")
    e(f"ds_read_b32 v{vS+1}, v{vS}")
    e("s_waitcnt lgkmcnt(0)")
    e(f"v_readfirstlane_b32 s{sT0}, v{vS+1}")
    e("s_nop 3")
    e(f"s_cmp_lt_u32 s{sT0}, 4"); e("s_cbranch_scc1 K_FSP")
    e(f"ds_read_b128 {vr(PK,4)}, v{vCSR}")
    e("s_waitcnt lgkmcnt(0)")
    e.ext(gelu(3))
    if OPT.get("spf", 1):
        e("s_setprio 0")
        srd(e, SWO, 98, 99, 512 * 1024)
        e(f"s_lshr_b32 s{sT0}, s{sIDX}, 3"); e(f"s_and_b32 s{sT1}, s{sIDX}, 3"); e(f"s_lshl_b32 s{sT1}, s{sT1}, 2"); e(f"s_add_u32 s{sT1}, s{sT1}, s{sRG}")
        e(f"s_lshl_b32 s{sT1}, s{sT1}, 10"); e(f"s_add_u32 s{sT1}, s{sT1}, {OPT.get('spc', 3)*128}")
        e(f"s_mul_i32 s{sT2}, s{sT0}, {448*1024}"); e(f"s_add_u32 s{sT2}, s{sT2}, s{sT1}")
        e(f"s_lshl_b32 s{sT3}, s{sT0}, 17"); e(f"s_add_u32 s{sT3}, s{sT3}, s{sT1}")
        B_ = OPT.get("spb", 6)
        for k, i in enumerate(range(OPT.get("sp0", 16), 36)):
            for hf in (0, 64):
                if i < 28: e(f"s_buffer_load_dword s{sT4}, {sr(SWE,4)}, s{sT2} offset:{order[i]*16384+hf}")
                else: e(f"s_buffer_load_dword s{sT4}, {sr(SWO,4)}, s{sT3} offset:{(i-28)*16384+hf}")
            if k % B_ == B_ - 1: e("s_waitcnt lgkmcnt(0)")
        e("s_waitcnt lgkmcnt(0)")
    e("s_branch K_GFIN")

    e.label("K_QKV")
    WT = vAUX
    e(f"v_mul_f32 v{vC0}, {f2u(math.log2(math.e)):#x}, v{vS}")
    e(f"v_add_u32 v{vS+1}, s{sST}, v{tC}")
    e(f"ds_write_b32 v{vS+1}, v{vS}")
    e(f"v_lshrrev_b32 v{vC1}, 5, v{vL}"); e(f"v_lshl_add_u32 v{vC1}, v{vC1}, 4, s{sST}")
    e("s_waitcnt vmcnt(0)")
    e(f"ds_read_b64_tr_b16 {vr(WT+2,2)}, v{vAUX} offset:256"); e(f"ds_read_b64_tr_b16 {vr(WT,2)}, v{vAUX}")
    e("s_waitcnt lgkmcnt(0)")
    e("s_barrier")
    st("r0end")
    def softcore(src):
        l = Lst()
        l(f"s_nop 1;;{MFMA} {vr(TMP,16)}, {vr(WT,4)}, {vr(src+4,4)}, 0;;{MFMA} {vr(EACC,16)}, {vr(WT,4)}, {vr(src,4)}, 0")
        l.extend(["@MARK", "@PAD", "@PAD", "@PAD", "@NEED 11"])
        for (P, EP, out) in ((TMP + 8, TMP, PK + 8), (EACC, EACC + 8, PK)):
            mx, mn = vS, vS + 1
            l(f"v_max3_f32 v{mx}, v{P}, v{P+1}, v{P+2}"); l(f"v_max3_f32 v{mn}, -v{P}, -v{P+1}, -v{P+2}")
            l(f"v_max3_f32 v{mx}, v{mx}, v{P+3}, v{P+4}"); l(f"v_max3_f32 v{mn}, v{mn}, -v{P+3}, -v{P+4}")
            l(f"v_max3_f32 v{mx}, v{mx}, v{P+5}, v{P+6}"); l(f"v_max3_f32 v{mn}, v{mn}, -v{P+5}, -v{P+6}")
            l(f"v_max_f32 v{mx}, v{mx}, v{P+7}"); l(f"v_max_f32_e64 v{mn}, v{mn}, -v{P+7}")
            l.extend(["@MARK", "@NEED 2"]); l(f"v_permlane32_swap_b32 v{mx}, v{mn}")
            l(f"v_max_f32 v{mx}, v{mx}, v{mn}")
            l(f"v_mul_f32_e64 v{mx}, -v{mx}, v{vC0}")
            l(f"v_mov_b32 v{mn}, v{mx}")
            l.extend(["@MARK", "@NEED 2"]); l(f"v_permlane32_swap_b32 v{mx}, v{mn}")
            for j in range(8): l(f"v_fma_f32 v{EP+j}, v{P+j}, v{vC0}, v{mx}")
            for j in range(8): l(f"v_fma_f32 v{P+j}, -v{P+j}, v{vC0}, v{mn}")
            for j in range(8): l(f"v_exp_f32 v{EP+j}, v{EP+j}")
            for j in range(8): l(f"v_exp_f32 v{P+j}, v{P+j}")
            s0, s1, s2, s3 = vS + 2, vS + 3, vS + 4, vS + 5
            l(f"v_add_f32 v{s0}, v{EP}, v{EP+1}"); l(f"v_add_f32 v{s1}, v{P}, v{P+1}")
            l(f"v_add_f32 v{s2}, v{EP+2}, v{EP+3}"); l(f"v_add_f32 v{s3}, v{P+2}, v{P+3}")
            for j in (4, 6):
                l(f"v_add_f32 v{s0}, v{s0}, v{EP+j}"); l(f"v_add_f32 v{s1}, v{s1}, v{P+j}")
                l(f"v_add_f32 v{s2}, v{s2}, v{EP+j+1}"); l(f"v_add_f32 v{s3}, v{s3}, v{P+j+1}")
            l(f"v_add_f32 v{s0}, v{s0}, v{s2}"); l(f"v_add_f32 v{s1}, v{s1}, v{s3}")
            l.extend(["@MARK", "@NEED 2"]); l(f"v_permlane32_swap_b32 v{s0}, v{s1}")
            l(f"v_add_f32 v{s0}, v{s0}, v{s1}")
            l(f"v_rcp_f32 v{s0}, v{s0}")
            l.extend(["@MARK", "@NEED 1"]); l(f"v_mov_b32 v{s1}, v{s0}")
            l.extend(["@MARK", "@NEED 2"]); l(f"v_permlane32_swap_b32 v{s0}, v{s1}")
            for j in range(8): l(f"v_mul_f32 v{EP+j}, v{EP+j}, v{s0}")
            for j in range(8): l(f"v_mul_f32 v{P+j}, v{P+j}, v{s1}")
            for j in range(4): l(f"v_cvt_pk_bf16_f32 v{out+j}, v{EP+2*j}, v{EP+2*j+1}")
            for j in range(4): l(f"v_cvt_pk_bf16_f32 v{out+4+j}, v{P+2*j}, v{P+2*j+1}")
        return l
    def kepi():
        l = aug()
        for i in range(8): l(f"v_cvt_pk_bf16_f32 v{PK+i}, v{EACC+2*i}, v{EACC+2*i+1}")
        l += softcore(PK)
        TD = (EACC, TMP)
        for a in (1, 0):
            l(f"s_nop 1;;{MFMA} {vr(TD[a],16)}, {vr(PK+8*a,4)}, {vr(SPm,4)}, 0;;{MFMA} {vr(TD[a],16)}, {vr(PK+8*a+4,4)}, {vr(SMm,4)}, {vr(TD[a],16)}")
        l(f"s_lshl_b32 s{sT0}, s{sP}, 10;;s_lshl_b32 s{sT1}, s{sRG}, 2;;s_add_u32 s{sT0}, s{sT0}, s{sT1};;s_add_u32 s{sT0}, s{sT0}, {ZSC};;v_and_b32 v{vS}, 0x1f0, v{vL16};;v_add_u32 v{vS}, s{sT0}, v{vS}")
        l.extend(["@MARK", "@PAD", "@NEED 4"])
        for a in (1, 0):
            for j in range(8): l(f"v_cvt_pk_bf16_f32 v{PK+8*a+j}, v{TD[a]+2*j}, v{TD[a]+2*j+1}")
        for a in (1, 0):
            l(f"s_nop 1;;{M16} {vr(TMP+4*a,4)}, {vr(SELC,4)}, {vr(PK+8*a,4)}, 0;;{M16} {vr(TMP+4*a,4)}, {vr(SELC,4)}, {vr(PK+8*a+4,4)}, {vr(TMP+4*a,4)}")
        l.extend(["@MARK", "@PAD", "@PAD", "@NEED 8"])
        for a in range(2): l(f"ds_write_b32 v{vS}, v{TMP+4*a} offset:{512*a}")
        return l
    CQ, VBQ = vAUX + 8, vAUX + 4
    def vepi():
        l = aug(swap=True, cq=CQ)
        for i in range(16): l(f"v_mul_f32 v{EACC+i}, v{EACC+i}, v{TMP+i}")
        for i in range(8): l(f"v_cvt_pk_bf16_f32 v{VBQ+i}, v{EACC+2*i}, v{EACC+2*i+1}")
        for i in range(8): l(f"v_cndmask_b32 v{TMP+i}, 0, v{VBQ+i}, {sr(sLT16,2)}")
        l(f"s_nop 1;;{MFMA} {vr(EACC,16)}, {vr(PK,4)}, {vr(TMP,4)}, 0;;{MFMA} {vr(EACC,16)}, {vr(PK+4,4)}, {vr(TMP+4,4)}, {vr(EACC,16)}")
        for i in range(8): l(f"v_cndmask_b32 v{TMP+8+i}, v{VBQ+i}, 0, {sr(sLT16,2)}")
        l(f"s_nop 1;;{MFMA} {vr(EACC,16)}, {vr(PK+8,4)}, {vr(TMP+8,4)}, {vr(EACC,16)};;{MFMA} {vr(EACC,16)}, {vr(PK+12,4)}, {vr(TMP+12,4)}, {vr(EACC,16)}")
        l.extend(["@MARK", "@PAD", "@PAD", "@PAD", "@NEED 12"])
        for q in range(4): l(f"ds_write_b128 v{vS+1}, {vr(EACC+4*q,4)} offset:{1024*q}")
        return l
    e(f"s_add_u32 s{sDA}, s{sROWO}, s{sCOL+2}"); e(f"s_mov_b32 s{sMA}, s{sLB0}")
    tch = (f"s_cmp_ge_u32 s{sW}, 4;;s_cbranch_scc1 K_NT;;s_lshl_b32 s{sT2}, s{sRB}, 3;;s_add_u32 s{sT2}, s{sT2}, s{sC};;s_lshl_b32 s{sT2}, s{sT2}, 1;;"
           f"s_and_b32 s{sT0}, s{sW}, 1;;s_add_u32 s{sT2}, s{sT2}, s{sT0};;s_cmp_lt_u32 s{sW}, 2;;s_cselect_b64 {sr(SAUX,2)}, s[96:97], s[98:99];;"
           f"s_mov_b32 s{sT0}, {1792*1024};;s_cselect_b32 s{SAUX+2}, s{sT0}, {512*1024};;s_movk_i32 s{sT0}, 7168;;s_cselect_b32 s{sT0}, s{sT0}, 2048;;"
           f"s_cselect_b32 s{sT1}, 56, 16;;s_mul_i32 s{sT0}, s{sT0}, s{sT2};;v_lshlrev_b32 v{vDUM}, 7, v{vL};;s_bfm_b64 exec, s{sT1}, 0;;"
           f"buffer_load_dword v{vDUM}, v{vDUM}, {sr(SAUX,4)}, s{sT0} offen;;s_mov_b64 exec, -1;;K_NT:")
    flq = merge(kepi(), dma8() + [tch], 0.35)
    if L2 in (1, 3, 4, 5): flq.insert(int(len(flq) * OPT.get("l2at", 60) / 100), l2pf(0))
    if L2 == 2:
        flq.insert(int(len(flq) * 0.62), l2pf(1)); flq.insert(int(len(flq) * 0.45), l2pf(0))
    QAP = APOLL.replace(f"v{vS+4}", f"v{vDUM}").replace(f"v{vS+5}", f"v{vDMA}")
    flq.insert(int(len(flq) * OPT.get("qap", 70) / 100), f"s_cmp_lg_u32 s{sW}, 7;;s_cbranch_scc1 K_QAP;;" + QAP + ";;K_QAP:")
    e.ext(interleave(mgroups(swap=True), flq, 1, 31))
    st("b1")
    round_toggle()
    e(f"s_lshl_b32 s{sT0}, s{sP}, 15"); e(f"s_lshl_b32 s{sT1}, s{sRG}, 12"); e(f"s_add_u32 s{sT0}, s{sT0}, s{sT1}"); e(f"s_add_u32 s{sT0}, s{sT0}, {YB}")
    e(f"v_add_u32 v{vS+1}, s{sT0}, v{vL16}")
    e(f"s_waitcnt vmcnt(0) lgkmcnt(0)")
    e(f"v_mov_b32 v{vS+5}, v{vDMA}")
    r2_check(0)
    dmalane(vDMA, vS + 2, vS + 3)
    poll_addr()
    e(f"s_lshl_b32 s{sT0}, s{sP}, 15"); e(f"s_lshl_b32 s{sT1}, s{sRG}, 10"); e(f"s_add_u32 s{sT0}, s{sT0}, s{sT1}"); e(f"s_add_u32 s{sT0}, s{sT0}, {YB}")
    e(f"v_add_u32 v{vS+4}, s{sT0}, v{vL16}")
    e(f"s_and_b32 s{sT2}, s{sRG}, 1"); e(f"s_lshl_b32 s{sT0}, s{sP}, 1"); e(f"s_add_u32 s{sT2}, s{sT2}, s{sT0}")
    e(f"s_lshl_b32 s{sT0}, s{sT2}, 9"); e(f"s_add_u32 s{sT0}, s{sT0}, {ZSC}")
    e(f"v_and_b32 v{vS}, 0x1f0, v{vL16}"); e(f"v_add_u32 v{vS}, s{sT0}, v{vS}")
    e(f"s_lshl_b32 s{sOUT}, s{sRB}, 17"); e(f"s_lshl_b32 s{sT0}, s{sC}, 14"); e(f"s_add_u32 s{sOUT}, s{sOUT}, s{sT0}"); e(f"s_add_u32 s{sOUT}, s{sOUT}, {KVP_OFF}")
    e(f"s_lshl_b32 s{sT2}, s{sT2}, 7"); e(f"s_add_u32 s{sT2}, s{sT2}, s{sOUT}"); e(f"s_add_u32 s{sT2}, s{sT2}, 8192")
    e(f"s_lshl_b32 s{sT0}, s{sW}, 10"); e(f"s_add_u32 s{sOUT}, s{sOUT}, s{sT0}")
    e(f"s_cmp_lg_u32 s{sISC}, 0"); e("s_cselect_b64 vcc, -1, 0")
    e("s_barrier")
    st("r1end")
    MG = mgroups(pre=[f"ds_read_b128 {vr(TMP+4*q,4)}, v{vC1} offset:{32*q}" for q in range(4)], cq=CQ)
    QP, QC = OPT.get("qp", 30), OPT.get("qc", 24)
    if L2 == 1: MG[1].append(l2pf(1))
    VS = OPT.get("vs", 9)
    RW = OPT.get("rw", 1)
    for i in range(NE): MG[(VS + 8 + i) if RW == 0 else (1 + i)].append(erow(i, vDMA))
    MG[QP].append(f"s_waitcnt vmcnt({RW})")
    MG[QP].append(guard(FPOLL))
    if L2 == 3: MG[QP].append("s_cbranch_vccnz K_QL2;;" + l2pf(1) + ";;" + l2pf(1, 4) + ";;K_QL2:")
    e.ext(interleave(MG[:VS+1], vepi(), 1, VS))
    e("s_waitcnt lgkmcnt(0)"); e("s_barrier")
    st("m2b")
    for w in range(4): e(f"ds_read_b128 {vr(TMP+4*w,4)}, v{vS+4} offset:{4096*w}")
    e(f"ds_read_b128 {vr(PK,4)}, v{vS}")
    e(f"v_lshlrev_b32 v{vS+4}, 2, v{vL}")
    kr = Lst()
    for j in range(4): kr(f"v_add_f32 v{TMP+j}, v{TMP+j}, v{TMP+4+j}")
    for j in range(4): kr(f"v_add_f32 v{TMP+8+j}, v{TMP+8+j}, v{TMP+12+j}")
    for j in range(4): kr(f"v_add_f32 v{TMP+j}, v{TMP+j}, v{TMP+8+j}")
    kr(f"buffer_store_dwordx4 {vr(TMP,4)}, v{vL16}, {sr(SWS,4)}, s{sOUT} offen sc1")
    kr(f"v_add_f32 v{PK}, v{PK}, v{PK+1}"); kr(f"v_add_f32 v{PK+2}, v{PK+2}, v{PK+3}"); kr(f"v_add_f32 v{PK}, v{PK}, v{PK+2}")
    kr(f"s_cmp_ge_u32 s{sRG}, 2;;s_cbranch_scc1 K_QNZ;;s_mov_b32 exec_hi, 0;;buffer_store_dword v{PK}, v{vS+4}, {sr(SWS,4)}, s{sT2} offen sc1;;s_mov_b32 exec_hi, -1;;K_QNZ:")
    RED, sU, sRED = 128, sA0, sST
    vRS, vRS2, vRD, vRT = vAUX + 4, vAUX + 5, vAUX + 6, vAUX + 8
    mark = len(e.L)
    e(f"s_lshl_b32 s{sRED}, s{sISC}, 2"); e(f"s_add_u32 s{sRED}, s{sRED}, s{sRG}")
    e(f"s_cmp_ge_u32 s{sRED}, 2"); e("s_cbranch_scc1 K_QRA")
    e(f"s_lshl_b32 s{sU}, s{sC}, 4"); e(f"s_add_u32 s{sU}, s{sU}, s{sRB}"); e(f"s_lshl_b32 s{sU}, s{sU}, 1"); e(f"s_add_u32 s{sU}, s{sU}, s{sRG}")
    e(f"v_lshrrev_b32 v{vRT}, 4, v{vL}"); e(f"v_and_b32 v{vRT+1}, 15, v{vL}"); e(f"v_lshlrev_b32 v{vRT+1}, 4, v{vRT+1}")
    e(f"v_lshl_add_u32 v{vRD}, v{vRT}, 2, v{vRT+1}")
    e(f"s_lshl_b32 s{sPF}, s{sC}, 14"); e(f"s_add_u32 s{sPF}, s{sPF}, {KVP_OFF}")
    e(f"s_cmp_eq_u32 s{sRG}, 0"); e("s_cbranch_scc0 K_GZA")
    e(f"s_and_b32 s{sT0}, s{sRB}, 8"); e(f"s_lshl_b32 s{sT0}, s{sT0}, 9"); e(f"s_add_u32 s{sPF}, s{sPF}, s{sT0}")
    e(f"s_and_b32 s{sT0}, s{sRB}, 2"); e(f"s_lshl_b32 s{sT0}, s{sT0}, 10"); e(f"s_add_u32 s{sPF}, s{sPF}, s{sT0}")
    e(f"s_and_b32 s{sT0}, s{sRB}, 1"); e(f"s_lshl_b32 s{sT0}, s{sT0}, 9"); e(f"s_add_u32 s{sPF}, s{sPF}, s{sT0}")
    e(f"s_and_b32 s{sT0}, s{sRB}, 4"); e(f"s_lshl_b32 s{sT0}, s{sT0}, 6"); e(f"s_add_u32 s{sPF}, s{sPF}, s{sT0}")
    e(f"v_lshl_add_u32 v{vRS}, v{vRT}, 17, v{vRT+1}"); e(f"v_add_u32 v{vRS2}, 1024, v{vRS}")
    e("s_branch K_GZB")
    e.label("K_GZA")
    e(f"s_lshr_b32 s{sT0}, s{sRB}, 1"); e(f"s_lshl_b32 s{sT0}, s{sT0}, 6"); e(f"s_add_u32 s{sPF}, s{sPF}, s{sT0}")
    e(f"s_and_b32 s{sT0}, s{sRB}, 1"); e(f"s_lshl_b32 s{sT0}, s{sT0}, 4"); e(f"s_add_u32 s{sPF}, s{sPF}, s{sT0}"); e(f"s_add_u32 s{sPF}, s{sPF}, 8192")
    e(f"v_lshlrev_b32 v{vRS}, 17, v{vRT}"); e(f"v_add_u32 v{vRS2}, 32, v{vRS}")
    e.label("K_GZB")
    RLOAD = f"s_mov_b32 s{sT0}, s{sPF}"
    for u in range(4):
        RLOAD += f";;buffer_load_dwordx4 {vr(RED+8*u,4)}, v{vRS}, {sr(SWS,4)}, s{sT0} offen sc1;;buffer_load_dwordx4 {vr(RED+8*u+4,4)}, v{vRS2}, {sr(SWS,4)}, s{sT0} offen sc1"
        if u < 3: RLOAD += f";;s_add_u32 s{sT0}, s{sT0}, {4*131072}"
    e.label("K_QRA")
    ra = ";;".join(t.strip() for t in e.L[mark:]); del e.L[mark:]
    MG[VS + 10].append(ra)
    MG[OPT.get("rl", 31)].append(f"s_cmp_ge_u32 s{sRED}, 2;;s_cbranch_scc1 K_QRL;;" + RLOAD + ";;K_QRL:")
    e.ext(interleave(MG[VS+1:], kr, 4, 6))
    st("b2")
    round_toggle()
    e("s_waitcnt lgkmcnt(0)")
    e("s_barrier")
    st("r2end")
    e(f"ds_read_b128 {vr(PK,4)}, v{vCSR}")
    p2_setup()
    PARK = 0xC000
    e(f"s_mul_i32 s{sT0}, s{sRG}, 3072"); e(f"s_add_u32 s{sT0}, s{sT0}, {PARK}")
    e(f"v_add_u32 v{vS+1}, s{sT0}, v{vL16}")
    e(f"s_lshl_b32 s{sT0}, s{sRG}, 2"); e(f"s_add_u32 s{sT0}, s{sT0}, {GSY+32}"); e(f"v_mov_b32 v{vS+4}, s{sT0}")
    e("s_waitcnt lgkmcnt(0)")
    lq = aug()
    lq += [f"v_cvt_pk_bf16_f32 v{PK+8+i}, v{EACC+2*i}, v{EACC+2*i+1}" for i in range(8)]
    e("s_cbranch_vccz K_QG")
    lq2 = lq + [f"ds_write_b128 v{vS+1}, {vr(PK+8,4)}", f"ds_write_b128 v{vS+1}, {vr(PK+12,4)} offset:1024", f"ds_write_b128 v{vS+1}, {vr(WT,4)} offset:2048"]
    lq2 += [f"v_mov_b32 v{vS+5}, 1;;s_waitcnt lgkmcnt(0);;ds_write_b32 v{vS+4}, v{vS+5}"]
    e("s_waitcnt vmcnt(0)"); check([(FPOLL, ND, 0xff, 1)])
    a16 = []
    for i in range(NA): a16 += aload(i)
    e.ext(merge(lq2, a16[:8])); e.ext(a16[8:])
    for i in range(NE, NE + NW1): e.ext(wdma(i))
    e("s_branch K_P2")

    e.label("K_QG")
    QBc, PHS, KVR = 168, 192, 208
    vSL = 112
    sGI = sA1
    e(f"s_setprio {OPT.get('gprio', 2)}")
    e(f"v_mov_b32 v{vSL}, v{vS+1}"); e(f"v_mov_b32 v{vSL+2}, v{vS+4}")
    def ldspin(lbl, areg, n):
        e.label(lbl)
        e(f"ds_read_b32 v{vS+5}, v{areg}"); e("s_waitcnt lgkmcnt(0)")
        e(f"v_readfirstlane_b32 s{sT0}, v{vS+5}"); e("s_nop 3")
        e(f"s_cmp_lt_u32 s{sT0}, {n}"); e(f"s_cbranch_scc1 {lbl}")
    e.ext(aug())
    for i in range(8): e(f"v_cvt_pk_bf16_f32 v{QBc+i}, v{EACC+2*i}, v{EACC+2*i+1}")
    vG, vG1, vG2 = 96, 97, 98
    e(f"v_mov_b32 v{vG}, {GSY:#x}"); e(f"v_mov_b32 v{vG1}, 1")
    red = []; st("ra", red); red += ["s_waitcnt vmcnt(0)", sentinel(RED, 32, vG2, RLOAD)]; st("rb", red)
    red += [ f"s_lshl_b32 s{sT0}, s{sU}, 8", f"s_add_u32 s{sT0}, s{sT0}, {KVZ_OFF}"]
    for stp in (16, 8): red += [f"v_add_f32 v{RED+j}, v{RED+j}, v{RED+stp+j}" for j in range(stp)]
    red += ["s_nop 1"] + [f"v_permlane32_swap_b32 v{RED+k}, v{RED+k+4}" for k in range(4)] + [f"v_add_f32 v{RED+k}, v{RED+k}, v{RED+k+4}" for k in range(4)]
    red += ["s_nop 1"] + [f"v_permlane16_swap_b32 v{RED+k}, v{RED+k+2}" for k in range(2)] + [f"v_add_f32 v{RED+k}, v{RED+k}, v{RED+k+2}" for k in range(2)]
    red += [f"v_cvt_pk_bf16_f32 v{RED}, v{RED}, v{RED+1}", f"buffer_store_dword v{RED}, v{vRD}, {sr(SWS,4)}, s{sT0} offen sc1",
            "s_mov_b64 exec, 1", f"ds_add_u32 v{vG}, v{vG1}", "s_mov_b64 exec, -1"]
    e(f"s_and_b32 s{sT0}, s{sRG}, 1"); e(f"s_lshl_b32 s{sT3}, s{sT0}, 12"); e(f"s_xor_b32 s{sT0}, s{sT0}, s{sP}"); e(f"s_lshl_b32 s{sT0}, s{sT0}, 12")
    e(f"s_lshl_b32 s{sT2}, s{sC}, 13"); e(f"s_add_u32 s{sT2}, s{sT2}, s{sT0}"); e(f"s_add_u32 s{sT2}, s{sT2}, {KVZ_OFF}")
    ZLOAD = ";;".join(f"buffer_load_dwordx4 {vr(KVR+4*k,4)}, v{vL16}, {sr(SWS,4)}, s{sT2} offen offset:{1024*k} sc1" for k in range(4))
    g1, g2 = L("R"), L("R")
    mid = f"s_add_u32 s{sT0}, s{sRG}, s{sGI};;s_cmp_ge_u32 s{sT0}, 2;;s_cbranch_scc1 {g1};;" + ";;".join(red) + f";;{g1}:"
    mid2 = f"s_add_u32 s{sT0}, s{sRG}, s{sGI};;s_cmp_lt_u32 s{sT0}, 4;;s_cbranch_scc1 {g2};;" + ZLOAD + f";;{g2}:"
    e(f"s_mov_b32 s{sGI}, 0")
    e.label("K_GQ")
    sq = softcore(QBc)
    n0 = len(sq)
    for pos, it in sorted(((OPT.get("gmid", 25), mid), (OPT.get("gmid2", 45), mid2)), reverse=True): sq.insert(int(n0 * pos / 100), it)
    e.ext(sq)
    e(f"s_cmp_lg_u32 s{sGI}, 0"); e("s_cbranch_scc1 K_GQD")
    st("gk")
    ldspin("K_GQS", vSL + 2, 1)
    e(f"ds_read_b128 {vr(WT,4)}, v{vSL} offset:2048")
    e(f"ds_read_b128 {vr(QBc,4)}, v{vSL}"); e(f"ds_read_b128 {vr(QBc+4,4)}, v{vSL} offset:1024")
    for j in range(16): e(f"v_mov_b32 v{PHS+j}, v{PK+j}")
    e(f"s_mov_b32 s{sGI}, 2")
    ldspin("K_GOS", vG, 2)
    e("s_branch K_GQ")
    e.label("K_GQD")
    st("gq")
    e(f"v_add_u32 v{vS+3}, {YB:#x}, v{vL16}")
    e(f"s_cmp_lt_u32 s{sRG}, 2"); e("s_cbranch_scc1 K_GZS")
    e(f"v_add_u32 v{vS+2}, s{sT3}, v{vS+3}")
    e("s_waitcnt vmcnt(0)")
    e(sentinel(KVR, 16, vS + 4, ZLOAD))
    st("gr")
    for k in range(4): e(f"ds_write_b128 v{vS+2}, {vr(KVR+4*k,4)} offset:{1024*k}")
    e("s_waitcnt lgkmcnt(0)")
    e("s_mov_b64 exec, 1"); e(f"ds_add_u32 v{vG}, v{vG1}"); e("s_mov_b64 exec, -1")
    ldspin("K_GZS", vG, 4)
    for k in range(8): e(f"ds_read_b128 {vr(KVR+4*k,4)}, v{vS+3} offset:{1024*k}")
    st("gv")
    e(f"s_lshl_b32 s{sT2}, s{sRT}, 16"); e(f"s_lshl_b32 s{sT0}, s{sC}, 13"); e(f"s_add_u32 s{sT2}, s{sT2}, s{sT0}")
    e(f"s_lshl_b32 s{sT0}, s{sP}, 12"); e(f"s_add_u32 s{sT2}, s{sT2}, s{sT0}"); e(f"s_add_u32 s{sT2}, s{sT2}, {PQ_OFF}")
    e(f"s_xor_b32 s{sT3}, s{sT2}, 4096")
    fragoff(vFO, sRT)
    e("s_waitcnt lgkmcnt(0)")
    NDG = (64, 80, 128, 144)
    for hd in range(4):
        ph = (PHS if hd < 2 else PK) + 8 * (hd & 1); d = vr(NDG[hd], 16)
        e(f"{MFMA} {d}, {vr(KVR+8*hd,4)}, {vr(ph,4)}, 0"); e(f"{MFMA} {d}, {vr(KVR+8*hd+4,4)}, {vr(ph+4,4)}, {d}")
    e("s_nop 5")
    for hd in range(4):
        d = NDG[hd]
        e(f"v_add_f32 v{vS}, {f2u(1e-6):#x}, v{d+8}"); e(f"v_rcp_f32 v{vS}, v{vS}"); e("s_nop 0")
        for j in range(8): e(f"v_mul_f32 v{d+j}, v{d+j}, v{vS}")
        for j in range(4): e(f"v_cvt_pk_bf16_f32 v{TMP+4*hd+j}, v{d+2*j}, v{d+2*j+1}")
        e(f"buffer_store_dwordx4 {vr(TMP+4*hd,4)}, v{vFO}, {sr(SWS,4)}, s{sT2 if hd < 2 else sT3} offen offset:{2048*(hd&1)} sc1")
    e("s_branch K_GFIN")

    e.label("K_P2")
    e(f"s_setprio {OPT.get('cprio', 0)}")
    st("p2start")
    if OPT.get("trace"): e(f"v_mov_b32 v240, 0;;s_memtime s[84:85];;s_waitcnt lgkmcnt(0);;s_sub_u32 s84, s84, s78;;v_writelane_b32 v240, s84, 0")
    vS2, vXB, vX, vB, OP = 224, 16, 32, 40, 32
    ACC2, WB2 = 48, 112
    SO, SB2 = 64, 68
    XBASE, vFW, vFR2, vT3 = 0, 24, 25, 232
    def fin_loads():
        e("s_load_dwordx4 s[72:75], s[0:1], 64")
        e(f"s_lshr_b32 s{sT1}, s{sC}, 2"); e(f"s_lshl_b32 s{sT2}, s{sRB}, 1"); e(f"s_add_u32 s{sT2}, s{sT2}, s{sT1}")
        cbcalc()
        e(f"s_lshl_b32 s{sXO2}, s{sRG}, 1"); e(f"s_add_u32 s{sXO2}, s{sXO2}, s{sISC}")
        e(f"s_lshl_b32 s{sXO}, s{sT2}, 16"); e(f"s_add_u32 s{sXO}, s{sXO}, s{sT1}"); e(f"s_lshl_b32 s{sT0}, s{sXO2}, 13"); e(f"s_add_u32 s{sXO}, s{sXO}, s{sT0}")
        e(f"buffer_load_dwordx4 {vr(vX,4)}, v{vXO}, {sr(SX,4)}, s{sXO} offen")
        e(f"v_and_b32 v{vS2+5}, 0x70, v{vL16}")
        e("s_waitcnt lgkmcnt(0)")
        srd(e, SB2, 72, 73, 1024)
        srd(e, SO, 74, 75, 2048 * 1024)
        e(f"buffer_load_dwordx4 {vr(vB,4)}, v{vS2+5}, {sr(SB2,4)}, s{sT1} offen")
    def fin_prep():
        for k in range(4):
            d = vXB + 2 * k
            e(f"v_lshlrev_b32 v{vS2}, 16, v{vB+k}"); e(f"v_and_b32 v{vS2+1}, s{sMASK}, v{vB+k}")
            e(f"v_lshlrev_b32 v{d}, 16, v{vX+k}"); e(f"v_and_b32 v{d+1}, s{sMASK}, v{vX+k}")
            e(f"v_add_f32 v{d}, v{d}, v{vS2}"); e(f"v_add_f32 v{d+1}, v{d+1}, v{vS2+1}")
        e(f"v_lshrrev_b32 v{vFR2}, 3, v{vL}"); e(f"v_mul_u32_u24 v{vFR2}, 272, v{vFR2}")
        e(f"v_and_b32 v{vS2}, 7, v{vL}"); e(f"v_lshl_add_u32 v{vFR2}, v{vS2}, 5, v{vFR2}")
        e(f"s_mul_i32 s{sT0}, s{sXO2}, {8*272}"); e(f"s_add_u32 s{sT0}, s{sT0}, {XBASE}")
        e(f"v_add_u32 v{vFR2}, s{sT0}, v{vFR2}")
    LA = OPT.get("la", 5)
    nun = [1] * 36
    ops = [i for i in range(NA) for _ in range(2)] + [i for i in range(NE, NE + NW1) for _ in range(2)]
    NPRE = len(ops)
    state = dict(na=NA, nw=NE + NW1, done=-1)
    FIRST = {}
    QPOLL = f"s_sub_u32 s{sT0}, s{sPF}, {128*1024};;s_mov_b64 exec, 0xff;;buffer_load_dword v{ND}, v{vPA}, {sr(SWS,4)}, s{sT0} offen sc1;;s_mov_b64 exec, -1"
    def tagwait(tag):
        last = max(i for i, o in enumerate(ops) if o == tag)
        e(f"s_waitcnt vmcnt({min(63, len(ops) - 1 - last)})")
    def issue_a(i):
        R = RING + 8 * unit[i]
        if i in FIRST and not OPT.get("x_nopoll"):
            st(f"cb{i}"); tagwait(f"p{i}"); check([(FPOLL, ND, 0xff, FIRST[i])]); st(f"ca{i}")
        e.ext(aload(i)); ops.extend([i] * 2)
        PL = OPT.get("pl", 3)
        if i + PL in FIRST and not OPT.get("x_nopoll"): e(FPOLL); ops.append(f"p{i+PL}")
    def pump(which=3):
        n = 0
        while state["na"] < 36 and which & 1:
            i = state["na"]
            us = set(range(unit[i], unit[i] + nun[i]))
            if any(us & set(range(unit[q], unit[q] + nun[q])) for q in range(state["done"] + 1, i)): break
            if i - state["done"] > (OPT.get("la1", 7) if i < 16 else LA if i < 28 else OPT.get("la2", 5)): break
            issue_a(i); state["na"] += 1; n += 1
        while state["nw"] < 36 and which & 2 and state["nw"] - state["done"] <= OPT.get("lw", 12):
            e.ext(wdma(state["nw"])); ops.extend([state["nw"]] * 2); state["nw"] += 1; n += 1
        return n
    for fi in FIRST:
        if NA <= fi < NA + OPT.get("pl", 3) and not OPT.get("x_nopoll"): e(FPOLL); ops.append(f"p{fi}")
    pump()
    fin_loads()
    ops.extend(["x"] * 2)
    e(f"s_lshl_b32 s{sP0}, s{sT2}, 17"); e(f"s_lshl_b32 s{sT0}, s{sRG}, 14"); e(f"s_add_u32 s{sP0}, s{sP0}, s{sT0}"); e(f"s_add_u32 s{sP0}, s{sP0}, {PQ_OFF}")
    e(f"s_add_u32 s{sKV}, s{sP0}, 65536")
    e(f"v_bfe_u32 v{vS2+6}, v{vL}, 2, 2"); e(f"v_lshrrev_b32 v{vS2+4}, 5, v{vL}"); e(f"v_bfe_u32 v{vS2+3}, v{vL}, 4, 1")
    e(f"v_lshl_add_u32 v{vS2+7}, v{vS2+4}, 2, v{vS2+6}"); e(f"v_lshlrev_b32 v{vTR0}, 7, v{vS2+7}")
    e(f"v_lshl_add_u32 v{vTR0}, v{vS2+3}, 5, v{vTR0}")
    e(f"v_and_b32 v{vS2+7}, 3, v{vL}"); e(f"v_lshl_add_u32 v{vTR0}, v{vS2+7}, 3, v{vTR0}")
    e(f"v_lshrrev_b32 v{vS2+6}, 1, v{vS2+6}"); e(f"v_lshl_add_u32 v{vTR0}, v{vS2+6}, 6, v{vTR0}")
    e(f"v_add_u32 v{vTR0}, s{sLB}, v{vTR0}")
    e(f"v_xor_b32 v{vTR1}, 64, v{vTR0}")
    for k in range(3):
        e(f"v_add_u32 v{vT3+2*k}, {0x10000*k:#x}, v{vTR0}"); e(f"v_add_u32 v{vT3+2*k+1}, {0x10000*k:#x}, v{vTR1}")
    def wreads(i):
        off = ROW[i % NL] & 0xffff; b = WB2 + 8 * (i & 1)
        vTR0 = vT3 + 2 * (ROW[i % NL] >> 16); vTR1 = vTR0 + 1
        e(f"ds_read_b64_tr_b16 {vr(b,2)}, v{vTR0} offset:{off}")
        e(f"ds_read_b64_tr_b16 {vr(b+2,2)}, v{vTR0} offset:{off+1024}")
        e(f"ds_read_b64_tr_b16 {vr(b+4,2)}, v{vTR1} offset:{off}")
        e(f"ds_read_b64_tr_b16 {vr(b+6,2)}, v{vTR1} offset:{off+1024}")
    def mm4(buf, act, first=False):
        for nt in range(2):
            for mt in range(2):
                c = vr(ACC2 + 16 * (2 * nt + mt), 16)
                e(f"{MFMA} {c}, {vr(WB2+8*buf+4*nt,4)}, {act[mt]}, {'0' if first else c}")
    tagwait(0)
    st("p2data")
    if OPT.get("trace"): e(f"s_memtime s[84:85];;s_waitcnt lgkmcnt(0);;s_sub_u32 s84, s84, s78;;v_writelane_b32 v240, s84, 1")
    wreads(0)
    cold = []
    def sent(i):
        R = RING + 8 * unit[i]
        chk = [f"v_max3_u32 v{vS2}, v{R}, v{R+1}, v{R+2}", f"v_max3_u32 v{vS2+1}, v{R+3}, v{R+4}, v{R+5}",
               f"v_max3_u32 v{vS2}, v{vS2}, v{R+6}, v{R+7}", f"v_max_u32 v{vS2}, v{vS2}, v{vS2+1}", f"v_cmp_eq_u32 vcc, -1, v{vS2}", "s_nop 0", "s_cmp_lg_u64 vcc, 0"]
        e.ext(chk); e(f"s_cbranch_scc1 K_RT{i}"); e.label(f"K_RB{i}")
        t = [f"K_RT{i}:", f"s_mov_b32 s{sCNT}, 0", f"K_RL{i}:", "s_waitcnt vmcnt(0)", f"s_sleep {OPT.get('rsl', 2)}"]
        for q in range(i, state["na"]):
            Rq = RING + 8 * unit[q]
            o_, b0, b1 = (2048 * order[q], sA0, sA1) if q < 28 else (2048 * (q - 28), sP0, sKV)
            t += [f"s_add_u32 s{sT0}, s{b0}, {o_}", f"s_add_u32 s{sT1}, s{b1}, {o_}",
                  f"buffer_load_dwordx4 {vr(Rq,4)}, v{vF0}, {sr(SWS,4)}, s{sT0} offen sc1", f"buffer_load_dwordx4 {vr(Rq+4,4)}, v{vF1}, {sr(SWS,4)}, s{sT1} offen sc1"]
        t += [f"s_add_u32 s{sCNT}, s{sCNT}, 1", "s_waitcnt vmcnt(0)", f"s_cmp_ge_u32 s{sCNT}, {SPIN // 8}", f"s_cbranch_scc1 K_RB{i}"] + chk + [f"s_cbranch_scc1 K_RL{i}", f"s_branch K_RB{i}"]
        cold.extend(t)
    def mm1(i, t):
        nt, mt = t >> 1, t & 1; c = vr(ACC2 + 16 * t, 16)
        e(f"{MFMA} {c}, {vr(WB2+8*(i&1)+4*nt,4)}, {vr(RING+8*unit[i]+4*mt,4)}, {'0' if i == 0 else c}")
    for i in range(34):
        e("s_waitcnt lgkmcnt(0)")
        mm1(i, 0)
        state["done"] = i - 1
        pump(1)
        mm1(i, 1)
        tagwait(i + 1)
        wreads(i + 1)
        mm1(i, 2)
        if i + 1 >= 8: sent(i + 1)
        mm1(i, 3)
        pump(2)
        st(f"s{i}")
        if OPT.get("trace"): e(f"s_memtime s[84:85];;s_waitcnt lgkmcnt(0);;s_sub_u32 s84, s84, s78;;v_writelane_b32 v240, s84, {i+2}")
        if i == 12:
            fin_prep()
            e(f"v_and_b32 v{vFW}, 31, v{vL}"); e(f"v_mul_u32_u24 v{vFW}, 272, v{vFW}")
            e(f"v_lshrrev_b32 v{vS2}, 5, v{vL}"); e(f"v_lshl_add_u32 v{vFW}, v{vS2}, 4, v{vFW}")
            e(f"s_mul_i32 s{sT0}, s{sRG}, 17408"); e(f"s_add_u32 s{sT0}, s{sT0}, {XBASE}")
            e(f"v_add_u32 v{vFW}, s{sT0}, v{vFW}")
    tagwait(35)
    wreads(35)
    sent(35)
    e("s_waitcnt lgkmcnt(0)")
    e("s_barrier")
    def twr(t):
        nt, mt = t >> 1, t & 1
        for q in range(4): e(f"ds_write_b128 v{vFW}, {vr(ACC2+16*t+4*q,4)} offset:{32*272*mt + 128*nt + 32*q}")
    for t in range(4):
        nt, mt = t >> 1, t & 1; c = vr(ACC2 + 16 * t, 16)
        for i in (34, 35):
            e(f"{MFMA} {c}, {vr(WB2+8*(i&1)+4*nt,4)}, {vr(RING+8*unit[i]+4*mt,4)}, {c}")
        if t == 1: e("s_nop 9")
        if t == 2: e("s_nop 5")
        if t == 3: e("s_nop 5")
        if t >= 1: twr(t - 1)
    st("s35")
    e("s_nop 2")
    twr(3)
    e("s_waitcnt lgkmcnt(0)")
    if OPT.get("trace"):
        e(f"s_memtime s[84:85];;s_waitcnt lgkmcnt(0);;s_sub_u32 s84, s84, s78;;v_writelane_b32 v240, s84, 36")
        e(f"s_lshl_b32 s84, s2, 2;;s_add_u32 s84, s84, s{sRG};;s_lshl_b32 s84, s84, 8;;s_add_u32 s84, s84, {210<<20};;v_lshlrev_b32 v241, 2, v{vL}")
        e(f"buffer_store_dword v240, v241, {sr(SWS,4)}, s84 offen")
    e("s_branch K_LAST")
    e.label("K_GFIN")
    st("gend")
    e("s_setprio 0")
    e(f"v_lshrrev_b32 v{vXO}, 3, v{vL}"); e(f"v_lshlrev_b32 v{vXO}, 10, v{vXO}")
    e(f"v_and_b32 v{vS2}, 7, v{vL}"); e(f"v_lshl_add_u32 v{vXO}, v{vS2}, 4, v{vXO}")
    fin_loads()
    e("s_waitcnt vmcnt(0)")
    fin_prep()
    e("s_barrier")
    e.label("K_LAST")
    e("s_barrier")
    for p in range(4):
        for hh in range(2):
            e(f"ds_read_b128 {vr(ACC2+8*p+4*hh,4)}, v{vFR2} offset:{17408*p + 16*hh}")
    for p in range(4):
        e(f"s_waitcnt lgkmcnt({6 - 2*p})")
        for j in range(0, 8, 2): e(f"v_pk_add_f32 {vr(vXB+j,2)}, {vr(vXB+j,2)}, {vr(ACC2+8*p+j,2)}")
    for j in range(4): e(f"v_cvt_pk_bf16_f32 v{OP+j}, v{vXB+2*j}, v{vXB+2*j+1}")
    e(f"buffer_store_dwordx4 {vr(OP,4)}, v{vXO}, {sr(SO,4)}, s{sXO} offen {OPT.get('st2', '').replace('_', ' ')}")
    e.label("K_FIN")
    if OPT.get("x_hold"):
        e.label("K_HOLD")
        e("s_sleep 4"); e("s_memrealtime s[82:83]"); e("s_waitcnt lgkmcnt(0)")
        e("s_sub_u32 s82, s82, s80"); e(f"s_cmp_lt_u32 s82, {OPT['x_hold']}")
        e(f"s_cselect_b32 s82, s{sISC}, 0"); e("s_cmp_lg_u32 s82, 0"); e("s_cbranch_scc1 K_HOLD")
    if OPT.get("cnt"): e("s_add_u32 s90, s91, s78")
    if OPT["stamps"] and not OPT.get("phys"):
        e(f"s_xor_b32 s{sW}, s{sISC}, 1"); e(f"s_lshl_b32 s{sW}, s{sW}, 2"); e(f"s_add_u32 s{sW}, s{sW}, s{sRG}")
    stamp_end(e, 0, SWS, "K_END", sW, 0)
    e.label("K_END")
    e("s_endpgm")
    e.ext(cold)
    return e.text()

def main():
    out = "; LayerNorm + hedgehog linear attention + GELU FFN, one persistent launch (generated by tools/gen2.py)\n"
    out += "; @launch grid=(256,1,1) block=(512,1,1) lds=163840\n"
    out += '.amdgcn_target "amdgcn-amd-amdhsa--gfx950"\n.text\n'
    out += f".globl {KN}\n.p2align 8\n.type {KN},@function\n{KN}:\n" + gen()
    out += ".p2align 8\n.fill 1536, 4, 0xbf800000\n"
    out += f""".section .rodata,"a"
.p2align 6
.amdhsa_kernel {KN}
  .amdhsa_next_free_vgpr 256
  .amdhsa_next_free_sgpr 102
  .amdhsa_accum_offset 256
  .amdhsa_group_segment_fixed_size 0
  .amdhsa_kernarg_size 96
  .amdhsa_user_sgpr_count 2
  .amdhsa_user_sgpr_kernarg_segment_ptr 1
  .amdhsa_system_sgpr_workgroup_id_x 1
.end_amdhsa_kernel
"""
    open(sys.argv[1], "w").write(out)
main()
```

```python
import sys, math, struct

OPT = dict(stamps=0, st1="sc1", k1only=0, k2only=0, pfcode=1, pfw2=3)
for a in sys.argv[2:]:
    k, v = a.split("=")
    OPT[k] = int(v) if v.lstrip("-").isdigit() else v

H_OFF, PQ_OFF, KVP_OFF, KVZ_OFF, FLG_OFF = 0, 0x1000000, 0x1400000, 0x1600000, 0x1610000
STAMP_OFF = 200 << 20
NSTAMP = 8
LOOPST = OPT.get('loopst', -1)

def f2u(x): return struct.unpack("<I", struct.pack("<f", x))[0]

class Asm:
    def __init__(self): self.L = []
    def __call__(self, s):
        for t in s.split(";;"):
            t = t.strip()
            self.L.append(t if t.endswith(":") else "    " + t)
    def label(self, s): self.L.append(s + ":")
    def ext(self, lst):
        cnt = 0
        for s in lst:
            if s == "@MARK": cnt = 0; continue
            if s == "@PAD": continue
            if s.startswith("@NEED"):
                d = int(s.split()[1]) - cnt
                if d > 0: self(f"s_nop {d-1}")
                continue
            self(s)
            if "s_cbranch" in s: cnt += 1
            else: cnt += sum(1 for t in s.split(";;") if not t.strip().endswith(":"))
    def text(self): return "\n".join(self.L) + "\n"

class Lst(list):
    def __call__(self, s): self.append(s)

def vr(b, n=1): return f"v{b}" if n == 1 else f"v[{b}:{b+n-1}]"
def ar(b, n=1): return f"a{b}" if n == 1 else f"a[{b}:{b+n-1}]"
def sr(b, n=1): return f"s{b}" if n == 1 else f"s[{b}:{b+n-1}]"
MFMA = "v_mfma_f32_32x32x16_bf16"

def cost(ins):
    c = 0
    for t in ins.split(";;"):
        op = t.split()[0]
        if op == "@PAD": c += 8; continue
        if op.endswith(":") or op.startswith("@"): continue
        if "s_cbranch" in ins and op.startswith(("s_", "v_")): c += 0.5; continue
        if op.startswith(("v_exp", "v_rcp", "v_sqrt", "v_log", "v_mfma")): c += 8
        elif op == "s_nop": c += 2 * (int(t.split()[1]) + 1)
        elif op.startswith("s_"): c += 1
        elif op.startswith("buffer_"): c += 8
        else: c += 4.5
    return c

def interleave(groups, fill, first=0, last=None):
    last = len(groups) - 1 if last is None else last
    tot = sum(cost(i) for i in fill); n = last - first + 1
    out = []; k = 0; acc = 0.0
    for gi, g in enumerate(groups):
        out += g
        if first <= gi <= last:
            tgt = tot * (gi - first + 1) / n
            while k < len(fill) and (acc + cost(fill[k]) / 2 <= tgt or gi == last):
                out.append(fill[k]); acc += cost(fill[k]); k += 1
    assert k == len(fill)
    return out

def merge(a, b, frac=1.0):
    out = []; n = max(1, int(len(a) * frac)); k = 0
    for i, x in enumerate(a):
        while k < len(b) and k * n <= i * len(b) and i < n:
            out.append(b[k]); k += 1
        out.append(x)
    out += b[k:]
    return out

def srd(e, d, lo, hi, size):
    e(f"s_mov_b32 s{d}, s{lo}"); e(f"s_mov_b32 s{d+1}, s{hi}")
    e(f"s_mov_b32 s{d+2}, {size:#x}"); e(f"s_mov_b32 s{d+3}, 0x00020000")

def stamp(e, idx, base=80):
    if OPT["stamps"]:
        e(f"s_memtime s[{base+2*idx}:{base+2*idx+1}]")

def stamp_begin(e, base=80):
    if OPT["stamps"]:
        e(f"s_memrealtime s[{base}:{base+1}]")
        e(f"s_memtime s[{base-2}:{base-1}]")
        for i in range(2, NSTAMP):
            e(f"s_mov_b64 s[{base+2*i}:{base+2*i+1}], 0")

def stamp_end(e, kidx, wssrd, lbl, wave_sgpr, wave_sel, base=80):
    if not OPT["stamps"]: return
    e(f"s_memtime s[{base+2*(NSTAMP-2)}:{base+2*(NSTAMP-2)+1}]")
    e("s_waitcnt vmcnt(0)")
    e(f"s_memrealtime s[{base+2}:{base+3}]")
    e(f"s_memtime s[{base+2*(NSTAMP-1)}:{base+2*(NSTAMP-1)+1}]")
    e("s_waitcnt lgkmcnt(0)")
    for i in range(2, NSTAMP):
        e(f"s_sub_u32 s{base+2*i}, s{base+2*i}, s{base if (OPT.get('rt') and i < 6) else base-2}")
        e(f"s_mov_b32 s{base+2*i+1}, 0")
    e(f"s_lshl_b32 s{base-2}, s2, 3"); e(f"s_add_u32 s{base-2}, s{base-2}, s{wave_sgpr}")
    e(f"s_mul_i32 s{base-2}, s{base-2}, {8*NSTAMP}")
    e(f"s_add_u32 s{base-2}, s{base-2}, {STAMP_OFF + kidx*256*8*8*NSTAMP}")
    e("s_mov_b64 exec, 1")
    e("v_mov_b32 v1, 0")
    for i in range(NSTAMP // 2):
        for j in range(4):
            e(f"v_mov_b32 v{4+j}, s{base+4*i+j}")
        e(f"buffer_store_dwordx4 v[4:7], v1, {sr(wssrd,4)}, s{base-2} offen offset:{16*i}")
        e("s_nop 1")
    e("s_waitcnt vmcnt(0)")

KN = "parallel_sum__linear_kernel_hedgehog__dense_activation_gelu__prompt_kernel"
SPIN = OPT.get("spin", 20000)
CNT_OFF = FLG_OFF + 2048 * 128

def gen():
    e = Asm()
    M16 = "v_mfma_f32_16x16x32_bf16"
    SDBG, SX, SW, SWS, SAUX = 4, 8, 12, 16, 20
    sW, sRG, sP, sC, sRB, sTYPE = 24, 25, 26, 27, 28, 29
    sPITCH, sRT, sIDX, sROT = 30, 31, 32, 33
    sONES, sLO, sHI, sMASK = 34, 35, 36, 37
    sT0, sT1, sT2, sT3, sT4 = 38, 39, 40, 41, 42
    sXB = 43
    sCOL = 44
    sSLOT, sIT, sOUT, sAUXO, sP16 = 48, 49, 50, 51, 52
    sDA, sDB, sMA, sROWO, sW4K, sST = 53, 54, 55, 56, 57, 61
    sLT16, sFLG = 58, 60
    sJG, sISC, sWB, sLEV = 76, 77, 100, 101
    vDUM, vL, vL16, vDMA, vTR = 0, 1, 2, 3, 4
    vS, vCSW, vCSR, SELC, CS, AUG, vC0, vC1 = 8, 14, 15, 16, 20, 24, 30, 31
    TMP, PK, ACC, EACC, WB, vAUX, XF = 32, 48, 64, 80, 96, 116, 128
    NWB = 5
    YB, ZB = 0x10000, 0x20000
    STAT, CSX, RVO, GSY, ZSC = 0x20000, 0x20800, 0x21000, 0x21400, 0x21800
    vFR, vXD, RS, vQ, vAL = TMP, TMP + 8, TMP + 12, TMP + 16, TMP + 18
    STF = "" if OPT.get("x_pst") else "sc1"
    lab = [0]
    def L(p):
        lab[0] += 1
        return f"{p}{lab[0]}"
    SP = str(OPT.get("sp", "")).split(",")
    def st(name, lst=None):
        if OPT["stamps"] and name in SP:
            i = 2 + SP.index(name)
            t = f"{'s_memrealtime' if OPT.get('rt') else 's_memtime'} s[{80+2*i}:{81+2*i}];;s_waitcnt lgkmcnt(0)"
            (e if lst is None else lst.append)(t)
    e("s_cmp_ge_u32 s2, 256")
    e("s_cbranch_scc1 K_END")
    stamp_begin(e)
    if OPT.get("x_hold"): e("s_memrealtime s[80:81]")
    if OPT.get("cnt"): e("s_mov_b32 s91, 1")
    e("s_load_dwordx4 s[64:67], s[0:1], 0")
    e("s_load_dwordx2 s[68:69], s[0:1], 16")
    e("s_load_dwordx4 s[72:75], s[0:1], 40")
    e("s_load_dwordx2 s[70:71], s[0:1], 88")
    e("s_load_dwordx2 s[96:97], s[0:1], 56")
    e("s_load_dwordx2 s[98:99], s[0:1], 24")
    e(f"s_load_dwordx2 {sr(SDBG,2)}, s[0:1], 80")
    e(f"v_lshrrev_b32 v{vS}, 6, v0")
    e(f"v_and_b32 v{vL}, 63, v0")
    e(f"v_readfirstlane_b32 s{sW}, v{vS}")
    e(f"s_lshr_b32 s{sIDX}, s2, 3")
    if OPT["pfcode"]:
        e(f"s_cmp_lg_u32 s{sW}, 7"); e("s_cbranch_scc1 K_NOPF")
        e("s_getpc_b64 s[62:63]")
        e("s_and_b32 s62, s62, 0xffffff00")
        e(f"s_mul_i32 s{sT1}, s{sIDX}, 1024")
        e(f"v_lshl_add_u32 v{vS+3}, v{vL}, 7, s{sT1}")
        e("s_mov_b64 exec, 0xff")
        e(f"global_load_dword v{vDUM}, v{vS+3}, s[62:63]")
        e("s_mov_b64 exec, -1")
        e.label("K_NOPF")
    if OPT.get("x_skew"):
        e("s_and_b32 s38, s2, 7"); e("s_cmp_lg_u32 s38, 5"); e("s_cbranch_scc1 K_NSK"); e(f"s_sleep {OPT['x_skew']}"); e.label("K_NSK")
    e(f"s_and_b32 s{sT0}, s2, 7")
    e(f"s_lshr_b32 s{sRB}, s{sT0}, 1"); e(f"s_lshl_b32 s{sRB}, s{sRB}, 2")
    e(f"s_and_b32 s{sT2}, s{sIDX}, 3"); e(f"s_add_u32 s{sRB}, s{sRB}, s{sT2}")
    e(f"s_lshr_b32 s{sT1}, s{sIDX}, 2")
    e(f"s_add_u32 s{sROT}, s{sT1}, s{sT2}"); e(f"s_and_b32 s{sROT}, s{sROT}, {OPT.get('rotm', 3)}")
    e(f"s_and_b32 s{sTYPE}, s{sT1}, 1")
    e(f"s_lshr_b32 s{sT1}, s{sT1}, 1")
    e(f"s_and_b32 s{sC}, s{sT0}, 1"); e(f"s_lshl_b32 s{sC}, s{sC}, 2"); e(f"s_add_u32 s{sC}, s{sC}, s{sT1}")
    e(f"s_and_b32 s{sRG}, s{sW}, 3"); e(f"s_lshr_b32 s{sP}, s{sW}, 2")
    e(f"v_lshrrev_b32 v{vS}, 4, v{vL}"); e(f"v_and_b32 v{vS+1}, 15, v{vL}")
    e(f"v_xor_b32 v{vS+2}, v{vS}, v{vS+1}"); e(f"v_lshlrev_b32 v{vS+2}, 4, v{vS+2}")
    e(f"v_lshl_add_u32 v{vXD}, v{vS}, 10, v{vS+2}")
    for i in range(1, 4): e(f"v_xor_b32 v{vXD+i}, {4096*i + 64*i}, v{vXD}")
    e(f"s_lshl_b32 s{sXB}, s{sRB}, 17"); e(f"s_lshl_b32 s{sT0}, s{sW}, 14"); e(f"s_add_u32 s{sXB}, s{sXB}, s{sT0}")
    e(f"s_lshl_b32 s{sW4K}, s{sW}, 12")
    e(f"v_and_b32 v{vS+3}, 31, v{vL}")
    e(f"v_lshrrev_b32 v{vS+4}, 5, v{vL}")
    e(f"s_cmp_eq_u32 s{sTYPE}, 0")
    e("s_cbranch_scc1 K_SETQ")
    e(f"s_movk_i32 s{sPITCH}, 3584")
    e(f"s_mul_i32 s{sAUXO}, s{sC}, 448")
    e(f"s_and_b32 s{sT1}, s{sC}, 1")
    e(f"s_lshl_b32 s{sT2}, s{sT1}, 6"); e(f"s_add_u32 s{sCOL}, s{sAUXO}, s{sT2}")
    e(f"s_add_u32 s{sCOL+1}, s{sCOL}, 128"); e(f"s_add_u32 s{sCOL+2}, s{sCOL}, 256")
    e(f"s_lshl_b32 s{sT2}, s{sT1}, 9"); e(f"s_add_u32 s{sCOL+3}, s{sCOL}, 384"); e(f"s_sub_u32 s{sCOL+3}, s{sCOL+3}, s{sT2}")
    e(f"s_lshl_b32 s{sT2}, s{sP}, 6")
    e(f"v_lshl_add_u32 v{vAL}, v{vS+3}, 1, s{sT2}")
    e(f"s_mov_b32 s{SW+2}, {512*3584}"); e(f"s_movk_i32 s{SAUX+2}, 3584")
    e("s_branch K_SETD")
    e.label("K_SETQ")
    e(f"s_movk_i32 s{sPITCH}, 3072")
    e(f"s_lshl_b32 s{sCOL+2}, s{sC}, 7"); e(f"s_add_u32 s{sCOL}, s{sCOL+2}, 1024"); e(f"s_add_u32 s{sCOL+1}, s{sCOL+2}, 2048")
    e(f"s_lshl_b32 s{sT1}, s{sP}, 10"); e(f"s_lshl_b32 s{sAUXO}, s{sC}, 11"); e(f"s_add_u32 s{sT1}, s{sT1}, s{sAUXO}")
    e(f"v_lshl_add_u32 v{vAL}, v{vL}, 4, s{sT1}")
    e(f"s_mov_b32 s{SW+2}, {512*3072}"); e(f"s_movk_i32 s{SAUX+2}, {32*512}")
    e.label("K_SETD")
    e(f"s_mov_b32 s{SW+3}, 0x00020000"); e(f"s_mov_b32 s{SAUX+3}, 0x00020000")
    e(f"v_lshrrev_b32 v{vDMA}, 2, v{vL}"); e(f"v_mul_lo_u32 v{vDMA}, v{vDMA}, s{sPITCH}")
    e(f"v_and_b32 v{vS+5}, 3, v{vL}"); e(f"v_lshl_add_u32 v{vDMA}, v{vS+5}, 4, v{vDMA}")
    e(f"s_lshl_b32 s{sP16}, s{sPITCH}, 4")
    e(f"s_mul_i32 s{sWB}, s{sP16}, s{sW}"); e(f"s_add_u32 s{sWB}, s{sWB}, s{sCOL}")
    e(f"s_cmp_eq_u32 s{sTYPE}, 0")
    e("s_waitcnt lgkmcnt(0)")
    e(f"s_cselect_b64 {sr(SW,2)}, s[66:67], s[72:73]"); e(f"s_cselect_b64 {sr(SAUX,2)}, s[68:69], s[74:75]")
    srd(e, SX, 64, 65, 2048 * 1024)
    ROP = "s_xor_b32" if OPT.get("rxor", 0) else "s_add_u32"
    XBUF = (ZB, YB, YB + 0x8000, ZB)
    def sset(j):
        l = Lst()
        l(f"{ROP} s{sT0}, s{sROT}, {j};;s_and_b32 s{sT0}, s{sT0}, 3;;s_lshl_b32 s{sT1}, s{sT0}, 8;;s_add_u32 s{sT1}, s{sT1}, s{sXB};;"
          f"s_lshl_b32 s{sT0}, s{sT0}, 3;;s_mul_i32 s{sT0}, s{sT0}, s{sP16};;s_add_u32 s{sT0}, s{sT0}, s{sWB};;s_add_u32 s{sT2}, s{sT0}, 64;;s_lshr_b32 s{sT3}, s{sW4K}, 2")
        for i in range(4):
            l(f"s_add_u32 m0, s{sW4K}, {XBUF[j] + 1024*i};;s_nop 0;;buffer_load_dwordx4 v{vXD+i}, {sr(SX,4)}, s{sT1} offen lds")
        wo = 0x8000 * (j >> 1) + 8192 * (j & 1)
        l(f"s_add_u32 m0, s{sT3}, {wo};;s_nop 0;;buffer_load_dwordx4 v{vDMA}, {sr(SW,4)}, s{sT0} offen lds")
        l(f"s_add_u32 m0, s{sT3}, {wo + 0x4000};;s_nop 0;;buffer_load_dwordx4 v{vDMA}, {sr(SW,4)}, s{sT2} offen lds")
        return l
    wt = (f"s_lshr_b32 s{sT0}, s{sW}, 1;;s_cmp_lg_u32 s{sT0}, 1;;s_cbranch_scc1 K_NW;;s_cmp_eq_u32 s{sW}, 2;;"
          f"s_cselect_b64 s[92:93], s[72:73], s[66:67];;s_mov_b32 s{sT0}, {512*3584};;s_cselect_b32 s94, s{sT0}, {512*3072};;s_mov_b32 s95, 0x00020000;;"
          f"s_movk_i32 s{sT0}, 7168;;s_cselect_b32 s{sT0}, s{sT0}, 6144;;s_cselect_b32 s{sT1}, 56, 48;;s_mul_i32 s{sT0}, s{sT0}, s2;;"
          f"v_lshlrev_b32 v{vDUM}, 7, v{vL};;s_bfm_b64 exec, s{sT1}, 0;;buffer_load_dword v{vDUM}, v{vDUM}, s[92:95], s{sT0} offen;;s_mov_b64 exec, -1;;K_NW:")
    WTA = OPT.get("wta", 2)
    xt = (f"s_cmp_lg_u32 s{sW}, 1;;s_cbranch_scc1 K_NX;;s_lshl_b32 s{sT0}, s2, 13;;v_lshlrev_b32 v{vDUM}, 7, v{vL};;"
          f"buffer_load_dword v{vDUM}, v{vDUM}, {sr(SX,4)}, s{sT0} offen;;K_NX:")
    st("ka")
    if OPT.get("xta", 0) == 1: e(xt)
    if WTA == -2: e(wt)
    e.ext(sset(0))
    if OPT.get("xta", 0) == 2: e(xt)
    if WTA == -1: e(wt)
    st("i0")
    srd(e, SWS, 70, 71, 0x10000000)
    e(f"s_movk_i32 s{SDBG+2}, 256"); e(f"s_mov_b32 s{SDBG+3}, 0x00020000")
    e(f"s_lshl_b32 s{sRT}, s{sRB}, 2"); e(f"s_add_u32 s{sRT}, s{sRT}, s{sRG}")
    e(f"s_lshl_b32 s{sFLG}, s{sTYPE}, 4"); e(f"s_add_u32 s{sFLG}, s{sFLG}, s{sRB}"); e(f"s_lshl_b32 s{sFLG}, s{sFLG}, 3"); e(f"s_add_u32 s{sFLG}, s{sFLG}, s{sC}")
    e(f"s_lshl_b32 s{sFLG}, s{sFLG}, 10"); e(f"s_add_u32 s{sFLG}, s{sFLG}, {FLG_OFF}")
    e(f"s_and_b32 s{sISC}, s{sC}, 1"); e(f"s_xor_b32 s{sISC}, s{sISC}, s{sP}")
    e(f"v_lshlrev_b32 v{vL16}, 4, v{vL}")
    e(f"v_mov_b32 v{AUG+4}, 0"); e(f"v_mov_b32 v{AUG+5}, 0")
    e(f"s_lshl_b32 s{sIT}, s{sTYPE}, 3"); e(f"s_add_u32 s{sIT}, s{sIT}, s{sW}")
    e(f"s_cmp_lg_u32 s{sIT}, 15"); e("s_cbranch_scc1 K_NZ")
    e(f"v_lshlrev_b32 v{vS+2}, 3, v{vL}")
    e(f"buffer_store_dwordx2 {vr(AUG+4,2)}, v{vS+2}, {sr(SWS,4)}, s{sFLG} offen sc1")
    e(f"buffer_store_dwordx2 {vr(AUG+4,2)}, v{vS+2}, {sr(SWS,4)}, s{sFLG} offen offset:512 sc1")
    e.label("K_NZ")
    e(f"s_lshl_b32 s{sT0}, s{sW}, 7"); e(f"s_add_u32 s{sFLG}, s{sFLG}, s{sT0}")
    e(f"s_lshl_b32 s{sT0}, s{sROT}, 2"); e(f"{ROP} s{sT0}, s{sT0}, s{sW}"); e(f"s_and_b32 s{sT1}, s{sT0}, 15"); e(f"s_lshl_b32 s{sT1}, s{sT1}, 1")
    e(f"s_mul_i32 s{sROWO}, s{sT1}, s{sP16}")
    e(f"s_add_u32 s{sT0}, s{sT0}, 8"); e(f"s_and_b32 s{sT1}, s{sT0}, 15"); e(f"s_lshl_b32 s{sT1}, s{sT1}, 1")
    e(f"s_mul_i32 s{sJG}, s{sT1}, s{sP16}"); e(f"s_sub_u32 s{sJG}, s{sJG}, s{sROWO}"); e(f"s_sub_u32 s{sJG}, s{sJG}, s{sP16}")
    e(f"s_lshl_b32 s{sT4}, s{sW}, 11")
    sLB0 = sT4
    vFO, vF0, vF1 = vAUX + 11, 238, 239
    def fragoff(vd, srt):
        if OPT.get("x_flat"):
            e(f"s_and_b32 s{sT0}, s{srt}, 1"); e(f"s_lshl_b32 s{sT0}, s{sT0}, 10"); e(f"v_xor_b32 v{vd}, s{sT0}, v{vL16}"); return
        e(f"s_and_b32 s{sT0}, s{srt}, 7"); e(f"s_cmp_eq_u32 s{sT0}, 3"); e(f"s_cselect_b32 s{sT0}, 7, s{sT0}")
        e(f"s_lshl_b32 s{sT0}, s{sT0}, 7"); e(f"s_add_u32 s{sT0}, s{sT0}, 640")
        e("s_mov_b32 s62, 0xff000000"); e("s_mov_b32 s63, 0")
        e(f"v_mov_b32 v{vd}, s{sT0}"); e(f"v_cndmask_b32 v{vd}, 0, v{vd}, s[62:63]"); e(f"v_add_u32 v{vd}, v{vd}, v{vL16}")
        e(f"s_and_b32 s{sT0}, s{srt}, 1"); e(f"s_lshl_b32 s{sT0}, s{sT0}, 10"); e(f"v_xor_b32 v{vd}, s{sT0}, v{vd}")
    fragoff(vFO, sRT)
    def guard(t):
        g = L("G"); return f"s_cbranch_vccz {g};;{t};;{g}:"
    def dma8(gd=False):
        l = []
        for i in range(4):
            jg, jl = (f"s{sJG}", "0x7c00") if i == 1 else (f"s{sP16}", "1024")
            l += [f"s_mov_b32 m0, s{sMA};;s_add_u32 s{sDB}, s{sDA}, 64;;buffer_load_dwordx4 v{vDMA}, {sr(SW,4)}, s{sDA} offen lds",
                  f"s_add_u32 m0, s{sMA}, 0x4000;;s_add_u32 s{sDA}, s{sDA}, {jg};;buffer_load_dwordx4 v{vDMA}, {sr(SW,4)}, s{sDB} offen lds;;s_add_u32 s{sMA}, s{sMA}, {jl}"]
        if not gd: return l
        l = []
        for i in range(4):
            jg, jl = (f"s{sJG}", "0x7c00") if i == 1 else (f"s{sP16}", "1024")
            g = L("G")
            l += [guard(f"s_mov_b32 m0, s{sMA};;s_add_u32 s{sDB}, s{sDA}, 64;;buffer_load_dwordx4 v{vDMA}, {sr(SW,4)}, s{sDA} offen lds"),
                  f"s_add_u32 m0, s{sMA}, 0x4000;;s_add_u32 s{sDA}, s{sDA}, {jg};;s_add_u32 s{sMA}, s{sMA}, {jl};;s_cmp_lg_u32 s{sLEV}, 0;;s_cbranch_scc1 {g};;"
                  f"buffer_load_dwordx4 v{vDMA}, {sr(SW,4)}, s{sDB} offen lds;;{g}:"]
        return l
    e(f"s_mov_b32 s{sONES}, 0x3f803f80"); e(f"s_mov_b32 s{sLO}, 0x00003f80"); e(f"s_mov_b32 s{sHI}, 0x3f800000")
    e(f"s_mov_b32 s{sMASK}, 0xffff0000")
    e(f"v_lshlrev_b32 v{vS+2}, 9, v{vS+4}")
    e(f"v_bfe_u32 v{vS}, v{vL}, 2, 2"); e(f"v_lshl_add_u32 v{vS+2}, v{vS}, 6, v{vS+2}")
    e(f"v_bfe_u32 v{vCSW}, v{vL}, 4, 1"); e(f"v_lshl_add_u32 v{vS+2}, v{vCSW}, 5, v{vS+2}")
    e(f"v_lshl_add_u32 v{vS+2}, v{vS+5}, 3, v{vS+2}")
    e(f"s_xor_b32 s{sT3}, s{sRG}, s{sP}"); e(f"s_lshl_b32 s{sT1}, s{sP}, 14")
    for k in range(4):
        e(f"s_xor_b32 s{sT0}, s{sT3}, {k}"); e(f"s_lshl_b32 s{sT0}, s{sT0}, 10"); e(f"s_add_u32 s{sT0}, s{sT0}, s{sT1}")
        e(f"v_add_u32 v{vTR+k}, s{sT0}, v{vS+2}")
    e(f"v_and_b32 v{vS}, 1, v{vS}"); e(f"v_cmp_eq_u32 vcc, v{vS}, v{vCSW}"); e(f"v_mov_b32 v{vS}, s{sONES}")
    e(f"v_cmp_gt_u32 {sr(sLT16,2)}, 16, v{vS+3}")
    for j in range(4): e(f"v_cndmask_b32 v{SELC+j}, 0, v{vS}, vcc")
    e(f"v_xor_b32 v{vS}, v{vS+4}, v{vS+1}"); e(f"v_lshlrev_b32 v{vS}, 4, v{vS}")
    e(f"v_lshl_add_u32 v{vS}, v{vS+3}, 8, v{vS}")
    e(f"s_lshl_b32 s{sT0}, s{sT3}, 5"); e(f"v_xor_b32 v{vS}, s{sT0}, v{vS}")
    e(f"s_lshl_b32 s{sT0}, s{sRG}, 13"); e(f"s_add_u32 s{sT0}, s{sT0}, {YB + 0x8000}"); e(f"v_add_u32 v{vFR}, s{sT0}, v{vS}")
    for s in range(1, 8): e(f"v_xor_b32 v{vFR+s}, {32*s}, v{vFR}")
    e(f"s_lshl_b32 s{sT0}, s{sP}, 9"); e(f"s_add_u32 s{sT0}, s{sT0}, {CSX}")
    e(f"v_lshl_add_u32 v{vCSR}, v{vS+3}, 4, s{sT0}")
    e(f"s_lshl_b32 s{sT0}, s{sRG}, 2"); e(f"v_add_u32 v{vCSW}, s{sT0}, v{vCSR}")
    e(f"v_mov_b32 v{vQ}, 0"); e(f"v_mov_b32 v{vQ+1}, 0")
    def auxl(lbl):
        t = f"s_cmp_eq_u32 s{sTYPE}, 0;;s_cbranch_scc1 {lbl}Q"
        for i in range(4): t += f";;buffer_load_ushort v{vAUX+i}, v{vAL}, {sr(SAUX,4)}, s{sCOL+i} offen"
        t += f";;s_branch {lbl}D;;{lbl}Q:"
        t += f";;s_lshl_b32 m0, s{sW}, 10;;s_nop 0;;buffer_load_dwordx4 v{vAL}, {sr(SAUX,4)}, 0 offen lds"
        t += f";;{lbl}D:"
        return t
    if OPT.get("x_p2only"):
        e("s_waitcnt vmcnt(0)"); e("s_barrier")
        e(f"s_cmp_eq_u32 s{sISC}, 0"); e("s_cbranch_scc1 K_FIN")
        e("s_branch K_FTAIL")
    ROW = [YB + 0x4000, YB + 0x6000, YB + 0xC000, YB + 0xE000, 0x22000, 0x24000, 0x26000] + [0x2000 * k for k in range(6)]
    NL, NE, NW1 = len(ROW), 7, OPT.get("nw1", 4)
    sE1, sE2, SWE = 68, 69, 64
    sA0, sA1, sWK, sLB, sP0, sP1, sKV, sWO_, sXO, sXO2, sPF, sCNT = 30, 33, 43, 34, 51, 52, 53, 54, 55, 56, 57, 3
    SW2, SWO = SW, SAUX
    vTR0, vTR1, vXO, vPA = 4, 5, 6, vS + 2
    ND = vS + 3
    sEA = sWB
    order = [0, 1, 2, 3, 16, 17, 18, 19, 4, 5, 6, 7, 20, 21, 22, 23, 8, 9, 10, 11, 24, 25, 26, 27, 12, 13, 14, 15]
    def wdma(i):
        lo = ROW[i % NL]
        S, base, off = (SW2, sWK, order[i] * 16384) if i < 28 else (SWO, sWO_, (i - 28) * 16384)
        return [f"s_add_u32 m0, s{sLB}, {lo + 1024*k};;s_add_u32 s{sT0}, s{base}, {off + 8192*k};;buffer_load_dwordx4 v{vDMA}, {sr(S,4)}, s{sT0} offen lds" for k in range(2)]
    def erow(i, vd):
        return f"s_add_u32 m0, s{sE1}, {ROW[i]};;s_add_u32 s{sT0}, s{sE2}, {order[i]*16384};;buffer_load_dwordx4 v{vd}, {sr(SWE,4)}, s{sT0} offen lds"
    def dmalane(vd, t0, t1):
        e(f"v_lshrrev_b32 v{vd}, 3, v{vL}"); e(f"v_lshlrev_b32 v{vd}, 10, v{vd}")
        e(f"v_and_b32 v{t0}, 7, v{vL}"); e(f"v_bfe_u32 v{t1}, v{vL}, 4, 1"); e(f"v_lshlrev_b32 v{t1}, 2, v{t1}")
        e(f"v_xor_b32 v{t1}, v{t0}, v{t1}"); e(f"v_lshl_add_u32 v{vd}, v{t1}, 4, v{vd}")
    def cbcalc():
        if OPT.get("cbmap", 0) == 0:
            e(f"s_lshr_b32 s{sT1}, s{sIDX}, 2"); e(f"s_lshl_b32 s{sT1}, s{sT1}, 7")
        else:
            e(f"s_lshr_b32 s{sT1}, s{sIDX}, 3"); e(f"s_lshl_b32 s{sT0}, s{sTYPE}, 2"); e(f"s_add_u32 s{sT1}, s{sT1}, s{sT0}"); e(f"s_lshl_b32 s{sT1}, s{sT1}, 7")
    def p2_setup():
        e(f"s_cmp_lg_u32 s{sISC}, 0"); e("s_cselect_b64 vcc, -1, 0")
        srd(e, SW2, 96, 97, 1792 * 1024)
        srd(e, SWO, 98, 99, 512 * 1024)
        cbcalc()
        e(f"s_lshl_b32 s{sWO_}, s{sRG}, 17"); e(f"s_add_u32 s{sWO_}, s{sWO_}, s{sT1}")
        e(f"v_lshrrev_b32 v{vXO}, 3, v{vL}"); e(f"v_lshlrev_b32 v{vXO}, 10, v{vXO}")
        e(f"v_and_b32 v{vTR0}, 7, v{vL}"); e(f"v_bfe_u32 v{vTR1}, v{vL}, 4, 1"); e(f"v_lshlrev_b32 v{vTR1}, 2, v{vTR1}")
        e(f"v_xor_b32 v{vTR1}, v{vTR0}, v{vTR1}"); e(f"v_lshl_add_u32 v{vDMA}, v{vTR1}, 4, v{vXO}")
        e(f"v_lshl_add_u32 v{vXO}, v{vTR0}, 4, v{vXO}")
        e(f"s_lshr_b32 s{sT1}, s{sC}, 2"); e(f"s_lshl_b32 s{sT1}, s{sT1}, 1"); e(f"s_lshl_b32 s{sT2}, s{sRB}, 2"); e(f"s_add_u32 s{sT1}, s{sT1}, s{sT2}")
        fragoff(vF0, sT1); e(f"s_add_u32 s{sT1}, s{sT1}, 1"); fragoff(vF1, sT1)
    def early_scalars():
        e(f"s_lshr_b32 s{sT1}, s{sC}, 2"); e(f"s_lshl_b32 s{sT2}, s{sRB}, 1"); e(f"s_add_u32 s{sT2}, s{sT2}, s{sT1}")
        e(f"s_mul_i32 s{sA0}, s{sT2}, {4*114688}"); e(f"s_mul_i32 s{sT0}, s{sRG}, {28*2048}")
        e(f"s_add_u32 s{sA0}, s{sA0}, s{sT0}"); e(f"s_add_u32 s{sA1}, s{sA0}, {2*114688}")
        e(f"s_lshl_b32 s{sPF}, s{sRT}, 11"); e(f"s_lshl_b32 s{sT0}, s{sT1}, 8")
        e(f"s_add_u32 s{sPF}, s{sPF}, s{sT0}"); e(f"s_add_u32 s{sPF}, s{sPF}, {FLG_OFF + 128*1024}")
        e(f"s_cmp_lg_u32 s{sISC}, 0"); e(f"s_cselect_b32 s{sEA}, 1, 64")
        cbcalc()
        e(f"s_mul_i32 s{sWK}, s{sRG}, {448*1024}"); e(f"s_add_u32 s{sWK}, s{sWK}, s{sT1}")
        e(f"s_lshl_b32 s{sLB}, s{sRG}, 11")
        e(f"s_lshl_b32 s{sT0}, s{sP}, 10"); e(f"s_add_u32 s{sE1}, s{sLB}, s{sT0}")
        e(f"s_lshl_b32 s{sT0}, s{sP}, 13"); e(f"s_add_u32 s{sE2}, s{sWK}, s{sT0}")
        srd(e, SWE, 96, 97, 1792 * 1024)
    def poll_addr():
        e(f"v_lshrrev_b32 v{vPA}, 1, v{vL}"); e(f"v_lshlrev_b32 v{vPA}, 9, v{vPA}")
        e(f"v_and_b32 v{ND}, 1, v{vL}"); e(f"v_lshl_add_u32 v{vPA}, v{ND}, 7, v{vPA}")
    vD2 = vAUX + 10
    dmalane(vD2, vS + 2, vS + 3)
    poll_addr()
    for j in range(4): e(f"v_mov_b32 v{PK+4+j}, -1")
    SPm, SMm = vAUX + 4, vAUX + 8
    e(f"s_cmp_lg_u32 s{sTYPE}, 0"); e("s_cbranch_scc1 K_NSEL")
    e(f"v_lshlrev_b32 v{vS+4}, 2, v{vS+4}"); e(f"v_sub_u32 v{vS+4}, v{vS+1}, v{vS+4}")
    e(f"v_mov_b32 v{vS}, s{sLO}"); e(f"v_mov_b32 v{vS+5}, s{sHI}")
    for t, f0 in enumerate((0, 2, 8, 10)):
        e(f"v_cmp_eq_u32 vcc, {f0}, v{vS+4};;v_cmp_eq_u32 s[62:63], {f0+1}, v{vS+4};;s_nop 0;;"
          f"v_cndmask_b32 v{SMm+t}, 0, v{vS}, vcc;;v_cndmask_b32 v{SMm+t}, v{SMm+t}, v{vS+5}, s[62:63]")
    for j in range(4):
        e(f"v_cndmask_b32 v{SPm+j}, 0, v{SMm+j}, {sr(sLT16,2)}"); e(f"v_cndmask_b32 v{SMm+j}, v{SMm+j}, 0, {sr(sLT16,2)}")
    e(f"v_bfe_u32 v{vS}, v{vL}, 4, 1"); e(f"v_lshlrev_b32 v{vAUX}, 9, v{vS}")
    e(f"v_lshrrev_b32 v{vS}, 5, v{vL}"); e(f"v_lshl_add_u32 v{vAUX}, v{vS}, 7, v{vAUX}")
    e(f"v_lshl_add_u32 v{vAUX}, v{vS+1}, 3, v{vAUX}")
    e(f"s_lshl_b32 s{sT0}, s{sW}, 10"); e(f"v_add_u32 v{vAUX}, s{sT0}, v{vAUX}")
    e.label("K_NSEL")
    def q3touch():
        e(f"s_cmp_ge_u32 s{sC}, 4"); e("s_cbranch_scc1 K_NQ3")
        e("s_mov_b64 s[92:93], s[66:67]"); e(f"s_mov_b32 s94, {512*3072}"); e("s_mov_b32 s95, 0x00020000")
        e(f"s_lshl_b32 s{sT0}, s{sIDX}, 3"); e(f"s_add_u32 s{sT0}, s{sT0}, s{sW}"); e(f"s_mul_i32 s{sT0}, s{sT0}, 6144")
        for col in ((2048, 0) if OPT.get("q3", 1) < 3 else (0,)):
            for r in (0, 3072):
                for hf in (0, 64): e(f"s_buffer_load_dword s{sCNT}, s[92:95], s{sT0} offset:{col + 384 + r + hf}")
        e.label("K_NQ3")
    st("su")
    if OPT.get("p1t", 0):
        e(f"s_lshl_b32 s{sT0}, s{sRB}, 3"); e(f"s_add_u32 s{sT0}, s{sT0}, s{sW}"); e(f"s_lshl_b32 s{sT0}, s{sT0}, 2"); e(f"s_mul_i32 s{sT0}, s{sT0}, s{sPITCH}")
        e(f"s_add_u32 s{sT0}, s{sT0}, s{sCOL+1}")
        for r in range(4):
            for hf in ((0, 64) if OPT.get("p1t") == 1 else (0,)): e(f"s_buffer_load_dword s{sCNT}, {sr(SW,4)}, s{sT0} offset:{hf}")
            if r < 3: e(f"s_add_u32 s{sT0}, s{sT0}, s{sPITCH}")
    if OPT.get("q3", 1) in (1, 3): q3touch()
    e.ext(sset(1))
    if OPT.get("q3", 1) == 2: q3touch()
    st("i1")

    def wrd(s):
        b = WB + 4 * (s % NWB); o = 1024 * (s & 12) + 0x8000 * (s >> 4)
        return [f"ds_read_b64_tr_b16 {vr(b,2)}, v{vTR+(s&3)} offset:{o}", f"ds_read_b64_tr_b16 {vr(b+2,2)}, v{vTR+(s&3)} offset:{o+256}"]
    def csm(s):
        return f"{M16} {vr(CS,4)}, {vr(SELC,4)}, {vr(WB+4*(s%NWB),4)}, {'0' if s == 0 else vr(CS,4)}"
    XO = (0x8000, 0, 0x8000, 0x8000)
    def rd(s):
        return [f"ds_read_b128 {vr(XF+4*s,4)}, v{vFR+(s&7)} offset:{XO[s>>3]}"] + wrd(s)
    P2S = OPT.get('p2s', 0)
    VM = {0: 6, 1: min(6, 5 - P2S), 2: 6, 3: 4, 4: 63}
    def sync(k):
        l = [f"s_waitcnt vmcnt({VM[k]}) lgkmcnt(0)", "s_barrier"]
        if k == 3 and OPT.get("wtg", 12) in range(12, 21): l[0] = f"s_waitcnt vmcnt(5) lgkmcnt(0);;s_lshr_b32 s{sT0}, s{sW}, 1;;s_cmp_eq_u32 s{sT0}, 1;;s_cbranch_scc1 K_S3;;s_waitcnt vmcnt(4);;K_S3:"
        st(f"sync{k}", l)
        if k == 1: l += [f"v_subrev_u32 v{vFR+t}, 0x8000, v{vFR+t}" for t in range(8)]
        if k == 3: l += [f"v_add_u32 v{vFR+t}, 0x8000, v{vFR+t}" for t in range(8)]
        return l
    G = []
    g0 = sync(0)
    for s_ in range(4): g0 += rd(s_)
    G.append(g0)
    for s_ in range(32):
        g = []
        if s_ % 8 == 4: g += sync(s_ // 8 + 1)
        if s_ + 4 < 32: g += rd(s_ + 4)
        if s_ % 8 < 4: g.append(f"s_waitcnt lgkmcnt(12)")
        d = EACC if s_ == 31 else ACC
        g.append(f"{MFMA} {vr(d,16)}, {vr(WB+4*(s_%NWB),4)}, {vr(XF+4*s_,4)}, {'0' if s_ == 0 else vr(ACC,16)}")
        if s_ % 4 == 0: g.append(csm(s_))
        if s_ % 2 == 0:
            g.append(f"{M16} {vr(RS,4)}, {vr(SELC,4)}, {vr(XF+4*s_,4)}, {'0' if s_ == 0 else vr(RS,4)}")
            for r in range(4): g.append(f"v_dot2c_f32_bf16 v{vQ+(r&1)}, v{XF+4*s_+r}, v{XF+4*s_+r}")
        G.append(g)
    if OPT.get("z_nodot"): G = [[i for i in g if "dot2c" not in i] for g in G]
    if OPT.get("z_nom16"): G = [[i for i in g if "16x16x32" not in i] for g in G]
    if OPT.get("z_gram"): G = [[(f"{MFMA} {vr(PK,16)}, {i.split(', ')[1].replace('v','v[') + ':' + str(int(i.split(', ')[1][1:])+3) + ']'}, {i.split(', ')[1].replace('v','v[') + ':' + str(int(i.split(', ')[1][1:])+3) + ']'}, {vr(PK,16)}" if "dot2c" in i else i) for i in g if not ("dot2c" in i and int(i.split(', ')[1][1:]) % 4)] for g in G]
    d8 = dma8()
    s2_, s3_ = sset(2), sset(3)
    G[0].append(s2_[0])
    for k in range(6): G[P2S + k].append(s2_[1 + k])
    G[7].append(s3_[0])
    for k in range(6): G[7 + k].append(s3_[1 + k])
    assert OPT.get("wtg", 12) in (6, 12, 13, 14, 15, 16, 17)
    G[OPT.get("wtg", 12)].append(wt)
    G[12].append(f"s_add_u32 s{sDA}, s{sROWO}, s{sCOL+1};;s_add_u32 s{sMA}, s{sLB0}, {YB}")
    mark = len(e.L)
    early_scalars()
    e(f"s_mul_i32 s{sOUT}, s{sRT}, {2*114688}"); e(f"s_lshl_b32 s{sT0}, s{sP}, 12"); e(f"s_add_u32 s{sOUT}, s{sOUT}, s{sT0}")
    e(f"s_and_b32 s{sAUXO}, s{sC}, 1"); e(f"s_lshl_b32 s{sAUXO}, s{sAUXO}, 6"); e(f"s_add_u32 s{sAUXO}, s{sAUXO}, s{sCOL+3}")
    e(f"s_lshl_b32 s{sSLOT}, s{sAUXO}, 6"); e(f"s_add_u32 s{sSLOT}, s{sSLOT}, s{sOUT}"); e(f"s_lshl_b32 s{sT0}, s{sP}, 11"); e(f"s_sub_u32 s{sSLOT}, s{sSLOT}, s{sT0}")
    e(f"s_lshl_b32 s{sT0}, s{sW}, 7"); e(f"s_add_u32 s{sST}, s{sT0}, {RVO}")
    sc = [t.strip() for t in e.L[mark:]]; del e.L[mark:]
    h_ = [";;".join(sc[:12]), ";;".join(sc[12:])] if False else [";;".join(sc)]
    for k in range(4): G[13 + k].append(d8[k])
    G[18].append(h_[0])
    M1 = vr(PK + 4, 4)
    pf1 = (f"s_cmp_eq_u32 s{sTYPE}, 0;;s_cbranch_scc1 K_NP1;;s_lshl_b32 s{sT0}, s{sRB}, 3;;s_add_u32 s{sT0}, s{sT0}, s{sC};;s_lshl_b32 s{sT0}, s{sT0}, 14;;s_lshl_b32 s{sT1}, s{sW}, 10;;"
           f"s_add_u32 s{sT2}, s{sT0}, s{sT1};;s_add_u32 s{sT2}, s{sT2}, {KVP_OFF};;buffer_store_dwordx4 {M1}, v{vL16}, {sr(SWS,4)}, s{sT2} offen sc1;;"
           f"s_cmp_lg_u32 s{sW}, 7;;s_cbranch_scc1 K_NP1;;s_lshl_b32 s{sT0}, s{sC}, 4;;s_add_u32 s{sT0}, s{sT0}, s{sRB};;s_lshl_b32 s{sT0}, s{sT0}, 9;;"
           f"s_add_u32 s{sT0}, s{sT0}, {KVZ_OFF};;s_mov_b32 exec_hi, 0;;buffer_store_dwordx4 {M1}, v{vL16}, {sr(SWS,4)}, s{sT0} offen sc1;;"
           f"buffer_store_dwordx4 {M1}, v{vL16}, {sr(SWS,4)}, s{sT2} offen offset:1024 sc1;;s_mov_b32 exec_hi, -1;;K_NP1:")
    pf2 = (f"s_cmp_eq_u32 s{sTYPE}, 0;;s_cbranch_scc1 K_NP2;;s_lshl_b32 s{sT0}, s{sRT}, 16;;s_lshl_b32 s{sT1}, s{sC}, 13;;s_add_u32 s{sT0}, s{sT0}, s{sT1};;s_lshl_b32 s{sT1}, s{sP}, 12;;"
           f"s_add_u32 s{sT0}, s{sT0}, s{sT1};;s_add_u32 s{sT0}, s{sT0}, {PQ_OFF};;buffer_store_dwordx4 {M1}, v{vFO}, {sr(SWS,4)}, s{sT0} offen sc1;;"
           f"buffer_store_dwordx4 {M1}, v{vFO}, {sr(SWS,4)}, s{sT0} offen offset:2048 sc1;;K_NP2:")
    for k in range(4): G[21 + k].append(d8[4 + k])
    G[25].append(auxl("K_AUX")); G[26].append(pf1); G[27].append(pf2)
    for g in G: e.ext(g)
    tA, tB, tC = vFR, vFR + 1, vFR + 2
    e(f"v_and_b32 v{tB}, 31, v{vL}")
    e(f"s_lshl_b32 s{sT0}, s{sW}, 8"); e(f"s_add_u32 s{sT0}, s{sT0}, {STAT}")
    e(f"v_add_f32 v{vQ}, v{vQ}, v{vQ+1}")
    e(f"v_mov_b32 v{vQ+1}, v{vQ}")
    e(f"v_lshl_add_u32 v{tA}, v{tB}, 3, s{sT0}")
    e(f"v_lshlrev_b32 v{tC}, 2, v{tB}")
    e(f"v_permlane32_swap_b32 v{vQ}, v{vQ+1}")
    e(f"v_add_f32 v{RS+1}, v{vQ}, v{vQ+1}")
    e(f"ds_write_b64 v{tA}, {vr(RS,2)}")
    e(f"ds_write_b32 v{vCSW}, v{CS}")
    e(f"v_add_u32 v{tB}, {GSY:#x}, v{tC}"); e(f"ds_write_b32 v{tB}, v{AUG+4}")
    e(f"v_xor_b32 v{tA}, 1024, v{tA}")
    e("s_waitcnt lgkmcnt(0)")
    e("s_barrier")
    st("barA")
    e(f"ds_read_b64 {vr(vS,2)}, v{tA}")
    for k in range(4): e(f"v_xor_b32 v{vTR+k}, 0x10000, v{vTR+k}")
    e(f"v_xor_b32 v{vCSW}, 1024, v{vCSW}")
    e(f"v_cmp_gt_u32 vcc, 32, v{vL}")
    e("s_waitcnt lgkmcnt(0)")
    a, b = vS, vS + 1
    e(f"v_add_f32 v{a}, v{a}, v{RS}"); e(f"v_add_f32 v{b}, v{b}, v{RS+1}")
    e(f"v_mul_f32 v{a}, {f2u(-1.0/512):#x}, v{a}"); e(f"v_mul_f32 v{b}, {f2u(1.0/512):#x}, v{b}")
    e(f"v_fma_f32 v{b}, -v{a}, v{a}, v{b}"); e(f"v_cvt_pk_bf16_f32 v{AUG+2}, v{a}, v{a}")
    e(f"v_max_f32 v{b}, 0, v{b}")
    e(f"v_cvt_pk_bf16_f32 v{b}, v{b}, v{b}"); e(f"v_and_b32 v{b}, s{sMASK}, v{b}")
    e(f"v_add_f32 v{b}, {f2u(1e-5):#x}, v{b}"); e(f"v_cvt_pk_bf16_f32 v{b}, v{b}, v{b}")
    e(f"v_and_b32 v{b}, s{sMASK}, v{b}"); e(f"v_sqrt_f32 v{b}, v{b}")
    e(f"v_cndmask_b32 v{AUG+2}, 0, v{AUG+2}, vcc")
    e(f"v_cvt_pk_bf16_f32 v{AUG+3}, v{a}, v{b}")
    e(f"v_and_b32 v{b}, s{sMASK}, v{AUG+3}")
    e(f"v_rcp_f32 v{a}, v{b}")
    e(f"v_cndmask_b32 v{AUG+3}, 0, v{AUG+3}, vcc")

    APOLL = f"v_lshlrev_b32 v{vS+4}, 7, v{vL};;s_mov_b64 exec, 3;;buffer_load_dword v{vS+5}, v{vS+4}, {sr(SDBG,4)}, 0 offen sc1;;s_mov_b64 exec, -1"
    def apoll7():
        l2 = L("X")
        e(f"s_cmp_lg_u32 s{sW}, 7"); e(f"s_cbranch_scc1 {l2}")
        e(APOLL)
        e.label(l2)
    def r2_check(n=1):
        l2 = L("X")
        e(f"s_cmp_lg_u32 s{sW}, 7"); e(f"s_cbranch_scc1 {l2}")
        e(f"s_waitcnt vmcnt({n})")
        check([(APOLL, vS + 5, 3, 64)])
        e.label(l2)
    def publish(lev, vt):
        if OPT.get("x_nopub"): return "s_nop 0"
        return (f"v_mov_b32 v{vt}, {lev};;v_lshlrev_b32 v{vDUM}, 2, v{vL};;s_mov_b32 exec_hi, 0;;"
                f"buffer_store_dword v{vt}, v{vDUM}, {sr(SWS,4)}, s{sFLG} offen sc1;;s_mov_b32 exec_hi, -1")
    def midpub(n, lev, vt):
        a_, b_ = L("P"), L("P")
        return f"s_cbranch_vccz {a_};;s_waitcnt vmcnt({n});;s_branch {b_};;{a_}:;;s_waitcnt vmcnt(0);;{b_}:;;" + publish(lev, vt)
    def mgroups(swap=False, pre=(), cq=PK):
        PF = NWB - 1
        G = []
        g0 = [f"ds_read_b128 {vr(cq,4)}, v{vCSR}"] + list(pre)
        for s in range(PF): g0 += wrd(s)
        G.append(g0)
        for s in range(32):
            g = []
            if s + PF < 32: g += wrd(s + PF)
            g.append(f"s_waitcnt lgkmcnt({2 * min(PF, 31 - s)})")
            w, x = vr(WB + 4 * (s % NWB), 4), vr(XF + 4 * s, 4)
            a, b = (x, w) if swap else (w, x)
            d = EACC if s == 31 else ACC
            g.append(f"{MFMA} {vr(d,16)}, {a}, {b}, {'0' if s == 0 else vr(ACC,16)}")
            if s % 4 == 0: g.append(csm(s))
            G.append(g)
        return G
    def aug(bias=None, swap=False, cq=PK):
        l = Lst()
        c, t = cq, cq + 1
        l(f"v_add_f32 v{c}, v{c}, v{c+1}"); l(f"v_add_f32 v{c+2}, v{c+2}, v{c+3}"); l(f"v_add_f32 v{c}, v{c}, v{c+2}")
        l(f"v_cvt_pk_bf16_f32 v{t}, v{c}, v{c}"); l(f"v_and_b32 v{t}, s{sMASK}, v{t}"); l(f"v_sub_f32 v{t}, v{c}, v{t}")
        l(f"v_cvt_pk_bf16_f32 v{AUG}, v{c}, v{t}"); l(f"v_and_b32 v{c}, s{sMASK}, v{AUG}"); l(f"v_sub_f32 v{t}, v{t}, v{c}")
        l(f"v_cvt_pk_bf16_f32 v{AUG+1}, v{t}, {'v%d' % bias if bias is not None else '0'}")
        a, b = (vr(AUG+2,4), vr(AUG,4)) if swap else (vr(AUG,4), vr(AUG+2,4))
        l(f"s_nop 1;;{MFMA} {vr(EACC,16)}, {a}, {b}, {vr(EACC,16)}")
        l.extend(["@MARK", "@PAD", "@PAD", "@PAD", "@NEED 12"])
        return l
    def round_toggle():
        e(f"ds_write_b32 v{vCSW}, v{CS}")
        for k in range(4): e(f"v_xor_b32 v{vTR+k}, 0x10000, v{vTR+k}")
        e(f"v_xor_b32 v{vCSW}, 1024, v{vCSW}"); e(f"v_xor_b32 v{vCSR}, 1024, v{vCSR}")

    FPOLL = f"s_mov_b64 exec, 0xff;;buffer_load_dword v{ND}, v{vPA}, {sr(SWS,4)}, s{sPF} offen sc1;;s_mov_b64 exec, -1"
    def checkt(items, spin=SPIN):
        if OPT.get("x_nochk"): return "s_nop 0"
        top, ok = L("C"), L("C")
        t = [f"s_mov_b32 s{sCNT}, 0", f"{top}:"]
        for k, (pt, reg, msk, thr) in enumerate(items):
            t += [f"s_movk_i32 s{sT1}, {thr}", f"v_cmp_gt_u32 s[62:63], s{sT1}, v{reg}", "s_nop 0"]
            if k == 0: t.append(f"s_and_b32 s{sT0}, s62, {msk:#x}")
            else: t += [f"s_and_b32 s{sT1}, s62, {msk:#x}", f"s_or_b32 s{sT0}, s{sT0}, s{sT1}"]
        t += [f"s_cbranch_scc0 {ok}", "s_sleep 8"]
        t += [pt for (pt, reg, msk, thr) in items]
        t += [f"s_add_u32 s{sCNT}, s{sCNT}, 1", f"s_cmp_lt_u32 s{sCNT}, {spin}", "s_waitcnt vmcnt(0)", f"s_cbranch_scc1 {top}", f"{ok}:"]
        if OPT.get("cnt"): t += [f"s_mul_i32 s91, s91, 10", f"s_min_u32 s{sT0}, s{sCNT}, 9", f"s_add_u32 s91, s91, s{sT0}"]
        return ";;".join(t)
    def check(items): e(checkt(items))
    def sentinel(R, n, vt, reload):
        top, ok = L("V"), L("V")
        t = [f"s_mov_b32 s{sCNT}, 0", f"{top}:", f"v_max_u32 v{vt}, v{R}, v{R+1}"]
        t += [f"v_max3_u32 v{vt}, v{vt}, v{R+k}, v{R+k+1}" for k in range(2, n, 2)]
        t += [f"v_cmp_eq_u32 vcc, -1, v{vt}", "s_nop 0", "s_cmp_eq_u64 vcc, 0", f"s_cbranch_scc1 {ok}", "s_sleep 8", reload,
              f"s_add_u32 s{sCNT}, s{sCNT}, 1", f"s_cmp_lt_u32 s{sCNT}, {SPIN // 8}", "s_waitcnt vmcnt(0)", f"s_cbranch_scc1 {top}", f"{ok}:"]
        if OPT.get("cnt"): t += [f"s_mul_i32 s91, s91, 10", f"s_min_u32 s{sT0}, s{sCNT}, 9", f"s_add_u32 s91, s91, s{sT0}"]
        return ";;".join(t)
    RING, NU, NA = 128, 12, OPT.get("na", 8)
    unit = [i % NU for i in range(36)]
    ASC = "" if OPT.get("x_plain") else "sc1"
    def aload(i):
        R = RING + 8 * unit[i]; t = ""
        ks, b0, b1 = (order[i], sA0, sA1) if i < 28 else (i - 28, sP0, sKV)
        if i % 2 == 0: t = f"s_add_u32 s{sT3}, s{b0}, {2048*ks};;s_add_u32 s{sT4}, s{b1}, {2048*ks};;"
        return [t + f"buffer_load_dwordx4 {vr(R,4)}, v{vF0}, {sr(SWS,4)}, s{sT3} offen offset:{2048*(ks&1)} {ASC}",
                f"buffer_load_dwordx4 {vr(R+4,4)}, v{vF1}, {sr(SWS,4)}, s{sT4} offen offset:{2048*(ks&1)} {ASC}"]
    def tail(E, lev, vt):
        l1 = [guard("s_waitcnt vmcnt(1);;" + checkt([(FPOLL, ND, 0xff, 1)]))]
        for i in range(NA): l1 += [guard(t) for t in aload(i)]
        l2 = []
        for i in range(NE, NE + NW1): l2 += [guard(t) for t in wdma(i)]
        E = list(E)
        h = int(len(E) * 0.5)
        return merge(E[:h], l1) + merge(E[h:], l2, 0.9)

    def l2pf(r, x=0):
        return (f"s_lshr_b32 s{sT0}, s{sIDX}, 3;;s_lshl_b32 s{sT0}, s{sT0}, 2;;s_and_b32 s{sT1}, s{sIDX}, 3;;s_add_u32 s{sT0}, s{sT0}, s{sT1};;s_lshl_b32 s{sT0}, s{sT0}, 3;;"
                f"s_xor_b32 s{sT1}, s{sW}, {x};;s_add_u32 s{sT0}, s{sT0}, s{sT1};;s_lshl_b32 s{sT1}, s2, 4;;s_add_u32 s{sT0}, s{sT0}, s{sT1};;s_and_b32 s{sT0}, s{sT0}, 127;;"
                f"s_mul_i32 s{sT0}, s{sT0}, 14336;;s_add_u32 s{sT0}, s{sT0}, {7168*r};;s_mov_b64 s[92:93], s[96:97];;s_mov_b32 s94, {1792*1024};;s_mov_b32 s95, 0x00020000;;"
                f"v_lshlrev_b32 v{vDUM}, 7, v{vL};;s_bfm_b64 exec, 56, 0;;buffer_load_dword v{vDUM}, v{vDUM}, s[92:95], s{sT0} offen;;s_mov_b64 exec, -1")
    L2 = OPT.get("l2pf", 0)
    e(f"s_cmp_eq_u32 s{sTYPE}, 0")
    e("s_cbranch_scc1 K_QKV")
    vSS, vPB = vAUX + 8, vAUX + 9
    k0 = -2.0 * math.sqrt(2.0 / math.pi) * math.log2(math.e)
    e(f"v_mov_b32 v{vSS}, v{vS+1}")
    e(f"v_mul_f32 v{vC1}, {f2u(k0):#x}, v{vS}")
    e(f"v_mul_f32 v{vC0}, v{vS}, v{vS}"); e(f"v_mul_f32 v{vC0}, v{vC0}, v{vC1}"); e(f"v_mul_f32 v{vC0}, {f2u(0.044715):#x}, v{vC0}")
    e("s_waitcnt vmcnt(0)")
    for i in range(4): e(f"v_lshlrev_b32 v{vAUX+i}, 16, v{vAUX+i}")
    e("s_barrier")
    st("r0end")
    e(f"s_cmp_lg_u32 s{sW}, 7"); e("s_cbranch_scc1 K_NA")
    e(f"s_and_b32 s{sT0}, s2, 1"); e(f"s_lshl_b32 s{sT0}, s{sT0}, 7")
    e(f"v_mov_b32 v{vDUM}, 1")
    e("s_mov_b64 exec, 1")
    e(f"buffer_atomic_add v{vDUM}, v{AUG+4}, {sr(SDBG,4)}, s{sT0} offen sc1")
    e("s_mov_b64 exec, -1")
    e.label("K_NA")
    e(f"s_cmp_eq_u32 s{sW}, 7"); e(f"s_cselect_b32 s{sIT}, 0, 64")
    e("s_mov_b64 vcc, -1")
    def gelu(r):
        l = aug(bias=vAUX + r)
        for half in range(2):
            rng = range(8 * half, 8 * half + 8)
            for i in rng: l(f"v_mul_f32 v{TMP+i}, v{EACC+i}, v{EACC+i}")
            for i in rng: l(f"v_fma_f32 v{TMP+i}, v{TMP+i}, v{vC0}, v{vC1}")
            for i in rng: l(f"v_mul_f32 v{TMP+i}, v{EACC+i}, v{TMP+i}")
            for i in rng: l(f"v_exp_f32 v{TMP+i}, v{TMP+i}")
            for i in rng: l(f"v_fma_f32 v{TMP+i}, v{TMP+i}, v{vSS}, v{vSS}")
            for i in rng: l(f"v_rcp_f32 v{TMP+i}, v{TMP+i}")
            for i in rng: l(f"v_mul_f32 v{TMP+i}, v{EACC+i}, v{TMP+i}")
            for i in range(4): l(f"v_cvt_pk_bf16_f32 v{PK+8+4*half+i}, v{TMP+8*half+2*i}, v{TMP+8*half+2*i+1}")
            l(f"buffer_store_dwordx4 {vr(PK+8+4*half,4)}, v{vFO}, {sr(SWS,4)}, s{sST} offen offset:{2048*half} {STF}")
        return l
    st("f0")
    def stbase(r): e(f"s_lshl_b32 s{sST}, s{sCOL+r}, 6"); e(f"s_add_u32 s{sST}, s{sST}, s{sOUT}")
    def place(fl, items):
        n_ = len(fl)
        for pos, it in sorted(items, key=lambda x: -x[0]): fl.insert(int(n_ * pos / 100), it)
        return fl
    def spread(items, p0, p1): return [(p0 + (p1 - p0) * k / max(1, len(items) - 1), it) for k, it in enumerate(items)]
    stbase(0)
    e(f"s_add_u32 s{sDA}, s{sROWO}, s{sCOL+2}"); e(f"s_mov_b32 s{sMA}, s{sLB0}")
    hp = [f"s_lshl_b32 s{sT0}, s{sCOL+1+k//2}, 6;;s_add_u32 s{sT0}, s{sT0}, s{sOUT};;buffer_store_dwordx4 {vr(PK+4,4)}, v{vFO}, {sr(SWS,4)}, s{sT0} offen offset:{2048*(k&1)} sc1" for k in range(4)]
    hp.append(f"buffer_store_dwordx4 {vr(PK+4,4)}, v{vFO}, {sr(SWS,4)}, s{sSLOT} offen sc1")
    ea = f"s_cmp_lg_u32 s{sW}, 7;;s_cbranch_scc1 K_FE1;;" + APOLL + ";;K_FE1:"
    fl = place(gelu(0), spread(dma8(), 0, OPT.get("d1", 36)) + spread(hp, OPT.get("hp0", 44), OPT.get("hp1", 82)) + [(85, ea)])
    e.ext(interleave(mgroups(), fl, 1, 31))
    st("b1")
    round_toggle()
    stbase(1)
    e(f"s_add_u32 s{sDA}, s{sROWO}, s{sAUXO}"); e(f"s_add_u32 s{sMA}, s{sLB0}, {YB}")
    e(f"s_cmp_lg_u32 s{sISC}, 0"); e("s_cselect_b64 vcc, -1, 0")
    e(f"s_waitcnt vmcnt(7) lgkmcnt(0)")
    r2_check()
    e("s_barrier")
    st("r1end")
    d4 = []
    for i in range(4):
        jg, jl = (f"s{sJG}", "0x7c00") if i == 1 else (f"s{sP16}", "1024")
        d4.append(f"s_mov_b32 m0, s{sMA};;s_add_u32 s{sMA}, s{sMA}, {jl};;buffer_load_dwordx4 v{vDMA}, {sr(SW,4)}, s{sDA} offen lds;;s_add_u32 s{sDA}, s{sDA}, {jg}")
    KR = OPT.get("kr", 3)
    er = [erow(i, vD2) for i in range(NE)]
    mp = f"s_waitcnt vmcnt({4 + KR});;" + publish(1, vPB)
    fl = place(gelu(1), spread(d4 + er[:KR] + [mp] + er[KR:], 0, OPT.get("d2", 50)) + [(OPT.get("epat", 85), guard(FPOLL))])
    e.ext(interleave(mgroups(), fl, 1, 31))
    st("b2")
    round_toggle()
    stbase(2)
    e(f"s_waitcnt vmcnt(2) lgkmcnt(0)")
    e("s_barrier")
    st("r2end")
    e("s_cbranch_vccz K_FG")
    e(f"ds_read_b128 {vr(PK,4)}, v{vCSR}")
    p2_setup()
    e("s_waitcnt vmcnt(1) lgkmcnt(0)")
    check([(FPOLL, ND, 0xff, 1)])
    pre = []
    for i in range(NA): pre += aload(i)
    for i in range(NE, NE + NW1): pre += wdma(i)
    e.ext(place(gelu(2), spread(pre, 0, OPT.get("tl", 90))))
    e("s_branch K_P2")
    e.label("K_FG")
    e(f"s_lshl_b32 s{sT0}, s{sP}, 14")
    for k in range(4): e(f"v_subrev_u32 v{vTR+k}, s{sT0}, v{vTR+k}")
    e(f"s_setprio {OPT.get('gprio', 2)}")
    e.ext(interleave(mgroups(), gelu(2), 1, OPT.get("g3", 24)))
    st("b3")
    e(f"ds_write_b32 v{vCSW}, v{CS}")
    e(f"v_xor_b32 v{vCSR}, 1024, v{vCSR}")
    stbase(3)
    e(f"v_mov_b32 v{vS}, {GSY:#x}"); e(f"v_mov_b32 v{vS+1}, 1")
    e("s_waitcnt lgkmcnt(0)")
    e("s_mov_b64 exec, 1"); e(f"ds_add_u32 v{vS}, v{vS+1}"); e("s_mov_b64 exec, -1")
    e.label("K_FSP")
    e(f"ds_read_b32 v{vS+1}, v{vS}")
    e("s_waitcnt lgkmcnt(0)")
    e(f"v_readfirstlane_b32 s{sT0}, v{vS+1}")
    e("s_nop 3")
    e(f"s_cmp_lt_u32 s{sT0}, 4"); e("s_cbranch_scc1 K_FSP")
    e(f"ds_read_b128 {vr(PK,4)}, v{vCSR}")
    e("s_waitcnt lgkmcnt(0)")
    e.ext(gelu(3))
    if OPT.get("spf", 1):
        e("s_setprio 0")
        srd(e, SWO, 98, 99, 512 * 1024)
        e(f"s_lshr_b32 s{sT0}, s{sIDX}, 3"); e(f"s_and_b32 s{sT1}, s{sIDX}, 3"); e(f"s_lshl_b32 s{sT1}, s{sT1}, 2"); e(f"s_add_u32 s{sT1}, s{sT1}, s{sRG}")
        e(f"s_lshl_b32 s{sT1}, s{sT1}, 10"); e(f"s_add_u32 s{sT1}, s{sT1}, {OPT.get('spc', 3)*128}")
        e(f"s_mul_i32 s{sT2}, s{sT0}, {448*1024}"); e(f"s_add_u32 s{sT2}, s{sT2}, s{sT1}")
        e(f"s_lshl_b32 s{sT3}, s{sT0}, 17"); e(f"s_add_u32 s{sT3}, s{sT3}, s{sT1}")
        B_ = OPT.get("spb", 6)
        for k, i in enumerate(range(OPT.get("sp0", 16), 36)):
            for hf in (0, 64):
                if i < 28: e(f"s_buffer_load_dword s{sT4}, {sr(SWE,4)}, s{sT2} offset:{order[i]*16384+hf}")
                else: e(f"s_buffer_load_dword s{sT4}, {sr(SWO,4)}, s{sT3} offset:{(i-28)*16384+hf}")
            if k % B_ == B_ - 1: e("s_waitcnt lgkmcnt(0)")
        e("s_waitcnt lgkmcnt(0)")
    e("s_branch K_GFIN")

    e.label("K_QKV")
    WT = vAUX
    e(f"v_mul_f32 v{vC0}, {f2u(math.log2(math.e)):#x}, v{vS}")
    e(f"v_add_u32 v{vS+1}, s{sST}, v{tC}")
    e(f"ds_write_b32 v{vS+1}, v{vS}")
    e(f"v_lshrrev_b32 v{vC1}, 5, v{vL}"); e(f"v_lshl_add_u32 v{vC1}, v{vC1}, 4, s{sST}")
    e("s_waitcnt vmcnt(0)")
    e(f"ds_read_b64_tr_b16 {vr(WT+2,2)}, v{vAUX} offset:256"); e(f"ds_read_b64_tr_b16 {vr(WT,2)}, v{vAUX}")
    e("s_waitcnt lgkmcnt(0)")
    e("s_barrier")
    st("r0end")
    def softcore(src):
        l = Lst()
        l(f"s_nop 1;;{MFMA} {vr(TMP,16)}, {vr(WT,4)}, {vr(src+4,4)}, 0;;{MFMA} {vr(EACC,16)}, {vr(WT,4)}, {vr(src,4)}, 0")
        l.extend(["@MARK", "@PAD", "@PAD", "@PAD", "@NEED 11"])
        for (P, EP, out) in ((TMP + 8, TMP, PK + 8), (EACC, EACC + 8, PK)):
            mx, mn = vS, vS + 1
            l(f"v_max3_f32 v{mx}, v{P}, v{P+1}, v{P+2}"); l(f"v_max3_f32 v{mn}, -v{P}, -v{P+1}, -v{P+2}")
            l(f"v_max3_f32 v{mx}, v{mx}, v{P+3}, v{P+4}"); l(f"v_max3_f32 v{mn}, v{mn}, -v{P+3}, -v{P+4}")
            l(f"v_max3_f32 v{mx}, v{mx}, v{P+5}, v{P+6}"); l(f"v_max3_f32 v{mn}, v{mn}, -v{P+5}, -v{P+6}")
            l(f"v_max_f32 v{mx}, v{mx}, v{P+7}"); l(f"v_max_f32_e64 v{mn}, v{mn}, -v{P+7}")
            l.extend(["@MARK", "@NEED 2"]); l(f"v_permlane32_swap_b32 v{mx}, v{mn}")
            l(f"v_max_f32 v{mx}, v{mx}, v{mn}")
            l(f"v_mul_f32_e64 v{mx}, -v{mx}, v{vC0}")
            l(f"v_mov_b32 v{mn}, v{mx}")
            l.extend(["@MARK", "@NEED 2"]); l(f"v_permlane32_swap_b32 v{mx}, v{mn}")
            for j in range(8): l(f"v_fma_f32 v{EP+j}, v{P+j}, v{vC0}, v{mx}")
            for j in range(8): l(f"v_fma_f32 v{P+j}, -v{P+j}, v{vC0}, v{mn}")
            for j in range(8): l(f"v_exp_f32 v{EP+j}, v{EP+j}")
            for j in range(8): l(f"v_exp_f32 v{P+j}, v{P+j}")
            s0, s1, s2, s3 = vS + 2, vS + 3, vS + 4, vS + 5
            l(f"v_add_f32 v{s0}, v{EP}, v{EP+1}"); l(f"v_add_f32 v{s1}, v{P}, v{P+1}")
            l(f"v_add_f32 v{s2}, v{EP+2}, v{EP+3}"); l(f"v_add_f32 v{s3}, v{P+2}, v{P+3}")
            for j in (4, 6):
                l(f"v_add_f32 v{s0}, v{s0}, v{EP+j}"); l(f"v_add_f32 v{s1}, v{s1}, v{P+j}")
                l(f"v_add_f32 v{s2}, v{s2}, v{EP+j+1}"); l(f"v_add_f32 v{s3}, v{s3}, v{P+j+1}")
            l(f"v_add_f32 v{s0}, v{s0}, v{s2}"); l(f"v_add_f32 v{s1}, v{s1}, v{s3}")
            l.extend(["@MARK", "@NEED 2"]); l(f"v_permlane32_swap_b32 v{s0}, v{s1}")
            l(f"v_add_f32 v{s0}, v{s0}, v{s1}")
            l(f"v_rcp_f32 v{s0}, v{s0}")
            l.extend(["@MARK", "@NEED 1"]); l(f"v_mov_b32 v{s1}, v{s0}")
            l.extend(["@MARK", "@NEED 2"]); l(f"v_permlane32_swap_b32 v{s0}, v{s1}")
            for j in range(8): l(f"v_mul_f32 v{EP+j}, v{EP+j}, v{s0}")
            for j in range(8): l(f"v_mul_f32 v{P+j}, v{P+j}, v{s1}")
            for j in range(4): l(f"v_cvt_pk_bf16_f32 v{out+j}, v{EP+2*j}, v{EP+2*j+1}")
            for j in range(4): l(f"v_cvt_pk_bf16_f32 v{out+4+j}, v{P+2*j}, v{P+2*j+1}")
        return l
    def kepi():
        l = aug()
        for i in range(8): l(f"v_cvt_pk_bf16_f32 v{PK+i}, v{EACC+2*i}, v{EACC+2*i+1}")
        l += softcore(PK)
        TD = (EACC, TMP)
        for a in (1, 0):
            l(f"s_nop 1;;{MFMA} {vr(TD[a],16)}, {vr(PK+8*a,4)}, {vr(SPm,4)}, 0;;{MFMA} {vr(TD[a],16)}, {vr(PK+8*a+4,4)}, {vr(SMm,4)}, {vr(TD[a],16)}")
        l(f"s_lshl_b32 s{sT0}, s{sP}, 10;;s_lshl_b32 s{sT1}, s{sRG}, 2;;s_add_u32 s{sT0}, s{sT0}, s{sT1};;s_add_u32 s{sT0}, s{sT0}, {ZSC};;v_and_b32 v{vS}, 0x1f0, v{vL16};;v_add_u32 v{vS}, s{sT0}, v{vS}")
        l.extend(["@MARK", "@PAD", "@NEED 4"])
        for a in (1, 0):
            for j in range(8): l(f"v_cvt_pk_bf16_f32 v{PK+8*a+j}, v{TD[a]+2*j}, v{TD[a]+2*j+1}")
        for a in (1, 0):
            l(f"s_nop 1;;{M16} {vr(TMP+4*a,4)}, {vr(SELC,4)}, {vr(PK+8*a,4)}, 0;;{M16} {vr(TMP+4*a,4)}, {vr(SELC,4)}, {vr(PK+8*a+4,4)}, {vr(TMP+4*a,4)}")
        l.extend(["@MARK", "@PAD", "@PAD", "@NEED 8"])
        for a in range(2): l(f"ds_write_b32 v{vS}, v{TMP+4*a} offset:{512*a}")
        return l
    CQ, VBQ = vAUX + 8, vAUX + 4
    def vepi():
        l = aug(swap=True, cq=CQ)
        for i in range(16): l(f"v_mul_f32 v{EACC+i}, v{EACC+i}, v{TMP+i}")
        for i in range(8): l(f"v_cvt_pk_bf16_f32 v{VBQ+i}, v{EACC+2*i}, v{EACC+2*i+1}")
        for i in range(8): l(f"v_cndmask_b32 v{TMP+i}, 0, v{VBQ+i}, {sr(sLT16,2)}")
        l(f"s_nop 1;;{MFMA} {vr(EACC,16)}, {vr(PK,4)}, {vr(TMP,4)}, 0;;{MFMA} {vr(EACC,16)}, {vr(PK+4,4)}, {vr(TMP+4,4)}, {vr(EACC,16)}")
        for i in range(8): l(f"v_cndmask_b32 v{TMP+8+i}, v{VBQ+i}, 0, {sr(sLT16,2)}")
        l(f"s_nop 1;;{MFMA} {vr(EACC,16)}, {vr(PK+8,4)}, {vr(TMP+8,4)}, {vr(EACC,16)};;{MFMA} {vr(EACC,16)}, {vr(PK+12,4)}, {vr(TMP+12,4)}, {vr(EACC,16)}")
        l.extend(["@MARK", "@PAD", "@PAD", "@PAD", "@NEED 12"])
        for q in range(4): l(f"ds_write_b128 v{vS+1}, {vr(EACC+4*q,4)} offset:{1024*q}")
        return l
    e(f"s_add_u32 s{sDA}, s{sROWO}, s{sCOL+2}"); e(f"s_mov_b32 s{sMA}, s{sLB0}")
    tch = (f"s_cmp_ge_u32 s{sW}, 4;;s_cbranch_scc1 K_NT;;s_lshl_b32 s{sT2}, s{sRB}, 3;;s_add_u32 s{sT2}, s{sT2}, s{sC};;s_lshl_b32 s{sT2}, s{sT2}, 1;;"
           f"s_and_b32 s{sT0}, s{sW}, 1;;s_add_u32 s{sT2}, s{sT2}, s{sT0};;s_cmp_lt_u32 s{sW}, 2;;s_cselect_b64 {sr(SAUX,2)}, s[96:97], s[98:99];;"
           f"s_mov_b32 s{sT0}, {1792*1024};;s_cselect_b32 s{SAUX+2}, s{sT0}, {512*1024};;s_movk_i32 s{sT0}, 7168;;s_cselect_b32 s{sT0}, s{sT0}, 2048;;"
           f"s_cselect_b32 s{sT1}, 56, 16;;s_mul_i32 s{sT0}, s{sT0}, s{sT2};;v_lshlrev_b32 v{vDUM}, 7, v{vL};;s_bfm_b64 exec, s{sT1}, 0;;"
           f"buffer_load_dword v{vDUM}, v{vDUM}, {sr(SAUX,4)}, s{sT0} offen;;s_mov_b64 exec, -1;;K_NT:")
    flq = merge(kepi(), dma8() + [tch], 0.35)
    if L2 in (1, 3, 4, 5): flq.insert(int(len(flq) * OPT.get("l2at", 60) / 100), l2pf(0))
    if L2 == 2:
        flq.insert(int(len(flq) * 0.62), l2pf(1)); flq.insert(int(len(flq) * 0.45), l2pf(0))
    QAP = APOLL.replace(f"v{vS+4}", f"v{vDUM}").replace(f"v{vS+5}", f"v{vDMA}")
    flq.insert(int(len(flq) * OPT.get("qap", 70) / 100), f"s_cmp_lg_u32 s{sW}, 7;;s_cbranch_scc1 K_QAP;;" + QAP + ";;K_QAP:")
    e.ext(interleave(mgroups(swap=True), flq, 1, 31))
    st("b1")
    round_toggle()
    e(f"s_lshl_b32 s{sT0}, s{sP}, 15"); e(f"s_lshl_b32 s{sT1}, s{sRG}, 12"); e(f"s_add_u32 s{sT0}, s{sT0}, s{sT1}"); e(f"s_add_u32 s{sT0}, s{sT0}, {YB}")
    e(f"v_add_u32 v{vS+1}, s{sT0}, v{vL16}")
    e(f"s_waitcnt vmcnt(0) lgkmcnt(0)")
    e(f"v_mov_b32 v{vS+5}, v{vDMA}")
    r2_check(0)
    dmalane(vDMA, vS + 2, vS + 3)
    poll_addr()
    e(f"s_lshl_b32 s{sT0}, s{sP}, 15"); e(f"s_lshl_b32 s{sT1}, s{sRG}, 10"); e(f"s_add_u32 s{sT0}, s{sT0}, s{sT1}"); e(f"s_add_u32 s{sT0}, s{sT0}, {YB}")
    e(f"v_add_u32 v{vS+4}, s{sT0}, v{vL16}")
    e(f"s_and_b32 s{sT2}, s{sRG}, 1"); e(f"s_lshl_b32 s{sT0}, s{sP}, 1"); e(f"s_add_u32 s{sT2}, s{sT2}, s{sT0}")
    e(f"s_lshl_b32 s{sT0}, s{sT2}, 9"); e(f"s_add_u32 s{sT0}, s{sT0}, {ZSC}")
    e(f"v_and_b32 v{vS}, 0x1f0, v{vL16}"); e(f"v_add_u32 v{vS}, s{sT0}, v{vS}")
    e(f"s_lshl_b32 s{sOUT}, s{sRB}, 17"); e(f"s_lshl_b32 s{sT0}, s{sC}, 14"); e(f"s_add_u32 s{sOUT}, s{sOUT}, s{sT0}"); e(f"s_add_u32 s{sOUT}, s{sOUT}, {KVP_OFF}")
    e(f"s_lshl_b32 s{sT2}, s{sT2}, 7"); e(f"s_add_u32 s{sT2}, s{sT2}, s{sOUT}"); e(f"s_add_u32 s{sT2}, s{sT2}, 8192")
    e(f"s_lshl_b32 s{sT0}, s{sW}, 10"); e(f"s_add_u32 s{sOUT}, s{sOUT}, s{sT0}")
    e(f"s_cmp_lg_u32 s{sISC}, 0"); e("s_cselect_b64 vcc, -1, 0")
    e("s_barrier")
    st("r1end")
    MG = mgroups(pre=[f"ds_read_b128 {vr(TMP+4*q,4)}, v{vC1} offset:{32*q}" for q in range(4)], cq=CQ)
    QP, QC = OPT.get("qp", 30), OPT.get("qc", 24)
    if L2 == 1: MG[1].append(l2pf(1))
    VS = OPT.get("vs", 9)
    RW = OPT.get("rw", 1)
    for i in range(NE): MG[(VS + 8 + i) if RW == 0 else (1 + i)].append(erow(i, vDMA))
    MG[QP].append(f"s_waitcnt vmcnt({RW})")
    MG[QP].append(guard(FPOLL))
    if L2 == 3: MG[QP].append("s_cbranch_vccnz K_QL2;;" + l2pf(1) + ";;" + l2pf(1, 4) + ";;K_QL2:")
    e.ext(interleave(MG[:VS+1], vepi(), 1, VS))
    e("s_waitcnt lgkmcnt(0)"); e("s_barrier")
    st("m2b")
    for w in range(4): e(f"ds_read_b128 {vr(TMP+4*w,4)}, v{vS+4} offset:{4096*w}")
    e(f"ds_read_b128 {vr(PK,4)}, v{vS}")
    e(f"v_lshlrev_b32 v{vS+4}, 2, v{vL}")
    kr = Lst()
    for j in range(4): kr(f"v_add_f32 v{TMP+j}, v{TMP+j}, v{TMP+4+j}")
    for j in range(4): kr(f"v_add_f32 v{TMP+8+j}, v{TMP+8+j}, v{TMP+12+j}")
    for j in range(4): kr(f"v_add_f32 v{TMP+j}, v{TMP+j}, v{TMP+8+j}")
    kr(f"buffer_store_dwordx4 {vr(TMP,4)}, v{vL16}, {sr(SWS,4)}, s{sOUT} offen sc1")
    kr(f"v_add_f32 v{PK}, v{PK}, v{PK+1}"); kr(f"v_add_f32 v{PK+2}, v{PK+2}, v{PK+3}"); kr(f"v_add_f32 v{PK}, v{PK}, v{PK+2}")
    kr(f"s_cmp_ge_u32 s{sRG}, 2;;s_cbranch_scc1 K_QNZ;;s_mov_b32 exec_hi, 0;;buffer_store_dword v{PK}, v{vS+4}, {sr(SWS,4)}, s{sT2} offen sc1;;s_mov_b32 exec_hi, -1;;K_QNZ:")
    RED, sU, sRED = 128, sA0, sST
    vRS, vRS2, vRD, vRT = vAUX + 4, vAUX + 5, vAUX + 6, vAUX + 8
    mark = len(e.L)
    e(f"s_lshl_b32 s{sRED}, s{sISC}, 2"); e(f"s_add_u32 s{sRED}, s{sRED}, s{sRG}")
    e(f"s_cmp_ge_u32 s{sRED}, 2"); e("s_cbranch_scc1 K_QRA")
    e(f"s_lshl_b32 s{sU}, s{sC}, 4"); e(f"s_add_u32 s{sU}, s{sU}, s{sRB}"); e(f"s_lshl_b32 s{sU}, s{sU}, 1"); e(f"s_add_u32 s{sU}, s{sU}, s{sRG}")
    e(f"v_lshrrev_b32 v{vRT}, 4, v{vL}"); e(f"v_and_b32 v{vRT+1}, 15, v{vL}"); e(f"v_lshlrev_b32 v{vRT+1}, 4, v{vRT+1}")
    e(f"v_lshl_add_u32 v{vRD}, v{vRT}, 2, v{vRT+1}")
    e(f"s_lshl_b32 s{sPF}, s{sC}, 14"); e(f"s_add_u32 s{sPF}, s{sPF}, {KVP_OFF}")
    e(f"s_cmp_eq_u32 s{sRG}, 0"); e("s_cbranch_scc0 K_GZA")
    e(f"s_and_b32 s{sT0}, s{sRB}, 8"); e(f"s_lshl_b32 s{sT0}, s{sT0}, 9"); e(f"s_add_u32 s{sPF}, s{sPF}, s{sT0}")
    e(f"s_and_b32 s{sT0}, s{sRB}, 2"); e(f"s_lshl_b32 s{sT0}, s{sT0}, 10"); e(f"s_add_u32 s{sPF}, s{sPF}, s{sT0}")
    e(f"s_and_b32 s{sT0}, s{sRB}, 1"); e(f"s_lshl_b32 s{sT0}, s{sT0}, 9"); e(f"s_add_u32 s{sPF}, s{sPF}, s{sT0}")
    e(f"s_and_b32 s{sT0}, s{sRB}, 4"); e(f"s_lshl_b32 s{sT0}, s{sT0}, 6"); e(f"s_add_u32 s{sPF}, s{sPF}, s{sT0}")
    e(f"v_lshl_add_u32 v{vRS}, v{vRT}, 17, v{vRT+1}"); e(f"v_add_u32 v{vRS2}, 1024, v{vRS}")
    e("s_branch K_GZB")
    e.label("K_GZA")
    e(f"s_lshr_b32 s{sT0}, s{sRB}, 1"); e(f"s_lshl_b32 s{sT0}, s{sT0}, 6"); e(f"s_add_u32 s{sPF}, s{sPF}, s{sT0}")
    e(f"s_and_b32 s{sT0}, s{sRB}, 1"); e(f"s_lshl_b32 s{sT0}, s{sT0}, 4"); e(f"s_add_u32 s{sPF}, s{sPF}, s{sT0}"); e(f"s_add_u32 s{sPF}, s{sPF}, 8192")
    e(f"v_lshlrev_b32 v{vRS}, 17, v{vRT}"); e(f"v_add_u32 v{vRS2}, 32, v{vRS}")
    e.label("K_GZB")
    RLOAD = f"s_mov_b32 s{sT0}, s{sPF}"
    for u in range(4):
        RLOAD += f";;buffer_load_dwordx4 {vr(RED+8*u,4)}, v{vRS}, {sr(SWS,4)}, s{sT0} offen sc1;;buffer_load_dwordx4 {vr(RED+8*u+4,4)}, v{vRS2}, {sr(SWS,4)}, s{sT0} offen sc1"
        if u < 3: RLOAD += f";;s_add_u32 s{sT0}, s{sT0}, {4*131072}"
    e.label("K_QRA")
    ra = ";;".join(t.strip() for t in e.L[mark:]); del e.L[mark:]
    MG[VS + 10].append(ra)
    MG[OPT.get("rl", 31)].append(f"s_cmp_ge_u32 s{sRED}, 2;;s_cbranch_scc1 K_QRL;;" + RLOAD + ";;K_QRL:")
    e.ext(interleave(MG[VS+1:], kr, 4, 6))
    st("b2")
    round_toggle()
    e("s_waitcnt lgkmcnt(0)")
    e("s_barrier")
    st("r2end")
    e(f"ds_read_b128 {vr(PK,4)}, v{vCSR}")
    p2_setup()
    PARK = 0xC000
    e(f"s_mul_i32 s{sT0}, s{sRG}, 3072"); e(f"s_add_u32 s{sT0}, s{sT0}, {PARK}")
    e(f"v_add_u32 v{vS+1}, s{sT0}, v{vL16}")
    e(f"s_lshl_b32 s{sT0}, s{sRG}, 2"); e(f"s_add_u32 s{sT0}, s{sT0}, {GSY+32}"); e(f"v_mov_b32 v{vS+4}, s{sT0}")
    e("s_waitcnt lgkmcnt(0)")
    lq = aug()
    lq += [f"v_cvt_pk_bf16_f32 v{PK+8+i}, v{EACC+2*i}, v{EACC+2*i+1}" for i in range(8)]
    e("s_cbranch_vccz K_QG")
    lq2 = lq + [f"ds_write_b128 v{vS+1}, {vr(PK+8,4)}", f"ds_write_b128 v{vS+1}, {vr(PK+12,4)} offset:1024", f"ds_write_b128 v{vS+1}, {vr(WT,4)} offset:2048"]
    lq2 += [f"v_mov_b32 v{vS+5}, 1;;s_waitcnt lgkmcnt(0);;ds_write_b32 v{vS+4}, v{vS+5}"]
    e("s_waitcnt vmcnt(0)"); check([(FPOLL, ND, 0xff, 1)])
    a16 = []
    for i in range(NA): a16 += aload(i)
    e.ext(merge(lq2, a16[:8])); e.ext(a16[8:])
    for i in range(NE, NE + NW1): e.ext(wdma(i))
    e("s_branch K_P2")

    e.label("K_QG")
    QBc, PHS, KVR = 168, 192, 208
    vSL = 112
    sGI = sA1
    e(f"s_setprio {OPT.get('gprio', 2)}")
    e(f"v_mov_b32 v{vSL}, v{vS+1}"); e(f"v_mov_b32 v{vSL+2}, v{vS+4}")
    def ldspin(lbl, areg, n):
        e.label(lbl)
        e(f"ds_read_b32 v{vS+5}, v{areg}"); e("s_waitcnt lgkmcnt(0)")
        e(f"v_readfirstlane_b32 s{sT0}, v{vS+5}"); e("s_nop 3")
        e(f"s_cmp_lt_u32 s{sT0}, {n}"); e(f"s_cbranch_scc1 {lbl}")
    e.ext(aug())
    for i in range(8): e(f"v_cvt_pk_bf16_f32 v{QBc+i}, v{EACC+2*i}, v{EACC+2*i+1}")
    vG, vG1, vG2 = 96, 97, 98
    e(f"v_mov_b32 v{vG}, {GSY:#x}"); e(f"v_mov_b32 v{vG1}, 1")
    red = []; st("ra", red); red += ["s_waitcnt vmcnt(0)", sentinel(RED, 32, vG2, RLOAD)]; st("rb", red)
    red += [ f"s_lshl_b32 s{sT0}, s{sU}, 8", f"s_add_u32 s{sT0}, s{sT0}, {KVZ_OFF}"]
    for stp in (16, 8): red += [f"v_add_f32 v{RED+j}, v{RED+j}, v{RED+stp+j}" for j in range(stp)]
    red += ["s_nop 1"] + [f"v_permlane32_swap_b32 v{RED+k}, v{RED+k+4}" for k in range(4)] + [f"v_add_f32 v{RED+k}, v{RED+k}, v{RED+k+4}" for k in range(4)]
    red += ["s_nop 1"] + [f"v_permlane16_swap_b32 v{RED+k}, v{RED+k+2}" for k in range(2)] + [f"v_add_f32 v{RED+k}, v{RED+k}, v{RED+k+2}" for k in range(2)]
    red += [f"v_cvt_pk_bf16_f32 v{RED}, v{RED}, v{RED+1}", f"buffer_store_dword v{RED}, v{vRD}, {sr(SWS,4)}, s{sT0} offen sc1",
            "s_mov_b64 exec, 1", f"ds_add_u32 v{vG}, v{vG1}", "s_mov_b64 exec, -1"]
    e(f"s_and_b32 s{sT0}, s{sRG}, 1"); e(f"s_lshl_b32 s{sT3}, s{sT0}, 12"); e(f"s_xor_b32 s{sT0}, s{sT0}, s{sP}"); e(f"s_lshl_b32 s{sT0}, s{sT0}, 12")
    e(f"s_lshl_b32 s{sT2}, s{sC}, 13"); e(f"s_add_u32 s{sT2}, s{sT2}, s{sT0}"); e(f"s_add_u32 s{sT2}, s{sT2}, {KVZ_OFF}")
    ZLOAD = ";;".join(f"buffer_load_dwordx4 {vr(KVR+4*k,4)}, v{vL16}, {sr(SWS,4)}, s{sT2} offen offset:{1024*k} sc1" for k in range(4))
    g1, g2 = L("R"), L("R")
    mid = f"s_add_u32 s{sT0}, s{sRG}, s{sGI};;s_cmp_ge_u32 s{sT0}, 2;;s_cbranch_scc1 {g1};;" + ";;".join(red) + f";;{g1}:"
    mid2 = f"s_add_u32 s{sT0}, s{sRG}, s{sGI};;s_cmp_lt_u32 s{sT0}, 4;;s_cbranch_scc1 {g2};;" + ZLOAD + f";;{g2}:"
    e(f"s_mov_b32 s{sGI}, 0")
    e.label("K_GQ")
    sq = softcore(QBc)
    n0 = len(sq)
    for pos, it in sorted(((OPT.get("gmid", 25), mid), (OPT.get("gmid2", 45), mid2)), reverse=True): sq.insert(int(n0 * pos / 100), it)
    e.ext(sq)
    e(f"s_cmp_lg_u32 s{sGI}, 0"); e("s_cbranch_scc1 K_GQD")
    st("gk")
    ldspin("K_GQS", vSL + 2, 1)
    e(f"ds_read_b128 {vr(WT,4)}, v{vSL} offset:2048")
    e(f"ds_read_b128 {vr(QBc,4)}, v{vSL}"); e(f"ds_read_b128 {vr(QBc+4,4)}, v{vSL} offset:1024")
    for j in range(16): e(f"v_mov_b32 v{PHS+j}, v{PK+j}")
    e(f"s_mov_b32 s{sGI}, 2")
    ldspin("K_GOS", vG, 2)
    e("s_branch K_GQ")
    e.label("K_GQD")
    st("gq")
    e(f"v_add_u32 v{vS+3}, {YB:#x}, v{vL16}")
    e(f"s_cmp_lt_u32 s{sRG}, 2"); e("s_cbranch_scc1 K_GZS")
    e(f"v_add_u32 v{vS+2}, s{sT3}, v{vS+3}")
    e("s_waitcnt vmcnt(0)")
    e(sentinel(KVR, 16, vS + 4, ZLOAD))
    st("gr")
    for k in range(4): e(f"ds_write_b128 v{vS+2}, {vr(KVR+4*k,4)} offset:{1024*k}")
    e("s_waitcnt lgkmcnt(0)")
    e("s_mov_b64 exec, 1"); e(f"ds_add_u32 v{vG}, v{vG1}"); e("s_mov_b64 exec, -1")
    ldspin("K_GZS", vG, 4)
    for k in range(8): e(f"ds_read_b128 {vr(KVR+4*k,4)}, v{vS+3} offset:{1024*k}")
    st("gv")
    e(f"s_lshl_b32 s{sT2}, s{sRT}, 16"); e(f"s_lshl_b32 s{sT0}, s{sC}, 13"); e(f"s_add_u32 s{sT2}, s{sT2}, s{sT0}")
    e(f"s_lshl_b32 s{sT0}, s{sP}, 12"); e(f"s_add_u32 s{sT2}, s{sT2}, s{sT0}"); e(f"s_add_u32 s{sT2}, s{sT2}, {PQ_OFF}")
    e(f"s_xor_b32 s{sT3}, s{sT2}, 4096")
    fragoff(vFO, sRT)
    e("s_waitcnt lgkmcnt(0)")
    NDG = (64, 80, 128, 144)
    for hd in range(4):
        ph = (PHS if hd < 2 else PK) + 8 * (hd & 1); d = vr(NDG[hd], 16)
        e(f"{MFMA} {d}, {vr(KVR+8*hd,4)}, {vr(ph,4)}, 0"); e(f"{MFMA} {d}, {vr(KVR+8*hd+4,4)}, {vr(ph+4,4)}, {d}")
    e("s_nop 5")
    for hd in range(4):
        d = NDG[hd]
        e(f"v_add_f32 v{vS}, {f2u(1e-6):#x}, v{d+8}"); e(f"v_rcp_f32 v{vS}, v{vS}"); e("s_nop 0")
        for j in range(8): e(f"v_mul_f32 v{d+j}, v{d+j}, v{vS}")
        for j in range(4): e(f"v_cvt_pk_bf16_f32 v{TMP+4*hd+j}, v{d+2*j}, v{d+2*j+1}")
        e(f"buffer_store_dwordx4 {vr(TMP+4*hd,4)}, v{vFO}, {sr(SWS,4)}, s{sT2 if hd < 2 else sT3} offen offset:{2048*(hd&1)} sc1")
    e("s_branch K_GFIN")

    e.label("K_P2")
    e(f"s_setprio {OPT.get('cprio', 0)}")
    st("p2start")
    if OPT.get("trace"): e(f"v_mov_b32 v240, 0;;s_memtime s[84:85];;s_waitcnt lgkmcnt(0);;s_sub_u32 s84, s84, s78;;v_writelane_b32 v240, s84, 0")
    vS2, vXB, vX, vB, OP = 224, 16, 32, 40, 32
    ACC2, WB2 = 48, 112
    SO, SB2 = 64, 68
    XBASE, vFW, vFR2, vT3 = 0, 24, 25, 232
    def fin_loads():
        e("s_load_dwordx4 s[72:75], s[0:1], 64")
        e(f"s_lshr_b32 s{sT1}, s{sC}, 2"); e(f"s_lshl_b32 s{sT2}, s{sRB}, 1"); e(f"s_add_u32 s{sT2}, s{sT2}, s{sT1}")
        cbcalc()
        e(f"s_lshl_b32 s{sXO2}, s{sRG}, 1"); e(f"s_add_u32 s{sXO2}, s{sXO2}, s{sISC}")
        e(f"s_lshl_b32 s{sXO}, s{sT2}, 16"); e(f"s_add_u32 s{sXO}, s{sXO}, s{sT1}"); e(f"s_lshl_b32 s{sT0}, s{sXO2}, 13"); e(f"s_add_u32 s{sXO}, s{sXO}, s{sT0}")
        e(f"buffer_load_dwordx4 {vr(vX,4)}, v{vXO}, {sr(SX,4)}, s{sXO} offen")
        e(f"v_and_b32 v{vS2+5}, 0x70, v{vL16}")
        e("s_waitcnt lgkmcnt(0)")
        srd(e, SB2, 72, 73, 1024)
        srd(e, SO, 74, 75, 2048 * 1024)
        e(f"buffer_load_dwordx4 {vr(vB,4)}, v{vS2+5}, {sr(SB2,4)}, s{sT1} offen")
    def fin_prep():
        vS2 = 26
        for k in range(4):
            d = vXB + 2 * k
            e(f"v_lshlrev_b32 v{vS2}, 16, v{vB+k}"); e(f"v_and_b32 v{vS2+1}, s{sMASK}, v{vB+k}")
            e(f"v_lshlrev_b32 v{d}, 16, v{vX+k}"); e(f"v_and_b32 v{d+1}, s{sMASK}, v{vX+k}")
            e(f"v_add_f32 v{d}, v{d}, v{vS2}"); e(f"v_add_f32 v{d+1}, v{d+1}, v{vS2+1}")
        e(f"v_lshrrev_b32 v{vFR2}, 3, v{vL}"); e(f"v_mul_u32_u24 v{vFR2}, 272, v{vFR2}")
        e(f"v_and_b32 v{vS2}, 7, v{vL}"); e(f"v_lshl_add_u32 v{vFR2}, v{vS2}, 5, v{vFR2}")
        e(f"s_mul_i32 s{sT2}, s{sXO2}, {8*272}"); e(f"s_add_u32 s{sT2}, s{sT2}, {XBASE}")
        e(f"v_add_u32 v{vFR2}, s{sT2}, v{vFR2}")
    LA = OPT.get("la", 5)
    nun = [1] * 36
    ops = [i for i in range(NA) for _ in range(2)] + [i for i in range(NE, NE + NW1) for _ in range(2)]
    NPRE = len(ops)
    state = dict(na=NA, nw=NE + NW1, done=-1)
    FIRST = {}
    QPOLL = f"s_sub_u32 s{sT0}, s{sPF}, {128*1024};;s_mov_b64 exec, 0xff;;buffer_load_dword v{ND}, v{vPA}, {sr(SWS,4)}, s{sT0} offen sc1;;s_mov_b64 exec, -1"
    def tagwait(tag):
        last = max(i for i, o in enumerate(ops) if o == tag)
        e(f"s_waitcnt vmcnt({min(63, len(ops) - 1 - last)})")
    def issue_a(i):
        R = RING + 8 * unit[i]
        if i in FIRST and not OPT.get("x_nopoll"):
            st(f"cb{i}"); tagwait(f"p{i}"); check([(FPOLL, ND, 0xff, FIRST[i])]); st(f"ca{i}")
        e.ext(aload(i)); ops.extend([i] * 2)
        PL = OPT.get("pl", 3)
        if i + PL in FIRST and not OPT.get("x_nopoll"): e(FPOLL); ops.append(f"p{i+PL}")
    def pump(which=3):
        n = 0
        while state["na"] < 36 and which & 1:
            i = state["na"]
            us = set(range(unit[i], unit[i] + nun[i]))
            if any(us & set(range(unit[q], unit[q] + nun[q])) for q in range(state["done"] + 1, i)): break
            if i - state["done"] > (OPT.get("la1", 7) if i < 16 else LA if i < 28 else OPT.get("la2", 5)): break
            issue_a(i); state["na"] += 1; n += 1
        while state["nw"] < 36 and which & 2 and state["nw"] - state["done"] <= OPT.get("lw", 12):
            e.ext(wdma(state["nw"])); ops.extend([state["nw"]] * 2); state["nw"] += 1; n += 1
        return n
    for fi in FIRST:
        if NA <= fi < NA + OPT.get("pl", 3) and not OPT.get("x_nopoll"): e(FPOLL); ops.append(f"p{fi}")
    pump()
    fin_loads()
    ops.extend(["x"] * 2)
    e(f"s_lshl_b32 s{sP0}, s{sT2}, 17"); e(f"s_lshl_b32 s{sT0}, s{sRG}, 14"); e(f"s_add_u32 s{sP0}, s{sP0}, s{sT0}"); e(f"s_add_u32 s{sP0}, s{sP0}, {PQ_OFF}")
    e(f"s_add_u32 s{sKV}, s{sP0}, 65536")
    e(f"v_bfe_u32 v{vS2+6}, v{vL}, 2, 2"); e(f"v_lshrrev_b32 v{vS2+4}, 5, v{vL}"); e(f"v_bfe_u32 v{vS2+3}, v{vL}, 4, 1")
    e(f"v_lshl_add_u32 v{vS2+7}, v{vS2+4}, 2, v{vS2+6}"); e(f"v_lshlrev_b32 v{vTR0}, 7, v{vS2+7}")
    e(f"v_lshl_add_u32 v{vTR0}, v{vS2+3}, 5, v{vTR0}")
    e(f"v_and_b32 v{vS2+7}, 3, v{vL}"); e(f"v_lshl_add_u32 v{vTR0}, v{vS2+7}, 3, v{vTR0}")
    e(f"v_lshrrev_b32 v{vS2+6}, 1, v{vS2+6}"); e(f"v_lshl_add_u32 v{vTR0}, v{vS2+6}, 6, v{vTR0}")
    e(f"v_add_u32 v{vTR0}, s{sLB}, v{vTR0}")
    e(f"v_xor_b32 v{vTR1}, 64, v{vTR0}")
    for k in range(3):
        e(f"v_add_u32 v{vT3+2*k}, {0x10000*k:#x}, v{vTR0}"); e(f"v_add_u32 v{vT3+2*k+1}, {0x10000*k:#x}, v{vTR1}")
    def wbuf(i): return WB2 + 8 * (i & 1) if i < 34 or OPT.get("nt", 2) == 2 else 240 + 8 * (i & 1)
    def wreads(i):
        off = ROW[i % NL] & 0xffff; b = wbuf(i)
        vTR0 = vT3 + 2 * (ROW[i % NL] >> 16); vTR1 = vTR0 + 1
        e(f"ds_read_b64_tr_b16 {vr(b,2)}, v{vTR0} offset:{off}")
        e(f"ds_read_b64_tr_b16 {vr(b+2,2)}, v{vTR0} offset:{off+1024}")
        e(f"ds_read_b64_tr_b16 {vr(b+4,2)}, v{vTR1} offset:{off}")
        e(f"ds_read_b64_tr_b16 {vr(b+6,2)}, v{vTR1} offset:{off+1024}")
    def mm4(buf, act, first=False):
        for nt in range(2):
            for mt in range(2):
                c = vr(ACC2 + 16 * (2 * nt + mt), 16)
                e(f"{MFMA} {c}, {vr(WB2+8*buf+4*nt,4)}, {act[mt]}, {'0' if first else c}")
    tagwait(0)
    st("p2data")
    if OPT.get("trace"): e(f"s_memtime s[84:85];;s_waitcnt lgkmcnt(0);;s_sub_u32 s84, s84, s78;;v_writelane_b32 v240, s84, 1")
    wreads(0)
    cold = []
    def sent(i):
        R = RING + 8 * unit[i]
        chk = [f"v_max3_u32 v{vS2}, v{R}, v{R+1}, v{R+2}", f"v_max3_u32 v{vS2+1}, v{R+3}, v{R+4}, v{R+5}",
               f"v_max3_u32 v{vS2}, v{vS2}, v{R+6}, v{R+7}", f"v_max_u32 v{vS2}, v{vS2}, v{vS2+1}", f"v_cmp_eq_u32 vcc, -1, v{vS2}", "s_nop 0", "s_cmp_lg_u64 vcc, 0"]
        e.ext(chk); e(f"s_cbranch_scc1 K_RT{i}"); e.label(f"K_RB{i}")
        def rl(q):
            Rq = RING + 8 * unit[q]
            o_, b0, b1 = (2048 * order[q], sA0, sA1) if q < 28 else (2048 * (q - 28), sP0, sKV)
            return [f"s_add_u32 s{sT0}, s{b0}, {o_}", f"s_add_u32 s{sT1}, s{b1}, {o_}",
                    f"buffer_load_dwordx4 {vr(Rq,4)}, v{vF0}, {sr(SWS,4)}, s{sT0} offen sc1", f"buffer_load_dwordx4 {vr(Rq+4,4)}, v{vF1}, {sr(SWS,4)}, s{sT1} offen sc1"]
        if OPT.get("rmode", 0) == 0:
            t = [f"K_RT{i}:", f"s_mov_b32 s{sCNT}, 0", f"K_RL{i}:", "s_waitcnt vmcnt(0)", f"s_sleep {OPT.get('rsl', 2)}"]
            for q in range(i, state["na"]): t += rl(q)
            t += [f"s_add_u32 s{sCNT}, s{sCNT}, 1", "s_waitcnt vmcnt(0)", f"s_cmp_ge_u32 s{sCNT}, {SPIN // 8}", f"s_cbranch_scc1 K_RB{i}"] + chk + [f"s_cbranch_scc1 K_RL{i}", f"s_branch K_RB{i}"]
        else:
            t = [f"K_RT{i}:", f"s_mov_b32 s{sCNT}, 0", f"K_RA{i}:", "s_waitcnt vmcnt(0)"]
            for q in range(i, state["na"]): t += rl(q)
            t += ["s_waitcnt vmcnt(0)", f"s_cmp_ge_u32 s{sCNT}, {SPIN // 8}", f"s_cbranch_scc1 K_RB{i}"] + chk + [f"s_cbranch_scc0 K_RB{i}", f"K_RL{i}:", f"s_sleep {OPT.get('rsl', 6)}"]
            t += rl(i) + [f"s_add_u32 s{sCNT}, s{sCNT}, 1", "s_waitcnt vmcnt(0)", f"s_cmp_ge_u32 s{sCNT}, {SPIN // 8}", f"s_cbranch_scc1 K_RA{i}"] + chk + [f"s_cbranch_scc1 K_RL{i}", f"s_branch K_RA{i}"]
        cold.extend(t)
    def mm1(i, t):
        nt, mt = t >> 1, t & 1; c = vr(ACC2 + 16 * t, 16)
        e(f"{MFMA} {c}, {vr(wbuf(i)+4*nt,4)}, {vr(RING+8*unit[i]+4*mt,4)}, {'0' if i == 0 else c}")
    mark = len(e.L)
    fin_prep()
    e(f"v_and_b32 v{vFW}, 31, v{vL}"); e(f"v_mul_u32_u24 v{vFW}, 272, v{vFW}")
    e(f"v_lshrrev_b32 v26, 5, v{vL}"); e(f"v_lshl_add_u32 v{vFW}, v26, 4, v{vFW}")
    e(f"s_mul_i32 s{sT2}, s{sRG}, 17408"); e(f"s_add_u32 s{sT2}, s{sT2}, {XBASE}")
    e(f"v_add_u32 v{vFW}, s{sT2}, v{vFW}")
    fp = [t.strip() for t in e.L[mark:]]; del e.L[mark:]
    NT = OPT.get("nt", 2)
    for i in range(36 - NT):
        e("s_waitcnt lgkmcnt(0)")
        mm1(i, 0)
        state["done"] = i - 1
        pump(1)
        mm1(i, 1)
        tagwait(i + 1)
        wreads(i + 1)
        mm1(i, 2)
        if i + 1 >= 8: sent(i + 1)
        mm1(i, 3)
        pump(2)
        if i >= 12: e.ext(fp[:3]); del fp[:3]
        st(f"s{i}")
        if OPT.get("trace"): e(f"s_memtime s[84:85];;s_waitcnt lgkmcnt(0);;s_sub_u32 s84, s84, s78;;v_writelane_b32 v240, s84, {i+2}")
    assert not fp and state["na"] == 36 and state["nw"] == 36
    for i in range(37 - NT, 36):
        tagwait(i); wreads(i)
    for i in range(37 - NT, 36): sent(i)
    e("s_waitcnt lgkmcnt(0)")
    def twr(t):
        nt, mt = t >> 1, t & 1
        return [f"ds_write_b128 v{vFW}, {vr(ACC2+16*t+4*q,4)} offset:{32*272*mt + 128*nt + 32*q}" for q in range(4)]
    fin = []
    for t in range(4):
        nt, mt = t >> 1, t & 1; c = vr(ACC2 + 16 * t, 16)
        fin += [f"{MFMA} {c}, {vr(wbuf(i)+4*nt,4)}, {vr(RING+8*unit[i]+4*mt,4)}, {c}" for i in range(36 - NT, 36)]
        if t == 1: fin.append("s_barrier")
        if t >= 1: fin += [f"@NEED {12}", "@MARK"] + twr(t - 1)
        else: fin.append("@MARK")
    fin += ["@NEED 12"] + twr(3)
    e.ext(fin)
    st("s35")
    e("s_waitcnt lgkmcnt(0)")
    if OPT.get("trace"):
        e(f"s_memtime s[84:85];;s_waitcnt lgkmcnt(0);;s_sub_u32 s84, s84, s78;;v_writelane_b32 v240, s84, 36")
        e(f"s_lshl_b32 s84, s2, 2;;s_add_u32 s84, s84, s{sRG};;s_lshl_b32 s84, s84, 8;;s_add_u32 s84, s84, {210<<20};;v_lshlrev_b32 v241, 2, v{vL}")
        e(f"buffer_store_dword v240, v241, {sr(SWS,4)}, s84 offen")
    e("s_branch K_LAST")
    e.label("K_GFIN")
    st("gend")
    e("s_setprio 0")
    e(f"v_lshrrev_b32 v{vXO}, 3, v{vL}"); e(f"v_lshlrev_b32 v{vXO}, 10, v{vXO}")
    e(f"v_and_b32 v{vS2}, 7, v{vL}"); e(f"v_lshl_add_u32 v{vXO}, v{vS2}, 4, v{vXO}")
    fin_loads()
    e("s_waitcnt vmcnt(0)")
    fin_prep()
    e("s_barrier")
    e.label("K_LAST")
    e("s_barrier")
    for p in range(4):
        for hh in range(2):
            e(f"ds_read_b128 {vr(ACC2+8*p+4*hh,4)}, v{vFR2} offset:{17408*p + 16*hh}")
    for p in range(4):
        e(f"s_waitcnt lgkmcnt({6 - 2*p})")
        for j in range(0, 8, 2): e(f"v_pk_add_f32 {vr(vXB+j,2)}, {vr(vXB+j,2)}, {vr(ACC2+8*p+j,2)}")
    for j in range(4): e(f"v_cvt_pk_bf16_f32 v{OP+j}, v{vXB+2*j}, v{vXB+2*j+1}")
    e(f"buffer_store_dwordx4 {vr(OP,4)}, v{vXO}, {sr(SO,4)}, s{sXO} offen {OPT.get('st2', '').replace('_', ' ')}")
    e.label("K_FIN")
    if OPT.get("x_hold"):
        e.label("K_HOLD")
        e("s_sleep 4"); e("s_memrealtime s[82:83]"); e("s_waitcnt lgkmcnt(0)")
        e("s_sub_u32 s82, s82, s80"); e(f"s_cmp_lt_u32 s82, {OPT['x_hold']}")
        e(f"s_cselect_b32 s82, s{sISC}, 0"); e("s_cmp_lg_u32 s82, 0"); e("s_cbranch_scc1 K_HOLD")
    if OPT.get("cnt"): e("s_add_u32 s90, s91, s78")
    if OPT["stamps"] and not OPT.get("phys"):
        e(f"s_xor_b32 s{sW}, s{sISC}, 1"); e(f"s_lshl_b32 s{sW}, s{sW}, 2"); e(f"s_add_u32 s{sW}, s{sW}, s{sRG}")
    stamp_end(e, 0, SWS, "K_END", sW, 0)
    e.label("K_END")
    e("s_endpgm")
    e.ext(cold)
    return e.text()

HEADER = """; out = x + hedgehog_linear_attention(LN(x)) + gelu_ffn(LN(x));  one launch, 256 workgroups x 8 waves, one per CU.
; Phase 1: 128 QKV workgroups (128 rows x 4 heads) and 128 FFN workgroups (128 rows x 224 hidden columns).  Raw x fragments stay in
;   registers, weight tiles stream through LDS (LDS-DMA + transposing reads); LayerNorm is applied exactly as a rank-1 correction
;   (row mean x column sum, one extra MFMA) and a per-row scale folded into the epilogues (GELU / true-max softmaxes).
; Phase 2: every workgroup computes a 64x64 tile of [h | o] @ [w2 ; wo] (+ x + b2), K split over four waves, while the other four
; Hand-offs through d_ws use sc1 stores/loads only: per-wave flag lines (reset at start, ordered by a counter in d_debug) and
;   slots pre-filled with an all-ones mark that the reader re-reads until the mark is gone.  Every spin is bounded.
"""
def main():
    out = HEADER
    out += "; @launch grid=(256,1,1) block=(512,1,1) lds=163840\n"
    out += '.amdgcn_target "amdgcn-amd-amdhsa--gfx950"\n.text\n'
    out += f".globl {KN}\n.p2align 8\n.type {KN},@function\n{KN}:\n" + gen()
    out += ".p2align 8\n.fill 1536, 4, 0xbf800000\n"
    out += f""".section .rodata,"a"
.p2align 6
.amdhsa_kernel {KN}
  .amdhsa_next_free_vgpr 256
  .amdhsa_next_free_sgpr 102
  .amdhsa_accum_offset 256
  .amdhsa_group_segment_fixed_size 0
  .amdhsa_kernarg_size 96
  .amdhsa_user_sgpr_count 2
  .amdhsa_user_sgpr_kernarg_segment_ptr 1
  .amdhsa_system_sgpr_workgroup_id_x 1
.end_amdhsa_kernel
"""
    open(sys.argv[1], "w").write(out)
main()
```

```python
import sys, math, struct

OPT = dict(stamps=0, st1="sc1", k1only=0, k2only=0, pfcode=1, pfw2=3)
for a in sys.argv[2:]:
    k, v = a.split("=")
    OPT[k] = int(v) if v.lstrip("-").isdigit() else v

H_OFF, PQ_OFF, KVP_OFF, KVZ_OFF, FLG_OFF = 0, 0x1000000, 0x1400000, 0x1600000, 0x1610000
STAMP_OFF = 200 << 20
NSTAMP = 8
LOOPST = OPT.get('loopst', -1)

def f2u(x): return struct.unpack("<I", struct.pack("<f", x))[0]

class Asm:
    def __init__(self): self.L = []
    def __call__(self, s):
        for t in s.split(";;"):
            t = t.strip()
            self.L.append(t if t.endswith(":") else "    " + t)
    def label(self, s): self.L.append(s + ":")
    def ext(self, lst):
        cnt = 0
        for s in lst:
            if s == "@MARK": cnt = 0; continue
            if s == "@PAD": continue
            if s.startswith("@NEED"):
                d = int(s.split()[1]) - cnt
                if d > 0: self(f"s_nop {d-1}")
                continue
            self(s)
            if "s_cbranch" in s: cnt += 1
            else: cnt += sum(1 for t in s.split(";;") if not t.strip().endswith(":"))
    def text(self): return "\n".join(self.L) + "\n"

class Lst(list):
    def __call__(self, s): self.append(s)

def vr(b, n=1): return f"v{b}" if n == 1 else f"v[{b}:{b+n-1}]"
def ar(b, n=1): return f"a{b}" if n == 1 else f"a[{b}:{b+n-1}]"
def sr(b, n=1): return f"s{b}" if n == 1 else f"s[{b}:{b+n-1}]"
MFMA = "v_mfma_f32_32x32x16_bf16"

def cost(ins):
    c = 0
    for t in ins.split(";;"):
        op = t.split()[0]
        if op == "@PAD": c += 8; continue
        if op.endswith(":") or op.startswith("@"): continue
        if "s_cbranch" in ins and op.startswith(("s_", "v_")): c += 0.5; continue
        if op.startswith(("v_exp", "v_rcp", "v_sqrt", "v_log", "v_mfma")): c += 8
        elif op == "s_nop": c += 2 * (int(t.split()[1]) + 1)
        elif op.startswith("s_"): c += 1
        elif op.startswith("buffer_"): c += 8
        else: c += 4.5
    return c

def interleave(groups, fill, first=0, last=None):
    last = len(groups) - 1 if last is None else last
    tot = sum(cost(i) for i in fill); n = last - first + 1
    out = []; k = 0; acc = 0.0
    for gi, g in enumerate(groups):
        out += g
        if first <= gi <= last:
            tgt = tot * (gi - first + 1) / n
            while k < len(fill) and (acc + cost(fill[k]) / 2 <= tgt or gi == last):
                out.append(fill[k]); acc += cost(fill[k]); k += 1
    assert k == len(fill)
    return out

def merge(a, b, frac=1.0):
    out = []; n = max(1, int(len(a) * frac)); k = 0
    for i, x in enumerate(a):
        while k < len(b) and k * n <= i * len(b) and i < n:
            out.append(b[k]); k += 1
        out.append(x)
    out += b[k:]
    return out

def srd(e, d, lo, hi, size):
    e(f"s_mov_b32 s{d}, s{lo}"); e(f"s_mov_b32 s{d+1}, s{hi}")
    e(f"s_mov_b32 s{d+2}, {size:#x}"); e(f"s_mov_b32 s{d+3}, 0x00020000")

def stamp(e, idx, base=80):
    if OPT["stamps"]:
        e(f"s_memtime s[{base+2*idx}:{base+2*idx+1}]")

def stamp_begin(e, base=80):
    if OPT["stamps"]:
        e(f"s_memrealtime s[{base}:{base+1}]")
        e(f"s_memtime s[{base-2}:{base-1}]")
        for i in range(2, NSTAMP):
            e(f"s_mov_b64 s[{base+2*i}:{base+2*i+1}], 0")

def stamp_end(e, kidx, wssrd, lbl, wave_sgpr, wave_sel, base=80):
    if not OPT["stamps"]: return
    e(f"s_memtime s[{base+2*(NSTAMP-2)}:{base+2*(NSTAMP-2)+1}]")
    e("s_waitcnt vmcnt(0)")
    e(f"s_memrealtime s[{base+2}:{base+3}]")
    e(f"s_memtime s[{base+2*(NSTAMP-1)}:{base+2*(NSTAMP-1)+1}]")
    e("s_waitcnt lgkmcnt(0)")
    for i in range(2, NSTAMP):
        e(f"s_sub_u32 s{base+2*i}, s{base+2*i}, s{base if (OPT.get('rt') and i < 6) else base-2}")
        e(f"s_mov_b32 s{base+2*i+1}, 0")
    e(f"s_lshl_b32 s{base-2}, s2, 3"); e(f"s_add_u32 s{base-2}, s{base-2}, s{wave_sgpr}")
    e(f"s_mul_i32 s{base-2}, s{base-2}, {8*NSTAMP}")
    e(f"s_add_u32 s{base-2}, s{base-2}, {STAMP_OFF + kidx*256*8*8*NSTAMP}")
    e("s_mov_b64 exec, 1")
    e("v_mov_b32 v1, 0")
    for i in range(NSTAMP // 2):
        for j in range(4):
            e(f"v_mov_b32 v{4+j}, s{base+4*i+j}")
        e(f"buffer_store_dwordx4 v[4:7], v1, {sr(wssrd,4)}, s{base-2} offen offset:{16*i}")
        e("s_nop 1")
    e("s_waitcnt vmcnt(0)")

KN = "parallel_sum__linear_kernel_hedgehog__dense_activation_gelu__prompt_kernel"
SPIN = OPT.get("spin", 20000)
CNT_OFF = FLG_OFF + 2048 * 128

def gen():
    e = Asm()
    M16 = "v_mfma_f32_16x16x32_bf16"
    SDBG, SX, SW, SWS, SAUX = 4, 8, 12, 16, 20
    sW, sRG, sP, sC, sRB, sTYPE = 24, 25, 26, 27, 28, 29
    sPITCH, sRT, sIDX, sROT = 30, 31, 32, 33
    sONES, sLO, sHI, sMASK = 34, 35, 36, 37
    sT0, sT1, sT2, sT3, sT4 = 38, 39, 40, 41, 42
    sXB = 43
    sCOL = 44
    sSLOT, sIT, sOUT, sAUXO, sP16 = 48, 49, 50, 51, 52
    sDA, sDB, sMA, sROWO, sW4K, sST = 53, 54, 55, 56, 57, 61
    sLT16, sFLG = 58, 60
    sJG, sISC, sWB, sLEV = 76, 77, 100, 101
    vDUM, vL, vL16, vDMA, vTR = 0, 1, 2, 3, 4
    vS, vCSW, vCSR, SELC, CS, AUG, vC0, vC1 = 8, 14, 15, 16, 20, 24, 30, 31
    TMP, PK, ACC, EACC, WB, vAUX, XF = 32, 48, 64, 80, 96, 116, 128
    NWB = 5
    YB, ZB = 0x10000, 0x20000
    STAT, CSX, RVO, GSY, ZSC = 0x20000, 0x20800, 0x21000, 0x21400, 0x21800
    vFR, vXD, RS, vQ, vAL = TMP, TMP + 8, TMP + 12, TMP + 16, TMP + 18
    STF = "" if OPT.get("x_pst") else "sc1"
    lab = [0]
    def L(p):
        lab[0] += 1
        return f"{p}{lab[0]}"
    SP = str(OPT.get("sp", "")).split(",")
    def st(name, lst=None):
        if OPT["stamps"] and name in SP:
            i = 2 + SP.index(name)
            t = f"{'s_memrealtime' if OPT.get('rt') else 's_memtime'} s[{80+2*i}:{81+2*i}];;s_waitcnt lgkmcnt(0)"
            (e if lst is None else lst.append)(t)
    e("s_cmp_ge_u32 s2, 256")
    e("s_cbranch_scc1 K_END")
    stamp_begin(e)
    if OPT.get("x_hold"): e("s_memrealtime s[80:81]")
    if OPT.get("cnt"): e("s_mov_b32 s91, 1")
    e("s_load_dwordx4 s[64:67], s[0:1], 0")
    e("s_load_dwordx2 s[68:69], s[0:1], 16")
    e("s_load_dwordx4 s[72:75], s[0:1], 40")
    e("s_load_dwordx2 s[70:71], s[0:1], 88")
    e("s_load_dwordx2 s[96:97], s[0:1], 56")
    e("s_load_dwordx2 s[98:99], s[0:1], 24")
    e(f"s_load_dwordx2 {sr(SDBG,2)}, s[0:1], 80")
    e(f"v_lshrrev_b32 v{vS}, 6, v0")
    e(f"v_and_b32 v{vL}, 63, v0")
    e(f"v_readfirstlane_b32 s{sW}, v{vS}")
    e(f"s_lshr_b32 s{sIDX}, s2, 3")
    if OPT["pfcode"]:
        e(f"s_cmp_lg_u32 s{sW}, 7"); e("s_cbranch_scc1 K_NOPF")
        e("s_getpc_b64 s[62:63]")
        e("s_and_b32 s62, s62, 0xffffff00")
        e(f"s_mul_i32 s{sT1}, s{sIDX}, 1024")
        e(f"v_lshl_add_u32 v{vS+3}, v{vL}, 7, s{sT1}")
        e("s_mov_b64 exec, 0xff")
        e(f"global_load_dword v{vDUM}, v{vS+3}, s[62:63]")
        e("s_mov_b64 exec, -1")
        e.label("K_NOPF")
    if OPT.get("x_skew"):
        e("s_and_b32 s38, s2, 7"); e("s_cmp_lg_u32 s38, 5"); e("s_cbranch_scc1 K_NSK"); e(f"s_sleep {OPT['x_skew']}"); e.label("K_NSK")
    e(f"s_and_b32 s{sT0}, s2, 7")
    e(f"s_lshr_b32 s{sRB}, s{sT0}, 1"); e(f"s_lshl_b32 s{sRB}, s{sRB}, 2")
    e(f"s_and_b32 s{sT2}, s{sIDX}, 3"); e(f"s_add_u32 s{sRB}, s{sRB}, s{sT2}")
    e(f"s_lshr_b32 s{sT1}, s{sIDX}, 2")
    e(f"s_add_u32 s{sROT}, s{sT1}, s{sT2}"); e(f"s_and_b32 s{sROT}, s{sROT}, {OPT.get('rotm', 3)}")
    e(f"s_and_b32 s{sTYPE}, s{sT1}, 1")
    e(f"s_lshr_b32 s{sT1}, s{sT1}, 1")
    e(f"s_and_b32 s{sC}, s{sT0}, 1"); e(f"s_lshl_b32 s{sC}, s{sC}, 2"); e(f"s_add_u32 s{sC}, s{sC}, s{sT1}")
    e(f"s_and_b32 s{sRG}, s{sW}, 3"); e(f"s_lshr_b32 s{sP}, s{sW}, 2")
    e(f"v_lshrrev_b32 v{vS}, 4, v{vL}"); e(f"v_and_b32 v{vS+1}, 15, v{vL}")
    e(f"v_xor_b32 v{vS+2}, v{vS}, v{vS+1}"); e(f"v_lshlrev_b32 v{vS+2}, 4, v{vS+2}")
    e(f"v_lshl_add_u32 v{vXD}, v{vS}, 10, v{vS+2}")
    for i in range(1, 4): e(f"v_xor_b32 v{vXD+i}, {4096*i + 64*i}, v{vXD}")
    e(f"s_lshl_b32 s{sXB}, s{sRB}, 17"); e(f"s_lshl_b32 s{sT0}, s{sW}, 14"); e(f"s_add_u32 s{sXB}, s{sXB}, s{sT0}")
    e(f"s_lshl_b32 s{sW4K}, s{sW}, 12")
    e(f"v_and_b32 v{vS+3}, 31, v{vL}")
    e(f"v_lshrrev_b32 v{vS+4}, 5, v{vL}")
    e(f"s_cmp_eq_u32 s{sTYPE}, 0")
    e("s_cbranch_scc1 K_SETQ")
    e(f"s_movk_i32 s{sPITCH}, 3584")
    e(f"s_mul_i32 s{sAUXO}, s{sC}, 448")
    e(f"s_and_b32 s{sT1}, s{sC}, 1")
    e(f"s_lshl_b32 s{sT2}, s{sT1}, 6"); e(f"s_add_u32 s{sCOL}, s{sAUXO}, s{sT2}")
    e(f"s_add_u32 s{sCOL+1}, s{sCOL}, 128"); e(f"s_add_u32 s{sCOL+2}, s{sCOL}, 256")
    e(f"s_lshl_b32 s{sT2}, s{sT1}, 9"); e(f"s_add_u32 s{sCOL+3}, s{sCOL}, 384"); e(f"s_sub_u32 s{sCOL+3}, s{sCOL+3}, s{sT2}")
    e(f"s_lshl_b32 s{sT2}, s{sP}, 6")
    e(f"v_lshl_add_u32 v{vAL}, v{vS+3}, 1, s{sT2}")
    e(f"s_mov_b32 s{SW+2}, {512*3584}"); e(f"s_movk_i32 s{SAUX+2}, 3584")
    e("s_branch K_SETD")
    e.label("K_SETQ")
    e(f"s_movk_i32 s{sPITCH}, 3072")
    e(f"s_lshl_b32 s{sCOL+2}, s{sC}, 7"); e(f"s_add_u32 s{sCOL}, s{sCOL+2}, 1024"); e(f"s_add_u32 s{sCOL+1}, s{sCOL+2}, 2048")
    e(f"s_lshl_b32 s{sT1}, s{sP}, 10"); e(f"s_lshl_b32 s{sAUXO}, s{sC}, 11"); e(f"s_add_u32 s{sT1}, s{sT1}, s{sAUXO}")
    e(f"v_lshl_add_u32 v{vAL}, v{vL}, 4, s{sT1}")
    e(f"s_mov_b32 s{SW+2}, {512*3072}"); e(f"s_movk_i32 s{SAUX+2}, {32*512}")
    e.label("K_SETD")
    e(f"s_mov_b32 s{SW+3}, 0x00020000"); e(f"s_mov_b32 s{SAUX+3}, 0x00020000")
    e(f"v_lshrrev_b32 v{vDMA}, 2, v{vL}"); e(f"v_mul_lo_u32 v{vDMA}, v{vDMA}, s{sPITCH}")
    e(f"v_and_b32 v{vS+5}, 3, v{vL}"); e(f"v_lshl_add_u32 v{vDMA}, v{vS+5}, 4, v{vDMA}")
    e(f"s_lshl_b32 s{sP16}, s{sPITCH}, 4")
    e(f"s_mul_i32 s{sWB}, s{sP16}, s{sW}"); e(f"s_add_u32 s{sWB}, s{sWB}, s{sCOL}")
    e(f"s_cmp_eq_u32 s{sTYPE}, 0")
    e("s_waitcnt lgkmcnt(0)")
    e(f"s_cselect_b64 {sr(SW,2)}, s[66:67], s[72:73]"); e(f"s_cselect_b64 {sr(SAUX,2)}, s[68:69], s[74:75]")
    srd(e, SX, 64, 65, 2048 * 1024)
    ROP = "s_xor_b32" if OPT.get("rxor", 0) else "s_add_u32"
    XBUF = (ZB, YB, YB + 0x8000, ZB)
    def sset(j):
        l = Lst()
        l(f"{ROP} s{sT0}, s{sROT}, {j};;s_and_b32 s{sT0}, s{sT0}, 3;;s_lshl_b32 s{sT1}, s{sT0}, 8;;s_add_u32 s{sT1}, s{sT1}, s{sXB};;"
          f"s_lshl_b32 s{sT0}, s{sT0}, 3;;s_mul_i32 s{sT0}, s{sT0}, s{sP16};;s_add_u32 s{sT0}, s{sT0}, s{sWB};;s_add_u32 s{sT2}, s{sT0}, 64;;s_lshr_b32 s{sT3}, s{sW4K}, 2")
        for i in range(4):
            l(f"s_add_u32 m0, s{sW4K}, {XBUF[j] + 1024*i};;s_nop 0;;buffer_load_dwordx4 v{vXD+i}, {sr(SX,4)}, s{sT1} offen lds")
        wo = 0x8000 * (j >> 1) + 8192 * (j & 1)
        l(f"s_add_u32 m0, s{sT3}, {wo};;s_nop 0;;buffer_load_dwordx4 v{vDMA}, {sr(SW,4)}, s{sT0} offen lds")
        l(f"s_add_u32 m0, s{sT3}, {wo + 0x4000};;s_nop 0;;buffer_load_dwordx4 v{vDMA}, {sr(SW,4)}, s{sT2} offen lds")
        return l
    wt = (f"s_lshr_b32 s{sT0}, s{sW}, 1;;s_cmp_lg_u32 s{sT0}, 1;;s_cbranch_scc1 K_NW;;s_cmp_eq_u32 s{sW}, 2;;"
          f"s_cselect_b64 s[92:93], s[72:73], s[66:67];;s_mov_b32 s{sT0}, {512*3584};;s_cselect_b32 s94, s{sT0}, {512*3072};;s_mov_b32 s95, 0x00020000;;"
          f"s_movk_i32 s{sT0}, 7168;;s_cselect_b32 s{sT0}, s{sT0}, 6144;;s_cselect_b32 s{sT1}, 56, 48;;s_mul_i32 s{sT0}, s{sT0}, s2;;"
          f"v_lshlrev_b32 v{vDUM}, 7, v{vL};;s_bfm_b64 exec, s{sT1}, 0;;buffer_load_dword v{vDUM}, v{vDUM}, s[92:95], s{sT0} offen;;s_mov_b64 exec, -1;;K_NW:")
    WTA = OPT.get("wta", 2)
    xt = (f"s_cmp_lg_u32 s{sW}, 1;;s_cbranch_scc1 K_NX;;s_lshl_b32 s{sT0}, s2, 13;;v_lshlrev_b32 v{vDUM}, 7, v{vL};;"
          f"buffer_load_dword v{vDUM}, v{vDUM}, {sr(SX,4)}, s{sT0} offen;;K_NX:")
    st("ka")
    if OPT.get("xta", 0) == 1: e(xt)
    if WTA == -2: e(wt)
    e.ext(sset(0))
    if OPT.get("xta", 0) == 2: e(xt)
    if WTA == -1: e(wt)
    st("i0")
    srd(e, SWS, 70, 71, 0x10000000)
    e(f"s_movk_i32 s{SDBG+2}, 256"); e(f"s_mov_b32 s{SDBG+3}, 0x00020000")
    e(f"s_lshl_b32 s{sRT}, s{sRB}, 2"); e(f"s_add_u32 s{sRT}, s{sRT}, s{sRG}")
    e(f"s_lshl_b32 s{sFLG}, s{sTYPE}, 4"); e(f"s_add_u32 s{sFLG}, s{sFLG}, s{sRB}"); e(f"s_lshl_b32 s{sFLG}, s{sFLG}, 3"); e(f"s_add_u32 s{sFLG}, s{sFLG}, s{sC}")
    e(f"s_lshl_b32 s{sFLG}, s{sFLG}, 10"); e(f"s_add_u32 s{sFLG}, s{sFLG}, {FLG_OFF}")
    e(f"s_and_b32 s{sISC}, s{sC}, 1"); e(f"s_xor_b32 s{sISC}, s{sISC}, s{sP}")
    e(f"v_lshlrev_b32 v{vL16}, 4, v{vL}")
    e(f"v_mov_b32 v{AUG+4}, 0"); e(f"v_mov_b32 v{AUG+5}, 0")
    e(f"s_lshl_b32 s{sIT}, s{sTYPE}, 3"); e(f"s_add_u32 s{sIT}, s{sIT}, s{sW}")
    e(f"s_cmp_lg_u32 s{sIT}, 15"); e("s_cbranch_scc1 K_NZ")
    e(f"v_lshlrev_b32 v{vS+2}, 3, v{vL}")
    e(f"buffer_store_dwordx2 {vr(AUG+4,2)}, v{vS+2}, {sr(SWS,4)}, s{sFLG} offen sc1")
    e(f"buffer_store_dwordx2 {vr(AUG+4,2)}, v{vS+2}, {sr(SWS,4)}, s{sFLG} offen offset:512 sc1")
    e.label("K_NZ")
    e(f"s_lshl_b32 s{sT0}, s{sW}, 7"); e(f"s_add_u32 s{sFLG}, s{sFLG}, s{sT0}")
    e(f"s_lshl_b32 s{sT0}, s{sROT}, 2"); e(f"{ROP} s{sT0}, s{sT0}, s{sW}"); e(f"s_and_b32 s{sT1}, s{sT0}, 15"); e(f"s_lshl_b32 s{sT1}, s{sT1}, 1")
    e(f"s_mul_i32 s{sROWO}, s{sT1}, s{sP16}")
    e(f"s_add_u32 s{sT0}, s{sT0}, 8"); e(f"s_and_b32 s{sT1}, s{sT0}, 15"); e(f"s_lshl_b32 s{sT1}, s{sT1}, 1")
    e(f"s_mul_i32 s{sJG}, s{sT1}, s{sP16}"); e(f"s_sub_u32 s{sJG}, s{sJG}, s{sROWO}"); e(f"s_sub_u32 s{sJG}, s{sJG}, s{sP16}")
    e(f"s_lshl_b32 s{sT4}, s{sW}, 11")
    sLB0 = sT4
    vFO, vF0, vF1 = vAUX + 11, 238, 239
    def fragoff(vd, srt):
        if OPT.get("x_flat"):
            e(f"s_and_b32 s{sT0}, s{srt}, 1"); e(f"s_lshl_b32 s{sT0}, s{sT0}, 10"); e(f"v_xor_b32 v{vd}, s{sT0}, v{vL16}"); return
        e(f"s_and_b32 s{sT0}, s{srt}, 7"); e(f"s_cmp_eq_u32 s{sT0}, 3"); e(f"s_cselect_b32 s{sT0}, 7, s{sT0}")
        e(f"s_lshl_b32 s{sT0}, s{sT0}, 7"); e(f"s_add_u32 s{sT0}, s{sT0}, 640")
        e("s_mov_b32 s62, 0xff000000"); e("s_mov_b32 s63, 0")
        e(f"v_mov_b32 v{vd}, s{sT0}"); e(f"v_cndmask_b32 v{vd}, 0, v{vd}, s[62:63]"); e(f"v_add_u32 v{vd}, v{vd}, v{vL16}")
        e(f"s_and_b32 s{sT0}, s{srt}, 1"); e(f"s_lshl_b32 s{sT0}, s{sT0}, 10"); e(f"v_xor_b32 v{vd}, s{sT0}, v{vd}")
    fragoff(vFO, sRT)
    def guard(t):
        g = L("G"); return f"s_cbranch_vccz {g};;{t};;{g}:"
    def dma8(gd=False):
        l = []
        for i in range(4):
            jg, jl = (f"s{sJG}", "0x7c00") if i == 1 else (f"s{sP16}", "1024")
            l += [f"s_mov_b32 m0, s{sMA};;s_add_u32 s{sDB}, s{sDA}, 64;;buffer_load_dwordx4 v{vDMA}, {sr(SW,4)}, s{sDA} offen lds",
                  f"s_add_u32 m0, s{sMA}, 0x4000;;s_add_u32 s{sDA}, s{sDA}, {jg};;buffer_load_dwordx4 v{vDMA}, {sr(SW,4)}, s{sDB} offen lds;;s_add_u32 s{sMA}, s{sMA}, {jl}"]
        if not gd: return l
        l = []
        for i in range(4):
            jg, jl = (f"s{sJG}", "0x7c00") if i == 1 else (f"s{sP16}", "1024")
            g = L("G")
            l += [guard(f"s_mov_b32 m0, s{sMA};;s_add_u32 s{sDB}, s{sDA}, 64;;buffer_load_dwordx4 v{vDMA}, {sr(SW,4)}, s{sDA} offen lds"),
                  f"s_add_u32 m0, s{sMA}, 0x4000;;s_add_u32 s{sDA}, s{sDA}, {jg};;s_add_u32 s{sMA}, s{sMA}, {jl};;s_cmp_lg_u32 s{sLEV}, 0;;s_cbranch_scc1 {g};;"
                  f"buffer_load_dwordx4 v{vDMA}, {sr(SW,4)}, s{sDB} offen lds;;{g}:"]
        return l
    e(f"s_mov_b32 s{sONES}, 0x3f803f80"); e(f"s_mov_b32 s{sLO}, 0x00003f80"); e(f"s_mov_b32 s{sHI}, 0x3f800000")
    e(f"s_mov_b32 s{sMASK}, 0xffff0000")
    e(f"v_lshlrev_b32 v{vS+2}, 9, v{vS+4}")
    e(f"v_bfe_u32 v{vS}, v{vL}, 2, 2"); e(f"v_lshl_add_u32 v{vS+2}, v{vS}, 6, v{vS+2}")
    e(f"v_bfe_u32 v{vCSW}, v{vL}, 4, 1"); e(f"v_lshl_add_u32 v{vS+2}, v{vCSW}, 5, v{vS+2}")
    e(f"v_lshl_add_u32 v{vS+2}, v{vS+5}, 3, v{vS+2}")
    e(f"s_xor_b32 s{sT3}, s{sRG}, s{sP}"); e(f"s_lshl_b32 s{sT1}, s{sP}, 14")
    for k in range(4):
        e(f"s_xor_b32 s{sT0}, s{sT3}, {k}"); e(f"s_lshl_b32 s{sT0}, s{sT0}, 10"); e(f"s_add_u32 s{sT0}, s{sT0}, s{sT1}")
        e(f"v_add_u32 v{vTR+k}, s{sT0}, v{vS+2}")
    e(f"v_and_b32 v{vS}, 1, v{vS}"); e(f"v_cmp_eq_u32 vcc, v{vS}, v{vCSW}"); e(f"v_mov_b32 v{vS}, s{sONES}")
    e(f"v_cmp_gt_u32 {sr(sLT16,2)}, 16, v{vS+3}")
    for j in range(4): e(f"v_cndmask_b32 v{SELC+j}, 0, v{vS}, vcc")
    e(f"v_xor_b32 v{vS}, v{vS+4}, v{vS+1}"); e(f"v_lshlrev_b32 v{vS}, 4, v{vS}")
    e(f"v_lshl_add_u32 v{vS}, v{vS+3}, 8, v{vS}")
    e(f"s_lshl_b32 s{sT0}, s{sT3}, 5"); e(f"v_xor_b32 v{vS}, s{sT0}, v{vS}")
    e(f"s_lshl_b32 s{sT0}, s{sRG}, 13"); e(f"s_add_u32 s{sT0}, s{sT0}, {YB + 0x8000}"); e(f"v_add_u32 v{vFR}, s{sT0}, v{vS}")
    for s in range(1, 8): e(f"v_xor_b32 v{vFR+s}, {32*s}, v{vFR}")
    e(f"s_lshl_b32 s{sT0}, s{sP}, 9"); e(f"s_add_u32 s{sT0}, s{sT0}, {CSX}")
    e(f"v_lshl_add_u32 v{vCSR}, v{vS+3}, 4, s{sT0}")
    e(f"s_lshl_b32 s{sT0}, s{sRG}, 2"); e(f"v_add_u32 v{vCSW}, s{sT0}, v{vCSR}")
    e(f"v_mov_b32 v{vQ}, 0"); e(f"v_mov_b32 v{vQ+1}, 0")
    def auxl(lbl):
        t = f"s_cmp_eq_u32 s{sTYPE}, 0;;s_cbranch_scc1 {lbl}Q"
        for i in range(4): t += f";;buffer_load_ushort v{vAUX+i}, v{vAL}, {sr(SAUX,4)}, s{sCOL+i} offen"
        t += f";;s_branch {lbl}D;;{lbl}Q:"
        t += f";;s_lshl_b32 m0, s{sW}, 10;;s_nop 0;;buffer_load_dwordx4 v{vAL}, {sr(SAUX,4)}, 0 offen lds"
        t += f";;{lbl}D:"
        return t
    if OPT.get("x_p2only"):
        e("s_waitcnt vmcnt(0)"); e("s_barrier")
        e(f"s_cmp_eq_u32 s{sISC}, 0"); e("s_cbranch_scc1 K_FIN")
        e("s_branch K_FTAIL")
    ROW = [YB + 0x4000, YB + 0x6000, YB + 0xC000, YB + 0xE000, 0x22000, 0x24000, 0x26000] + [0x2000 * k for k in range(6)]
    XR = OPT.get("xr", 1)
    NL, NE, NW1 = len(ROW), 7, OPT.get("nw1", 4)
    NE2 = NE + 4 * XR; NW1 = min(NW1, NL - NE2)
    sE1, sE2, SWE = 68, 69, 64
    sA0, sA1, sWK, sLB, sP0, sP1, sKV, sWO_, sXO, sXO2, sPF, sCNT = 30, 33, 43, 34, 51, 52, 53, 54, 55, 56, 57, 3
    SW2, SWO = SW, SAUX
    vTR0, vTR1, vXO, vPA = 4, 5, 6, vS + 2
    ND = vS + 3
    sEA = sWB
    order = [0, 1, 2, 3, 16, 17, 18, 19, 4, 5, 6, 7, 20, 21, 22, 23, 8, 9, 10, 11, 24, 25, 26, 27, 12, 13, 14, 15]
    def wdma(i):
        lo = ROW[i % NL]
        S, base, off = (SW2, sWK, order[i] * 16384) if i < 28 else (SWO, sWO_, (i - 28) * 16384)
        return [f"s_add_u32 m0, s{sLB}, {lo + 1024*k};;s_add_u32 s{sT0}, s{base}, {off + 8192*k};;buffer_load_dwordx4 v{vDMA}, {sr(S,4)}, s{sT0} offen lds" for k in range(2)]
    def erow(i, vd):
        return f"s_add_u32 m0, s{sE1}, {ROW[i]};;s_add_u32 s{sT0}, s{sE2}, {order[i]*16384};;buffer_load_dwordx4 v{vd}, {sr(SWE,4)}, s{sT0} offen lds"
    def dmalane(vd, t0, t1):
        e(f"v_lshrrev_b32 v{vd}, 3, v{vL}"); e(f"v_lshlrev_b32 v{vd}, 10, v{vd}")
        e(f"v_and_b32 v{t0}, 7, v{vL}"); e(f"v_bfe_u32 v{t1}, v{vL}, 4, 1"); e(f"v_lshlrev_b32 v{t1}, 2, v{t1}")
        e(f"v_xor_b32 v{t1}, v{t0}, v{t1}"); e(f"v_lshl_add_u32 v{vd}, v{t1}, 4, v{vd}")
    def cbcalc():
        if OPT.get("cbmap", 0) == 0:
            e(f"s_lshr_b32 s{sT1}, s{sIDX}, 2"); e(f"s_lshl_b32 s{sT1}, s{sT1}, 7")
        else:
            e(f"s_lshr_b32 s{sT1}, s{sIDX}, 3"); e(f"s_lshl_b32 s{sT0}, s{sTYPE}, 2"); e(f"s_add_u32 s{sT1}, s{sT1}, s{sT0}"); e(f"s_lshl_b32 s{sT1}, s{sT1}, 7")
    def p2_setup():
        e(f"s_cmp_lg_u32 s{sISC}, 0"); e("s_cselect_b64 vcc, -1, 0")
        srd(e, SW2, 96, 97, 1792 * 1024)
        srd(e, SWO, 98, 99, 512 * 1024)
        cbcalc()
        e(f"s_lshl_b32 s{sWO_}, s{sRG}, 17"); e(f"s_add_u32 s{sWO_}, s{sWO_}, s{sT1}")
        e(f"v_lshrrev_b32 v{vXO}, 3, v{vL}"); e(f"v_lshlrev_b32 v{vXO}, 10, v{vXO}")
        e(f"v_and_b32 v{vTR0}, 7, v{vL}"); e(f"v_bfe_u32 v{vTR1}, v{vL}, 4, 1"); e(f"v_lshlrev_b32 v{vTR1}, 2, v{vTR1}")
        e(f"v_xor_b32 v{vTR1}, v{vTR0}, v{vTR1}"); e(f"v_lshl_add_u32 v{vDMA}, v{vTR1}, 4, v{vXO}")
        e(f"v_lshl_add_u32 v{vXO}, v{vTR0}, 4, v{vXO}")
        e(f"s_lshr_b32 s{sT1}, s{sC}, 2"); e(f"s_lshl_b32 s{sT1}, s{sT1}, 1"); e(f"s_lshl_b32 s{sT2}, s{sRB}, 2"); e(f"s_add_u32 s{sT1}, s{sT1}, s{sT2}")
        fragoff(vF0, sT1); e(f"s_add_u32 s{sT1}, s{sT1}, 1"); fragoff(vF1, sT1)
    def early_scalars():
        e(f"s_lshr_b32 s{sT1}, s{sC}, 2"); e(f"s_lshl_b32 s{sT2}, s{sRB}, 1"); e(f"s_add_u32 s{sT2}, s{sT2}, s{sT1}")
        e(f"s_mul_i32 s{sA0}, s{sT2}, {4*114688}"); e(f"s_mul_i32 s{sT0}, s{sRG}, {28*2048}")
        e(f"s_add_u32 s{sA0}, s{sA0}, s{sT0}"); e(f"s_add_u32 s{sA1}, s{sA0}, {2*114688}")
        e(f"s_lshl_b32 s{sPF}, s{sRT}, 11"); e(f"s_lshl_b32 s{sT0}, s{sT1}, 8")
        e(f"s_add_u32 s{sPF}, s{sPF}, s{sT0}"); e(f"s_add_u32 s{sPF}, s{sPF}, {FLG_OFF + 128*1024}")
        e(f"s_cmp_lg_u32 s{sISC}, 0"); e(f"s_cselect_b32 s{sEA}, 1, 64")
        cbcalc()
        e(f"s_mul_i32 s{sWK}, s{sRG}, {448*1024}"); e(f"s_add_u32 s{sWK}, s{sWK}, s{sT1}")
        e(f"s_lshl_b32 s{sLB}, s{sRG}, 11")
        e(f"s_lshl_b32 s{sT0}, s{sP}, 10"); e(f"s_add_u32 s{sE1}, s{sLB}, s{sT0}")
        e(f"s_lshl_b32 s{sT0}, s{sP}, 13"); e(f"s_add_u32 s{sE2}, s{sWK}, s{sT0}")
        srd(e, SWE, 96, 97, 1792 * 1024)
    def poll_addr():
        e(f"v_lshrrev_b32 v{vPA}, 1, v{vL}"); e(f"v_lshlrev_b32 v{vPA}, 9, v{vPA}")
        e(f"v_and_b32 v{ND}, 1, v{vL}"); e(f"v_lshl_add_u32 v{vPA}, v{ND}, 7, v{vPA}")
    vD2 = vAUX + 10
    dmalane(vD2, vS + 2, vS + 3)
    poll_addr()
    for j in range(4): e(f"v_mov_b32 v{PK+4+j}, -1")
    SPm, SMm = vAUX + 4, vAUX + 8
    e(f"s_cmp_lg_u32 s{sTYPE}, 0"); e("s_cbranch_scc1 K_NSEL")
    e(f"v_lshlrev_b32 v{vS+4}, 2, v{vS+4}"); e(f"v_sub_u32 v{vS+4}, v{vS+1}, v{vS+4}")
    e(f"v_mov_b32 v{vS}, s{sLO}"); e(f"v_mov_b32 v{vS+5}, s{sHI}")
    for t, f0 in enumerate((0, 2, 8, 10)):
        e(f"v_cmp_eq_u32 vcc, {f0}, v{vS+4};;v_cmp_eq_u32 s[62:63], {f0+1}, v{vS+4};;s_nop 0;;"
          f"v_cndmask_b32 v{SMm+t}, 0, v{vS}, vcc;;v_cndmask_b32 v{SMm+t}, v{SMm+t}, v{vS+5}, s[62:63]")
    for j in range(4):
        e(f"v_cndmask_b32 v{SPm+j}, 0, v{SMm+j}, {sr(sLT16,2)}"); e(f"v_cndmask_b32 v{SMm+j}, v{SMm+j}, 0, {sr(sLT16,2)}")
    e(f"v_bfe_u32 v{vS}, v{vL}, 4, 1"); e(f"v_lshlrev_b32 v{vAUX}, 9, v{vS}")
    e(f"v_lshrrev_b32 v{vS}, 5, v{vL}"); e(f"v_lshl_add_u32 v{vAUX}, v{vS}, 7, v{vAUX}")
    e(f"v_lshl_add_u32 v{vAUX}, v{vS+1}, 3, v{vAUX}")
    e(f"s_lshl_b32 s{sT0}, s{sW}, 10"); e(f"v_add_u32 v{vAUX}, s{sT0}, v{vAUX}")
    e.label("K_NSEL")
    def q3touch():
        e(f"s_cmp_ge_u32 s{sC}, 4"); e("s_cbranch_scc1 K_NQ3")
        e("s_mov_b64 s[92:93], s[66:67]"); e(f"s_mov_b32 s94, {512*3072}"); e("s_mov_b32 s95, 0x00020000")
        e(f"s_lshl_b32 s{sT0}, s{sIDX}, 3"); e(f"s_add_u32 s{sT0}, s{sT0}, s{sW}"); e(f"s_mul_i32 s{sT0}, s{sT0}, 6144")
        for col in ((2048, 0) if OPT.get("q3", 1) < 3 else (0,)):
            for r in (0, 3072):
                for hf in (0, 64): e(f"s_buffer_load_dword s{sCNT}, s[92:95], s{sT0} offset:{col + 384 + r + hf}")
        e.label("K_NQ3")
    st("su")
    if OPT.get("p1t", 0):
        e(f"s_lshl_b32 s{sT0}, s{sRB}, 3"); e(f"s_add_u32 s{sT0}, s{sT0}, s{sW}"); e(f"s_lshl_b32 s{sT0}, s{sT0}, 2"); e(f"s_mul_i32 s{sT0}, s{sT0}, s{sPITCH}")
        e(f"s_add_u32 s{sT0}, s{sT0}, s{sCOL+1}")
        for r in range(4):
            for hf in ((0, 64) if OPT.get("p1t") == 1 else (0,)): e(f"s_buffer_load_dword s{sCNT}, {sr(SW,4)}, s{sT0} offset:{hf}")
            if r < 3: e(f"s_add_u32 s{sT0}, s{sT0}, s{sPITCH}")
    if OPT.get("q3", 1) in (1, 3): q3touch()
    e.ext(sset(1))
    if OPT.get("q3", 1) == 2: q3touch()
    st("i1")

    def wrd(s):
        b = WB + 4 * (s % NWB); o = 1024 * (s & 12) + 0x8000 * (s >> 4)
        return [f"ds_read_b64_tr_b16 {vr(b,2)}, v{vTR+(s&3)} offset:{o}", f"ds_read_b64_tr_b16 {vr(b+2,2)}, v{vTR+(s&3)} offset:{o+256}"]
    def csm(s):
        return f"{M16} {vr(CS,4)}, {vr(SELC,4)}, {vr(WB+4*(s%NWB),4)}, {'0' if s == 0 else vr(CS,4)}"
    XO = (0x8000, 0, 0x8000, 0x8000)
    def rd(s):
        return [f"ds_read_b128 {vr(XF+4*s,4)}, v{vFR+(s&7)} offset:{XO[s>>3]}"] + wrd(s)
    P2S = OPT.get('p2s', 0)
    VM = {0: 6, 1: min(6, 5 - P2S), 2: 6, 3: 4, 4: 63}
    def sync(k):
        l = [f"s_waitcnt vmcnt({VM[k]}) lgkmcnt(0)", "s_barrier"]
        if k == 3 and OPT.get("wtg", 12) in range(12, 21): l[0] = f"s_waitcnt vmcnt(5) lgkmcnt(0);;s_lshr_b32 s{sT0}, s{sW}, 1;;s_cmp_eq_u32 s{sT0}, 1;;s_cbranch_scc1 K_S3;;s_waitcnt vmcnt(4);;K_S3:"
        st(f"sync{k}", l)
        if k == 1: l += [f"v_subrev_u32 v{vFR+t}, 0x8000, v{vFR+t}" for t in range(8)]
        if k == 3: l += [f"v_add_u32 v{vFR+t}, 0x8000, v{vFR+t}" for t in range(8)]
        return l
    G = []
    g0 = sync(0)
    for s_ in range(4): g0 += rd(s_)
    G.append(g0)
    for s_ in range(32):
        g = []
        if s_ % 8 == 4: g += sync(s_ // 8 + 1)
        if s_ + 4 < 32: g += rd(s_ + 4)
        if s_ % 8 < 4: g.append(f"s_waitcnt lgkmcnt(12)")
        d = EACC if s_ == 31 else ACC
        g.append(f"{MFMA} {vr(d,16)}, {vr(WB+4*(s_%NWB),4)}, {vr(XF+4*s_,4)}, {'0' if s_ == 0 else vr(ACC,16)}")
        if s_ % 4 == 0: g.append(csm(s_))
        if s_ % 2 == 0:
            g.append(f"{M16} {vr(RS,4)}, {vr(SELC,4)}, {vr(XF+4*s_,4)}, {'0' if s_ == 0 else vr(RS,4)}")
            for r in range(4): g.append(f"v_dot2c_f32_bf16 v{vQ+(r&1)}, v{XF+4*s_+r}, v{XF+4*s_+r}")
        G.append(g)
    if OPT.get("z_nodot"): G = [[i for i in g if "dot2c" not in i] for g in G]
    if OPT.get("z_nom16"): G = [[i for i in g if "16x16x32" not in i] for g in G]
    if OPT.get("z_gram"): G = [[(f"{MFMA} {vr(PK,16)}, {i.split(', ')[1].replace('v','v[') + ':' + str(int(i.split(', ')[1][1:])+3) + ']'}, {i.split(', ')[1].replace('v','v[') + ':' + str(int(i.split(', ')[1][1:])+3) + ']'}, {vr(PK,16)}" if "dot2c" in i else i) for i in g if not ("dot2c" in i and int(i.split(', ')[1][1:]) % 4)] for g in G]
    d8 = dma8()
    s2_, s3_ = sset(2), sset(3)
    G[0].append(s2_[0])
    for k in range(6): G[P2S + k].append(s2_[1 + k])
    G[7].append(s3_[0])
    for k in range(6): G[7 + k].append(s3_[1 + k])
    assert OPT.get("wtg", 12) in (6, 12, 13, 14, 15, 16, 17)
    G[OPT.get("wtg", 12)].append(wt)
    G[12].append(f"s_add_u32 s{sDA}, s{sROWO}, s{sCOL+1};;s_add_u32 s{sMA}, s{sLB0}, {YB}")
    mark = len(e.L)
    early_scalars()
    e(f"s_mul_i32 s{sOUT}, s{sRT}, {2*114688}"); e(f"s_lshl_b32 s{sT0}, s{sP}, 12"); e(f"s_add_u32 s{sOUT}, s{sOUT}, s{sT0}")
    e(f"s_and_b32 s{sAUXO}, s{sC}, 1"); e(f"s_lshl_b32 s{sAUXO}, s{sAUXO}, 6"); e(f"s_add_u32 s{sAUXO}, s{sAUXO}, s{sCOL+3}")
    e(f"s_lshl_b32 s{sSLOT}, s{sAUXO}, 6"); e(f"s_add_u32 s{sSLOT}, s{sSLOT}, s{sOUT}"); e(f"s_lshl_b32 s{sT0}, s{sP}, 11"); e(f"s_sub_u32 s{sSLOT}, s{sSLOT}, s{sT0}")
    e(f"s_lshl_b32 s{sT0}, s{sW}, 7"); e(f"s_add_u32 s{sST}, s{sT0}, {RVO}")
    sc = [t.strip() for t in e.L[mark:]]; del e.L[mark:]
    h_ = [";;".join(sc[:12]), ";;".join(sc[12:])] if False else [";;".join(sc)]
    for k in range(4): G[13 + k].append(d8[k])
    G[18].append(h_[0])
    M1 = vr(PK + 4, 4)
    pf1 = (f"s_cmp_eq_u32 s{sTYPE}, 0;;s_cbranch_scc1 K_NP1;;s_lshl_b32 s{sT0}, s{sRB}, 3;;s_add_u32 s{sT0}, s{sT0}, s{sC};;s_lshl_b32 s{sT0}, s{sT0}, 14;;s_lshl_b32 s{sT1}, s{sW}, 10;;"
           f"s_add_u32 s{sT2}, s{sT0}, s{sT1};;s_add_u32 s{sT2}, s{sT2}, {KVP_OFF};;buffer_store_dwordx4 {M1}, v{vL16}, {sr(SWS,4)}, s{sT2} offen sc1;;"
           f"s_cmp_lg_u32 s{sW}, 7;;s_cbranch_scc1 K_NP1;;s_lshl_b32 s{sT0}, s{sC}, 4;;s_add_u32 s{sT0}, s{sT0}, s{sRB};;s_lshl_b32 s{sT0}, s{sT0}, 9;;"
           f"s_add_u32 s{sT0}, s{sT0}, {KVZ_OFF};;s_mov_b32 exec_hi, 0;;buffer_store_dwordx4 {M1}, v{vL16}, {sr(SWS,4)}, s{sT0} offen sc1;;"
           f"buffer_store_dwordx4 {M1}, v{vL16}, {sr(SWS,4)}, s{sT2} offen offset:1024 sc1;;s_mov_b32 exec_hi, -1;;K_NP1:")
    pf2 = (f"s_cmp_eq_u32 s{sTYPE}, 0;;s_cbranch_scc1 K_NP2;;s_lshl_b32 s{sT0}, s{sRT}, 16;;s_lshl_b32 s{sT1}, s{sC}, 13;;s_add_u32 s{sT0}, s{sT0}, s{sT1};;s_lshl_b32 s{sT1}, s{sP}, 12;;"
           f"s_add_u32 s{sT0}, s{sT0}, s{sT1};;s_add_u32 s{sT0}, s{sT0}, {PQ_OFF};;buffer_store_dwordx4 {M1}, v{vFO}, {sr(SWS,4)}, s{sT0} offen sc1;;"
           f"buffer_store_dwordx4 {M1}, v{vFO}, {sr(SWS,4)}, s{sT0} offen offset:2048 sc1;;K_NP2:")
    for k in range(4): G[21 + k].append(d8[4 + k])
    G[25].append(auxl("K_AUX")); G[26].append(pf1); G[27].append(pf2)
    for g in G: e.ext(g)
    tA, tB, tC = vFR, vFR + 1, vFR + 2
    e(f"v_and_b32 v{tB}, 31, v{vL}")
    e(f"s_lshl_b32 s{sT0}, s{sW}, 8"); e(f"s_add_u32 s{sT0}, s{sT0}, {STAT}")
    e(f"v_add_f32 v{vQ}, v{vQ}, v{vQ+1}")
    e(f"v_mov_b32 v{vQ+1}, v{vQ}")
    e(f"v_lshl_add_u32 v{tA}, v{tB}, 3, s{sT0}")
    e(f"v_lshlrev_b32 v{tC}, 2, v{tB}")
    e(f"v_permlane32_swap_b32 v{vQ}, v{vQ+1}")
    e(f"v_add_f32 v{RS+1}, v{vQ}, v{vQ+1}")
    e(f"ds_write_b64 v{tA}, {vr(RS,2)}")
    e(f"ds_write_b32 v{vCSW}, v{CS}")
    e(f"v_add_u32 v{tB}, {GSY:#x}, v{tC}"); e(f"ds_write_b32 v{tB}, v{AUG+4}")
    e(f"v_xor_b32 v{tA}, 1024, v{tA}")
    e("s_waitcnt lgkmcnt(0)")
    e("s_barrier")
    st("barA")
    e(f"ds_read_b64 {vr(vS,2)}, v{tA}")
    for k in range(4): e(f"v_xor_b32 v{vTR+k}, 0x10000, v{vTR+k}")
    e(f"v_xor_b32 v{vCSW}, 1024, v{vCSW}")
    e(f"v_cmp_gt_u32 vcc, 32, v{vL}")
    e("s_waitcnt lgkmcnt(0)")
    a, b = vS, vS + 1
    e(f"v_add_f32 v{a}, v{a}, v{RS}"); e(f"v_add_f32 v{b}, v{b}, v{RS+1}")
    e(f"v_mul_f32 v{a}, {f2u(-1.0/512):#x}, v{a}"); e(f"v_mul_f32 v{b}, {f2u(1.0/512):#x}, v{b}")
    e(f"v_fma_f32 v{b}, -v{a}, v{a}, v{b}"); e(f"v_cvt_pk_bf16_f32 v{AUG+2}, v{a}, v{a}")
    e(f"v_max_f32 v{b}, 0, v{b}")
    e(f"v_cvt_pk_bf16_f32 v{b}, v{b}, v{b}"); e(f"v_and_b32 v{b}, s{sMASK}, v{b}")
    e(f"v_add_f32 v{b}, {f2u(1e-5):#x}, v{b}"); e(f"v_cvt_pk_bf16_f32 v{b}, v{b}, v{b}")
    e(f"v_and_b32 v{b}, s{sMASK}, v{b}"); e(f"v_sqrt_f32 v{b}, v{b}")
    e(f"v_cndmask_b32 v{AUG+2}, 0, v{AUG+2}, vcc")
    e(f"v_cvt_pk_bf16_f32 v{AUG+3}, v{a}, v{b}")
    e(f"v_and_b32 v{b}, s{sMASK}, v{AUG+3}")
    e(f"v_rcp_f32 v{a}, v{b}")
    e(f"v_cndmask_b32 v{AUG+3}, 0, v{AUG+3}, vcc")

    APOLL = f"v_lshlrev_b32 v{vS+4}, 7, v{vL};;s_mov_b64 exec, 3;;buffer_load_dword v{vS+5}, v{vS+4}, {sr(SDBG,4)}, 0 offen sc1;;s_mov_b64 exec, -1"
    def apoll7():
        l2 = L("X")
        e(f"s_cmp_lg_u32 s{sW}, 7"); e(f"s_cbranch_scc1 {l2}")
        e(APOLL)
        e.label(l2)
    def r2_check(n=1):
        l2 = L("X")
        e(f"s_cmp_lg_u32 s{sW}, 7"); e(f"s_cbranch_scc1 {l2}")
        e(f"s_waitcnt vmcnt({n})")
        check([(APOLL, vS + 5, 3, 64)])
        e.label(l2)
    def publish(lev, vt):
        if OPT.get("x_nopub"): return "s_nop 0"
        return (f"v_mov_b32 v{vt}, {lev};;v_lshlrev_b32 v{vDUM}, 2, v{vL};;s_mov_b32 exec_hi, 0;;"
                f"buffer_store_dword v{vt}, v{vDUM}, {sr(SWS,4)}, s{sFLG} offen sc1;;s_mov_b32 exec_hi, -1")
    def midpub(n, lev, vt):
        a_, b_ = L("P"), L("P")
        return f"s_cbranch_vccz {a_};;s_waitcnt vmcnt({n});;s_branch {b_};;{a_}:;;s_waitcnt vmcnt(0);;{b_}:;;" + publish(lev, vt)
    def mgroups(swap=False, pre=(), cq=PK):
        PF = NWB - 1
        G = []
        g0 = [f"ds_read_b128 {vr(cq,4)}, v{vCSR}"] + list(pre)
        for s in range(PF): g0 += wrd(s)
        G.append(g0)
        for s in range(32):
            g = []
            if s + PF < 32: g += wrd(s + PF)
            g.append(f"s_waitcnt lgkmcnt({2 * min(PF, 31 - s)})")
            w, x = vr(WB + 4 * (s % NWB), 4), vr(XF + 4 * s, 4)
            a, b = (x, w) if swap else (w, x)
            d = EACC if s == 31 else ACC
            g.append(f"{MFMA} {vr(d,16)}, {a}, {b}, {'0' if s == 0 else vr(ACC,16)}")
            if s % 4 == 0: g.append(csm(s))
            G.append(g)
        return G
    def aug(bias=None, swap=False, cq=PK):
        l = Lst()
        c, t = cq, cq + 1
        l(f"v_add_f32 v{c}, v{c}, v{c+1}"); l(f"v_add_f32 v{c+2}, v{c+2}, v{c+3}"); l(f"v_add_f32 v{c}, v{c}, v{c+2}")
        l(f"v_cvt_pk_bf16_f32 v{t}, v{c}, v{c}"); l(f"v_and_b32 v{t}, s{sMASK}, v{t}"); l(f"v_sub_f32 v{t}, v{c}, v{t}")
        l(f"v_cvt_pk_bf16_f32 v{AUG}, v{c}, v{t}"); l(f"v_and_b32 v{c}, s{sMASK}, v{AUG}"); l(f"v_sub_f32 v{t}, v{t}, v{c}")
        l(f"v_cvt_pk_bf16_f32 v{AUG+1}, v{t}, {'v%d' % bias if bias is not None else '0'}")
        a, b = (vr(AUG+2,4), vr(AUG,4)) if swap else (vr(AUG,4), vr(AUG+2,4))
        l(f"s_nop 1;;{MFMA} {vr(EACC,16)}, {a}, {b}, {vr(EACC,16)}")
        l.extend(["@MARK", "@PAD", "@PAD", "@PAD", "@NEED 12"])
        return l
    def round_toggle():
        e(f"ds_write_b32 v{vCSW}, v{CS}")
        for k in range(4): e(f"v_xor_b32 v{vTR+k}, 0x10000, v{vTR+k}")
        e(f"v_xor_b32 v{vCSW}, 1024, v{vCSW}"); e(f"v_xor_b32 v{vCSR}, 1024, v{vCSR}")

    FPOLL = f"s_mov_b64 exec, 0xff;;buffer_load_dword v{ND}, v{vPA}, {sr(SWS,4)}, s{sPF} offen sc1;;s_mov_b64 exec, -1"
    def checkt(items, spin=SPIN):
        if OPT.get("x_nochk"): return "s_nop 0"
        top, ok = L("C"), L("C")
        t = [f"s_mov_b32 s{sCNT}, 0", f"{top}:"]
        for k, (pt, reg, msk, thr) in enumerate(items):
            t += [f"s_movk_i32 s{sT1}, {thr}", f"v_cmp_gt_u32 s[62:63], s{sT1}, v{reg}", "s_nop 0"]
            if k == 0: t.append(f"s_and_b32 s{sT0}, s62, {msk:#x}")
            else: t += [f"s_and_b32 s{sT1}, s62, {msk:#x}", f"s_or_b32 s{sT0}, s{sT0}, s{sT1}"]
        t += [f"s_cbranch_scc0 {ok}", "s_sleep 8"]
        t += [pt for (pt, reg, msk, thr) in items]
        t += [f"s_add_u32 s{sCNT}, s{sCNT}, 1", f"s_cmp_lt_u32 s{sCNT}, {spin}", "s_waitcnt vmcnt(0)", f"s_cbranch_scc1 {top}", f"{ok}:"]
        if OPT.get("cnt"): t += [f"s_mul_i32 s91, s91, 10", f"s_min_u32 s{sT0}, s{sCNT}, 9", f"s_add_u32 s91, s91, s{sT0}"]
        return ";;".join(t)
    def check(items): e(checkt(items))
    def sentinel(R, n, vt, reload):
        top, ok = L("V"), L("V")
        t = [f"s_mov_b32 s{sCNT}, 0", f"{top}:", f"v_max_u32 v{vt}, v{R}, v{R+1}"]
        t += [f"v_max3_u32 v{vt}, v{vt}, v{R+k}, v{R+k+1}" for k in range(2, n, 2)]
        t += [f"v_cmp_eq_u32 vcc, -1, v{vt}", "s_nop 0", "s_cmp_eq_u64 vcc, 0", f"s_cbranch_scc1 {ok}", "s_sleep 8", reload,
              f"s_add_u32 s{sCNT}, s{sCNT}, 1", f"s_cmp_lt_u32 s{sCNT}, {SPIN // 8}", "s_waitcnt vmcnt(0)", f"s_cbranch_scc1 {top}", f"{ok}:"]
        if OPT.get("cnt"): t += [f"s_mul_i32 s91, s91, 10", f"s_min_u32 s{sT0}, s{sCNT}, 9", f"s_add_u32 s91, s91, s{sT0}"]
        return ";;".join(t)
    RING, NU, NA = 128, 12, OPT.get("na", 12)
    unit = [i % NU for i in range(36)]
    ASC = "" if OPT.get("x_plain") else "sc1"
    def aload(i):
        R = RING + 8 * unit[i]; t = ""
        ks, b0, b1 = (order[i], sA0, sA1) if i < 28 else (i - 28, sP0, sKV)
        if i % 2 == 0: t = f"s_add_u32 s{sT3}, s{b0}, {2048*ks};;s_add_u32 s{sT4}, s{b1}, {2048*ks};;"
        return [t + f"buffer_load_dwordx4 {vr(R,4)}, v{vF0}, {sr(SWS,4)}, s{sT3} offen offset:{2048*(ks&1)} {ASC}",
                f"buffer_load_dwordx4 {vr(R+4,4)}, v{vF1}, {sr(SWS,4)}, s{sT4} offen offset:{2048*(ks&1)} {ASC}"]
    def tail(E, lev, vt):
        l1 = [guard("s_waitcnt vmcnt(1);;" + checkt([(FPOLL, ND, 0xff, 1)]))]
        for i in range(NA): l1 += [guard(t) for t in aload(i)]
        l2 = []
        for i in range(NE2, NE2 + NW1): l2 += [guard(t) for t in wdma(i)]
        E = list(E)
        h = int(len(E) * 0.5)
        return merge(E[:h], l1) + merge(E[h:], l2, 0.9)

    def l2pf(r, x=0):
        return (f"s_lshr_b32 s{sT0}, s{sIDX}, 3;;s_lshl_b32 s{sT0}, s{sT0}, 2;;s_and_b32 s{sT1}, s{sIDX}, 3;;s_add_u32 s{sT0}, s{sT0}, s{sT1};;s_lshl_b32 s{sT0}, s{sT0}, 3;;"
                f"s_xor_b32 s{sT1}, s{sW}, {x};;s_add_u32 s{sT0}, s{sT0}, s{sT1};;s_lshl_b32 s{sT1}, s2, 4;;s_add_u32 s{sT0}, s{sT0}, s{sT1};;s_and_b32 s{sT0}, s{sT0}, 127;;"
                f"s_mul_i32 s{sT0}, s{sT0}, 14336;;s_add_u32 s{sT0}, s{sT0}, {7168*r};;s_mov_b64 s[92:93], s[96:97];;s_mov_b32 s94, {1792*1024};;s_mov_b32 s95, 0x00020000;;"
                f"v_lshlrev_b32 v{vDUM}, 7, v{vL};;s_bfm_b64 exec, 56, 0;;buffer_load_dword v{vDUM}, v{vDUM}, s[92:95], s{sT0} offen;;s_mov_b64 exec, -1")
    L2 = OPT.get("l2pf", 0)
    e(f"s_cmp_eq_u32 s{sTYPE}, 0")
    e("s_cbranch_scc1 K_QKV")
    vSS, vPB = vAUX + 8, vAUX + 9
    k0 = -2.0 * math.sqrt(2.0 / math.pi) * math.log2(math.e)
    e(f"v_mov_b32 v{vSS}, v{vS+1}")
    e(f"v_mul_f32 v{vC1}, {f2u(k0):#x}, v{vS}")
    e(f"v_mul_f32 v{vC0}, v{vS}, v{vS}"); e(f"v_mul_f32 v{vC0}, v{vC0}, v{vC1}"); e(f"v_mul_f32 v{vC0}, {f2u(0.044715):#x}, v{vC0}")
    e("s_waitcnt vmcnt(0)")
    for i in range(4): e(f"v_lshlrev_b32 v{vAUX+i}, 16, v{vAUX+i}")
    e("s_barrier")
    st("r0end")
    e(f"s_cmp_lg_u32 s{sW}, 7"); e("s_cbranch_scc1 K_NA")
    e(f"s_and_b32 s{sT0}, s2, 1"); e(f"s_lshl_b32 s{sT0}, s{sT0}, 7")
    e(f"v_mov_b32 v{vDUM}, 1")
    e("s_mov_b64 exec, 1")
    e(f"buffer_atomic_add v{vDUM}, v{AUG+4}, {sr(SDBG,4)}, s{sT0} offen sc1")
    e("s_mov_b64 exec, -1")
    e.label("K_NA")
    e(f"s_cmp_eq_u32 s{sW}, 7"); e(f"s_cselect_b32 s{sIT}, 0, 64")
    e("s_mov_b64 vcc, -1")
    def gelu(r):
        l = aug(bias=vAUX + r)
        for half in range(2):
            rng = range(8 * half, 8 * half + 8)
            for i in rng: l(f"v_mul_f32 v{TMP+i}, v{EACC+i}, v{EACC+i}")
            for i in rng: l(f"v_fma_f32 v{TMP+i}, v{TMP+i}, v{vC0}, v{vC1}")
            for i in rng: l(f"v_mul_f32 v{TMP+i}, v{EACC+i}, v{TMP+i}")
            for i in rng: l(f"v_exp_f32 v{TMP+i}, v{TMP+i}")
            for i in rng: l(f"v_fma_f32 v{TMP+i}, v{TMP+i}, v{vSS}, v{vSS}")
            for i in rng: l(f"v_rcp_f32 v{TMP+i}, v{TMP+i}")
            for i in rng: l(f"v_mul_f32 v{TMP+i}, v{EACC+i}, v{TMP+i}")
            for i in range(4): l(f"v_cvt_pk_bf16_f32 v{PK+8+4*half+i}, v{TMP+8*half+2*i}, v{TMP+8*half+2*i+1}")
            l(f"buffer_store_dwordx4 {vr(PK+8+4*half,4)}, v{vFO}, {sr(SWS,4)}, s{sST} offen offset:{2048*half} {STF}")
        return l
    st("f0")
    def stbase(r): e(f"s_lshl_b32 s{sST}, s{sCOL+r}, 6"); e(f"s_add_u32 s{sST}, s{sST}, s{sOUT}")
    def place(fl, items):
        n_ = len(fl)
        for pos, it in sorted(items, key=lambda x: -x[0]): fl.insert(int(n_ * pos / 100), it)
        return fl
    def spread(items, p0, p1): return [(p0 + (p1 - p0) * k / max(1, len(items) - 1), it) for k, it in enumerate(items)]
    stbase(0)
    e(f"s_add_u32 s{sDA}, s{sROWO}, s{sCOL+2}"); e(f"s_mov_b32 s{sMA}, s{sLB0}")
    hp = [f"s_lshl_b32 s{sT0}, s{sCOL+1+k//2}, 6;;s_add_u32 s{sT0}, s{sT0}, s{sOUT};;buffer_store_dwordx4 {vr(PK+4,4)}, v{vFO}, {sr(SWS,4)}, s{sT0} offen offset:{2048*(k&1)} sc1" for k in range(4)]
    hp.append(f"buffer_store_dwordx4 {vr(PK+4,4)}, v{vFO}, {sr(SWS,4)}, s{sSLOT} offen sc1")
    ea = f"s_cmp_lg_u32 s{sW}, 7;;s_cbranch_scc1 K_FE1;;" + APOLL + ";;K_FE1:"
    fl = place(gelu(0), spread(dma8(), 0, OPT.get("d1", 36)) + spread(hp, OPT.get("hp0", 44), OPT.get("hp1", 82)) + [(85, ea)])
    e.ext(interleave(mgroups(), fl, 1, 31))
    st("b1")
    round_toggle()
    stbase(1)
    e(f"s_add_u32 s{sDA}, s{sROWO}, s{sAUXO}"); e(f"s_add_u32 s{sMA}, s{sLB0}, {YB}")
    e(f"s_cmp_lg_u32 s{sISC}, 0"); e("s_cselect_b64 vcc, -1, 0")
    e(f"s_waitcnt vmcnt(7) lgkmcnt(0)")
    r2_check()
    e("s_barrier")
    st("r1end")
    d4 = []
    for i in range(4):
        jg, jl = (f"s{sJG}", "0x7c00") if i == 1 else (f"s{sP16}", "1024")
        d4.append(f"s_mov_b32 m0, s{sMA};;s_add_u32 s{sMA}, s{sMA}, {jl};;buffer_load_dwordx4 v{vDMA}, {sr(SW,4)}, s{sDA} offen lds;;s_add_u32 s{sDA}, s{sDA}, {jg}")
    KR = OPT.get("kr", 3)
    er = [erow(i, vD2) for i in range(NE)]
    mp = f"s_waitcnt vmcnt({4 + KR});;" + publish(1, vPB)
    fl = place(gelu(1), spread(d4 + er[:KR] + [mp] + er[KR:], 0, OPT.get("d2", 50)) + [(OPT.get("epat", 85), guard(FPOLL))])
    MG2 = mgroups()
    if XR:
        MG2[17].append("s_barrier")
        for k in range(4): MG2[18 + 2 * k].append(erow(NE + k, vD2))
    e.ext(interleave(MG2, fl, 1, 31))
    st("b2")
    round_toggle()
    stbase(2)
    e(f"s_waitcnt vmcnt({2 - XR}) lgkmcnt(0)")
    e("s_barrier")
    st("r2end")
    e("s_cbranch_vccz K_FG")
    e(f"s_setprio {OPT.get('tprio', 0)}")
    e(f"ds_read_b128 {vr(PK,4)}, v{vCSR}")
    p2_setup()
    e("s_waitcnt vmcnt(1) lgkmcnt(0)")
    check([(FPOLL, ND, 0xff, 1)])
    pre = []
    for i in range(NA): pre += aload(i)
    for i in range(NE2, NE2 + NW1): pre += wdma(i)
    e.ext(place(gelu(2), spread(pre, 0, OPT.get("tl", 90))))
    e("s_branch K_P2")
    e.label("K_FG")
    e(f"s_lshl_b32 s{sT0}, s{sP}, 14")
    for k in range(4): e(f"v_subrev_u32 v{vTR+k}, s{sT0}, v{vTR+k}")
    e(f"s_setprio {OPT.get('fgprio', 2)}")
    e.ext(interleave(mgroups(), gelu(2), 1, OPT.get("g3", 24)))
    st("b3")
    e(f"ds_write_b32 v{vCSW}, v{CS}")
    e(f"v_xor_b32 v{vCSR}, 1024, v{vCSR}")
    stbase(3)
    e(f"v_mov_b32 v{vS}, {GSY:#x}"); e(f"v_mov_b32 v{vS+1}, 1")
    e("s_waitcnt lgkmcnt(0)")
    e("s_mov_b64 exec, 1"); e(f"ds_add_u32 v{vS}, v{vS+1}"); e("s_mov_b64 exec, -1")
    e.label("K_FSP")
    e(f"ds_read_b32 v{vS+1}, v{vS}")
    e("s_waitcnt lgkmcnt(0)")
    e(f"v_readfirstlane_b32 s{sT0}, v{vS+1}")
    e("s_nop 3")
    e(f"s_cmp_lt_u32 s{sT0}, 4"); e("s_cbranch_scc1 K_FSP")
    e(f"ds_read_b128 {vr(PK,4)}, v{vCSR}")
    e("s_waitcnt lgkmcnt(0)")
    e.ext(gelu(3))
    if OPT.get("spf", 1):
        e("s_setprio 0")
        srd(e, SWO, 98, 99, 512 * 1024)
        e(f"s_lshr_b32 s{sT0}, s{sIDX}, 3"); e(f"s_and_b32 s{sT1}, s{sIDX}, 3"); e(f"s_lshl_b32 s{sT1}, s{sT1}, 2"); e(f"s_add_u32 s{sT1}, s{sT1}, s{sRG}")
        e(f"s_lshl_b32 s{sT1}, s{sT1}, 10"); e(f"s_add_u32 s{sT1}, s{sT1}, {OPT.get('spc', 3)*128}")
        e(f"s_mul_i32 s{sT2}, s{sT0}, {448*1024}"); e(f"s_add_u32 s{sT2}, s{sT2}, s{sT1}")
        e(f"s_lshl_b32 s{sT3}, s{sT0}, 17"); e(f"s_add_u32 s{sT3}, s{sT3}, s{sT1}")
        B_ = OPT.get("spb", 6)
        for k, i in enumerate(range(OPT.get("sp0", 16), 36)):
            for hf in (0, 64):
                if i < 28: e(f"s_buffer_load_dword s{sT4}, {sr(SWE,4)}, s{sT2} offset:{order[i]*16384+hf}")
                else: e(f"s_buffer_load_dword s{sT4}, {sr(SWO,4)}, s{sT3} offset:{(i-28)*16384+hf}")
            if k % B_ == B_ - 1: e("s_waitcnt lgkmcnt(0)")
        e("s_waitcnt lgkmcnt(0)")
    e("s_branch K_GFIN")

    e.label("K_QKV")
    WT = vAUX
    e(f"v_mul_f32 v{vC0}, {f2u(math.log2(math.e)):#x}, v{vS}")
    e(f"v_add_u32 v{vS+1}, s{sST}, v{tC}")
    e(f"ds_write_b32 v{vS+1}, v{vS}")
    e(f"v_lshrrev_b32 v{vC1}, 5, v{vL}"); e(f"v_lshl_add_u32 v{vC1}, v{vC1}, 4, s{sST}")
    e("s_waitcnt vmcnt(0)")
    e(f"ds_read_b64_tr_b16 {vr(WT+2,2)}, v{vAUX} offset:256"); e(f"ds_read_b64_tr_b16 {vr(WT,2)}, v{vAUX}")
    e("s_waitcnt lgkmcnt(0)")
    e("s_barrier")
    st("r0end")
    def softcore(src):
        l = Lst()
        l(f"s_nop 1;;{MFMA} {vr(TMP,16)}, {vr(WT,4)}, {vr(src+4,4)}, 0;;{MFMA} {vr(EACC,16)}, {vr(WT,4)}, {vr(src,4)}, 0")
        l.extend(["@MARK", "@PAD", "@PAD", "@PAD", "@NEED 11"])
        for (P, EP, out) in ((TMP + 8, TMP, PK + 8), (EACC, EACC + 8, PK)):
            mx, mn = vS, vS + 1
            l(f"v_max3_f32 v{mx}, v{P}, v{P+1}, v{P+2}"); l(f"v_max3_f32 v{mn}, -v{P}, -v{P+1}, -v{P+2}")
            l(f"v_max3_f32 v{mx}, v{mx}, v{P+3}, v{P+4}"); l(f"v_max3_f32 v{mn}, v{mn}, -v{P+3}, -v{P+4}")
            l(f"v_max3_f32 v{mx}, v{mx}, v{P+5}, v{P+6}"); l(f"v_max3_f32 v{mn}, v{mn}, -v{P+5}, -v{P+6}")
            l(f"v_max_f32 v{mx}, v{mx}, v{P+7}"); l(f"v_max_f32_e64 v{mn}, v{mn}, -v{P+7}")
            l.extend(["@MARK", "@NEED 2"]); l(f"v_permlane32_swap_b32 v{mx}, v{mn}")
            l(f"v_max_f32 v{mx}, v{mx}, v{mn}")
            l(f"v_mul_f32_e64 v{mx}, -v{mx}, v{vC0}")
            l(f"v_mov_b32 v{mn}, v{mx}")
            l.extend(["@MARK", "@NEED 2"]); l(f"v_permlane32_swap_b32 v{mx}, v{mn}")
            for j in range(8): l(f"v_fma_f32 v{EP+j}, v{P+j}, v{vC0}, v{mx}")
            for j in range(8): l(f"v_fma_f32 v{P+j}, -v{P+j}, v{vC0}, v{mn}")
            for j in range(8): l(f"v_exp_f32 v{EP+j}, v{EP+j}")
            for j in range(8): l(f"v_exp_f32 v{P+j}, v{P+j}")
            s0, s1, s2, s3 = vS + 2, vS + 3, vS + 4, vS + 5
            l(f"v_add_f32 v{s0}, v{EP}, v{EP+1}"); l(f"v_add_f32 v{s1}, v{P}, v{P+1}")
            l(f"v_add_f32 v{s2}, v{EP+2}, v{EP+3}"); l(f"v_add_f32 v{s3}, v{P+2}, v{P+3}")
            for j in (4, 6):
                l(f"v_add_f32 v{s0}, v{s0}, v{EP+j}"); l(f"v_add_f32 v{s1}, v{s1}, v{P+j}")
                l(f"v_add_f32 v{s2}, v{s2}, v{EP+j+1}"); l(f"v_add_f32 v{s3}, v{s3}, v{P+j+1}")
            l(f"v_add_f32 v{s0}, v{s0}, v{s2}"); l(f"v_add_f32 v{s1}, v{s1}, v{s3}")
            l.extend(["@MARK", "@NEED 2"]); l(f"v_permlane32_swap_b32 v{s0}, v{s1}")
            l(f"v_add_f32 v{s0}, v{s0}, v{s1}")
            l(f"v_rcp_f32 v{s0}, v{s0}")
            l.extend(["@MARK", "@NEED 1"]); l(f"v_mov_b32 v{s1}, v{s0}")
            l.extend(["@MARK", "@NEED 2"]); l(f"v_permlane32_swap_b32 v{s0}, v{s1}")
            for j in range(8): l(f"v_mul_f32 v{EP+j}, v{EP+j}, v{s0}")
            for j in range(8): l(f"v_mul_f32 v{P+j}, v{P+j}, v{s1}")
            for j in range(4): l(f"v_cvt_pk_bf16_f32 v{out+j}, v{EP+2*j}, v{EP+2*j+1}")
            for j in range(4): l(f"v_cvt_pk_bf16_f32 v{out+4+j}, v{P+2*j}, v{P+2*j+1}")
        return l
    def kepi():
        l = aug()
        for i in range(8): l(f"v_cvt_pk_bf16_f32 v{PK+i}, v{EACC+2*i}, v{EACC+2*i+1}")
        l += softcore(PK)
        TD = (EACC, TMP)
        for a in (1, 0):
            l(f"s_nop 1;;{MFMA} {vr(TD[a],16)}, {vr(PK+8*a,4)}, {vr(SPm,4)}, 0;;{MFMA} {vr(TD[a],16)}, {vr(PK+8*a+4,4)}, {vr(SMm,4)}, {vr(TD[a],16)}")
        l(f"s_lshl_b32 s{sT0}, s{sP}, 10;;s_lshl_b32 s{sT1}, s{sRG}, 2;;s_add_u32 s{sT0}, s{sT0}, s{sT1};;s_add_u32 s{sT0}, s{sT0}, {ZSC};;v_and_b32 v{vS}, 0x1f0, v{vL16};;v_add_u32 v{vS}, s{sT0}, v{vS}")
        l.extend(["@MARK", "@PAD", "@NEED 4"])
        for a in (1, 0):
            for j in range(8): l(f"v_cvt_pk_bf16_f32 v{PK+8*a+j}, v{TD[a]+2*j}, v{TD[a]+2*j+1}")
        for a in (1, 0):
            l(f"s_nop 1;;{M16} {vr(TMP+4*a,4)}, {vr(SELC,4)}, {vr(PK+8*a,4)}, 0;;{M16} {vr(TMP+4*a,4)}, {vr(SELC,4)}, {vr(PK+8*a+4,4)}, {vr(TMP+4*a,4)}")
        l.extend(["@MARK", "@PAD", "@PAD", "@NEED 8"])
        for a in range(2): l(f"ds_write_b32 v{vS}, v{TMP+4*a} offset:{512*a}")
        return l
    CQ, VBQ = vAUX + 8, vAUX + 4
    def vepi():
        l = aug(swap=True, cq=CQ)
        for i in range(16): l(f"v_mul_f32 v{EACC+i}, v{EACC+i}, v{TMP+i}")
        for i in range(8): l(f"v_cvt_pk_bf16_f32 v{VBQ+i}, v{EACC+2*i}, v{EACC+2*i+1}")
        for i in range(8): l(f"v_cndmask_b32 v{TMP+i}, 0, v{VBQ+i}, {sr(sLT16,2)}")
        l(f"s_nop 1;;{MFMA} {vr(EACC,16)}, {vr(PK,4)}, {vr(TMP,4)}, 0;;{MFMA} {vr(EACC,16)}, {vr(PK+4,4)}, {vr(TMP+4,4)}, {vr(EACC,16)}")
        for i in range(8): l(f"v_cndmask_b32 v{TMP+8+i}, v{VBQ+i}, 0, {sr(sLT16,2)}")
        l(f"s_nop 1;;{MFMA} {vr(EACC,16)}, {vr(PK+8,4)}, {vr(TMP+8,4)}, {vr(EACC,16)};;{MFMA} {vr(EACC,16)}, {vr(PK+12,4)}, {vr(TMP+12,4)}, {vr(EACC,16)}")
        l.extend(["@MARK", "@PAD", "@PAD", "@PAD", "@NEED 12"])
        for q in range(4): l(f"ds_write_b128 v{vS+1}, {vr(EACC+4*q,4)} offset:{1024*q}")
        return l
    e(f"s_add_u32 s{sDA}, s{sROWO}, s{sCOL+2}"); e(f"s_mov_b32 s{sMA}, s{sLB0}")
    tch = (f"s_cmp_ge_u32 s{sW}, 4;;s_cbranch_scc1 K_NT;;s_lshl_b32 s{sT2}, s{sRB}, 3;;s_add_u32 s{sT2}, s{sT2}, s{sC};;s_lshl_b32 s{sT2}, s{sT2}, 1;;"
           f"s_and_b32 s{sT0}, s{sW}, 1;;s_add_u32 s{sT2}, s{sT2}, s{sT0};;s_cmp_lt_u32 s{sW}, 2;;s_cselect_b64 {sr(SAUX,2)}, s[96:97], s[98:99];;"
           f"s_mov_b32 s{sT0}, {1792*1024};;s_cselect_b32 s{SAUX+2}, s{sT0}, {512*1024};;s_movk_i32 s{sT0}, 7168;;s_cselect_b32 s{sT0}, s{sT0}, 2048;;"
           f"s_cselect_b32 s{sT1}, 56, 16;;s_mul_i32 s{sT0}, s{sT0}, s{sT2};;v_lshlrev_b32 v{vDUM}, 7, v{vL};;s_bfm_b64 exec, s{sT1}, 0;;"
           f"buffer_load_dword v{vDUM}, v{vDUM}, {sr(SAUX,4)}, s{sT0} offen;;s_mov_b64 exec, -1;;K_NT:")
    flq = merge(kepi(), dma8() + [tch], 0.35)
    if L2 in (1, 3, 4, 5): flq.insert(int(len(flq) * OPT.get("l2at", 60) / 100), l2pf(0))
    if L2 == 2:
        flq.insert(int(len(flq) * 0.62), l2pf(1)); flq.insert(int(len(flq) * 0.45), l2pf(0))
    QAP = APOLL.replace(f"v{vS+4}", f"v{vDUM}").replace(f"v{vS+5}", f"v{vDMA}")
    flq.insert(int(len(flq) * OPT.get("qap", 70) / 100), f"s_cmp_lg_u32 s{sW}, 7;;s_cbranch_scc1 K_QAP;;" + QAP + ";;K_QAP:")
    e.ext(interleave(mgroups(swap=True), flq, 1, 31))
    st("b1")
    round_toggle()
    e(f"s_lshl_b32 s{sT0}, s{sP}, 15"); e(f"s_lshl_b32 s{sT1}, s{sRG}, 12"); e(f"s_add_u32 s{sT0}, s{sT0}, s{sT1}"); e(f"s_add_u32 s{sT0}, s{sT0}, {YB}")
    e(f"v_add_u32 v{vS+1}, s{sT0}, v{vL16}")
    e(f"s_waitcnt vmcnt(0) lgkmcnt(0)")
    e(f"v_mov_b32 v{vS+5}, v{vDMA}")
    r2_check(0)
    dmalane(vDMA, vS + 2, vS + 3)
    poll_addr()
    e(f"s_lshl_b32 s{sT0}, s{sP}, 15"); e(f"s_lshl_b32 s{sT1}, s{sRG}, 10"); e(f"s_add_u32 s{sT0}, s{sT0}, s{sT1}"); e(f"s_add_u32 s{sT0}, s{sT0}, {YB}")
    e(f"v_add_u32 v{vS+4}, s{sT0}, v{vL16}")
    e(f"s_and_b32 s{sT2}, s{sRG}, 1"); e(f"s_lshl_b32 s{sT0}, s{sP}, 1"); e(f"s_add_u32 s{sT2}, s{sT2}, s{sT0}")
    e(f"s_lshl_b32 s{sT0}, s{sT2}, 9"); e(f"s_add_u32 s{sT0}, s{sT0}, {ZSC}")
    e(f"v_and_b32 v{vS}, 0x1f0, v{vL16}"); e(f"v_add_u32 v{vS}, s{sT0}, v{vS}")
    e(f"s_lshl_b32 s{sOUT}, s{sRB}, 17"); e(f"s_lshl_b32 s{sT0}, s{sC}, 14"); e(f"s_add_u32 s{sOUT}, s{sOUT}, s{sT0}"); e(f"s_add_u32 s{sOUT}, s{sOUT}, {KVP_OFF}")
    e(f"s_lshl_b32 s{sT2}, s{sT2}, 7"); e(f"s_add_u32 s{sT2}, s{sT2}, s{sOUT}"); e(f"s_add_u32 s{sT2}, s{sT2}, 8192")
    e(f"s_lshl_b32 s{sT0}, s{sW}, 10"); e(f"s_add_u32 s{sOUT}, s{sOUT}, s{sT0}")
    e(f"s_cmp_lg_u32 s{sISC}, 0"); e("s_cselect_b64 vcc, -1, 0")
    e("s_barrier")
    st("r1end")
    MG = mgroups(pre=[f"ds_read_b128 {vr(TMP+4*q,4)}, v{vC1} offset:{32*q}" for q in range(4)], cq=CQ)
    QP, QC = OPT.get("qp", 30), OPT.get("qc", 24)
    if L2 == 1: MG[1].append(l2pf(1))
    VS = OPT.get("vs", 9)
    RW = OPT.get("rw", 1)
    for i in range(NE): MG[(VS + 8 + i) if RW == 0 else (1 + i)].append(erow(i, vDMA))
    if XR:
        MG[17].append("s_barrier")
        for k in range(4): MG[18 + k].append(erow(NE + k, vDMA))
    MG[QP].append(f"s_waitcnt vmcnt({0 if XR else RW})")
    MG[QP].append(guard(FPOLL))
    if L2 == 3: MG[QP].append("s_cbranch_vccnz K_QL2;;" + l2pf(1) + ";;" + l2pf(1, 4) + ";;K_QL2:")
    if OPT.get("gs", 0):
        VD = OPT.get("vd", 4)
        sig = (f"s_lshl_b32 s{sT0}, s{sP}, 2;;s_add_u32 s{sT0}, s{sT0}, {GSY+64};;v_mov_b32 v{vS+1}, s{sT0};;v_mov_b32 v{vS+5}, 1;;"
               f"s_mov_b64 exec, 1;;ds_add_u32 v{vS+1}, v{vS+5};;s_mov_b64 exec, -1")
        e.ext(interleave(MG[:VS+1-VD], vepi() + [sig], 1, VS - VD))
        for g in MG[VS+1-VD:VS+1]: e.ext(g)
        e.label("K_QSP")
        e(f"ds_read_b32 v{vS+5}, v{vS+1}"); e("s_waitcnt lgkmcnt(0)")
        e(f"v_readfirstlane_b32 s{sT0}, v{vS+5}"); e("s_nop 3")
        e(f"s_cmp_lt_u32 s{sT0}, 4"); e("s_cbranch_scc1 K_QSP")
    else:
        e.ext(interleave(MG[:VS+1], vepi(), 1, VS))
        e("s_waitcnt lgkmcnt(0)"); e("s_barrier")
    st("m2b")
    for w in range(4): e(f"ds_read_b128 {vr(TMP+4*w,4)}, v{vS+4} offset:{4096*w}")
    e(f"ds_read_b128 {vr(PK,4)}, v{vS}")
    e(f"v_lshlrev_b32 v{vS+4}, 2, v{vL}")
    kr = Lst()
    for j in range(4): kr(f"v_add_f32 v{TMP+j}, v{TMP+j}, v{TMP+4+j}")
    for j in range(4): kr(f"v_add_f32 v{TMP+8+j}, v{TMP+8+j}, v{TMP+12+j}")
    for j in range(4): kr(f"v_add_f32 v{TMP+j}, v{TMP+j}, v{TMP+8+j}")
    kr(f"buffer_store_dwordx4 {vr(TMP,4)}, v{vL16}, {sr(SWS,4)}, s{sOUT} offen sc1")
    kr(f"v_add_f32 v{PK}, v{PK}, v{PK+1}"); kr(f"v_add_f32 v{PK+2}, v{PK+2}, v{PK+3}"); kr(f"v_add_f32 v{PK}, v{PK}, v{PK+2}")
    kr(f"s_cmp_ge_u32 s{sRG}, 2;;s_cbranch_scc1 K_QNZ;;s_mov_b32 exec_hi, 0;;buffer_store_dword v{PK}, v{vS+4}, {sr(SWS,4)}, s{sT2} offen sc1;;s_mov_b32 exec_hi, -1;;K_QNZ:")
    RED, sU, sRED = 128, sA0, sST
    vRS, vRS2, vRD, vRT = vAUX + 4, vAUX + 5, vAUX + 6, vAUX + 8
    mark = len(e.L)
    e(f"s_lshl_b32 s{sRED}, s{sISC}, 2"); e(f"s_add_u32 s{sRED}, s{sRED}, s{sRG}")
    e(f"s_cmp_ge_u32 s{sRED}, 2"); e("s_cbranch_scc1 K_QRA")
    e(f"s_lshl_b32 s{sU}, s{sC}, 4"); e(f"s_add_u32 s{sU}, s{sU}, s{sRB}"); e(f"s_lshl_b32 s{sU}, s{sU}, 1"); e(f"s_add_u32 s{sU}, s{sU}, s{sRG}")
    e(f"v_lshrrev_b32 v{vRT}, 4, v{vL}"); e(f"v_and_b32 v{vRT+1}, 15, v{vL}"); e(f"v_lshlrev_b32 v{vRT+1}, 4, v{vRT+1}")
    e(f"v_lshl_add_u32 v{vRD}, v{vRT}, 2, v{vRT+1}")
    e(f"s_lshl_b32 s{sPF}, s{sC}, 14"); e(f"s_add_u32 s{sPF}, s{sPF}, {KVP_OFF}")
    e(f"s_cmp_eq_u32 s{sRG}, 0"); e("s_cbranch_scc0 K_GZA")
    e(f"s_and_b32 s{sT0}, s{sRB}, 8"); e(f"s_lshl_b32 s{sT0}, s{sT0}, 9"); e(f"s_add_u32 s{sPF}, s{sPF}, s{sT0}")
    e(f"s_and_b32 s{sT0}, s{sRB}, 2"); e(f"s_lshl_b32 s{sT0}, s{sT0}, 10"); e(f"s_add_u32 s{sPF}, s{sPF}, s{sT0}")
    e(f"s_and_b32 s{sT0}, s{sRB}, 1"); e(f"s_lshl_b32 s{sT0}, s{sT0}, 9"); e(f"s_add_u32 s{sPF}, s{sPF}, s{sT0}")
    e(f"s_and_b32 s{sT0}, s{sRB}, 4"); e(f"s_lshl_b32 s{sT0}, s{sT0}, 6"); e(f"s_add_u32 s{sPF}, s{sPF}, s{sT0}")
    e(f"v_lshl_add_u32 v{vRS}, v{vRT}, 17, v{vRT+1}"); e(f"v_add_u32 v{vRS2}, 1024, v{vRS}")
    e("s_branch K_GZB")
    e.label("K_GZA")
    e(f"s_lshr_b32 s{sT0}, s{sRB}, 1"); e(f"s_lshl_b32 s{sT0}, s{sT0}, 6"); e(f"s_add_u32 s{sPF}, s{sPF}, s{sT0}")
    e(f"s_and_b32 s{sT0}, s{sRB}, 1"); e(f"s_lshl_b32 s{sT0}, s{sT0}, 4"); e(f"s_add_u32 s{sPF}, s{sPF}, s{sT0}"); e(f"s_add_u32 s{sPF}, s{sPF}, 8192")
    e(f"v_lshlrev_b32 v{vRS}, 17, v{vRT}"); e(f"v_add_u32 v{vRS2}, 32, v{vRS}")
    e.label("K_GZB")
    RLOAD = f"s_mov_b32 s{sT0}, s{sPF}"
    for u in range(4):
        RLOAD += f";;buffer_load_dwordx4 {vr(RED+8*u,4)}, v{vRS}, {sr(SWS,4)}, s{sT0} offen sc1;;buffer_load_dwordx4 {vr(RED+8*u+4,4)}, v{vRS2}, {sr(SWS,4)}, s{sT0} offen sc1"
        if u < 3: RLOAD += f";;s_add_u32 s{sT0}, s{sT0}, {4*131072}"
    e.label("K_QRA")
    ra = ";;".join(t.strip() for t in e.L[mark:]); del e.L[mark:]
    MG[VS + 10].append(ra)
    rli = f"s_cmp_ge_u32 s{sRED}, 2;;s_cbranch_scc1 K_QRL;;" + RLOAD + ";;K_QRL:"
    if OPT.get("rl", 31) <= 32: MG[OPT.get("rl", 31)].append(rli)
    e.ext(interleave(MG[VS+1:], kr, 4, 6))
    st("b2")
    round_toggle()
    e("s_waitcnt lgkmcnt(0)")
    e("s_barrier")
    st("r2end")
    e(f"ds_read_b128 {vr(PK,4)}, v{vCSR}")
    if OPT.get("rl", 31) > 32: e(rli)
    p2_setup()
    PARK = 0xC000
    e(f"s_mul_i32 s{sT0}, s{sRG}, 3072"); e(f"s_add_u32 s{sT0}, s{sT0}, {PARK}")
    e(f"v_add_u32 v{vS+1}, s{sT0}, v{vL16}")
    e(f"s_lshl_b32 s{sT0}, s{sRG}, 2"); e(f"s_add_u32 s{sT0}, s{sT0}, {GSY+32}"); e(f"v_mov_b32 v{vS+4}, s{sT0}")
    e("s_waitcnt lgkmcnt(0)")
    lq = aug()
    lq += [f"v_cvt_pk_bf16_f32 v{PK+8+i}, v{EACC+2*i}, v{EACC+2*i+1}" for i in range(8)]
    e("s_cbranch_vccz K_QG")
    lq2 = lq + [f"ds_write_b128 v{vS+1}, {vr(PK+8,4)}", f"ds_write_b128 v{vS+1}, {vr(PK+12,4)} offset:1024", f"ds_write_b128 v{vS+1}, {vr(WT,4)} offset:2048"]
    lq2 += [f"v_mov_b32 v{vS+5}, 1;;s_waitcnt lgkmcnt(0);;ds_write_b32 v{vS+4}, v{vS+5}"]
    e("s_waitcnt vmcnt(0)"); check([(FPOLL, ND, 0xff, 1)])
    a16 = []
    for i in range(NA): a16 += aload(i)
    e.ext(merge(lq2, a16[:8])); e.ext(a16[8:])
    for i in range(NE2, NE2 + NW1): e.ext(wdma(i))
    e("s_branch K_P2")

    e.label("K_QG")
    QBc, PHS, KVR = 168, 192, 208
    vSL = 112
    sGI = sA1
    e(f"s_setprio {OPT.get('gprio', 2)}")
    e(f"v_mov_b32 v{vSL}, v{vS+1}"); e(f"v_mov_b32 v{vSL+2}, v{vS+4}")
    def ldspin(lbl, areg, n):
        e.label(lbl)
        e(f"ds_read_b32 v{vS+5}, v{areg}"); e("s_waitcnt lgkmcnt(0)")
        e(f"v_readfirstlane_b32 s{sT0}, v{vS+5}"); e("s_nop 3")
        e(f"s_cmp_lt_u32 s{sT0}, {n}"); e(f"s_cbranch_scc1 {lbl}")
    e.ext(aug())
    for i in range(8): e(f"v_cvt_pk_bf16_f32 v{QBc+i}, v{EACC+2*i}, v{EACC+2*i+1}")
    vG, vG1, vG2 = 96, 97, 98
    e(f"v_mov_b32 v{vG}, {GSY:#x}"); e(f"v_mov_b32 v{vG1}, 1")
    red = []; st("ra", red); red += ["s_waitcnt vmcnt(0)", sentinel(RED, 32, vG2, RLOAD)]; st("rb", red)
    red += [ f"s_lshl_b32 s{sT0}, s{sU}, 8", f"s_add_u32 s{sT0}, s{sT0}, {KVZ_OFF}"]
    for stp in (16, 8): red += [f"v_add_f32 v{RED+j}, v{RED+j}, v{RED+stp+j}" for j in range(stp)]
    red += ["s_nop 1"] + [f"v_permlane32_swap_b32 v{RED+k}, v{RED+k+4}" for k in range(4)] + [f"v_add_f32 v{RED+k}, v{RED+k}, v{RED+k+4}" for k in range(4)]
    red += ["s_nop 1"] + [f"v_permlane16_swap_b32 v{RED+k}, v{RED+k+2}" for k in range(2)] + [f"v_add_f32 v{RED+k}, v{RED+k}, v{RED+k+2}" for k in range(2)]
    red += [f"v_cvt_pk_bf16_f32 v{RED}, v{RED}, v{RED+1}", f"buffer_store_dword v{RED}, v{vRD}, {sr(SWS,4)}, s{sT0} offen sc1",
            "s_mov_b64 exec, 1", f"ds_add_u32 v{vG}, v{vG1}", "s_mov_b64 exec, -1"]
    e(f"s_and_b32 s{sT0}, s{sRG}, 1"); e(f"s_lshl_b32 s{sT3}, s{sT0}, 12"); e(f"s_xor_b32 s{sT0}, s{sT0}, s{sP}"); e(f"s_lshl_b32 s{sT0}, s{sT0}, 12")
    e(f"s_lshl_b32 s{sT2}, s{sC}, 13"); e(f"s_add_u32 s{sT2}, s{sT2}, s{sT0}"); e(f"s_add_u32 s{sT2}, s{sT2}, {KVZ_OFF}")
    ZLOAD = ";;".join(f"buffer_load_dwordx4 {vr(KVR+4*k,4)}, v{vL16}, {sr(SWS,4)}, s{sT2} offen offset:{1024*k} sc1" for k in range(4))
    g1, g2 = L("R"), L("R")
    mid = f"s_add_u32 s{sT0}, s{sRG}, s{sGI};;s_cmp_ge_u32 s{sT0}, 2;;s_cbranch_scc1 {g1};;" + ";;".join(red) + f";;{g1}:"
    mid2 = f"s_add_u32 s{sT0}, s{sRG}, s{sGI};;s_cmp_lt_u32 s{sT0}, 4;;s_cbranch_scc1 {g2};;" + ZLOAD + f";;{g2}:"
    e(f"s_mov_b32 s{sGI}, 0")
    e.label("K_GQ")
    sq = softcore(QBc)
    n0 = len(sq)
    for pos, it in sorted(((OPT.get("gmid", 25), mid), (OPT.get("gmid2", 45), mid2)), reverse=True): sq.insert(int(n0 * pos / 100), it)
    e.ext(sq)
    e(f"s_cmp_lg_u32 s{sGI}, 0"); e("s_cbranch_scc1 K_GQD")
    st("gk")
    ldspin("K_GQS", vSL + 2, 1)
    e(f"ds_read_b128 {vr(WT,4)}, v{vSL} offset:2048")
    e(f"ds_read_b128 {vr(QBc,4)}, v{vSL}"); e(f"ds_read_b128 {vr(QBc+4,4)}, v{vSL} offset:1024")
    for j in range(16): e(f"v_mov_b32 v{PHS+j}, v{PK+j}")
    e(f"s_mov_b32 s{sGI}, 2")
    ldspin("K_GOS", vG, 2)
    e("s_branch K_GQ")
    e.label("K_GQD")
    st("gq")
    e(f"v_add_u32 v{vS+3}, {YB:#x}, v{vL16}")
    e(f"s_cmp_lt_u32 s{sRG}, 2"); e("s_cbranch_scc1 K_GZS")
    e(f"v_add_u32 v{vS+2}, s{sT3}, v{vS+3}")
    e("s_waitcnt vmcnt(0)")
    e(sentinel(KVR, 16, vS + 4, ZLOAD))
    st("gr")
    for k in range(4): e(f"ds_write_b128 v{vS+2}, {vr(KVR+4*k,4)} offset:{1024*k}")
    e("s_waitcnt lgkmcnt(0)")
    e("s_mov_b64 exec, 1"); e(f"ds_add_u32 v{vG}, v{vG1}"); e("s_mov_b64 exec, -1")
    ldspin("K_GZS", vG, 4)
    for k in range(8): e(f"ds_read_b128 {vr(KVR+4*k,4)}, v{vS+3} offset:{1024*k}")
    st("gv")
    e(f"s_lshl_b32 s{sT2}, s{sRT}, 16"); e(f"s_lshl_b32 s{sT0}, s{sC}, 13"); e(f"s_add_u32 s{sT2}, s{sT2}, s{sT0}")
    e(f"s_lshl_b32 s{sT0}, s{sP}, 12"); e(f"s_add_u32 s{sT2}, s{sT2}, s{sT0}"); e(f"s_add_u32 s{sT2}, s{sT2}, {PQ_OFF}")
    e(f"s_xor_b32 s{sT3}, s{sT2}, 4096")
    fragoff(vFO, sRT)
    e("s_waitcnt lgkmcnt(0)")
    NDG = (64, 80, 128, 144)
    for hd in range(4):
        ph = (PHS if hd < 2 else PK) + 8 * (hd & 1); d = vr(NDG[hd], 16)
        e(f"{MFMA} {d}, {vr(KVR+8*hd,4)}, {vr(ph,4)}, 0"); e(f"{MFMA} {d}, {vr(KVR+8*hd+4,4)}, {vr(ph+4,4)}, {d}")
    e("s_nop 5")
    for hd in range(4):
        d = NDG[hd]
        e(f"v_add_f32 v{vS}, {f2u(1e-6):#x}, v{d+8}"); e(f"v_rcp_f32 v{vS}, v{vS}"); e("s_nop 0")
        for j in range(8): e(f"v_mul_f32 v{d+j}, v{d+j}, v{vS}")
        for j in range(4): e(f"v_cvt_pk_bf16_f32 v{TMP+4*hd+j}, v{d+2*j}, v{d+2*j+1}")
        e(f"buffer_store_dwordx4 {vr(TMP+4*hd,4)}, v{vFO}, {sr(SWS,4)}, s{sT2 if hd < 2 else sT3} offen offset:{2048*(hd&1)} sc1")
    e("s_branch K_GFIN")

    e.label("K_P2")
    if not OPT.get("keepprio"): e(f"s_setprio {OPT.get('cprio', 0)}")
    st("p2start")
    if OPT.get("trace"): e(f"v_mov_b32 v240, 0;;s_memtime s[84:85];;s_waitcnt lgkmcnt(0);;s_sub_u32 s84, s84, s78;;v_writelane_b32 v240, s84, 0")
    vS2, vXB, vX, vB, OP = 224, 16, 32, 40, 32
    ACC2, WB2 = 48, 112
    SO, SB2 = 64, 68
    XBASE, vFW, vFR2, vT3 = 0, 24, 25, 232
    def fin_loads():
        e("s_load_dwordx4 s[72:75], s[0:1], 64")
        e(f"s_lshr_b32 s{sT1}, s{sC}, 2"); e(f"s_lshl_b32 s{sT2}, s{sRB}, 1"); e(f"s_add_u32 s{sT2}, s{sT2}, s{sT1}")
        cbcalc()
        e(f"s_lshl_b32 s{sXO2}, s{sRG}, 1"); e(f"s_add_u32 s{sXO2}, s{sXO2}, s{sISC}")
        e(f"s_lshl_b32 s{sXO}, s{sT2}, 16"); e(f"s_add_u32 s{sXO}, s{sXO}, s{sT1}"); e(f"s_lshl_b32 s{sT0}, s{sXO2}, 13"); e(f"s_add_u32 s{sXO}, s{sXO}, s{sT0}")
        e(f"buffer_load_dwordx4 {vr(vX,4)}, v{vXO}, {sr(SX,4)}, s{sXO} offen")
        e(f"v_and_b32 v{vS2+5}, 0x70, v{vL16}")
        e("s_waitcnt lgkmcnt(0)")
        srd(e, SB2, 72, 73, 1024)
        srd(e, SO, 74, 75, 2048 * 1024)
        e(f"buffer_load_dwordx4 {vr(vB,4)}, v{vS2+5}, {sr(SB2,4)}, s{sT1} offen")
    def fin_prep():
        vS2 = 26
        for k in range(4):
            d = vXB + 2 * k
            e(f"v_lshlrev_b32 v{vS2}, 16, v{vB+k}"); e(f"v_and_b32 v{vS2+1}, s{sMASK}, v{vB+k}")
            e(f"v_lshlrev_b32 v{d}, 16, v{vX+k}"); e(f"v_and_b32 v{d+1}, s{sMASK}, v{vX+k}")
            e(f"v_add_f32 v{d}, v{d}, v{vS2}"); e(f"v_add_f32 v{d+1}, v{d+1}, v{vS2+1}")
        e(f"v_lshrrev_b32 v{vFR2}, 3, v{vL}"); e(f"v_mul_u32_u24 v{vFR2}, 272, v{vFR2}")
        e(f"v_and_b32 v{vS2}, 7, v{vL}"); e(f"v_lshl_add_u32 v{vFR2}, v{vS2}, 5, v{vFR2}")
        e(f"s_mul_i32 s{sT2}, s{sXO2}, {8*272}"); e(f"s_add_u32 s{sT2}, s{sT2}, {XBASE}")
        e(f"v_add_u32 v{vFR2}, s{sT2}, v{vFR2}")
    LA = OPT.get("la", 5)
    nun = [1] * 36
    ops = [i for i in range(NA) for _ in range(2)] + [i for i in range(NE2, NE2 + NW1) for _ in range(2)]
    NPRE = len(ops)
    state = dict(na=NA, nw=NE2 + NW1, done=-1)
    FIRST = {}
    QPOLL = f"s_sub_u32 s{sT0}, s{sPF}, {128*1024};;s_mov_b64 exec, 0xff;;buffer_load_dword v{ND}, v{vPA}, {sr(SWS,4)}, s{sT0} offen sc1;;s_mov_b64 exec, -1"
    def tagwait(tag):
        last = max(i for i, o in enumerate(ops) if o == tag)
        e(f"s_waitcnt vmcnt({min(63, len(ops) - 1 - last)})")
    def issue_a(i):
        R = RING + 8 * unit[i]
        if i in FIRST and not OPT.get("x_nopoll"):
            st(f"cb{i}"); tagwait(f"p{i}"); check([(FPOLL, ND, 0xff, FIRST[i])]); st(f"ca{i}")
        e.ext(aload(i)); ops.extend([i] * 2)
        PL = OPT.get("pl", 3)
        if i + PL in FIRST and not OPT.get("x_nopoll"): e(FPOLL); ops.append(f"p{i+PL}")
    def pump(which=3):
        n = 0
        while state["na"] < 36 and which & 1:
            i = state["na"]
            us = set(range(unit[i], unit[i] + nun[i]))
            if any(us & set(range(unit[q], unit[q] + nun[q])) for q in range(state["done"] + 1, i)): break
            if i - state["done"] > (OPT.get("la1", 7) if i < 16 else LA if i < 28 else OPT.get("la2", 5)): break
            issue_a(i); state["na"] += 1; n += 1
        while state["nw"] < 36 and which & 2 and state["nw"] - state["done"] <= OPT.get("lw", 13):
            e.ext(wdma(state["nw"])); ops.extend([state["nw"]] * 2); state["nw"] += 1; n += 1
        return n
    for fi in FIRST:
        if NA <= fi < NA + OPT.get("pl", 3) and not OPT.get("x_nopoll"): e(FPOLL); ops.append(f"p{fi}")
    pump()
    fin_loads()
    ops.extend(["x"] * 2)
    e(f"s_lshl_b32 s{sP0}, s{sT2}, 17"); e(f"s_lshl_b32 s{sT0}, s{sRG}, 14"); e(f"s_add_u32 s{sP0}, s{sP0}, s{sT0}"); e(f"s_add_u32 s{sP0}, s{sP0}, {PQ_OFF}")
    e(f"s_add_u32 s{sKV}, s{sP0}, 65536")
    e(f"v_bfe_u32 v{vS2+6}, v{vL}, 2, 2"); e(f"v_lshrrev_b32 v{vS2+4}, 5, v{vL}"); e(f"v_bfe_u32 v{vS2+3}, v{vL}, 4, 1")
    e(f"v_lshl_add_u32 v{vS2+7}, v{vS2+4}, 2, v{vS2+6}"); e(f"v_lshlrev_b32 v{vTR0}, 7, v{vS2+7}")
    e(f"v_lshl_add_u32 v{vTR0}, v{vS2+3}, 5, v{vTR0}")
    e(f"v_and_b32 v{vS2+7}, 3, v{vL}"); e(f"v_lshl_add_u32 v{vTR0}, v{vS2+7}, 3, v{vTR0}")
    e(f"v_lshrrev_b32 v{vS2+6}, 1, v{vS2+6}"); e(f"v_lshl_add_u32 v{vTR0}, v{vS2+6}, 6, v{vTR0}")
    e(f"v_add_u32 v{vTR0}, s{sLB}, v{vTR0}")
    e(f"v_xor_b32 v{vTR1}, 64, v{vTR0}")
    for k in range(3):
        e(f"v_add_u32 v{vT3+2*k}, {0x10000*k:#x}, v{vTR0}"); e(f"v_add_u32 v{vT3+2*k+1}, {0x10000*k:#x}, v{vTR1}")
    def wbuf(i): return WB2 + 8 * (i & 1) if i < 34 or OPT.get("nt", 2) == 2 else 240 + 8 * (i & 1)
    def wreads(i):
        off = ROW[i % NL] & 0xffff; b = wbuf(i)
        vTR0 = vT3 + 2 * (ROW[i % NL] >> 16); vTR1 = vTR0 + 1
        e(f"ds_read_b64_tr_b16 {vr(b,2)}, v{vTR0} offset:{off}")
        e(f"ds_read_b64_tr_b16 {vr(b+2,2)}, v{vTR0} offset:{off+1024}")
        e(f"ds_read_b64_tr_b16 {vr(b+4,2)}, v{vTR1} offset:{off}")
        e(f"ds_read_b64_tr_b16 {vr(b+6,2)}, v{vTR1} offset:{off+1024}")
    def mm4(buf, act, first=False):
        for nt in range(2):
            for mt in range(2):
                c = vr(ACC2 + 16 * (2 * nt + mt), 16)
                e(f"{MFMA} {c}, {vr(WB2+8*buf+4*nt,4)}, {act[mt]}, {'0' if first else c}")
    tagwait(0)
    st("p2data")
    if OPT.get("trace"): e(f"s_memtime s[84:85];;s_waitcnt lgkmcnt(0);;s_sub_u32 s84, s84, s78;;v_writelane_b32 v240, s84, 1")
    wreads(0)
    cold = []
    def sent(i):
        R = RING + 8 * unit[i]
        chk = [f"v_max3_u32 v{vS2}, v{R}, v{R+1}, v{R+2}", f"v_max3_u32 v{vS2+1}, v{R+3}, v{R+4}, v{R+5}",
               f"v_max3_u32 v{vS2}, v{vS2}, v{R+6}, v{R+7}", f"v_max_u32 v{vS2}, v{vS2}, v{vS2+1}", f"v_cmp_eq_u32 vcc, -1, v{vS2}", "s_nop 0", "s_cmp_lg_u64 vcc, 0"]
        e.ext(chk); e(f"s_cbranch_scc1 K_RT{i}"); e.label(f"K_RB{i}")
        def rl(q):
            Rq = RING + 8 * unit[q]
            o_, b0, b1 = (2048 * order[q], sA0, sA1) if q < 28 else (2048 * (q - 28), sP0, sKV)
            return [f"s_add_u32 s{sT0}, s{b0}, {o_}", f"s_add_u32 s{sT1}, s{b1}, {o_}",
                    f"buffer_load_dwordx4 {vr(Rq,4)}, v{vF0}, {sr(SWS,4)}, s{sT0} offen sc1", f"buffer_load_dwordx4 {vr(Rq+4,4)}, v{vF1}, {sr(SWS,4)}, s{sT1} offen sc1"]
        if OPT.get("rmode", 0) == 0:
            t = [f"K_RT{i}:", f"s_mov_b32 s{sCNT}, 0", f"K_RL{i}:", "s_waitcnt vmcnt(0)", f"s_sleep {OPT.get('rsl', 2)}"]
            for q in range(i, state["na"]): t += rl(q)
            t += [f"s_add_u32 s{sCNT}, s{sCNT}, 1", "s_waitcnt vmcnt(0)", f"s_cmp_ge_u32 s{sCNT}, {SPIN // 8}", f"s_cbranch_scc1 K_RB{i}"] + chk + [f"s_cbranch_scc1 K_RL{i}", f"s_branch K_RB{i}"]
        else:
            t = [f"K_RT{i}:", f"s_mov_b32 s{sCNT}, 0", f"K_RA{i}:", "s_waitcnt vmcnt(0)"]
            for q in range(i, state["na"]): t += rl(q)
            t += ["s_waitcnt vmcnt(0)", f"s_cmp_ge_u32 s{sCNT}, {SPIN // 8}", f"s_cbranch_scc1 K_RB{i}"] + chk + [f"s_cbranch_scc0 K_RB{i}", f"K_RL{i}:", f"s_sleep {OPT.get('rsl', 6)}"]
            t += rl(i) + [f"s_add_u32 s{sCNT}, s{sCNT}, 1", "s_waitcnt vmcnt(0)", f"s_cmp_ge_u32 s{sCNT}, {SPIN // 8}", f"s_cbranch_scc1 K_RA{i}"] + chk + [f"s_cbranch_scc1 K_RL{i}", f"s_branch K_RA{i}"]
        cold.extend(t)
    def mm1(i, t):
        nt, mt = t >> 1, t & 1; c = vr(ACC2 + 16 * t, 16)
        e(f"{MFMA} {c}, {vr(wbuf(i)+4*nt,4)}, {vr(RING+8*unit[i]+4*mt,4)}, {'0' if i == 0 else c}")
    mark = len(e.L)
    fin_prep()
    e(f"v_and_b32 v{vFW}, 31, v{vL}"); e(f"v_mul_u32_u24 v{vFW}, 272, v{vFW}")
    e(f"v_lshrrev_b32 v26, 5, v{vL}"); e(f"v_lshl_add_u32 v{vFW}, v26, 4, v{vFW}")
    e(f"s_mul_i32 s{sT2}, s{sRG}, 17408"); e(f"s_add_u32 s{sT2}, s{sT2}, {XBASE}")
    e(f"v_add_u32 v{vFW}, s{sT2}, v{vFW}")
    fp = [t.strip() for t in e.L[mark:]]; del e.L[mark:]
    NT = OPT.get("nt", 2)
    for i in range(36 - NT):
        e("s_waitcnt lgkmcnt(0)")
        mm1(i, 0)
        state["done"] = i - 1
        pump(1)
        mm1(i, 1)
        tagwait(i + 1)
        wreads(i + 1)
        mm1(i, 2)
        if i + 1 >= 8: sent(i + 1)
        mm1(i, 3)
        pump(2)
        if i >= 12: e.ext(fp[:3]); del fp[:3]
        st(f"s{i}")
        if OPT.get("trace"): e(f"s_memtime s[84:85];;s_waitcnt lgkmcnt(0);;s_sub_u32 s84, s84, s78;;v_writelane_b32 v240, s84, {i+2}")
    assert not fp and state["na"] == 36 and state["nw"] == 36
    for i in range(37 - NT, 36):
        tagwait(i); wreads(i)
    for i in range(37 - NT, 36): sent(i)
    e("s_waitcnt lgkmcnt(0)")
    def twr(t):
        nt, mt = t >> 1, t & 1
        return [f"ds_write_b128 v{vFW}, {vr(ACC2+16*t+4*q,4)} offset:{32*272*mt + 128*nt + 32*q}" for q in range(4)]
    fin = []
    for t in range(4):
        nt, mt = t >> 1, t & 1; c = vr(ACC2 + 16 * t, 16)
        fin += [f"{MFMA} {c}, {vr(wbuf(i)+4*nt,4)}, {vr(RING+8*unit[i]+4*mt,4)}, {c}" for i in range(36 - NT, 36)]
        if t == 1: fin.append("s_barrier")
        if t >= 1: fin += [f"@NEED {12}", "@MARK"] + twr(t - 1)
        else: fin.append("@MARK")
    fin += ["@NEED 12"] + twr(3)
    e.ext(fin)
    st("s35")
    e("s_waitcnt lgkmcnt(0)")
    if OPT.get("trace"):
        e(f"s_memtime s[84:85];;s_waitcnt lgkmcnt(0);;s_sub_u32 s84, s84, s78;;v_writelane_b32 v240, s84, 36")
        e(f"s_lshl_b32 s84, s2, 2;;s_add_u32 s84, s84, s{sRG};;s_lshl_b32 s84, s84, 8;;s_add_u32 s84, s84, {210<<20};;v_lshlrev_b32 v241, 2, v{vL}")
        e(f"buffer_store_dword v240, v241, {sr(SWS,4)}, s84 offen")
    e("s_branch K_LAST")
    e.label("K_GFIN")
    st("gend")
    e("s_setprio 0")
    e(f"v_lshrrev_b32 v{vXO}, 3, v{vL}"); e(f"v_lshlrev_b32 v{vXO}, 10, v{vXO}")
    e(f"v_and_b32 v{vS2}, 7, v{vL}"); e(f"v_lshl_add_u32 v{vXO}, v{vS2}, 4, v{vXO}")
    fin_loads()
    e("s_waitcnt vmcnt(0)")
    fin_prep()
    e("s_barrier")
    e.label("K_LAST")
    e("s_barrier")
    for p in range(4):
        for hh in range(2):
            e(f"ds_read_b128 {vr(ACC2+8*p+4*hh,4)}, v{vFR2} offset:{17408*p + 16*hh}")
    for p in range(4):
        e(f"s_waitcnt lgkmcnt({6 - 2*p})")
        for j in range(0, 8, 2): e(f"v_pk_add_f32 {vr(vXB+j,2)}, {vr(vXB+j,2)}, {vr(ACC2+8*p+j,2)}")
    for j in range(4): e(f"v_cvt_pk_bf16_f32 v{OP+j}, v{vXB+2*j}, v{vXB+2*j+1}")
    e(f"buffer_store_dwordx4 {vr(OP,4)}, v{vXO}, {sr(SO,4)}, s{sXO} offen {OPT.get('st2', '').replace('_', ' ')}")
    e.label("K_FIN")
    if OPT.get("x_hold"):
        e.label("K_HOLD")
        e("s_sleep 4"); e("s_memrealtime s[82:83]"); e("s_waitcnt lgkmcnt(0)")
        e("s_sub_u32 s82, s82, s80"); e(f"s_cmp_lt_u32 s82, {OPT['x_hold']}")
        e(f"s_cselect_b32 s82, s{sISC}, 0"); e("s_cmp_lg_u32 s82, 0"); e("s_cbranch_scc1 K_HOLD")
    if OPT.get("cnt"): e("s_add_u32 s90, s91, s78")
    if OPT["stamps"] and not OPT.get("phys"):
        e(f"s_xor_b32 s{sW}, s{sISC}, 1"); e(f"s_lshl_b32 s{sW}, s{sW}, 2"); e(f"s_add_u32 s{sW}, s{sW}, s{sRG}")
    stamp_end(e, 0, SWS, "K_END", sW, 0)
    e.label("K_END")
    e("s_endpgm")
    e.ext(cold)
    return e.text()

HEADER = """; out = x + hedgehog_linear_attention(LN(x)) + gelu_ffn(LN(x));  one launch, 256 workgroups x 8 waves, one per CU.
; Phase 1: 128 QKV workgroups (128 rows x 4 heads) and 128 FFN workgroups (128 rows x 224 hidden columns).  Raw x fragments stay in
;   registers, weight tiles stream through LDS (LDS-DMA + transposing reads); LayerNorm is applied exactly as a rank-1 correction
;   (row mean x column sum, one extra MFMA) and a per-row scale folded into the epilogues (GELU / true-max softmaxes).
; Phase 2: every workgroup computes a 64x64 tile of [h | o] @ [w2 ; wo] (+ x + b2), K split over four waves, while the other four
; Hand-offs through d_ws use sc1 stores/loads only: per-wave flag lines (reset at start, ordered by a counter in d_debug) and
;   slots pre-filled with an all-ones mark that the reader re-reads until the mark is gone.  Every spin is bounded.
"""
def main():
    out = HEADER
    out += "; @launch grid=(256,1,1) block=(512,1,1) lds=163840\n"
    out += '.amdgcn_target "amdgcn-amd-amdhsa--gfx950"\n.text\n'
    out += f".globl {KN}\n.p2align 8\n.type {KN},@function\n{KN}:\n" + gen()
    out += ".p2align 8\n.fill 1536, 4, 0xbf800000\n"
    out += f""".section .rodata,"a"
.p2align 6
.amdhsa_kernel {KN}
  .amdhsa_next_free_vgpr 256
  .amdhsa_next_free_sgpr 102
  .amdhsa_accum_offset 256
  .amdhsa_group_segment_fixed_size 0
  .amdhsa_kernarg_size 96
  .amdhsa_user_sgpr_count 2
  .amdhsa_user_sgpr_kernarg_segment_ptr 1
  .amdhsa_system_sgpr_workgroup_id_x 1
.end_amdhsa_kernel
"""
    open(sys.argv[1], "w").write(out)
main()
```

```python
import sys, math, struct

OPT = dict(stamps=0, st1="sc1", k1only=0, k2only=0, pfcode=1, pfw2=3)
for a in sys.argv[2:]:
    k, v = a.split("=")
    OPT[k] = int(v) if v.lstrip("-").isdigit() else v

H_OFF, PQ_OFF, KVP_OFF, KVZ_OFF, FLG_OFF = 0, 0x1000000, 0x1400000, 0x1600000, 0x1610000
STAMP_OFF = 200 << 20
NSTAMP = 8
LOOPST = OPT.get('loopst', -1)

def f2u(x): return struct.unpack("<I", struct.pack("<f", x))[0]

class Asm:
    def __init__(self): self.L = []
    def __call__(self, s):
        for t in s.split(";;"):
            t = t.strip()
            self.L.append(t if t.endswith(":") else "    " + t)
    def label(self, s): self.L.append(s + ":")
    def ext(self, lst):
        cnt = 0
        for s in lst:
            if s == "@MARK": cnt = 0; continue
            if s == "@PAD": continue
            if s.startswith("@NEED"):
                d = int(s.split()[1]) - cnt
                if d > 0: self(f"s_nop {d-1}")
                continue
            self(s)
            if "s_cbranch" in s: cnt += 1
            else: cnt += sum(1 for t in s.split(";;") if not t.strip().endswith(":"))
    def text(self): return "\n".join(self.L) + "\n"

class Lst(list):
    def __call__(self, s): self.append(s)

def vr(b, n=1): return f"v{b}" if n == 1 else f"v[{b}:{b+n-1}]"
def ar(b, n=1): return f"a{b}" if n == 1 else f"a[{b}:{b+n-1}]"
def sr(b, n=1): return f"s{b}" if n == 1 else f"s[{b}:{b+n-1}]"
MFMA = "v_mfma_f32_32x32x16_bf16"

def cost(ins):
    c = 0
    for t in ins.split(";;"):
        op = t.split()[0]
        if op == "@PAD": c += 8; continue
        if op.endswith(":") or op.startswith("@"): continue
        if "s_cbranch" in ins and op.startswith(("s_", "v_")): c += 0.5; continue
        if op.startswith(("v_exp", "v_rcp", "v_sqrt", "v_log", "v_mfma")): c += 8
        elif op == "s_nop": c += 2 * (int(t.split()[1]) + 1)
        elif op.startswith("s_"): c += 1
        elif op.startswith("buffer_"): c += 8
        else: c += 4.5
    return c

def interleave(groups, fill, first=0, last=None):
    last = len(groups) - 1 if last is None else last
    tot = sum(cost(i) for i in fill); n = last - first + 1
    out = []; k = 0; acc = 0.0
    for gi, g in enumerate(groups):
        out += g
        if first <= gi <= last:
            tgt = tot * (gi - first + 1) / n
            while k < len(fill) and (acc + cost(fill[k]) / 2 <= tgt or gi == last):
                out.append(fill[k]); acc += cost(fill[k]); k += 1
    assert k == len(fill)
    return out

def merge(a, b, frac=1.0):
    out = []; n = max(1, int(len(a) * frac)); k = 0
    for i, x in enumerate(a):
        while k < len(b) and k * n <= i * len(b) and i < n:
            out.append(b[k]); k += 1
        out.append(x)
    out += b[k:]
    return out

def srd(e, d, lo, hi, size):
    e(f"s_mov_b32 s{d}, s{lo}"); e(f"s_mov_b32 s{d+1}, s{hi}")
    e(f"s_mov_b32 s{d+2}, {size:#x}"); e(f"s_mov_b32 s{d+3}, 0x00020000")

def stamp(e, idx, base=80):
    if OPT["stamps"]:
        e(f"s_memtime s[{base+2*idx}:{base+2*idx+1}]")

def stamp_begin(e, base=80):
    if OPT["stamps"]:
        e(f"s_memrealtime s[{base}:{base+1}]")
        e(f"s_memtime s[{base-2}:{base-1}]")
        for i in range(2, NSTAMP):
            e(f"s_mov_b64 s[{base+2*i}:{base+2*i+1}], 0")

def stamp_end(e, kidx, wssrd, lbl, wave_sgpr, wave_sel, base=80):
    if not OPT["stamps"]: return
    e(f"s_memtime s[{base+2*(NSTAMP-2)}:{base+2*(NSTAMP-2)+1}]")
    e("s_waitcnt vmcnt(0)")
    e(f"s_memrealtime s[{base+2}:{base+3}]")
    e(f"s_memtime s[{base+2*(NSTAMP-1)}:{base+2*(NSTAMP-1)+1}]")
    e("s_waitcnt lgkmcnt(0)")
    for i in range(2, NSTAMP):
        e(f"s_sub_u32 s{base+2*i}, s{base+2*i}, s{base if (OPT.get('rt') and i < 6) else base-2}")
        e(f"s_mov_b32 s{base+2*i+1}, 0")
    e(f"s_lshl_b32 s{base-2}, s2, 3"); e(f"s_add_u32 s{base-2}, s{base-2}, s{wave_sgpr}")
    e(f"s_mul_i32 s{base-2}, s{base-2}, {8*NSTAMP}")
    e(f"s_add_u32 s{base-2}, s{base-2}, {STAMP_OFF + kidx*256*8*8*NSTAMP}")
    e("s_mov_b64 exec, 1")
    e("v_mov_b32 v1, 0")
    for i in range(NSTAMP // 2):
        for j in range(4):
            e(f"v_mov_b32 v{4+j}, s{base+4*i+j}")
        e(f"buffer_store_dwordx4 v[4:7], v1, {sr(wssrd,4)}, s{base-2} offen offset:{16*i}")
        e("s_nop 1")
    e("s_waitcnt vmcnt(0)")

KN = "parallel_sum__linear_kernel_hedgehog__dense_activation_gelu__prompt_kernel"
SPIN = OPT.get("spin", 20000)
CNT_OFF = FLG_OFF + 2048 * 128

def gen():
    e = Asm()
    M16 = "v_mfma_f32_16x16x32_bf16"
    SDBG, SX, SW, SWS, SAUX = 4, 8, 12, 16, 20
    sW, sRG, sP, sC, sRB, sTYPE = 24, 25, 26, 27, 28, 29
    sPITCH, sRT, sIDX, sROT = 30, 31, 32, 33
    sONES, sLO, sHI, sMASK = 34, 35, 36, 37
    sT0, sT1, sT2, sT3, sT4 = 38, 39, 40, 41, 42
    sXB = 43
    sCOL = 44
    sSLOT, sIT, sOUT, sAUXO, sP16 = 48, 49, 50, 51, 52
    sDA, sDB, sMA, sROWO, sW4K, sST = 53, 54, 55, 56, 57, 61
    sLT16, sFLG = 58, 60
    sJG, sISC, sWB, sLEV = 76, 77, 100, 101
    vDUM, vL, vL16, vDMA, vTR = 0, 1, 2, 3, 4
    vS, vCSW, vCSR, SELC, CS, AUG, vC0, vC1 = 8, 14, 15, 16, 20, 24, 30, 31
    TMP, PK, ACC, EACC, WB, vAUX, XF = 32, 48, 64, 80, 96, 116, 128
    NWB = 5
    YB, ZB = 0x10000, 0x20000
    STAT, CSX, RVO, GSY, ZSC = 0x20000, 0x20800, 0x21000, 0x21400, 0x21800
    vFR, vXD, RS, vQ, vAL = TMP, TMP + 8, TMP + 12, TMP + 16, TMP + 18
    STF = "" if OPT.get("x_pst") else "sc1"
    lab = [0]
    def L(p):
        lab[0] += 1
        return f"{p}{lab[0]}"
    SP = str(OPT.get("sp", "")).split(",")
    def st(name, lst=None):
        if OPT["stamps"] and name in SP:
            i = 2 + SP.index(name)
            t = f"{'s_memrealtime' if OPT.get('rt') else 's_memtime'} s[{80+2*i}:{81+2*i}];;s_waitcnt lgkmcnt(0)"
            (e if lst is None else lst.append)(t)
    e("s_cmp_ge_u32 s2, 256")
    e("s_cbranch_scc1 K_END")
    stamp_begin(e)
    if OPT.get("x_hold"): e("s_memrealtime s[80:81]")
    if OPT.get("cnt"): e("s_mov_b32 s91, 1")
    e("s_load_dwordx4 s[64:67], s[0:1], 0")
    e("s_load_dwordx2 s[68:69], s[0:1], 16")
    e("s_load_dwordx4 s[72:75], s[0:1], 40")
    e("s_load_dwordx2 s[70:71], s[0:1], 88")
    e("s_load_dwordx2 s[96:97], s[0:1], 56")
    e("s_load_dwordx2 s[98:99], s[0:1], 24")
    e(f"s_load_dwordx2 {sr(SDBG,2)}, s[0:1], 80")
    e(f"v_lshrrev_b32 v{vS}, 6, v0")
    e(f"v_and_b32 v{vL}, 63, v0")
    e(f"v_readfirstlane_b32 s{sW}, v{vS}")
    e(f"s_lshr_b32 s{sIDX}, s2, 3")
    if OPT["pfcode"]:
        e(f"s_cmp_lg_u32 s{sW}, 7"); e("s_cbranch_scc1 K_NOPF")
        e("s_getpc_b64 s[62:63]")
        e("s_and_b32 s62, s62, 0xffffff00")
        e(f"s_mul_i32 s{sT1}, s{sIDX}, 1024")
        e(f"v_lshl_add_u32 v{vS+3}, v{vL}, 7, s{sT1}")
        e("s_mov_b64 exec, 0xff")
        e(f"global_load_dword v{vDUM}, v{vS+3}, s[62:63]")
        e("s_mov_b64 exec, -1")
        e.label("K_NOPF")
    if OPT.get("x_skew"):
        e("s_and_b32 s38, s2, 7"); e("s_cmp_lg_u32 s38, 5"); e("s_cbranch_scc1 K_NSK"); e(f"s_sleep {OPT['x_skew']}"); e.label("K_NSK")
    e(f"s_and_b32 s{sT0}, s2, 7")
    e(f"s_lshr_b32 s{sRB}, s{sT0}, 1"); e(f"s_lshl_b32 s{sRB}, s{sRB}, 2")
    e(f"s_and_b32 s{sT2}, s{sIDX}, 3"); e(f"s_add_u32 s{sRB}, s{sRB}, s{sT2}")
    e(f"s_lshr_b32 s{sT1}, s{sIDX}, 2")
    e(f"s_add_u32 s{sROT}, s{sT1}, s{sT2}"); e(f"s_and_b32 s{sROT}, s{sROT}, {OPT.get('rotm', 3)}")
    e(f"s_and_b32 s{sTYPE}, s{sT1}, 1")
    e(f"s_lshr_b32 s{sT1}, s{sT1}, 1")
    e(f"s_and_b32 s{sC}, s{sT0}, 1"); e(f"s_lshl_b32 s{sC}, s{sC}, 2"); e(f"s_add_u32 s{sC}, s{sC}, s{sT1}")
    e(f"s_and_b32 s{sRG}, s{sW}, 3"); e(f"s_lshr_b32 s{sP}, s{sW}, 2")
    e(f"v_lshrrev_b32 v{vS}, 4, v{vL}"); e(f"v_and_b32 v{vS+1}, 15, v{vL}")
    e(f"v_xor_b32 v{vS+2}, v{vS}, v{vS+1}"); e(f"v_lshlrev_b32 v{vS+2}, 4, v{vS+2}")
    e(f"v_lshl_add_u32 v{vXD}, v{vS}, 10, v{vS+2}")
    for i in range(1, 4): e(f"v_xor_b32 v{vXD+i}, {4096*i + 64*i}, v{vXD}")
    e(f"s_lshl_b32 s{sXB}, s{sRB}, 17"); e(f"s_lshl_b32 s{sT0}, s{sW}, 14"); e(f"s_add_u32 s{sXB}, s{sXB}, s{sT0}")
    e(f"s_lshl_b32 s{sW4K}, s{sW}, 12")
    e(f"v_and_b32 v{vS+3}, 31, v{vL}")
    e(f"v_lshrrev_b32 v{vS+4}, 5, v{vL}")
    e(f"s_cmp_eq_u32 s{sTYPE}, 0")
    e("s_cbranch_scc1 K_SETQ")
    e(f"s_movk_i32 s{sPITCH}, 3584")
    e(f"s_mul_i32 s{sAUXO}, s{sC}, 448")
    e(f"s_and_b32 s{sT1}, s{sC}, 1")
    e(f"s_lshl_b32 s{sT2}, s{sT1}, 6"); e(f"s_add_u32 s{sCOL}, s{sAUXO}, s{sT2}")
    e(f"s_add_u32 s{sCOL+1}, s{sCOL}, 128"); e(f"s_add_u32 s{sCOL+2}, s{sCOL}, 256")
    e(f"s_lshl_b32 s{sT2}, s{sT1}, 9"); e(f"s_add_u32 s{sCOL+3}, s{sCOL}, 384"); e(f"s_sub_u32 s{sCOL+3}, s{sCOL+3}, s{sT2}")
    e(f"s_lshl_b32 s{sT2}, s{sP}, 6")
    e(f"v_lshl_add_u32 v{vAL}, v{vS+3}, 1, s{sT2}")
    e(f"s_mov_b32 s{SW+2}, {512*3584}"); e(f"s_movk_i32 s{SAUX+2}, 3584")
    e("s_branch K_SETD")
    e.label("K_SETQ")
    e(f"s_movk_i32 s{sPITCH}, 3072")
    e(f"s_lshl_b32 s{sCOL+2}, s{sC}, 7"); e(f"s_add_u32 s{sCOL}, s{sCOL+2}, 1024"); e(f"s_add_u32 s{sCOL+1}, s{sCOL+2}, 2048")
    e(f"s_lshl_b32 s{sT1}, s{sP}, 10"); e(f"s_lshl_b32 s{sAUXO}, s{sC}, 11"); e(f"s_add_u32 s{sT1}, s{sT1}, s{sAUXO}")
    e(f"v_lshl_add_u32 v{vAL}, v{vL}, 4, s{sT1}")
    e(f"s_mov_b32 s{SW+2}, {512*3072}"); e(f"s_movk_i32 s{SAUX+2}, {32*512}")
    e.label("K_SETD")
    e(f"s_mov_b32 s{SW+3}, 0x00020000"); e(f"s_mov_b32 s{SAUX+3}, 0x00020000")
    e(f"v_lshrrev_b32 v{vDMA}, 2, v{vL}"); e(f"v_mul_lo_u32 v{vDMA}, v{vDMA}, s{sPITCH}")
    e(f"v_and_b32 v{vS+5}, 3, v{vL}"); e(f"v_lshl_add_u32 v{vDMA}, v{vS+5}, 4, v{vDMA}")
    e(f"s_lshl_b32 s{sP16}, s{sPITCH}, 4")
    e(f"s_mul_i32 s{sWB}, s{sP16}, s{sW}"); e(f"s_add_u32 s{sWB}, s{sWB}, s{sCOL}")
    e(f"s_cmp_eq_u32 s{sTYPE}, 0")
    e("s_waitcnt lgkmcnt(0)")
    e(f"s_cselect_b64 {sr(SW,2)}, s[66:67], s[72:73]"); e(f"s_cselect_b64 {sr(SAUX,2)}, s[68:69], s[74:75]")
    srd(e, SX, 64, 65, 2048 * 1024)
    ROP = "s_xor_b32" if OPT.get("rxor", 0) else "s_add_u32"
    XBUF = (ZB, YB, YB + 0x8000, ZB)
    def sset(j):
        l = Lst()
        l(f"{ROP} s{sT0}, s{sROT}, {j};;s_and_b32 s{sT0}, s{sT0}, 3;;s_lshl_b32 s{sT1}, s{sT0}, 8;;s_add_u32 s{sT1}, s{sT1}, s{sXB};;"
          f"s_lshl_b32 s{sT0}, s{sT0}, 3;;s_mul_i32 s{sT0}, s{sT0}, s{sP16};;s_add_u32 s{sT0}, s{sT0}, s{sWB};;s_add_u32 s{sT2}, s{sT0}, 64;;s_lshr_b32 s{sT3}, s{sW4K}, 2")
        for i in range(4):
            l(f"s_add_u32 m0, s{sW4K}, {XBUF[j] + 1024*i};;s_nop 0;;buffer_load_dwordx4 v{vXD+i}, {sr(SX,4)}, s{sT1} offen lds")
        wo = 0x8000 * (j >> 1) + 8192 * (j & 1)
        l(f"s_add_u32 m0, s{sT3}, {wo};;s_nop 0;;buffer_load_dwordx4 v{vDMA}, {sr(SW,4)}, s{sT0} offen lds")
        l(f"s_add_u32 m0, s{sT3}, {wo + 0x4000};;s_nop 0;;buffer_load_dwordx4 v{vDMA}, {sr(SW,4)}, s{sT2} offen lds")
        return l
    wt = (f"s_lshr_b32 s{sT0}, s{sW}, 1;;s_cmp_lg_u32 s{sT0}, 1;;s_cbranch_scc1 K_NW;;s_cmp_eq_u32 s{sW}, 2;;"
          f"s_cselect_b64 s[92:93], s[72:73], s[66:67];;s_mov_b32 s{sT0}, {512*3584};;s_cselect_b32 s94, s{sT0}, {512*3072};;s_mov_b32 s95, 0x00020000;;"
          f"s_movk_i32 s{sT0}, 7168;;s_cselect_b32 s{sT0}, s{sT0}, 6144;;s_cselect_b32 s{sT1}, 56, 48;;s_mul_i32 s{sT0}, s{sT0}, s2;;"
          f"v_lshlrev_b32 v{vDUM}, 7, v{vL};;s_bfm_b64 exec, s{sT1}, 0;;buffer_load_dword v{vDUM}, v{vDUM}, s[92:95], s{sT0} offen;;s_mov_b64 exec, -1;;K_NW:")
    WTA = OPT.get("wta", 2)
    xt = (f"s_cmp_lg_u32 s{sW}, 1;;s_cbranch_scc1 K_NX;;s_lshl_b32 s{sT0}, s2, 13;;v_lshlrev_b32 v{vDUM}, 7, v{vL};;"
          f"buffer_load_dword v{vDUM}, v{vDUM}, {sr(SX,4)}, s{sT0} offen;;K_NX:")
    st("ka")
    if OPT.get("xta", 0) == 1: e(xt)
    if WTA == -2: e(wt)
    e.ext(sset(0))
    if OPT.get("xta", 0) == 2: e(xt)
    if WTA == -1: e(wt)
    st("i0")
    srd(e, SWS, 70, 71, 0x10000000)
    e(f"s_movk_i32 s{SDBG+2}, 256"); e(f"s_mov_b32 s{SDBG+3}, 0x00020000")
    e(f"s_lshl_b32 s{sRT}, s{sRB}, 2"); e(f"s_add_u32 s{sRT}, s{sRT}, s{sRG}")
    e(f"s_lshl_b32 s{sFLG}, s{sTYPE}, 4"); e(f"s_add_u32 s{sFLG}, s{sFLG}, s{sRB}"); e(f"s_lshl_b32 s{sFLG}, s{sFLG}, 3"); e(f"s_add_u32 s{sFLG}, s{sFLG}, s{sC}")
    e(f"s_lshl_b32 s{sFLG}, s{sFLG}, 10"); e(f"s_add_u32 s{sFLG}, s{sFLG}, {FLG_OFF}")
    e(f"s_and_b32 s{sISC}, s{sC}, 1"); e(f"s_xor_b32 s{sISC}, s{sISC}, s{sP}")
    e(f"v_lshlrev_b32 v{vL16}, 4, v{vL}")
    e(f"v_mov_b32 v{AUG+4}, 0"); e(f"v_mov_b32 v{AUG+5}, 0")
    e(f"s_lshl_b32 s{sIT}, s{sTYPE}, 3"); e(f"s_add_u32 s{sIT}, s{sIT}, s{sW}")
    e(f"s_cmp_lg_u32 s{sIT}, 15"); e("s_cbranch_scc1 K_NZ")
    e(f"v_lshlrev_b32 v{vS+2}, 3, v{vL}")
    e(f"buffer_store_dwordx2 {vr(AUG+4,2)}, v{vS+2}, {sr(SWS,4)}, s{sFLG} offen sc1")
    e(f"buffer_store_dwordx2 {vr(AUG+4,2)}, v{vS+2}, {sr(SWS,4)}, s{sFLG} offen offset:512 sc1")
    e.label("K_NZ")
    e(f"s_lshl_b32 s{sT0}, s{sW}, 7"); e(f"s_add_u32 s{sFLG}, s{sFLG}, s{sT0}")
    e(f"s_lshl_b32 s{sT0}, s{sROT}, 2"); e(f"{ROP} s{sT0}, s{sT0}, s{sW}"); e(f"s_and_b32 s{sT1}, s{sT0}, 15"); e(f"s_lshl_b32 s{sT1}, s{sT1}, 1")
    e(f"s_mul_i32 s{sROWO}, s{sT1}, s{sP16}")
    e(f"s_add_u32 s{sT0}, s{sT0}, 8"); e(f"s_and_b32 s{sT1}, s{sT0}, 15"); e(f"s_lshl_b32 s{sT1}, s{sT1}, 1")
    e(f"s_mul_i32 s{sJG}, s{sT1}, s{sP16}"); e(f"s_sub_u32 s{sJG}, s{sJG}, s{sROWO}"); e(f"s_sub_u32 s{sJG}, s{sJG}, s{sP16}")
    e(f"s_lshl_b32 s{sT4}, s{sW}, 11")
    sLB0 = sT4
    vFO, vF0, vF1 = vAUX + 11, 238, 239
    def fragoff(vd, srt):
        if OPT.get("x_flat"):
            e(f"s_and_b32 s{sT0}, s{srt}, 1"); e(f"s_lshl_b32 s{sT0}, s{sT0}, 10"); e(f"v_xor_b32 v{vd}, s{sT0}, v{vL16}"); return
        e(f"s_and_b32 s{sT0}, s{srt}, 7"); e(f"s_cmp_eq_u32 s{sT0}, 3"); e(f"s_cselect_b32 s{sT0}, 7, s{sT0}")
        e(f"s_lshl_b32 s{sT0}, s{sT0}, 7"); e(f"s_add_u32 s{sT0}, s{sT0}, 640")
        e("s_mov_b32 s62, 0xff000000"); e("s_mov_b32 s63, 0")
        e(f"v_mov_b32 v{vd}, s{sT0}"); e(f"v_cndmask_b32 v{vd}, 0, v{vd}, s[62:63]"); e(f"v_add_u32 v{vd}, v{vd}, v{vL16}")
        e(f"s_and_b32 s{sT0}, s{srt}, 1"); e(f"s_lshl_b32 s{sT0}, s{sT0}, 10"); e(f"v_xor_b32 v{vd}, s{sT0}, v{vd}")
    fragoff(vFO, sRT)
    def guard(t):
        g = L("G"); return f"s_cbranch_vccz {g};;{t};;{g}:"
    def dma8(gd=False):
        l = []
        for i in range(4):
            jg, jl = (f"s{sJG}", "0x7c00") if i == 1 else (f"s{sP16}", "1024")
            l += [f"s_mov_b32 m0, s{sMA};;s_add_u32 s{sDB}, s{sDA}, 64;;buffer_load_dwordx4 v{vDMA}, {sr(SW,4)}, s{sDA} offen lds",
                  f"s_add_u32 m0, s{sMA}, 0x4000;;s_add_u32 s{sDA}, s{sDA}, {jg};;buffer_load_dwordx4 v{vDMA}, {sr(SW,4)}, s{sDB} offen lds;;s_add_u32 s{sMA}, s{sMA}, {jl}"]
        if not gd: return l
        l = []
        for i in range(4):
            jg, jl = (f"s{sJG}", "0x7c00") if i == 1 else (f"s{sP16}", "1024")
            g = L("G")
            l += [guard(f"s_mov_b32 m0, s{sMA};;s_add_u32 s{sDB}, s{sDA}, 64;;buffer_load_dwordx4 v{vDMA}, {sr(SW,4)}, s{sDA} offen lds"),
                  f"s_add_u32 m0, s{sMA}, 0x4000;;s_add_u32 s{sDA}, s{sDA}, {jg};;s_add_u32 s{sMA}, s{sMA}, {jl};;s_cmp_lg_u32 s{sLEV}, 0;;s_cbranch_scc1 {g};;"
                  f"buffer_load_dwordx4 v{vDMA}, {sr(SW,4)}, s{sDB} offen lds;;{g}:"]
        return l
    e(f"s_mov_b32 s{sONES}, 0x3f803f80"); e(f"s_mov_b32 s{sLO}, 0x00003f80"); e(f"s_mov_b32 s{sHI}, 0x3f800000")
    e(f"s_mov_b32 s{sMASK}, 0xffff0000")
    e(f"v_lshlrev_b32 v{vS+2}, 9, v{vS+4}")
    e(f"v_bfe_u32 v{vS}, v{vL}, 2, 2"); e(f"v_lshl_add_u32 v{vS+2}, v{vS}, 6, v{vS+2}")
    e(f"v_bfe_u32 v{vCSW}, v{vL}, 4, 1"); e(f"v_lshl_add_u32 v{vS+2}, v{vCSW}, 5, v{vS+2}")
    e(f"v_lshl_add_u32 v{vS+2}, v{vS+5}, 3, v{vS+2}")
    e(f"s_xor_b32 s{sT3}, s{sRG}, s{sP}"); e(f"s_lshl_b32 s{sT1}, s{sP}, 14")
    for k in range(4):
        e(f"s_xor_b32 s{sT0}, s{sT3}, {k}"); e(f"s_lshl_b32 s{sT0}, s{sT0}, 10"); e(f"s_add_u32 s{sT0}, s{sT0}, s{sT1}")
        e(f"v_add_u32 v{vTR+k}, s{sT0}, v{vS+2}")
    e(f"v_and_b32 v{vS}, 1, v{vS}"); e(f"v_cmp_eq_u32 vcc, v{vS}, v{vCSW}"); e(f"v_mov_b32 v{vS}, s{sONES}")
    e(f"v_cmp_gt_u32 {sr(sLT16,2)}, 16, v{vS+3}")
    for j in range(4): e(f"v_cndmask_b32 v{SELC+j}, 0, v{vS}, vcc")
    e(f"v_xor_b32 v{vS}, v{vS+4}, v{vS+1}"); e(f"v_lshlrev_b32 v{vS}, 4, v{vS}")
    e(f"v_lshl_add_u32 v{vS}, v{vS+3}, 8, v{vS}")
    e(f"s_lshl_b32 s{sT0}, s{sT3}, 5"); e(f"v_xor_b32 v{vS}, s{sT0}, v{vS}")
    e(f"s_lshl_b32 s{sT0}, s{sRG}, 13"); e(f"s_add_u32 s{sT0}, s{sT0}, {YB + 0x8000}"); e(f"v_add_u32 v{vFR}, s{sT0}, v{vS}")
    for s in range(1, 8): e(f"v_xor_b32 v{vFR+s}, {32*s}, v{vFR}")
    e(f"s_lshl_b32 s{sT0}, s{sP}, 9"); e(f"s_add_u32 s{sT0}, s{sT0}, {CSX}")
    e(f"v_lshl_add_u32 v{vCSR}, v{vS+3}, 4, s{sT0}")
    e(f"s_lshl_b32 s{sT0}, s{sRG}, 2"); e(f"v_add_u32 v{vCSW}, s{sT0}, v{vCSR}")
    e(f"v_mov_b32 v{vQ}, 0"); e(f"v_mov_b32 v{vQ+1}, 0")
    def auxl(lbl):
        t = f"s_cmp_eq_u32 s{sTYPE}, 0;;s_cbranch_scc1 {lbl}Q"
        for i in range(4): t += f";;buffer_load_ushort v{vAUX+i}, v{vAL}, {sr(SAUX,4)}, s{sCOL+i} offen"
        t += f";;s_branch {lbl}D;;{lbl}Q:"
        t += f";;s_lshl_b32 m0, s{sW}, 10;;s_nop 0;;buffer_load_dwordx4 v{vAL}, {sr(SAUX,4)}, 0 offen lds"
        t += f";;{lbl}D:"
        return t
    if OPT.get("x_p2only"):
        e("s_waitcnt vmcnt(0)"); e("s_barrier")
        e(f"s_cmp_eq_u32 s{sISC}, 0"); e("s_cbranch_scc1 K_FIN")
        e("s_branch K_FTAIL")
    ROW = [YB + 0x4000, YB + 0x6000, YB + 0xC000, YB + 0xE000, 0x22000, 0x24000, 0x26000] + [0x2000 * k for k in range(6)]
    XR = OPT.get("xr", 1)
    NL, NE, NW1 = len(ROW), 7, OPT.get("nw1", 4)
    NE2 = NE + 4 * XR; NW1 = min(NW1, NL - NE2)
    sE1, sE2, SWE = 68, 69, 64
    sA0, sA1, sWK, sLB, sP0, sP1, sKV, sWO_, sXO, sXO2, sPF, sCNT = 30, 33, 43, 34, 51, 52, 53, 54, 55, 56, 57, 3
    SW2, SWO = SW, SAUX
    vTR0, vTR1, vXO, vPA = 4, 5, 6, vS + 2
    ND = vS + 3
    sEA = sWB
    order = [0, 1, 2, 3, 16, 17, 18, 19, 4, 5, 6, 7, 20, 21, 22, 23, 8, 9, 10, 11, 24, 25, 26, 27, 12, 13, 14, 15]
    def wdma(i):
        lo = ROW[i % NL]
        S, base, off = (SW2, sWK, order[i] * 16384) if i < 28 else (SWO, sWO_, (i - 28) * 16384)
        return [f"s_add_u32 m0, s{sLB}, {lo + 1024*k};;s_add_u32 s{sT0}, s{base}, {off + 8192*k};;buffer_load_dwordx4 v{vDMA}, {sr(S,4)}, s{sT0} offen lds" for k in range(2)]
    def erow(i, vd):
        return f"s_add_u32 m0, s{sE1}, {ROW[i]};;s_add_u32 s{sT0}, s{sE2}, {order[i]*16384};;buffer_load_dwordx4 v{vd}, {sr(SWE,4)}, s{sT0} offen lds"
    def dmalane(vd, t0, t1):
        e(f"v_lshrrev_b32 v{vd}, 3, v{vL}"); e(f"v_lshlrev_b32 v{vd}, 10, v{vd}")
        e(f"v_and_b32 v{t0}, 7, v{vL}"); e(f"v_bfe_u32 v{t1}, v{vL}, 4, 1"); e(f"v_lshlrev_b32 v{t1}, 2, v{t1}")
        e(f"v_xor_b32 v{t1}, v{t0}, v{t1}"); e(f"v_lshl_add_u32 v{vd}, v{t1}, 4, v{vd}")
    def cbcalc():
        if OPT.get("cbmap", 0) == 0:
            e(f"s_lshr_b32 s{sT1}, s{sIDX}, 2"); e(f"s_lshl_b32 s{sT1}, s{sT1}, 7")
        else:
            e(f"s_lshr_b32 s{sT1}, s{sIDX}, 3"); e(f"s_lshl_b32 s{sT0}, s{sTYPE}, 2"); e(f"s_add_u32 s{sT1}, s{sT1}, s{sT0}"); e(f"s_lshl_b32 s{sT1}, s{sT1}, 7")
    def p2_setup():
        e(f"s_cmp_lg_u32 s{sISC}, 0"); e("s_cselect_b64 vcc, -1, 0")
        srd(e, SW2, 96, 97, 1792 * 1024)
        srd(e, SWO, 98, 99, 512 * 1024)
        cbcalc()
        e(f"s_lshl_b32 s{sWO_}, s{sRG}, 17"); e(f"s_add_u32 s{sWO_}, s{sWO_}, s{sT1}")
        e(f"v_lshrrev_b32 v{vXO}, 3, v{vL}"); e(f"v_lshlrev_b32 v{vXO}, 10, v{vXO}")
        e(f"v_and_b32 v{vTR0}, 7, v{vL}"); e(f"v_bfe_u32 v{vTR1}, v{vL}, 4, 1"); e(f"v_lshlrev_b32 v{vTR1}, 2, v{vTR1}")
        e(f"v_xor_b32 v{vTR1}, v{vTR0}, v{vTR1}"); e(f"v_lshl_add_u32 v{vDMA}, v{vTR1}, 4, v{vXO}")
        e(f"v_lshl_add_u32 v{vXO}, v{vTR0}, 4, v{vXO}")
        e(f"s_lshr_b32 s{sT1}, s{sC}, 2"); e(f"s_lshl_b32 s{sT1}, s{sT1}, 1"); e(f"s_lshl_b32 s{sT2}, s{sRB}, 2"); e(f"s_add_u32 s{sT1}, s{sT1}, s{sT2}")
        fragoff(vF0, sT1); e(f"s_add_u32 s{sT1}, s{sT1}, 1"); fragoff(vF1, sT1)
    def early_scalars():
        e(f"s_lshr_b32 s{sT1}, s{sC}, 2"); e(f"s_lshl_b32 s{sT2}, s{sRB}, 1"); e(f"s_add_u32 s{sT2}, s{sT2}, s{sT1}")
        e(f"s_mul_i32 s{sA0}, s{sT2}, {4*114688}"); e(f"s_mul_i32 s{sT0}, s{sRG}, {28*2048}")
        e(f"s_add_u32 s{sA0}, s{sA0}, s{sT0}"); e(f"s_add_u32 s{sA1}, s{sA0}, {2*114688}")
        e(f"s_lshl_b32 s{sPF}, s{sRT}, 11"); e(f"s_lshl_b32 s{sT0}, s{sT1}, 8")
        e(f"s_add_u32 s{sPF}, s{sPF}, s{sT0}"); e(f"s_add_u32 s{sPF}, s{sPF}, {FLG_OFF + 128*1024}")
        e(f"s_cmp_lg_u32 s{sISC}, 0"); e(f"s_cselect_b32 s{sEA}, 1, 64")
        cbcalc()
        e(f"s_mul_i32 s{sWK}, s{sRG}, {448*1024}"); e(f"s_add_u32 s{sWK}, s{sWK}, s{sT1}")
        e(f"s_lshl_b32 s{sLB}, s{sRG}, 11")
        e(f"s_lshl_b32 s{sT0}, s{sP}, 10"); e(f"s_add_u32 s{sE1}, s{sLB}, s{sT0}")
        e(f"s_lshl_b32 s{sT0}, s{sP}, 13"); e(f"s_add_u32 s{sE2}, s{sWK}, s{sT0}")
        srd(e, SWE, 96, 97, 1792 * 1024)
    def poll_addr():
        e(f"v_lshrrev_b32 v{vPA}, 1, v{vL}"); e(f"v_lshlrev_b32 v{vPA}, 9, v{vPA}")
        e(f"v_and_b32 v{ND}, 1, v{vL}"); e(f"v_lshl_add_u32 v{vPA}, v{ND}, 7, v{vPA}")
    vD2 = vAUX + 10
    dmalane(vD2, vS + 2, vS + 3)
    poll_addr()
    for j in range(4): e(f"v_mov_b32 v{PK+4+j}, -1")
    SPm, SMm = vAUX + 4, vAUX + 8
    e(f"s_cmp_lg_u32 s{sTYPE}, 0"); e("s_cbranch_scc1 K_NSEL")
    e(f"v_lshlrev_b32 v{vS+4}, 2, v{vS+4}"); e(f"v_sub_u32 v{vS+4}, v{vS+1}, v{vS+4}")
    e(f"v_mov_b32 v{vS}, s{sLO}"); e(f"v_mov_b32 v{vS+5}, s{sHI}")
    for t, f0 in enumerate((0, 2, 8, 10)):
        e(f"v_cmp_eq_u32 vcc, {f0}, v{vS+4};;v_cmp_eq_u32 s[62:63], {f0+1}, v{vS+4};;s_nop 0;;"
          f"v_cndmask_b32 v{SMm+t}, 0, v{vS}, vcc;;v_cndmask_b32 v{SMm+t}, v{SMm+t}, v{vS+5}, s[62:63]")
    for j in range(4):
        e(f"v_cndmask_b32 v{SPm+j}, 0, v{SMm+j}, {sr(sLT16,2)}"); e(f"v_cndmask_b32 v{SMm+j}, v{SMm+j}, 0, {sr(sLT16,2)}")
    e(f"v_bfe_u32 v{vS}, v{vL}, 4, 1"); e(f"v_lshlrev_b32 v{vAUX}, 9, v{vS}")
    e(f"v_lshrrev_b32 v{vS}, 5, v{vL}"); e(f"v_lshl_add_u32 v{vAUX}, v{vS}, 7, v{vAUX}")
    e(f"v_lshl_add_u32 v{vAUX}, v{vS+1}, 3, v{vAUX}")
    e(f"s_lshl_b32 s{sT0}, s{sW}, 10"); e(f"v_add_u32 v{vAUX}, s{sT0}, v{vAUX}")
    e.label("K_NSEL")
    def q3touch():
        e(f"s_cmp_ge_u32 s{sC}, 4"); e("s_cbranch_scc1 K_NQ3")
        e("s_mov_b64 s[92:93], s[66:67]"); e(f"s_mov_b32 s94, {512*3072}"); e("s_mov_b32 s95, 0x00020000")
        e(f"s_lshl_b32 s{sT0}, s{sIDX}, 3"); e(f"s_add_u32 s{sT0}, s{sT0}, s{sW}"); e(f"s_mul_i32 s{sT0}, s{sT0}, 6144")
        for col in ((2048, 0) if OPT.get("q3", 1) < 3 else (0,)):
            for r in (0, 3072):
                for hf in (0, 64): e(f"s_buffer_load_dword s{sCNT}, s[92:95], s{sT0} offset:{col + 384 + r + hf}")
        e.label("K_NQ3")
    e(f"s_mul_i32 s{sOUT}, s{sRT}, {2*114688}"); e(f"s_lshl_b32 s{sT0}, s{sP}, 12"); e(f"s_add_u32 s{sOUT}, s{sOUT}, s{sT0}")
    e(f"s_and_b32 s{sAUXO}, s{sC}, 1"); e(f"s_lshl_b32 s{sAUXO}, s{sAUXO}, 6"); e(f"s_add_u32 s{sAUXO}, s{sAUXO}, s{sCOL+3}")
    e(f"s_lshl_b32 s{sSLOT}, s{sAUXO}, 6"); e(f"s_add_u32 s{sSLOT}, s{sSLOT}, s{sOUT}"); e(f"s_lshl_b32 s{sT0}, s{sP}, 11"); e(f"s_sub_u32 s{sSLOT}, s{sSLOT}, s{sT0}")
    M1 = vr(PK + 4, 4)
    pf1 = (f"s_cmp_eq_u32 s{sTYPE}, 0;;s_cbranch_scc1 K_NP1;;s_lshl_b32 s{sT0}, s{sRB}, 3;;s_add_u32 s{sT0}, s{sT0}, s{sC};;s_lshl_b32 s{sT0}, s{sT0}, 14;;s_lshl_b32 s{sT1}, s{sW}, 10;;"
           f"s_add_u32 s{sT2}, s{sT0}, s{sT1};;s_add_u32 s{sT2}, s{sT2}, {KVP_OFF};;buffer_store_dwordx4 {M1}, v{vL16}, {sr(SWS,4)}, s{sT2} offen sc1;;"
           f"s_cmp_lg_u32 s{sW}, 7;;s_cbranch_scc1 K_NP1;;s_lshl_b32 s{sT0}, s{sC}, 4;;s_add_u32 s{sT0}, s{sT0}, s{sRB};;s_lshl_b32 s{sT0}, s{sT0}, 9;;"
           f"s_add_u32 s{sT0}, s{sT0}, {KVZ_OFF};;s_mov_b32 exec_hi, 0;;buffer_store_dwordx4 {M1}, v{vL16}, {sr(SWS,4)}, s{sT0} offen sc1;;"
           f"buffer_store_dwordx4 {M1}, v{vL16}, {sr(SWS,4)}, s{sT2} offen offset:1024 sc1;;s_mov_b32 exec_hi, -1;;K_NP1:")
    pf2 = (f"s_cmp_eq_u32 s{sTYPE}, 0;;s_cbranch_scc1 K_NP2;;s_lshl_b32 s{sT0}, s{sRT}, 16;;s_lshl_b32 s{sT1}, s{sC}, 13;;s_add_u32 s{sT0}, s{sT0}, s{sT1};;s_lshl_b32 s{sT1}, s{sP}, 12;;"
           f"s_add_u32 s{sT0}, s{sT0}, s{sT1};;s_add_u32 s{sT0}, s{sT0}, {PQ_OFF};;buffer_store_dwordx4 {M1}, v{vFO}, {sr(SWS,4)}, s{sT0} offen sc1;;"
           f"buffer_store_dwordx4 {M1}, v{vFO}, {sr(SWS,4)}, s{sT0} offen offset:2048 sc1;;K_NP2:")
    hp = [f"s_lshl_b32 s{sT0}, s{sCOL+1+k//2}, 6;;s_add_u32 s{sT0}, s{sT0}, s{sOUT};;buffer_store_dwordx4 {vr(PK+4,4)}, v{vFO}, {sr(SWS,4)}, s{sT0} offen offset:{2048*(k&1)} sc1" for k in range(4)]
    hp.append(f"buffer_store_dwordx4 {vr(PK+4,4)}, v{vFO}, {sr(SWS,4)}, s{sSLOT} offen sc1")
    EPF = OPT.get("epf", 0)
    def epf():
        e(pf1); e(pf2)
        if EPF >= 2:
            e(f"s_cmp_eq_u32 s{sTYPE}, 0"); e("s_cbranch_scc1 K_NHP"); e.ext(hp); e.label("K_NHP")
    st("su")
    if EPF and OPT.get("epfat", 0) == 0: epf()
    if OPT.get("p1t", 0):
        e(f"s_lshl_b32 s{sT0}, s{sRB}, 3"); e(f"s_add_u32 s{sT0}, s{sT0}, s{sW}"); e(f"s_lshl_b32 s{sT0}, s{sT0}, 2"); e(f"s_mul_i32 s{sT0}, s{sT0}, s{sPITCH}")
        e(f"s_add_u32 s{sT0}, s{sT0}, s{sCOL+1}")
        for r in range(4):
            for hf in ((0, 64) if OPT.get("p1t") == 1 else (0,)): e(f"s_buffer_load_dword s{sCNT}, {sr(SW,4)}, s{sT0} offset:{hf}")
            if r < 3: e(f"s_add_u32 s{sT0}, s{sT0}, s{sPITCH}")
    if OPT.get("q3", 1) in (1, 3): q3touch()
    e.ext(sset(1))
    if EPF and OPT.get("epfat", 0) == 1: epf()
    if OPT.get("q3", 1) == 2: q3touch()
    st("i1")

    def wrd(s):
        b = WB + 4 * (s % NWB); o = 1024 * (s & 12) + 0x8000 * (s >> 4)
        return [f"ds_read_b64_tr_b16 {vr(b,2)}, v{vTR+(s&3)} offset:{o}", f"ds_read_b64_tr_b16 {vr(b+2,2)}, v{vTR+(s&3)} offset:{o+256}"]
    def csm(s):
        return f"{M16} {vr(CS,4)}, {vr(SELC,4)}, {vr(WB+4*(s%NWB),4)}, {'0' if s == 0 else vr(CS,4)}"
    XO = (0x8000, 0, 0x8000, 0x8000)
    def rd(s):
        return [f"ds_read_b128 {vr(XF+4*s,4)}, v{vFR+(s&7)} offset:{XO[s>>3]}"] + wrd(s)
    P2S = OPT.get('p2s', 0)
    VM = {0: 6, 1: min(6, 5 - P2S), 2: 6, 3: 4, 4: 63}
    def sync(k):
        l = [f"s_waitcnt vmcnt({VM[k]}) lgkmcnt(0)", "s_barrier"]
        if k == 3 and OPT.get("wtg", 12) in range(12, 21): l[0] = f"s_waitcnt vmcnt(5) lgkmcnt(0);;s_lshr_b32 s{sT0}, s{sW}, 1;;s_cmp_eq_u32 s{sT0}, 1;;s_cbranch_scc1 K_S3;;s_waitcnt vmcnt(4);;K_S3:"
        st(f"sync{k}", l)
        if k == 1: l += [f"v_subrev_u32 v{vFR+t}, 0x8000, v{vFR+t}" for t in range(8)]
        if k == 3: l += [f"v_add_u32 v{vFR+t}, 0x8000, v{vFR+t}" for t in range(8)]
        return l
    G = []
    g0 = sync(0)
    for s_ in range(4): g0 += rd(s_)
    G.append(g0)
    for s_ in range(32):
        g = []
        if s_ % 8 == 4: g += sync(s_ // 8 + 1)
        if s_ + 4 < 32: g += rd(s_ + 4)
        if s_ % 8 < 4: g.append(f"s_waitcnt lgkmcnt(12)")
        d = EACC if s_ == 31 else ACC
        g.append(f"{MFMA} {vr(d,16)}, {vr(WB+4*(s_%NWB),4)}, {vr(XF+4*s_,4)}, {'0' if s_ == 0 else vr(ACC,16)}")
        if s_ % 4 == 0: g.append(csm(s_))
        if s_ % 2 == 0:
            g.append(f"{M16} {vr(RS,4)}, {vr(SELC,4)}, {vr(XF+4*s_,4)}, {'0' if s_ == 0 else vr(RS,4)}")
            for r in range(4): g.append(f"v_dot2c_f32_bf16 v{vQ+(r&1)}, v{XF+4*s_+r}, v{XF+4*s_+r}")
        G.append(g)
    if OPT.get("z_nodot"): G = [[i for i in g if "dot2c" not in i] for g in G]
    if OPT.get("z_nom16"): G = [[i for i in g if "16x16x32" not in i] for g in G]
    if OPT.get("z_gram"): G = [[(f"{MFMA} {vr(PK,16)}, {i.split(', ')[1].replace('v','v[') + ':' + str(int(i.split(', ')[1][1:])+3) + ']'}, {i.split(', ')[1].replace('v','v[') + ':' + str(int(i.split(', ')[1][1:])+3) + ']'}, {vr(PK,16)}" if "dot2c" in i else i) for i in g if not ("dot2c" in i and int(i.split(', ')[1][1:]) % 4)] for g in G]
    d8 = dma8()
    s2_, s3_ = sset(2), sset(3)
    G[0].append(s2_[0])
    for k in range(6): G[P2S + k].append(s2_[1 + k])
    G[7].append(s3_[0])
    for k in range(6): G[7 + k].append(s3_[1 + k])
    assert OPT.get("wtg", 12) in (6, 12, 13, 14, 15, 16, 17)
    G[OPT.get("wtg", 12)].append(wt)
    G[12].append(f"s_add_u32 s{sDA}, s{sROWO}, s{sCOL+1};;s_add_u32 s{sMA}, s{sLB0}, {YB}")
    mark = len(e.L)
    early_scalars()
    e(f"s_lshl_b32 s{sT0}, s{sW}, 7"); e(f"s_add_u32 s{sST}, s{sT0}, {RVO}")
    sc = [t.strip() for t in e.L[mark:]]; del e.L[mark:]
    h_ = [";;".join(sc[:12]), ";;".join(sc[12:])] if False else [";;".join(sc)]
    for k in range(4): G[13 + k].append(d8[k])
    G[18].append(h_[0])
    for k in range(4): G[21 + k].append(d8[4 + k])
    G[25].append(auxl("K_AUX")); G[26].extend([] if EPF else [pf1]); G[27].extend([] if EPF else [pf2])
    for g in G: e.ext(g)
    tA, tB, tC = vFR, vFR + 1, vFR + 2
    e(f"v_and_b32 v{tB}, 31, v{vL}")
    e(f"s_lshl_b32 s{sT0}, s{sW}, 8"); e(f"s_add_u32 s{sT0}, s{sT0}, {STAT}")
    e(f"v_add_f32 v{vQ}, v{vQ}, v{vQ+1}")
    e(f"v_mov_b32 v{vQ+1}, v{vQ}")
    e(f"v_lshl_add_u32 v{tA}, v{tB}, 3, s{sT0}")
    e(f"v_lshlrev_b32 v{tC}, 2, v{tB}")
    e(f"v_permlane32_swap_b32 v{vQ}, v{vQ+1}")
    e(f"v_add_f32 v{RS+1}, v{vQ}, v{vQ+1}")
    e(f"ds_write_b64 v{tA}, {vr(RS,2)}")
    e(f"ds_write_b32 v{vCSW}, v{CS}")
    e(f"v_add_u32 v{tB}, {GSY:#x}, v{tC}"); e(f"ds_write_b32 v{tB}, v{AUG+4}")
    e(f"v_xor_b32 v{tA}, 1024, v{tA}")
    for k in range(4): e(f"v_xor_b32 v{vTR+k}, 0x10000, v{vTR+k}")
    e(f"v_xor_b32 v{vCSW}, 1024, v{vCSW}")
    e(f"v_cmp_gt_u32 vcc, 32, v{vL}")
    SRD_ = [f"ds_read_b64 {vr(vS,2)}, v{tA}"]
    a, b = vS, vS + 1
    chain = [f"v_add_f32 v{a}, v{a}, v{RS}", f"v_add_f32 v{b}, v{b}, v{RS+1}",
             f"v_mul_f32 v{a}, {f2u(-1.0/512):#x}, v{a}", f"v_mul_f32 v{b}, {f2u(1.0/512):#x}, v{b}",
             f"v_fma_f32 v{b}, -v{a}, v{a}, v{b}", f"v_cvt_pk_bf16_f32 v{AUG+2}, v{a}, v{a}", f"v_max_f32 v{b}, 0, v{b}",
             f"v_cvt_pk_bf16_f32 v{b}, v{b}, v{b}", f"v_and_b32 v{b}, s{sMASK}, v{b}",
             f"v_add_f32 v{b}, {f2u(1e-5):#x}, v{b}", f"v_cvt_pk_bf16_f32 v{b}, v{b}, v{b}",
             f"v_and_b32 v{b}, s{sMASK}, v{b}", f"v_sqrt_f32 v{b}, v{b}", f"v_cndmask_b32 v{AUG+2}, 0, v{AUG+2}, vcc",
             f"v_cvt_pk_bf16_f32 v{AUG+3}, v{a}, v{b}", f"v_and_b32 v{b}, s{sMASK}, v{AUG+3}", f"v_rcp_f32 v{a}, v{b}",
             f"v_cndmask_b32 v{AUG+3}, 0, v{AUG+3}, vcc"]

    APOLL = f"v_lshlrev_b32 v{vS+4}, 7, v{vL};;s_mov_b64 exec, 3;;buffer_load_dword v{vS+5}, v{vS+4}, {sr(SDBG,4)}, 0 offen sc1;;s_mov_b64 exec, -1"
    def apoll7():
        l2 = L("X")
        e(f"s_cmp_lg_u32 s{sW}, 7"); e(f"s_cbranch_scc1 {l2}")
        e(APOLL)
        e.label(l2)
    def r2_check(n=1):
        l2 = L("X")
        e(f"s_cmp_lg_u32 s{sW}, 7"); e(f"s_cbranch_scc1 {l2}")
        e(f"s_waitcnt vmcnt({n})")
        check([(APOLL, vS + 5, 3, 64)])
        e.label(l2)
    def publish(lev, vt):
        if OPT.get("x_nopub"): return "s_nop 0"
        return (f"v_mov_b32 v{vt}, {lev};;v_lshlrev_b32 v{vDUM}, 2, v{vL};;s_mov_b32 exec_hi, 0;;"
                f"buffer_store_dword v{vt}, v{vDUM}, {sr(SWS,4)}, s{sFLG} offen sc1;;s_mov_b32 exec_hi, -1")
    def midpub(n, lev, vt):
        a_, b_ = L("P"), L("P")
        return f"s_cbranch_vccz {a_};;s_waitcnt vmcnt({n});;s_branch {b_};;{a_}:;;s_waitcnt vmcnt(0);;{b_}:;;" + publish(lev, vt)
    def mgroups(swap=False, pre=(), cq=PK):
        PF = NWB - 1
        G = []
        g0 = [f"ds_read_b128 {vr(cq,4)}, v{vCSR}"] + list(pre)
        for s in range(PF): g0 += wrd(s)
        G.append(g0)
        for s in range(32):
            g = []
            if s + PF < 32: g += wrd(s + PF)
            g.append(f"s_waitcnt lgkmcnt({2 * min(PF, 31 - s)})")
            w, x = vr(WB + 4 * (s % NWB), 4), vr(XF + 4 * s, 4)
            a, b = (x, w) if swap else (w, x)
            d = EACC if s == 31 else ACC
            g.append(f"{MFMA} {vr(d,16)}, {a}, {b}, {'0' if s == 0 else vr(ACC,16)}")
            if s % 4 == 0: g.append(csm(s))
            G.append(g)
        return G
    def aug(bias=None, swap=False, cq=PK):
        l = Lst()
        c, t = cq, cq + 1
        l(f"v_add_f32 v{c}, v{c}, v{c+1}"); l(f"v_add_f32 v{c+2}, v{c+2}, v{c+3}"); l(f"v_add_f32 v{c}, v{c}, v{c+2}")
        l(f"v_cvt_pk_bf16_f32 v{t}, v{c}, v{c}"); l(f"v_and_b32 v{t}, s{sMASK}, v{t}"); l(f"v_sub_f32 v{t}, v{c}, v{t}")
        l(f"v_cvt_pk_bf16_f32 v{AUG}, v{c}, v{t}"); l(f"v_and_b32 v{c}, s{sMASK}, v{AUG}"); l(f"v_sub_f32 v{t}, v{t}, v{c}")
        l(f"v_cvt_pk_bf16_f32 v{AUG+1}, v{t}, {'v%d' % bias if bias is not None else '0'}")
        a, b = (vr(AUG+2,4), vr(AUG,4)) if swap else (vr(AUG,4), vr(AUG+2,4))
        l(f"s_nop 1;;{MFMA} {vr(EACC,16)}, {a}, {b}, {vr(EACC,16)}")
        l.extend(["@MARK", "@PAD", "@PAD", "@PAD", "@NEED 12"])
        return l
    def round_toggle():
        for k in range(4): e(f"v_xor_b32 v{vTR+k}, 0x10000, v{vTR+k}")
        e(f"ds_write_b32 v{vCSW}, v{CS}")
        e(f"v_xor_b32 v{vCSW}, 1024, v{vCSW}"); e(f"v_xor_b32 v{vCSR}, 1024, v{vCSR}")

    FPOLL = f"s_mov_b64 exec, 0xff;;buffer_load_dword v{ND}, v{vPA}, {sr(SWS,4)}, s{sPF} offen sc1;;s_mov_b64 exec, -1"
    def checkt(items, spin=SPIN):
        if OPT.get("x_nochk"): return "s_nop 0"
        top, ok = L("C"), L("C")
        t = [f"s_mov_b32 s{sCNT}, 0", f"{top}:"]
        for k, (pt, reg, msk, thr) in enumerate(items):
            t += [f"s_movk_i32 s{sT1}, {thr}", f"v_cmp_gt_u32 s[62:63], s{sT1}, v{reg}", "s_nop 0"]
            if k == 0: t.append(f"s_and_b32 s{sT0}, s62, {msk:#x}")
            else: t += [f"s_and_b32 s{sT1}, s62, {msk:#x}", f"s_or_b32 s{sT0}, s{sT0}, s{sT1}"]
        t += [f"s_cbranch_scc0 {ok}", "s_sleep 8"]
        t += [pt for (pt, reg, msk, thr) in items]
        t += [f"s_add_u32 s{sCNT}, s{sCNT}, 1", f"s_cmp_lt_u32 s{sCNT}, {spin}", "s_waitcnt vmcnt(0)", f"s_cbranch_scc1 {top}", f"{ok}:"]
        if OPT.get("cnt"): t += [f"s_mul_i32 s91, s91, 10", f"s_min_u32 s{sT0}, s{sCNT}, 9", f"s_add_u32 s91, s91, s{sT0}"]
        return ";;".join(t)
    def check(items): e(checkt(items))
    def sentinel(R, n, vt, reload):
        top, ok = L("V"), L("V")
        t = [f"s_mov_b32 s{sCNT}, 0", f"{top}:", f"v_max_u32 v{vt}, v{R}, v{R+1}"]
        t += [f"v_max3_u32 v{vt}, v{vt}, v{R+k}, v{R+k+1}" for k in range(2, n, 2)]
        t += [f"v_cmp_eq_u32 vcc, -1, v{vt}", "s_nop 0", "s_cmp_eq_u64 vcc, 0", f"s_cbranch_scc1 {ok}", "s_sleep 8", reload,
              f"s_add_u32 s{sCNT}, s{sCNT}, 1", f"s_cmp_lt_u32 s{sCNT}, {SPIN // 8}", "s_waitcnt vmcnt(0)", f"s_cbranch_scc1 {top}", f"{ok}:"]
        if OPT.get("cnt"): t += [f"s_mul_i32 s91, s91, 10", f"s_min_u32 s{sT0}, s{sCNT}, 9", f"s_add_u32 s91, s91, s{sT0}"]
        return ";;".join(t)
    RING, NU, NA = 128, 12, OPT.get("na", 12)
    unit = [i % NU for i in range(36)]
    ASC = "" if OPT.get("x_plain") else "sc1"
    def aload(i):
        R = RING + 8 * unit[i]; t = ""
        ks, b0, b1 = (order[i], sA0, sA1) if i < 28 else (i - 28, sP0, sKV)
        if i % 2 == 0: t = f"s_add_u32 s{sT3}, s{b0}, {2048*ks};;s_add_u32 s{sT4}, s{b1}, {2048*ks};;"
        return [t + f"buffer_load_dwordx4 {vr(R,4)}, v{vF0}, {sr(SWS,4)}, s{sT3} offen offset:{2048*(ks&1)} {ASC}",
                f"buffer_load_dwordx4 {vr(R+4,4)}, v{vF1}, {sr(SWS,4)}, s{sT4} offen offset:{2048*(ks&1)} {ASC}"]
    def tail(E, lev, vt):
        l1 = [guard("s_waitcnt vmcnt(1);;" + checkt([(FPOLL, ND, 0xff, 1)]))]
        for i in range(NA): l1 += [guard(t) for t in aload(i)]
        l2 = []
        for i in range(NE2, NE2 + NW1): l2 += [guard(t) for t in wdma(i)]
        E = list(E)
        h = int(len(E) * 0.5)
        return merge(E[:h], l1) + merge(E[h:], l2, 0.9)

    def l2pf(r, x=0):
        return (f"s_lshr_b32 s{sT0}, s{sIDX}, 3;;s_lshl_b32 s{sT0}, s{sT0}, 2;;s_and_b32 s{sT1}, s{sIDX}, 3;;s_add_u32 s{sT0}, s{sT0}, s{sT1};;s_lshl_b32 s{sT0}, s{sT0}, 3;;"
                f"s_xor_b32 s{sT1}, s{sW}, {x};;s_add_u32 s{sT0}, s{sT0}, s{sT1};;s_lshl_b32 s{sT1}, s2, 4;;s_add_u32 s{sT0}, s{sT0}, s{sT1};;s_and_b32 s{sT0}, s{sT0}, 127;;"
                f"s_mul_i32 s{sT0}, s{sT0}, 14336;;s_add_u32 s{sT0}, s{sT0}, {7168*r};;s_mov_b64 s[92:93], s[96:97];;s_mov_b32 s94, {1792*1024};;s_mov_b32 s95, 0x00020000;;"
                f"v_lshlrev_b32 v{vDUM}, 7, v{vL};;s_bfm_b64 exec, 56, 0;;buffer_load_dword v{vDUM}, v{vDUM}, s[92:95], s{sT0} offen;;s_mov_b64 exec, -1")
    L2 = OPT.get("l2pf", 0)
    e(f"s_cmp_eq_u32 s{sTYPE}, 0")
    e("s_cbranch_scc1 K_QKV")
    vSS, vPB = vAUX + 8, vAUX + 9
    k0 = -2.0 * math.sqrt(2.0 / math.pi) * math.log2(math.e)
    fch = chain + [f"v_mov_b32 v{vSS}, v{vS+1}", f"v_mul_f32 v{vC1}, {f2u(k0):#x}, v{vS}", f"v_mul_f32 v{vC0}, v{vS}, v{vS}",
                   f"v_mul_f32 v{vC0}, v{vC0}, v{vC1}", f"v_mul_f32 v{vC0}, {f2u(0.044715):#x}, v{vC0}"] + [f"v_lshlrev_b32 v{vAUX+i}, 16, v{vAUX+i}" for i in range(4)]
    e("s_waitcnt vmcnt(0) lgkmcnt(0)")
    e("s_barrier")
    st("r0end")
    e(f"s_cmp_lg_u32 s{sW}, 7"); e("s_cbranch_scc1 K_NA")
    e(f"s_and_b32 s{sT0}, s2, 1"); e(f"s_lshl_b32 s{sT0}, s{sT0}, 7")
    e(f"v_mov_b32 v{vDUM}, 1")
    e("s_mov_b64 exec, 1")
    e(f"buffer_atomic_add v{vDUM}, v{AUG+4}, {sr(SDBG,4)}, s{sT0} offen sc1")
    e("s_mov_b64 exec, -1")
    e.label("K_NA")

    def gelu(r):
        l = aug(bias=vAUX + r)
        for half in range(2):
            rng = range(8 * half, 8 * half + 8)
            for i in rng: l(f"v_mul_f32 v{TMP+i}, v{EACC+i}, v{EACC+i}")
            for i in rng: l(f"v_fma_f32 v{TMP+i}, v{TMP+i}, v{vC0}, v{vC1}")
            for i in rng: l(f"v_mul_f32 v{TMP+i}, v{EACC+i}, v{TMP+i}")
            for i in rng: l(f"v_exp_f32 v{TMP+i}, v{TMP+i}")
            for i in rng: l(f"v_fma_f32 v{TMP+i}, v{TMP+i}, v{vSS}, v{vSS}")
            for i in rng: l(f"v_rcp_f32 v{TMP+i}, v{TMP+i}")
            for i in rng: l(f"v_mul_f32 v{TMP+i}, v{EACC+i}, v{TMP+i}")
            for i in range(4): l(f"v_cvt_pk_bf16_f32 v{PK+8+4*half+i}, v{TMP+8*half+2*i}, v{TMP+8*half+2*i+1}")
            l(f"buffer_store_dwordx4 {vr(PK+8+4*half,4)}, v{vFO}, {sr(SWS,4)}, s{sST} offen offset:{2048*half} {STF}")
        return l
    st("f0")
    def stbase(r): e(f"s_lshl_b32 s{sST}, s{sCOL+r}, 6"); e(f"s_add_u32 s{sST}, s{sST}, s{sOUT}")
    def place(fl, items):
        n_ = len(fl)
        for pos, it in sorted(items, key=lambda x: -x[0]): fl.insert(int(n_ * pos / 100), it)
        return fl
    def spread(items, p0, p1): return [(p0 + (p1 - p0) * k / max(1, len(items) - 1), it) for k, it in enumerate(items)]
    stbase(0)
    e(f"s_add_u32 s{sDA}, s{sROWO}, s{sCOL+2}"); e(f"s_mov_b32 s{sMA}, s{sLB0}")
    ea = f"s_cmp_lg_u32 s{sW}, 7;;s_cbranch_scc1 K_FE1;;" + APOLL + ";;K_FE1:"
    fl = place(fch + gelu(0), spread(dma8(), 0, OPT.get("d1", 36)) + (spread(hp, OPT.get("hp0", 44), OPT.get("hp1", 82)) if EPF < 2 else []) + [(85, ea)])
    e.ext(interleave(mgroups(pre=SRD_), fl, 1, 31))
    st("b1")
    round_toggle()
    stbase(1)
    e(f"s_add_u32 s{sDA}, s{sROWO}, s{sAUXO}"); e(f"s_add_u32 s{sMA}, s{sLB0}, {YB}")
    e(f"s_cmp_lg_u32 s{sISC}, 0"); e("s_cselect_b64 vcc, -1, 0")
    e(f"s_waitcnt vmcnt({7 if EPF < 2 else 2}) lgkmcnt(0)")
    r2_check()
    e("s_barrier")
    st("r1end")
    d4 = []
    for i in range(4):
        jg, jl = (f"s{sJG}", "0x7c00") if i == 1 else (f"s{sP16}", "1024")
        d4.append(f"s_mov_b32 m0, s{sMA};;s_add_u32 s{sMA}, s{sMA}, {jl};;buffer_load_dwordx4 v{vDMA}, {sr(SW,4)}, s{sDA} offen lds;;s_add_u32 s{sDA}, s{sDA}, {jg}")
    KR = OPT.get("kr", 3)
    er = [erow(i, vD2) for i in range(NE)]
    mp = f"s_waitcnt vmcnt({4 + KR});;" + publish(1, vPB)
    fl = place(gelu(1), spread(d4 + er[:KR] + [mp] + er[KR:], 0, OPT.get("d2", 50)) + [(OPT.get("epat", 85), guard(FPOLL))])
    MG2 = mgroups()
    if XR:
        MG2[17].append("s_barrier")
        for k in range(4): MG2[18 + 2 * k].append(erow(NE + k, vD2))
    e.ext(interleave(MG2, fl, 1, 31))
    st("b2")
    round_toggle()
    stbase(2)
    e(f"s_waitcnt vmcnt({2 - XR}) lgkmcnt(0)")
    e("s_barrier")
    st("r2end")
    e("s_cbranch_vccz K_FG")
    e(f"s_setprio {OPT.get('tprio', 0)}")
    e(f"ds_read_b128 {vr(PK,4)}, v{vCSR}")
    p2_setup()
    e("s_waitcnt vmcnt(1) lgkmcnt(0)")
    check([(FPOLL, ND, 0xff, 1)])
    pre = []
    for i in range(NA): pre += aload(i)
    for i in range(NE2, NE2 + NW1): pre += wdma(i)
    e.ext(place(gelu(2), spread(pre, 0, OPT.get("tl", 90))))
    e("s_branch K_P2")
    e.label("K_FG")
    e(f"s_lshl_b32 s{sT0}, s{sP}, 14")
    for k in range(4): e(f"v_subrev_u32 v{vTR+k}, s{sT0}, v{vTR+k}")
    e(f"s_setprio {OPT.get('fgprio', 2)}")
    e.ext(interleave(mgroups(), gelu(2), 1, OPT.get("g3", 24)))
    st("b3")
    e(f"v_xor_b32 v{vCSR}, 1024, v{vCSR}")
    stbase(3)
    e(f"ds_write_b32 v{vCSW}, v{CS}")
    e(f"v_mov_b32 v{vS}, {GSY:#x}"); e(f"v_mov_b32 v{vS+1}, 1")
    e("s_waitcnt lgkmcnt(0)")
    e("s_mov_b64 exec, 1"); e(f"ds_add_u32 v{vS}, v{vS+1}"); e("s_mov_b64 exec, -1")
    e.label("K_FSP")
    e(f"ds_read_b32 v{vS+1}, v{vS}")
    e("s_waitcnt lgkmcnt(0)")
    e(f"v_readfirstlane_b32 s{sT0}, v{vS+1}")
    e("s_nop 3")
    e(f"s_cmp_lt_u32 s{sT0}, 4"); e("s_cbranch_scc1 K_FSP")
    e(f"ds_read_b128 {vr(PK,4)}, v{vCSR}")
    e("s_waitcnt lgkmcnt(0)")
    e.ext(gelu(3))
    if OPT.get("spf", 1):
        e("s_setprio 0")
        srd(e, SWO, 98, 99, 512 * 1024)
        e(f"s_lshr_b32 s{sT0}, s{sIDX}, 3"); e(f"s_and_b32 s{sT1}, s{sIDX}, 3"); e(f"s_lshl_b32 s{sT1}, s{sT1}, 2"); e(f"s_add_u32 s{sT1}, s{sT1}, s{sRG}")
        e(f"s_lshl_b32 s{sT1}, s{sT1}, 10"); e(f"s_add_u32 s{sT1}, s{sT1}, {OPT.get('spc', 3)*128}")
        e(f"s_mul_i32 s{sT2}, s{sT0}, {448*1024}"); e(f"s_add_u32 s{sT2}, s{sT2}, s{sT1}")
        e(f"s_lshl_b32 s{sT3}, s{sT0}, 17"); e(f"s_add_u32 s{sT3}, s{sT3}, s{sT1}")
        B_ = OPT.get("spb", 6)
        for k, i in enumerate(range(OPT.get("sp0", 16), 36)):
            for hf in (0, 64):
                if i < 28: e(f"s_buffer_load_dword s{sT4}, {sr(SWE,4)}, s{sT2} offset:{order[i]*16384+hf}")
                else: e(f"s_buffer_load_dword s{sT4}, {sr(SWO,4)}, s{sT3} offset:{(i-28)*16384+hf}")
            if k % B_ == B_ - 1: e("s_waitcnt lgkmcnt(0)")
        e("s_waitcnt lgkmcnt(0)")
    e("s_branch K_GFIN")

    e.label("K_QKV")
    WT = vAUX
    qch = chain + [f"v_mul_f32 v{vC0}, {f2u(math.log2(math.e)):#x}, v{vS}", f"v_add_u32 v{vS+1}, s{sST}, v{tC}", f"ds_write_b32 v{vS+1}, v{vS}"]
    e(f"v_lshrrev_b32 v{vC1}, 5, v{vL}"); e(f"v_lshl_add_u32 v{vC1}, v{vC1}, 4, s{sST}")
    e("s_waitcnt vmcnt(0)")
    e(f"ds_read_b64_tr_b16 {vr(WT+2,2)}, v{vAUX} offset:256"); e(f"ds_read_b64_tr_b16 {vr(WT,2)}, v{vAUX}")
    e("s_waitcnt lgkmcnt(0)")
    e("s_barrier")
    st("r0end")
    def softcore(src):
        l = Lst()
        l(f"s_nop 1;;{MFMA} {vr(TMP,16)}, {vr(WT,4)}, {vr(src+4,4)}, 0;;{MFMA} {vr(EACC,16)}, {vr(WT,4)}, {vr(src,4)}, 0")
        l.extend(["@MARK", "@PAD", "@PAD", "@PAD", "@NEED 11"])
        for (P, EP, out) in ((TMP + 8, TMP, PK + 8), (EACC, EACC + 8, PK)):
            mx, mn = vS, vS + 1
            l(f"v_max3_f32 v{mx}, v{P}, v{P+1}, v{P+2}"); l(f"v_max3_f32 v{mn}, -v{P}, -v{P+1}, -v{P+2}")
            l(f"v_max3_f32 v{mx}, v{mx}, v{P+3}, v{P+4}"); l(f"v_max3_f32 v{mn}, v{mn}, -v{P+3}, -v{P+4}")
            l(f"v_max3_f32 v{mx}, v{mx}, v{P+5}, v{P+6}"); l(f"v_max3_f32 v{mn}, v{mn}, -v{P+5}, -v{P+6}")
            l(f"v_max_f32 v{mx}, v{mx}, v{P+7}"); l(f"v_max_f32_e64 v{mn}, v{mn}, -v{P+7}")
            l.extend(["@MARK", "@NEED 2"]); l(f"v_permlane32_swap_b32 v{mx}, v{mn}")
            l(f"v_max_f32 v{mx}, v{mx}, v{mn}")
            l(f"v_mul_f32_e64 v{mx}, -v{mx}, v{vC0}")
            l(f"v_mov_b32 v{mn}, v{mx}")
            l.extend(["@MARK", "@NEED 2"]); l(f"v_permlane32_swap_b32 v{mx}, v{mn}")
            for j in range(8): l(f"v_fma_f32 v{EP+j}, v{P+j}, v{vC0}, v{mx}")
            for j in range(8): l(f"v_fma_f32 v{P+j}, -v{P+j}, v{vC0}, v{mn}")
            for j in range(8): l(f"v_exp_f32 v{EP+j}, v{EP+j}")
            for j in range(8): l(f"v_exp_f32 v{P+j}, v{P+j}")
            s0, s1, s2, s3 = vS + 2, vS + 3, vS + 4, vS + 5
            l(f"v_add_f32 v{s0}, v{EP}, v{EP+1}"); l(f"v_add_f32 v{s1}, v{P}, v{P+1}")
            l(f"v_add_f32 v{s2}, v{EP+2}, v{EP+3}"); l(f"v_add_f32 v{s3}, v{P+2}, v{P+3}")
            for j in (4, 6):
                l(f"v_add_f32 v{s0}, v{s0}, v{EP+j}"); l(f"v_add_f32 v{s1}, v{s1}, v{P+j}")
                l(f"v_add_f32 v{s2}, v{s2}, v{EP+j+1}"); l(f"v_add_f32 v{s3}, v{s3}, v{P+j+1}")
            l(f"v_add_f32 v{s0}, v{s0}, v{s2}"); l(f"v_add_f32 v{s1}, v{s1}, v{s3}")
            l.extend(["@MARK", "@NEED 2"]); l(f"v_permlane32_swap_b32 v{s0}, v{s1}")
            l(f"v_add_f32 v{s0}, v{s0}, v{s1}")
            l(f"v_rcp_f32 v{s0}, v{s0}")
            l.extend(["@MARK", "@NEED 1"]); l(f"v_mov_b32 v{s1}, v{s0}")
            l.extend(["@MARK", "@NEED 2"]); l(f"v_permlane32_swap_b32 v{s0}, v{s1}")
            for j in range(8): l(f"v_mul_f32 v{EP+j}, v{EP+j}, v{s0}")
            for j in range(8): l(f"v_mul_f32 v{P+j}, v{P+j}, v{s1}")
            for j in range(4): l(f"v_cvt_pk_bf16_f32 v{out+j}, v{EP+2*j}, v{EP+2*j+1}")
            for j in range(4): l(f"v_cvt_pk_bf16_f32 v{out+4+j}, v{P+2*j}, v{P+2*j+1}")
        return l
    def kepi():
        l = aug()
        for i in range(8): l(f"v_cvt_pk_bf16_f32 v{PK+i}, v{EACC+2*i}, v{EACC+2*i+1}")
        l += softcore(PK)
        TD = (EACC, TMP)
        for a in (1, 0):
            l(f"s_nop 1;;{MFMA} {vr(TD[a],16)}, {vr(PK+8*a,4)}, {vr(SPm,4)}, 0;;{MFMA} {vr(TD[a],16)}, {vr(PK+8*a+4,4)}, {vr(SMm,4)}, {vr(TD[a],16)}")
        l(f"s_lshl_b32 s{sT0}, s{sP}, 10;;s_lshl_b32 s{sT1}, s{sRG}, 2;;s_add_u32 s{sT0}, s{sT0}, s{sT1};;s_add_u32 s{sT0}, s{sT0}, {ZSC};;v_and_b32 v{vS}, 0x1f0, v{vL16};;v_add_u32 v{vS}, s{sT0}, v{vS}")
        l.extend(["@MARK", "@PAD", "@NEED 4"])
        for a in (1, 0):
            for j in range(8): l(f"v_cvt_pk_bf16_f32 v{PK+8*a+j}, v{TD[a]+2*j}, v{TD[a]+2*j+1}")
        for a in (1, 0):
            l(f"s_nop 1;;{M16} {vr(TMP+4*a,4)}, {vr(SELC,4)}, {vr(PK+8*a,4)}, 0;;{M16} {vr(TMP+4*a,4)}, {vr(SELC,4)}, {vr(PK+8*a+4,4)}, {vr(TMP+4*a,4)}")
        l.extend(["@MARK", "@PAD", "@PAD", "@NEED 8"])
        for a in range(2): l(f"ds_write_b32 v{vS}, v{TMP+4*a} offset:{512*a}")
        return l
    CQ, VBQ = vAUX + 8, vAUX + 4
    def vepi():
        l = aug(swap=True, cq=CQ)
        for i in range(16): l(f"v_mul_f32 v{EACC+i}, v{EACC+i}, v{TMP+i}")
        for i in range(8): l(f"v_cvt_pk_bf16_f32 v{VBQ+i}, v{EACC+2*i}, v{EACC+2*i+1}")
        for i in range(8): l(f"v_cndmask_b32 v{TMP+i}, 0, v{VBQ+i}, {sr(sLT16,2)}")
        l(f"s_nop 1;;{MFMA} {vr(EACC,16)}, {vr(PK,4)}, {vr(TMP,4)}, 0;;{MFMA} {vr(EACC,16)}, {vr(PK+4,4)}, {vr(TMP+4,4)}, {vr(EACC,16)}")
        for i in range(8): l(f"v_cndmask_b32 v{TMP+8+i}, v{VBQ+i}, 0, {sr(sLT16,2)}")
        l(f"s_nop 1;;{MFMA} {vr(EACC,16)}, {vr(PK+8,4)}, {vr(TMP+8,4)}, {vr(EACC,16)};;{MFMA} {vr(EACC,16)}, {vr(PK+12,4)}, {vr(TMP+12,4)}, {vr(EACC,16)}")
        l.extend(["@MARK", "@PAD", "@PAD", "@PAD", "@NEED 12"])
        for q in range(4): l(f"ds_write_b128 v{vS+1}, {vr(EACC+4*q,4)} offset:{1024*q}")
        return l
    e(f"s_add_u32 s{sDA}, s{sROWO}, s{sCOL+2}"); e(f"s_mov_b32 s{sMA}, s{sLB0}")
    tch = (f"s_cmp_ge_u32 s{sW}, 4;;s_cbranch_scc1 K_NT;;s_lshl_b32 s{sT2}, s{sRB}, 3;;s_add_u32 s{sT2}, s{sT2}, s{sC};;s_lshl_b32 s{sT2}, s{sT2}, 1;;"
           f"s_and_b32 s{sT0}, s{sW}, 1;;s_add_u32 s{sT2}, s{sT2}, s{sT0};;s_cmp_lt_u32 s{sW}, 2;;s_cselect_b64 {sr(SAUX,2)}, s[96:97], s[98:99];;"
           f"s_mov_b32 s{sT0}, {1792*1024};;s_cselect_b32 s{SAUX+2}, s{sT0}, {512*1024};;s_movk_i32 s{sT0}, 7168;;s_cselect_b32 s{sT0}, s{sT0}, 2048;;"
           f"s_cselect_b32 s{sT1}, 56, 16;;s_mul_i32 s{sT0}, s{sT0}, s{sT2};;v_lshlrev_b32 v{vDUM}, 7, v{vL};;s_bfm_b64 exec, s{sT1}, 0;;"
           f"buffer_load_dword v{vDUM}, v{vDUM}, {sr(SAUX,4)}, s{sT0} offen;;s_mov_b64 exec, -1;;K_NT:")
    flq = merge(qch + kepi(), dma8() + [tch], 0.35)
    if L2 in (1, 3, 4, 5): flq.insert(int(len(flq) * OPT.get("l2at", 60) / 100), l2pf(0))
    if L2 == 2:
        flq.insert(int(len(flq) * 0.62), l2pf(1)); flq.insert(int(len(flq) * 0.45), l2pf(0))
    QAP = APOLL.replace(f"v{vS+4}", f"v{vDUM}").replace(f"v{vS+5}", f"v{vDMA}")
    flq.insert(int(len(flq) * OPT.get("qap", 70) / 100), f"s_cmp_lg_u32 s{sW}, 7;;s_cbranch_scc1 K_QAP;;" + QAP + ";;K_QAP:")
    e.ext(interleave(mgroups(swap=True, pre=SRD_), flq, 1, 31))
    st("b1")
    round_toggle()
    e(f"s_lshl_b32 s{sT0}, s{sP}, 15"); e(f"s_lshl_b32 s{sT1}, s{sRG}, 12"); e(f"s_add_u32 s{sT0}, s{sT0}, s{sT1}"); e(f"s_add_u32 s{sT0}, s{sT0}, {YB}")
    e(f"v_add_u32 v{vS+1}, s{sT0}, v{vL16}")
    e(f"s_waitcnt vmcnt(0) lgkmcnt(0)")
    e(f"v_mov_b32 v{vS+5}, v{vDMA}")
    r2_check(0)
    dmalane(vDMA, vS + 2, vS + 3)
    poll_addr()
    e(f"s_lshl_b32 s{sT0}, s{sP}, 15"); e(f"s_lshl_b32 s{sT1}, s{sRG}, 10"); e(f"s_add_u32 s{sT0}, s{sT0}, s{sT1}"); e(f"s_add_u32 s{sT0}, s{sT0}, {YB}")
    e(f"v_add_u32 v{vS+4}, s{sT0}, v{vL16}")
    e(f"s_and_b32 s{sT2}, s{sRG}, 1"); e(f"s_lshl_b32 s{sT0}, s{sP}, 1"); e(f"s_add_u32 s{sT2}, s{sT2}, s{sT0}")
    e(f"s_lshl_b32 s{sT0}, s{sT2}, 9"); e(f"s_add_u32 s{sT0}, s{sT0}, {ZSC}")
    e(f"v_and_b32 v{vS}, 0x1f0, v{vL16}"); e(f"v_add_u32 v{vS}, s{sT0}, v{vS}")
    e(f"s_lshl_b32 s{sOUT}, s{sRB}, 17"); e(f"s_lshl_b32 s{sT0}, s{sC}, 14"); e(f"s_add_u32 s{sOUT}, s{sOUT}, s{sT0}"); e(f"s_add_u32 s{sOUT}, s{sOUT}, {KVP_OFF}")
    e(f"s_lshl_b32 s{sT2}, s{sT2}, 7"); e(f"s_add_u32 s{sT2}, s{sT2}, s{sOUT}"); e(f"s_add_u32 s{sT2}, s{sT2}, 8192")
    e(f"s_lshl_b32 s{sT0}, s{sW}, 10"); e(f"s_add_u32 s{sOUT}, s{sOUT}, s{sT0}")
    e(f"s_cmp_lg_u32 s{sISC}, 0"); e("s_cselect_b64 vcc, -1, 0")
    e("s_barrier")
    st("r1end")
    MG = mgroups(pre=[f"ds_read_b128 {vr(TMP+4*q,4)}, v{vC1} offset:{32*q}" for q in range(4)], cq=CQ)
    QP, QC = OPT.get("qp", 30), OPT.get("qc", 24)
    if L2 == 1: MG[1].append(l2pf(1))
    VS = OPT.get("vs", 9)
    RW = OPT.get("rw", 1)
    for i in range(NE): MG[(VS + 8 + i) if RW == 0 else (1 + i)].append(erow(i, vDMA))
    if XR:
        MG[17].append("s_barrier")
        for k in range(4): MG[18 + k].append(erow(NE + k, vDMA))
    MG[QP].append(f"s_waitcnt vmcnt({0 if XR else RW})")
    MG[QP].append(guard(FPOLL))
    if L2 == 3: MG[QP].append("s_cbranch_vccnz K_QL2;;" + l2pf(1) + ";;" + l2pf(1, 4) + ";;K_QL2:")
    if OPT.get("gs", 0):
        VD = OPT.get("vd", 4)
        sig = (f"s_lshl_b32 s{sT0}, s{sP}, 2;;s_add_u32 s{sT0}, s{sT0}, {GSY+64};;v_mov_b32 v{vS+1}, s{sT0};;v_mov_b32 v{vS+5}, 1;;"
               f"s_mov_b64 exec, 1;;ds_add_u32 v{vS+1}, v{vS+5};;s_mov_b64 exec, -1")
        e.ext(interleave(MG[:VS+1-VD], vepi() + [sig], 1, VS - VD))
        for g in MG[VS+1-VD:VS+1]: e.ext(g)
        e.label("K_QSP")
        e(f"ds_read_b32 v{vS+5}, v{vS+1}"); e("s_waitcnt lgkmcnt(0)")
        e(f"v_readfirstlane_b32 s{sT0}, v{vS+5}"); e("s_nop 3")
        e(f"s_cmp_lt_u32 s{sT0}, 4"); e("s_cbranch_scc1 K_QSP")
    else:
        e.ext(interleave(MG[:VS+1], vepi(), 1, VS))
        e("s_waitcnt lgkmcnt(0)"); e("s_barrier")
    st("m2b")
    for w in range(4): e(f"ds_read_b128 {vr(TMP+4*w,4)}, v{vS+4} offset:{4096*w}")
    e(f"ds_read_b128 {vr(PK,4)}, v{vS}")
    e(f"v_lshlrev_b32 v{vS+4}, 2, v{vL}")
    kr = Lst()
    for j in range(4): kr(f"v_add_f32 v{TMP+j}, v{TMP+j}, v{TMP+4+j}")
    for j in range(4): kr(f"v_add_f32 v{TMP+8+j}, v{TMP+8+j}, v{TMP+12+j}")
    for j in range(4): kr(f"v_add_f32 v{TMP+j}, v{TMP+j}, v{TMP+8+j}")
    kr(f"buffer_store_dwordx4 {vr(TMP,4)}, v{vL16}, {sr(SWS,4)}, s{sOUT} offen sc1")
    kr(f"v_add_f32 v{PK}, v{PK}, v{PK+1}"); kr(f"v_add_f32 v{PK+2}, v{PK+2}, v{PK+3}"); kr(f"v_add_f32 v{PK}, v{PK}, v{PK+2}")
    kr(f"s_cmp_ge_u32 s{sRG}, 2;;s_cbranch_scc1 K_QNZ;;s_mov_b32 exec_hi, 0;;buffer_store_dword v{PK}, v{vS+4}, {sr(SWS,4)}, s{sT2} offen sc1;;s_mov_b32 exec_hi, -1;;K_QNZ:")
    RED, sU, sRED = 128, sA0, sST
    vRS, vRS2, vRD, vRT = vAUX + 4, vAUX + 5, vAUX + 6, vAUX + 8
    mark = len(e.L)
    e(f"s_lshl_b32 s{sRED}, s{sISC}, 2"); e(f"s_add_u32 s{sRED}, s{sRED}, s{sRG}")
    e(f"s_cmp_ge_u32 s{sRED}, 2"); e("s_cbranch_scc1 K_QRA")
    e(f"s_lshl_b32 s{sU}, s{sC}, 4"); e(f"s_add_u32 s{sU}, s{sU}, s{sRB}"); e(f"s_lshl_b32 s{sU}, s{sU}, 1"); e(f"s_add_u32 s{sU}, s{sU}, s{sRG}")
    e(f"v_lshrrev_b32 v{vRT}, 4, v{vL}"); e(f"v_and_b32 v{vRT+1}, 15, v{vL}"); e(f"v_lshlrev_b32 v{vRT+1}, 4, v{vRT+1}")
    e(f"v_lshl_add_u32 v{vRD}, v{vRT}, 2, v{vRT+1}")
    e(f"s_lshl_b32 s{sPF}, s{sC}, 14"); e(f"s_add_u32 s{sPF}, s{sPF}, {KVP_OFF}")
    e(f"s_cmp_eq_u32 s{sRG}, 0"); e("s_cbranch_scc0 K_GZA")
    e(f"s_and_b32 s{sT0}, s{sRB}, 8"); e(f"s_lshl_b32 s{sT0}, s{sT0}, 9"); e(f"s_add_u32 s{sPF}, s{sPF}, s{sT0}")
    e(f"s_and_b32 s{sT0}, s{sRB}, 2"); e(f"s_lshl_b32 s{sT0}, s{sT0}, 10"); e(f"s_add_u32 s{sPF}, s{sPF}, s{sT0}")
    e(f"s_and_b32 s{sT0}, s{sRB}, 1"); e(f"s_lshl_b32 s{sT0}, s{sT0}, 9"); e(f"s_add_u32 s{sPF}, s{sPF}, s{sT0}")
    e(f"s_and_b32 s{sT0}, s{sRB}, 4"); e(f"s_lshl_b32 s{sT0}, s{sT0}, 6"); e(f"s_add_u32 s{sPF}, s{sPF}, s{sT0}")
    e(f"v_lshl_add_u32 v{vRS}, v{vRT}, 17, v{vRT+1}"); e(f"v_add_u32 v{vRS2}, 1024, v{vRS}")
    e("s_branch K_GZB")
    e.label("K_GZA")
    e(f"s_lshr_b32 s{sT0}, s{sRB}, 1"); e(f"s_lshl_b32 s{sT0}, s{sT0}, 6"); e(f"s_add_u32 s{sPF}, s{sPF}, s{sT0}")
    e(f"s_and_b32 s{sT0}, s{sRB}, 1"); e(f"s_lshl_b32 s{sT0}, s{sT0}, 4"); e(f"s_add_u32 s{sPF}, s{sPF}, s{sT0}"); e(f"s_add_u32 s{sPF}, s{sPF}, 8192")
    e(f"v_lshlrev_b32 v{vRS}, 17, v{vRT}"); e(f"v_add_u32 v{vRS2}, 32, v{vRS}")
    e.label("K_GZB")
    RLOAD = f"s_mov_b32 s{sT0}, s{sPF}"
    for u in range(4):
        RLOAD += f";;buffer_load_dwordx4 {vr(RED+8*u,4)}, v{vRS}, {sr(SWS,4)}, s{sT0} offen sc1;;buffer_load_dwordx4 {vr(RED+8*u+4,4)}, v{vRS2}, {sr(SWS,4)}, s{sT0} offen sc1"
        if u < 3: RLOAD += f";;s_add_u32 s{sT0}, s{sT0}, {4*131072}"
    e.label("K_QRA")
    ra = ";;".join(t.strip() for t in e.L[mark:]); del e.L[mark:]
    MG[VS + 10].append(ra)
    rli = f"s_cmp_ge_u32 s{sRED}, 2;;s_cbranch_scc1 K_QRL;;" + RLOAD + ";;K_QRL:"
    if OPT.get("rl", 31) <= 32: MG[OPT.get("rl", 31)].append(rli)
    e.ext(interleave(MG[VS+1:], kr, 4, 6))
    st("b2")
    round_toggle()
    e("s_waitcnt lgkmcnt(0)")
    e("s_barrier")
    st("r2end")
    e(f"ds_read_b128 {vr(PK,4)}, v{vCSR}")
    if OPT.get("rl", 31) > 32: e(rli)
    p2_setup()
    PARK = 0xC000
    e(f"s_mul_i32 s{sT0}, s{sRG}, 3072"); e(f"s_add_u32 s{sT0}, s{sT0}, {PARK}")
    e(f"v_add_u32 v{vS+1}, s{sT0}, v{vL16}")
    e(f"s_lshl_b32 s{sT0}, s{sRG}, 2"); e(f"s_add_u32 s{sT0}, s{sT0}, {GSY+32}"); e(f"v_mov_b32 v{vS+4}, s{sT0}")
    e("s_waitcnt lgkmcnt(0)")
    lq = aug()
    lq += [f"v_cvt_pk_bf16_f32 v{PK+8+i}, v{EACC+2*i}, v{EACC+2*i+1}" for i in range(8)]
    e("s_cbranch_vccz K_QG")
    lq2 = lq + [f"ds_write_b128 v{vS+1}, {vr(PK+8,4)}", f"ds_write_b128 v{vS+1}, {vr(PK+12,4)} offset:1024", f"ds_write_b128 v{vS+1}, {vr(WT,4)} offset:2048"]
    lq2 += [f"v_mov_b32 v{vS+5}, 1;;s_waitcnt lgkmcnt(0);;ds_write_b32 v{vS+4}, v{vS+5}"]
    e("s_waitcnt vmcnt(0)"); check([(FPOLL, ND, 0xff, 1)])
    a16 = []
    for i in range(NA): a16 += aload(i)
    e.ext(merge(lq2, a16[:8])); e.ext(a16[8:])
    for i in range(NE2, NE2 + NW1): e.ext(wdma(i))
    e("s_branch K_P2")

    e.label("K_QG")
    QBc, PHS, KVR = 168, 192, 208
    vSL = 112
    sGI = sA1
    e(f"s_setprio {OPT.get('gprio', 2)}")
    e(f"v_mov_b32 v{vSL}, v{vS+1}"); e(f"v_mov_b32 v{vSL+2}, v{vS+4}")
    def ldspin(lbl, areg, n):
        e.label(lbl)
        e(f"ds_read_b32 v{vS+5}, v{areg}"); e("s_waitcnt lgkmcnt(0)")
        e(f"v_readfirstlane_b32 s{sT0}, v{vS+5}"); e("s_nop 3")
        e(f"s_cmp_lt_u32 s{sT0}, {n}"); e(f"s_cbranch_scc1 {lbl}")
    e.ext(aug())
    for i in range(8): e(f"v_cvt_pk_bf16_f32 v{QBc+i}, v{EACC+2*i}, v{EACC+2*i+1}")
    vG, vG1, vG2 = 96, 97, 98
    e(f"v_mov_b32 v{vG}, {GSY:#x}"); e(f"v_mov_b32 v{vG1}, 1")
    red = []; st("ra", red); red += ["s_waitcnt vmcnt(0)", sentinel(RED, 32, vG2, RLOAD)]; st("rb", red)
    red += [ f"s_lshl_b32 s{sT0}, s{sU}, 8", f"s_add_u32 s{sT0}, s{sT0}, {KVZ_OFF}"]
    for stp in (16, 8): red += [f"v_add_f32 v{RED+j}, v{RED+j}, v{RED+stp+j}" for j in range(stp)]
    red += ["s_nop 1"] + [f"v_permlane32_swap_b32 v{RED+k}, v{RED+k+4}" for k in range(4)] + [f"v_add_f32 v{RED+k}, v{RED+k}, v{RED+k+4}" for k in range(4)]
    red += ["s_nop 1"] + [f"v_permlane16_swap_b32 v{RED+k}, v{RED+k+2}" for k in range(2)] + [f"v_add_f32 v{RED+k}, v{RED+k}, v{RED+k+2}" for k in range(2)]
    red += [f"v_cvt_pk_bf16_f32 v{RED}, v{RED}, v{RED+1}", f"buffer_store_dword v{RED}, v{vRD}, {sr(SWS,4)}, s{sT0} offen sc1",
            "s_mov_b64 exec, 1", f"ds_add_u32 v{vG}, v{vG1}", "s_mov_b64 exec, -1"]
    e(f"s_and_b32 s{sT0}, s{sRG}, 1"); e(f"s_lshl_b32 s{sT3}, s{sT0}, 12"); e(f"s_xor_b32 s{sT0}, s{sT0}, s{sP}"); e(f"s_lshl_b32 s{sT0}, s{sT0}, 12")
    e(f"s_lshl_b32 s{sT2}, s{sC}, 13"); e(f"s_add_u32 s{sT2}, s{sT2}, s{sT0}"); e(f"s_add_u32 s{sT2}, s{sT2}, {KVZ_OFF}")
    ZLOAD = ";;".join(f"buffer_load_dwordx4 {vr(KVR+4*k,4)}, v{vL16}, {sr(SWS,4)}, s{sT2} offen offset:{1024*k} sc1" for k in range(4))
    g1, g2 = L("R"), L("R")
    mid = f"s_add_u32 s{sT0}, s{sRG}, s{sGI};;s_cmp_ge_u32 s{sT0}, 2;;s_cbranch_scc1 {g1};;" + ";;".join(red) + f";;{g1}:"
    mid2 = f"s_add_u32 s{sT0}, s{sRG}, s{sGI};;s_cmp_lt_u32 s{sT0}, 4;;s_cbranch_scc1 {g2};;" + ZLOAD + f";;{g2}:"
    e(f"s_mov_b32 s{sGI}, 0")
    e.label("K_GQ")
    sq = softcore(QBc)
    n0 = len(sq)
    for pos, it in sorted(((OPT.get("gmid", 25), mid), (OPT.get("gmid2", 45), mid2)), reverse=True): sq.insert(int(n0 * pos / 100), it)
    e.ext(sq)
    e(f"s_cmp_lg_u32 s{sGI}, 0"); e("s_cbranch_scc1 K_GQD")
    st("gk")
    ldspin("K_GQS", vSL + 2, 1)
    e(f"ds_read_b128 {vr(WT,4)}, v{vSL} offset:2048")
    e(f"ds_read_b128 {vr(QBc,4)}, v{vSL}"); e(f"ds_read_b128 {vr(QBc+4,4)}, v{vSL} offset:1024")
    for j in range(16): e(f"v_mov_b32 v{PHS+j}, v{PK+j}")
    e(f"s_mov_b32 s{sGI}, 2")
    ldspin("K_GOS", vG, 2)
    e("s_branch K_GQ")
    e.label("K_GQD")
    st("gq")
    e(f"v_add_u32 v{vS+3}, {YB:#x}, v{vL16}")
    e(f"s_cmp_lt_u32 s{sRG}, 2"); e("s_cbranch_scc1 K_GZS")
    e(f"v_add_u32 v{vS+2}, s{sT3}, v{vS+3}")
    e("s_waitcnt vmcnt(0)")
    e(sentinel(KVR, 16, vS + 4, ZLOAD))
    st("gr")
    for k in range(4): e(f"ds_write_b128 v{vS+2}, {vr(KVR+4*k,4)} offset:{1024*k}")
    e("s_waitcnt lgkmcnt(0)")
    e("s_mov_b64 exec, 1"); e(f"ds_add_u32 v{vG}, v{vG1}"); e("s_mov_b64 exec, -1")
    ldspin("K_GZS", vG, 4)
    for k in range(8): e(f"ds_read_b128 {vr(KVR+4*k,4)}, v{vS+3} offset:{1024*k}")
    st("gv")
    e(f"s_lshl_b32 s{sT2}, s{sRT}, 16"); e(f"s_lshl_b32 s{sT0}, s{sC}, 13"); e(f"s_add_u32 s{sT2}, s{sT2}, s{sT0}")
    e(f"s_lshl_b32 s{sT0}, s{sP}, 12"); e(f"s_add_u32 s{sT2}, s{sT2}, s{sT0}"); e(f"s_add_u32 s{sT2}, s{sT2}, {PQ_OFF}")
    e(f"s_xor_b32 s{sT3}, s{sT2}, 4096")
    fragoff(vFO, sRT)
    e("s_waitcnt lgkmcnt(0)")
    NDG = (64, 80, 128, 144)
    for hd in range(4):
        ph = (PHS if hd < 2 else PK) + 8 * (hd & 1); d = vr(NDG[hd], 16)
        e(f"{MFMA} {d}, {vr(KVR+8*hd,4)}, {vr(ph,4)}, 0"); e(f"{MFMA} {d}, {vr(KVR+8*hd+4,4)}, {vr(ph+4,4)}, {d}")
    e("s_nop 5")
    for hd in range(4):
        d = NDG[hd]
        e(f"v_add_f32 v{vS}, {f2u(1e-6):#x}, v{d+8}"); e(f"v_rcp_f32 v{vS}, v{vS}"); e("s_nop 0")
        for j in range(8): e(f"v_mul_f32 v{d+j}, v{d+j}, v{vS}")
        for j in range(4): e(f"v_cvt_pk_bf16_f32 v{TMP+4*hd+j}, v{d+2*j}, v{d+2*j+1}")
        e(f"buffer_store_dwordx4 {vr(TMP+4*hd,4)}, v{vFO}, {sr(SWS,4)}, s{sT2 if hd < 2 else sT3} offen offset:{2048*(hd&1)} sc1")
    e("s_branch K_GFIN")

    e.label("K_P2")
    if not OPT.get("keepprio"): e(f"s_setprio {OPT.get('cprio', 0)}")
    st("p2start")
    if OPT.get("trace"): e(f"v_mov_b32 v240, 0;;s_memtime s[84:85];;s_waitcnt lgkmcnt(0);;s_sub_u32 s84, s84, s78;;v_writelane_b32 v240, s84, 0")
    vS2, vXB, vX, vB, OP = 224, 16, 32, 40, 32
    ACC2, WB2 = 48, 112
    SO, SB2 = 64, 68
    XBASE, vFW, vFR2, vT3 = 0, 24, 25, 232
    def fin_loads():
        e("s_load_dwordx4 s[72:75], s[0:1], 64")
        e(f"s_lshr_b32 s{sT1}, s{sC}, 2"); e(f"s_lshl_b32 s{sT2}, s{sRB}, 1"); e(f"s_add_u32 s{sT2}, s{sT2}, s{sT1}")
        cbcalc()
        e(f"s_lshl_b32 s{sXO2}, s{sRG}, 1"); e(f"s_add_u32 s{sXO2}, s{sXO2}, s{sISC}")
        e(f"s_lshl_b32 s{sXO}, s{sT2}, 16"); e(f"s_add_u32 s{sXO}, s{sXO}, s{sT1}"); e(f"s_lshl_b32 s{sT0}, s{sXO2}, 13"); e(f"s_add_u32 s{sXO}, s{sXO}, s{sT0}")
        e(f"buffer_load_dwordx4 {vr(vX,4)}, v{vXO}, {sr(SX,4)}, s{sXO} offen")
        e(f"v_and_b32 v{vS2+5}, 0x70, v{vL16}")
        e("s_waitcnt lgkmcnt(0)")
        srd(e, SB2, 72, 73, 1024)
        srd(e, SO, 74, 75, 2048 * 1024)
        e(f"buffer_load_dwordx4 {vr(vB,4)}, v{vS2+5}, {sr(SB2,4)}, s{sT1} offen")
    def fin_prep():
        vS2 = 26
        for k in range(4):
            d = vXB + 2 * k
            e(f"v_lshlrev_b32 v{vS2}, 16, v{vB+k}"); e(f"v_and_b32 v{vS2+1}, s{sMASK}, v{vB+k}")
            e(f"v_lshlrev_b32 v{d}, 16, v{vX+k}"); e(f"v_and_b32 v{d+1}, s{sMASK}, v{vX+k}")
            e(f"v_add_f32 v{d}, v{d}, v{vS2}"); e(f"v_add_f32 v{d+1}, v{d+1}, v{vS2+1}")
        e(f"v_lshrrev_b32 v{vFR2}, 3, v{vL}"); e(f"v_mul_u32_u24 v{vFR2}, 272, v{vFR2}")
        e(f"v_and_b32 v{vS2}, 7, v{vL}"); e(f"v_lshl_add_u32 v{vFR2}, v{vS2}, 5, v{vFR2}")
        e(f"s_mul_i32 s{sT2}, s{sXO2}, {8*272}"); e(f"s_add_u32 s{sT2}, s{sT2}, {XBASE}")
        e(f"v_add_u32 v{vFR2}, s{sT2}, v{vFR2}")
    LA = OPT.get("la", 5)
    nun = [1] * 36
    ops = [i for i in range(NA) for _ in range(2)] + [i for i in range(NE2, NE2 + NW1) for _ in range(2)]
    NPRE = len(ops)
    state = dict(na=NA, nw=NE2 + NW1, done=-1)
    FIRST = {}
    QPOLL = f"s_sub_u32 s{sT0}, s{sPF}, {128*1024};;s_mov_b64 exec, 0xff;;buffer_load_dword v{ND}, v{vPA}, {sr(SWS,4)}, s{sT0} offen sc1;;s_mov_b64 exec, -1"
    def tagwait(tag):
        last = max(i for i, o in enumerate(ops) if o == tag)
        e(f"s_waitcnt vmcnt({min(63, len(ops) - 1 - last)})")
    def issue_a(i):
        R = RING + 8 * unit[i]
        if i in FIRST and not OPT.get("x_nopoll"):
            st(f"cb{i}"); tagwait(f"p{i}"); check([(FPOLL, ND, 0xff, FIRST[i])]); st(f"ca{i}")
        e.ext(aload(i)); ops.extend([i] * 2)
        PL = OPT.get("pl", 3)
        if i + PL in FIRST and not OPT.get("x_nopoll"): e(FPOLL); ops.append(f"p{i+PL}")
    def pump(which=3):
        n = 0
        while state["na"] < 36 and which & 1:
            i = state["na"]
            us = set(range(unit[i], unit[i] + nun[i]))
            if any(us & set(range(unit[q], unit[q] + nun[q])) for q in range(state["done"] + 1, i)): break
            if i - state["done"] > (OPT.get("la1", 7) if i < 16 else LA if i < 28 else OPT.get("la2", 5)): break
            issue_a(i); state["na"] += 1; n += 1
        while state["nw"] < 36 and which & 2 and state["nw"] - state["done"] <= OPT.get("lw", 13):
            e.ext(wdma(state["nw"])); ops.extend([state["nw"]] * 2); state["nw"] += 1; n += 1
        return n
    for fi in FIRST:
        if NA <= fi < NA + OPT.get("pl", 3) and not OPT.get("x_nopoll"): e(FPOLL); ops.append(f"p{fi}")
    pump()
    fin_loads()
    ops.extend(["x"] * 2)
    e(f"s_lshl_b32 s{sP0}, s{sT2}, 17"); e(f"s_lshl_b32 s{sT0}, s{sRG}, 14"); e(f"s_add_u32 s{sP0}, s{sP0}, s{sT0}"); e(f"s_add_u32 s{sP0}, s{sP0}, {PQ_OFF}")
    e(f"s_add_u32 s{sKV}, s{sP0}, 65536")
    e(f"v_bfe_u32 v{vS2+6}, v{vL}, 2, 2"); e(f"v_lshrrev_b32 v{vS2+4}, 5, v{vL}"); e(f"v_bfe_u32 v{vS2+3}, v{vL}, 4, 1")
    e(f"v_lshl_add_u32 v{vS2+7}, v{vS2+4}, 2, v{vS2+6}"); e(f"v_lshlrev_b32 v{vTR0}, 7, v{vS2+7}")
    e(f"v_lshl_add_u32 v{vTR0}, v{vS2+3}, 5, v{vTR0}")
    e(f"v_and_b32 v{vS2+7}, 3, v{vL}"); e(f"v_lshl_add_u32 v{vTR0}, v{vS2+7}, 3, v{vTR0}")
    e(f"v_lshrrev_b32 v{vS2+6}, 1, v{vS2+6}"); e(f"v_lshl_add_u32 v{vTR0}, v{vS2+6}, 6, v{vTR0}")
    e(f"v_add_u32 v{vTR0}, s{sLB}, v{vTR0}")
    e(f"v_xor_b32 v{vTR1}, 64, v{vTR0}")
    for k in range(3):
        e(f"v_add_u32 v{vT3+2*k}, {0x10000*k:#x}, v{vTR0}"); e(f"v_add_u32 v{vT3+2*k+1}, {0x10000*k:#x}, v{vTR1}")
    def wbuf(i): return WB2 + 8 * (i & 1) if i < 34 or OPT.get("nt", 2) == 2 else 240 + 8 * (i & 1)
    def wreads(i):
        off = ROW[i % NL] & 0xffff; b = wbuf(i)
        vTR0 = vT3 + 2 * (ROW[i % NL] >> 16); vTR1 = vTR0 + 1
        e(f"ds_read_b64_tr_b16 {vr(b,2)}, v{vTR0} offset:{off}")
        e(f"ds_read_b64_tr_b16 {vr(b+2,2)}, v{vTR0} offset:{off+1024}")
        e(f"ds_read_b64_tr_b16 {vr(b+4,2)}, v{vTR1} offset:{off}")
        e(f"ds_read_b64_tr_b16 {vr(b+6,2)}, v{vTR1} offset:{off+1024}")
    def mm4(buf, act, first=False):
        for nt in range(2):
            for mt in range(2):
                c = vr(ACC2 + 16 * (2 * nt + mt), 16)
                e(f"{MFMA} {c}, {vr(WB2+8*buf+4*nt,4)}, {act[mt]}, {'0' if first else c}")
    tagwait(0)
    st("p2data")
    if OPT.get("trace"): e(f"s_memtime s[84:85];;s_waitcnt lgkmcnt(0);;s_sub_u32 s84, s84, s78;;v_writelane_b32 v240, s84, 1")
    wreads(0)
    cold = []
    def sent(i):
        R = RING + 8 * unit[i]
        chk = [f"v_max3_u32 v{vS2}, v{R}, v{R+1}, v{R+2}", f"v_max3_u32 v{vS2+1}, v{R+3}, v{R+4}, v{R+5}",
               f"v_max3_u32 v{vS2}, v{vS2}, v{R+6}, v{R+7}", f"v_max_u32 v{vS2}, v{vS2}, v{vS2+1}", f"v_cmp_eq_u32 vcc, -1, v{vS2}", "s_nop 0", "s_cmp_lg_u64 vcc, 0"]
        e.ext(chk); e(f"s_cbranch_scc1 K_RT{i}"); e.label(f"K_RB{i}")
        def rl(q):
            Rq = RING + 8 * unit[q]
            o_, b0, b1 = (2048 * order[q], sA0, sA1) if q < 28 else (2048 * (q - 28), sP0, sKV)
            return [f"s_add_u32 s{sT0}, s{b0}, {o_}", f"s_add_u32 s{sT1}, s{b1}, {o_}",
                    f"buffer_load_dwordx4 {vr(Rq,4)}, v{vF0}, {sr(SWS,4)}, s{sT0} offen sc1", f"buffer_load_dwordx4 {vr(Rq+4,4)}, v{vF1}, {sr(SWS,4)}, s{sT1} offen sc1"]
        if OPT.get("rmode", 0) == 0:
            t = [f"K_RT{i}:", f"s_mov_b32 s{sCNT}, 0", f"K_RL{i}:", "s_waitcnt vmcnt(0)", f"s_sleep {OPT.get('rsl', 2)}"]
            for q in range(i, state["na"]): t += rl(q)
            t += [f"s_add_u32 s{sCNT}, s{sCNT}, 1", "s_waitcnt vmcnt(0)", f"s_cmp_ge_u32 s{sCNT}, {SPIN // 8}", f"s_cbranch_scc1 K_RB{i}"] + chk + [f"s_cbranch_scc1 K_RL{i}", f"s_branch K_RB{i}"]
        else:
            t = [f"K_RT{i}:", f"s_mov_b32 s{sCNT}, 0", f"K_RA{i}:", "s_waitcnt vmcnt(0)"]
            for q in range(i, state["na"]): t += rl(q)
            t += ["s_waitcnt vmcnt(0)", f"s_cmp_ge_u32 s{sCNT}, {SPIN // 8}", f"s_cbranch_scc1 K_RB{i}"] + chk + [f"s_cbranch_scc0 K_RB{i}", f"K_RL{i}:", f"s_sleep {OPT.get('rsl', 6)}"]
            t += rl(i) + [f"s_add_u32 s{sCNT}, s{sCNT}, 1", "s_waitcnt vmcnt(0)", f"s_cmp_ge_u32 s{sCNT}, {SPIN // 8}", f"s_cbranch_scc1 K_RA{i}"] + chk + [f"s_cbranch_scc1 K_RL{i}", f"s_branch K_RA{i}"]
        cold.extend(t)
    def mm1(i, t):
        nt, mt = t >> 1, t & 1; c = vr(ACC2 + 16 * t, 16)
        e(f"{MFMA} {c}, {vr(wbuf(i)+4*nt,4)}, {vr(RING+8*unit[i]+4*mt,4)}, {'0' if i == 0 else c}")
    mark = len(e.L)
    fin_prep()
    e(f"v_and_b32 v{vFW}, 31, v{vL}"); e(f"v_mul_u32_u24 v{vFW}, 272, v{vFW}")
    e(f"v_lshrrev_b32 v26, 5, v{vL}"); e(f"v_lshl_add_u32 v{vFW}, v26, 4, v{vFW}")
    e(f"s_mul_i32 s{sT2}, s{sRG}, 17408"); e(f"s_add_u32 s{sT2}, s{sT2}, {XBASE}")
    e(f"v_add_u32 v{vFW}, s{sT2}, v{vFW}")
    fp = [t.strip() for t in e.L[mark:]]; del e.L[mark:]
    NT = OPT.get("nt", 2)
    for i in range(36 - NT):
        e("s_waitcnt lgkmcnt(0)")
        mm1(i, 0)
        state["done"] = i - 1
        pump(1)
        mm1(i, 1)
        tagwait(i + 1)
        wreads(i + 1)
        mm1(i, 2)
        if i + 1 >= 8: sent(i + 1)
        mm1(i, 3)
        pump(2)
        if i >= 12: e.ext(fp[:3]); del fp[:3]
        st(f"s{i}")
        if OPT.get("trace"): e(f"s_memtime s[84:85];;s_waitcnt lgkmcnt(0);;s_sub_u32 s84, s84, s78;;v_writelane_b32 v240, s84, {i+2}")
    assert not fp and state["na"] == 36 and state["nw"] == 36
    for i in range(37 - NT, 36):
        tagwait(i); wreads(i)
    for i in range(37 - NT, 36): sent(i)
    e("s_waitcnt lgkmcnt(0)")
    def twr(t):
        nt, mt = t >> 1, t & 1
        return [f"ds_write_b128 v{vFW}, {vr(ACC2+16*t+4*q,4)} offset:{32*272*mt + 128*nt + 32*q}" for q in range(4)]
    fin = []
    for t in range(4):
        nt, mt = t >> 1, t & 1; c = vr(ACC2 + 16 * t, 16)
        fin += [f"{MFMA} {c}, {vr(wbuf(i)+4*nt,4)}, {vr(RING+8*unit[i]+4*mt,4)}, {c}" for i in range(36 - NT, 36)]
        if t == 1: fin.append("s_barrier")
        if t >= 1: fin += [f"@NEED {12}", "@MARK"] + twr(t - 1)
        else: fin.append("@MARK")
    fin += ["@NEED 12"] + twr(3)
    e.ext(fin)
    st("s35")
    e("s_waitcnt lgkmcnt(0)")
    if OPT.get("trace"):
        e(f"s_memtime s[84:85];;s_waitcnt lgkmcnt(0);;s_sub_u32 s84, s84, s78;;v_writelane_b32 v240, s84, 36")
        e(f"s_lshl_b32 s84, s2, 2;;s_add_u32 s84, s84, s{sRG};;s_lshl_b32 s84, s84, 8;;s_add_u32 s84, s84, {210<<20};;v_lshlrev_b32 v241, 2, v{vL}")
        e(f"buffer_store_dword v240, v241, {sr(SWS,4)}, s84 offen")
    e("s_branch K_LAST")
    e.label("K_GFIN")
    st("gend")
    e("s_setprio 0")
    e(f"v_lshrrev_b32 v{vXO}, 3, v{vL}"); e(f"v_lshlrev_b32 v{vXO}, 10, v{vXO}")
    e(f"v_and_b32 v{vS2}, 7, v{vL}"); e(f"v_lshl_add_u32 v{vXO}, v{vS2}, 4, v{vXO}")
    fin_loads()
    e("s_waitcnt vmcnt(0)")
    fin_prep()
    e("s_barrier")
    e.label("K_LAST")
    e("s_barrier")
    for p in range(4):
        for hh in range(2):
            e(f"ds_read_b128 {vr(ACC2+8*p+4*hh,4)}, v{vFR2} offset:{17408*p + 16*hh}")
    for p in range(4):
        e(f"s_waitcnt lgkmcnt({6 - 2*p})")
        for j in range(0, 8, 2): e(f"v_pk_add_f32 {vr(vXB+j,2)}, {vr(vXB+j,2)}, {vr(ACC2+8*p+j,2)}")
    for j in range(4): e(f"v_cvt_pk_bf16_f32 v{OP+j}, v{vXB+2*j}, v{vXB+2*j+1}")
    e(f"buffer_store_dwordx4 {vr(OP,4)}, v{vXO}, {sr(SO,4)}, s{sXO} offen {OPT.get('st2', '').replace('_', ' ')}")
    e.label("K_FIN")
    if OPT.get("x_hold"):
        if "x_hwg" in OPT: e(f"s_cmp_lg_u32 s2, {OPT['x_hwg']}"); e("s_cbranch_scc1 K_END")
        e.label("K_HOLD")
        e("s_sleep 4"); e("s_memrealtime s[82:83]"); e("s_waitcnt lgkmcnt(0)")
        e("s_sub_u32 s82, s82, s80"); e(f"s_cmp_lt_u32 s82, {OPT['x_hold']}")
        e(f"s_cselect_b32 s82, s{sISC}, 0"); e("s_cmp_lg_u32 s82, 0"); e("s_cbranch_scc1 K_HOLD")
    if OPT.get("cnt"): e("s_add_u32 s90, s91, s78")
    if OPT["stamps"] and not OPT.get("phys"):
        e(f"s_xor_b32 s{sW}, s{sISC}, 1"); e(f"s_lshl_b32 s{sW}, s{sW}, 2"); e(f"s_add_u32 s{sW}, s{sW}, s{sRG}")
    stamp_end(e, 0, SWS, "K_END", sW, 0)
    e.label("K_END")
    e("s_endpgm")
    e.ext(cold)
    return e.text()

HEADER = """; out = x + hedgehog_linear_attention(LN(x)) + gelu_ffn(LN(x));  one launch, 256 workgroups x 8 waves, one per CU.
; Phase 1: 128 QKV workgroups (128 rows x 4 heads) and 128 FFN workgroups (128 rows x 224 hidden columns).  Raw x fragments stay in
;   registers, weight tiles stream through LDS (LDS-DMA + transposing reads); LayerNorm is applied exactly as a rank-1 correction
;   (row mean x column sum, one extra MFMA) and a per-row scale folded into the epilogues (GELU / true-max softmaxes).
; Phase 2: every workgroup computes a 64x64 tile of [h | o] @ [w2 ; wo] (+ x + b2), K split over four waves, while the other four
; Hand-offs through d_ws use sc1 stores/loads only: per-wave flag lines (reset at start, ordered by a counter in d_debug) and
;   slots pre-filled with an all-ones mark that the reader re-reads until the mark is gone.  Every spin is bounded.
"""
def main():
    out = HEADER
    out += "; @launch grid=(256,1,1) block=(512,1,1) lds=163840\n"
    out += '.amdgcn_target "amdgcn-amd-amdhsa--gfx950"\n.text\n'
    out += f".globl {KN}\n.p2align 8\n.type {KN},@function\n{KN}:\n" + gen()
    out += ".p2align 8\n.fill 1536, 4, 0xbf800000\n"
    out += f""".section .rodata,"a"
.p2align 6
.amdhsa_kernel {KN}
  .amdhsa_next_free_vgpr 256
  .amdhsa_next_free_sgpr 102
  .amdhsa_accum_offset 256
  .amdhsa_group_segment_fixed_size 0
  .amdhsa_kernarg_size 96
  .amdhsa_user_sgpr_count 2
  .amdhsa_user_sgpr_kernarg_segment_ptr 1
  .amdhsa_system_sgpr_workgroup_id_x 1
.end_amdhsa_kernel
"""
    open(sys.argv[1], "w").write(out)
main()
```

```python
import sys, math, struct

OPT = dict(stamps=0, st1="sc1", k1only=0, k2only=0, pfcode=1, pfw2=3)
for a in sys.argv[2:]:
    k, v = a.split("=")
    OPT[k] = int(v) if v.lstrip("-").isdigit() else v

H_OFF, PQ_OFF, KVP_OFF, KVZ_OFF, FLG_OFF = 0, 0x1000000, 0x1400000, 0x1600000, 0x1610000
STAMP_OFF = 200 << 20
NSTAMP = 8
LOOPST = OPT.get('loopst', -1)

def f2u(x): return struct.unpack("<I", struct.pack("<f", x))[0]

class Asm:
    def __init__(self): self.L = []
    def __call__(self, s):
        for t in s.split(";;"):
            t = t.strip()
            self.L.append(t if t.endswith(":") else "    " + t)
    def label(self, s): self.L.append(s + ":")
    def ext(self, lst):
        cnt = 0
        for s in lst:
            if s == "@MARK": cnt = 0; continue
            if s == "@PAD": continue
            if s.startswith("@NEED"):
                d = int(s.split()[1]) - cnt
                if d > 0: self(f"s_nop {d-1}")
                continue
            self(s)
            if "s_cbranch" in s: cnt += 1
            else: cnt += sum(1 for t in s.split(";;") if not t.strip().endswith(":"))
    def text(self): return "\n".join(self.L) + "\n"

class Lst(list):
    def __call__(self, s): self.append(s)

def vr(b, n=1): return f"v{b}" if n == 1 else f"v[{b}:{b+n-1}]"
def ar(b, n=1): return f"a{b}" if n == 1 else f"a[{b}:{b+n-1}]"
def sr(b, n=1): return f"s{b}" if n == 1 else f"s[{b}:{b+n-1}]"
MFMA = "v_mfma_f32_32x32x16_bf16"

def cost(ins):
    c = 0
    for t in ins.split(";;"):
        op = t.split()[0]
        if op == "@PAD": c += 8; continue
        if op.endswith(":") or op.startswith("@"): continue
        if "s_cbranch" in ins and op.startswith(("s_", "v_")): c += 0.5; continue
        if op.startswith(("v_exp", "v_rcp", "v_sqrt", "v_log", "v_mfma")): c += 8
        elif op == "s_nop": c += 2 * (int(t.split()[1]) + 1)
        elif op.startswith("s_"): c += 1
        elif op.startswith("buffer_"): c += 8
        else: c += 4.5
    return c

def interleave(groups, fill, first=0, last=None):
    last = len(groups) - 1 if last is None else last
    tot = sum(cost(i) for i in fill); n = last - first + 1
    out = []; k = 0; acc = 0.0
    for gi, g in enumerate(groups):
        out += g
        if first <= gi <= last:
            tgt = tot * (gi - first + 1) / n
            while k < len(fill) and (acc + cost(fill[k]) / 2 <= tgt or gi == last):
                out.append(fill[k]); acc += cost(fill[k]); k += 1
    assert k == len(fill)
    return out

def merge(a, b, frac=1.0):
    out = []; n = max(1, int(len(a) * frac)); k = 0
    for i, x in enumerate(a):
        while k < len(b) and k * n <= i * len(b) and i < n:
            out.append(b[k]); k += 1
        out.append(x)
    out += b[k:]
    return out

def srd(e, d, lo, hi, size):
    e(f"s_mov_b32 s{d}, s{lo}"); e(f"s_mov_b32 s{d+1}, s{hi}")
    e(f"s_mov_b32 s{d+2}, {size:#x}"); e(f"s_mov_b32 s{d+3}, 0x00020000")

def stamp(e, idx, base=80):
    if OPT["stamps"]:
        e(f"s_memtime s[{base+2*idx}:{base+2*idx+1}]")

def stamp_begin(e, base=80):
    if OPT["stamps"]:
        e(f"s_memrealtime s[{base}:{base+1}]")
        e(f"s_memtime s[{base-2}:{base-1}]")
        for i in range(2, NSTAMP):
            e(f"s_mov_b64 s[{base+2*i}:{base+2*i+1}], 0")

def stamp_end(e, kidx, wssrd, lbl, wave_sgpr, wave_sel, base=80):
    if not OPT["stamps"]: return
    e(f"s_memtime s[{base+2*(NSTAMP-2)}:{base+2*(NSTAMP-2)+1}]")
    e("s_waitcnt vmcnt(0)")
    e(f"s_memrealtime s[{base+2}:{base+3}]")
    e(f"s_memtime s[{base+2*(NSTAMP-1)}:{base+2*(NSTAMP-1)+1}]")
    e("s_waitcnt lgkmcnt(0)")
    for i in range(2, NSTAMP):
        e(f"s_sub_u32 s{base+2*i}, s{base+2*i}, s{base if (OPT.get('rt') and i < 6) else base-2}")
        e(f"s_mov_b32 s{base+2*i+1}, 0")
    e(f"s_lshl_b32 s{base-2}, s2, 3"); e(f"s_add_u32 s{base-2}, s{base-2}, s{wave_sgpr}")
    e(f"s_mul_i32 s{base-2}, s{base-2}, {8*NSTAMP}")
    e(f"s_add_u32 s{base-2}, s{base-2}, {STAMP_OFF + kidx*256*8*8*NSTAMP}")
    e("s_mov_b64 exec, 1")
    e("v_mov_b32 v1, 0")
    for i in range(NSTAMP // 2):
        for j in range(4):
            e(f"v_mov_b32 v{4+j}, s{base+4*i+j}")
        e(f"buffer_store_dwordx4 v[4:7], v1, {sr(wssrd,4)}, s{base-2} offen offset:{16*i}")
        e("s_nop 1")
    e("s_waitcnt vmcnt(0)")

KN = "parallel_sum__linear_kernel_hedgehog__dense_activation_gelu__prompt_kernel"
SPIN = OPT.get("spin", 20000)
CNT_OFF = FLG_OFF + 2048 * 128

def gen():
    e = Asm()
    M16 = "v_mfma_f32_16x16x32_bf16"
    SDBG, SX, SW, SWS, SAUX = 4, 8, 12, 16, 20
    sW, sRG, sP, sC, sRB, sTYPE = 24, 25, 26, 27, 28, 29
    sPITCH, sRT, sIDX, sROT = 30, 31, 32, 33
    sONES, sLO, sHI, sMASK = 34, 35, 36, 37
    sT0, sT1, sT2, sT3, sT4 = 38, 39, 40, 41, 42
    sXB = 43
    sCOL = 44
    sSLOT, sIT, sOUT, sAUXO, sP16 = 48, 49, 50, 51, 52
    sDA, sDB, sMA, sROWO, sW4K, sST = 53, 54, 55, 56, 57, 61
    sLT16, sFLG = 58, 60
    sJG, sISC, sWB, sLEV = 76, 77, 100, 101
    vDUM, vL, vL16, vDMA, vTR = 0, 1, 2, 3, 4
    vS, vCSW, vCSR, SELC, CS, AUG, vC0, vC1 = 8, 14, 15, 16, 20, 24, 30, 31
    TMP, PK, ACC, EACC, WB, vAUX, XF = 32, 48, 64, 80, 96, 116, 128
    NWB = 5
    YB, ZB = 0x10000, 0x20000
    STAT, CSX, RVO, GSY, ZSC = 0x20000, 0x20800, 0x21000, 0x21400, 0x21800
    vFR, vXD, RS, vQ, vAL = TMP, TMP + 8, TMP + 12, TMP + 16, TMP + 18
    STF = "" if OPT.get("x_pst") else "sc1"
    lab = [0]
    def L(p):
        lab[0] += 1
        return f"{p}{lab[0]}"
    SP = str(OPT.get("sp", "")).split(",")
    def st(name, lst=None):
        if OPT["stamps"] and name in SP:
            i = 2 + SP.index(name)
            t = f"{'s_memrealtime' if OPT.get('rt') else 's_memtime'} s[{80+2*i}:{81+2*i}];;s_waitcnt lgkmcnt(0)"
            (e if lst is None else lst.append)(t)
    e("s_cmp_ge_u32 s2, 256")
    e("s_cbranch_scc1 K_END")
    stamp_begin(e)
    if OPT.get("x_hold"): e("s_memrealtime s[80:81]")
    if OPT.get("cnt"): e("s_mov_b32 s91, 1")
    e("s_load_dwordx4 s[64:67], s[0:1], 0")
    e("s_load_dwordx2 s[68:69], s[0:1], 16")
    e("s_load_dwordx4 s[72:75], s[0:1], 40")
    e("s_load_dwordx2 s[70:71], s[0:1], 88")
    e("s_load_dwordx2 s[96:97], s[0:1], 56")
    e("s_load_dwordx2 s[98:99], s[0:1], 24")
    e(f"s_load_dwordx2 {sr(SDBG,2)}, s[0:1], 80")
    e(f"v_lshrrev_b32 v{vS}, 6, v0")
    e(f"v_and_b32 v{vL}, 63, v0")
    e(f"v_readfirstlane_b32 s{sW}, v{vS}")
    e(f"s_lshr_b32 s{sIDX}, s2, 3")
    if OPT["pfcode"]:
        e(f"s_cmp_lg_u32 s{sW}, 7"); e("s_cbranch_scc1 K_NOPF")
        e("s_getpc_b64 s[62:63]")
        e("s_and_b32 s62, s62, 0xffffff00")
        e(f"s_mul_i32 s{sT1}, s{sIDX}, 1024")
        e(f"v_lshl_add_u32 v{vS+3}, v{vL}, 7, s{sT1}")
        e("s_mov_b64 exec, 0xff")
        e(f"global_load_dword v{vDUM}, v{vS+3}, s[62:63]")
        e("s_mov_b64 exec, -1")
        e.label("K_NOPF")
    if OPT.get("x_skew"):
        e("s_and_b32 s38, s2, 7"); e("s_cmp_lg_u32 s38, 5"); e("s_cbranch_scc1 K_NSK"); e(f"s_sleep {OPT['x_skew']}"); e.label("K_NSK")
    e(f"s_and_b32 s{sT0}, s2, 7")
    e(f"s_lshr_b32 s{sRB}, s{sT0}, 1"); e(f"s_lshl_b32 s{sRB}, s{sRB}, 2")
    e(f"s_and_b32 s{sT2}, s{sIDX}, 3"); e(f"s_add_u32 s{sRB}, s{sRB}, s{sT2}")
    e(f"s_lshr_b32 s{sT1}, s{sIDX}, 2")
    e(f"s_add_u32 s{sROT}, s{sT1}, s{sT2}"); e(f"s_and_b32 s{sROT}, s{sROT}, {OPT.get('rotm', 3)}")
    e(f"s_and_b32 s{sTYPE}, s{sT1}, 1")
    e(f"s_lshr_b32 s{sT1}, s{sT1}, 1")
    e(f"s_and_b32 s{sC}, s{sT0}, 1"); e(f"s_lshl_b32 s{sC}, s{sC}, 2"); e(f"s_add_u32 s{sC}, s{sC}, s{sT1}")
    e(f"s_and_b32 s{sRG}, s{sW}, 3"); e(f"s_lshr_b32 s{sP}, s{sW}, 2")
    e(f"v_lshrrev_b32 v{vS}, 4, v{vL}"); e(f"v_and_b32 v{vS+1}, 15, v{vL}")
    e(f"v_xor_b32 v{vS+2}, v{vS}, v{vS+1}"); e(f"v_lshlrev_b32 v{vS+2}, 4, v{vS+2}")
    e(f"v_lshl_add_u32 v{vXD}, v{vS}, 10, v{vS+2}")
    for i in range(1, 4): e(f"v_xor_b32 v{vXD+i}, {4096*i + 64*i}, v{vXD}")
    e(f"s_lshl_b32 s{sXB}, s{sRB}, 17"); e(f"s_lshl_b32 s{sT0}, s{sW}, 14"); e(f"s_add_u32 s{sXB}, s{sXB}, s{sT0}")
    e(f"s_lshl_b32 s{sW4K}, s{sW}, 12")
    e(f"v_and_b32 v{vS+3}, 31, v{vL}")
    e(f"v_lshrrev_b32 v{vS+4}, 5, v{vL}")
    e(f"s_cmp_eq_u32 s{sTYPE}, 0")
    e("s_cbranch_scc1 K_SETQ")
    e(f"s_movk_i32 s{sPITCH}, 3584")
    e(f"s_mul_i32 s{sAUXO}, s{sC}, 448")
    e(f"s_and_b32 s{sT1}, s{sC}, 1")
    e(f"s_lshl_b32 s{sT2}, s{sT1}, 6"); e(f"s_add_u32 s{sCOL}, s{sAUXO}, s{sT2}")
    e(f"s_add_u32 s{sCOL+1}, s{sCOL}, 128"); e(f"s_add_u32 s{sCOL+2}, s{sCOL}, 256")
    e(f"s_lshl_b32 s{sT2}, s{sT1}, 9"); e(f"s_add_u32 s{sCOL+3}, s{sCOL}, 384"); e(f"s_sub_u32 s{sCOL+3}, s{sCOL+3}, s{sT2}")
    e(f"s_lshl_b32 s{sT2}, s{sP}, 6")
    e(f"v_lshl_add_u32 v{vAL}, v{vS+3}, 1, s{sT2}")
    e(f"s_mov_b32 s{SW+2}, {512*3584}"); e(f"s_movk_i32 s{SAUX+2}, 3584")
    e("s_branch K_SETD")
    e.label("K_SETQ")
    e(f"s_movk_i32 s{sPITCH}, 3072")
    e(f"s_lshl_b32 s{sCOL+2}, s{sC}, 7"); e(f"s_add_u32 s{sCOL}, s{sCOL+2}, 1024"); e(f"s_add_u32 s{sCOL+1}, s{sCOL+2}, 2048")
    e(f"s_lshl_b32 s{sT1}, s{sP}, 10"); e(f"s_lshl_b32 s{sAUXO}, s{sC}, 11"); e(f"s_add_u32 s{sT1}, s{sT1}, s{sAUXO}")
    e(f"v_lshl_add_u32 v{vAL}, v{vL}, 4, s{sT1}")
    e(f"s_mov_b32 s{SW+2}, {512*3072}"); e(f"s_movk_i32 s{SAUX+2}, {32*512}")
    e.label("K_SETD")
    e(f"s_mov_b32 s{SW+3}, 0x00020000"); e(f"s_mov_b32 s{SAUX+3}, 0x00020000")
    e(f"v_lshrrev_b32 v{vDMA}, 2, v{vL}"); e(f"v_mul_lo_u32 v{vDMA}, v{vDMA}, s{sPITCH}")
    e(f"v_and_b32 v{vS+5}, 3, v{vL}"); e(f"v_lshl_add_u32 v{vDMA}, v{vS+5}, 4, v{vDMA}")
    e(f"s_lshl_b32 s{sP16}, s{sPITCH}, 4")
    e(f"s_mul_i32 s{sWB}, s{sP16}, s{sW}"); e(f"s_add_u32 s{sWB}, s{sWB}, s{sCOL}")
    e(f"s_cmp_eq_u32 s{sTYPE}, 0")
    e("s_waitcnt lgkmcnt(0)")
    e(f"s_cselect_b64 {sr(SW,2)}, s[66:67], s[72:73]"); e(f"s_cselect_b64 {sr(SAUX,2)}, s[68:69], s[74:75]")
    srd(e, SX, 64, 65, 2048 * 1024)
    ROP = "s_xor_b32" if OPT.get("rxor", 0) else "s_add_u32"
    XBUF = (ZB, YB, YB + 0x8000, ZB)
    def sset(j):
        l = Lst()
        l(f"{ROP} s{sT0}, s{sROT}, {j};;s_and_b32 s{sT0}, s{sT0}, 3;;s_lshl_b32 s{sT1}, s{sT0}, 8;;s_add_u32 s{sT1}, s{sT1}, s{sXB};;"
          f"s_lshl_b32 s{sT0}, s{sT0}, 3;;s_mul_i32 s{sT0}, s{sT0}, s{sP16};;s_add_u32 s{sT0}, s{sT0}, s{sWB};;s_add_u32 s{sT2}, s{sT0}, 64;;s_lshr_b32 s{sT3}, s{sW4K}, 2")
        for i in range(4):
            l(f"s_add_u32 m0, s{sW4K}, {XBUF[j] + 1024*i};;s_nop 0;;buffer_load_dwordx4 v{vXD+i}, {sr(SX,4)}, s{sT1} offen lds")
        wo = 0x8000 * (j >> 1) + 8192 * (j & 1)
        l(f"s_add_u32 m0, s{sT3}, {wo};;s_nop 0;;buffer_load_dwordx4 v{vDMA}, {sr(SW,4)}, s{sT0} offen lds")
        l(f"s_add_u32 m0, s{sT3}, {wo + 0x4000};;s_nop 0;;buffer_load_dwordx4 v{vDMA}, {sr(SW,4)}, s{sT2} offen lds")
        return l
    WTW = OPT.get("wtw", 2)
    wt = (f"s_lshr_b32 s{sT0}, s{sW}, 1;;s_cmp_lg_u32 s{sT0}, {WTW};;s_cbranch_scc1 K_NW;;s_cmp_eq_u32 s{sW}, {2*WTW};;"
          f"s_cselect_b64 s[92:93], s[72:73], s[66:67];;s_mov_b32 s{sT0}, {512*3584};;s_cselect_b32 s94, s{sT0}, {512*3072};;s_mov_b32 s95, 0x00020000;;"
          f"s_movk_i32 s{sT0}, 7168;;s_cselect_b32 s{sT0}, s{sT0}, 6144;;s_cselect_b32 s{sT1}, 56, 48;;s_mul_i32 s{sT0}, s{sT0}, s2;;"
          f"v_lshlrev_b32 v{vDUM}, 7, v{vL};;s_bfm_b64 exec, s{sT1}, 0;;buffer_load_dword v{vDUM}, v{vDUM}, s[92:95], s{sT0} offen;;s_mov_b64 exec, -1;;K_NW:")
    WTA = OPT.get("wta", 2)
    xt = (f"s_cmp_lg_u32 s{sW}, 1;;s_cbranch_scc1 K_NX;;s_lshl_b32 s{sT0}, s2, 13;;v_lshlrev_b32 v{vDUM}, 7, v{vL};;"
          f"buffer_load_dword v{vDUM}, v{vDUM}, {sr(SX,4)}, s{sT0} offen;;K_NX:")
    st("ka")
    if OPT.get("xta", 0) == 1: e(xt)
    if WTA == -2: e(wt)
    e.ext(sset(0))
    if OPT.get("xta", 0) == 2: e(xt)
    if WTA == -1: e(wt)
    st("i0")
    srd(e, SWS, 70, 71, 0x10000000)
    e(f"s_movk_i32 s{SDBG+2}, 256"); e(f"s_mov_b32 s{SDBG+3}, 0x00020000")
    e(f"s_lshl_b32 s{sRT}, s{sRB}, 2"); e(f"s_add_u32 s{sRT}, s{sRT}, s{sRG}")
    e(f"s_lshl_b32 s{sFLG}, s{sTYPE}, 4"); e(f"s_add_u32 s{sFLG}, s{sFLG}, s{sRB}"); e(f"s_lshl_b32 s{sFLG}, s{sFLG}, 3"); e(f"s_add_u32 s{sFLG}, s{sFLG}, s{sC}")
    e(f"s_lshl_b32 s{sFLG}, s{sFLG}, 10"); e(f"s_add_u32 s{sFLG}, s{sFLG}, {FLG_OFF}")
    e(f"s_and_b32 s{sISC}, s{sC}, 1"); e(f"s_xor_b32 s{sISC}, s{sISC}, s{sP}")
    e(f"v_lshlrev_b32 v{vL16}, 4, v{vL}")
    e(f"v_mov_b32 v{AUG+4}, 0"); e(f"v_mov_b32 v{AUG+5}, 0")
    e(f"s_lshl_b32 s{sIT}, s{sTYPE}, 3"); e(f"s_add_u32 s{sIT}, s{sIT}, s{sW}")
    e(f"s_cmp_lg_u32 s{sIT}, 15"); e("s_cbranch_scc1 K_NZ")
    e(f"v_lshlrev_b32 v{vS+2}, 3, v{vL}")
    e(f"buffer_store_dwordx2 {vr(AUG+4,2)}, v{vS+2}, {sr(SWS,4)}, s{sFLG} offen sc1")
    e(f"buffer_store_dwordx2 {vr(AUG+4,2)}, v{vS+2}, {sr(SWS,4)}, s{sFLG} offen offset:512 sc1")
    e.label("K_NZ")
    e(f"s_lshl_b32 s{sT0}, s{sW}, 7"); e(f"s_add_u32 s{sFLG}, s{sFLG}, s{sT0}")
    e(f"s_lshl_b32 s{sT0}, s{sROT}, 2"); e(f"{ROP} s{sT0}, s{sT0}, s{sW}"); e(f"s_and_b32 s{sT1}, s{sT0}, 15"); e(f"s_lshl_b32 s{sT1}, s{sT1}, 1")
    e(f"s_mul_i32 s{sROWO}, s{sT1}, s{sP16}")
    e(f"s_add_u32 s{sT0}, s{sT0}, 8"); e(f"s_and_b32 s{sT1}, s{sT0}, 15"); e(f"s_lshl_b32 s{sT1}, s{sT1}, 1")
    e(f"s_mul_i32 s{sJG}, s{sT1}, s{sP16}"); e(f"s_sub_u32 s{sJG}, s{sJG}, s{sROWO}"); e(f"s_sub_u32 s{sJG}, s{sJG}, s{sP16}")
    e(f"s_lshl_b32 s{sT4}, s{sW}, 11")
    sLB0 = sT4
    vFO, vF0, vF1 = vAUX + 11, 238, 239
    def fragoff(vd, srt):
        if OPT.get("x_flat"):
            e(f"s_and_b32 s{sT0}, s{srt}, 1"); e(f"s_lshl_b32 s{sT0}, s{sT0}, 10"); e(f"v_xor_b32 v{vd}, s{sT0}, v{vL16}"); return
        if OPT.get("dcol", 1):
            e(f"s_lshr_b32 s{sT0}, s{srt}, 1"); e(f"s_and_b32 s{sT0}, s{sT0}, 6"); e(f"s_and_b32 s62, s{srt}, 1"); e(f"s_or_b32 s{sT0}, s{sT0}, s62")
        else: e(f"s_and_b32 s{sT0}, s{srt}, 7")
        e(f"s_cmp_eq_u32 s{sT0}, 3"); e(f"s_cselect_b32 s{sT0}, 7, s{sT0}")
        e(f"s_lshl_b32 s{sT0}, s{sT0}, 7"); e(f"s_add_u32 s{sT0}, s{sT0}, 640")
        e("s_mov_b32 s62, 0xff000000"); e("s_mov_b32 s63, 0")
        e(f"v_mov_b32 v{vd}, s{sT0}"); e(f"v_cndmask_b32 v{vd}, 0, v{vd}, s[62:63]"); e(f"v_add_u32 v{vd}, v{vd}, v{vL16}")
        e(f"s_and_b32 s{sT0}, s{srt}, 1"); e(f"s_lshl_b32 s{sT0}, s{sT0}, 10"); e(f"v_xor_b32 v{vd}, s{sT0}, v{vd}")
    fragoff(vFO, sRT)
    def guard(t):
        g = L("G"); return f"s_cbranch_vccz {g};;{t};;{g}:"
    def dma8(gd=False):
        l = []
        for i in range(4):
            jg, jl = (f"s{sJG}", "0x7c00") if i == 1 else (f"s{sP16}", "1024")
            l += [f"s_mov_b32 m0, s{sMA};;s_add_u32 s{sDB}, s{sDA}, 64;;buffer_load_dwordx4 v{vDMA}, {sr(SW,4)}, s{sDA} offen lds",
                  f"s_add_u32 m0, s{sMA}, 0x4000;;s_add_u32 s{sDA}, s{sDA}, {jg};;buffer_load_dwordx4 v{vDMA}, {sr(SW,4)}, s{sDB} offen lds;;s_add_u32 s{sMA}, s{sMA}, {jl}"]
        if not gd: return l
        l = []
        for i in range(4):
            jg, jl = (f"s{sJG}", "0x7c00") if i == 1 else (f"s{sP16}", "1024")
            g = L("G")
            l += [guard(f"s_mov_b32 m0, s{sMA};;s_add_u32 s{sDB}, s{sDA}, 64;;buffer_load_dwordx4 v{vDMA}, {sr(SW,4)}, s{sDA} offen lds"),
                  f"s_add_u32 m0, s{sMA}, 0x4000;;s_add_u32 s{sDA}, s{sDA}, {jg};;s_add_u32 s{sMA}, s{sMA}, {jl};;s_cmp_lg_u32 s{sLEV}, 0;;s_cbranch_scc1 {g};;"
                  f"buffer_load_dwordx4 v{vDMA}, {sr(SW,4)}, s{sDB} offen lds;;{g}:"]
        return l
    e(f"s_mov_b32 s{sONES}, 0x3f803f80"); e(f"s_mov_b32 s{sLO}, 0x00003f80"); e(f"s_mov_b32 s{sHI}, 0x3f800000")
    e(f"s_mov_b32 s{sMASK}, 0xffff0000")
    e(f"v_lshlrev_b32 v{vS+2}, 9, v{vS+4}")
    e(f"v_bfe_u32 v{vS}, v{vL}, 2, 2"); e(f"v_lshl_add_u32 v{vS+2}, v{vS}, 6, v{vS+2}")
    e(f"v_bfe_u32 v{vCSW}, v{vL}, 4, 1"); e(f"v_lshl_add_u32 v{vS+2}, v{vCSW}, 5, v{vS+2}")
    e(f"v_lshl_add_u32 v{vS+2}, v{vS+5}, 3, v{vS+2}")
    e(f"s_xor_b32 s{sT3}, s{sRG}, s{sP}"); e(f"s_lshl_b32 s{sT1}, s{sP}, 14")
    for k in range(4):
        e(f"s_xor_b32 s{sT0}, s{sT3}, {k}"); e(f"s_lshl_b32 s{sT0}, s{sT0}, 10"); e(f"s_add_u32 s{sT0}, s{sT0}, s{sT1}")
        e(f"v_add_u32 v{vTR+k}, s{sT0}, v{vS+2}")
    e(f"v_and_b32 v{vS}, 1, v{vS}"); e(f"v_cmp_eq_u32 vcc, v{vS}, v{vCSW}"); e(f"v_mov_b32 v{vS}, s{sONES}")
    e(f"v_cmp_gt_u32 {sr(sLT16,2)}, 16, v{vS+3}")
    for j in range(4): e(f"v_cndmask_b32 v{SELC+j}, 0, v{vS}, vcc")
    e(f"v_xor_b32 v{vS}, v{vS+4}, v{vS+1}"); e(f"v_lshlrev_b32 v{vS}, 4, v{vS}")
    e(f"v_lshl_add_u32 v{vS}, v{vS+3}, 8, v{vS}")
    e(f"s_lshl_b32 s{sT0}, s{sT3}, 5"); e(f"v_xor_b32 v{vS}, s{sT0}, v{vS}")
    e(f"s_lshl_b32 s{sT0}, s{sRG}, 13"); e(f"s_add_u32 s{sT0}, s{sT0}, {YB + 0x8000}"); e(f"v_add_u32 v{vFR}, s{sT0}, v{vS}")
    for s in range(1, 8): e(f"v_xor_b32 v{vFR+s}, {32*s}, v{vFR}")
    e(f"s_lshl_b32 s{sT0}, s{sP}, 9"); e(f"s_add_u32 s{sT0}, s{sT0}, {CSX}")
    e(f"v_lshl_add_u32 v{vCSR}, v{vS+3}, 4, s{sT0}")
    e(f"s_lshl_b32 s{sT0}, s{sRG}, 2"); e(f"v_add_u32 v{vCSW}, s{sT0}, v{vCSR}")
    e(f"v_mov_b32 v{vQ}, 0"); e(f"v_mov_b32 v{vQ+1}, 0")
    def auxl(lbl):
        t = f"s_cmp_eq_u32 s{sTYPE}, 0;;s_cbranch_scc1 {lbl}Q"
        for i in range(4): t += f";;buffer_load_ushort v{vAUX+i}, v{vAL}, {sr(SAUX,4)}, s{sCOL+i} offen"
        t += f";;s_branch {lbl}D;;{lbl}Q:"
        t += f";;s_lshl_b32 m0, s{sW}, 10;;s_nop 0;;buffer_load_dwordx4 v{vAL}, {sr(SAUX,4)}, 0 offen lds"
        t += f";;{lbl}D:"
        return t
    if OPT.get("x_p2only"):
        e("s_waitcnt vmcnt(0)"); e("s_barrier")
        e(f"s_cmp_eq_u32 s{sISC}, 0"); e("s_cbranch_scc1 K_FIN")
        e("s_branch K_FTAIL")
    ROW = [YB + 0x4000, YB + 0x6000, YB + 0xC000, YB + 0xE000, 0x22000, 0x24000, 0x26000] + [0x2000 * k for k in range(6)]
    XR = OPT.get("xr", 1)
    NL, NE, NW1 = len(ROW), 7, OPT.get("nw1", 4)
    NE2 = NE + 4 * XR; NW1 = min(NW1, NL - NE2)
    sE1, sE2, SWE = 68, 69, 64
    sA0, sA1, sWK, sLB, sP0, sP1, sKV, sWO_, sXO, sXO2, sPF, sCNT = 30, 33, 43, 34, 51, 52, 53, 54, 55, 56, 57, 3
    SW2, SWO = SW, SAUX
    vTR0, vTR1, vXO, vPA = 4, 5, 6, vS + 2
    ND = vS + 3
    sEA = sWB
    order = [0, 1, 2, 3, 16, 17, 18, 19, 4, 5, 6, 7, 20, 21, 22, 23, 8, 9, 10, 11, 24, 25, 26, 27, 12, 13, 14, 15]
    def wdma(i):
        lo = ROW[i % NL]
        S, base, off = (SW2, sWK, order[i] * 16384) if i < 28 else (SWO, sWO_, (i - 28) * 16384)
        return [f"s_add_u32 m0, s{sLB}, {lo + 1024*k};;s_add_u32 s{sT0}, s{base}, {off + 8192*k};;buffer_load_dwordx4 v{vDMA}, {sr(S,4)}, s{sT0} offen lds" for k in range(2)]
    def erow(i, vd):
        return f"s_add_u32 m0, s{sE1}, {ROW[i]};;s_add_u32 s{sT0}, s{sE2}, {order[i]*16384};;buffer_load_dwordx4 v{vd}, {sr(SWE,4)}, s{sT0} offen lds"
    def dmalane(vd, t0, t1):
        e(f"v_lshrrev_b32 v{vd}, 3, v{vL}"); e(f"v_lshlrev_b32 v{vd}, 10, v{vd}")
        e(f"v_and_b32 v{t0}, 7, v{vL}"); e(f"v_bfe_u32 v{t1}, v{vL}, 4, 1"); e(f"v_lshlrev_b32 v{t1}, 2, v{t1}")
        e(f"v_xor_b32 v{t1}, v{t0}, v{t1}"); e(f"v_lshl_add_u32 v{vd}, v{t1}, 4, v{vd}")
    def cbcalc():
        if OPT.get("cbmap", 0) == 0:
            e(f"s_lshr_b32 s{sT1}, s{sIDX}, 2"); e(f"s_lshl_b32 s{sT1}, s{sT1}, 7")
        else:
            e(f"s_lshr_b32 s{sT1}, s{sIDX}, 3"); e(f"s_lshl_b32 s{sT0}, s{sTYPE}, 2"); e(f"s_add_u32 s{sT1}, s{sT1}, s{sT0}"); e(f"s_lshl_b32 s{sT1}, s{sT1}, 7")
    def p2_setup():
        e(f"s_cmp_lg_u32 s{sISC}, 0"); e("s_cselect_b64 vcc, -1, 0")
        srd(e, SW2, 96, 97, 1792 * 1024)
        srd(e, SWO, 98, 99, 512 * 1024)
        cbcalc()
        e(f"s_lshl_b32 s{sWO_}, s{sRG}, 17"); e(f"s_add_u32 s{sWO_}, s{sWO_}, s{sT1}")
        e(f"v_lshrrev_b32 v{vXO}, 3, v{vL}"); e(f"v_lshlrev_b32 v{vXO}, 10, v{vXO}")
        e(f"v_and_b32 v{vTR0}, 7, v{vL}"); e(f"v_bfe_u32 v{vTR1}, v{vL}, 4, 1"); e(f"v_lshlrev_b32 v{vTR1}, 2, v{vTR1}")
        e(f"v_xor_b32 v{vTR1}, v{vTR0}, v{vTR1}"); e(f"v_lshl_add_u32 v{vDMA}, v{vTR1}, 4, v{vXO}")
        e(f"v_lshl_add_u32 v{vXO}, v{vTR0}, 4, v{vXO}")
        e(f"s_lshr_b32 s{sT1}, s{sC}, 2"); e(f"s_lshl_b32 s{sT1}, s{sT1}, 1"); e(f"s_lshl_b32 s{sT2}, s{sRB}, 2"); e(f"s_add_u32 s{sT1}, s{sT1}, s{sT2}")
        fragoff(vF0, sT1); e(f"s_add_u32 s{sT1}, s{sT1}, 1"); fragoff(vF1, sT1)
    def early_scalars():
        e(f"s_lshr_b32 s{sT1}, s{sC}, 2"); e(f"s_lshl_b32 s{sT2}, s{sRB}, 1"); e(f"s_add_u32 s{sT2}, s{sT2}, s{sT1}")
        e(f"s_mul_i32 s{sA0}, s{sT2}, {4*114688}"); e(f"s_mul_i32 s{sT0}, s{sRG}, {28*2048}")
        e(f"s_add_u32 s{sA0}, s{sA0}, s{sT0}"); e(f"s_add_u32 s{sA1}, s{sA0}, {2*114688}")
        e(f"s_lshl_b32 s{sPF}, s{sRT}, 11"); e(f"s_lshl_b32 s{sT0}, s{sT1}, 8")
        e(f"s_add_u32 s{sPF}, s{sPF}, s{sT0}"); e(f"s_add_u32 s{sPF}, s{sPF}, {FLG_OFF + 128*1024}")
        e(f"s_cmp_lg_u32 s{sISC}, 0"); e(f"s_cselect_b32 s{sEA}, 1, 64")
        cbcalc()
        e(f"s_mul_i32 s{sWK}, s{sRG}, {448*1024}"); e(f"s_add_u32 s{sWK}, s{sWK}, s{sT1}")
        e(f"s_lshl_b32 s{sLB}, s{sRG}, 11")
        e(f"s_lshl_b32 s{sT0}, s{sP}, 10"); e(f"s_add_u32 s{sE1}, s{sLB}, s{sT0}")
        e(f"s_lshl_b32 s{sT0}, s{sP}, 13"); e(f"s_add_u32 s{sE2}, s{sWK}, s{sT0}")
        srd(e, SWE, 96, 97, 1792 * 1024)
    def poll_addr():
        e(f"v_lshrrev_b32 v{vPA}, 1, v{vL}"); e(f"v_lshlrev_b32 v{vPA}, 9, v{vPA}")
        e(f"v_and_b32 v{ND}, 1, v{vL}"); e(f"v_lshl_add_u32 v{vPA}, v{ND}, 7, v{vPA}")
    vD2 = vAUX + 10
    dmalane(vD2, vS + 2, vS + 3)
    poll_addr()
    for j in range(4): e(f"v_mov_b32 v{PK+4+j}, -1")
    SPm, SMm = vAUX + 4, vAUX + 8
    e(f"s_cmp_lg_u32 s{sTYPE}, 0"); e("s_cbranch_scc1 K_NSEL")
    e(f"v_lshlrev_b32 v{vS+4}, 2, v{vS+4}"); e(f"v_sub_u32 v{vS+4}, v{vS+1}, v{vS+4}")
    e(f"v_mov_b32 v{vS}, s{sLO}"); e(f"v_mov_b32 v{vS+5}, s{sHI}")
    for t, f0 in enumerate((0, 2, 8, 10)):
        e(f"v_cmp_eq_u32 vcc, {f0}, v{vS+4};;v_cmp_eq_u32 s[62:63], {f0+1}, v{vS+4};;s_nop 0;;"
          f"v_cndmask_b32 v{SMm+t}, 0, v{vS}, vcc;;v_cndmask_b32 v{SMm+t}, v{SMm+t}, v{vS+5}, s[62:63]")
    for j in range(4):
        e(f"v_cndmask_b32 v{SPm+j}, 0, v{SMm+j}, {sr(sLT16,2)}"); e(f"v_cndmask_b32 v{SMm+j}, v{SMm+j}, 0, {sr(sLT16,2)}")
    e(f"v_bfe_u32 v{vS}, v{vL}, 4, 1"); e(f"v_lshlrev_b32 v{vAUX}, 9, v{vS}")
    e(f"v_lshrrev_b32 v{vS}, 5, v{vL}"); e(f"v_lshl_add_u32 v{vAUX}, v{vS}, 7, v{vAUX}")
    e(f"v_lshl_add_u32 v{vAUX}, v{vS+1}, 3, v{vAUX}")
    e(f"s_lshl_b32 s{sT0}, s{sW}, 10"); e(f"v_add_u32 v{vAUX}, s{sT0}, v{vAUX}")
    e.label("K_NSEL")
    def q3touch():
        e(f"s_cmp_ge_u32 s{sC}, 4"); e("s_cbranch_scc1 K_NQ3")
        e("s_mov_b64 s[92:93], s[66:67]"); e(f"s_mov_b32 s94, {512*3072}"); e("s_mov_b32 s95, 0x00020000")
        e(f"s_lshl_b32 s{sT0}, s{sIDX}, 3"); e(f"s_add_u32 s{sT0}, s{sT0}, s{sW}"); e(f"s_mul_i32 s{sT0}, s{sT0}, 6144")
        for col in ((2048, 0) if OPT.get("q3", 1) < 3 else (0,)):
            for r in (0, 3072):
                for hf in (0, 64): e(f"s_buffer_load_dword s{sCNT}, s[92:95], s{sT0} offset:{col + 384 + r + hf}")
        e.label("K_NQ3")
    e(f"s_mul_i32 s{sOUT}, s{sRT}, {2*114688}"); e(f"s_lshl_b32 s{sT0}, s{sP}, 12"); e(f"s_add_u32 s{sOUT}, s{sOUT}, s{sT0}")
    e(f"s_and_b32 s{sAUXO}, s{sC}, 1"); e(f"s_lshl_b32 s{sAUXO}, s{sAUXO}, 6"); e(f"s_add_u32 s{sAUXO}, s{sAUXO}, s{sCOL+3}")
    e(f"s_lshl_b32 s{sSLOT}, s{sAUXO}, 6"); e(f"s_add_u32 s{sSLOT}, s{sSLOT}, s{sOUT}"); e(f"s_lshl_b32 s{sT0}, s{sP}, 11"); e(f"s_sub_u32 s{sSLOT}, s{sSLOT}, s{sT0}")
    M1 = vr(PK + 4, 4)
    pf1 = (f"s_cmp_eq_u32 s{sTYPE}, 0;;s_cbranch_scc1 K_NP1;;s_lshl_b32 s{sT0}, s{sRB}, 3;;s_add_u32 s{sT0}, s{sT0}, s{sC};;s_lshl_b32 s{sT0}, s{sT0}, 14;;s_lshl_b32 s{sT1}, s{sW}, 10;;"
           f"s_add_u32 s{sT2}, s{sT0}, s{sT1};;s_add_u32 s{sT2}, s{sT2}, {KVP_OFF};;buffer_store_dwordx4 {M1}, v{vL16}, {sr(SWS,4)}, s{sT2} offen sc1;;"
           f"s_cmp_lg_u32 s{sW}, 7;;s_cbranch_scc1 K_NP1;;s_lshl_b32 s{sT0}, s{sC}, 4;;s_add_u32 s{sT0}, s{sT0}, s{sRB};;s_lshl_b32 s{sT0}, s{sT0}, 9;;"
           f"s_add_u32 s{sT0}, s{sT0}, {KVZ_OFF};;s_mov_b32 exec_hi, 0;;buffer_store_dwordx4 {M1}, v{vL16}, {sr(SWS,4)}, s{sT0} offen sc1;;"
           f"buffer_store_dwordx4 {M1}, v{vL16}, {sr(SWS,4)}, s{sT2} offen offset:1024 sc1;;s_mov_b32 exec_hi, -1;;K_NP1:")
    pf2 = (f"s_cmp_eq_u32 s{sTYPE}, 0;;s_cbranch_scc1 K_NP2;;s_lshl_b32 s{sT0}, s{sRT}, 16;;s_lshl_b32 s{sT1}, s{sC}, 13;;s_add_u32 s{sT0}, s{sT0}, s{sT1};;s_lshl_b32 s{sT1}, s{sP}, 12;;"
           f"s_add_u32 s{sT0}, s{sT0}, s{sT1};;s_add_u32 s{sT0}, s{sT0}, {PQ_OFF};;buffer_store_dwordx4 {M1}, v{vFO}, {sr(SWS,4)}, s{sT0} offen sc1;;"
           f"buffer_store_dwordx4 {M1}, v{vFO}, {sr(SWS,4)}, s{sT0} offen offset:2048 sc1;;K_NP2:")
    hp = [f"s_lshl_b32 s{sT0}, s{sCOL+1+k//2}, 6;;s_add_u32 s{sT0}, s{sT0}, s{sOUT};;buffer_store_dwordx4 {vr(PK+4,4)}, v{vFO}, {sr(SWS,4)}, s{sT0} offen offset:{2048*(k&1)} sc1" for k in range(4)]
    hp.append(f"buffer_store_dwordx4 {vr(PK+4,4)}, v{vFO}, {sr(SWS,4)}, s{sSLOT} offen sc1")
    EPF = OPT.get("epf", 0)
    def epf():
        e(pf1); e(pf2)
        if EPF >= 2:
            e(f"s_cmp_eq_u32 s{sTYPE}, 0"); e("s_cbranch_scc1 K_NHP"); e.ext(hp); e.label("K_NHP")
    st("su")
    if EPF and OPT.get("epfat", 0) == 0: epf()
    if OPT.get("p1t", 0):
        e(f"s_lshl_b32 s{sT0}, s{sRB}, 3"); e(f"s_add_u32 s{sT0}, s{sT0}, s{sW}"); e(f"s_lshl_b32 s{sT0}, s{sT0}, 2"); e(f"s_mul_i32 s{sT0}, s{sT0}, s{sPITCH}")
        e(f"s_add_u32 s{sT0}, s{sT0}, s{sCOL+1}")
        for r in range(4):
            for hf in ((0, 64) if OPT.get("p1t") == 1 else (0,)): e(f"s_buffer_load_dword s{sCNT}, {sr(SW,4)}, s{sT0} offset:{hf}")
            if r < 3: e(f"s_add_u32 s{sT0}, s{sT0}, s{sPITCH}")
    if OPT.get("q3", 1) in (1, 3): q3touch()
    e.ext(sset(1))
    if EPF and OPT.get("epfat", 0) == 1: epf()
    if OPT.get("q3", 1) == 2: q3touch()
    st("i1")

    def wrd(s):
        b = WB + 4 * (s % NWB); o = 1024 * (s & 12) + 0x8000 * (s >> 4)
        return [f"ds_read_b64_tr_b16 {vr(b,2)}, v{vTR+(s&3)} offset:{o}", f"ds_read_b64_tr_b16 {vr(b+2,2)}, v{vTR+(s&3)} offset:{o+256}"]
    def csm(s):
        return f"{M16} {vr(CS,4)}, {vr(SELC,4)}, {vr(WB+4*(s%NWB),4)}, {'0' if s == 0 else vr(CS,4)}"
    XO = (0x8000, 0, 0x8000, 0x8000)
    def rd(s):
        return [f"ds_read_b128 {vr(XF+4*s,4)}, v{vFR+(s&7)} offset:{XO[s>>3]}"] + wrd(s)
    P2S = OPT.get('p2s', 0)
    VM = {0: 6, 1: min(6, 5 - P2S), 2: 6, 3: 4, 4: 63}
    def sync(k):
        l = [f"s_waitcnt vmcnt({VM[k]}) lgkmcnt(0)", "s_barrier"]
        if k == 3 and OPT.get("wtg", 12) in range(12, 21): l[0] = f"s_waitcnt vmcnt(5) lgkmcnt(0);;s_lshr_b32 s{sT0}, s{sW}, 1;;s_cmp_eq_u32 s{sT0}, {WTW};;s_cbranch_scc1 K_S3;;s_waitcnt vmcnt(4);;K_S3:"
        st(f"sync{k}", l)
        if k == 1: l += [f"v_subrev_u32 v{vFR+t}, 0x8000, v{vFR+t}" for t in range(8)]
        if k == 3: l += [f"v_add_u32 v{vFR+t}, 0x8000, v{vFR+t}" for t in range(8)]
        return l
    G = []
    g0 = sync(0)
    for s_ in range(4): g0 += rd(s_)
    G.append(g0)
    for s_ in range(32):
        g = []
        if s_ % 8 == 4: g += sync(s_ // 8 + 1)
        if s_ + 4 < 32: g += rd(s_ + 4)
        if s_ % 8 < 4: g.append(f"s_waitcnt lgkmcnt(12)")
        d = EACC if s_ == 31 else ACC
        g.append(f"{MFMA} {vr(d,16)}, {vr(WB+4*(s_%NWB),4)}, {vr(XF+4*s_,4)}, {'0' if s_ == 0 else vr(ACC,16)}")
        if s_ % 4 == 0: g.append(csm(s_))
        if s_ % 2 == 0:
            g.append(f"{M16} {vr(RS,4)}, {vr(SELC,4)}, {vr(XF+4*s_,4)}, {'0' if s_ == 0 else vr(RS,4)}")
            for r in range(4): g.append(f"v_dot2c_f32_bf16 v{vQ+(r&1)}, v{XF+4*s_+r}, v{XF+4*s_+r}")
        G.append(g)
    if OPT.get("z_nodot"): G = [[i for i in g if "dot2c" not in i] for g in G]
    if OPT.get("z_nom16"): G = [[i for i in g if "16x16x32" not in i] for g in G]
    if OPT.get("z_gram"): G = [[(f"{MFMA} {vr(PK,16)}, {i.split(', ')[1].replace('v','v[') + ':' + str(int(i.split(', ')[1][1:])+3) + ']'}, {i.split(', ')[1].replace('v','v[') + ':' + str(int(i.split(', ')[1][1:])+3) + ']'}, {vr(PK,16)}" if "dot2c" in i else i) for i in g if not ("dot2c" in i and int(i.split(', ')[1][1:]) % 4)] for g in G]
    d8 = dma8()
    s2_, s3_ = sset(2), sset(3)
    G[0].append(s2_[0])
    for k in range(6): G[P2S + k].append(s2_[1 + k])
    G[7].append(s3_[0])
    for k in range(6): G[7 + k].append(s3_[1 + k])
    assert OPT.get("wtg", 12) in (6, 12, 13, 14, 15, 16, 17)
    G[OPT.get("wtg", 12)].append(wt)
    G[12].append(f"s_add_u32 s{sDA}, s{sROWO}, s{sCOL+1};;s_add_u32 s{sMA}, s{sLB0}, {YB}")
    mark = len(e.L)
    early_scalars()
    e(f"s_lshl_b32 s{sT0}, s{sW}, 7"); e(f"s_add_u32 s{sST}, s{sT0}, {RVO}")
    sc = [t.strip() for t in e.L[mark:]]; del e.L[mark:]
    h_ = [";;".join(sc[:12]), ";;".join(sc[12:])] if False else [";;".join(sc)]
    for k in range(4): G[13 + k].append(d8[k])
    G[18].append(h_[0])
    for k in range(4): G[21 + k].append(d8[4 + k])
    G[25].append(auxl("K_AUX")); G[26].extend([] if EPF else [pf1]); G[27].extend([] if EPF else [pf2])
    for g in G: e.ext(g)
    tA, tB, tC = vFR, vFR + 1, vFR + 2
    e(f"v_and_b32 v{tB}, 31, v{vL}")
    e(f"s_lshl_b32 s{sT0}, s{sW}, 8"); e(f"s_add_u32 s{sT0}, s{sT0}, {STAT}")
    e(f"v_add_f32 v{vQ}, v{vQ}, v{vQ+1}")
    e(f"v_mov_b32 v{vQ+1}, v{vQ}")
    e(f"v_lshl_add_u32 v{tA}, v{tB}, 3, s{sT0}")
    e(f"v_lshlrev_b32 v{tC}, 2, v{tB}")
    e(f"v_permlane32_swap_b32 v{vQ}, v{vQ+1}")
    e(f"v_add_f32 v{RS+1}, v{vQ}, v{vQ+1}")
    e(f"ds_write_b64 v{tA}, {vr(RS,2)}")
    e(f"ds_write_b32 v{vCSW}, v{CS}")
    e(f"v_add_u32 v{tB}, {GSY:#x}, v{tC}"); e(f"ds_write_b32 v{tB}, v{AUG+4}")
    e(f"v_xor_b32 v{tA}, 1024, v{tA}")
    for k in range(4): e(f"v_xor_b32 v{vTR+k}, 0x10000, v{vTR+k}")
    e(f"v_xor_b32 v{vCSW}, 1024, v{vCSW}")
    e(f"v_cmp_gt_u32 vcc, 32, v{vL}")
    SRD_ = [f"ds_read_b64 {vr(vS,2)}, v{tA}"]
    a, b = vS, vS + 1
    chain = [f"v_add_f32 v{a}, v{a}, v{RS}", f"v_add_f32 v{b}, v{b}, v{RS+1}",
             f"v_mul_f32 v{a}, {f2u(-1.0/512):#x}, v{a}", f"v_mul_f32 v{b}, {f2u(1.0/512):#x}, v{b}",
             f"v_fma_f32 v{b}, -v{a}, v{a}, v{b}", f"v_cvt_pk_bf16_f32 v{AUG+2}, v{a}, v{a}", f"v_max_f32 v{b}, 0, v{b}",
             f"v_cvt_pk_bf16_f32 v{b}, v{b}, v{b}", f"v_and_b32 v{b}, s{sMASK}, v{b}",
             f"v_add_f32 v{b}, {f2u(1e-5):#x}, v{b}", f"v_cvt_pk_bf16_f32 v{b}, v{b}, v{b}",
             f"v_and_b32 v{b}, s{sMASK}, v{b}", f"v_sqrt_f32 v{b}, v{b}", f"v_cndmask_b32 v{AUG+2}, 0, v{AUG+2}, vcc",
             f"v_cvt_pk_bf16_f32 v{AUG+3}, v{a}, v{b}", f"v_and_b32 v{b}, s{sMASK}, v{AUG+3}", f"v_rcp_f32 v{a}, v{b}",
             f"v_cndmask_b32 v{AUG+3}, 0, v{AUG+3}, vcc"]

    APOLL = f"v_lshlrev_b32 v{vS+4}, 7, v{vL};;s_mov_b64 exec, 3;;buffer_load_dword v{vS+5}, v{vS+4}, {sr(SDBG,4)}, 0 offen sc1;;s_mov_b64 exec, -1"
    def apoll7():
        l2 = L("X")
        e(f"s_cmp_lg_u32 s{sW}, 7"); e(f"s_cbranch_scc1 {l2}")
        e(APOLL)
        e.label(l2)
    def r2_check(n=1):
        l2 = L("X")
        e(f"s_cmp_lg_u32 s{sW}, 7"); e(f"s_cbranch_scc1 {l2}")
        e(f"s_waitcnt vmcnt({n})")
        check([(APOLL, vS + 5, 3, 64)])
        e.label(l2)
    def publish(lev, vt):
        if OPT.get("x_nopub"): return "s_nop 0"
        return (f"v_mov_b32 v{vt}, {lev};;v_lshlrev_b32 v{vDUM}, 2, v{vL};;s_mov_b32 exec_hi, 0;;"
                f"buffer_store_dword v{vt}, v{vDUM}, {sr(SWS,4)}, s{sFLG} offen sc1;;s_mov_b32 exec_hi, -1")
    def midpub(n, lev, vt):
        a_, b_ = L("P"), L("P")
        return f"s_cbranch_vccz {a_};;s_waitcnt vmcnt({n});;s_branch {b_};;{a_}:;;s_waitcnt vmcnt(0);;{b_}:;;" + publish(lev, vt)
    def mgroups(swap=False, pre=(), cq=PK):
        PF = NWB - 1
        G = []
        g0 = [f"ds_read_b128 {vr(cq,4)}, v{vCSR}"] + list(pre)
        for s in range(PF): g0 += wrd(s)
        G.append(g0)
        for s in range(32):
            g = []
            if s + PF < 32: g += wrd(s + PF)
            g.append(f"s_waitcnt lgkmcnt({2 * min(PF, 31 - s)})")
            w, x = vr(WB + 4 * (s % NWB), 4), vr(XF + 4 * s, 4)
            a, b = (x, w) if swap else (w, x)
            d = EACC if s == 31 else ACC
            g.append(f"{MFMA} {vr(d,16)}, {a}, {b}, {'0' if s == 0 else vr(ACC,16)}")
            if s % 4 == 0: g.append(csm(s))
            G.append(g)
        return G
    def aug(bias=None, swap=False, cq=PK):
        l = Lst()
        c, t = cq, cq + 1
        l(f"v_add_f32 v{c}, v{c}, v{c+1}"); l(f"v_add_f32 v{c+2}, v{c+2}, v{c+3}"); l(f"v_add_f32 v{c}, v{c}, v{c+2}")
        l(f"v_cvt_pk_bf16_f32 v{t}, v{c}, v{c}"); l(f"v_and_b32 v{t}, s{sMASK}, v{t}"); l(f"v_sub_f32 v{t}, v{c}, v{t}")
        l(f"v_cvt_pk_bf16_f32 v{AUG}, v{c}, v{t}"); l(f"v_and_b32 v{c}, s{sMASK}, v{AUG}"); l(f"v_sub_f32 v{t}, v{t}, v{c}")
        l(f"v_cvt_pk_bf16_f32 v{AUG+1}, v{t}, {'v%d' % bias if bias is not None else '0'}")
        a, b = (vr(AUG+2,4), vr(AUG,4)) if swap else (vr(AUG,4), vr(AUG+2,4))
        l(f"s_nop 1;;{MFMA} {vr(EACC,16)}, {a}, {b}, {vr(EACC,16)}")
        l.extend(["@MARK", "@PAD", "@PAD", "@PAD", "@NEED 12"])
        return l
    def round_toggle():
        for k in range(4): e(f"v_xor_b32 v{vTR+k}, 0x10000, v{vTR+k}")
        e(f"ds_write_b32 v{vCSW}, v{CS}")
        e(f"v_xor_b32 v{vCSW}, 1024, v{vCSW}"); e(f"v_xor_b32 v{vCSR}, 1024, v{vCSR}")

    FPOLL = f"s_mov_b64 exec, 0xff;;buffer_load_dword v{ND}, v{vPA}, {sr(SWS,4)}, s{sPF} offen sc1;;s_mov_b64 exec, -1"
    def checkt(items, spin=SPIN):
        if OPT.get("x_nochk"): return "s_nop 0"
        top, ok = L("C"), L("C")
        t = [f"s_mov_b32 s{sCNT}, 0", f"{top}:"]
        for k, (pt, reg, msk, thr) in enumerate(items):
            t += [f"s_movk_i32 s{sT1}, {thr}", f"v_cmp_gt_u32 s[62:63], s{sT1}, v{reg}", "s_nop 0"]
            if k == 0: t.append(f"s_and_b32 s{sT0}, s62, {msk:#x}")
            else: t += [f"s_and_b32 s{sT1}, s62, {msk:#x}", f"s_or_b32 s{sT0}, s{sT0}, s{sT1}"]
        t += [f"s_cbranch_scc0 {ok}", "s_sleep 8"]
        t += [pt for (pt, reg, msk, thr) in items]
        t += [f"s_add_u32 s{sCNT}, s{sCNT}, 1", f"s_cmp_lt_u32 s{sCNT}, {spin}", "s_waitcnt vmcnt(0)", f"s_cbranch_scc1 {top}", f"{ok}:"]
        if OPT.get("cnt"): t += [f"s_mul_i32 s91, s91, 10", f"s_min_u32 s{sT0}, s{sCNT}, 9", f"s_add_u32 s91, s91, s{sT0}"]
        return ";;".join(t)
    def check(items): e(checkt(items))
    def sentinel(R, n, vt, reload):
        top, ok = L("V"), L("V")
        t = [f"s_mov_b32 s{sCNT}, 0", f"{top}:", f"v_max_u32 v{vt}, v{R}, v{R+1}"]
        t += [f"v_max3_u32 v{vt}, v{vt}, v{R+k}, v{R+k+1}" for k in range(2, n, 2)]
        t += [f"v_cmp_eq_u32 vcc, -1, v{vt}", "s_nop 0", "s_cmp_eq_u64 vcc, 0", f"s_cbranch_scc1 {ok}", "s_sleep 8", reload,
              f"s_add_u32 s{sCNT}, s{sCNT}, 1", f"s_cmp_lt_u32 s{sCNT}, {SPIN // 8}", "s_waitcnt vmcnt(0)", f"s_cbranch_scc1 {top}", f"{ok}:"]
        if OPT.get("cnt"): t += [f"s_mul_i32 s91, s91, 10", f"s_min_u32 s{sT0}, s{sCNT}, 9", f"s_add_u32 s91, s91, s{sT0}"]
        return ";;".join(t)
    RING, NU, NA = 128, 12, OPT.get("na", 12)
    unit = [i % NU for i in range(36)]
    ASC = "" if OPT.get("x_plain") else "sc1"
    def aload(i):
        R = RING + 8 * unit[i]; t = ""
        ks, b0, b1 = (order[i], sA0, sA1) if i < 28 else (i - 28, sP0, sKV)
        if i % 2 == 0: t = f"s_add_u32 s{sT3}, s{b0}, {2048*ks};;s_add_u32 s{sT4}, s{b1}, {2048*ks};;"
        return [t + f"buffer_load_dwordx4 {vr(R,4)}, v{vF0}, {sr(SWS,4)}, s{sT3} offen offset:{2048*(ks&1)} {ASC}",
                f"buffer_load_dwordx4 {vr(R+4,4)}, v{vF1}, {sr(SWS,4)}, s{sT4} offen offset:{2048*(ks&1)} {ASC}"]
    def tail(E, lev, vt):
        l1 = [guard("s_waitcnt vmcnt(1);;" + checkt([(FPOLL, ND, 0xff, 1)]))]
        for i in range(NA): l1 += [guard(t) for t in aload(i)]
        l2 = []
        for i in range(NE2, NE2 + NW1): l2 += [guard(t) for t in wdma(i)]
        E = list(E)
        h = int(len(E) * 0.5)
        return merge(E[:h], l1) + merge(E[h:], l2, 0.9)

    def l2pf(r, x=0):
        return (f"s_lshr_b32 s{sT0}, s{sIDX}, 3;;s_lshl_b32 s{sT0}, s{sT0}, 2;;s_and_b32 s{sT1}, s{sIDX}, 3;;s_add_u32 s{sT0}, s{sT0}, s{sT1};;s_lshl_b32 s{sT0}, s{sT0}, 3;;"
                f"s_xor_b32 s{sT1}, s{sW}, {x};;s_add_u32 s{sT0}, s{sT0}, s{sT1};;s_lshl_b32 s{sT1}, s2, 4;;s_add_u32 s{sT0}, s{sT0}, s{sT1};;s_and_b32 s{sT0}, s{sT0}, 127;;"
                f"s_mul_i32 s{sT0}, s{sT0}, 14336;;s_add_u32 s{sT0}, s{sT0}, {7168*r};;s_mov_b64 s[92:93], s[96:97];;s_mov_b32 s94, {1792*1024};;s_mov_b32 s95, 0x00020000;;"
                f"v_lshlrev_b32 v{vDUM}, 7, v{vL};;s_bfm_b64 exec, 56, 0;;buffer_load_dword v{vDUM}, v{vDUM}, s[92:95], s{sT0} offen;;s_mov_b64 exec, -1")
    L2 = OPT.get("l2pf", 0)
    e(f"s_cmp_eq_u32 s{sTYPE}, 0")
    e("s_cbranch_scc1 K_QKV")
    vSS, vPB = vAUX + 8, vAUX + 9
    k0 = -2.0 * math.sqrt(2.0 / math.pi) * math.log2(math.e)
    fch = chain + [f"v_mov_b32 v{vSS}, v{vS+1}", f"v_mul_f32 v{vC1}, {f2u(k0):#x}, v{vS}", f"v_mul_f32 v{vC0}, v{vS}, v{vS}",
                   f"v_mul_f32 v{vC0}, v{vC0}, v{vC1}", f"v_mul_f32 v{vC0}, {f2u(0.044715):#x}, v{vC0}"] + [f"v_lshlrev_b32 v{vAUX+i}, 16, v{vAUX+i}" for i in range(4)]
    e("s_waitcnt vmcnt(0) lgkmcnt(0)")
    e("s_barrier")
    st("r0end")
    e(f"s_cmp_lg_u32 s{sW}, 7"); e("s_cbranch_scc1 K_NA")
    e(f"s_and_b32 s{sT0}, s2, 1"); e(f"s_lshl_b32 s{sT0}, s{sT0}, 7")
    e(f"v_mov_b32 v{vDUM}, 1")
    e("s_mov_b64 exec, 1")
    e(f"buffer_atomic_add v{vDUM}, v{AUG+4}, {sr(SDBG,4)}, s{sT0} offen sc1")
    e("s_mov_b64 exec, -1")
    e.label("K_NA")

    def gelu(r):
        l = aug(bias=vAUX + r)
        for half in range(2):
            rng = range(8 * half, 8 * half + 8)
            for i in rng: l(f"v_mul_f32 v{TMP+i}, v{EACC+i}, v{EACC+i}")
            for i in rng: l(f"v_fma_f32 v{TMP+i}, v{TMP+i}, v{vC0}, v{vC1}")
            for i in rng: l(f"v_mul_f32 v{TMP+i}, v{EACC+i}, v{TMP+i}")
            for i in rng: l(f"v_exp_f32 v{TMP+i}, v{TMP+i}")
            for i in rng: l(f"v_fma_f32 v{TMP+i}, v{TMP+i}, v{vSS}, v{vSS}")
            for i in rng: l(f"v_rcp_f32 v{TMP+i}, v{TMP+i}")
            for i in rng: l(f"v_mul_f32 v{TMP+i}, v{EACC+i}, v{TMP+i}")
            for i in range(4): l(f"v_cvt_pk_bf16_f32 v{PK+8+4*half+i}, v{TMP+8*half+2*i}, v{TMP+8*half+2*i+1}")
            l(f"buffer_store_dwordx4 {vr(PK+8+4*half,4)}, v{vFO}, {sr(SWS,4)}, s{sST} offen offset:{2048*half} {STF}")
        return l
    st("f0")
    def stbase(r): e(f"s_lshl_b32 s{sST}, s{sCOL+r}, 6"); e(f"s_add_u32 s{sST}, s{sST}, s{sOUT}")
    def place(fl, items):
        n_ = len(fl)
        for pos, it in sorted(items, key=lambda x: -x[0]): fl.insert(int(n_ * pos / 100), it)
        return fl
    def spread(items, p0, p1): return [(p0 + (p1 - p0) * k / max(1, len(items) - 1), it) for k, it in enumerate(items)]
    stbase(0)
    e(f"s_add_u32 s{sDA}, s{sROWO}, s{sCOL+2}"); e(f"s_mov_b32 s{sMA}, s{sLB0}")
    ea = f"s_cmp_lg_u32 s{sW}, 7;;s_cbranch_scc1 K_FE1;;" + APOLL + ";;K_FE1:"
    fl = place(fch + gelu(0), spread(dma8(), 0, OPT.get("d1", 36)) + (spread(hp, OPT.get("hp0", 44), OPT.get("hp1", 82)) if EPF < 2 else []) + [(85, ea)])
    e.ext(interleave(mgroups(pre=SRD_), fl, 1, 31))
    st("b1")
    round_toggle()
    stbase(1)
    e(f"s_add_u32 s{sDA}, s{sROWO}, s{sAUXO}"); e(f"s_add_u32 s{sMA}, s{sLB0}, {YB}")
    e(f"s_cmp_lg_u32 s{sISC}, 0"); e("s_cselect_b64 vcc, -1, 0")
    e(f"s_waitcnt vmcnt({7 if EPF < 2 else 2}) lgkmcnt(0)")
    r2_check()
    e("s_barrier")
    st("r1end")
    d4 = []
    for i in range(4):
        jg, jl = (f"s{sJG}", "0x7c00") if i == 1 else (f"s{sP16}", "1024")
        d4.append(f"s_mov_b32 m0, s{sMA};;s_add_u32 s{sMA}, s{sMA}, {jl};;buffer_load_dwordx4 v{vDMA}, {sr(SW,4)}, s{sDA} offen lds;;s_add_u32 s{sDA}, s{sDA}, {jg}")
    KR = OPT.get("kr", 3)
    er = [erow(i, vD2) for i in range(NE)]
    mp = f"s_waitcnt vmcnt({4 + KR});;" + publish(1, vPB)
    fl = place(gelu(1), spread(d4 + er[:KR] + [mp] + er[KR:], 0, OPT.get("d2", 50)) + [(OPT.get("epat", 85), guard(FPOLL))])
    MG2 = mgroups()
    if XR:
        MG2[17].append("s_barrier")
        for k in range(4): MG2[18 + 2 * k].append(erow(NE + k, vD2))
    e.ext(interleave(MG2, fl, 1, 31))
    st("b2")
    round_toggle()
    stbase(2)
    e(f"s_waitcnt vmcnt({2 - XR}) lgkmcnt(0)")
    e("s_barrier")
    st("r2end")
    e("s_cbranch_vccz K_FG")
    e(f"s_setprio {OPT.get('tprio', 0)}")
    e(f"ds_read_b128 {vr(PK,4)}, v{vCSR}")
    p2_setup()
    e("s_waitcnt vmcnt(1) lgkmcnt(0)")
    check([(FPOLL, ND, 0xff, 1)])
    pre = []
    for i in range(NA): pre += aload(i)
    for i in range(NE2, NE2 + NW1): pre += wdma(i)
    e.ext(place(gelu(2), spread(pre, 0, OPT.get("tl", 90))))
    e("s_branch K_P2")
    e.label("K_FG")
    e(f"s_lshl_b32 s{sT0}, s{sP}, 14")
    for k in range(4): e(f"v_subrev_u32 v{vTR+k}, s{sT0}, v{vTR+k}")
    e(f"s_setprio {OPT.get('fgprio', 2)}")
    e.ext(interleave(mgroups(), gelu(2), 1, OPT.get("g3", 24)))
    st("b3")
    e(f"v_xor_b32 v{vCSR}, 1024, v{vCSR}")
    stbase(3)
    e(f"ds_write_b32 v{vCSW}, v{CS}")
    e(f"v_mov_b32 v{vS}, {GSY:#x}"); e(f"v_mov_b32 v{vS+1}, 1")
    e("s_waitcnt lgkmcnt(0)")
    e("s_mov_b64 exec, 1"); e(f"ds_add_u32 v{vS}, v{vS+1}"); e("s_mov_b64 exec, -1")
    e.label("K_FSP")
    e(f"ds_read_b32 v{vS+1}, v{vS}")
    e("s_waitcnt lgkmcnt(0)")
    e(f"v_readfirstlane_b32 s{sT0}, v{vS+1}")
    e("s_nop 3")
    e(f"s_cmp_lt_u32 s{sT0}, 4"); e("s_cbranch_scc1 K_FSP")
    e(f"ds_read_b128 {vr(PK,4)}, v{vCSR}")
    e("s_waitcnt lgkmcnt(0)")
    e.ext(gelu(3))
    if OPT.get("spf", 1):
        e("s_setprio 0")
        srd(e, SWO, 98, 99, 512 * 1024)
        e(f"s_lshr_b32 s{sT0}, s{sIDX}, 3"); e(f"s_and_b32 s{sT1}, s{sIDX}, 3"); e(f"s_lshl_b32 s{sT1}, s{sT1}, 2"); e(f"s_add_u32 s{sT1}, s{sT1}, s{sRG}")
        e(f"s_lshl_b32 s{sT1}, s{sT1}, 10"); e(f"s_add_u32 s{sT1}, s{sT1}, {OPT.get('spc', 3)*128}")
        e(f"s_mul_i32 s{sT2}, s{sT0}, {448*1024}"); e(f"s_add_u32 s{sT2}, s{sT2}, s{sT1}")
        e(f"s_lshl_b32 s{sT3}, s{sT0}, 17"); e(f"s_add_u32 s{sT3}, s{sT3}, s{sT1}")
        B_ = OPT.get("spb", 6)
        for k, i in enumerate(range(OPT.get("sp0", 16), 36)):
            for hf in (0, 64):
                if i < 28: e(f"s_buffer_load_dword s{sT4}, {sr(SWE,4)}, s{sT2} offset:{order[i]*16384+hf}")
                else: e(f"s_buffer_load_dword s{sT4}, {sr(SWO,4)}, s{sT3} offset:{(i-28)*16384+hf}")
            if k % B_ == B_ - 1: e("s_waitcnt lgkmcnt(0)")
        e("s_waitcnt lgkmcnt(0)")
    e("s_branch K_GFIN")

    e.label("K_QKV")
    WT = vAUX
    qch = chain + [f"v_mul_f32 v{vC0}, {f2u(math.log2(math.e)):#x}, v{vS}", f"v_add_u32 v{vS+1}, s{sST}, v{tC}", f"ds_write_b32 v{vS+1}, v{vS}"]
    e(f"v_lshrrev_b32 v{vC1}, 5, v{vL}"); e(f"v_lshl_add_u32 v{vC1}, v{vC1}, 4, s{sST}")
    e("s_waitcnt vmcnt(0)")
    e(f"ds_read_b64_tr_b16 {vr(WT+2,2)}, v{vAUX} offset:256"); e(f"ds_read_b64_tr_b16 {vr(WT,2)}, v{vAUX}")
    e("s_waitcnt lgkmcnt(0)")
    e("s_barrier")
    st("r0end")
    def softcore(src):
        l = Lst()
        l(f"s_nop 1;;{MFMA} {vr(TMP,16)}, {vr(WT,4)}, {vr(src+4,4)}, 0;;{MFMA} {vr(EACC,16)}, {vr(WT,4)}, {vr(src,4)}, 0")
        l.extend(["@MARK", "@PAD", "@PAD", "@PAD", "@NEED 11"])
        for (P, EP, out) in ((TMP + 8, TMP, PK + 8), (EACC, EACC + 8, PK)):
            mx, mn = vS, vS + 1
            l(f"v_max3_f32 v{mx}, v{P}, v{P+1}, v{P+2}"); l(f"v_max3_f32 v{mn}, -v{P}, -v{P+1}, -v{P+2}")
            l(f"v_max3_f32 v{mx}, v{mx}, v{P+3}, v{P+4}"); l(f"v_max3_f32 v{mn}, v{mn}, -v{P+3}, -v{P+4}")
            l(f"v_max3_f32 v{mx}, v{mx}, v{P+5}, v{P+6}"); l(f"v_max3_f32 v{mn}, v{mn}, -v{P+5}, -v{P+6}")
            l(f"v_max_f32 v{mx}, v{mx}, v{P+7}"); l(f"v_max_f32_e64 v{mn}, v{mn}, -v{P+7}")
            l.extend(["@MARK", "@NEED 2"]); l(f"v_permlane32_swap_b32 v{mx}, v{mn}")
            l(f"v_max_f32 v{mx}, v{mx}, v{mn}")
            l(f"v_mul_f32_e64 v{mx}, -v{mx}, v{vC0}")
            l(f"v_mov_b32 v{mn}, v{mx}")
            l.extend(["@MARK", "@NEED 2"]); l(f"v_permlane32_swap_b32 v{mx}, v{mn}")
            for j in range(8): l(f"v_fma_f32 v{EP+j}, v{P+j}, v{vC0}, v{mx}")
            for j in range(8): l(f"v_fma_f32 v{P+j}, -v{P+j}, v{vC0}, v{mn}")
            for j in range(8): l(f"v_exp_f32 v{EP+j}, v{EP+j}")
            for j in range(8): l(f"v_exp_f32 v{P+j}, v{P+j}")
            s0, s1, s2, s3 = vS + 2, vS + 3, vS + 4, vS + 5
            l(f"v_add_f32 v{s0}, v{EP}, v{EP+1}"); l(f"v_add_f32 v{s1}, v{P}, v{P+1}")
            l(f"v_add_f32 v{s2}, v{EP+2}, v{EP+3}"); l(f"v_add_f32 v{s3}, v{P+2}, v{P+3}")
            for j in (4, 6):
                l(f"v_add_f32 v{s0}, v{s0}, v{EP+j}"); l(f"v_add_f32 v{s1}, v{s1}, v{P+j}")
                l(f"v_add_f32 v{s2}, v{s2}, v{EP+j+1}"); l(f"v_add_f32 v{s3}, v{s3}, v{P+j+1}")
            l(f"v_add_f32 v{s0}, v{s0}, v{s2}"); l(f"v_add_f32 v{s1}, v{s1}, v{s3}")
            l.extend(["@MARK", "@NEED 2"]); l(f"v_permlane32_swap_b32 v{s0}, v{s1}")
            l(f"v_add_f32 v{s0}, v{s0}, v{s1}")
            l(f"v_rcp_f32 v{s0}, v{s0}")
            l.extend(["@MARK", "@NEED 1"]); l(f"v_mov_b32 v{s1}, v{s0}")
            l.extend(["@MARK", "@NEED 2"]); l(f"v_permlane32_swap_b32 v{s0}, v{s1}")
            for j in range(8): l(f"v_mul_f32 v{EP+j}, v{EP+j}, v{s0}")
            for j in range(8): l(f"v_mul_f32 v{P+j}, v{P+j}, v{s1}")
            for j in range(4): l(f"v_cvt_pk_bf16_f32 v{out+j}, v{EP+2*j}, v{EP+2*j+1}")
            for j in range(4): l(f"v_cvt_pk_bf16_f32 v{out+4+j}, v{P+2*j}, v{P+2*j+1}")
        return l
    def kepi():
        l = aug()
        for i in range(8): l(f"v_cvt_pk_bf16_f32 v{PK+i}, v{EACC+2*i}, v{EACC+2*i+1}")
        l += softcore(PK)
        TD = (EACC, TMP)
        for a in (1, 0):
            l(f"s_nop 1;;{MFMA} {vr(TD[a],16)}, {vr(PK+8*a,4)}, {vr(SPm,4)}, 0;;{MFMA} {vr(TD[a],16)}, {vr(PK+8*a+4,4)}, {vr(SMm,4)}, {vr(TD[a],16)}")
        l(f"s_lshl_b32 s{sT0}, s{sP}, 10;;s_lshl_b32 s{sT1}, s{sRG}, 2;;s_add_u32 s{sT0}, s{sT0}, s{sT1};;s_add_u32 s{sT0}, s{sT0}, {ZSC};;v_and_b32 v{vS}, 0x1f0, v{vL16};;v_add_u32 v{vS}, s{sT0}, v{vS}")
        l.extend(["@MARK", "@PAD", "@NEED 4"])
        for a in (1, 0):
            for j in range(8): l(f"v_cvt_pk_bf16_f32 v{PK+8*a+j}, v{TD[a]+2*j}, v{TD[a]+2*j+1}")
        for a in (1, 0):
            l(f"s_nop 1;;{M16} {vr(TMP+4*a,4)}, {vr(SELC,4)}, {vr(PK+8*a,4)}, 0;;{M16} {vr(TMP+4*a,4)}, {vr(SELC,4)}, {vr(PK+8*a+4,4)}, {vr(TMP+4*a,4)}")
        l.extend(["@MARK", "@PAD", "@PAD", "@NEED 8"])
        for a in range(2): l(f"ds_write_b32 v{vS}, v{TMP+4*a} offset:{512*a}")
        return l
    CQ, VBQ = vAUX + 8, vAUX + 4
    def vepi():
        l = aug(swap=True, cq=CQ)
        for i in range(16): l(f"v_mul_f32 v{EACC+i}, v{EACC+i}, v{TMP+i}")
        for i in range(8): l(f"v_cvt_pk_bf16_f32 v{VBQ+i}, v{EACC+2*i}, v{EACC+2*i+1}")
        for i in range(8): l(f"v_cndmask_b32 v{TMP+i}, 0, v{VBQ+i}, {sr(sLT16,2)}")
        l(f"s_nop 1;;{MFMA} {vr(EACC,16)}, {vr(PK,4)}, {vr(TMP,4)}, 0;;{MFMA} {vr(EACC,16)}, {vr(PK+4,4)}, {vr(TMP+4,4)}, {vr(EACC,16)}")
        for i in range(8): l(f"v_cndmask_b32 v{TMP+8+i}, v{VBQ+i}, 0, {sr(sLT16,2)}")
        l(f"s_nop 1;;{MFMA} {vr(EACC,16)}, {vr(PK+8,4)}, {vr(TMP+8,4)}, {vr(EACC,16)};;{MFMA} {vr(EACC,16)}, {vr(PK+12,4)}, {vr(TMP+12,4)}, {vr(EACC,16)}")
        l.extend(["@MARK", "@PAD", "@PAD", "@PAD", "@NEED 12"])
        for q in range(4): l(f"ds_write_b128 v{vS+1}, {vr(EACC+4*q,4)} offset:{1024*q}")
        return l
    e(f"s_add_u32 s{sDA}, s{sROWO}, s{sCOL+2}"); e(f"s_mov_b32 s{sMA}, s{sLB0}")
    tch = (f"s_cmp_ge_u32 s{sW}, 4;;s_cbranch_scc1 K_NT;;s_lshl_b32 s{sT2}, s{sRB}, 3;;s_add_u32 s{sT2}, s{sT2}, s{sC};;s_lshl_b32 s{sT2}, s{sT2}, 1;;"
           f"s_and_b32 s{sT0}, s{sW}, 1;;s_add_u32 s{sT2}, s{sT2}, s{sT0};;s_cmp_lt_u32 s{sW}, 2;;s_cselect_b64 {sr(SAUX,2)}, s[96:97], s[98:99];;"
           f"s_mov_b32 s{sT0}, {1792*1024};;s_cselect_b32 s{SAUX+2}, s{sT0}, {512*1024};;s_movk_i32 s{sT0}, 7168;;s_cselect_b32 s{sT0}, s{sT0}, 2048;;"
           f"s_cselect_b32 s{sT1}, 56, 16;;s_mul_i32 s{sT0}, s{sT0}, s{sT2};;v_lshlrev_b32 v{vDUM}, 7, v{vL};;s_bfm_b64 exec, s{sT1}, 0;;"
           f"buffer_load_dword v{vDUM}, v{vDUM}, {sr(SAUX,4)}, s{sT0} offen;;s_mov_b64 exec, -1;;K_NT:")
    flq = merge(qch + kepi(), dma8() + [tch], 0.35)
    if L2 in (1, 3, 4, 5): flq.insert(int(len(flq) * OPT.get("l2at", 60) / 100), l2pf(0))
    if L2 == 2:
        flq.insert(int(len(flq) * 0.62), l2pf(1)); flq.insert(int(len(flq) * 0.45), l2pf(0))
    QAP = APOLL.replace(f"v{vS+4}", f"v{vDUM}").replace(f"v{vS+5}", f"v{vDMA}")
    flq.insert(int(len(flq) * OPT.get("qap", 70) / 100), f"s_cmp_lg_u32 s{sW}, 7;;s_cbranch_scc1 K_QAP;;" + QAP + ";;K_QAP:")
    e.ext(interleave(mgroups(swap=True, pre=SRD_), flq, 1, 31))
    st("b1")
    round_toggle()
    e(f"s_lshl_b32 s{sT0}, s{sP}, 15"); e(f"s_lshl_b32 s{sT1}, s{sRG}, 12"); e(f"s_add_u32 s{sT0}, s{sT0}, s{sT1}"); e(f"s_add_u32 s{sT0}, s{sT0}, {YB}")
    e(f"v_add_u32 v{vS+1}, s{sT0}, v{vL16}")
    e(f"s_waitcnt vmcnt(0) lgkmcnt(0)")
    e(f"v_mov_b32 v{vS+5}, v{vDMA}")
    r2_check(0)
    dmalane(vDMA, vS + 2, vS + 3)
    poll_addr()
    e(f"s_lshl_b32 s{sT0}, s{sP}, 15"); e(f"s_lshl_b32 s{sT1}, s{sRG}, 10"); e(f"s_add_u32 s{sT0}, s{sT0}, s{sT1}"); e(f"s_add_u32 s{sT0}, s{sT0}, {YB}")
    e(f"v_add_u32 v{vS+4}, s{sT0}, v{vL16}")
    e(f"s_and_b32 s{sT2}, s{sRG}, 1"); e(f"s_lshl_b32 s{sT0}, s{sP}, 1"); e(f"s_add_u32 s{sT2}, s{sT2}, s{sT0}")
    e(f"s_lshl_b32 s{sT0}, s{sT2}, 9"); e(f"s_add_u32 s{sT0}, s{sT0}, {ZSC}")
    e(f"v_and_b32 v{vS}, 0x1f0, v{vL16}"); e(f"v_add_u32 v{vS}, s{sT0}, v{vS}")
    e(f"s_lshl_b32 s{sOUT}, s{sRB}, 17"); e(f"s_lshl_b32 s{sT0}, s{sC}, 14"); e(f"s_add_u32 s{sOUT}, s{sOUT}, s{sT0}"); e(f"s_add_u32 s{sOUT}, s{sOUT}, {KVP_OFF}")
    e(f"s_lshl_b32 s{sT2}, s{sT2}, 7"); e(f"s_add_u32 s{sT2}, s{sT2}, s{sOUT}"); e(f"s_add_u32 s{sT2}, s{sT2}, 8192")
    e(f"s_lshl_b32 s{sT0}, s{sW}, 10"); e(f"s_add_u32 s{sOUT}, s{sOUT}, s{sT0}")
    e(f"s_cmp_lg_u32 s{sISC}, 0"); e("s_cselect_b64 vcc, -1, 0")
    e("s_barrier")
    st("r1end")
    MG = mgroups(pre=[f"ds_read_b128 {vr(TMP+4*q,4)}, v{vC1} offset:{32*q}" for q in range(4)], cq=CQ)
    QP, QC = OPT.get("qp", 30), OPT.get("qc", 24)
    if L2 == 1: MG[1].append(l2pf(1))
    VS = OPT.get("vs", 9)
    RW = OPT.get("rw", 1)
    for i in range(NE): MG[(VS + 8 + i) if RW == 0 else (1 + i)].append(erow(i, vDMA))
    if XR:
        MG[17].append("s_barrier")
        for k in range(4): MG[18 + k].append(erow(NE + k, vDMA))
    MG[QP].append(f"s_waitcnt vmcnt({0 if XR else RW})")
    MG[QP].append(guard(FPOLL))
    if L2 == 3: MG[QP].append("s_cbranch_vccnz K_QL2;;" + l2pf(1) + ";;" + l2pf(1, 4) + ";;K_QL2:")
    if OPT.get("gs", 0):
        VD = OPT.get("vd", 4)
        sig = (f"s_lshl_b32 s{sT0}, s{sP}, 2;;s_add_u32 s{sT0}, s{sT0}, {GSY+64};;v_mov_b32 v{vS+1}, s{sT0};;v_mov_b32 v{vS+5}, 1;;"
               f"s_mov_b64 exec, 1;;ds_add_u32 v{vS+1}, v{vS+5};;s_mov_b64 exec, -1")
        e.ext(interleave(MG[:VS+1-VD], vepi() + [sig], 1, VS - VD))
        for g in MG[VS+1-VD:VS+1]: e.ext(g)
        e.label("K_QSP")
        e(f"ds_read_b32 v{vS+5}, v{vS+1}"); e("s_waitcnt lgkmcnt(0)")
        e(f"v_readfirstlane_b32 s{sT0}, v{vS+5}"); e("s_nop 3")
        e(f"s_cmp_lt_u32 s{sT0}, 4"); e("s_cbranch_scc1 K_QSP")
    else:
        e.ext(interleave(MG[:VS+1], vepi(), 1, VS))
        e("s_waitcnt lgkmcnt(0)"); e("s_barrier")
    st("m2b")
    for w in range(4): e(f"ds_read_b128 {vr(TMP+4*w,4)}, v{vS+4} offset:{4096*w}")
    e(f"ds_read_b128 {vr(PK,4)}, v{vS}")
    e(f"v_lshlrev_b32 v{vS+4}, 2, v{vL}")
    kr = Lst()
    for j in range(4): kr(f"v_add_f32 v{TMP+j}, v{TMP+j}, v{TMP+4+j}")
    for j in range(4): kr(f"v_add_f32 v{TMP+8+j}, v{TMP+8+j}, v{TMP+12+j}")
    for j in range(4): kr(f"v_add_f32 v{TMP+j}, v{TMP+j}, v{TMP+8+j}")
    kr(f"buffer_store_dwordx4 {vr(TMP,4)}, v{vL16}, {sr(SWS,4)}, s{sOUT} offen sc1")
    kr(f"v_add_f32 v{PK}, v{PK}, v{PK+1}"); kr(f"v_add_f32 v{PK+2}, v{PK+2}, v{PK+3}"); kr(f"v_add_f32 v{PK}, v{PK}, v{PK+2}")
    kr(f"s_cmp_ge_u32 s{sRG}, 2;;s_cbranch_scc1 K_QNZ;;s_mov_b32 exec_hi, 0;;buffer_store_dword v{PK}, v{vS+4}, {sr(SWS,4)}, s{sT2} offen sc1;;s_mov_b32 exec_hi, -1;;K_QNZ:")
    RED, sU, sRED = 128, sA0, sST
    vRS, vRS2, vRD, vRT = vAUX + 4, vAUX + 5, vAUX + 6, vAUX + 8
    mark = len(e.L)
    e(f"s_lshl_b32 s{sRED}, s{sISC}, 2"); e(f"s_add_u32 s{sRED}, s{sRED}, s{sRG}")
    e(f"s_cmp_ge_u32 s{sRED}, 2"); e("s_cbranch_scc1 K_QRA")
    e(f"s_lshl_b32 s{sU}, s{sC}, 4"); e(f"s_add_u32 s{sU}, s{sU}, s{sRB}"); e(f"s_lshl_b32 s{sU}, s{sU}, 1"); e(f"s_add_u32 s{sU}, s{sU}, s{sRG}")
    e(f"v_lshrrev_b32 v{vRT}, 4, v{vL}"); e(f"v_and_b32 v{vRT+1}, 15, v{vL}"); e(f"v_lshlrev_b32 v{vRT+1}, 4, v{vRT+1}")
    e(f"v_lshl_add_u32 v{vRD}, v{vRT}, 2, v{vRT+1}")
    e(f"s_lshl_b32 s{sPF}, s{sC}, 14"); e(f"s_add_u32 s{sPF}, s{sPF}, {KVP_OFF}")
    e(f"s_cmp_eq_u32 s{sRG}, 0"); e("s_cbranch_scc0 K_GZA")
    e(f"s_and_b32 s{sT0}, s{sRB}, 8"); e(f"s_lshl_b32 s{sT0}, s{sT0}, 9"); e(f"s_add_u32 s{sPF}, s{sPF}, s{sT0}")
    e(f"s_and_b32 s{sT0}, s{sRB}, 2"); e(f"s_lshl_b32 s{sT0}, s{sT0}, 10"); e(f"s_add_u32 s{sPF}, s{sPF}, s{sT0}")
    e(f"s_and_b32 s{sT0}, s{sRB}, 1"); e(f"s_lshl_b32 s{sT0}, s{sT0}, 9"); e(f"s_add_u32 s{sPF}, s{sPF}, s{sT0}")
    e(f"s_and_b32 s{sT0}, s{sRB}, 4"); e(f"s_lshl_b32 s{sT0}, s{sT0}, 6"); e(f"s_add_u32 s{sPF}, s{sPF}, s{sT0}")
    e(f"v_lshl_add_u32 v{vRS}, v{vRT}, 17, v{vRT+1}"); e(f"v_add_u32 v{vRS2}, 1024, v{vRS}")
    e("s_branch K_GZB")
    e.label("K_GZA")
    e(f"s_lshr_b32 s{sT0}, s{sRB}, 1"); e(f"s_lshl_b32 s{sT0}, s{sT0}, 6"); e(f"s_add_u32 s{sPF}, s{sPF}, s{sT0}")
    e(f"s_and_b32 s{sT0}, s{sRB}, 1"); e(f"s_lshl_b32 s{sT0}, s{sT0}, 4"); e(f"s_add_u32 s{sPF}, s{sPF}, s{sT0}"); e(f"s_add_u32 s{sPF}, s{sPF}, 8192")
    e(f"v_lshlrev_b32 v{vRS}, 17, v{vRT}"); e(f"v_add_u32 v{vRS2}, 32, v{vRS}")
    e.label("K_GZB")
    RLOAD = f"s_mov_b32 s{sT0}, s{sPF}"
    for u in range(4):
        RLOAD += f";;buffer_load_dwordx4 {vr(RED+8*u,4)}, v{vRS}, {sr(SWS,4)}, s{sT0} offen sc1;;buffer_load_dwordx4 {vr(RED+8*u+4,4)}, v{vRS2}, {sr(SWS,4)}, s{sT0} offen sc1"
        if u < 3: RLOAD += f";;s_add_u32 s{sT0}, s{sT0}, {4*131072}"
    e.label("K_QRA")
    ra = ";;".join(t.strip() for t in e.L[mark:]); del e.L[mark:]
    MG[VS + 10].append(ra)
    rli = f"s_cmp_ge_u32 s{sRED}, 2;;s_cbranch_scc1 K_QRL;;" + RLOAD + ";;K_QRL:"
    if OPT.get("rl", 31) <= 32: MG[OPT.get("rl", 31)].append(rli)
    e.ext(interleave(MG[VS+1:], kr, 4, 6))
    st("b2")
    round_toggle()
    e("s_waitcnt lgkmcnt(0)")
    e("s_barrier")
    st("r2end")
    e(f"ds_read_b128 {vr(PK,4)}, v{vCSR}")
    if OPT.get("rl", 31) > 32: e(rli)
    p2_setup()
    PARK = 0xC000
    e(f"s_mul_i32 s{sT0}, s{sRG}, 3072"); e(f"s_add_u32 s{sT0}, s{sT0}, {PARK}")
    e(f"v_add_u32 v{vS+1}, s{sT0}, v{vL16}")
    e(f"s_lshl_b32 s{sT0}, s{sRG}, 2"); e(f"s_add_u32 s{sT0}, s{sT0}, {GSY+32}"); e(f"v_mov_b32 v{vS+4}, s{sT0}")
    e("s_waitcnt lgkmcnt(0)")
    lq = aug()
    lq += [f"v_cvt_pk_bf16_f32 v{PK+8+i}, v{EACC+2*i}, v{EACC+2*i+1}" for i in range(8)]
    e("s_cbranch_vccz K_QG")
    lq2 = lq + [f"ds_write_b128 v{vS+1}, {vr(PK+8,4)}", f"ds_write_b128 v{vS+1}, {vr(PK+12,4)} offset:1024", f"ds_write_b128 v{vS+1}, {vr(WT,4)} offset:2048"]
    lq2 += [f"v_mov_b32 v{vS+5}, 1;;s_waitcnt lgkmcnt(0);;ds_write_b32 v{vS+4}, v{vS+5}"]
    e("s_waitcnt vmcnt(0)"); check([(FPOLL, ND, 0xff, 1)])
    a16 = []
    for i in range(NA): a16 += aload(i)
    e.ext(merge(lq2, a16[:8])); e.ext(a16[8:])
    for i in range(NE2, NE2 + NW1): e.ext(wdma(i))
    e("s_branch K_P2")

    e.label("K_QG")
    QBc, PHS, KVR = 168, 192, 208
    vSL = 112
    sGI = sA1
    e(f"s_setprio {OPT.get('gprio', 2)}")
    e(f"v_mov_b32 v{vSL}, v{vS+1}"); e(f"v_mov_b32 v{vSL+2}, v{vS+4}")
    def ldspin(lbl, areg, n):
        e.label(lbl)
        e(f"ds_read_b32 v{vS+5}, v{areg}"); e("s_waitcnt lgkmcnt(0)")
        e(f"v_readfirstlane_b32 s{sT0}, v{vS+5}"); e("s_nop 3")
        e(f"s_cmp_lt_u32 s{sT0}, {n}"); e(f"s_cbranch_scc1 {lbl}")
    e.ext(aug())
    for i in range(8): e(f"v_cvt_pk_bf16_f32 v{QBc+i}, v{EACC+2*i}, v{EACC+2*i+1}")
    vG, vG1, vG2 = 96, 97, 98
    e(f"v_mov_b32 v{vG}, {GSY:#x}"); e(f"v_mov_b32 v{vG1}, 1")
    red = []; st("ra", red); red += ["s_waitcnt vmcnt(0)", sentinel(RED, 32, vG2, RLOAD)]; st("rb", red)
    red += [ f"s_lshl_b32 s{sT0}, s{sU}, 8", f"s_add_u32 s{sT0}, s{sT0}, {KVZ_OFF}"]
    for stp in (16, 8): red += [f"v_add_f32 v{RED+j}, v{RED+j}, v{RED+stp+j}" for j in range(stp)]
    red += ["s_nop 1"] + [f"v_permlane32_swap_b32 v{RED+k}, v{RED+k+4}" for k in range(4)] + [f"v_add_f32 v{RED+k}, v{RED+k}, v{RED+k+4}" for k in range(4)]
    red += ["s_nop 1"] + [f"v_permlane16_swap_b32 v{RED+k}, v{RED+k+2}" for k in range(2)] + [f"v_add_f32 v{RED+k}, v{RED+k}, v{RED+k+2}" for k in range(2)]
    red += [f"v_cvt_pk_bf16_f32 v{RED}, v{RED}, v{RED+1}", f"buffer_store_dword v{RED}, v{vRD}, {sr(SWS,4)}, s{sT0} offen sc1",
            "s_mov_b64 exec, 1", f"ds_add_u32 v{vG}, v{vG1}", "s_mov_b64 exec, -1"]
    e(f"s_and_b32 s{sT0}, s{sRG}, 1"); e(f"s_lshl_b32 s{sT3}, s{sT0}, 12"); e(f"s_xor_b32 s{sT0}, s{sT0}, s{sP}"); e(f"s_lshl_b32 s{sT0}, s{sT0}, 12")
    e(f"s_lshl_b32 s{sT2}, s{sC}, 13"); e(f"s_add_u32 s{sT2}, s{sT2}, s{sT0}"); e(f"s_add_u32 s{sT2}, s{sT2}, {KVZ_OFF}")
    ZLOAD = ";;".join(f"buffer_load_dwordx4 {vr(KVR+4*k,4)}, v{vL16}, {sr(SWS,4)}, s{sT2} offen offset:{1024*k} sc1" for k in range(4))
    g1, g2 = L("R"), L("R")
    mid = f"s_add_u32 s{sT0}, s{sRG}, s{sGI};;s_cmp_ge_u32 s{sT0}, 2;;s_cbranch_scc1 {g1};;" + ";;".join(red) + f";;{g1}:"
    mid2 = f"s_add_u32 s{sT0}, s{sRG}, s{sGI};;s_cmp_lt_u32 s{sT0}, 4;;s_cbranch_scc1 {g2};;" + ZLOAD + f";;{g2}:"
    e(f"s_mov_b32 s{sGI}, 0")
    e.label("K_GQ")
    sq = softcore(QBc)
    n0 = len(sq)
    for pos, it in sorted(((OPT.get("gmid", 25), mid), (OPT.get("gmid2", 45), mid2)), reverse=True): sq.insert(int(n0 * pos / 100), it)
    e.ext(sq)
    e(f"s_cmp_lg_u32 s{sGI}, 0"); e("s_cbranch_scc1 K_GQD")
    st("gk")
    ldspin("K_GQS", vSL + 2, 1)
    e(f"ds_read_b128 {vr(WT,4)}, v{vSL} offset:2048")
    e(f"ds_read_b128 {vr(QBc,4)}, v{vSL}"); e(f"ds_read_b128 {vr(QBc+4,4)}, v{vSL} offset:1024")
    for j in range(16): e(f"v_mov_b32 v{PHS+j}, v{PK+j}")
    e(f"s_mov_b32 s{sGI}, 2")
    ldspin("K_GOS", vG, 2)
    e("s_branch K_GQ")
    e.label("K_GQD")
    st("gq")
    e(f"v_add_u32 v{vS+3}, {YB:#x}, v{vL16}")
    e(f"s_cmp_lt_u32 s{sRG}, 2"); e("s_cbranch_scc1 K_GZS")
    e(f"v_add_u32 v{vS+2}, s{sT3}, v{vS+3}")
    e("s_waitcnt vmcnt(0)")
    e(sentinel(KVR, 16, vS + 4, ZLOAD))
    st("gr")
    for k in range(4): e(f"ds_write_b128 v{vS+2}, {vr(KVR+4*k,4)} offset:{1024*k}")
    e("s_waitcnt lgkmcnt(0)")
    e("s_mov_b64 exec, 1"); e(f"ds_add_u32 v{vG}, v{vG1}"); e("s_mov_b64 exec, -1")
    ldspin("K_GZS", vG, 4)
    for k in range(8): e(f"ds_read_b128 {vr(KVR+4*k,4)}, v{vS+3} offset:{1024*k}")
    st("gv")
    e(f"s_lshl_b32 s{sT2}, s{sRT}, 16"); e(f"s_lshl_b32 s{sT0}, s{sC}, 13"); e(f"s_add_u32 s{sT2}, s{sT2}, s{sT0}")
    e(f"s_lshl_b32 s{sT0}, s{sP}, 12"); e(f"s_add_u32 s{sT2}, s{sT2}, s{sT0}"); e(f"s_add_u32 s{sT2}, s{sT2}, {PQ_OFF}")
    e(f"s_xor_b32 s{sT3}, s{sT2}, 4096")
    fragoff(vFO, sRT)
    e("s_waitcnt lgkmcnt(0)")
    NDG = (64, 80, 128, 144)
    for hd in range(4):
        ph = (PHS if hd < 2 else PK) + 8 * (hd & 1); d = vr(NDG[hd], 16)
        e(f"{MFMA} {d}, {vr(KVR+8*hd,4)}, {vr(ph,4)}, 0"); e(f"{MFMA} {d}, {vr(KVR+8*hd+4,4)}, {vr(ph+4,4)}, {d}")
    e("s_nop 5")
    for hd in range(4):
        d = NDG[hd]
        e(f"v_add_f32 v{vS}, {f2u(1e-6):#x}, v{d+8}"); e(f"v_rcp_f32 v{vS}, v{vS}"); e("s_nop 0")
        for j in range(8): e(f"v_mul_f32 v{d+j}, v{d+j}, v{vS}")
        for j in range(4): e(f"v_cvt_pk_bf16_f32 v{TMP+4*hd+j}, v{d+2*j}, v{d+2*j+1}")
        e(f"buffer_store_dwordx4 {vr(TMP+4*hd,4)}, v{vFO}, {sr(SWS,4)}, s{sT2 if hd < 2 else sT3} offen offset:{2048*(hd&1)} sc1")
    e("s_branch K_GFIN")

    e.label("K_P2")
    if not OPT.get("keepprio"): e(f"s_setprio {OPT.get('cprio', 0)}")
    st("p2start")
    if OPT.get("trace"): e(f"v_mov_b32 v240, 0;;s_memtime s[84:85];;s_waitcnt lgkmcnt(0);;s_sub_u32 s84, s84, s78;;v_writelane_b32 v240, s84, 0")
    vS2, vXB, vX, vB, OP = 224, 16, 32, 40, 32
    ACC2, WB2 = 48, 112
    SO, SB2 = 64, 68
    XBASE, vFW, vFR2, vT3 = 0, 24, 25, 232
    def fin_loads():
        e("s_load_dwordx4 s[72:75], s[0:1], 64")
        e(f"s_lshr_b32 s{sT1}, s{sC}, 2"); e(f"s_lshl_b32 s{sT2}, s{sRB}, 1"); e(f"s_add_u32 s{sT2}, s{sT2}, s{sT1}")
        cbcalc()
        e(f"s_lshl_b32 s{sXO2}, s{sRG}, 1"); e(f"s_add_u32 s{sXO2}, s{sXO2}, s{sISC}")
        e(f"s_lshl_b32 s{sXO}, s{sT2}, 16"); e(f"s_add_u32 s{sXO}, s{sXO}, s{sT1}"); e(f"s_lshl_b32 s{sT0}, s{sXO2}, 13"); e(f"s_add_u32 s{sXO}, s{sXO}, s{sT0}")
        e(f"buffer_load_dwordx4 {vr(vX,4)}, v{vXO}, {sr(SX,4)}, s{sXO} offen")
        e(f"v_and_b32 v{vS2+5}, 0x70, v{vL16}")
        e("s_waitcnt lgkmcnt(0)")
        srd(e, SB2, 72, 73, 1024)
        srd(e, SO, 74, 75, 2048 * 1024)
        e(f"buffer_load_dwordx4 {vr(vB,4)}, v{vS2+5}, {sr(SB2,4)}, s{sT1} offen")
    def fin_prep():
        vS2 = 26
        for k in range(4):
            d = vXB + 2 * k
            e(f"v_lshlrev_b32 v{vS2}, 16, v{vB+k}"); e(f"v_and_b32 v{vS2+1}, s{sMASK}, v{vB+k}")
            e(f"v_lshlrev_b32 v{d}, 16, v{vX+k}"); e(f"v_and_b32 v{d+1}, s{sMASK}, v{vX+k}")
            e(f"v_add_f32 v{d}, v{d}, v{vS2}"); e(f"v_add_f32 v{d+1}, v{d+1}, v{vS2+1}")
        e(f"v_lshrrev_b32 v{vFR2}, 3, v{vL}"); e(f"v_mul_u32_u24 v{vFR2}, 272, v{vFR2}")
        e(f"v_and_b32 v{vS2}, 7, v{vL}"); e(f"v_lshl_add_u32 v{vFR2}, v{vS2}, 5, v{vFR2}")
        e(f"s_mul_i32 s{sT2}, s{sXO2}, {8*272}"); e(f"s_add_u32 s{sT2}, s{sT2}, {XBASE}")
        e(f"v_add_u32 v{vFR2}, s{sT2}, v{vFR2}")
    LA = OPT.get("la", 5)
    nun = [1] * 36
    ops = [i for i in range(NA) for _ in range(2)] + [i for i in range(NE2, NE2 + NW1) for _ in range(2)]
    NPRE = len(ops)
    state = dict(na=NA, nw=NE2 + NW1, done=-1)
    FIRST = {}
    QPOLL = f"s_sub_u32 s{sT0}, s{sPF}, {128*1024};;s_mov_b64 exec, 0xff;;buffer_load_dword v{ND}, v{vPA}, {sr(SWS,4)}, s{sT0} offen sc1;;s_mov_b64 exec, -1"
    def tagwait(tag):
        last = max(i for i, o in enumerate(ops) if o == tag)
        e(f"s_waitcnt vmcnt({min(63, len(ops) - 1 - last)})")
    def issue_a(i):
        R = RING + 8 * unit[i]
        if i in FIRST and not OPT.get("x_nopoll"):
            st(f"cb{i}"); tagwait(f"p{i}"); check([(FPOLL, ND, 0xff, FIRST[i])]); st(f"ca{i}")
        e.ext(aload(i)); ops.extend([i] * 2)
        PL = OPT.get("pl", 3)
        if i + PL in FIRST and not OPT.get("x_nopoll"): e(FPOLL); ops.append(f"p{i+PL}")
    def pump(which=3):
        n = 0
        while state["na"] < 36 and which & 1:
            i = state["na"]
            us = set(range(unit[i], unit[i] + nun[i]))
            if any(us & set(range(unit[q], unit[q] + nun[q])) for q in range(state["done"] + 1, i)): break
            if i - state["done"] > (OPT.get("la1", 7) if i < 16 else LA if i < 28 else OPT.get("la2", 5)): break
            issue_a(i); state["na"] += 1; n += 1
        while state["nw"] < 36 and which & 2 and state["nw"] - state["done"] <= OPT.get("lw", 13):
            e.ext(wdma(state["nw"])); ops.extend([state["nw"]] * 2); state["nw"] += 1; n += 1
        return n
    for fi in FIRST:
        if NA <= fi < NA + OPT.get("pl", 3) and not OPT.get("x_nopoll"): e(FPOLL); ops.append(f"p{fi}")
    pump()
    fin_loads()
    ops.extend(["x"] * 2)
    e(f"s_lshl_b32 s{sP0}, s{sT2}, 17"); e(f"s_lshl_b32 s{sT0}, s{sRG}, 14"); e(f"s_add_u32 s{sP0}, s{sP0}, s{sT0}"); e(f"s_add_u32 s{sP0}, s{sP0}, {PQ_OFF}")
    e(f"s_add_u32 s{sKV}, s{sP0}, 65536")
    e(f"v_bfe_u32 v{vS2+6}, v{vL}, 2, 2"); e(f"v_lshrrev_b32 v{vS2+4}, 5, v{vL}"); e(f"v_bfe_u32 v{vS2+3}, v{vL}, 4, 1")
    e(f"v_lshl_add_u32 v{vS2+7}, v{vS2+4}, 2, v{vS2+6}"); e(f"v_lshlrev_b32 v{vTR0}, 7, v{vS2+7}")
    e(f"v_lshl_add_u32 v{vTR0}, v{vS2+3}, 5, v{vTR0}")
    e(f"v_and_b32 v{vS2+7}, 3, v{vL}"); e(f"v_lshl_add_u32 v{vTR0}, v{vS2+7}, 3, v{vTR0}")
    e(f"v_lshrrev_b32 v{vS2+6}, 1, v{vS2+6}"); e(f"v_lshl_add_u32 v{vTR0}, v{vS2+6}, 6, v{vTR0}")
    e(f"v_add_u32 v{vTR0}, s{sLB}, v{vTR0}")
    e(f"v_xor_b32 v{vTR1}, 64, v{vTR0}")
    for k in range(3):
        e(f"v_add_u32 v{vT3+2*k}, {0x10000*k:#x}, v{vTR0}"); e(f"v_add_u32 v{vT3+2*k+1}, {0x10000*k:#x}, v{vTR1}")
    def wbuf(i): return WB2 + 8 * (i & 1) if i < 34 or OPT.get("nt", 2) == 2 else 240 + 8 * (i & 1)
    def wreads(i):
        off = ROW[i % NL] & 0xffff; b = wbuf(i)
        vTR0 = vT3 + 2 * (ROW[i % NL] >> 16); vTR1 = vTR0 + 1
        e(f"ds_read_b64_tr_b16 {vr(b,2)}, v{vTR0} offset:{off}")
        e(f"ds_read_b64_tr_b16 {vr(b+2,2)}, v{vTR0} offset:{off+1024}")
        e(f"ds_read_b64_tr_b16 {vr(b+4,2)}, v{vTR1} offset:{off}")
        e(f"ds_read_b64_tr_b16 {vr(b+6,2)}, v{vTR1} offset:{off+1024}")
    def mm4(buf, act, first=False):
        for nt in range(2):
            for mt in range(2):
                c = vr(ACC2 + 16 * (2 * nt + mt), 16)
                e(f"{MFMA} {c}, {vr(WB2+8*buf+4*nt,4)}, {act[mt]}, {'0' if first else c}")
    tagwait(0)
    st("p2data")
    if OPT.get("trace"): e(f"s_memtime s[84:85];;s_waitcnt lgkmcnt(0);;s_sub_u32 s84, s84, s78;;v_writelane_b32 v240, s84, 1")
    wreads(0)
    cold = []
    def sent(i):
        R = RING + 8 * unit[i]
        chk = [f"v_max3_u32 v{vS2}, v{R}, v{R+1}, v{R+2}", f"v_max3_u32 v{vS2+1}, v{R+3}, v{R+4}, v{R+5}",
               f"v_max3_u32 v{vS2}, v{vS2}, v{R+6}, v{R+7}", f"v_max_u32 v{vS2}, v{vS2}, v{vS2+1}", f"v_cmp_eq_u32 vcc, -1, v{vS2}", "s_nop 0", "s_cmp_lg_u64 vcc, 0"]
        e.ext(chk); e(f"s_cbranch_scc1 K_RT{i}"); e.label(f"K_RB{i}")
        def rl(q):
            Rq = RING + 8 * unit[q]
            o_, b0, b1 = (2048 * order[q], sA0, sA1) if q < 28 else (2048 * (q - 28), sP0, sKV)
            return [f"s_add_u32 s{sT0}, s{b0}, {o_}", f"s_add_u32 s{sT1}, s{b1}, {o_}",
                    f"buffer_load_dwordx4 {vr(Rq,4)}, v{vF0}, {sr(SWS,4)}, s{sT0} offen sc1", f"buffer_load_dwordx4 {vr(Rq+4,4)}, v{vF1}, {sr(SWS,4)}, s{sT1} offen sc1"]
        if OPT.get("rmode", 0) == 0:
            t = [f"K_RT{i}:", f"s_mov_b32 s{sCNT}, 0", f"K_RL{i}:", "s_waitcnt vmcnt(0)", f"s_sleep {OPT.get('rsl', 2)}"]
            for q in range(i, state["na"]): t += rl(q)
            t += [f"s_add_u32 s{sCNT}, s{sCNT}, 1", "s_waitcnt vmcnt(0)", f"s_cmp_ge_u32 s{sCNT}, {SPIN // 8}", f"s_cbranch_scc1 K_RB{i}"] + chk + [f"s_cbranch_scc1 K_RL{i}", f"s_branch K_RB{i}"]
        else:
            t = [f"K_RT{i}:", f"s_mov_b32 s{sCNT}, 0", f"K_RA{i}:", "s_waitcnt vmcnt(0)"]
            for q in range(i, state["na"]): t += rl(q)
            t += ["s_waitcnt vmcnt(0)", f"s_cmp_ge_u32 s{sCNT}, {SPIN // 8}", f"s_cbranch_scc1 K_RB{i}"] + chk + [f"s_cbranch_scc0 K_RB{i}", f"K_RL{i}:", f"s_sleep {OPT.get('rsl', 6)}"]
            t += rl(i) + [f"s_add_u32 s{sCNT}, s{sCNT}, 1", "s_waitcnt vmcnt(0)", f"s_cmp_ge_u32 s{sCNT}, {SPIN // 8}", f"s_cbranch_scc1 K_RA{i}"] + chk + [f"s_cbranch_scc1 K_RL{i}", f"s_branch K_RA{i}"]
        cold.extend(t)
    def mm1(i, t):
        nt, mt = t >> 1, t & 1; c = vr(ACC2 + 16 * t, 16)
        if OPT.get("x_m16") and i > 0:
            for k in range(2):
                c4 = vr(ACC2 + 16 * t + 8 * (i & 1) + 4 * k, 4)
                e(f"{M16} {c4}, {vr(wbuf(i)+4*(nt^k),4)}, {vr(RING+8*unit[i]+4*mt,4)}, {c4}")
            return
        if OPT.get("x_nomm") and i > 0: return
        e(f"{MFMA} {c}, {vr(wbuf(i)+4*nt,4)}, {vr(RING+8*unit[i]+4*mt,4)}, {'0' if i == 0 else c}")
    mark = len(e.L)
    fin_prep()
    e(f"v_and_b32 v{vFW}, 31, v{vL}"); e(f"v_mul_u32_u24 v{vFW}, 272, v{vFW}")
    e(f"v_lshrrev_b32 v26, 5, v{vL}"); e(f"v_lshl_add_u32 v{vFW}, v26, 4, v{vFW}")
    e(f"s_mul_i32 s{sT2}, s{sRG}, 17408"); e(f"s_add_u32 s{sT2}, s{sT2}, {XBASE}")
    e(f"v_add_u32 v{vFW}, s{sT2}, v{vFW}")
    fp = [t.strip() for t in e.L[mark:]]; del e.L[mark:]
    NT = OPT.get("nt", 2)
    for i in range(36 - NT):
        e("s_waitcnt lgkmcnt(0)")
        mm1(i, 0)
        state["done"] = i - 1
        pump(1)
        mm1(i, 1)
        tagwait(i + 1)
        wreads(i + 1)
        mm1(i, 2)
        if i + 1 >= 8: sent(i + 1)
        mm1(i, 3)
        pump(2)
        if i >= 12: e.ext(fp[:3]); del fp[:3]
        st(f"s{i}")
        if OPT.get("trace"): e(f"s_memtime s[84:85];;s_waitcnt lgkmcnt(0);;s_sub_u32 s84, s84, s78;;v_writelane_b32 v240, s84, {i+2}")
    assert not fp and state["na"] == 36 and state["nw"] == 36
    for i in range(37 - NT, 36):
        tagwait(i); wreads(i)
    for i in range(37 - NT, 36): sent(i)
    e("s_waitcnt lgkmcnt(0)")
    def twr(t):
        nt, mt = t >> 1, t & 1
        return [f"ds_write_b128 v{vFW}, {vr(ACC2+16*t+4*q,4)} offset:{32*272*mt + 128*nt + 32*q}" for q in range(4)]
    fin = []
    for t in range(4):
        nt, mt = t >> 1, t & 1; c = vr(ACC2 + 16 * t, 16)
        fin += [f"{MFMA} {c}, {vr(wbuf(i)+4*nt,4)}, {vr(RING+8*unit[i]+4*mt,4)}, {c}" for i in range(36 - NT, 36)]
        if t == 1: fin.append("s_barrier")
        if t >= 1: fin += [f"@NEED {12}", "@MARK"] + twr(t - 1)
        else: fin.append("@MARK")
    fin += ["@NEED 12"] + twr(3)
    e.ext(fin)
    st("s35")
    e("s_waitcnt lgkmcnt(0)")
    if OPT.get("trace"):
        e(f"s_memtime s[84:85];;s_waitcnt lgkmcnt(0);;s_sub_u32 s84, s84, s78;;v_writelane_b32 v240, s84, 36")
        e(f"s_lshl_b32 s84, s2, 2;;s_add_u32 s84, s84, s{sRG};;s_lshl_b32 s84, s84, 8;;s_add_u32 s84, s84, {210<<20};;v_lshlrev_b32 v241, 2, v{vL}")
        e(f"buffer_store_dword v240, v241, {sr(SWS,4)}, s84 offen")
    e("s_branch K_LAST")
    e.label("K_GFIN")
    st("gend")
    e("s_setprio 0")
    e(f"v_lshrrev_b32 v{vXO}, 3, v{vL}"); e(f"v_lshlrev_b32 v{vXO}, 10, v{vXO}")
    e(f"v_and_b32 v{vS2}, 7, v{vL}"); e(f"v_lshl_add_u32 v{vXO}, v{vS2}, 4, v{vXO}")
    fin_loads()
    e("s_waitcnt vmcnt(0)")
    fin_prep()
    e("s_barrier")
    e.label("K_LAST")
    e("s_barrier")
    for p in range(4):
        for hh in range(2):
            e(f"ds_read_b128 {vr(ACC2+8*p+4*hh,4)}, v{vFR2} offset:{17408*p + 16*hh}")
    for p in range(4):
        e(f"s_waitcnt lgkmcnt({6 - 2*p})")
        for j in range(0, 8, 2): e(f"v_pk_add_f32 {vr(vXB+j,2)}, {vr(vXB+j,2)}, {vr(ACC2+8*p+j,2)}")
    for j in range(4): e(f"v_cvt_pk_bf16_f32 v{OP+j}, v{vXB+2*j}, v{vXB+2*j+1}")
    e(f"buffer_store_dwordx4 {vr(OP,4)}, v{vXO}, {sr(SO,4)}, s{sXO} offen {OPT.get('st2', '').replace('_', ' ')}")
    e.label("K_FIN")
    if OPT.get("x_hold"):
        if "x_hwg" in OPT: e(f"s_cmp_lg_u32 s2, {OPT['x_hwg']}"); e("s_cbranch_scc1 K_END")
        e.label("K_HOLD")
        e("s_sleep 4"); e("s_memrealtime s[82:83]"); e("s_waitcnt lgkmcnt(0)")
        e("s_sub_u32 s82, s82, s80"); e(f"s_cmp_lt_u32 s82, {OPT['x_hold']}")
        e(f"s_cselect_b32 s82, s{sISC}, 0"); e("s_cmp_lg_u32 s82, 0"); e("s_cbranch_scc1 K_HOLD")
    if OPT.get("cnt"): e("s_add_u32 s90, s91, s78")
    if OPT["stamps"] and not OPT.get("phys"):
        e(f"s_xor_b32 s{sW}, s{sISC}, 1"); e(f"s_lshl_b32 s{sW}, s{sW}, 2"); e(f"s_add_u32 s{sW}, s{sW}, s{sRG}")
    stamp_end(e, 0, SWS, "K_END", sW, 0)
    e.label("K_END")
    e("s_endpgm")
    e.ext(cold)
    return e.text()

HEADER = """; out = x + hedgehog_linear_attention(LN(x)) + gelu_ffn(LN(x));  one launch, 256 workgroups x 8 waves, one per CU.
; Phase 1: 128 QKV workgroups (128 rows x 4 heads) and 128 FFN workgroups (128 rows x 224 hidden columns).  Raw x fragments stay in
;   registers, weight tiles stream through LDS (LDS-DMA + transposing reads); LayerNorm is applied exactly as a rank-1 correction
;   (row mean x column sum, one extra MFMA) and a per-row scale folded into the epilogues (GELU / true-max softmaxes).
; Phase 2: every workgroup computes a 64x64 tile of [h | o] @ [w2 ; wo] (+ x + b2), K split over four waves, while the other four
; Hand-offs through d_ws use sc1 stores/loads only: per-wave flag lines (reset at start, ordered by a counter in d_debug) and
;   slots pre-filled with an all-ones mark that the reader re-reads until the mark is gone.  Every spin is bounded.
"""
def main():
    out = HEADER
    out += "; @launch grid=(256,1,1) block=(512,1,1) lds=163840\n"
    out += '.amdgcn_target "amdgcn-amd-amdhsa--gfx950"\n.text\n'
    out += f".globl {KN}\n.p2align 8\n.type {KN},@function\n{KN}:\n" + gen()
    out += ".p2align 8\n.fill 1536, 4, 0xbf800000\n"
    out += f""".section .rodata,"a"
.p2align 6
.amdhsa_kernel {KN}
  .amdhsa_next_free_vgpr 256
  .amdhsa_next_free_sgpr 102
  .amdhsa_accum_offset 256
  .amdhsa_group_segment_fixed_size 0
  .amdhsa_kernarg_size 96
  .amdhsa_user_sgpr_count 2
  .amdhsa_user_sgpr_kernarg_segment_ptr 1
  .amdhsa_system_sgpr_workgroup_id_x 1
.end_amdhsa_kernel
"""
    open(sys.argv[1], "w").write(out)
main()
```
